```python
import torch

def _softmax(x, axis=-1):
    return torch.softmax(x, dim=axis)
def _gelu(x):
    return torch.nn.functional.gelu(x, approximate="tanh")
def _silu(x):
    return torch.nn.functional.silu(x)
def _sigmoid(x):
    return torch.sigmoid(x)
def _layernorm(x, axis=-1, eps=1e-5):
    m = x.mean(dim=axis, keepdim=True)
    v = x.var(dim=axis, keepdim=True, unbiased=False)
    return (x - m) / torch.sqrt(v + eps)
def _scatter_add(tgt, idx, src, axis=0):
    return tgt.clone().index_add_(axis, idx, src)
def _segment_sum(src, seg, n):
    out = torch.zeros((n,) + src.shape[1:], dtype=src.dtype)
    return out.index_add_(0, seg, src)
def _pad(x, pw):
    flat = tuple(v for pair in reversed(pw) for v in pair)
    return torch.nn.functional.pad(x, flat)

kernel_name = 'sequential_preLN__sliding_block__mixer_token_mlp__prompt'

def setup_inputs():

    _w = (lambda a: (lambda t: t.to(torch.bfloat16) if t.is_floating_point() else t)(torch.as_tensor(a)))
    def _A_setup():
        B, S, D = 1, 2048, 576
        return {
            "x": _w((lambda *s: torch.randn(*s, dtype=torch.bfloat16) * 0.05)(B, S, D)),
            "wqkv": _w((lambda *s: torch.randn(*s, dtype=torch.bfloat16) * 0.05)(D, 3 * D)),
            "wo": _w((lambda *s: torch.randn(*s, dtype=torch.bfloat16) * 0.05)(D, D)),
        }
    _A_in = _A_setup()

    def _B_setup():
        B, S, D, F = 1, 2048, 576, 4608
        return {
            "x": _w((lambda *s: torch.randn(*s, dtype=torch.bfloat16) * 0.05)(B, S, D)),
            "w1": _w((lambda *s: torch.randn(*s, dtype=torch.bfloat16) * 0.8)(S, F) * (S ** -0.5)),
            "b1": _w((lambda *s: torch.randn(*s, dtype=torch.bfloat16) * 0.8)(F) * 0.02),
            "w2": _w((lambda *s: torch.randn(*s, dtype=torch.bfloat16) * 0.8)(F, S) * (F ** -0.5)),
            "b2": _w((lambda *s: torch.randn(*s, dtype=torch.bfloat16) * 0.8)(S) * 0.02),
        }
    _B_in = _B_setup()

    return {
        "A_x": _A_in["x"],
        "A_wqkv": _A_in["wqkv"],
        "A_wo": _A_in["wo"],
        "B_x": _B_in["x"],
        "B_w1": _B_in["w1"],
        "B_b1": _B_in["b1"],
        "B_w2": _B_in["w2"],
        "B_b2": _B_in["b2"],
    }

def reference(A_x, A_wqkv, A_wo, B_x, B_w1, B_b1, B_w2, B_b2):
    def _A_ref(x, wqkv, wo):
        B, S, D = x.shape
        H = 32; Dh = D // H; W = 256
        qkv = (lambda x, *d: x.permute(*d))((x @ wqkv).reshape(B, S, 3, H, Dh), 2, 0, 3, 1, 4)
        q, k, v = qkv[0], qkv[1], qkv[2]
        scores = torch.einsum("bhqd,bhkd->bhqk", q, k) * (Dh ** -0.5)
        idx = torch.arange(S)
        mask = (idx[:, None] - idx[None, :] >= 0) & (idx[:, None] - idx[None, :] < W)
        scores = torch.where(mask[None, None], scores, -1e9)
        p = _softmax(scores, axis=-1)
        o = torch.einsum("bhqk,bhkd->bhqd", p, v)
        return (lambda x, *d: x.permute(*d))(o, 0, 2, 1, 3).reshape(B, S, D) @ wo

    def _B_ref(x, w1, b1, w2, b2):
        B, S, D = x.shape
        h = _layernorm(x, axis=-1)
        u = torch.einsum("bsd,sf->bdf", h, w1) + b1
        u = _gelu(u)
        y = torch.einsum("bdf,fs->bds", u, w2) + b2
        return (lambda x, *d: x.permute(*d))(y, 0, 2, 1)

    x = A_x
    h = x + _A_ref(_layernorm(x, axis=-1), A_wqkv, A_wo)
    h2 = h + _B_ref(_layernorm(h, axis=-1), B_w1, B_b1, B_w2, B_b2)
    return h2
```

```python
import re

def v(i, n=1):
    return f"v{i}" if n == 1 else f"v[{i}:{i+n-1}]"
def a(i, n=1):
    return f"a{i}" if n == 1 else f"a[{i}:{i+n-1}]"
def s(i, n=1):
    return f"s{i}" if n == 1 else f"s[{i}:{i+n-1}]"

_REG = re.compile(r"^(-|abs\()?([vas])(?:(\d+)|\[(\d+):(\d+)\])\)?$")
def regs_of(op):
    op = op.strip()
    if op in ("vcc",): return {("s", 106), ("s", 107)}
    if op == "vcc_lo": return {("s", 106)}
    if op == "vcc_hi": return {("s", 107)}
    if op == "exec": return {("s", 126), ("s", 127)}
    if op == "m0": return {("s", 124)}
    m = _REG.match(op)
    if not m: return set()
    k = m.group(2)
    if m.group(3) is not None: return {(k, int(m.group(3)))}
    return {(k, i) for i in range(int(m.group(4)), int(m.group(5)) + 1)}

TRANS = ("v_exp_f32", "v_log_f32", "v_rcp_f32", "v_rsq_f32", "v_sqrt_f32", "v_sin_f32", "v_cos_f32", "v_rcp_iflag_f32")

class Ins:
    def __init__(self, text):
        self.text = text
        t = text.split(";")[0].strip()
        self.label = None
        self.op = None
        if not t or t.startswith("."):
            return
        if t.endswith(":"):
            self.label = t[:-1]; return
        parts = t.split(None, 1)
        self.op = parts[0]
        rest = parts[1] if len(parts) > 1 else ""
        ops, depth, cur = [], 0, ""
        for ch in rest:
            if ch in "[(": depth += 1
            if ch in "])": depth -= 1
            if ch == "," and depth == 0:
                ops.append(cur.strip()); cur = ""
            else: cur += ch
        if cur.strip(): ops.append(cur.strip())
        self.mods = ""
        if ops:
            last = ops[-1].split(None, 1)
            ops[-1] = last[0]
            self.mods = last[1] if len(last) > 1 else ""
        self.ops = ops
        self.classify()

    def classify(self):
        op, ops = self.op, self.ops
        R = regs_of
        self.kind = "other"; self.dst = set(); self.src = set()
        self.mfma = None; self.dpp = False; self.wide_store = set(); self.lds_dma = False
        if op.startswith("v_mfma"):
            self.kind = "mfma"
            self.passes = 8 if "32x32" in op else 4
            self.dst = R(ops[0]); self.A = R(ops[1]); self.B = R(ops[2]); self.C = R(ops[3])
            self.src = self.A | self.B | self.C
        elif op.startswith("v_"):
            self.kind = "valu"
            base = op.replace("_e32", "").replace("_e64", "").replace("_dpp", "")
            self.base = base
            self.dpp = "_dpp" in op or "row_" in self.mods or "quad_perm" in self.mods
            if base.startswith("v_cmp"):
                self.dst = R(ops[0]); self.src = set().union(*[R(o) for o in ops[1:]])
                if base.startswith("v_cmpx"): self.dst |= R("exec")
            elif base.startswith("v_permlane") and "swap" in base:
                self.dst = R(ops[0]) | R(ops[1]); self.src = set(self.dst)
            elif base in ("v_add_co_u32", "v_sub_co_u32", "v_addc_co_u32", "v_subb_co_u32"):
                self.dst = R(ops[0]) | R(ops[1]); self.src = set().union(*[R(o) for o in ops[2:]])
            else:
                self.dst = R(ops[0]); self.src = set().union(*[R(o) for o in ops[1:]]) if len(ops) > 1 else set()
                if base in ("v_fmac_f32", "v_dot2c_f32_bf16", "v_writelane_b32") or self.dpp: self.src |= self.dst
            self.trans = base in TRANS
        elif op.startswith("ds_"):
            self.kind = "ds"
            if op.startswith("ds_read") or op.startswith("ds_bpermute") or op.startswith("ds_swizzle") or op.startswith("ds_permute"):
                self.dst = R(ops[0]); self.src = set().union(*[R(o) for o in ops[1:]])
            else:
                self.src = set().union(*[R(o) for o in ops])
        elif op.startswith("buffer_") or op.startswith("global_"):
            self.kind = "vmem"
            allr = [R(o) for o in ops]
            lds = " lds" in (" " + self.mods) or "_lds_" in op
            if lds:
                self.lds_dma = True
                self.src = set().union(*allr) | R("m0")
            elif "_load" in op:
                self.dst = allr[0]; self.src = set().union(*allr[1:])
            elif "_store" in op:
                self.src = set().union(*allr)
                if "x3" in op or "x4" in op:
                    self.wide_store = allr[0] if op.startswith("buffer_") else allr[1]
            elif "atomic" in op:
                self.src = set().union(*allr)
                if "sc0" in self.mods: self.dst = allr[0]
            else:
                self.src = set().union(*allr) if allr else set()
        elif op.startswith("s_"):
            self.kind = "salu"
            if op in ("s_nop", "s_waitcnt", "s_barrier", "s_endpgm", "s_sleep", "s_setprio") or op.startswith("s_cbranch") or op == "s_branch" or op.startswith("s_cmp"):
                self.src = set().union(*[R(o) for o in ops]) if ops else set()
            else:
                self.dst = R(ops[0]) if ops else set()
                self.src = set().union(*[R(o) for o in ops[1:]]) if len(ops) > 1 else set()
                if "saveexec" in op: self.dst |= R("exec")

    def states(self):
        if self.op == "s_nop": return int(self.ops[0], 0) + 1
        return 1

def need(prod, cons):
    n = 0
    vg = lambda st: {r for r in st if r[0] in "va"}
    sg = lambda st: {r for r in st if r[0] == "s"}
    if prod.kind == "valu":
        pv, ps = vg(prod.dst), sg(prod.dst)
        if cons.kind == "mfma" and pv & cons.src: n = max(n, 2)
        if cons.kind == "valu":
            if prod.trans and (pv & cons.src) : n = max(n, 1)
            if cons.base in ("v_readfirstlane_b32", "v_readlane_b32") and pv & cons.src: n = max(n, 1)
            if cons.base.startswith("v_permlane") and pv & cons.src: n = max(n, 2)
            if cons.dpp and pv & cons.src: n = max(n, 2)
            if ps & cons.src:
                n = max(n, 4 if cons.base in ("v_readlane_b32", "v_writelane_b32") else 2)
            if ("s", 126) in ps:
                if cons.dpp: n = max(n, 5)
                if cons.base in ("v_readfirstlane_b32", "v_readlane_b32", "v_writelane_b32") or cons.base.startswith("v_permlane"): n = max(n, 4)
        if cons.kind == "mfma" and ("s", 126) in ps: n = max(n, 4)
        if prod.trans and cons.kind in ("mfma", "vmem", "ds") and pv & cons.src: n = max(n, 2 if cons.kind == "mfma" else 1)
        if cons.kind == "vmem" and ps & cons.src: n = max(n, 5)
        if cons.kind == "salu" and ps & cons.src: n = max(n, 1)
    elif prod.kind == "mfma":
        big = 12 if prod.passes == 8 else 8
        D = prod.dst
        if cons.kind == "mfma":
            if D & (cons.A | cons.B): n = max(n, big)
            if D & cons.C:
                if not (D == cons.C and prod.passes == cons.passes): n = max(n, big - 2)
            elif D & cons.dst: n = max(n, big)
        elif cons.kind in ("valu", "vmem", "ds"):
            if D & (cons.src | cons.dst): n = max(n, big)
        if cons.kind == "valu" and (prod.C & cons.dst): n = max(n, 7 if prod.passes == 8 else 3)
    elif prod.kind == "salu":
        if ("s", 124) in prod.dst and cons.kind == "vmem" and cons.lds_dma: n = max(n, 1)
    if prod.kind == "vmem" and prod.wide_store:
        if cons.kind in ("valu", "mfma", "ds", "vmem") and prod.wide_store & cons.dst: n = max(n, 2)
    return n

MAXAGE = 14

def fix_hazards(lines, name=""):
    ins = [Ins(l) for l in lines]
    labels = {x.label: i for i, x in enumerate(ins) if x.label}
    out = []
    state = []
    snaps = {}
    heads = {}
    inserted = 0
    def step(state, x):
        k = x.states()
        ns = [[p, ag + k] for p, ag in state if ag + k < MAXAGE]
        if x.kind in ("valu", "mfma", "salu") or x.wide_store: ns.append([x, 0])
        return ns
    for i, x in enumerate(ins):
        if x.label:
            for sn in snaps.get(x.label, []):
                state = state + sn
            heads[x.label] = len(out)
            out.append(x); continue
        if x.op is None:
            out.append(x); continue
        req = 0
        for p, ag in state:
            req = max(req, need(p, x) - ag)
        while req > 0:
            k = min(req, 16)
            nop = Ins(f"s_nop {k-1}")
            out.append(nop); state = step(state, nop); inserted += 1
            req -= k
        out.append(x)
        state = step(state, x)
        if x.op.startswith("s_cbranch") or x.op == "s_branch":
            tgt = x.ops[0]
            if tgt in heads:
                st = [list(e) for e in state]
                for y in out[heads[tgt]:heads[tgt] + 40]:
                    if y.op is None: continue
                    for p, ag in st:
                        if need(p, y) - ag > 0:
                            raise SystemExit(f"{name}: loop-carried hazard: '{p.text}' -> '{y.text}' short by {need(p, y) - ag}")
                    k = y.states()
                    st = [[p, ag + k] for p, ag in st if ag + k < MAXAGE]
            else:
                snaps.setdefault(tgt, []).append([list(e) for e in state])
            if x.op == "s_branch": state = []
        if x.op == "s_endpgm": state = []
    return [x.text for x in out], inserted

class Kern:
    def __init__(self, name, block, grid, lds):
        self.name, self.block, self.grid, self.lds = name, block, grid, lds
        self.L = []
        self.nv = 0; self.na = 0; self.ns = 0
        self._lab = 0
    def __call__(self, txt):
        for l in txt.split("\n"):
            l = l.strip()
            if l: self.L.append(l)
    def lab(self, base="L"):
        self._lab += 1
        return f"{base}_{self.name[:-7]}_{self._lab}"
    def finish(self):
        lines, n = fix_hazards(self.L, self.name)
        mv = ma = ms = -1
        for l in lines:
            x = Ins(l)
            if x.op is None: continue
            for k, i in (x.dst | x.src):
                if k == "v": mv = max(mv, i)
                elif k == "a": ma = max(ma, i)
                elif k == "s" and i < 102: ms = max(ms, i)
        acc = (mv + 1 + 3) // 4 * 4
        nfv = acc + ma + 1 if ma >= 0 else mv + 1
        assert mv < 256 and nfv <= 512, (self.name, mv, ma)
        self.stats = dict(vgpr=mv + 1, agpr=ma + 1, sgpr=ms + 1, nops=n, ninstr=len(lines))
        body = f".globl {self.name}\n.p2align 8\n.type {self.name},@function\n{self.name}:\n" + "\n".join("    " + l if not l.endswith(":") else l for l in lines) + "\n"
        kd = f""".section .rodata,"a"
.p2align 6
.amdhsa_kernel {self.name}
  .amdhsa_next_free_vgpr {max(nfv, 8)}
  .amdhsa_next_free_sgpr {max(ms + 1, 16)}
  .amdhsa_accum_offset {max(acc, 4)}
  .amdhsa_group_segment_fixed_size 0
  .amdhsa_kernarg_size 88
  .amdhsa_user_sgpr_count 2
  .amdhsa_user_sgpr_kernarg_segment_ptr 1
  .amdhsa_system_sgpr_workgroup_id_x 1
.end_amdhsa_kernel
"""
        return body, kd
```

```python
from asmlib import *
import struct

MB = 1 << 20
WS_QM = 0
WS_KM = 2 * MB
WS_VM = 4 * MB
WS_Q8 = 6 * MB
WS_K8 = 6 * MB + 256 * 1024
WS_V8 = 6 * MB + 512 * 1024
WS_OM = 8 * MB
WS_O8 = 10 * MB
WS_H = 12 * MB
WS_HN = 16 * MB
WS_ST = 20 * MB
WS_U = 24 * MB
WS_SIZE = 32 * MB

S_, D_, F_ = 2048, 576, 4608

def f32(x):
    return "0x%08x" % struct.unpack("<I", struct.pack("<f", x))[0]

def srd(k, d, ptr, nbytes):
    k(f"s_mov_b32 s{d}, s{ptr}")
    k(f"s_and_b32 s{d+1}, s{ptr+1}, 0xffff")
    k(f"s_mov_b32 s{d+2}, {nbytes}")
    k(f"s_mov_b32 s{d+3}, 0x20000")

def lane_ids(k, vl, vw, sw):
    k(f"v_and_b32 v{vl}, 63, v0")
    k(f"v_lshrrev_b32 v{vw}, 6, v0")
    k(f"v_readfirstlane_b32 s{sw}, v{vw}")

def interleave(main, fill, start=0, per=1):
    out = []; fi = 0
    for n, m in enumerate(main):
        out.append(m)
        if n >= start:
            for _ in range(per):
                if fi < len(fill): out.append(fill[fi]); fi += 1
    out += fill[fi:]
    return out
```

```python
from common import *
import math

def gen_k1(name="k1_qkv_kernel"):
    NSLOT = 7; STG = 18432
    CS = 2 * STG
    STAT = CS + 576
    k = Kern(name, 256, 192, NSLOT * STG)
    END = k.lab("END")
    k(f"s_cmp_ge_u32 s2, 192\ns_cbranch_scc1 {END}")
    k("s_load_dwordx4 s[4:7], s[0:1], 0\ns_load_dwordx2 s[8:9], s[0:1], 80")
    k("s_and_b32 s10, s2, 7\ns_lshr_b32 s11, s2, 3")
    k("s_and_b32 s24, s10, 3\ns_lshl_b32 s24, s24, 2\ns_and_b32 s25, s11, 3\ns_add_u32 s24, s24, s25")
    k("s_lshr_b32 s25, s10, 2\ns_mul_i32 s25, s25, 6\ns_lshr_b32 s29, s11, 2\ns_add_u32 s25, s25, s29")
    k("s_lshr_b32 s26, s25, 2\ns_and_b32 s27, s25, 3")
    VL, VW, VG, VI = 1, 2, 3, 4
    lane_ids(k, VL, VW, 28)
    k(f"v_lshrrev_b32 v{VG}, 4, v{VL}\nv_and_b32 v{VI}, 15, v{VL}")
    VX0, VX1 = 5, 6
    k(f"v_mul_u32_u24 v{VX0}, 1152, v{VI}\nv_lshl_add_u32 v{VX0}, v{VG}, 4, v{VX0}\nv_add_u32 v{VX1}, {16*1152}, v{VX0}")
    VWD = 7
    T0, T1, T2 = 21, 22, 23
    for q in range(5):
        k(f"v_mul_u32_u24 v{T0}, 288, v{VW}\nv_add_u32 v{T0}, v{T0}, v{VL}\nv_add_u32 v{T0}, {q*64}, v{T0}")
        k(f"v_mul_u32_u24 v{T1}, 3641, v{T0}\nv_lshrrev_b32 v{T1}, 16, v{T1}")
        k(f"v_mul_u32_u24 v{T2}, 18, v{T1}\nv_sub_u32 v{T0}, v{T0}, v{T2}")
        d = VWD + q
        k(f"v_and_b32 v{d}, 35, v{T1}")
        k(f"v_bfe_u32 v{T2}, v{T1}, 4, 1\nv_lshl_or_b32 v{d}, v{T2}, 2, v{d}")
        k(f"v_bfe_u32 v{T2}, v{T1}, 2, 2\nv_lshl_or_b32 v{d}, v{T2}, 3, v{d}")
        k(f"v_mul_u32_u24 v{d}, 3456, v{d}\nv_lshl_add_u32 v{d}, v{T0}, 4, v{d}")
    VTR = 12
    k(f"v_bfe_u32 v{T0}, v{VL}, 2, 2\nv_lshl_add_u32 v{T0}, v{VG}, 2, v{T0}\nv_mul_u32_u24 v{T0}, 288, v{T0}")
    k(f"v_and_b32 v{T1}, 3, v{VL}")
    for j in range(9):
        sT = 40 + j
        k(f"s_lshl_b32 s{sT}, s28, 1\ns_add_u32 s{sT}, s{sT}, {j}")
        k(f"s_sub_u32 s30, s{sT}, 9\ns_cmp_ge_u32 s{sT}, 9\ns_cselect_b32 s{sT}, s30, s{sT}")
        k(f"s_lshr_b32 s30, s{sT}, 1\ns_mul_i32 s30, s30, 72\ns_and_b32 s31, s{sT}, 1\ns_mul_i32 s31, s31, 40\ns_add_u32 s30, s30, s31")
        k(f"s_cmp_eq_u32 s{sT}, 8\ns_cselect_b32 s30, 32, s30\ns_cselect_b32 s31, 72, 8")
        k(f"v_mul_u32_u24 v{T2}, s31, v{T1}\nv_add3_u32 v{VTR+j}, v{T0}, v{T2}, s30")
    k("s_waitcnt lgkmcnt(0)")
    srd(k, 12, 4, S_ * D_ * 2)
    srd(k, 16, 6, D_ * 1728 * 2)
    srd(k, 20, 8, WS_SIZE)
    k("s_lshl_b32 s32, s24, 7\ns_lshl_b32 s30, s28, 5\ns_add_u32 s32, s32, s30\ns_mul_i32 s32, s32, 1152")
    k("s_mul_i32 s33, s25, 288")
    k("s_mul_i32 s34, s28, 4608")
    XF = 24
    WF = XF + 144
    ONE = WF + 72
    SUM = ONE + 4
    assert SUM + 4 <= 256
    for r in range(4): k(f"v_mov_b32 v{ONE+r}, 0x3f803f80")
    for r in range(4): k(f"v_mov_b32 v{SUM+r}, 0")
    for r in range(72 + 12): k(f"v_accvgpr_write_b32 a{r}, 0")

    def issue(st):
        out = []
        for ks in (2 * st, 2 * st + 1):
            for tt in range(2):
                out.append(f"buffer_load_dwordx4 {v(XF+(ks*2+tt)*4,4)}, v{VX0+tt}, s[12:15], s32 offen offset:{ks*64}")
        base = (st % NSLOT) * STG
        for q in range(5):
            t = f"s_add_u32 m0, s34, {base + q*1024}\n"
            if q == 4: t += "s_mov_b32 exec_hi, 0\n"
            else: t += "s_nop 0\n"
            t += f"buffer_load_dwordx4 v{VWD+q}, s[16:19], s33 offen lds"
            if q == 4: t += f"\ns_mov_b32 exec_hi, -1\ns_add_u32 s33, s33, {64*3456}"
            out.append(t)
        return out
    PRE = 6
    for st in range(PRE):
        for t in issue(st): k(t)

    def reads(st, ks, rs):
        slot = st % NSLOT
        off = (slot % 3) * STG + ks * 9216
        out = []
        for j in range(9):
            for hf in range(2):
                out.append(f"ds_read_b64_tr_b16 {v(WF+rs*36+j*4+hf*2,2)}, v{VTR+j} offset:{off+hf*4608}")
        return out
    def rebase(st):
        slot = st % NSLOT
        pslot = (st - 1) % NSLOT
        d = (slot // 3 - pslot // 3) * 3 * STG
        if st == 0 or d == 0: return []
        if d > 0: return [f"v_add_u32 v{VTR+j}, {d}, v{VTR+j}" for j in range(9)]
        return [f"v_subrev_u32 v{VTR+j}, {-d}, v{VTR+j}" for j in range(9)]

    def body(vor):
        def mf(ks, rs):
            groups = []
            for j in range(9):
                wf = v(WF + rs * 36 + j * 4, 4)
                g = []
                for tt in range(2):
                    xf = v(XF + (ks * 2 + tt) * 4, 4)
                    ac = a((j * 2 + tt) * 4, 4)
                    g.append(f"v_mfma_f32_16x16x32_bf16 {ac}, {xf}, {wf}, {ac}" if vor else f"v_mfma_f32_16x16x32_bf16 {ac}, {wf}, {xf}, {ac}")
                if j < 3:
                    ac = a(72 + j * 4, 4); on = v(ONE, 4)
                    g.append(f"v_mfma_f32_16x16x32_bf16 {ac}, {on}, {wf}, {ac}" if vor else f"v_mfma_f32_16x16x32_bf16 {ac}, {wf}, {on}, {ac}")
                groups += g
            return groups
        def dots(ks):
            out = []
            for r in range(4):
                for tt in range(2):
                    x = XF + (ks * 2 + tt) * 4 + r
                    out.append(f"v_dot2c_f32_bf16 v{SUM+2*tt}, v{x}, v{ONE}")
                    out.append(f"v_dot2c_f32_bf16 v{SUM+2*tt+1}, v{x}, v{x}")
            return out
        issued = PRE
        k(f"s_waitcnt vmcnt({9*(issued-1)})\ns_barrier")
        for t in reads(0, 0, 0): k(t)
        for st in range(9):
            k("s_waitcnt lgkmcnt(0)")
            m = mf(2 * st, 0)
            fill = interleave(reads(st, 1, 1), dots(2 * st), 0, 1)
            for t in interleave(m, fill, 0, 2): k(t)
            fill = []
            if st < 8:
                k(f"s_waitcnt vmcnt({9*(issued-(st+1)-1)}) lgkmcnt(0)\ns_barrier")
                fill = rebase(st + 1) + reads(st + 1, 0, 0)
                if issued < 9:
                    fill = interleave(fill, issue(issued), 0, 1); issued += 1
            else:
                k("s_waitcnt lgkmcnt(0)")
            m = mf(2 * st + 1, 1)
            fill = interleave(fill, dots(2 * st + 1), 0, 1) if fill else dots(2 * st + 1)
            for t in interleave(m, fill, 0, 2): k(t)
        k("s_nop 3")
        E = XF
        for q in range(4):
            k(f"v_mov_b32 v{E+q}, v{SUM+q}")
        for q in range(4):
            k(f"v_permlane16_swap_b32 v{SUM+q}, v{E+q}")
        for q in range(4):
            k(f"v_add_f32 v{SUM+q}, v{SUM+q}, v{E+q}")
        for q in range(4):
            k(f"v_mov_b32 v{E+q}, v{SUM+q}")
        for q in range(4):
            k(f"v_permlane32_swap_b32 v{SUM+q}, v{E+q}")
        for q in range(4):
            k(f"v_add_f32 v{SUM+q}, v{SUM+q}, v{E+q}")
        k(f"s_mov_b32 s30, {f32(1.0/576)}")
        qs = 18 ** -0.5 * math.log2(math.e)
        k(f"s_cmp_eq_u32 s26, 0\ns_cselect_b32 s31, {f32(qs)}, 1.0")
        for tt in range(2):
            mn, sq = SUM + 2 * tt, SUM + 2 * tt + 1
            k(f"v_mul_f32 v{mn}, s30, v{mn}\nv_mul_f32 v{sq}, s30, v{sq}")
            k(f"v_fma_f32 v{sq}, -v{mn}, v{mn}, v{sq}\nv_max_f32 v{sq}, 0, v{sq}\nv_add_f32 v{sq}, {f32(1e-5)}, v{sq}")
            k(f"v_rsq_f32 v{sq}, v{sq}\nv_mul_f32 v{sq}, s31, v{sq}")
        for r in range(12): k(f"v_accvgpr_read_b32 v{E+r}, a{72+r}")
        AD = E + 12
        if not vor:
            k(f"v_cmp_eq_u32 vcc, 0, v{VI}\nv_lshlrev_b32 v{AD}, 4, v{VG}")
            k("s_and_saveexec_b64 s[36:37], vcc")
            for j in range(3):
                k(f"s_lshl_b32 s30, s{40+j}, 6\nv_add_u32 v{AD+1}, s30, v{AD}\nds_write_b128 v{AD+1}, {v(E+4*j,4)} offset:{CS}")
            k("s_mov_b64 exec, s[36:37]")
        else:
            k(f"v_cmp_eq_u32 vcc, 0, v{VG}\nv_lshlrev_b32 v{AD}, 2, v{VI}")
            k(f"s_lshl_b32 s30, s28, 8\nv_lshlrev_b32 v{AD+2}, 3, v{VI}\nv_add_u32 v{AD+2}, s30, v{AD+2}")
            k("s_and_saveexec_b64 s[36:37], vcc")
            for j in range(3):
                k(f"s_lshl_b32 s30, s{40+j}, 6\nv_add_u32 v{AD+1}, s30, v{AD}\nds_write_b32 v{AD+1}, v{E+4*j} offset:{CS}")
            for tt in range(2):
                k(f"ds_write_b64 v{AD+2}, {v(SUM+2*tt,2)} offset:{STAT+tt*128}")
            k("s_mov_b64 exec, s[36:37]")
        k("s_waitcnt lgkmcnt(0)\ns_barrier")
        CSR = E + 16
        STR = CSR + 36
        OUT = STR + 16
        VM0, VE0 = OUT + 20, OUT + 22
        if not vor:
            k(f"v_lshlrev_b32 v{AD}, 4, v{VG}")
            for j in range(9):
                k(f"s_lshl_b32 s30, s{40+j}, 6\nv_add_u32 v{AD+1}, s30, v{AD}\nds_read_b128 {v(CSR+4*j,4)}, v{AD+1} offset:{CS}")
            k(f"v_lshrrev_b32 v{AD}, 1, v{VG}\nv_lshl_add_u32 v{AD}, v{AD}, 5, v{VI}\nv_lshlrev_b32 v{AD}, 4, v{AD}")
            k(f"v_and_b32 v{AD+1}, 1, v{VG}\nv_lshl_add_u32 v{VM0}, v{AD+1}, 3, v{AD}\nv_add_u32 v{VM0+1}, 256, v{VM0}")
            k(f"v_lshlrev_b32 v{AD}, 14, v{VG}\nv_lshl_add_u32 v{VE0}, v{VI}, 3, v{AD}\nv_add_u32 v{VE0+1}, 128, v{VE0}")
            k(f"s_lshl_b32 s50, s26, 21\ns_lshl_b32 s30, s27, 19\ns_add_u32 s50, s50, s30")
            k(f"s_lshl_b32 s30, s24, 2\ns_add_u32 s30, s30, s28\ns_lshl_b32 s31, s30, 10\ns_add_u32 s50, s50, s31")
            k(f"s_lshl_b32 s51, s26, 18\ns_add_u32 s51, s51, {WS_Q8}\ns_lshl_b32 s31, s27, 16\ns_add_u32 s51, s51, s31")
            k(f"s_lshl_b32 s31, s30, 8\ns_add_u32 s51, s51, s31")
        else:
            k(f"v_lshlrev_b32 v{AD}, 2, v{VI}")
            for j in range(9):
                k(f"s_lshl_b32 s30, s{40+j}, 6\nv_add_u32 v{AD+1}, s30, v{AD}\nds_read_b32 v{CSR+j}, v{AD+1} offset:{CS}")
            k(f"s_lshl_b32 s30, s28, 8\nv_lshlrev_b32 v{AD}, 5, v{VG}\nv_add_u32 v{AD}, s30, v{AD}")
            for tt in range(2):
                for hf in range(2):
                    k(f"ds_read_b128 {v(STR+tt*8+hf*4,4)}, v{AD} offset:{STAT+tt*128+hf*16}")
            k(f"v_and_b32 v{AD}, 1, v{VG}\nv_lshrrev_b32 v{AD+1}, 1, v{VG}\nv_lshlrev_b32 v{AD+1}, 3, v{AD+1}")
            k(f"v_lshl_add_u32 v{VM0}, v{AD}, 8, v{AD+1}\nv_lshl_add_u32 v{VM0}, v{VI}, 4, v{VM0}\nv_add_u32 v{VM0+1}, 512, v{VM0}")
            k(f"v_lshl_add_u32 v{VE0}, v{AD}, 6, v{AD+1}\nv_and_b32 v{AD}, 3, v{VI}\nv_lshl_add_u32 v{VE0}, v{AD}, 4, v{VE0}")
            k(f"v_lshrrev_b32 v{AD}, 2, v{VI}\nv_lshl_add_u32 v{VE0}, v{AD}, 14, v{VE0}\nv_add_u32 v{VE0+1}, 128, v{VE0}")
            k(f"s_lshl_b32 s30, s24, 2\ns_add_u32 s30, s30, s28")
            k(f"s_lshl_b32 s50, s27, 19\ns_add_u32 s50, s50, {WS_VM}\ns_lshl_b32 s31, s30, 10\ns_add_u32 s50, s50, s31")
            k(f"s_lshl_b32 s51, s27, 16\ns_add_u32 s51, s51, {WS_V8}\ns_lshl_b32 s31, s30, 8\ns_add_u32 s51, s51, s31")
        k("s_waitcnt lgkmcnt(0)")
        for j in range(9):
            k(f"s_lshl_b32 s30, s{40+j}, 16\ns_add_u32 s30, s30, s50")
            k(f"s_cmp_eq_u32 s{40+j}, 8\ns_cselect_b32 s30, s51, s30\ns_cselect_b64 s[38:39], -1, 0")
            for tt in range(2):
                o = OUT + ((j * 2 + tt) % 2) * 8
                for r in range(4): k(f"v_accvgpr_read_b32 v{o+r}, a{(j*2+tt)*4+r}")
                for r in range(4):
                    if not vor: k(f"v_fma_f32 v{o+r}, -v{SUM+2*tt}, v{CSR+4*j+r}, v{o+r}")
                    else: k(f"v_fma_f32 v{o+r}, -v{STR+tt*8+2*r}, v{CSR+j}, v{o+r}")
                for r in range(4):
                    if not vor: k(f"v_mul_f32 v{o+r}, v{SUM+2*tt+1}, v{o+r}")
                    else: k(f"v_mul_f32 v{o+r}, v{STR+tt*8+2*r+1}, v{o+r}")
                k(f"v_cvt_pk_bf16_f32 v{o+4}, v{o}, v{o+1}\nv_cvt_pk_bf16_f32 v{o+5}, v{o+2}, v{o+3}")
                k(f"v_cndmask_b32 v{o+6}, v{VM0+tt}, v{VE0+tt}, s[38:39]")
                k(f"buffer_store_dwordx2 {v(o+4,2)}, v{o+6}, s[20:23], s30 offen")
        k("s_endpgm")
    LV = k.lab("VOR")
    k(f"s_cmp_eq_u32 s26, 2\ns_cbranch_scc1 {LV}")
    body(False)
    k(f"{LV}:")
    body(True)
    k(f"{END}:\ns_endpgm")
    return k
```

```python
from common import *

def gen_k2(name="k2_attn_kernel"):
    LK8 = 24576; LV = 27648; REC = 1168
    k = Kern(name, 512, 256, LV + 24 * REC)
    END = k.lab("END")
    k(f"s_cmp_ge_u32 s2, 256\ns_cbranch_scc1 {END}")
    k("s_load_dwordx2 s[8:9], s[0:1], 80")
    k("s_and_b32 s10, s2, 7\ns_lshr_b32 s11, s2, 3")
    k("s_lshl_b32 s24, s10, 1\ns_and_b32 s25, s11, 1\ns_add_u32 s24, s24, s25\ns_lshr_b32 s25, s11, 1")
    VL, VW, VH, VQ = 1, 2, 3, 4
    lane_ids(k, VL, VW, 28)
    k(f"v_lshrrev_b32 v{VH}, 5, v{VL}\nv_and_b32 v{VQ}, 31, v{VL}")
    k("s_lshr_b32 s26, s28, 2\ns_and_b32 s27, s28, 3")
    V16, VV, V8A = 5, 6, 7
    k(f"v_lshlrev_b32 v{V16}, 4, v{VL}")
    k(f"v_lshlrev_b32 v{VV}, 4, v{VQ}\nv_lshl_add_u32 v{VV}, v{VH}, 16, v{VV}")
    k(f"v_lshlrev_b32 v{V8A}, 3, v{VQ}")
    k("s_waitcnt lgkmcnt(0)")
    srd(k, 20, 8, WS_SIZE)
    QM, Q8 = 8, 12
    SK = k.lab("SK8")
    k(f"s_cmp_ge_u32 s28, 3\ns_cbranch_scc1 {SK}")
    k(f"s_add_i32 s30, s25, s28\ns_sub_i32 s30, s30, 2\ns_max_i32 s30, s30, 0\ns_lshl_b32 s30, s30, 10")
    k(f"s_lshl_b32 s31, s24, 14\ns_add_u32 s30, s30, s31\ns_add_u32 s30, s30, {WS_K8}")
    k(f"s_lshl_b32 s31, s28, 10\ns_add_u32 m0, s31, {LK8}\ns_nop 0")
    k(f"buffer_load_dwordx4 v{V16}, s[20:23], s30 offen lds")
    k(f"{SK}:")
    k("s_lshl_b32 s32, s24, 1\ns_add_u32 s32, s32, s26\ns_lshl_b32 s32, s32, 16")
    k("s_lshl_b32 s33, s25, 2\ns_add_u32 s33, s33, s27")
    k(f"s_lshl_b32 s30, s33, 10\ns_add_u32 s30, s30, s32")
    k(f"buffer_load_dwordx4 {v(QM,4)}, v{V16}, s[20:23], s30 offen")
    k(f"s_lshl_b32 s30, s33, 8\ns_lshl_b32 s31, s24, 14\ns_add_u32 s30, s30, s31\ns_add_u32 s30, s30, {WS_Q8}")
    k(f"buffer_load_dwordx2 {v(Q8,2)}, v{V8A}, s[20:23], s30 offen")
    for q in range(3):
        k(f"s_mul_i32 s30, s27, 3\ns_add_u32 s30, s30, {q}")
        k(f"s_mul_i32 s31, s26, 12\ns_add_u32 s31, s31, s30\ns_lshl_b32 m0, s31, 10")
        k(f"s_lshl_b32 s31, s25, 2\ns_add_i32 s30, s30, s31\ns_sub_i32 s30, s30, 8\ns_max_i32 s30, s30, 0")
        k(f"s_lshl_b32 s30, s30, 10\ns_add_u32 s30, s30, s32\ns_add_u32 s30, s30, {WS_KM}")
        k(f"buffer_load_dwordx4 v{V16}, s[20:23], s30 offen lds")
    for q in range(3):
        k(f"s_mul_i32 s30, s28, 3\ns_add_u32 s30, s30, {q}")
        k(f"s_mul_i32 s31, s30, {REC}\ns_add_u32 m0, s31, {LV}")
        k(f"s_lshl_b32 s31, s25, 3\ns_add_i32 s30, s30, s31\ns_sub_i32 s30, s30, 16\ns_max_i32 s30, s30, 0")
        k(f"s_lshl_b32 s31, s30, 9\ns_lshl_b32 s34, s24, 17\ns_add_u32 s31, s31, s34\ns_add_u32 s31, s31, {WS_VM}")
        k(f"buffer_load_dwordx4 v{VV}, s[20:23], s31 offen lds")
        k(f"s_lshl_b32 s31, s30, 7\ns_lshl_b32 s34, s24, 14\ns_add_u32 s31, s31, s34\ns_add_u32 s31, s31, {WS_V8}")
        k(f"s_add_u32 m0, m0, 1024\ns_mov_b64 exec, 0xff")
        k(f"buffer_load_dwordx4 v{V16}, s[20:23], s31 offen lds")
        k("s_mov_b64 exec, -1")
    KF = 16
    K8F = 28
    VF = 40
    O = 56
    MX, MX2, TA, TB = 72, 73, 74, 75
    AK, AK8, AV = 76, 77, 78
    S0 = 80
    SO = k.lab("SONE")
    k(f"s_cmp_lg_u32 s28, 0\ns_cbranch_scc1 {SO}")
    for r in range(4): k(f"v_mov_b32 v{KF+r}, 0x3f803f80")
    k(f"v_mul_u32_u24 v{TA}, {REC}, v{VL}\ns_mov_b64 exec, 0xffffff")
    k(f"ds_write_b128 v{TA}, {v(KF,4)} offset:{LV+1152}")
    k("s_mov_b64 exec, -1")
    k(f"{SO}:")
    k(f"s_mul_i32 s30, s26, 12\ns_add_u32 s30, s30, s27\ns_lshl_b32 s30, s30, 10\nv_add_u32 v{AK}, s30, v{V16}")
    k(f"s_lshl_b32 s30, s27, 8\ns_add_u32 s30, s30, {LK8}\nv_add_u32 v{AK8}, s30, v{V8A}")
    k(f"s_lshl_b32 s30, s26, 9\nv_lshlrev_b32 v{AV}, 8, v{VH}\nv_lshl_add_u32 v{AV}, v{VQ}, 4, v{AV}\nv_add_u32 v{AV}, s30, v{AV}")
    k(f"s_lshl_b32 s30, s26, 5\ns_add_u32 s30, s30, {1024-256}\nv_lshlrev_b32 v{TA}, 6, v{VH}\nv_lshl_add_u32 v{TA}, v{VQ}, 4, v{TA}\nv_add_u32 v{TA}, s30, v{TA}")
    k(f"v_cmp_lt_u32 vcc, 15, v{VQ}\nv_cndmask_b32 v{AV}, v{AV}, v{TA}, vcc")
    k(f"v_mov_b32 v{TA}, 1152\nv_cmp_lt_u32 vcc, 17, v{VQ}\nv_cndmask_b32 v{AV}, v{AV}, v{TA}, vcc")
    k(f"s_mul_i32 s30, s27, {2*REC}\ns_add_u32 s30, s30, {LV}\nv_add_u32 v{AV}, s30, v{AV}")
    NEG = f32(-1e30)
    k(f"s_sub_i32 s35, 8, s33\ns_max_i32 s35, s35, 0\ns_mov_b32 s36, {NEG}")
    k(f"v_mov_b32 v{TB}, s36")
    k(f"v_lshlrev_b32 v{TA}, 2, v{VH}\nv_sub_u32 v{TA}, v{VQ}, v{TA}")
    for j in range(9):
        k(f"s_cmp_gt_u32 s35, {j}\ns_cselect_b32 s30, s36, 0")
        if j == 0:
            k(f"v_mov_b32 v{MX}, s30")
        for r in range(16):
            c = 8 * (r // 4) + (r % 4)
            d = S0 + j * 16 + r
            if j == 0:
                k(f"v_cmp_gt_i32 vcc, {c}, v{TA}\nv_cndmask_b32 v{d}, v{TB}, v{MX}, vcc")
            elif j == 8:
                k(f"v_cmp_gt_i32 vcc, {c}, v{TA}\nv_cndmask_b32 v{d}, 0, v{TB}, vcc")
            else:
                k(f"v_mov_b32 v{d}, s30")
    for q in range(3):
        k(f"v_mov_b32 v{K8F+q*4+2}, 0\nv_mov_b32 v{K8F+q*4+3}, 0")
    for r in range(16): k(f"v_mov_b32 v{O+r}, 0")
    k(f"v_mov_b32 v{Q8+2}, 0\nv_mov_b32 v{Q8+3}, 0")
    k(f"v_mov_b32 v{MX}, s36")
    k("s_waitcnt vmcnt(6) lgkmcnt(0)")
    k("s_cmp_eq_u32 s26, 0\ns_cselect_b32 s38, -1, 0\ns_cselect_b32 s40, 0, -1\ns_mov_b32 s39, 0\ns_mov_b32 s41, 0")
    k(f"v_cndmask_b32 v{Q8}, 0, v{Q8}, s[38:39]\nv_cndmask_b32 v{Q8+1}, 0, v{Q8+1}, s[40:41]")
    k("s_barrier")
    def kread(j):
        return [f"ds_read_b128 {v(KF+(j%3)*4,4)}, v{AK} offset:{j*1024}", f"ds_read_b64 {v(K8F+(j%3)*4,2)}, v{AK8} offset:{j*256}"]
    def mx(j):
        return [f"v_max3_f32 v{MX}, v{MX}, v{S0+j*16+2*r}, v{S0+j*16+2*r+1}" for r in range(8)]
    for t in kread(0) + kread(1): k(t)
    for j in range(9):
        if j + 2 < 9:
            for t in kread(j + 2): k(t)
        k(f"s_waitcnt lgkmcnt({min(2, 8-j)*2})")
        sj = v(S0 + j * 16, 16)
        k(f"v_mfma_f32_32x32x16_bf16 {sj}, {v(KF+(j%3)*4,4)}, {v(QM,4)}, {sj}")
        m = mx(j - 2) if j >= 2 else []
        for t in m[:4]: k(t)
        k(f"v_mfma_f32_32x32x16_bf16 {sj}, {v(K8F+(j%3)*4,4)}, {v(Q8,4)}, {sj}")
        for t in m[4:]: k(t)
    for t in mx(7): k(t)
    k("s_waitcnt vmcnt(0)\ns_barrier")
    def vread(t): return f"ds_read_b128 {v(VF+(t%4)*4,4)}, v{AV} offset:{t*REC}"
    k(vread(0)); k(vread(1))
    for t in mx(8): k(t)
    k(f"v_mov_b32 v{MX2}, v{MX}\nv_permlane32_swap_b32 v{MX}, v{MX2}\nv_max_f32 v{MX}, v{MX}, v{MX2}")
    def soft(j):
        b = S0 + j * 16
        out = [f"v_sub_f32 v{b+r}, v{b+r}, v{MX}" for r in range(16)]
        out += [f"v_exp_f32 v{b+r}, v{b+r}" for r in range(16)]
        out += [f"v_cvt_pk_bf16_f32 v{b+r}, v{b+2*r}, v{b+2*r+1}" for r in range(8)]
        return out
    def pv(j):
        b = S0 + j * 16
        return [f"v_mfma_f32_32x32x16_bf16 {v(O,16)}, {v(VF+((2*j+s_)%4)*4,4)}, {v(b+4*s_,4)}, {v(O,16)}" for s_ in range(2)]
    for t in soft(0): k(t)
    for j in range(9):
        nxt = soft(j + 1) if j < 8 else []
        if j < 8:
            k(vread(2 * j + 2)); k(vread(2 * j + 3))
        p = pv(j)
        for t in nxt[:4]: k(t)
        k(f"s_waitcnt lgkmcnt({2 if j < 8 else 0})")
        k(p[0])
        for t in nxt[4:20]: k(t)
        k(p[1])
        for t in nxt[20:]: k(t)
    k(f"v_lshrrev_b32 v{TA}, 4, v{VQ}\nv_lshlrev_b32 v{TA}, 14, v{TA}\nv_and_b32 v{TB}, 15, v{VQ}")
    k(f"v_lshl_add_u32 v{AK}, v{TB}, 4, v{TA}\nv_lshl_add_u32 v{AK}, v{VH}, 8, v{AK}")
    k(f"s_lshl_b32 s30, s33, 15\ns_lshl_b32 s31, s24, 10\ns_add_u32 s30, s30, s31\ns_lshl_b32 s31, s26, 9\ns_add_u32 s30, s30, s31\ns_add_u32 s30, s30, {WS_OM}")
    k(f"v_lshrrev_b32 v{TA}, 3, v{TA}\nv_lshl_add_u32 v{AK8}, v{TB}, 3, v{TA}")
    k(f"s_lshl_b32 s31, s33, 12\ns_lshl_b32 s34, s24, 7\ns_add_u32 s31, s31, s34\ns_lshl_b32 s34, s26, 2\ns_add_u32 s31, s31, s34\ns_add_u32 s31, s31, {WS_O8}")
    k(f"v_rcp_f32 v{MX}, v{O+10}")
    for r in range(10): k(f"v_mul_f32 v{O+r}, v{O+r}, v{MX}")
    for r in range(5): k(f"v_cvt_pk_bf16_f32 v{KF+r}, v{O+2*r}, v{O+2*r+1}")
    k(f"buffer_store_dwordx4 {v(KF,4)}, v{AK}, s[20:23], s30 offen")
    k("s_mov_b32 exec_hi, 0")
    k(f"buffer_store_dword v{KF+4}, v{AK8}, s[20:23], s31 offen")
    k(f"{END}:\ns_endpgm")
    return k
```

```python
from common import *

def gen_k3(name="k3_wo_kernel"):
    NSLOT = 7; STG = 20480
    k = Kern(name, 256, 192, NSLOT * STG)
    END = k.lab("END")
    k(f"s_cmp_ge_u32 s2, 192\ns_cbranch_scc1 {END}")
    k("s_load_dwordx2 s[4:5], s[0:1], 0\ns_load_dwordx2 s[6:7], s[0:1], 16\ns_load_dwordx2 s[8:9], s[0:1], 80")
    k("s_and_b32 s10, s2, 7\ns_lshr_b32 s11, s2, 3")
    k("s_lshl_b32 s24, s10, 2\ns_and_b32 s25, s11, 3\ns_add_u32 s24, s24, s25\ns_lshr_b32 s25, s11, 2")
    VL, VW, VG, VI = 1, 2, 3, 4
    lane_ids(k, VL, VW, 28)
    k(f"v_lshrrev_b32 v{VG}, 4, v{VL}\nv_and_b32 v{VI}, 15, v{VL}")
    k("s_lshr_b32 s26, s28, 1\ns_and_b32 s27, s28, 1")
    V16 = 5
    k(f"v_lshlrev_b32 v{V16}, 4, v{VL}")
    VWD, VWE = 6, 9
    T0, T1, T2, T3, T4 = 20, 21, 22, 23, 24
    for q in range(3):
        k(f"v_mul_u32_u24 v{T0}, 192, v{VW}\nv_add_u32 v{T0}, v{T0}, v{VL}\nv_add_u32 v{T0}, {q*64}, v{T0}")
        k(f"v_mul_u32_u24 v{T1}, 5462, v{T0}\nv_lshrrev_b32 v{T1}, 16, v{T1}")
        k(f"v_mul_u32_u24 v{T2}, 12, v{T1}\nv_sub_u32 v{T0}, v{T0}, v{T2}")
        k(f"v_bfe_u32 v{T2}, v{T1}, 2, 1\nv_lshlrev_b32 v{T2}, 1, v{T2}\nv_xor_b32 v{T0}, v{T0}, v{T2}\nv_lshlrev_b32 v{T0}, 4, v{T0}")
        k(f"v_and_b32 v{T2}, 7, v{T1}")
        k(f"v_bfe_u32 v{T3}, v{T1}, 3, 1\nv_mad_u32_u24 v{T2}, v{T3}, 20, v{T2}")
        k(f"v_bfe_u32 v{T3}, v{T1}, 4, 1\nv_lshl_add_u32 v{T2}, v{T3}, 3, v{T2}")
        k(f"v_bfe_u32 v{T3}, v{T1}, 5, 1\nv_mad_u32_u24 v{T2}, v{T3}, 36, v{T2}")
        k(f"v_mul_u32_u24 v{T2}, 1152, v{T2}\nv_add_u32 v{VWD+q}, v{T2}, v{T0}")
        k(f"v_bfe_u32 v{T2}, v{T1}, 2, 2\nv_lshlrev_b32 v{T2}, 1, v{T2}\nv_lshl_add_u32 v{T2}, v{T3}, 3, v{T2}")
        k(f"v_bfe_u32 v{T3}, v{T1}, 4, 1\nv_add_u32 v{T2}, v{T2}, v{T3}\nv_mul_u32_u24 v{T2}, 36, v{T2}")
        k(f"v_and_b32 v{T3}, 3, v{T1}\nv_add3_u32 v{T2}, v{T2}, v{T3}, 16")
        k(f"v_mul_u32_u24 v{T2}, 1152, v{T2}\nv_add_u32 v{VWE+q}, v{T2}, v{T0}")
    VTR = 12
    VAO, VAE, VX = 15, 16, 17
    k(f"v_bfe_u32 v{T0}, v{VL}, 2, 2\nv_lshl_add_u32 v{T0}, v{VG}, 2, v{T0}\nv_mul_u32_u24 v{T0}, 192, v{T0}")
    k(f"v_and_b32 v{T1}, 3, v{VL}\nv_lshl_add_u32 v{T0}, v{T1}, 3, v{T0}\nv_add_u32 v{T0}, 8192, v{T0}")
    k(f"v_and_b32 v{T1}, 1, v{VG}\ns_mul_i32 s30, s27, 3")
    for dt in range(3):
        k(f"s_add_u32 s31, s30, {dt}\nv_xor_b32 v{T2}, s31, v{T1}\nv_lshl_add_u32 v{VTR+dt}, v{T2}, 5, v{T0}")
    k(f"s_lshl_b32 s30, s26, 11\nv_add_u32 v{VAO}, s30, v{V16}")
    k(f"v_lshlrev_b32 v{T0}, 8, v{VG}\nv_lshl_add_u32 v{T0}, v{VI}, 3, v{T0}\nv_add_u32 v{VAE}, s30, v{T0}")
    k(f"v_add_u32 v{VAE}, {(8 % NSLOT) * STG}, v{VAE}")
    k(f"v_mul_u32_u24 v{VX}, 1152, v{VI}\nv_lshl_add_u32 v{VX}, v{T1}, 4, v{VX}\nv_add_u32 v{VX+1}, {16*1152}, v{VX}")
    IDN = 28
    k(f"v_lshlrev_b32 v{T0}, 3, v{VG}\nv_sub_u32 v{T0}, v{VI}, v{T0}\nv_mov_b32 v{T1}, 0x3f80\nv_mov_b32 v{T2}, 0x3f800000")
    for j2 in range(4):
        k(f"v_cmp_eq_u32 vcc, {2*j2}, v{T0}\nv_cndmask_b32 v{IDN+j2}, 0, v{T1}, vcc")
        k(f"v_cmp_eq_u32 vcc, {2*j2+1}, v{T0}\nv_cndmask_b32 v{IDN+j2}, v{IDN+j2}, v{T2}, vcc")
    k("s_waitcnt lgkmcnt(0)")
    srd(k, 12, 4, S_ * D_ * 2)
    srd(k, 16, 6, D_ * D_ * 2)
    srd(k, 20, 8, WS_SIZE)
    XR = 32
    ACC = 56
    AF = 80
    BF = 96
    k("s_lshl_b32 s30, s24, 6\ns_lshl_b32 s31, s26, 5\ns_add_u32 s30, s30, s31\ns_mul_i32 s30, s30, 1152")
    k("s_mul_i32 s31, s25, 192\ns_add_u32 s30, s30, s31\ns_mul_i32 s31, s27, 96\ns_add_u32 s30, s30, s31")
    for tt in range(2):
        for dt in range(3):
            k(f"buffer_load_dwordx4 {v(XR+(tt*3+dt)*4,4)}, v{VX+tt}, s[12:15], s30 offen offset:{dt*32}")
    k(f"s_lshl_b32 s30, s24, 2\ns_add_u32 s30, s30, s28\ns_lshl_b32 s32, s30, 14\ns_add_u32 s32, s32, {WS_OM}")
    k(f"s_lshl_b32 s36, s30, 11\ns_add_u32 s36, s36, {WS_O8}")
    k("s_mul_i32 s33, s25, 192\ns_mov_b32 s37, s33")
    k("s_lshl_b32 s34, s28, 10\ns_mul_i32 s35, s28, 3072\ns_add_u32 s35, s35, 8192")
    def issue(st):
        out = []
        base = (st % NSLOT) * STG
        so = 32 if st < 8 else 36
        for ks in range(2):
            out.append(f"s_add_u32 m0, s34, {base + ks*4096}\ns_nop 0\nbuffer_load_dwordx4 v{V16}, s[20:23], s{so} offen lds\ns_add_u32 s{so}, s{so}, 1024")
        for q in range(3):
            t = f"s_add_u32 m0, s35, {base + q*1024}\ns_nop 0\nbuffer_load_dwordx4 v{(VWD if st < 8 else VWE)+q}, s[16:19], s{33 if st < 8 else 37} offen lds"
            if q == 2 and st < 8: t += f"\ns_add_u32 s33, s33, {72*1152}"
            out.append(t)
        return out
    PRE = 6
    for st in range(PRE):
        for t in issue(st): k(t)
    def reads(st, ks, rs):
        slot = st % NSLOT
        off = (slot % 3) * STG
        out = []
        for tt in range(2):
            if st < 8: out.append(f"ds_read_b128 {v(AF+rs*8+tt*4,4)}, v{VAO} offset:{off+ks*4096+tt*1024}")
            else:
                out.append(f"ds_read_b64 {v(AF+rs*8+tt*4,2)}, v{VAE} offset:{ks*4096+tt*1024}")
                out.append(f"ds_read_b64 {v(AF+rs*8+tt*4+2,2)}, v{VAE} offset:{ks*4096+tt*1024+128}")
        for dt in range(3):
            for hf in range(2):
                out.append(f"ds_read_b64_tr_b16 {v(BF+rs*12+dt*4+hf*2,2)}, v{VTR+dt} offset:{off+ks*6144+hf*3072}")
        return out
    def rebase(st):
        slot = st % NSLOT; pslot = (st - 1) % NSLOT
        d = (slot // 3 - pslot // 3) * 3 * STG
        regs = [VTR, VTR + 1, VTR + 2, VAO]
        if st == 0 or d == 0: return []
        if d > 0: return [f"v_add_u32 v{r}, {d}, v{r}" for r in regs]
        return [f"v_subrev_u32 v{r}, {-d}, v{r}" for r in regs]
    def mf(rs):
        return [f"v_mfma_f32_16x16x32_bf16 {v(ACC+(tt*3+dt)*4,4)}, {v(AF+rs*8+tt*4,4)}, {v(BF+rs*12+dt*4,4)}, {v(ACC+(tt*3+dt)*4,4)}"
                for tt in range(2) for dt in range(3)]
    issued = PRE
    k(f"s_waitcnt vmcnt({5*(issued-1)})\ns_barrier")
    for t in reads(0, 0, 0): k(t)
    for q in range(6):
        k(f"v_mfma_f32_16x16x32_bf16 {v(ACC+q*4,4)}, {v(XR+q*4,4)}, {v(IDN,4)}, 0")
    for st in range(9):
        k("s_waitcnt lgkmcnt(0)")
        for t in interleave(mf(0), reads(st, 1, 1), 0, 2): k(t)
        fill = []
        if st < 8:
            k(f"s_waitcnt vmcnt({5*(issued-(st+1)-1)}) lgkmcnt(0)\ns_barrier")
            fill = rebase(st + 1) + reads(st + 1, 0, 0)
            if issued < 9:
                fill = fill + issue(issued); issued += 1
        else:
            k("s_waitcnt lgkmcnt(0)")
        for t in interleave(mf(1), fill, 0, 2): k(t)
    PK = XR
    U = XR + 12
    ST = AF
    k(f"v_lshrrev_b32 v{T0}, 3, v{VI}\nv_lshlrev_b32 v{T0}, 15, v{T0}\nv_lshl_add_u32 v{T0}, v{VG}, 7, v{T0}")
    k(f"v_and_b32 v{T1}, 7, v{VI}\nv_lshl_add_u32 v{T0}, v{T1}, 4, v{T0}")
    k(f"s_mul_i32 s30, s25, 12\ns_mul_i32 s31, s27, 6\ns_add_u32 s30, s30, s31\ns_lshl_b32 s30, s30, 15")
    k(f"s_lshl_b32 s31, s24, 1\ns_add_u32 s31, s31, s26\ns_lshl_b32 s38, s31, 9\ns_add_u32 s30, s30, s38\ns_add_u32 s30, s30, {WS_H}")
    for dt in range(3):
        for tt in range(2):
            ac = ACC + (tt * 3 + dt) * 4
            k(f"v_cvt_pk_bf16_f32 v{PK+dt*4+tt*2}, v{ac}, v{ac+1}\nv_cvt_pk_bf16_f32 v{PK+dt*4+tt*2+1}, v{ac+2}, v{ac+3}")
        k(f"buffer_store_dwordx4 {v(PK+dt*4,4)}, v{T0}, s[20:23], s30 offen\ns_add_u32 s30, s30, 65536")
    for dt in range(3):
        for tt in range(2):
            for h2 in range(2):
                p = PK + dt * 4 + tt * 2 + h2
                k(f"v_lshlrev_b32 v{U}, 16, v{p}\nv_and_b32 v{U+1}, 0xffff0000, v{p}")
                for e in range(2):
                    d = ST + tt * 8 + (h2 * 2 + e) * 2
                    if dt == 0: k(f"v_mov_b32 v{d}, v{U+e}\nv_mul_f32 v{d+1}, v{U+e}, v{U+e}")
                    else: k(f"v_add_f32 v{d}, v{d}, v{U+e}\nv_fmac_f32 v{d+1}, v{U+e}, v{U+e}")
    for sh in (8, 4, 2, 1):
        for r in range(16):
            k(f"v_add_f32_dpp v{ST+r}, v{ST+r}, v{ST+r} row_ror:{sh} row_mask:0xf bank_mask:0xf")
    k(f"s_lshl_b32 s30, s25, 1\ns_add_u32 s30, s30, s27\ns_lshl_b32 s30, s30, 14\ns_lshl_b32 s31, s31, 8\ns_add_u32 s30, s30, s31\ns_add_u32 s30, s30, {WS_ST}")
    k(f"v_lshlrev_b32 v{T0}, 5, v{VG}\nv_cmp_eq_u32 vcc, 0, v{VI}\ns_and_saveexec_b64 s[38:39], vcc")
    for tt in range(2):
        for hf in range(2):
            k(f"buffer_store_dwordx4 {v(ST+tt*8+hf*4,4)}, v{T0}, s[20:23], s30 offen offset:{tt*128+hf*16}")
    k(f"{END}:\ns_endpgm")
    return k

def gen_k3b(name="k3b_ln_kernel"):
    k = Kern(name, 256, 192, 1024)
    END = k.lab("END")
    k(f"s_cmp_ge_u32 s2, 192\ns_cbranch_scc1 {END}")
    k("s_load_dwordx2 s[8:9], s[0:1], 80")
    VL, VW, VG, VI = 1, 2, 3, 4
    lane_ids(k, VL, VW, 28)
    k(f"v_lshrrev_b32 v{VG}, 4, v{VL}\nv_and_b32 v{VI}, 15, v{VL}")
    k("s_lshl_b32 s24, s2, 2\ns_add_u32 s24, s24, s28\ns_mul_i32 s25, s24, 5462\ns_lshr_b32 s25, s25, 16")
    k("s_mul_i32 s26, s25, 12\ns_sub_u32 s26, s24, s26")
    VS, VH, T0 = 5, 6, 7
    k(f"v_lshrrev_b32 v{T0}, 5, v{VL}\nv_mul_u32_u24 v{VS}, {6*16384}, v{T0}\nv_and_b32 v{T0}, 31, v{VL}\nv_lshl_add_u32 v{VS}, v{T0}, 3, v{VS}")
    k(f"v_lshrrev_b32 v{VH}, 3, v{VI}\nv_lshlrev_b32 v{VH}, 15, v{VH}\nv_lshl_add_u32 v{VH}, v{VG}, 7, v{VH}")
    k(f"v_and_b32 v8, 7, v{VI}\nv_lshl_add_u32 v{VH}, v8, 4, v{VH}")
    k("s_waitcnt lgkmcnt(0)")
    srd(k, 20, 8, WS_SIZE)
    P = 10
    HF = 24
    AB = 36
    k(f"s_lshl_b32 s30, s25, 8\ns_add_u32 s30, s30, {WS_ST}")
    for p in range(6):
        k(f"buffer_load_dwordx2 {v(P+2*p,2)}, v{VS}, s[20:23], s30 offen\ns_add_u32 s30, s30, 16384")
    k(f"s_mul_i32 s30, s26, {6*32768}\ns_lshl_b32 s31, s25, 9\ns_add_u32 s30, s30, s31\ns_add_u32 s31, s30, {WS_HN}\ns_add_u32 s30, s30, {WS_H}")
    for q in range(3):
        k(f"buffer_load_dwordx4 {v(HF+4*q,4)}, v{VH}, s[20:23], s30 offen\ns_add_u32 s30, s30, 65536")
    k("s_waitcnt vmcnt(3)")
    for p in range(1, 6):
        k(f"v_add_f32 v{P}, v{P}, v{P+2*p}\nv_add_f32 v{P+1}, v{P+1}, v{P+2*p+1}")
    k(f"v_mov_b32 v{P+2}, v{P}\nv_mov_b32 v{P+3}, v{P+1}")
    k(f"v_permlane32_swap_b32 v{P}, v{P+2}\nv_permlane32_swap_b32 v{P+1}, v{P+3}")
    k(f"v_add_f32 v{P}, v{P}, v{P+2}\nv_add_f32 v{P+1}, v{P+1}, v{P+3}")
    k(f"s_mov_b32 s32, {f32(1.0/576)}")
    mn, sq = P, P + 1
    k(f"v_mul_f32 v{mn}, s32, v{mn}\nv_mul_f32 v{sq}, s32, v{sq}\nv_fma_f32 v{sq}, -v{mn}, v{mn}, v{sq}\nv_max_f32 v{sq}, 0, v{sq}")
    k(f"v_add_f32 v{P+2}, {f32(1e-5)}, v{sq}\nv_rsq_f32 v{P+2}, v{P+2}")
    k(f"v_mul_f32 v{sq}, v{sq}, v{P+2}\nv_mul_f32 v{sq}, v{sq}, v{P+2}\nv_add_f32 v{sq}, {f32(1e-5)}, v{sq}\nv_rsq_f32 v{sq}, v{sq}")
    k(f"v_mul_f32 v{P+2}, v{P+2}, v{sq}\nv_mul_f32 v{P+3}, -v{mn}, v{P+2}")
    k(f"s_lshl_b32 s33, s28, 8\nv_lshlrev_b32 v{T0}, 3, v{T0}\nv_add_u32 v{T0}, s33, v{T0}")
    k(f"ds_write_b64 v{T0}, {v(P+2,2)}")
    k(f"v_lshlrev_b32 v{T0}, 5, v{VG}\nv_add_u32 v{T0}, s33, v{T0}\ns_waitcnt lgkmcnt(0)")
    for q in range(4):
        k(f"ds_read_b128 {v(AB+4*q,4)}, v{T0} offset:{(q>>1)*128+(q&1)*16}")
    k("s_waitcnt vmcnt(0) lgkmcnt(0)")
    for q in range(3):
        for j2 in range(4):
            p = HF + 4 * q + j2
            k(f"v_lshlrev_b32 v{P}, 16, v{p}\nv_and_b32 v{P+1}, 0xffff0000, v{p}")
            k(f"v_fma_f32 v{P}, v{P}, v{AB+4*j2}, v{AB+4*j2+1}\nv_fma_f32 v{P+1}, v{P+1}, v{AB+4*j2+2}, v{AB+4*j2+3}")
            k(f"v_cvt_pk_bf16_f32 v{p}, v{P}, v{P+1}")
        k(f"buffer_store_dwordx4 {v(HF+4*q,4)}, v{VH}, s[20:23], s31 offen\ns_add_u32 s31, s31, 65536")
    k(f"{END}:\ns_endpgm")
    return k
```

```python
from common import *
import math

def gen_k4(name="k4_mlp1_kernel"):
    STG = 28672
    k = Kern(name, 256, 216, 4 * STG)
    END = k.lab("END")
    k(f"s_cmp_ge_u32 s2, 216\ns_cbranch_scc1 {END}")
    k("s_load_dwordx4 s[4:7], s[0:1], 32\ns_load_dwordx2 s[8:9], s[0:1], 80")
    k("s_and_b32 s10, s2, 7\ns_lshr_b32 s11, s2, 3")
    k("s_mul_i32 s24, s11, 10923\ns_lshr_b32 s24, s24, 16\ns_mul_i32 s25, s24, 6\ns_sub_u32 s25, s11, s25")
    k("s_and_b32 s29, s10, 1\ns_mul_i32 s30, s29, 5\ns_add_u32 s24, s24, s30")
    k("s_mul_i32 s30, s29, 3\ns_add_u32 s30, s30, s25")
    k("s_cmp_ge_u32 s11, 24\ns_cselect_b32 s24, 4, s24\ns_cselect_b32 s25, s30, s25")
    k("s_lshr_b32 s30, s10, 1\ns_mul_i32 s30, s30, 9\ns_add_u32 s24, s24, s30")
    VL, VW, VG, VI = 1, 2, 3, 4
    lane_ids(k, VL, VW, 28)
    k(f"v_lshrrev_b32 v{VG}, 4, v{VL}\nv_and_b32 v{VI}, 15, v{VL}")
    k("s_lshr_b32 s26, s28, 1\ns_and_b32 s27, s28, 1")
    VWD = 5
    VHD = 9
    VTR = 12
    VHR = 20
    VFR = 22
    T0, T1, T2 = 23, 24, 25
    for q in range(4):
        k(f"v_lshlrev_b32 v{T0}, 4, v{VW}\nv_add3_u32 v{T0}, v{T0}, v{VG}, {4*q}")
        k(f"v_and_b32 v{T1}, 7, v{T0}\nv_lshlrev_b32 v{T1}, 1, v{T1}\nv_xor_b32 v{T1}, v{T1}, v{VI}\nv_lshlrev_b32 v{T1}, 4, v{T1}")
        k(f"v_mul_u32_u24 v{T0}, 9216, v{T0}\nv_add_u32 v{VWD+q}, v{T0}, v{T1}")
    k(f"v_lshlrev_b32 v{T0}, 7, v{VG}\nv_and_b32 v{T1}, 7, v{VI}\nv_lshl_add_u32 v{VFR}, v{T1}, 4, v{T0}")
    k(f"v_lshrrev_b32 v{T0}, 3, v{VI}\nv_lshl_add_u32 v{VHD}, v{T0}, 15, v{VFR}")
    k(f"v_add_u32 v{VHD+1}, 65536, v{VHD}\nv_add_u32 v{VHD+2}, 131072, v{VHD}")
    k(f"v_bfe_u32 v{T0}, v{VL}, 2, 2\nv_lshl_add_u32 v{T0}, v{VG}, 2, v{T0}")
    k(f"v_and_b32 v{T1}, 7, v{T0}\nv_lshlrev_b32 v{T0}, 8, v{T0}\nv_and_b32 v{T2}, 3, v{VL}\nv_lshl_add_u32 v{T0}, v{T2}, 3, v{T0}")
    k("s_lshl_b32 s30, s26, 2")
    for f4 in range(4):
        k(f"s_add_u32 s31, s30, {f4}\nv_xor_b32 v{T2}, s31, v{T1}\nv_lshl_add_u32 v{VTR+f4}, v{T2}, 5, v{T0}\nv_add_u32 v{VTR+4+f4}, {2*STG}, v{VTR+f4}")
    k(f"s_mul_i32 s30, s27, 3072\ns_add_u32 s30, s30, 16384\nv_lshlrev_b32 v{VHR}, 4, v{VL}\nv_add_u32 v{VHR}, s30, v{VHR}\nv_add_u32 v{VHR+1}, {2*STG}, v{VHR}")
    k("s_waitcnt lgkmcnt(0)")
    srd(k, 12, 4, S_ * F_ * 2)
    srd(k, 16, 6, F_ * 2)
    srd(k, 20, 8, WS_SIZE)
    B1 = 26
    ACC = 36
    WF = 84
    HF = 116
    k(f"v_lshlrev_b32 v{T0}, 3, v{VG}\ns_lshl_b32 s30, s24, 8\ns_lshl_b32 s31, s26, 7\ns_add_u32 s30, s30, s31")
    for f4 in range(4):
        k(f"buffer_load_dwordx2 {v(B1+2*f4,2)}, v{T0}, s[16:19], s30 offen offset:{f4*32}")
    k("s_lshl_b32 s32, s24, 8")
    k(f"s_mul_i32 s33, s25, 6\ns_mul_i32 s30, s27, 3\ns_add_u32 s33, s33, s30\ns_lshl_b32 s33, s33, 16\ns_lshl_b32 s30, s26, 9\ns_add_u32 s33, s33, s30\ns_add_u32 s33, s33, {WS_HN}")
    k("s_lshl_b32 s34, s28, 12\ns_mul_i32 s35, s28, 3072\ns_add_u32 s35, s35, 16384")
    for r in range(48): k(f"v_mov_b32 v{ACC+r}, 0")
    def issue(slot):
        out = []
        base = slot * STG
        for q in range(4):
            t = f"s_add_u32 m0, s34, {base + q*1024}\ns_nop 0\nbuffer_load_dwordx4 v{VWD+q}, s[12:15], s32 offen lds"
            if q == 3: t += f"\ns_add_u32 s32, s32, {64*9216}"
            out.append(t)
        for q in range(3):
            t = f"s_add_u32 m0, s35, {base + q*1024}\ns_nop 0\nbuffer_load_dwordx4 v{VHD+q}, s[20:23], s33 offen lds"
            if q == 2: t += f"\ns_add_u32 s33, s33, 1024"
            out.append(t)
        return out
    for st in range(4):
        for t in issue(st): k(t)
    def reads(slot, ks, rs):
        hi = slot >> 1; off = (slot & 1) * STG
        out = []
        for f4 in range(4):
            for hf in range(2):
                out.append(f"ds_read_b64_tr_b16 {v(WF+rs*16+f4*4+hf*2,2)}, v{VTR+4*hi+f4} offset:{off+ks*8192+hf*4096}")
            if f4 < 3:
                out.append(f"ds_read_b128 {v(HF+rs*12+f4*4,4)}, v{VHR+hi} offset:{off+ks*6144+f4*1024}")
        return out
    def mf(rs):
        return [f"v_mfma_f32_16x16x32_bf16 {v(ACC+(f4*3+dt)*4,4)}, {v(WF+rs*16+f4*4,4)}, {v(HF+rs*12+dt*4,4)}, {v(ACC+(f4*3+dt)*4,4)}"
                for f4 in range(4) for dt in range(3)]
    k("s_waitcnt vmcnt(21)\ns_barrier")
    for t in reads(0, 0, 0): k(t)
    def stage(slot, vm, do_issue, last=False):
        k("s_waitcnt lgkmcnt(0)")
        for t in interleave(mf(0), reads(slot, 1, 1), 0, 2): k(t)
        fill = []
        if not last:
            k(f"s_waitcnt vmcnt({vm}) lgkmcnt(0)\ns_barrier")
            fill = reads((slot + 1) % 4, 0, 0)
            if do_issue: fill = fill + issue(slot)
        else:
            k("s_waitcnt lgkmcnt(0)")
        for t in interleave(mf(1), fill, 0, 2): k(t)
    LOOP = k.lab("LOOP")
    k(f"s_mov_b32 s36, 7\n{LOOP}:")
    for slot in range(4): stage(slot, 14, True)
    k(f"s_sub_u32 s36, s36, 1\ns_cmp_lg_u32 s36, 0\ns_cbranch_scc1 {LOOP}")
    stage(0, 14, False); stage(1, 7, False); stage(2, 0, False); stage(3, 0, False, True)
    c1 = -2.0 * math.sqrt(2.0 / math.pi) * math.log2(math.e)
    c2 = c1 * 0.044715
    k(f"s_mov_b32 s30, {f32(c2)}\nv_mov_b32 v{T2}, {f32(c1)}")
    BB = WF
    for f4 in range(4):
        for h2 in range(2):
            k(f"v_lshlrev_b32 v{BB+f4*4+h2*2}, 16, v{B1+f4*2+h2}\nv_and_b32 v{BB+f4*4+h2*2+1}, 0xffff0000, v{B1+f4*2+h2}")
    k(f"v_lshrrev_b32 v{T0}, 3, v{VI}\nv_mul_u32_u24 v{T0}, {144*512}, v{T0}\nv_add_u32 v{T0}, v{T0}, v{VFR}")
    k(f"s_mul_i32 s31, s25, 12\ns_mul_i32 s37, s27, 6\ns_add_u32 s31, s31, s37\ns_mul_i32 s31, s31, {144*512}")
    k(f"s_lshl_b32 s37, s24, 11\ns_add_u32 s31, s31, s37\ns_lshl_b32 s37, s26, 10\ns_add_u32 s31, s31, s37\ns_add_u32 s31, s31, {WS_U}")
    TT = WF + 16
    PKD = HF
    for dt in range(3):
        for pr in range(2):
            xs = [ACC + ((2 * pr + h) * 3 + dt) * 4 + r for h in range(2) for r in range(4)]
            bs = [BB + (2 * pr + h) * 4 + r for h in range(2) for r in range(4)]
            for n in range(8): k(f"v_add_f32 v{xs[n]}, v{xs[n]}, v{bs[n]}")
            for n in range(8): k(f"v_mul_f32 v{TT+n}, v{xs[n]}, v{xs[n]}")
            for n in range(8): k(f"v_fma_f32 v{TT+n}, v{TT+n}, s30, v{T2}")
            for n in range(8): k(f"v_mul_f32 v{TT+n}, v{TT+n}, v{xs[n]}")
            for n in range(8): k(f"v_exp_f32 v{TT+n}, v{TT+n}")
            for n in range(8): k(f"v_add_f32 v{TT+n}, 1.0, v{TT+n}")
            for n in range(8): k(f"v_rcp_f32 v{TT+n}, v{TT+n}")
            for n in range(8): k(f"v_mul_f32 v{xs[n]}, v{xs[n]}, v{TT+n}")
            o = PKD + (dt * 2 + pr) * 4
            for n in range(4): k(f"v_cvt_pk_bf16_f32 v{o+n}, v{xs[2*n]}, v{xs[2*n+1]}")
            k(f"buffer_store_dwordx4 {v(o,4)}, v{T0}, s[20:23], s31 offen offset:{pr*512}")
        k(f"s_add_u32 s31, s31, {2*144*512}")
    k(f"{END}:\ns_endpgm")
    return k
```

```python
from common import *

def gen_k5(name="k5_mlp2_kernel"):
    XCH = 65536
    k = Kern(name, 256, 256, XCH + 4 * 15360)
    END = k.lab("END")
    k(f"s_cmp_ge_u32 s2, 256\ns_cbranch_scc1 {END}")
    k("s_load_dwordx4 s[4:7], s[0:1], 48\ns_load_dwordx2 s[10:11], s[0:1], 64\ns_load_dwordx2 s[8:9], s[0:1], 80")
    k("s_and_b32 s29, s2, 7\ns_lshr_b32 s30, s2, 3")
    k("s_lshl_b32 s24, s29, 2\ns_and_b32 s25, s30, 3\ns_add_u32 s24, s24, s25\ns_lshr_b32 s25, s30, 2")
    VL, VW, VG, VI = 1, 2, 3, 4
    lane_ids(k, VL, VW, 28)
    k(f"v_lshrrev_b32 v{VG}, 4, v{VL}\nv_and_b32 v{VI}, 15, v{VL}")
    VWD = 5
    VU = 9
    VTR = 14
    VH = 18
    T0, T1, T2 = 20, 21, 22
    B2 = 23
    k(f"v_lshrrev_b32 v{T0}, 3, v{VL}\nv_lshlrev_b32 v{T0}, 12, v{T0}")
    k(f"v_lshlrev_b32 v{T1}, 1, v{VG}\nv_and_b32 v{T2}, 7, v{VL}\nv_xor_b32 v{T1}, v{T1}, v{T2}\nv_lshl_add_u32 v{VWD}, v{T1}, 4, v{T0}")
    for q in range(1, 4): k(f"v_add_u32 v{VWD+q}, {q*32768}, v{VWD}")
    k(f"v_lshlrev_b32 v{T0}, 7, v{VG}\nv_lshl_add_u32 v{T0}, v{T2}, 4, v{T0}")
    k(f"v_lshrrev_b32 v{T1}, 3, v{VI}\nv_mul_u32_u24 v{VU}, {144*512}, v{T1}\nv_add_u32 v{VU}, v{VU}, v{T0}")
    k(f"v_lshl_add_u32 v{VH}, v{T1}, 15, v{T0}")
    for dt in range(1, 5): k(f"v_add_u32 v{VU+dt}, {dt*2*144*512}, v{VU}")
    k(f"v_mov_b32 v{T2}, 0x7ff00000\nv_cmp_lt_u32 vcc, 7, v{VI}\nv_cndmask_b32 v{VU+4}, v{VU+4}, v{T2}, vcc\nv_cndmask_b32 v{VH+1}, v{VH}, v{T2}, vcc")
    k(f"v_bfe_u32 v{T0}, v{VL}, 2, 2\nv_lshl_add_u32 v{T0}, v{VG}, 2, v{T0}")
    k(f"v_bfe_u32 v{T1}, v{T0}, 1, 2\nv_lshlrev_b32 v{T0}, 7, v{T0}\nv_and_b32 v{T2}, 3, v{VL}\nv_lshl_add_u32 v{T0}, v{T2}, 3, v{T0}")
    k(f"s_lshl_b32 s34, s28, 14\nv_add_u32 v{T0}, s34, v{T0}")
    for l in range(4):
        k(f"s_add_u32 s30, s28, {l}\ns_and_b32 s30, s30, 3\nv_xor_b32 v{T2}, s30, v{T1}\nv_lshl_add_u32 v{VTR+l}, v{T2}, 5, v{T0}")
    IDN = 24
    UF = 28
    WF = UF + 80
    HR = WF + 32
    k(f"v_lshlrev_b32 v{T0}, 2, v{VG}\nv_sub_u32 v{T0}, v{VI}, v{T0}\nv_mov_b32 v{T1}, 0x3f80\nv_mov_b32 v{T2}, 0x3f800000")
    k("s_and_b32 s30, s28, 1\ns_cmp_eq_u32 s30, 0\ns_cselect_b64 s[38:39], -1, 0")
    for j2 in range(2):
        k(f"v_cmp_eq_u32 vcc, {2*j2}, v{T0}\nv_cndmask_b32 v{B2}, 0, v{T1}, vcc")
        k(f"v_cmp_eq_u32 vcc, {2*j2+1}, v{T0}\nv_cndmask_b32 v{B2}, v{B2}, v{T2}, vcc")
        k(f"v_cndmask_b32 v{IDN+j2}, 0, v{B2}, s[38:39]\nv_cndmask_b32 v{IDN+2+j2}, v{B2}, 0, s[38:39]")
    k("s_waitcnt lgkmcnt(0)")
    srd(k, 12, 4, F_ * S_ * 2)
    srd(k, 16, 6, S_ * 2)
    srd(k, 20, 8, WS_SIZE)
    srd(k, 40, 10, S_ * D_ * 2)
    k(f"s_lshl_b32 s30, s24, 7\ns_lshl_b32 s31, s28, 5\ns_add_u32 s30, s30, s31\nv_lshlrev_b32 v{T0}, 1, v{VI}")
    k(f"buffer_load_ushort v{B2}, v{T0}, s[16:19], s30 offen")
    k(f"s_mul_i32 s30, s25, {9*32768}\ns_lshl_b32 s31, s24, 10\ns_add_u32 s30, s30, s31\ns_lshr_b32 s31, s28, 1\ns_lshl_b32 s31, s31, 9\ns_add_u32 s30, s30, s31\ns_add_u32 s30, s30, {WS_H}")
    for dt in range(5):
        k(f"buffer_load_dwordx4 {v(HR+4*dt,4)}, v{VH+(dt==4)}, s[20:23], s30 offen\ns_add_u32 s30, s30, 65536")
    k(f"s_mul_i32 s32, s28, {36*131072}\ns_lshl_b32 s30, s24, 7\ns_add_u32 s32, s32, s30")
    k(f"s_mul_i32 s33, s25, {9*144*512}\ns_mul_i32 s30, s28, {36*512}\ns_add_u32 s33, s33, s30\ns_add_u32 s33, s33, {WS_U}")
    def dma(slot):
        out = []
        for q in range(4):
            t = f"s_add_u32 m0, s34, {slot*4096+q*1024}\ns_nop 0\nbuffer_load_dwordx4 v{VWD+q}, s[12:15], s32 offen lds"
            if q == 3: t += "\ns_add_u32 s32, s32, 131072"
            out.append(t)
        return out
    def uld(slot, dt):
        t = f"buffer_load_dwordx4 {v(UF+slot*20+dt*4,4)}, v{VU+dt}, s[20:23], s33 offen"
        if dt == 4: t += "\ns_add_u32 s33, s33, 512"
        return t
    for n in range(4):
        for t in dma(n): k(t)
        for dt in range(5): k(uld(n, dt))
    for dt in range(5):
        for l in range(1, 4):
            for r in range(4): k(f"v_accvgpr_write_b32 a{(dt*4+l)*4+r}, 0")
    def reads(slot, rs):
        return [f"ds_read_b64_tr_b16 {v(WF+rs*16+l*4+hf*2,2)}, v{VTR+l} offset:{slot*4096+hf*2048}" for l in range(4) for hf in range(2)]
    k("s_waitcnt vmcnt(27)")
    for t in reads(0, 0): k(t)
    for dt in range(5):
        k(f"v_mfma_f32_16x16x32_bf16 {a(dt*16,4)}, {v(HR+4*dt,4)}, {v(IDN,4)}, 0")
    def step(slot, rs, vm, do_issue, last=False):
        if not last: k(f"s_waitcnt vmcnt({vm}) lgkmcnt(0)")
        else: k("s_waitcnt lgkmcnt(0)")
        fill = [] if last else reads((slot + 1) % 4, rs ^ 1)
        if do_issue: fill = fill + dma(slot)
        fi = 0
        for dt in range(5):
            for l in range(4):
                ac = a((dt * 4 + l) * 4, 4)
                k(f"v_mfma_f32_16x16x32_bf16 {ac}, {v(UF+slot*20+dt*4,4)}, {v(WF+rs*16+l*4,4)}, {ac}")
                if fi < len(fill): k(fill[fi]); fi += 1
            if do_issue and dt >= 3:
                pass
        if do_issue:
            for dt in range(5): k(uld(slot, dt))
    LOOP = k.lab("LOOP")
    k(f"s_mov_b32 s36, 8\n{LOOP}:")
    for n in range(4): step(n, n & 1, 18, True)
    k(f"s_sub_u32 s36, s36, 1\ns_cmp_lg_u32 s36, 0\ns_cbranch_scc1 {LOOP}")
    step(0, 0, 18, False); step(1, 1, 9, False); step(2, 0, 0, False); step(3, 1, 0, False, True)
    k(f"v_lshlrev_b32 v{T0}, 4, v{VL}")
    for l in range(1, 4):
        k(f"s_add_u32 s30, s28, {l}\ns_and_b32 s30, s30, 3\ns_mul_i32 s30, s30, 15360\ns_add_u32 s30, s30, {XCH+(l-1)*5120}\nv_add_u32 v{T1}, s30, v{T0}")
        for dt in range(5):
            k(f"ds_write_b128 v{T1}, {a((dt*4+l)*4,4)} offset:{dt*1024}")
    k(f"s_mul_i32 s30, s28, 15360\ns_add_u32 s30, s30, {XCH}\nv_add_u32 v{T1}, s30, v{T0}")
    R = UF
    for dt in range(5):
        for r in range(4): k(f"v_accvgpr_read_b32 v{R+60+dt*4+r}, a{dt*16+r}")
    k(f"v_lshlrev_b32 v{B2}, 16, v{B2}")
    k(f"v_mul_u32_u24 v{T0}, 1152, v{VI}\nv_lshl_add_u32 v{T0}, v{VG}, 3, v{T0}")
    k(f"s_lshl_b32 s30, s24, 6\ns_lshl_b32 s31, s28, 4\ns_add_u32 s30, s30, s31\ns_mul_i32 s30, s30, 1152\ns_mul_i32 s31, s25, 144\ns_add_u32 s30, s30, s31")
    k("s_waitcnt lgkmcnt(0)\ns_barrier")
    for dt in range(5):
        for l in range(3):
            k(f"ds_read_b128 {v(R+(dt*3+l)*4,4)}, v{T1} offset:{l*5120+dt*1024}")
    for dt in range(5):
        k(f"s_waitcnt lgkmcnt({12-3*dt})")
        o = R + 60 + dt * 4
        for r in range(4): k(f"v_add_f32 v{o+r}, v{o+r}, v{B2}")
        for l in range(3):
            for r in range(4): k(f"v_add_f32 v{o+r}, v{o+r}, v{R+(dt*3+l)*4+r}")
        k(f"v_cvt_pk_bf16_f32 v{o}, v{o}, v{o+1}\nv_cvt_pk_bf16_f32 v{o+1}, v{o+2}, v{o+3}")
        if dt == 4: k("s_mov_b32 exec_hi, 0")
        k(f"buffer_store_dwordx2 {v(o,2)}, v{T0}, s[40:43], s30 offen offset:{dt*32}")
    k(f"{END}:\ns_endpgm")
    return k
```

```python
import sys
sys.path.insert(0, "gen")
from common import *
from k1 import gen_k1
from k2 import gen_k2
from k3 import gen_k3, gen_k3b
from k4 import gen_k4
from k5 import gen_k5

HDR = open("sequential_preLN__sliding_block__mixer_token_mlp__prompt.s.ref").read().split("; Override launch")[0]

def build(kerns, launches=None):
    launches = launches or kerns
    out = HDR
    for kk in launches:
        out += f"; @launch kernel={kk.name} grid=({kk.grid},1,1) block=({kk.block},1,1) lds={kk.lds}\n"
    out += '.amdgcn_target "amdgcn-amd-amdhsa--gfx950"\n.text\n'
    kds = ""
    for kk in kerns:
        b, kd = kk.finish()
        print(kk.name, kk.stats, "lds", kk.lds, file=sys.stderr)
        out += b; kds += kd
    return out + kds

if __name__ == "__main__":
    ks = [gen_k1(), gen_k2(), gen_k3(), gen_k3b(), gen_k4(), gen_k5()]
    dst = sys.argv[1] if len(sys.argv) > 1 else "sequential_preLN__sliding_block__mixer_token_mlp__prompt.s"
    open(dst, "w").write(build(ks))
```

```python
import re

def v(i, n=1):
    return f"v{i}" if n == 1 else f"v[{i}:{i+n-1}]"
def a(i, n=1):
    return f"a{i}" if n == 1 else f"a[{i}:{i+n-1}]"
def s(i, n=1):
    return f"s{i}" if n == 1 else f"s[{i}:{i+n-1}]"

_REG = re.compile(r"^(-|abs\()?([vas])(?:(\d+)|\[(\d+):(\d+)\])\)?$")
def regs_of(op):
    op = op.strip()
    if op in ("vcc",): return {("s", 106), ("s", 107)}
    if op == "vcc_lo": return {("s", 106)}
    if op == "vcc_hi": return {("s", 107)}
    if op == "exec": return {("s", 126), ("s", 127)}
    if op == "m0": return {("s", 124)}
    m = _REG.match(op)
    if not m: return set()
    k = m.group(2)
    if m.group(3) is not None: return {(k, int(m.group(3)))}
    return {(k, i) for i in range(int(m.group(4)), int(m.group(5)) + 1)}

TRANS = ("v_exp_f32", "v_log_f32", "v_rcp_f32", "v_rsq_f32", "v_sqrt_f32", "v_sin_f32", "v_cos_f32", "v_rcp_iflag_f32")

class Ins:
    def __init__(self, text):
        self.text = text
        t = text.split(";")[0].strip()
        self.label = None
        self.op = None
        if not t or t.startswith("."):
            return
        if t.endswith(":"):
            self.label = t[:-1]; return
        parts = t.split(None, 1)
        self.op = parts[0]
        rest = parts[1] if len(parts) > 1 else ""
        ops, depth, cur = [], 0, ""
        for ch in rest:
            if ch in "[(": depth += 1
            if ch in "])": depth -= 1
            if ch == "," and depth == 0:
                ops.append(cur.strip()); cur = ""
            else: cur += ch
        if cur.strip(): ops.append(cur.strip())
        self.mods = ""
        if ops:
            last = ops[-1].split(None, 1)
            ops[-1] = last[0]
            self.mods = last[1] if len(last) > 1 else ""
        self.ops = ops
        self.classify()

    def classify(self):
        op, ops = self.op, self.ops
        R = regs_of
        self.kind = "other"; self.dst = set(); self.src = set()
        self.mfma = None; self.dpp = False; self.wide_store = set(); self.lds_dma = False
        if op.startswith("v_mfma"):
            self.kind = "mfma"
            self.passes = 8 if "32x32" in op else 4
            self.dst = R(ops[0]); self.A = R(ops[1]); self.B = R(ops[2]); self.C = R(ops[3])
            self.src = self.A | self.B | self.C
        elif op.startswith("v_"):
            self.kind = "valu"
            base = op.replace("_e32", "").replace("_e64", "").replace("_dpp", "")
            self.base = base
            self.dpp = "_dpp" in op or "row_" in self.mods or "quad_perm" in self.mods
            if base.startswith("v_cmp"):
                self.dst = R(ops[0]); self.src = set().union(*[R(o) for o in ops[1:]])
                if base.startswith("v_cmpx"): self.dst |= R("exec")
            elif base.startswith("v_permlane") and "swap" in base:
                self.dst = R(ops[0]) | R(ops[1]); self.src = set(self.dst)
            elif base in ("v_add_co_u32", "v_sub_co_u32", "v_addc_co_u32", "v_subb_co_u32"):
                self.dst = R(ops[0]) | R(ops[1]); self.src = set().union(*[R(o) for o in ops[2:]])
            else:
                self.dst = R(ops[0]); self.src = set().union(*[R(o) for o in ops[1:]]) if len(ops) > 1 else set()
                if base in ("v_fmac_f32", "v_dot2c_f32_bf16", "v_writelane_b32") or self.dpp: self.src |= self.dst
            self.trans = base in TRANS
        elif op.startswith("ds_"):
            self.kind = "ds"
            if op.startswith("ds_read") or op.startswith("ds_bpermute") or op.startswith("ds_swizzle") or op.startswith("ds_permute"):
                self.dst = R(ops[0]); self.src = set().union(*[R(o) for o in ops[1:]])
            else:
                self.src = set().union(*[R(o) for o in ops])
        elif op.startswith("buffer_") or op.startswith("global_"):
            self.kind = "vmem"
            allr = [R(o) for o in ops]
            lds = " lds" in (" " + self.mods) or "_lds_" in op
            if lds:
                self.lds_dma = True
                self.src = set().union(*allr) | R("m0")
            elif "_load" in op:
                self.dst = allr[0]; self.src = set().union(*allr[1:])
            elif "_store" in op:
                self.src = set().union(*allr)
                if "x3" in op or "x4" in op:
                    self.wide_store = allr[0] if op.startswith("buffer_") else allr[1]
            elif "atomic" in op:
                self.src = set().union(*allr)
                if "sc0" in self.mods: self.dst = allr[0]
            else:
                self.src = set().union(*allr) if allr else set()
        elif op.startswith("s_"):
            self.kind = "salu"
            if op in ("s_nop", "s_waitcnt", "s_barrier", "s_endpgm", "s_sleep", "s_setprio") or op.startswith("s_cbranch") or op == "s_branch" or op.startswith("s_cmp"):
                self.src = set().union(*[R(o) for o in ops]) if ops else set()
            else:
                self.dst = R(ops[0]) if ops else set()
                self.src = set().union(*[R(o) for o in ops[1:]]) if len(ops) > 1 else set()
                if "saveexec" in op: self.dst |= R("exec")

    def states(self):
        if self.op == "s_nop": return int(self.ops[0], 0) + 1
        return 1

def need(prod, cons):
    n = 0
    vg = lambda st: {r for r in st if r[0] in "va"}
    sg = lambda st: {r for r in st if r[0] == "s"}
    if prod.kind == "valu":
        pv, ps = vg(prod.dst), sg(prod.dst)
        if cons.kind == "mfma" and pv & cons.src: n = max(n, 2)
        if cons.kind == "valu":
            if prod.trans and (pv & cons.src) : n = max(n, 1)
            if cons.base in ("v_readfirstlane_b32", "v_readlane_b32") and pv & cons.src: n = max(n, 1)
            if cons.base.startswith("v_permlane") and pv & cons.src: n = max(n, 2)
            if cons.dpp and pv & cons.src: n = max(n, 2)
            if ps & cons.src:
                n = max(n, 4 if cons.base in ("v_readlane_b32", "v_writelane_b32") else 2)
            if ("s", 126) in ps:
                if cons.dpp: n = max(n, 5)
                if cons.base in ("v_readfirstlane_b32", "v_readlane_b32", "v_writelane_b32") or cons.base.startswith("v_permlane"): n = max(n, 4)
        if cons.kind == "mfma" and ("s", 126) in ps: n = max(n, 4)
        if prod.trans and cons.kind in ("mfma", "vmem", "ds") and pv & cons.src: n = max(n, 2 if cons.kind == "mfma" else 1)
        if cons.kind == "vmem" and ps & cons.src: n = max(n, 5)
        if cons.kind == "salu" and ps & cons.src: n = max(n, 1)
    elif prod.kind == "mfma":
        big = 12 if prod.passes == 8 else 8
        D = prod.dst
        if cons.kind == "mfma":
            if D & (cons.A | cons.B): n = max(n, big)
            if D & cons.C:
                if not (D == cons.C and prod.passes == cons.passes): n = max(n, big - 2)
            elif D & cons.dst: n = max(n, big)
        elif cons.kind in ("valu", "vmem", "ds"):
            if D & (cons.src | cons.dst): n = max(n, big)
        if cons.kind == "valu" and (prod.C & cons.dst): n = max(n, 7 if prod.passes == 8 else 3)
    elif prod.kind == "salu":
        if ("s", 124) in prod.dst and cons.kind == "vmem" and cons.lds_dma: n = max(n, 1)
    if prod.kind == "vmem" and prod.wide_store:
        if cons.kind in ("valu", "mfma", "ds", "vmem") and prod.wide_store & cons.dst: n = max(n, 2)
    return n

MAXAGE = 14

def fix_hazards(lines, name=""):
    ins = [Ins(l) for l in lines]
    labels = {x.label: i for i, x in enumerate(ins) if x.label}
    out = []
    state = []
    snaps = {}
    heads = {}
    inserted = 0
    def step(state, x):
        k = x.states()
        ns = [[p, ag + k] for p, ag in state if ag + k < MAXAGE]
        if x.kind in ("valu", "mfma", "salu") or x.wide_store: ns.append([x, 0])
        return ns
    for i, x in enumerate(ins):
        if x.label:
            for sn in snaps.get(x.label, []):
                state = state + sn
            heads[x.label] = len(out)
            out.append(x); continue
        if x.op is None:
            out.append(x); continue
        req = 0
        for p, ag in state:
            req = max(req, need(p, x) - ag)
        while req > 0:
            k = min(req, 16)
            nop = Ins(f"s_nop {k-1}")
            out.append(nop); state = step(state, nop); inserted += 1
            req -= k
        out.append(x)
        state = step(state, x)
        if x.op.startswith("s_cbranch") or x.op == "s_branch":
            tgt = x.ops[0]
            if tgt in heads:
                st = [list(e) for e in state]
                for y in out[heads[tgt]:heads[tgt] + 40]:
                    if y.op is None: continue
                    for p, ag in st:
                        if need(p, y) - ag > 0:
                            raise SystemExit(f"{name}: loop-carried hazard: '{p.text}' -> '{y.text}' short by {need(p, y) - ag}")
                    k = y.states()
                    st = [[p, ag + k] for p, ag in st if ag + k < MAXAGE]
            else:
                snaps.setdefault(tgt, []).append([list(e) for e in state])
            if x.op == "s_branch": state = []
        if x.op == "s_endpgm": state = []
    return [x.text for x in out], inserted

class Kern:
    def __init__(self, name, block, grid, lds):
        self.name, self.block, self.grid, self.lds = name, block, grid, lds
        self.L = []
        self.nv = 0; self.na = 0; self.ns = 0
        self._lab = 0
    def __call__(self, txt):
        for l in txt.split("\n"):
            l = l.strip()
            if l: self.L.append(l)
    def lab(self, base="L"):
        self._lab += 1
        return f"{base}_{self.name[:-7]}_{self._lab}"
    def instrument(self, idx, tsbase):
        L = ["s_memrealtime s[96:97]", "s_memtime s[86:87]", "s_load_dwordx2 s[98:99], s[0:1], 80", "v_lshrrev_b32 v1, 6, v0", "s_mov_b32 s100, s2", "v_readfirstlane_b32 s101, v1", "s_waitcnt lgkmcnt(0)", "s_mov_b32 s88, s96", "s_mov_b32 s90, s96", "s_mov_b32 s92, s96"]
        for l in self.L:
            if l.startswith("STAMP"):
                n = int(l.split()[1])
                L += [f"s_memrealtime s[{88+2*n}:{89+2*n}]"]
                continue
            if l == "s_endpgm":
                L += ["s_waitcnt vmcnt(0) lgkmcnt(0)", "s_memrealtime s[94:95]", "s_memtime s[84:85]", "s_mov_b64 exec, 1", "s_lshl_b32 s100, s100, 4", "s_add_u32 s100, s100, s101", "s_lshl_b32 s100, s100, 5",
                      f"s_add_u32 s100, s100, {tsbase + idx * 262144}", "v_mov_b32 v1, s100", "s_waitcnt lgkmcnt(0)", "v_mov_b32 v4, s96", "v_mov_b32 v5, s94", "v_mov_b32 v6, s88", "v_mov_b32 v7, s90",
                      "global_store_dwordx4 v1, v[4:7], s[98:99]", "v_mov_b32 v8, s92", "s_sub_u32 s84, s84, s86", "v_mov_b32 v9, s84", "global_store_dwordx2 v1, v[8:9], s[98:99] offset:16"]
            L.append(l)
        self.L = L
    def finish(self):
        self.L = [l for l in self.L if not l.startswith("STAMP")]
        lines, n = fix_hazards(self.L, self.name)
        mv = ma = ms = -1
        for l in lines:
            x = Ins(l)
            if x.op is None: continue
            for k, i in (x.dst | x.src):
                if k == "v": mv = max(mv, i)
                elif k == "a": ma = max(ma, i)
                elif k == "s" and i < 102: ms = max(ms, i)
        acc = (mv + 1 + 3) // 4 * 4
        nfv = acc + ma + 1 if ma >= 0 else mv + 1
        assert mv < 256 and nfv <= 512, (self.name, mv, ma)
        self.stats = dict(vgpr=mv + 1, agpr=ma + 1, sgpr=ms + 1, nops=n, ninstr=len(lines))
        body = f".globl {self.name}\n.p2align 8\n.type {self.name},@function\n{self.name}:\n" + "\n".join("    " + l if not l.endswith(":") else l for l in lines) + "\n"
        kd = f""".section .rodata,"a"
.p2align 6
.amdhsa_kernel {self.name}
  .amdhsa_next_free_vgpr {max(nfv, 8)}
  .amdhsa_next_free_sgpr {max(ms + 1, 16)}
  .amdhsa_accum_offset {max(acc, 4)}
  .amdhsa_group_segment_fixed_size 0
  .amdhsa_kernarg_size 88
  .amdhsa_user_sgpr_count 2
  .amdhsa_user_sgpr_kernarg_segment_ptr 1
  .amdhsa_system_sgpr_workgroup_id_x 1
.end_amdhsa_kernel
"""
        return body, kd
```

```python
from asmlib import *
import struct

MB = 1 << 20
WS_QM = 0
WS_KM = 2 * MB
WS_VM = 4 * MB
WS_Q8 = 6 * MB
WS_K8 = 6 * MB + 256 * 1024
WS_V8 = 6 * MB + 512 * 1024
WS_OM = 8 * MB
WS_O8 = 11 * MB
WS_H = 12 * MB
WS_HN = 16 * MB
WS_ST = 20 * MB
WS_U = 24 * MB
WS_FL = 21 * MB
WS_P = 32 * MB
WS_SIZE = 52 * MB

S_, D_, F_ = 2048, 576, 4608
import os
SST = ' sc0 sc1' if os.environ.get('WT') else ''

def f32(x):
    return "0x%08x" % struct.unpack("<I", struct.pack("<f", x))[0]

def srd(k, d, ptr, nbytes):
    k(f"s_mov_b32 s{d}, s{ptr}")
    k(f"s_and_b32 s{d+1}, s{ptr+1}, 0xffff")
    k(f"s_mov_b32 s{d+2}, {nbytes}")
    k(f"s_mov_b32 s{d+3}, 0x20000")

def lane_ids(k, vl, vw, sw):
    k(f"v_and_b32 v{vl}, 63, v0")
    k(f"v_lshrrev_b32 v{vw}, 6, v0")
    k(f"v_readfirstlane_b32 s{sw}, v{vw}")

def interleave(main, fill, start=0, per=1):
    out = []; fi = 0
    for n, m in enumerate(main):
        out.append(m)
        if n >= start:
            pp = per if isinstance(per, int) else per[min(n - start, len(per) - 1)]
            for _ in range(pp):
                if fi < len(fill): out.append(fill[fi]); fi += 1
    out += fill[fi:]
    return out

PS = int(os.environ.get('PS', 65536 + 1024))
```

```python
from common import *
from ring import *
from pf import *
import math, os
X1 = os.environ.get('K1X', '').split(',')

def coop_touch(k, VL, T0, stages, dst):
    k(f"s_mul_i32 s30, s11, {54*128}\nv_lshlrev_b32 v{T0}, 7, v{VL}\ns_mov_b64 exec, 0x3fffffffffffff")
    return

def gen_k1(name="k1_qkv_kernel"):
    R = 4; STG = 34816; N = 9; XO = 18432
    CS = STG
    STAT = CS + 576
    k = Kern(name, 384, 256, R * STG)
    END = k.lab("END"); PROD = k.lab("PROD"); PF = k.lab("PF")
    k(f"s_cmp_ge_u32 s2, 256\ns_cbranch_scc1 {END}")
    k("s_load_dwordx4 s[4:7], s[0:1], 0\ns_load_dwordx2 s[8:9], s[0:1], 80")
    VL, VW, VG, VI = 1, 2, 3, 4
    T0, T1, T2 = 5, 6, 7
    lane_ids(k, VL, VW, 28)
    k("s_and_b32 s10, s2, 7\ns_lshr_b32 s11, s2, 3")
    k("s_and_b32 s24, s10, 3\ns_lshl_b32 s24, s24, 2\ns_and_b32 s25, s11, 3\ns_add_u32 s24, s24, s25")
    k("s_lshr_b32 s25, s10, 2\ns_mul_i32 s25, s25, 6\ns_lshr_b32 s29, s11, 2\ns_add_u32 s25, s25, s29")
    k(f"v_lshrrev_b32 v{VG}, 4, v{VL}\nv_and_b32 v{VI}, 15, v{VL}")
    k(f"s_cmp_ge_u32 s28, 4\ns_cbranch_scc1 {PROD}")
    TOUCH = 'notouch' not in X1
    k(f"v_mul_u32_u24 v{T0}, 4682, v{VL}\nv_lshrrev_b32 v{T0}, 16, v{T0}")
    k(f"v_mul_u32_u24 v{T1}, 14, v{T0}\nv_sub_u32 v{T1}, v{VL}, v{T1}")
    k(f"v_lshrrev_b32 v{T2}, 1, v{T0}\nv_mul_u32_u24 v{T2}, 62, v{T2}\nv_add_u32 v{T0}, v{T0}, v{T2}")
    k(f"v_mul_u32_u24 v{T0}, 3456, v{T0}\nv_lshl_add_u32 v{T0}, v{T1}, 7, v{T0}\nv_lshlrev_b32 v{T1}, 7, v{VL}")
    k(f"s_mul_i32 s30, s28, {128*3456}\ns_mul_i32 s31, s11, {2*3456}\ns_add_u32 s30, s30, s31\ns_lshr_b32 s31, s10, 2\ns_mul_i32 s31, s31, {13*128}\ns_add_u32 s30, s30, s31")
    k(f"s_and_b32 s31, s10, 3\ns_mul_i32 s31, s31, {512*1152}\ns_mul_i32 s29, s11, {16*1152}\ns_add_u32 s31, s31, s29\ns_mul_i32 s29, s28, {36*128}\ns_add_u32 s31, s31, s29")
    k("s_waitcnt lgkmcnt(0)")
    srd(k, 12, 4, S_ * D_ * 2)
    srd(k, 16, 6, D_ * 1728 * 2)
    srd(k, 20, 8, WS_SIZE)
    TD = 8
    if TOUCH:
        k("s_mov_b32 exec_hi, 0xffffff")
        k(f"buffer_load_dword v{TD}, v{T0}, s[16:19], s30 offen\ns_add_u32 s30, s30, {512*3456}")
        k("s_mov_b32 exec_hi, 0xf")
        k(f"buffer_load_dword v{TD+1}, v{T1}, s[12:15], s31 offen")
        k(f"buffer_load_dword v{TD+2}, v{T0}, s[16:19], s30 offen")
        k("s_mov_b32 exec_hi, -1")
    k(f"s_cmp_ge_u32 s11, 24\ns_cbranch_scc1 {PF}")
    k("s_lshr_b32 s26, s25, 2\ns_and_b32 s27, s25, 3")
    VTR = 12
    VXR = 21
    ONE = 28
    SUM = 32
    XF = 36
    WF = 52
    ACC = WF + 72
    CSA, SUA, GRA = ACC + 72, ACC + 84, ACC + 92
    assert GRA + 8 <= 256
    k(f"v_bfe_u32 v{T0}, v{VL}, 2, 2\nv_lshl_add_u32 v{T0}, v{VG}, 2, v{T0}\nv_mul_u32_u24 v{T0}, 288, v{T0}")
    k(f"v_and_b32 v{T1}, 3, v{VL}")
    for j in range(9):
        sT = 40 + j
        k(f"s_lshl_b32 s{sT}, s28, 1\ns_add_u32 s{sT}, s{sT}, {j}")
        k(f"s_sub_u32 s30, s{sT}, 9\ns_cmp_ge_u32 s{sT}, 9\ns_cselect_b32 s{sT}, s30, s{sT}")
        k(f"s_lshr_b32 s30, s{sT}, 1\ns_mul_i32 s30, s30, 72\ns_and_b32 s31, s{sT}, 1\ns_mul_i32 s31, s31, 40\ns_add_u32 s30, s30, s31")
        k(f"s_cmp_eq_u32 s{sT}, 8\ns_cselect_b32 s30, 32, s30\ns_cselect_b32 s31, 72, 8")
        k(f"v_mul_u32_u24 v{T2}, s31, v{T1}\nv_add3_u32 v{VTR+j}, v{T0}, v{T2}, s30")
    k(f"v_lshrrev_b32 v{T0}, 1, v{VI}\nv_lshrrev_b32 v{T1}, 1, v{VG}\nv_xor_b32 v{T0}, v{T0}, v{T1}\nv_lshlrev_b32 v{T0}, 4, v{T0}\nv_lshl_add_u32 v{T0}, v{VI}, 7, v{T0}")
    k(f"v_and_b32 v{T1}, 1, v{VG}\nv_lshl_add_u32 v{T0}, v{T1}, 3, v{T0}")
    k(f"s_lshl_b32 s30, s28, 12\ns_add_u32 s30, s30, {XO}\nv_add_u32 v{VXR}, s30, v{T0}")
    for q in range(1, 4): k(f"v_xor_b32 v{VXR+q}, {32*q}, v{VXR}")
    for r in range(4): k(f"v_mov_b32 v{ONE+r}, 0x3f803f80")
    for r in range(100): k(f"v_mov_b32 v{ACC+r}, 0")
    first = [True]
    def reads(st, slot, ks, rs):
        out = []
        if ks == 0 and not first[0]:
            d = STG if slot else -(R - 1) * STG
            regs = list(range(VXR, VXR + 4)) + list(range(VTR, VTR + 9))
            out += [f"v_add_u32 v{r}, {d}, v{r}" if d > 0 else f"v_subrev_u32 v{r}, {-d}, v{r}" for r in regs]
        first[0] = False
        for tt in range(2):
            for hf in range(2):
                out.append(f"ds_read_b64 {v(XF+rs*8+tt*4+hf*2,2)}, v{VXR+2*ks+hf} offset:{tt*2048}")
        for j in range(9):
            for hf in range(2):
                out.append(f"ds_read_b64_tr_b16 {v(WF+rs*36+j*4+hf*2,2)}, v{VTR+j} offset:{ks*9216+hf*4608}")
        return out
    def body(vor):
        first[0] = True
        def mf(st, ks, rs):
            g = []
            on = v(ONE, 4)
            for tt in range(2):
                xf = v(XF + rs * 8 + tt * 4, 4)
                g.append(f"v_mfma_f32_16x16x32_bf16 {v(SUA+tt*4,4)}, {on}, {xf}, {v(SUA+tt*4,4)}")
                g.append(f"v_mfma_f32_16x16x32_bf16 {v(GRA+tt*4,4)}, {xf}, {xf}, {v(GRA+tt*4,4)}")
            for j in range(9):
                wf = v(WF + rs * 36 + j * 4, 4)
                for tt in range(2):
                    xf = v(XF + rs * 8 + tt * 4, 4)
                    ac = v(ACC + (j * 2 + tt) * 4, 4)
                    g.append(f"v_mfma_f32_16x16x32_bf16 {ac}, {xf}, {wf}, {ac}" if vor else f"v_mfma_f32_16x16x32_bf16 {ac}, {wf}, {xf}, {ac}")
                if j < 3:
                    ac = v(CSA + j * 4, 4)
                    g.append(f"v_mfma_f32_16x16x32_bf16 {ac}, {on}, {wf}, {ac}" if vor else f"v_mfma_f32_16x16x32_bf16 {ac}, {wf}, {on}, {ac}")
            return g
        k("STAMP 0")
        consumer_loop(k, N, R, reads, mf, per=(2 if 'per2' in X1 else [2, 2, 2, 2, 2, 2, 2, 2, 2, 2, 1]))
        k("STAMP 2")
        E = WF
        AD = E
        if not vor:
            k(f"v_cmp_eq_u32 vcc, 0, v{VI}\nv_lshlrev_b32 v{AD}, 4, v{VG}")
            k("s_and_saveexec_b64 s[36:37], vcc")
            for j in range(3):
                k(f"s_lshl_b32 s30, s{40+j}, 6\nv_add_u32 v{AD+1+j}, s30, v{AD}\nds_write_b128 v{AD+1+j}, {v(CSA+4*j,4)} offset:{CS}")
            k("s_mov_b64 exec, s[36:37]")
        else:
            k(f"v_cmp_eq_u32 vcc, 0, v{VG}\nv_lshlrev_b32 v{AD}, 2, v{VI}")
            k("s_and_saveexec_b64 s[36:37], vcc")
            for j in range(3):
                k(f"s_lshl_b32 s30, s{40+j}, 6\nv_add_u32 v{AD+1+j}, s30, v{AD}\nds_write_b32 v{AD+1+j}, v{CSA+4*j} offset:{CS}")
            k("s_mov_b64 exec, s[36:37]")
        k(f"v_and_b32 v{T0}, 3, v{VI}\nv_lshrrev_b32 v{T1}, 2, v{VI}")
        k(f"v_cmp_eq_u32 s[30:31], 1, v{T0}\nv_cmp_eq_u32 s[32:33], 2, v{T0}\nv_cmp_eq_u32 s[34:35], 3, v{T0}\nv_cmp_eq_u32 vcc, v{T1}, v{VG}")
        for r in range(1, 4):
            for tt in range(2): k(f"v_cndmask_b32 v{GRA+4*tt}, v{GRA+4*tt}, v{GRA+4*tt+r}, s[{28+2*r}:{29+2*r}]")
        for tt in range(2): k(f"v_cndmask_b32 v{SUM+2*tt+1}, 0, v{GRA+4*tt}, vcc")
        for sw in ("16", "32"):
            for tt in range(2): k(f"v_mov_b32 v{GRA+tt}, v{SUM+2*tt+1}")
            for tt in range(2): k(f"v_permlane{sw}_swap_b32 v{SUM+2*tt+1}, v{GRA+tt}")
            for tt in range(2): k(f"v_add_f32 v{SUM+2*tt+1}, v{SUM+2*tt+1}, v{GRA+tt}")
        k(f"s_mov_b32 s30, {f32(1.0/576)}")
        qs = 18 ** -0.5 * math.log2(math.e)
        k(f"s_cmp_eq_u32 s26, 0\ns_cselect_b32 s31, {f32(qs)}, 1.0")
        for tt in range(2): k(f"v_mul_f32 v{SUM+2*tt}, s30, v{SUA+4*tt}\nv_mul_f32 v{SUM+2*tt+1}, s30, v{SUM+2*tt+1}")
        for tt in range(2): k(f"v_fma_f32 v{SUM+2*tt+1}, -v{SUM+2*tt}, v{SUM+2*tt}, v{SUM+2*tt+1}")
        for tt in range(2): k(f"v_max_f32 v{SUM+2*tt+1}, 0, v{SUM+2*tt+1}")
        for tt in range(2): k(f"v_add_f32 v{SUM+2*tt+1}, {f32(1e-5)}, v{SUM+2*tt+1}")
        for tt in range(2): k(f"v_rsq_f32 v{SUM+2*tt+1}, v{SUM+2*tt+1}")
        for tt in range(2): k(f"v_mul_f32 v{SUM+2*tt+1}, s31, v{SUM+2*tt+1}")
        CSR = E + 8
        STR = CSR + 36
        VM0, VE0 = STR + 16, STR + 18
        OUT = XF
        assert VE0 + 2 <= ACC
        if vor:
            k(f"s_lshl_b32 s30, s28, 7\nv_lshlrev_b32 v{AD+4}, 2, v{VI}\nv_add_u32 v{AD+4}, s30, v{AD+4}")
            k("s_mov_b64 exec, 0xffff")
            for tt in range(2):
                k(f"ds_write_b32 v{AD+4}, v{SUM+2*tt} offset:{STAT+tt*64}\nds_write_b32 v{AD+4}, v{SUM+2*tt+1} offset:{STAT+512+tt*64}")
            k("s_mov_b64 exec, -1")
        if not vor:
            k(f"v_lshrrev_b32 v{T0}, 1, v{VG}\nv_lshl_add_u32 v{T0}, v{T0}, 5, v{VI}\nv_lshlrev_b32 v{T0}, 4, v{T0}")
            k(f"v_and_b32 v{T1}, 1, v{VG}\nv_lshl_add_u32 v{VM0}, v{T1}, 3, v{T0}\nv_add_u32 v{VM0+1}, 256, v{VM0}")
            k(f"v_lshlrev_b32 v{T0}, 14, v{VG}\nv_lshl_add_u32 v{VE0}, v{VI}, 3, v{T0}\nv_add_u32 v{VE0+1}, 128, v{VE0}")
            k(f"s_lshl_b32 s50, s26, 21\ns_lshl_b32 s30, s27, 19\ns_add_u32 s50, s50, s30")
            k(f"s_lshl_b32 s30, s24, 2\ns_add_u32 s30, s30, s28\ns_lshl_b32 s31, s30, 10\ns_add_u32 s50, s50, s31")
            k(f"s_lshl_b32 s51, s26, 18\ns_add_u32 s51, s51, {WS_Q8}\ns_lshl_b32 s31, s27, 16\ns_add_u32 s51, s51, s31")
            k(f"s_lshl_b32 s31, s30, 8\ns_add_u32 s51, s51, s31")
        else:
            k(f"v_and_b32 v{T0}, 1, v{VG}\nv_lshrrev_b32 v{T1}, 1, v{VG}\nv_lshlrev_b32 v{T1}, 3, v{T1}")
            k(f"v_lshl_add_u32 v{VM0}, v{T0}, 8, v{T1}\nv_lshl_add_u32 v{VM0}, v{VI}, 4, v{VM0}\nv_add_u32 v{VM0+1}, 512, v{VM0}")
            k(f"v_lshl_add_u32 v{VE0}, v{T0}, 6, v{T1}\nv_and_b32 v{T0}, 3, v{VI}\nv_lshl_add_u32 v{VE0}, v{T0}, 4, v{VE0}")
            k(f"v_lshrrev_b32 v{T0}, 2, v{VI}\nv_lshl_add_u32 v{VE0}, v{T0}, 14, v{VE0}\nv_add_u32 v{VE0+1}, 128, v{VE0}")
            k(f"s_lshl_b32 s30, s24, 2\ns_add_u32 s30, s30, s28")
            k(f"s_lshl_b32 s50, s27, 19\ns_add_u32 s50, s50, {WS_VM}\ns_lshl_b32 s31, s30, 10\ns_add_u32 s50, s50, s31")
            k(f"s_lshl_b32 s51, s27, 16\ns_add_u32 s51, s51, {WS_V8}\ns_lshl_b32 s31, s30, 8\ns_add_u32 s51, s51, s31")
        for j in range(9):
            k(f"s_lshl_b32 s30, s{40+j}, 6\nv_add_u32 v{VTR+j}, s30, v{AD}")
        k("s_waitcnt lgkmcnt(0)\ns_barrier")
        if 'st2' in X1: k("STAMP 0")
        if not vor:
            for j in range(9): k(f"ds_read_b128 {v(CSR+4*j,4)}, v{VTR+j} offset:{CS}")
        else:
            k(f"s_lshl_b32 s30, s28, 7\nv_lshlrev_b32 v{T0}, 4, v{VG}\nv_add_u32 v{T0}, s30, v{T0}")
            for tt in range(2):
                for hf in range(2):
                    k(f"ds_read_b128 {v(STR+tt*8+hf*4,4)}, v{T0} offset:{STAT+tt*64+hf*512}")
            for j in range(9): k(f"ds_read_b32 v{CSR+j}, v{VTR+j} offset:{CS}")
        for j in range(9):
            k(f"s_lshl_b32 s{60+j}, s{40+j}, 16\ns_add_u32 s{60+j}, s{60+j}, s50\ns_cmp_eq_u32 s{40+j}, 8\ns_cselect_b32 s{60+j}, s51, s{60+j}")
        for j in range(9):
            k(f"s_waitcnt lgkmcnt({8-j})")
            k(f"s_cmp_eq_u32 s{40+j}, 8\ns_cselect_b64 s[38:39], -1, 0")
            for tt in range(2):
                ac = ACC + (j * 2 + tt) * 4
                o = OUT + ((j * 2 + tt) % 4) * 4
                for h2 in range(2):
                    if not vor:
                        k(f"v_pk_fma_f32 {v(ac+2*h2,2)}, {v(SUM+2*tt,2)}, {v(CSR+4*j+2*h2,2)}, {v(ac+2*h2,2)} op_sel_hi:[0,1,1] neg_lo:[1,0,0] neg_hi:[1,0,0]")
                    else:
                        c = CSR + (j & ~1); sel = j & 1
                        k(f"v_pk_fma_f32 {v(ac+2*h2,2)}, {v(STR+tt*8+2*h2,2)}, {v(c,2)}, {v(ac+2*h2,2)} op_sel:[0,{sel},0] op_sel_hi:[1,{sel},1] neg_lo:[1,0,0] neg_hi:[1,0,0]")
                for h2 in range(2):
                    if not vor: k(f"v_pk_mul_f32 {v(ac+2*h2,2)}, {v(ac+2*h2,2)}, {v(SUM+2*tt,2)} op_sel:[0,1] op_sel_hi:[1,1]")
                    else: k(f"v_pk_mul_f32 {v(ac+2*h2,2)}, {v(ac+2*h2,2)}, {v(STR+tt*8+4+2*h2,2)}")
                k(f"v_cndmask_b32 v{o+2}, v{VM0+tt}, v{VE0+tt}, s[38:39]")
                k(f"v_cvt_pk_bf16_f32 v{o}, v{ac}, v{ac+1}\nv_cvt_pk_bf16_f32 v{o+1}, v{ac+2}, v{ac+3}")
                k(f"buffer_store_dwordx2 {v(o,2)}, v{o+2}, s[20:23], s{60+j} offen")
        if 'st2' in X1: k("STAMP 1")
        k("s_endpgm")
    LV = k.lab("VOR")
    k(f"s_cmp_eq_u32 s26, 2\ns_cbranch_scc1 {LV}")
    body(False)
    k(f"{LV}:")
    body(True)
    k(f"{PROD}:")
    PFP = k.lab("PFP")
    k(f"s_cmp_ge_u32 s11, 24\ns_cbranch_scc1 {PFP}")
    k("s_and_b32 s29, s28, 1")
    VWD = 8
    VXD = 17
    for q in range(2):
        k(f"v_lshrrev_b32 v{T0}, 3, v{VL}\nv_add_u32 v{T0}, {8*q}, v{T0}")
        k(f"v_bfe_u32 v{T1}, v{T0}, 1, 3\nv_and_b32 v{T2}, 7, v{VL}\nv_xor_b32 v{T1}, v{T1}, v{T2}\nv_lshlrev_b32 v{T1}, 4, v{T1}")
        k(f"v_mul_u32_u24 v{T0}, 1152, v{T0}\nv_add_u32 v{VXD+q}, v{T0}, v{T1}")
    for q in range(2, 8): k(f"v_add_u32 v{VXD+q}, {16*1152}, v{VXD+q-2}")
    k(f"s_mov_b32 s30, {3456-288}")
    for q in range(9):
        k(f"v_add_u32 v{T0}, {q*64}, v{VL}\nv_mul_u32_u24 v{T1}, 3641, v{T0}\nv_lshrrev_b32 v{T1}, 16, v{T1}")
        k(f"v_lshlrev_b32 v{T0}, 4, v{T0}\nv_mad_u32_u24 v{VWD+q}, v{T1}, s30, v{T0}")
    k("s_lshl_b32 s32, s24, 7\ns_lshl_b32 s30, s29, 6\ns_add_u32 s32, s32, s30\ns_mul_i32 s32, s32, 1152")
    k(f"s_mul_i32 s33, s25, 288\ns_mul_i32 s30, s29, {32*3456}\ns_add_u32 s33, s33, s30")
    k(f"s_mul_i32 s34, s29, 9216\ns_lshl_b32 s35, s29, 13\ns_add_u32 s35, s35, {XO}")
    k("s_waitcnt lgkmcnt(0)")
    srd(k, 12, 4, S_ * D_ * 2)
    srd(k, 16, 6, D_ * 1728 * 2)
    def issue(st, slot):
        out = []
        base = slot * STG
        for q in range(9):
            if q < 8:
                out.append(f"s_add_u32 m0, s35, {base + q*1024}\ns_nop 0\nbuffer_load_dwordx4 v{VXD+q}, s[12:15], s32 offen lds")
            out.append(f"s_add_u32 m0, s34, {base + q*1024}\ns_nop 0\nbuffer_load_dwordx4 v{VWD+q}, s[16:19], s33 offen lds")
        out.append(f"s_add_u32 s32, s32, 128\ns_add_u32 s33, s33, {64*3456}")
        return out
    producer_loop(k, N, R, 17, issue)
    k(f"{PFP}:\ns_waitcnt lgkmcnt(0)")
    srd(k, 20, 8, WS_SIZE)
    k(f"{PF}:")
    k("s_sub_u32 s30, s2, 192\ns_mul_i32 s30, s30, 3072\nv_lshlrev_b32 v14, 3, v0\nv_mov_b32 v12, 0\nv_mov_b32 v13, 0")
    k(f"s_add_u32 s31, s30, {WS_ST}\nbuffer_store_dwordx2 v[12:13], v14, s[20:23], s31 offen")
    k(f"s_add_u32 s31, s30, {WS_FL}\nbuffer_store_dwordx2 v[12:13], v14, s[20:23], s31 offen")
    k("s_sub_u32 s11, s2, 192")
    pf_env(k, "PF1", 11, 64, 384, 16)
    k(f"{END}:\ns_endpgm")
    return k
```

```python
from common import *
from pf import *
import os

def gen_k2(name="k2_attn_kernel"):
    LK8 = 24576; LV = 27648; REC = 1168
    k = Kern(name, 512, 256, LV + 24 * REC)
    END = k.lab("END")
    k(f"s_cmp_ge_u32 s2, 256\ns_cbranch_scc1 {END}")
    k("s_load_dwordx2 s[8:9], s[0:1], 80\ns_load_dwordx2 s[56:57], s[0:1], 32\ns_load_dwordx2 s[46:47], s[0:1], 16\ns_load_dwordx2 s[58:59], s[0:1], 48")
    k("s_and_b32 s10, s2, 7\ns_lshr_b32 s11, s2, 3")
    k("s_lshl_b32 s24, s10, 1\ns_and_b32 s25, s11, 1\ns_add_u32 s24, s24, s25\ns_lshr_b32 s25, s11, 1")
    VL, VW, VH, VQ = 1, 2, 3, 4
    lane_ids(k, VL, VW, 28)
    k(f"v_lshrrev_b32 v{VH}, 5, v{VL}\nv_and_b32 v{VQ}, 31, v{VL}")
    k("s_lshr_b32 s26, s28, 2\ns_and_b32 s27, s28, 3")
    V16, VV, V8A = 5, 6, 7
    k(f"v_lshlrev_b32 v{V16}, 4, v{VL}")
    k(f"v_lshlrev_b32 v{VV}, 4, v{VQ}\nv_lshl_add_u32 v{VV}, v{VH}, 16, v{VV}")
    k(f"v_lshlrev_b32 v{V8A}, 3, v{VQ}")
    k("s_waitcnt lgkmcnt(0)")
    srd(k, 20, 8, WS_SIZE)
    srd(k, 48, 46, D_ * D_ * 2)
    QM, Q8 = 8, 12
    SK = k.lab("SK8")
    k(f"s_cmp_ge_u32 s28, 3\ns_cbranch_scc1 {SK}")
    k(f"s_add_i32 s30, s25, s28\ns_sub_i32 s30, s30, 2\ns_max_i32 s30, s30, 0\ns_lshl_b32 s30, s30, 10")
    k(f"s_lshl_b32 s31, s24, 14\ns_add_u32 s30, s30, s31\ns_add_u32 s30, s30, {WS_K8}")
    k(f"s_lshl_b32 s31, s28, 10\ns_add_u32 m0, s31, {LK8}\ns_nop 0")
    k(f"buffer_load_dwordx4 v{V16}, s[20:23], s30 offen lds")
    k(f"{SK}:")
    k("s_lshl_b32 s32, s24, 1\ns_add_u32 s32, s32, s26\ns_lshl_b32 s32, s32, 16")
    k("s_lshl_b32 s33, s25, 2\ns_add_u32 s33, s33, s27")
    k(f"s_lshl_b32 s30, s33, 10\ns_add_u32 s30, s30, s32")
    k(f"buffer_load_dwordx4 {v(QM,4)}, v{V16}, s[20:23], s30 offen")
    k(f"s_lshl_b32 s30, s33, 8\ns_lshl_b32 s31, s24, 14\ns_add_u32 s30, s30, s31\ns_add_u32 s30, s30, {WS_Q8}")
    k(f"buffer_load_dwordx2 {v(Q8,2)}, v{V8A}, s[20:23], s30 offen")
    for q in range(3):
        k(f"s_mul_i32 s30, s27, 3\ns_add_u32 s30, s30, {q}")
        k(f"s_mul_i32 s31, s26, 12\ns_add_u32 s31, s31, s30\ns_lshl_b32 m0, s31, 10")
        k(f"s_lshl_b32 s31, s25, 2\ns_add_i32 s30, s30, s31\ns_sub_i32 s30, s30, 8\ns_max_i32 s30, s30, 0")
        k(f"s_lshl_b32 s30, s30, 10\ns_add_u32 s30, s30, s32\ns_add_u32 s30, s30, {WS_KM}")
        k(f"buffer_load_dwordx4 v{V16}, s[20:23], s30 offen lds")
    for q in range(3):
        k(f"s_mul_i32 s30, s28, 3\ns_add_u32 s30, s30, {q}")
        k(f"s_mul_i32 s31, s30, {REC}\ns_add_u32 m0, s31, {LV}")
        k(f"s_lshl_b32 s31, s25, 3\ns_add_i32 s30, s30, s31\ns_sub_i32 s30, s30, 16\ns_max_i32 s30, s30, 0")
        k(f"s_lshl_b32 s31, s30, 9\ns_lshl_b32 s34, s24, 17\ns_add_u32 s31, s31, s34\ns_add_u32 s31, s31, {WS_VM}")
        k(f"buffer_load_dwordx4 v{VV}, s[20:23], s31 offen lds")
        k(f"s_lshl_b32 s31, s30, 7\ns_lshl_b32 s34, s24, 14\ns_add_u32 s31, s31, s34\ns_add_u32 s31, s31, {WS_V8}")
        k(f"s_add_u32 m0, m0, 1024\ns_mov_b64 exec, 0xff")
        k(f"buffer_load_dwordx4 v{V16}, s[20:23], s31 offen lds")
        k("s_mov_b64 exec, -1")
    KF = 16
    K8F = 28
    VF = 40
    O = 56
    MX, MX2, TA, TB = 72, 73, 74, 75
    AK, AK8, AV = 76, 77, 78
    S0 = 80
    SO = k.lab("SONE")
    k(f"s_cmp_lg_u32 s28, 0\ns_cbranch_scc1 {SO}")
    for r in range(4): k(f"v_mov_b32 v{KF+r}, 0x3f803f80")
    k(f"v_mul_u32_u24 v{TA}, {REC}, v{VL}\ns_mov_b64 exec, 0xffffff")
    k(f"ds_write_b128 v{TA}, {v(KF,4)} offset:{LV+1152}")
    k("s_mov_b64 exec, -1")
    k(f"{SO}:")
    k(f"s_mul_i32 s30, s26, 12\ns_add_u32 s30, s30, s27\ns_lshl_b32 s30, s30, 10\nv_add_u32 v{AK}, s30, v{V16}")
    k(f"s_lshl_b32 s30, s27, 8\ns_add_u32 s30, s30, {LK8}\nv_add_u32 v{AK8}, s30, v{V8A}")
    k(f"s_lshl_b32 s30, s26, 9\nv_lshlrev_b32 v{AV}, 8, v{VH}\nv_lshl_add_u32 v{AV}, v{VQ}, 4, v{AV}\nv_add_u32 v{AV}, s30, v{AV}")
    k(f"s_lshl_b32 s30, s26, 5\ns_add_u32 s30, s30, {1024-256}\nv_lshlrev_b32 v{TA}, 6, v{VH}\nv_lshl_add_u32 v{TA}, v{VQ}, 4, v{TA}\nv_add_u32 v{TA}, s30, v{TA}")
    k(f"v_cmp_lt_u32 vcc, 15, v{VQ}\nv_cndmask_b32 v{AV}, v{AV}, v{TA}, vcc")
    k(f"v_mov_b32 v{TA}, 1152\nv_cmp_lt_u32 vcc, 17, v{VQ}\nv_cndmask_b32 v{AV}, v{AV}, v{TA}, vcc")
    k(f"s_mul_i32 s30, s27, {2*REC}\ns_add_u32 s30, s30, {LV}\nv_add_u32 v{AV}, s30, v{AV}")
    NEG = f32(-1e30)
    k(f"s_sub_i32 s35, 8, s33\ns_max_i32 s35, s35, 0\ns_mov_b32 s36, {NEG}")
    k(f"v_mov_b32 v{TB}, s36")
    k(f"v_lshlrev_b32 v{TA}, 2, v{VH}\nv_sub_u32 v{TA}, v{VQ}, v{TA}")
    for j in range(9):
        k(f"s_cmp_gt_u32 s35, {j}\ns_cselect_b32 s30, s36, 0")
        if j == 0:
            k(f"v_mov_b32 v{MX}, s30")
        for r in range(16):
            c = 8 * (r // 4) + (r % 4)
            d = S0 + j * 16 + r
            if j == 0:
                k(f"v_cmp_gt_i32 vcc, {c}, v{TA}\nv_cndmask_b32 v{d}, v{TB}, v{MX}, vcc")
            elif j == 8:
                k(f"v_cmp_gt_i32 vcc, {c}, v{TA}\nv_cndmask_b32 v{d}, 0, v{TB}, vcc")
            else:
                k(f"v_mov_b32 v{d}, s30")
    for q in range(3):
        k(f"v_mov_b32 v{K8F+q*4+2}, 0\nv_mov_b32 v{K8F+q*4+3}, 0")
    for r in range(16): k(f"v_mov_b32 v{O+r}, 0")
    k(f"v_mov_b32 v{Q8+2}, 0\nv_mov_b32 v{Q8+3}, 0")
    k(f"v_mov_b32 v{MX}, s36")
    k("STAMP 0")
    k("s_waitcnt vmcnt(6) lgkmcnt(0)")
    k("s_cmp_eq_u32 s26, 0\ns_cselect_b32 s38, -1, 0\ns_cselect_b32 s40, 0, -1\ns_mov_b32 s39, 0\ns_mov_b32 s41, 0")
    k(f"v_cndmask_b32 v{Q8}, 0, v{Q8}, s[38:39]\nv_cndmask_b32 v{Q8+1}, 0, v{Q8+1}, s[40:41]")
    k("s_barrier")
    def kread(j):
        return [f"ds_read_b128 {v(KF+(j%3)*4,4)}, v{AK} offset:{j*1024}", f"ds_read_b64 {v(K8F+(j%3)*4,2)}, v{AK8} offset:{j*256}"]
    def mx(j):
        return [f"v_max3_f32 v{MX}, v{MX}, v{S0+j*16+2*r}, v{S0+j*16+2*r+1}" for r in range(8)]
    k("STAMP 1")
    for t in kread(0) + kread(1): k(t)
    for j in range(9):
        if j + 2 < 9:
            for t in kread(j + 2): k(t)
        k(f"s_waitcnt lgkmcnt({min(2, 8-j)*2})")
        sj = v(S0 + j * 16, 16)
        k(f"v_mfma_f32_32x32x16_bf16 {sj}, {v(KF+(j%3)*4,4)}, {v(QM,4)}, {sj}")
        m = mx(j - 2) if j >= 2 else []
        for t in m[:4]: k(t)
        k(f"v_mfma_f32_32x32x16_bf16 {sj}, {v(K8F+(j%3)*4,4)}, {v(Q8,4)}, {sj}")
        for t in m[4:]: k(t)
    for t in mx(7): k(t)
    k("s_waitcnt vmcnt(0)\ns_barrier")
    if 'nowo' not in os.environ.get('K2X', ''):
        k(f"v_lshlrev_b32 v224, 7, v0\ns_mul_i32 s30, s11, {162*128}\nv_cmp_gt_u32 vcc, 162, v0\ns_and_saveexec_b64 s[44:45], vcc")
        k("buffer_load_dword v225, v224, s[48:51], s30 offen\ns_mov_b64 exec, s[44:45]")
    pf_env(k, "PF2", 2, 256, 512, 226, loaded=True)
    k("STAMP 2")
    def vread(t): return f"ds_read_b128 {v(VF+(t%4)*4,4)}, v{AV} offset:{t*REC}"
    k(vread(0)); k(vread(1))
    for t in mx(8): k(t)
    k(f"v_mov_b32 v{MX2}, v{MX}\nv_permlane32_swap_b32 v{MX}, v{MX2}\nv_max_f32 v{MX}, v{MX}, v{MX2}")
    def soft(j):
        b = S0 + j * 16
        out = [f"v_sub_f32 v{b+r}, v{b+r}, v{MX}" for r in range(16)]
        out += [f"v_exp_f32 v{b+r}, v{b+r}" for r in range(16)]
        out += [f"v_cvt_pk_bf16_f32 v{b+r}, v{b+2*r}, v{b+2*r+1}" for r in range(8)]
        return out
    def pv(j):
        b = S0 + j * 16
        return [f"v_mfma_f32_32x32x16_bf16 {v(O,16)}, {v(VF+((2*j+s_)%4)*4,4)}, {v(b+4*s_,4)}, {v(O,16)}" for s_ in range(2)]
    for t in soft(0): k(t)
    for j in range(9):
        nxt = soft(j + 1) if j < 8 else []
        if j < 8:
            k(vread(2 * j + 2)); k(vread(2 * j + 3))
        p = pv(j)
        for t in nxt[:4]: k(t)
        k(f"s_waitcnt lgkmcnt({2 if j < 8 else 0})")
        k(p[0])
        for t in nxt[4:20]: k(t)
        k(p[1])
        for t in nxt[20:]: k(t)
    k(f"v_lshrrev_b32 v{TA}, 4, v{VQ}\nv_lshlrev_b32 v{TA}, 14, v{TA}\nv_and_b32 v{TB}, 15, v{VQ}")
    k(f"v_lshl_add_u32 v{AK}, v{TB}, 4, v{TA}\nv_lshl_add_u32 v{AK}, v{VH}, 8, v{AK}")
    k(f"s_lshl_b32 s30, s33, 15\ns_lshl_b32 s31, s24, 10\ns_add_u32 s30, s30, s31\ns_lshl_b32 s31, s26, 9\ns_add_u32 s30, s30, s31\ns_add_u32 s30, s30, {WS_OM}")
    k(f"v_lshrrev_b32 v{TA}, 3, v{TA}\nv_lshl_add_u32 v{AK8}, v{TB}, 3, v{TA}")
    k(f"s_lshl_b32 s31, s33, 12\ns_lshl_b32 s34, s24, 7\ns_add_u32 s31, s31, s34\ns_lshl_b32 s34, s26, 2\ns_add_u32 s31, s31, s34\ns_add_u32 s31, s31, {WS_O8}")
    k(f"v_rcp_f32 v{MX}, v{O+10}")
    for r in range(10): k(f"v_mul_f32 v{O+r}, v{O+r}, v{MX}")
    for r in range(5): k(f"v_cvt_pk_bf16_f32 v{KF+r}, v{O+2*r}, v{O+2*r+1}")
    k(f"buffer_store_dwordx4 {v(KF,4)}, v{AK}, s[20:23], s30 offen")
    k("s_mov_b32 exec_hi, 0")
    k(f"buffer_store_dword v{KF+4}, v{AK8}, s[20:23], s31 offen")
    k(f"{END}:\ns_endpgm")
    return k
```

```python
from common import *
from ring import *
from pf import *
import os

def gen_k3(name="k3_wo_kernel"):
    R = 4; STG = 20480; N = 9
    LAB = R * STG
    k = Kern(name, 384, 256, R * STG + 1024)
    END = k.lab("END"); PF = k.lab("PF"); PROD = k.lab("PROD")
    k(f"s_cmp_ge_u32 s2, 256\ns_cbranch_scc1 {END}\ns_cmp_ge_u32 s2, 192\ns_cbranch_scc1 {PF}")
    k("s_load_dwordx2 s[4:5], s[0:1], 0\ns_load_dwordx2 s[6:7], s[0:1], 16\ns_load_dwordx2 s[8:9], s[0:1], 80")
    VL, VW, VG, VI = 1, 2, 3, 4
    lane_ids(k, VL, VW, 28)
    k("s_and_b32 s10, s2, 7\ns_lshr_b32 s11, s2, 3")
    k("s_lshl_b32 s24, s10, 2\ns_and_b32 s25, s11, 3\ns_add_u32 s24, s24, s25\ns_lshr_b32 s25, s11, 2")
    k(f"v_lshrrev_b32 v{VG}, 4, v{VL}\nv_and_b32 v{VI}, 15, v{VL}")
    V16 = 5
    T0, T1, T2, T3 = 6, 7, 8, 9
    k(f"v_lshlrev_b32 v{V16}, 4, v{VL}")
    k(f"s_cmp_ge_u32 s28, 4\ns_cbranch_scc1 {PROD}")
    k("s_lshr_b32 s26, s28, 1\ns_and_b32 s27, s28, 1")
    VTR = 10
    VAO = 16
    VAE, VX = 18, 19
    IDN = 24
    XR = 28
    ACC = 52
    AF = 76
    BF = 92
    k(f"v_and_b32 v{T1}, 1, v{VG}")
    k(f"v_mul_u32_u24 v{VX}, 1152, v{VI}\nv_lshl_add_u32 v{VX}, v{T1}, 4, v{VX}\nv_add_u32 v{VX+1}, {16*1152}, v{VX}")
    k("s_lshl_b32 s30, s24, 6\ns_lshl_b32 s31, s26, 5\ns_add_u32 s30, s30, s31\ns_mul_i32 s30, s30, 1152")
    k("s_mul_i32 s31, s25, 192\ns_add_u32 s30, s30, s31\ns_mul_i32 s31, s27, 96\ns_add_u32 s30, s30, s31")
    k("s_waitcnt lgkmcnt(0)")
    srd(k, 12, 4, S_ * D_ * 2)
    srd(k, 20, 8, WS_SIZE)
    for tt in range(2):
        for dt in range(3):
            k(f"buffer_load_dwordx4 {v(XR+(tt*3+dt)*4,4)}, v{VX+tt}, s[12:15], s30 offen offset:{dt*32}")
    k(f"v_bfe_u32 v{T0}, v{VL}, 2, 2\nv_lshl_add_u32 v{T0}, v{VG}, 2, v{T0}\nv_mul_u32_u24 v{T0}, 192, v{T0}")
    k(f"v_and_b32 v{T2}, 3, v{VL}\nv_lshl_add_u32 v{T0}, v{T2}, 3, v{T0}\nv_add_u32 v{T0}, 8192, v{T0}")
    k("s_mul_i32 s30, s27, 3")
    for dt in range(3):
        k(f"s_add_u32 s31, s30, {dt}\nv_xor_b32 v{T2}, s31, v{T1}\nv_lshl_add_u32 v{VTR+dt}, v{T2}, 5, v{T0}\nv_add_u32 v{VTR+3+dt}, {2*STG}, v{VTR+dt}")
    k(f"s_lshl_b32 s30, s26, 11\nv_add_u32 v{VAO}, s30, v{V16}\nv_add_u32 v{VAO+1}, {2*STG}, v{VAO}")
    k(f"v_lshlrev_b32 v{T0}, 8, v{VG}\nv_lshl_add_u32 v{T0}, v{VI}, 3, v{T0}\nv_add_u32 v{VAE}, s30, v{T0}")
    assert 8 % R == 0
    k(f"v_lshlrev_b32 v{T0}, 3, v{VG}\nv_sub_u32 v{T0}, v{VI}, v{T0}\nv_mov_b32 v{T1}, 0x3f80\nv_mov_b32 v{T2}, 0x3f800000")
    for j2 in range(4):
        k(f"v_cmp_eq_u32 vcc, {2*j2}, v{T0}\nv_cmp_eq_u32 s[30:31], {2*j2+1}, v{T0}\nv_cndmask_b32 v{IDN+j2}, 0, v{T1}, vcc")
        k(f"v_cndmask_b32 v{IDN+j2}, v{IDN+j2}, v{T2}, s[30:31]")
    def reads(st, slot, ks, rs):
        hi = slot >> 1; off = (slot & 1) * STG
        out = []
        for tt in range(2):
            if st < 8: out.append(f"ds_read_b128 {v(AF+rs*8+tt*4,4)}, v{VAO+hi} offset:{off+ks*4096+tt*1024}")
            else:
                out.append(f"ds_read_b64 {v(AF+rs*8+tt*4,2)}, v{VAE} offset:{ks*4096+tt*1024}")
                out.append(f"ds_read_b64 {v(AF+rs*8+tt*4+2,2)}, v{VAE} offset:{ks*4096+tt*1024+128}")
        for dt in range(3):
            for hf in range(2):
                out.append(f"ds_read_b64_tr_b16 {v(BF+rs*12+dt*4+hf*2,2)}, v{VTR+3*hi+dt} offset:{off+ks*6144+hf*3072}")
        return out
    def mf(st, ks, rs):
        return [f"v_mfma_f32_16x16x32_bf16 {v(ACC+(tt*3+dt)*4,4)}, {v(AF+rs*8+tt*4,4)}, {v(BF+rs*12+dt*4,4)}, {v(ACC+(tt*3+dt)*4,4)}"
                for tt in range(2) for dt in range(3)]
    k("s_waitcnt vmcnt(0)")
    for q in range(6):
        k(f"v_mfma_f32_16x16x32_bf16 {v(ACC+q*4,4)}, {v(XR+q*4,4)}, {v(IDN,4)}, 0")
    k("STAMP 0")
    consumer_loop(k, N, R, reads, mf, per=2, special_from=8)
    k("STAMP 1")
    PK = XR
    U = XR + 12
    ST = AF
    for dt in range(3):
        for tt in range(2):
            ac = ACC + (tt * 3 + dt) * 4
            k(f"v_cvt_pk_bf16_f32 v{PK+dt*4+tt*2}, v{ac}, v{ac+1}\nv_cvt_pk_bf16_f32 v{PK+dt*4+tt*2+1}, v{ac+2}, v{ac+3}")
    for dt in range(3):
        for tt in range(2):
            for h2 in range(2):
                p = PK + dt * 4 + tt * 2 + h2
                x0 = ACC + (tt * 3 + dt) * 4 + 2 * h2
                k(f"v_lshlrev_b32 v{x0}, 16, v{p}\nv_and_b32 v{x0+1}, 0xffff0000, v{p}")
                for e in range(2):
                    d = ST + tt * 8 + (h2 * 2 + e) * 2
                    if dt == 0: k(f"v_mov_b32 v{d}, v{x0+e}\nv_mul_f32 v{d+1}, v{x0+e}, v{x0+e}")
                    else: k(f"v_add_f32 v{d}, v{d}, v{x0+e}\nv_fmac_f32 v{d+1}, v{x0+e}, v{x0+e}")
    for sh in (8, 4, 2, 1):
        for r in range(16):
            k(f"v_add_f32_dpp v{ST+r}, v{ST+r}, v{ST+r} row_ror:{sh} row_mask:0xf bank_mask:0xf")
    for r in range(8): k(f"v_or_b32 v{ST+2*r+1}, 0x80000000, v{ST+2*r+1}")
    k(f"s_lshl_b32 s31, s24, 1\ns_add_u32 s31, s31, s26")
    k(f"s_lshl_b32 s33, s31, 8\ns_add_u32 s33, s33, {WS_ST}")
    k(f"s_lshl_b32 s30, s25, 1\ns_add_u32 s30, s30, s27\ns_lshl_b32 s30, s30, 14\ns_add_u32 s30, s30, s33")
    k(f"v_lshlrev_b32 v{T0}, 5, v{VG}\nv_cmp_eq_u32 vcc, 0, v{VI}\ns_and_saveexec_b64 s[38:39], vcc")
    for tt in range(2):
        for hf in range(2):
            k(f"buffer_store_dwordx4 {v(ST+tt*8+hf*4,4)}, v{T0}, s[20:23], s30 offen offset:{tt*128+hf*16} sc0 sc1")
    k("s_mov_b64 exec, s[38:39]")
    VH = VTR
    k(f"v_lshrrev_b32 v{VH}, 3, v{VI}\nv_lshlrev_b32 v{VH}, 15, v{VH}\nv_lshl_add_u32 v{VH}, v{VG}, 7, v{VH}")
    k(f"v_and_b32 v{T1}, 7, v{VI}\nv_lshl_add_u32 v{VH}, v{T1}, 4, v{VH}")
    k(f"s_mul_i32 s30, s25, 12\ns_mul_i32 s32, s27, 6\ns_add_u32 s30, s30, s32\ns_lshl_b32 s30, s30, 15")
    k(f"s_lshl_b32 s32, s31, 9\ns_add_u32 s30, s30, s32\ns_add_u32 s32, s30, {WS_HN}\ns_add_u32 s30, s30, {WS_H}")
    for dt in range(3):
        k(f"buffer_store_dwordx4 {v(PK+dt*4,4)}, v{VH}, s[20:23], s30 offen\ns_add_u32 s30, s30, 65536")
    VS = VTR + 1
    P = BF
    k(f"v_lshrrev_b32 v{T0}, 5, v{VL}\nv_mul_u32_u24 v{VS}, {6*16384}, v{T0}\nv_and_b32 v{T0}, 31, v{VL}\nv_lshl_add_u32 v{VS}, v{T0}, 3, v{VS}")
    for p in range(6): k(f"s_add_u32 s{40+p}, s33, {p*16384}")
    POLL = k.lab("POLL"); GO = k.lab("GO")
    k(f"s_mov_b32 s37, 0x40000\n{POLL}:")
    for p in range(6):
        k(f"buffer_load_dwordx2 {v(P+2*p,2)}, v{VS}, s[20:23], s{40+p} offen sc0 sc1")
    k("s_waitcnt vmcnt(0)")
    k(f"v_and_b32 v{T1}, v{P+1}, v{P+3}\nv_and_b32 v{T2}, v{P+5}, v{P+7}\nv_and_b32 v{T3}, v{P+9}, v{P+11}\nv_and_b32 v{T1}, v{T1}, v{T2}\nv_and_b32 v{T1}, v{T1}, v{T3}")
    k(f"v_cmp_le_i32 vcc, 0, v{T1}\ns_sub_u32 s37, s37, 1\ns_cmp_eq_u32 s37, 0\ns_cbranch_scc1 {GO}\ns_cbranch_vccnz {POLL}\n{GO}:")
    k("STAMP 2")
    for p in range(1, 6):
        k(f"v_add_f32 v{P}, v{P}, v{P+2*p}\nv_add_f32 v{P+1}, v{P+1}, v{P+2*p+1}")
    k(f"v_mov_b32 v{P+2}, v{P}\nv_mov_b32 v{P+3}, v{P+1}")
    k(f"v_permlane32_swap_b32 v{P}, v{P+2}\nv_permlane32_swap_b32 v{P+1}, v{P+3}")
    k(f"v_add_f32 v{P}, v{P}, v{P+2}\nv_add_f32 v{P+1}, v{P+1}, v{P+3}")
    k(f"s_mov_b32 s34, {f32(1.0/576)}")
    mn, sq = P, P + 1
    k(f"v_mul_f32 v{mn}, s34, v{mn}\nv_mul_f32 v{sq}, s34, -v{sq}\nv_fma_f32 v{sq}, -v{mn}, v{mn}, v{sq}\nv_max_f32 v{sq}, 0, v{sq}")
    k(f"v_add_f32 v{P+2}, {f32(1e-5)}, v{sq}\nv_rsq_f32 v{P+2}, v{P+2}")
    k(f"v_mul_f32 v{sq}, v{sq}, v{P+2}\nv_mul_f32 v{sq}, v{sq}, v{P+2}\nv_add_f32 v{sq}, {f32(1e-5)}, v{sq}\nv_rsq_f32 v{sq}, v{sq}")
    k(f"v_mul_f32 v{P+2}, v{P+2}, v{sq}\nv_mul_f32 v{P+3}, -v{mn}, v{P+2}")
    k(f"s_lshl_b32 s33, s28, 8\ns_add_u32 s33, s33, {LAB}\nv_lshlrev_b32 v{T0}, 3, v{T0}\nv_add_u32 v{T0}, s33, v{T0}")
    k(f"ds_write_b64 v{T0}, {v(P+2,2)}")
    k(f"v_lshlrev_b32 v{T0}, 5, v{VG}\nv_add_u32 v{T0}, s33, v{T0}\ns_waitcnt lgkmcnt(0)")
    AB = ST
    for q in range(4):
        k(f"ds_read_b128 {v(AB+4*q,4)}, v{T0} offset:{(q>>1)*128+(q&1)*16}")
    k("s_waitcnt lgkmcnt(0)")
    for dt in range(3):
        for tt in range(2):
            x0 = ACC + (tt * 3 + dt) * 4
            for r in range(4): k(f"v_fma_f32 v{x0+r}, v{x0+r}, v{AB+tt*8+2*r}, v{AB+tt*8+2*r+1}")
            k(f"v_cvt_pk_bf16_f32 v{PK+dt*4+tt*2}, v{x0}, v{x0+1}\nv_cvt_pk_bf16_f32 v{PK+dt*4+tt*2+1}, v{x0+2}, v{x0+3}")
        k(f"buffer_store_dwordx4 {v(PK+dt*4,4)}, v{VH}, s[20:23], s32 offen\ns_add_u32 s32, s32, 65536")
    k("s_endpgm")
    k(f"{PROD}:")
    k("s_and_b32 s29, s28, 1")
    VWD, VWE, VO = 10, 16, 22
    for q in range(6):
        k(f"v_add_u32 v{T0}, {q*64}, v{VL}")
        k(f"v_mul_u32_u24 v{T1}, 5462, v{T0}\nv_lshrrev_b32 v{T1}, 16, v{T1}")
        k(f"v_mul_u32_u24 v{T2}, 12, v{T1}\nv_sub_u32 v{T0}, v{T0}, v{T2}")
        k(f"v_bfe_u32 v{T2}, v{T1}, 2, 1\nv_lshlrev_b32 v{T2}, 1, v{T2}\nv_xor_b32 v{T0}, v{T0}, v{T2}\nv_lshlrev_b32 v{VWE+q}, 4, v{T0}")
        k(f"v_and_b32 v{T2}, 7, v{T1}")
        k(f"v_bfe_u32 v{T3}, v{T1}, 3, 1\nv_mad_u32_u24 v{T2}, v{T3}, 20, v{T2}")
        k(f"v_bfe_u32 v{T3}, v{T1}, 4, 1\nv_lshl_add_u32 v{T2}, v{T3}, 3, v{T2}")
        k(f"v_mul_u32_u24 v{T2}, 1152, v{T2}\nv_add_u32 v{VWD+q}, v{T2}, v{VWE+q}")
    for q in range(4): k(f"v_add_u32 v{VO+q}, {q*16384}, v{V16}")
    k(f"s_lshl_b32 s32, s24, 16\ns_lshl_b32 s30, s29, 10\ns_add_u32 s32, s32, s30\ns_add_u32 s32, s32, {WS_OM}")
    k(f"s_lshl_b32 s38, s24, 13\ns_add_u32 s38, s38, s30\ns_add_u32 s38, s38, {WS_O8}")
    k(f"s_mul_i32 s33, s25, 192\ns_mul_i32 s30, s29, {8*36*1152}\ns_add_u32 s39, s33, s30\ns_mul_i32 s30, s29, {36*1152}\ns_add_u32 s33, s33, s30")
    k("s_lshl_b32 s34, s29, 12\ns_mul_i32 s35, s29, 6144\ns_add_u32 s35, s35, 8192")
    k("s_waitcnt lgkmcnt(0)")
    srd(k, 16, 6, D_ * D_ * 2)
    srd(k, 20, 8, WS_SIZE)
    def issue(st, slot):
        out = []
        base = slot * STG
        if st == 3:
            for q in range(6):
                out.append(f"v_add_u32 v{T0}, {q*64}, v{VL}\nv_mul_u32_u24 v{T1}, 5462, v{T0}\nv_lshrrev_b32 v{T1}, 16, v{T1}\n"
                           f"v_bfe_u32 v{T2}, v{T1}, 2, 2\nv_lshlrev_b32 v{T2}, 1, v{T2}\nv_bfe_u32 v{T3}, v{T1}, 4, 1\nv_add_u32 v{T2}, v{T2}, v{T3}\nv_mul_u32_u24 v{T2}, 36, v{T2}\n"
                           f"v_and_b32 v{T3}, 3, v{T1}\nv_add3_u32 v{T2}, v{T2}, v{T3}, 16\nv_mul_u32_u24 v{T2}, 1152, v{T2}\nv_add_u32 v{VWE+q}, v{T2}, v{VWE+q}")
            for q in range(4): out.append(f"v_add_u32 v{VO+4+q}, {q*2048}, v{V16}")
        for q in range(6):
            if q < 4:
                out.append(f"s_add_u32 m0, s34, {base + q*1024}\ns_nop 0\nbuffer_load_dwordx4 v{VO+q+(4 if st == 8 else 0)}, s[20:23], s{32 if st < 8 else 38} offen lds")
            out.append(f"s_add_u32 m0, s35, {base + q*1024}\ns_nop 0\nbuffer_load_dwordx4 v{(VWD if st < 8 else VWE)+q}, s[16:19], s{33 if st < 8 else 39} offen lds")
        out.append(f"s_add_u32 s32, s32, 2048\ns_add_u32 s33, s33, {72*1152}")
        return out
    issue.special_from = 8
    producer_loop(k, N, R, 10, issue)
    k(f"{PF}:")
    k("s_sub_u32 s11, s2, 192")
    pf_env(k, "PF3", 11, 64, 384, 16)
    k(f"{END}:\ns_endpgm")
    return k
```

```python
from common import *
from ring import *
from pf import *
import math, os
X4 = os.environ.get('K4X', '').split(',')

def gen_k4(name="k4_mlp1_kernel"):
    STG = 28672; R = 4; N = 32
    HW = 'w2' in X4
    k = Kern(name, 448 if HW else 384, 256, R * STG)
    HELP = k.lab('HELP')
    END = k.lab("END"); PROD = k.lab("PROD"); PF = k.lab("PF")
    k(f"s_cmp_ge_u32 s2, 256\ns_cbranch_scc1 {END}")
    k("s_load_dwordx4 s[4:7], s[0:1], 32\ns_load_dwordx2 s[8:9], s[0:1], 80\ns_load_dwordx2 s[44:45], s[0:1], 48")
    k("s_and_b32 s10, s2, 7\ns_lshr_b32 s11, s2, 3")
    k("s_mul_i32 s24, s11, 10923\ns_lshr_b32 s24, s24, 16\ns_mul_i32 s25, s24, 6\ns_sub_u32 s25, s11, s25")
    k("s_and_b32 s29, s10, 1\ns_mul_i32 s30, s29, 5\ns_add_u32 s24, s24, s30")
    k("s_mul_i32 s30, s29, 3\ns_add_u32 s30, s30, s25")
    k("s_cmp_ge_u32 s11, 24\ns_cselect_b32 s24, 4, s24\ns_cselect_b32 s25, s30, s25")
    k("s_lshr_b32 s30, s10, 1\ns_mul_i32 s30, s30, 9\ns_add_u32 s24, s24, s30")
    VL, VW, VG, VI = 1, 2, 3, 4
    lane_ids(k, VL, VW, 28)
    k(f"v_lshrrev_b32 v{VG}, 4, v{VL}\nv_and_b32 v{VI}, 15, v{VL}")
    T0, T1, T2 = 23, 24, 25
    VFR = 22
    k(f"v_lshlrev_b32 v{T0}, 7, v{VG}\nv_and_b32 v{T1}, 7, v{VI}\nv_lshl_add_u32 v{VFR}, v{T1}, 4, v{T0}")
    k("s_waitcnt lgkmcnt(0)")
    srd(k, 12, 4, S_ * F_ * 2)
    srd(k, 16, 6, F_ * 2)
    srd(k, 20, 8, WS_SIZE)
    srd(k, 40, 44, S_ * F_ * 2)
    k(f"s_cmp_ge_u32 s11, 27\ns_cbranch_scc1 {PF}")
    k(f"s_cmp_ge_u32 s28, 4\ns_cbranch_scc1 {PROD}")
    k("s_lshr_b32 s26, s28, 1\ns_and_b32 s27, s28, 1")
    VTR = 12
    VHR = 20
    B1 = 26
    ACC = 36
    WF = 84
    HF = 116
    k(f"v_lshlrev_b32 v{T0}, 3, v{VG}\ns_lshl_b32 s30, s24, 8\ns_lshl_b32 s31, s26, 7\ns_add_u32 s30, s30, s31")
    for f4 in range(4):
        k(f"buffer_load_dwordx2 {v(B1+2*f4,2)}, v{T0}, s[16:19], s30 offen offset:{f4*32}")
    k(f"v_bfe_u32 v{T0}, v{VL}, 2, 2\nv_lshl_add_u32 v{T0}, v{VG}, 2, v{T0}")
    k(f"v_and_b32 v{T1}, 7, v{T0}\nv_lshlrev_b32 v{T0}, 8, v{T0}\nv_and_b32 v{T2}, 3, v{VL}\nv_lshl_add_u32 v{T0}, v{T2}, 3, v{T0}")
    k("s_lshl_b32 s30, s26, 2")
    for f4 in range(4):
        k(f"s_add_u32 s31, s30, {f4}\nv_xor_b32 v{T2}, s31, v{T1}\nv_lshl_add_u32 v{VTR+f4}, v{T2}, 5, v{T0}\nv_add_u32 v{VTR+4+f4}, {2*STG}, v{VTR+f4}")
    k(f"s_mul_i32 s30, s27, 3072\ns_add_u32 s30, s30, 16384\nv_lshlrev_b32 v{VHR}, 4, v{VL}\nv_add_u32 v{VHR}, s30, v{VHR}\nv_add_u32 v{VHR+1}, {2*STG}, v{VHR}")
    for r in range(48): k(f"v_mov_b32 v{ACC+r}, 0")
    def reads(st, slot, ks, rs):
        hi = slot >> 1; off = (slot & 1) * STG
        out = []
        for f4 in range(4):
            for hf in range(2):
                out.append(f"ds_read_b64_tr_b16 {v(WF+rs*16+f4*4+hf*2,2)}, v{VTR+4*hi+f4} offset:{off+ks*8192+hf*4096}")
            if f4 < 3:
                out.append(f"ds_read_b128 {v(HF+rs*12+f4*4,4)}, v{VHR+hi} offset:{off+ks*6144+f4*1024}")
        return out
    def mf(st, ks, rs):
        return [f"v_mfma_f32_16x16x32_bf16 {v(ACC+(f4*3+dt)*4,4)}, {v(WF+rs*16+f4*4,4)}, {v(HF+rs*12+dt*4,4)}, {v(ACC+(f4*3+dt)*4,4)}"
                for f4 in range(4) for dt in range(3)]
    k("STAMP 0")
    consumer_loop(k, N, R, reads, mf, per=1)
    k("STAMP 2")
    c1 = -2.0 * math.sqrt(2.0 / math.pi) * math.log2(math.e)
    c2 = c1 * 0.044715
    k(f"s_mov_b32 s30, {f32(c2)}\nv_mov_b32 v{T2}, {f32(c1)}")
    BB = WF
    k("s_waitcnt vmcnt(0)")
    for f4 in range(4):
        for h2 in range(2):
            k(f"v_lshlrev_b32 v{BB+f4*4+h2*2}, 16, v{B1+f4*2+h2}\nv_and_b32 v{BB+f4*4+h2*2+1}, 0xffff0000, v{B1+f4*2+h2}")
    k(f"v_lshrrev_b32 v{T0}, 3, v{VI}\nv_mul_u32_u24 v{T0}, {144*512}, v{T0}\nv_add_u32 v{T0}, v{T0}, v{VFR}")
    k(f"s_mul_i32 s31, s25, 12\ns_mul_i32 s37, s27, 6\ns_add_u32 s31, s31, s37\ns_mul_i32 s31, s31, {144*512}")
    k(f"s_lshl_b32 s37, s24, 11\ns_add_u32 s31, s31, s37\ns_lshl_b32 s37, s26, 10\ns_add_u32 s31, s31, s37\ns_add_u32 s31, s31, {WS_U}")
    TT = WF + 16
    PKD = HF
    for dt in range(3):
        for pr in range(2):
            xs = [ACC + ((2 * pr + h) * 3 + dt) * 4 + r for h in range(2) for r in range(4)]
            bs = [BB + (2 * pr + h) * 4 + r for h in range(2) for r in range(4)]
            for n in range(8): k(f"v_add_f32 v{xs[n]}, v{xs[n]}, v{bs[n]}")
            for n in range(8): k(f"v_mul_f32 v{TT+n}, v{xs[n]}, v{xs[n]}")
            for n in range(8): k(f"v_fma_f32 v{TT+n}, v{TT+n}, s30, v{T2}")
            for n in range(8): k(f"v_mul_f32 v{TT+n}, v{TT+n}, v{xs[n]}")
            for n in range(8): k(f"v_exp_f32 v{TT+n}, v{TT+n}")
            for n in range(8): k(f"v_add_f32 v{TT+n}, 1.0, v{TT+n}")
            for n in range(8): k(f"v_rcp_f32 v{TT+n}, v{TT+n}")
            for n in range(8): k(f"v_mul_f32 v{xs[n]}, v{xs[n]}, v{TT+n}")
            o = PKD + (dt * 2 + pr) * 4
            for n in range(4): k(f"v_cvt_pk_bf16_f32 v{o+n}, v{xs[2*n]}, v{xs[2*n+1]}")
            k(f"buffer_store_dwordx4 {v(o,4)}, v{T0}, s[20:23], s31 offen offset:{pr*512}")
        k(f"s_add_u32 s31, s31, {2*144*512}")
    k("s_endpgm")
    k(f"{PROD}:")
    k(f"s_cmp_eq_u32 s28, 6\ns_cbranch_scc1 {HELP}")
    k("s_and_b32 s26, s28, 1")
    VWD = 5
    VHD = 13
    for q in range(2):
        k(f"v_add_u32 v{T0}, {4*q}, v{VG}")
        k(f"v_lshlrev_b32 v{T1}, 1, v{T0}\nv_xor_b32 v{T1}, v{T1}, v{VI}\nv_lshlrev_b32 v{T1}, 4, v{T1}")
        k(f"v_mul_u32_u24 v{T0}, 9216, v{T0}\nv_add_u32 v{VWD+q}, v{T0}, v{T1}")
    for q in range(2, 8): k(f"v_add_u32 v{VWD+q}, {8*9216}, v{VWD+q-2}")
    k(f"v_lshrrev_b32 v{T0}, 3, v{VI}\nv_lshl_add_u32 v{VHD}, v{T0}, 15, v{VFR}")
    for q in range(1, 6): k(f"v_add_u32 v{VHD+q}, 65536, v{VHD+q-1}")
    k(f"s_lshl_b32 s32, s24, 8\ns_mul_i32 s30, s26, {32*9216}\ns_add_u32 s32, s32, s30")
    k(f"s_mul_i32 s33, s25, {6*65536}\ns_lshl_b32 s30, s26, 9\ns_add_u32 s33, s33, s30\ns_add_u32 s33, s33, {WS_HN}")
    k("s_lshl_b32 s34, s26, 13\ns_mul_i32 s35, s26, 6144\ns_add_u32 s35, s35, 16384")
    NT = " nt" if 'wnt' in X4 else ""
    def issue(st, slot):
        out = []
        base = slot * STG
        for q in range(8):
            t = f"s_add_u32 m0, s34, {base + q*1024}\ns_nop 0\nbuffer_load_dwordx4 v{VWD+q}, s[12:15], s32 offen{NT} lds"
            out.append(t)
            if q < 6:
                out.append(f"s_add_u32 m0, s35, {base + q*1024}\ns_nop 0\nbuffer_load_dwordx4 v{VHD+q}, s[20:23], s33 offen lds")
        out.append(f"s_add_u32 s32, s32, {64*9216}\ns_add_u32 s33, s33, 1024")
        return out
    producer_loop(k, N, R, 14, issue)
    k(f"{HELP}:")
    k(f"v_lshrrev_b32 v5, 4, v{VL}\nv_lshlrev_b32 v5, 12, v5\nv_lshl_add_u32 v5, v{VI}, 7, v5")
    k(f"s_lshr_b32 s30, s10, 1\ns_mul_i32 s30, s30, {1152*4096}\ns_and_b32 s31, s10, 1\ns_lshl_b32 s31, s31, 11\ns_add_u32 s30, s30, s31")
    k(f"s_lshl_b32 s31, s11, 14\ns_add_u32 s30, s30, s31\ns_add_u32 s30, s30, {10*27*4*4096}")
    b0 = int(os.environ.get('K4H0', '4')); bs = int(os.environ.get('K4HS', '2'))
    nb = 0
    for i in range(11):
        while nb < b0 + bs * i:
            k("s_barrier"); nb += 1
        if i == 0: k(f"s_min_u32 s31, s30, s30")
        k(f"buffer_load_dword v{6+i}, v5, s[40:43], s30 offen\ns_sub_u32 s30, s30, {27*4*4096}")
    k("s_endpgm")
    k(f"{PF}:")
    k("s_sub_u32 s11, s2, 216")
    pf_env(k, "PF4", 11, 40, k.block, 16)
    k(f"{END}:\ns_endpgm")
    return k
```

```python
from common import *
from ring import *
import os
X5 = os.environ.get('K5X', '').split(',')

def gen_k5(name="k5_mlp2_kernel"):
    STG = 34816; R = int(os.environ.get('K5R', '4')); N = 18
    k = Kern(name, 384, 256, R * STG)
    END = k.lab("END"); PROD = k.lab("PROD")
    k(f"s_cmp_ge_u32 s2, 256\ns_cbranch_scc1 {END}")
    k("s_load_dwordx4 s[4:7], s[0:1], 48\ns_load_dwordx2 s[10:11], s[0:1], 64\ns_load_dwordx2 s[8:9], s[0:1], 80")
    k("s_and_b32 s29, s2, 7\ns_lshr_b32 s30, s2, 3\ns_lshr_b32 s26, s29, 1\ns_and_b32 s25, s30, 3\ns_lshr_b32 s24, s30, 2")
    k("s_and_b32 s29, s29, 1\ns_lshl_b32 s29, s29, 3\ns_add_u32 s24, s24, s29")
    k("s_lshr_b32 s27, s26, 1\ns_mul_i32 s27, s27, 5\ns_and_b32 s29, s26, 1")
    VL, VW, VG, VI = 1, 2, 3, 4
    lane_ids(k, VL, VW, 28)
    k(f"v_lshrrev_b32 v{VG}, 4, v{VL}\nv_and_b32 v{VI}, 15, v{VL}")
    T0, T1, T2, VFR = 5, 6, 7, 8
    k(f"v_lshlrev_b32 v{T0}, 7, v{VG}\nv_and_b32 v{T1}, 7, v{VI}\nv_lshl_add_u32 v{VFR}, v{T1}, 4, v{T0}")
    for d in range(9):
        k(f"s_add_u32 s{50+d}, s27, {d}\ns_sub_u32 s30, s{50+d}, 9\ns_cmp_ge_u32 s{50+d}, 9\ns_cselect_b32 s{50+d}, s30, s{50+d}")
    k("s_waitcnt lgkmcnt(0)")
    srd(k, 12, 4, F_ * S_ * 2)
    srd(k, 16, 6, S_ * 2)
    srd(k, 20, 8, WS_SIZE)
    srd(k, 40, 10, S_ * D_ * 2)
    k(f"s_cmp_ge_u32 s28, 4\ns_cbranch_scc1 {PROD}")
    VTR = 10
    VUR = VTR + 2 * R
    B2 = VUR + R
    IDN = 24
    HR = 28
    UF = 48
    WF = UF + 72
    assert B2 < IDN
    k(f"s_lshl_b32 s30, s24, 8\ns_lshl_b32 s31, s28, 6\ns_add_u32 s30, s30, s31\ns_lshl_b32 s31, s29, 5\ns_add_u32 s30, s30, s31\nv_lshlrev_b32 v{T0}, 1, v{VI}")
    k(f"buffer_load_ushort v{B2}, v{T0}, s[16:19], s30 offen")
    k(f"v_lshrrev_b32 v{T0}, 3, v{VI}\nv_lshl_add_u32 v{T0}, v{T0}, 15, v{VFR}")
    k(f"s_mul_i32 s31, s25, {18*32768}\ns_lshl_b32 s30, s24, 11\ns_add_u32 s31, s31, s30\ns_lshl_b32 s30, s28, 9\ns_add_u32 s31, s31, s30\ns_add_u32 s31, s31, {WS_H}")
    for d in range(5):
        k(f"s_lshl_b32 s30, s{50+d}, 16\ns_add_u32 s30, s30, s31\nbuffer_load_dwordx4 {v(HR+4*d,4)}, v{T0}, s[20:23], s30 offen")
    k(f"v_bfe_u32 v{T0}, v{VL}, 2, 2\nv_lshl_add_u32 v{T0}, v{VG}, 2, v{T0}")
    k(f"v_and_b32 v{T1}, 7, v{T0}\nv_lshlrev_b32 v{T0}, 8, v{T0}\nv_and_b32 v{T2}, 3, v{VL}\nv_lshl_add_u32 v{T0}, v{T2}, 3, v{T0}")
    k("s_lshl_b32 s30, s28, 1\ns_add_u32 s30, s30, s29")
    for l in range(2):
        k(f"s_xor_b32 s31, s30, {l}\nv_xor_b32 v{T2}, s31, v{T1}\nv_lshl_add_u32 v{VTR+l}, v{T2}, 5, v{T0}")
        for sl in range(1, R): k(f"v_add_u32 v{VTR+2*sl+l}, {sl*STG}, v{VTR+l}")
    k(f"v_lshlrev_b32 v{VUR}, 4, v{VL}\nv_add_u32 v{VUR}, 16384, v{VUR}")
    for sl in range(1, R): k(f"v_add_u32 v{VUR+sl}, {sl*STG}, v{VUR}")
    k(f"v_lshlrev_b32 v{T0}, 2, v{VG}\nv_sub_u32 v{T0}, v{VI}, v{T0}\nv_mov_b32 v{T1}, 0x3f80\nv_mov_b32 v{T2}, 0x3f800000")
    k("s_cmp_eq_u32 s29, 0\ns_cselect_b64 s[38:39], -1, 0")
    for j2 in range(2):
        k(f"v_cmp_eq_u32 vcc, {2*j2}, v{T0}\nv_cndmask_b32 v{UF}, 0, v{T1}, vcc")
        k(f"v_cmp_eq_u32 vcc, {2*j2+1}, v{T0}\nv_cndmask_b32 v{UF}, v{UF}, v{T2}, vcc")
        k(f"v_cndmask_b32 v{IDN+j2}, 0, v{UF}, s[38:39]\nv_cndmask_b32 v{IDN+2+j2}, v{UF}, 0, s[38:39]")
    for n in range(18):
        for r in range(4): k(f"v_accvgpr_write_b32 a{n*4+r}, 0")
    def reads(st, slot, ks, rs):
        out = []
        for l in range(2):
            for hf in range(2):
                out.append(f"ds_read_b64_tr_b16 {v(WF+rs*8+l*4+hf*2,2)}, v{VTR+2*slot+l} offset:{ks*8192+hf*4096}")
        for d in range(9):
            out.append(f"ds_read_b128 {v(UF+rs*36+d*4,4)}, v{VUR+slot} offset:{ks*9216+d*1024}")
        return out
    def mf(st, ks, rs):
        return [f"v_mfma_f32_16x16x32_bf16 {a((d*2+l)*4,4)}, {v(UF+rs*36+d*4,4)}, {v(WF+rs*8+l*4,4)}, {a((d*2+l)*4,4)}"
                for d in range(9) for l in range(2)]
    consumer_loop(k, N, R, reads, mf, per=1)
    k("s_waitcnt vmcnt(0)")
    k("STAMP 0")
    k(f"s_lshl_b32 s32, s24, 2\ns_add_u32 s32, s32, s25")
    k(f"s_lshl_b32 s33, s32, 4\ns_add_u32 s33, s33, s28\ns_mul_i32 s33, s33, {18*1024}\ns_add_u32 s33, s33, {WS_P}")
    k(f"s_mul_i32 s34, s26, {4*18*1024}\ns_add_u32 s34, s34, s33")
    k(f"v_lshlrev_b32 v{T0}, 4, v{VL}")
    for d in range(9):
        for l in (1, 0):
            if l == 0 and d in (1, 2, 3): continue
            k(f"s_lshl_b32 s30, s{50+d}, 1\ns_xor_b32 s31, s29, {l}\ns_add_u32 s30, s30, s31\ns_lshl_b32 s30, s30, 10\ns_add_u32 s30, s30, s34")
            k(f"buffer_store_dwordx4 {a((d*2+l)*4,4)}, v{T0}, s[20:23], s30 offen sc0 sc1")
    RR = UF
    for d in range(5):
        k(f"v_mfma_f32_16x16x32_bf16 {a(d*8,4)}, {v(HR+4*d,4)}, {v(IDN,4)}, {a(d*8,4)}")
    for d in range(5):
        for r in range(4): k(f"v_accvgpr_read_b32 v{RR+60+d*4+r}, a{d*8+r}")
    k(f"v_lshlrev_b32 v{B2}, 16, v{B2}")
    k(f"s_lshl_b32 s35, s32, 7\ns_add_u32 s35, s35, {WS_FL}\ns_lshl_b32 s30, s26, 2\ns_add_u32 s30, s30, s35")
    k(f"v_mov_b32 v{T1}, 0\nv_mov_b32 v{T2}, 1")
    k("s_waitcnt vmcnt(0)\ns_barrier")
    k("STAMP 1")
    NF = k.lab("NF")
    k(f"s_cmp_lg_u32 s28, 0\ns_cbranch_scc1 {NF}\ns_mov_b64 exec, 1")
    k(f"buffer_store_dword v{T2}, v{T1}, s[20:23], s30 offen sc0 sc1\ns_mov_b64 exec, -1\n{NF}:")
    VO = VTR
    k(f"v_mul_u32_u24 v{VO}, 1152, v{VI}\nv_lshl_add_u32 v{VO}, v{VG}, 3, v{VO}")
    k(f"s_lshl_b32 s36, s24, 7\ns_lshl_b32 s31, s28, 5\ns_add_u32 s36, s36, s31\ns_lshl_b32 s31, s29, 4\ns_add_u32 s36, s36, s31\ns_mul_i32 s36, s36, 1152\ns_mul_i32 s31, s25, 288\ns_add_u32 s36, s36, s31")
    POLL = k.lab("POLL"); GO = k.lab("GO")
    k(f"s_mov_b32 s37, 0x40000\n{POLL}:")
    k(f"buffer_load_dwordx4 {v(HR,4)}, v{T1}, s[20:23], s35 offen sc0 sc1\ns_waitcnt vmcnt(0)")
    k(f"v_min_u32 v{HR}, v{HR}, v{HR+1}\nv_min_u32 v{HR+2}, v{HR+2}, v{HR+3}\nv_min_u32 v{HR}, v{HR}, v{HR+2}\nv_readfirstlane_b32 s30, v{HR}")
    k(f"s_sub_u32 s37, s37, 1\ns_cmp_eq_u32 s37, 0\ns_cbranch_scc1 {GO}\ns_cmp_eq_u32 s30, 0\ns_cbranch_scc1 {POLL}\n{GO}:\nSTAMP 2")
    for d in range(5):
        k(f"s_lshl_b32 s30, s{50+d}, 1\ns_add_u32 s30, s30, s29\ns_lshl_b32 s30, s30, 10\ns_add_u32 s30, s30, s33")
        for o in range(1, 4):
            k(f"s_add_u32 s31, s26, {o}\ns_and_b32 s31, s31, 3\ns_mul_i32 s31, s31, {4*18*1024}\ns_add_u32 s31, s31, s30")
            k(f"buffer_load_dwordx4 {v(RR+(d*3+o-1)*4,4)}, v{T0}, s[20:23], s31 offen sc0 sc1")
    for d in range(5):
        o = RR + 60 + d * 4
        for r in range(4): k(f"v_add_f32 v{o+r}, v{o+r}, v{B2}")
    for d in range(5):
        k(f"s_waitcnt vmcnt({12-3*d+d})")
        o = RR + 60 + d * 4
        for l in range(3):
            for r in range(4): k(f"v_add_f32 v{o+r}, v{o+r}, v{RR+(d*3+l)*4+r}")
        k(f"v_cvt_pk_bf16_f32 v{o}, v{o}, v{o+1}\nv_cvt_pk_bf16_f32 v{o+1}, v{o+2}, v{o+3}")
        k(f"s_lshl_b32 s30, s{50+d}, 5\ns_add_u32 s30, s30, s36")
        k(f"buffer_store_dwordx2 {v(o,2)}, v{VO}, s[40:43], s30 offen")
    k("s_endpgm")
    k(f"{PROD}:")
    k("s_and_b32 s29, s28, 1")
    VWD = 10
    VUD = 18
    for q in range(2):
        k(f"v_add_u32 v{T0}, {4*q}, v{VG}")
        k(f"v_lshlrev_b32 v{T1}, 1, v{T0}\nv_xor_b32 v{T1}, v{T1}, v{VI}\nv_lshlrev_b32 v{T1}, 4, v{T1}")
        k(f"v_lshl_add_u32 v{VWD+q}, v{T0}, 12, v{T1}")
    for q in range(2, 8): k(f"v_add_u32 v{VWD+q}, {8*4096}, v{VWD+q-2}")
    k(f"v_lshrrev_b32 v{T0}, 3, v{VI}\nv_mul_u32_u24 v{T0}, {144*512}, v{T0}\nv_add_u32 v{T0}, v{T0}, v{VFR}")
    for d in range(9):
        k(f"s_mul_i32 s30, s{50+d}, {2*144*512}\nv_add_u32 v{VUD+d}, s30, v{T0}")
    k(f"s_mul_i32 s32, s26, {1152*4096}\ns_lshl_b32 s30, s29, 17\ns_add_u32 s32, s32, s30\ns_lshl_b32 s30, s24, 8\ns_add_u32 s32, s32, s30")
    k(f"s_mul_i32 s33, s25, {18*144*512}\ns_mul_i32 s30, s26, {36*512}\ns_add_u32 s33, s33, s30\ns_lshl_b32 s30, s29, 9\ns_add_u32 s33, s33, s30\ns_add_u32 s33, s33, {WS_U}")
    k("s_lshl_b32 s34, s29, 13\ns_mul_i32 s35, s29, 9216\ns_add_u32 s35, s35, 16384")
    NT = " nt" if 'wnt' in X5 else ""
    def issue(st, slot):
        out = []
        base = slot * STG
        for q in range(9):
            out.append(f"s_add_u32 m0, s35, {base + q*1024}\ns_nop 0\nbuffer_load_dwordx4 v{VUD+q}, s[20:23], s33 offen lds")
            if q < 8:
                out.append(f"s_add_u32 m0, s34, {base + q*1024}\ns_nop 0\nbuffer_load_dwordx4 v{VWD+q}, s[12:15], s32 offen{NT} lds")
        out.append(f"s_add_u32 s32, s32, {64*4096}\ns_add_u32 s33, s33, 1024")
        return out
    producer_loop(k, N, R, 17, issue)
    k(f"{END}:\ns_endpgm")
    return k
```

```python
from common import *
from ring import touch_rows

def w1_tile_of_xcd(k, sx, sp, sd, st):
    k(f"s_and_b32 s{st}, s{sx}, 1\ns_lshl_b32 s{st}, s{st}, 2\ns_add_u32 s{sd}, s{sp}, s{st}")
    k(f"s_lshr_b32 s{st}, s{sx}, 1\ns_mul_i32 s{st}, s{st}, 9\ns_add_u32 s{sd}, s{sd}, s{st}\ns_lshl_b32 s{sd}, s{sd}, 8")

def pf_w1(k, srd, sx, sidx, nwg, nthreads, r0, r1, tmp=5, s0=60):
    rows = (r1 - r0) // nwg
    assert rows * nwg == r1 - r0
    rpi = nthreads // 16
    k(f"s_mov_b32 s{s0+1}, 0")
    w1_tile_of_xcd(k, sx, s0 + 1, s0, s0 + 2)
    k(f"s_mul_i32 s{s0+1}, s{sidx}, {rows*9216}\ns_add_u32 s{s0}, s{s0}, s{s0+1}\ns_add_u32 s{s0}, s{s0}, {r0*9216}")
    k(f"v_lshrrev_b32 v{tmp}, 4, v0\nv_mul_u32_u24 v{tmp}, 9216, v{tmp}\nv_and_b32 v{tmp+1}, 15, v0\nv_lshl_add_u32 v{tmp}, v{tmp+1}, 7, v{tmp}")
    k(f"v_mov_b32 v{tmp+2}, 0x7ff00000\nv_cmp_lt_u32 vcc, 9, v{tmp+1}\nv_cndmask_b32 v{tmp}, v{tmp}, v{tmp+2}, vcc")
    n = (rows + rpi - 1) // rpi
    for i in range(n):
        k(f"buffer_load_dword v{tmp+2+(i%8)}, v{tmp}, s[{srd}:{srd+3}], s{s0} offen\ns_add_u32 s{s0}, s{s0}, {rpi*9216}")


def pf_flat(k, srd, sidx, nwg, nthreads, b0, b1, tmp=5, s0=60, flags=""):
    lines = (b1 - b0) // 128
    per = (lines + nwg - 1) // nwg
    n = (per + nthreads - 1) // nthreads
    k(f"s_mul_i32 s{s0}, s{sidx}, {per*128}\ns_add_u32 s{s0}, s{s0}, {b0}\nv_lshlrev_b32 v{tmp}, 7, v0")
    for i in range(n):
        last = per - i * nthreads
        if last < nthreads:
            k(f"v_mov_b32 v{tmp+1}, 0x7ff00000\nv_cmp_gt_u32 vcc, {last}, v0\nv_cndmask_b32 v{tmp}, v{tmp+1}, v{tmp}, vcc")
        k(f"buffer_load_dword v{tmp+2+(i%8)}, v{tmp}, s[{srd}:{srd+3}], s{s0} offen {flags}\ns_add_u32 s{s0}, s{s0}, {nthreads*128}")

def pf_env(k, name, sidx, nwg, nthreads, tmp, loaded=False):
    import os
    spec = os.environ.get(name, "")
    if not spec: return
    if not loaded: k("s_load_dwordx2 s[56:57], s[0:1], 32\ns_load_dwordx2 s[58:59], s[0:1], 48\ns_waitcnt lgkmcnt(0)")
    U = S_ * F_ * 2 // 64
    for it in spec.split(","):
        w, a_, b_ = it.split(":")
        srd(k, 52, 56 if w == "w1" else 58, S_ * F_ * 2)
        pf_flat(k, 52, sidx, nwg, nthreads, int(a_) * U, int(b_) * U, tmp=tmp)
        tmp += 10
```

```python
from common import *

def producer_loop(k, N, R, P, issue, cnt=36):
    import os
    if os.environ.get("NODMA"):
        sf = getattr(issue, "special_from", N)
        issue = lambda st, slot: []

    first = 2
    k("STAMP 0")
    for st in range(first):
        for t in issue(st, st % R): k(t)
    k(f"s_waitcnt vmcnt({P})\nSTAMP 1\ns_barrier")
    issued = first
    def after(b, st_list):
        for st in st_list:
            for t in issue(st, st % R): k(t)
    b = 0
    after(0, range(issued, min(N, R))); issued = min(N, R)
    k(f"s_waitcnt vmcnt({(issued - 2) * P})\ns_barrier")
    b = 1
    nsteady = N - R
    special = getattr(issue, "special_from", N) if not os.environ.get("NODMA") else sf
    nloop = 0
    while (nloop + 1) * R <= nsteady and R + (nloop + 1) * R - 1 < special: nloop += 1
    if nloop >= 2:
        L = k.lab("PL")
        k(f"s_mov_b32 s{cnt}, {nloop}\n{L}:")
        for i in range(R):
            st = R + i
            after(b, [st])
            k(f"s_waitcnt vmcnt({(R - 2) * P})\ns_barrier")
        k(f"s_sub_u32 s{cnt}, s{cnt}, 1\ns_cmp_lg_u32 s{cnt}, 0\ns_cbranch_scc1 {L}")
        b += nloop * R; issued += nloop * R
    while b < N - 1:
        if issued < N:
            after(b, [issued]); issued += 1
        k(f"s_waitcnt vmcnt({(issued - (b + 1) - 1) * P})\ns_barrier")
        b += 1
    k("STAMP 2\ns_endpgm")

def consumer_loop(k, N, R, reads, mf, cnt=36, per=2, pre=None, special_from=None):
    special_from = N if special_from is None else special_from
    k("s_barrier")
    k("STAMP 1")
    for t in reads(0, 0, 0, 0): k(t)
    if pre: pre()
    def stage(st, last=False):
        slot = st % R
        k("s_waitcnt lgkmcnt(0)")
        for t in interleave(mf(st, 0, 0), reads(st, slot, 1, 1), 0, per): k(t)
        fill = []
        if not last:
            k("s_waitcnt lgkmcnt(0)\ns_barrier")
            fill = reads(st + 1, (slot + 1) % R, 0, 0)
        else:
            k("s_waitcnt lgkmcnt(0)")
        for t in interleave(mf(st, 1, 1), fill, 0, per): k(t)
    nloop = 0
    while (nloop + 1) * R < N and (nloop + 1) * R < special_from: nloop += 1
    st = 0
    if nloop >= 2:
        L = k.lab("CL")
        k(f"s_mov_b32 s{cnt}, {nloop}\n{L}:")
        for i in range(R): stage(i)
        k(f"s_sub_u32 s{cnt}, s{cnt}, 1\ns_cmp_lg_u32 s{cnt}, 0\ns_cbranch_scc1 {L}")
        st = nloop * R
    while st < N:
        stage(st, st == N - 1); st += 1

def touch_rows(k, srd, vtid, nthreads, lines_per_row_log2, row_bytes, sbase, nlines, flags, tmp):
    lg = lines_per_row_log2
    k(f"v_lshrrev_b32 v{tmp}, {lg}, v{vtid}\nv_mul_u32_u24 v{tmp}, {row_bytes}, v{tmp}")
    k(f"v_and_b32 v{tmp+1}, {(1 << lg) - 1}, v{vtid}\nv_lshl_add_u32 v{tmp}, v{tmp+1}, 7, v{tmp}")
    step = (nthreads >> lg) * row_bytes
    n = (nlines + nthreads - 1) // nthreads
    for i in range(n):
        k(f"buffer_load_dword v{tmp+2+(i%8)}, v{tmp}, s[{srd}:{srd+3}], s{sbase} offen {flags}\ns_add_u32 s{sbase}, s{sbase}, {step}")
```

```python
import sys
sys.path.insert(0, "gen")
from common import *
from k1 import gen_k1
from k2 import gen_k2
from k3 import gen_k3
from k4 import gen_k4
from k5 import gen_k5

HDR = open("sequential_preLN__sliding_block__mixer_token_mlp__prompt.s.ref").read().split("; Override launch")[0]

def build(kerns, launches=None):
    launches = launches or kerns
    out = HDR
    for kk in launches:
        out += f"; @launch kernel={kk.name} grid=({kk.grid},1,1) block=({kk.block},1,1) lds={kk.lds}\n"
    out += '.amdgcn_target "amdgcn-amd-amdhsa--gfx950"\n.text\n'
    kds = ""
    for kk in kerns:
        b, kd = kk.finish()
        print(kk.name, kk.stats, "lds", kk.lds, file=sys.stderr)
        out += b; kds += kd
    return out + kds

if __name__ == "__main__":
    ks = [gen_k1(), gen_k2(), gen_k3(), gen_k4(), gen_k5()]
    import os
    only = os.environ.get("ONLY")
    if only: ks = [kk for kk in ks if kk.name[:2] in only.split(",") or kk.name[:3] in only.split(",")]
    dst = sys.argv[1] if len(sys.argv) > 1 else "sequential_preLN__sliding_block__mixer_token_mlp__prompt.s"
    if len(sys.argv) > 2 and sys.argv[2] == "ts":
        for i, kk in enumerate(ks): kk.instrument(i, 64 * MB)
    order = os.environ.get("ORDER")
    launches = [ks[int(c) - 1] for c in order] if order else None
    open(dst, "w").write(build(ks, launches))
```

```python
from common import *
import os
def code_touch(k, sidx, nwg, nthreads, tmp, s0=60):
    H = k.lab("PC")
    k(f"s_getpc_b64 s[{s0}:{s0+1}]\n{H}:")
    k(f"s_sub_u32 s{s0}, s{s0}, {H}-L_text_begin\ns_subb_u32 s{s0+1}, s{s0+1}, 0")
    k(f"s_mul_i32 s{s0+2}, s{sidx}, {nthreads*128}\nv_lshlrev_b32 v{tmp}, 7, v0\nv_add_u32 v{tmp}, s{s0+2}, v{tmp}")
    k(f"s_mov_b32 s{s0+2}, L_text_end-L_text_begin\nv_cmp_gt_u32 vcc, s{s0+2}, v{tmp}\ns_and_saveexec_b64 s[{s0+2}:{s0+3}], vcc")
    SK = k.lab("SKC")
    k(f"s_cbranch_execz {SK}\nglobal_load_dword v{tmp+1}, v{tmp}, s[{s0}:{s0+1}]\n{SK}:\ns_mov_b64 exec, s[{s0+2}:{s0+3}]")

def gen_k0(name="k0_warm_kernel"):
    mode = os.environ.get("K0", "empty")
    k = Kern(name, 256, 64, 0)
    END = k.lab("END")
    k(f"s_cmp_ge_u32 s2, 64\ns_cbranch_scc1 {END}")
    if "code" in mode:
        k("s_lshr_b32 s11, s2, 3")
        code_touch(k, 11, 8, 256, 4)
    if "tlb" in mode:
        k("s_load_dwordx2 s[4:5], s[0:1], 32\ns_load_dwordx2 s[6:7], s[0:1], 48\ns_load_dwordx2 s[8:9], s[0:1], 80\ns_load_dwordx2 s[10:11], s[0:1], 64")
        k("s_lshr_b32 s30, s2, 3\ns_lshl_b32 s30, s30, 8\nv_add_u32 v8, s30, v0\nv_lshlrev_b32 v8, 16, v8\ns_waitcnt lgkmcnt(0)")
        srd(k, 12, 4, S_ * F_ * 2); srd(k, 16, 6, S_ * F_ * 2); srd(k, 20, 8, WS_SIZE); srd(k, 24, 10, S_ * D_ * 2)
        for i, sr in enumerate((12, 16, 20, 24)):
            k(f"buffer_load_dword v{10+i}, v8, s[{sr}:{sr+3}], 0 offen")
    k(f"{END}:\ns_endpgm")
    return k
```

```python
from common import *
from ring import *
from pf import *
from k0 import code_touch
import math, os
X1 = os.environ.get('K1X', '').split(',')

def coop_touch(k, VL, T0, stages, dst):
    k(f"s_mul_i32 s30, s11, {54*128}\nv_lshlrev_b32 v{T0}, 7, v{VL}\ns_mov_b64 exec, 0x3fffffffffffff")
    return

def gen_k1(name="k1_qkv_kernel"):
    R = 4; STG = 34816; N = 9; XO = 18432
    CS = STG
    STAT = CS + 576
    k = Kern(name, 384, 256, R * STG)
    END = k.lab("END"); PROD = k.lab("PROD"); PF = k.lab("PF")
    k(f"s_cmp_ge_u32 s2, 256\ns_cbranch_scc1 {END}")
    k("s_load_dwordx4 s[4:7], s[0:1], 0\ns_load_dwordx2 s[8:9], s[0:1], 80")
    VL, VW, VG, VI = 1, 2, 3, 4
    T0, T1, T2 = 5, 6, 7
    lane_ids(k, VL, VW, 28)
    k("s_and_b32 s10, s2, 7\ns_lshr_b32 s11, s2, 3")
    k("s_and_b32 s24, s10, 3\ns_lshl_b32 s24, s24, 2\ns_and_b32 s25, s11, 3\ns_add_u32 s24, s24, s25")
    k("s_lshr_b32 s25, s10, 2\ns_mul_i32 s25, s25, 6\ns_lshr_b32 s29, s11, 2\ns_add_u32 s25, s25, s29")
    k(f"v_lshrrev_b32 v{VG}, 4, v{VL}\nv_and_b32 v{VI}, 15, v{VL}")
    k(f"s_cmp_ge_u32 s28, 4\ns_cbranch_scc1 {PROD}")
    TOUCH = 'notouch' not in X1
    k(f"v_mul_u32_u24 v{T0}, 4682, v{VL}\nv_lshrrev_b32 v{T0}, 16, v{T0}")
    k(f"v_mul_u32_u24 v{T1}, 14, v{T0}\nv_sub_u32 v{T1}, v{VL}, v{T1}")
    k(f"v_lshrrev_b32 v{T2}, 1, v{T0}\nv_mul_u32_u24 v{T2}, 62, v{T2}\nv_add_u32 v{T0}, v{T0}, v{T2}")
    k(f"v_mul_u32_u24 v{T0}, 3456, v{T0}\nv_lshl_add_u32 v{T0}, v{T1}, 7, v{T0}\nv_lshlrev_b32 v{T1}, 7, v{VL}")
    k(f"s_mul_i32 s30, s28, {128*3456}\ns_mul_i32 s31, s11, {2*3456}\ns_add_u32 s30, s30, s31\ns_lshr_b32 s31, s10, 2\ns_mul_i32 s31, s31, {13*128}\ns_add_u32 s30, s30, s31")
    k(f"s_and_b32 s31, s10, 3\ns_mul_i32 s31, s31, {512*1152}\ns_mul_i32 s29, s11, {16*1152}\ns_add_u32 s31, s31, s29\ns_mul_i32 s29, s28, {36*128}\ns_add_u32 s31, s31, s29")
    k("s_waitcnt lgkmcnt(0)")
    srd(k, 12, 4, S_ * D_ * 2)
    srd(k, 16, 6, D_ * 1728 * 2)
    srd(k, 20, 8, WS_SIZE)
    TD = 8
    if TOUCH:
        k("s_mov_b32 exec_hi, 0xffffff")
        k(f"buffer_load_dword v{TD}, v{T0}, s[16:19], s30 offen\ns_add_u32 s30, s30, {512*3456}")
        k("s_mov_b32 exec_hi, 0xf")
        k(f"buffer_load_dword v{TD+1}, v{T1}, s[12:15], s31 offen")
        k(f"buffer_load_dword v{TD+2}, v{T0}, s[16:19], s30 offen")
        k("s_mov_b32 exec_hi, -1")
    k(f"s_cmp_ge_u32 s11, 24\ns_cbranch_scc1 {PF}")
    k("s_lshr_b32 s26, s25, 2\ns_and_b32 s27, s25, 3")
    VTR = 12
    VXR = 21
    ONE = 28
    SUM = 32
    XF = 36
    WF = 52
    ACC = WF + 72
    CSA, SUA, GRA = ACC + 72, ACC + 84, ACC + 92
    assert GRA + 8 <= 256
    k(f"v_bfe_u32 v{T0}, v{VL}, 2, 2\nv_lshl_add_u32 v{T0}, v{VG}, 2, v{T0}\nv_mul_u32_u24 v{T0}, 288, v{T0}")
    k(f"v_and_b32 v{T1}, 3, v{VL}")
    for j in range(9):
        sT = 40 + j
        k(f"s_lshl_b32 s{sT}, s28, 1\ns_add_u32 s{sT}, s{sT}, {j}")
        k(f"s_sub_u32 s30, s{sT}, 9\ns_cmp_ge_u32 s{sT}, 9\ns_cselect_b32 s{sT}, s30, s{sT}")
        k(f"s_lshr_b32 s30, s{sT}, 1\ns_mul_i32 s30, s30, 72\ns_and_b32 s31, s{sT}, 1\ns_mul_i32 s31, s31, 40\ns_add_u32 s30, s30, s31")
        k(f"s_cmp_eq_u32 s{sT}, 8\ns_cselect_b32 s30, 32, s30\ns_cselect_b32 s31, 72, 8")
        k(f"v_mul_u32_u24 v{T2}, s31, v{T1}\nv_add3_u32 v{VTR+j}, v{T0}, v{T2}, s30")
    k(f"v_lshrrev_b32 v{T0}, 1, v{VI}\nv_lshrrev_b32 v{T1}, 1, v{VG}\nv_xor_b32 v{T0}, v{T0}, v{T1}\nv_lshlrev_b32 v{T0}, 4, v{T0}\nv_lshl_add_u32 v{T0}, v{VI}, 7, v{T0}")
    k(f"v_and_b32 v{T1}, 1, v{VG}\nv_lshl_add_u32 v{T0}, v{T1}, 3, v{T0}")
    k(f"s_lshl_b32 s30, s28, 12\ns_add_u32 s30, s30, {XO}\nv_add_u32 v{VXR}, s30, v{T0}")
    for q in range(1, 4): k(f"v_xor_b32 v{VXR+q}, {32*q}, v{VXR}")
    for r in range(4): k(f"v_mov_b32 v{ONE+r}, 0x3f803f80")
    for r in range(100): k(f"v_mov_b32 v{ACC+r}, 0")
    first = [True]
    def reads(st, slot, ks, rs):
        out = []
        if ks == 0 and not first[0]:
            d = STG if slot else -(R - 1) * STG
            regs = list(range(VXR, VXR + 4)) + list(range(VTR, VTR + 9))
            out += [f"v_add_u32 v{r}, {d}, v{r}" if d > 0 else f"v_subrev_u32 v{r}, {-d}, v{r}" for r in regs]
        first[0] = False
        for tt in range(2):
            for hf in range(2):
                out.append(f"ds_read_b64 {v(XF+rs*8+tt*4+hf*2,2)}, v{VXR+2*ks+hf} offset:{tt*2048}")
        for j in range(9):
            for hf in range(2):
                out.append(f"ds_read_b64_tr_b16 {v(WF+rs*36+j*4+hf*2,2)}, v{VTR+j} offset:{ks*9216+hf*4608}")
        return out
    def body(vor):
        first[0] = True
        def mf(st, ks, rs):
            g = []
            on = v(ONE, 4)
            for tt in range(2):
                xf = v(XF + rs * 8 + tt * 4, 4)
                g.append(f"v_mfma_f32_16x16x32_bf16 {v(SUA+tt*4,4)}, {on}, {xf}, {v(SUA+tt*4,4)}")
                g.append(f"v_mfma_f32_16x16x32_bf16 {v(GRA+tt*4,4)}, {xf}, {xf}, {v(GRA+tt*4,4)}")
            for j in range(9):
                wf = v(WF + rs * 36 + j * 4, 4)
                for tt in range(2):
                    xf = v(XF + rs * 8 + tt * 4, 4)
                    ac = v(ACC + (j * 2 + tt) * 4, 4)
                    g.append(f"v_mfma_f32_16x16x32_bf16 {ac}, {xf}, {wf}, {ac}" if vor else f"v_mfma_f32_16x16x32_bf16 {ac}, {wf}, {xf}, {ac}")
                if j < 3:
                    ac = v(CSA + j * 4, 4)
                    g.append(f"v_mfma_f32_16x16x32_bf16 {ac}, {on}, {wf}, {ac}" if vor else f"v_mfma_f32_16x16x32_bf16 {ac}, {wf}, {on}, {ac}")
            return g
        k("STAMP 0")
        consumer_loop(k, N, R, reads, mf, per=(2 if 'per2' in X1 else [2, 2, 2, 2, 2, 2, 2, 2, 2, 2, 1]))
        k("STAMP 2")
        E = WF
        AD = E
        if not vor:
            k(f"v_cmp_eq_u32 vcc, 0, v{VI}\nv_lshlrev_b32 v{AD}, 4, v{VG}")
            k("s_and_saveexec_b64 s[36:37], vcc")
            for j in range(3):
                k(f"s_lshl_b32 s30, s{40+j}, 6\nv_add_u32 v{AD+1+j}, s30, v{AD}\nds_write_b128 v{AD+1+j}, {v(CSA+4*j,4)} offset:{CS}")
            k("s_mov_b64 exec, s[36:37]")
        else:
            k(f"v_cmp_eq_u32 vcc, 0, v{VG}\nv_lshlrev_b32 v{AD}, 2, v{VI}")
            k("s_and_saveexec_b64 s[36:37], vcc")
            for j in range(3):
                k(f"s_lshl_b32 s30, s{40+j}, 6\nv_add_u32 v{AD+1+j}, s30, v{AD}\nds_write_b32 v{AD+1+j}, v{CSA+4*j} offset:{CS}")
            k("s_mov_b64 exec, s[36:37]")
        k(f"v_and_b32 v{T0}, 3, v{VI}\nv_lshrrev_b32 v{T1}, 2, v{VI}")
        k(f"v_cmp_eq_u32 s[30:31], 1, v{T0}\nv_cmp_eq_u32 s[32:33], 2, v{T0}\nv_cmp_eq_u32 s[34:35], 3, v{T0}\nv_cmp_eq_u32 vcc, v{T1}, v{VG}")
        for r in range(1, 4):
            for tt in range(2): k(f"v_cndmask_b32 v{GRA+4*tt}, v{GRA+4*tt}, v{GRA+4*tt+r}, s[{28+2*r}:{29+2*r}]")
        for tt in range(2): k(f"v_cndmask_b32 v{SUM+2*tt+1}, 0, v{GRA+4*tt}, vcc")
        for sw in ("16", "32"):
            for tt in range(2): k(f"v_mov_b32 v{GRA+tt}, v{SUM+2*tt+1}")
            for tt in range(2): k(f"v_permlane{sw}_swap_b32 v{SUM+2*tt+1}, v{GRA+tt}")
            for tt in range(2): k(f"v_add_f32 v{SUM+2*tt+1}, v{SUM+2*tt+1}, v{GRA+tt}")
        k(f"s_mov_b32 s30, {f32(1.0/576)}")
        qs = 18 ** -0.5 * math.log2(math.e)
        k(f"s_cmp_eq_u32 s26, 0\ns_cselect_b32 s31, {f32(qs)}, 1.0")
        for tt in range(2): k(f"v_mul_f32 v{SUM+2*tt}, s30, v{SUA+4*tt}\nv_mul_f32 v{SUM+2*tt+1}, s30, v{SUM+2*tt+1}")
        for tt in range(2): k(f"v_fma_f32 v{SUM+2*tt+1}, -v{SUM+2*tt}, v{SUM+2*tt}, v{SUM+2*tt+1}")
        for tt in range(2): k(f"v_max_f32 v{SUM+2*tt+1}, 0, v{SUM+2*tt+1}")
        for tt in range(2): k(f"v_add_f32 v{SUM+2*tt+1}, {f32(1e-5)}, v{SUM+2*tt+1}")
        for tt in range(2): k(f"v_rsq_f32 v{SUM+2*tt+1}, v{SUM+2*tt+1}")
        for tt in range(2): k(f"v_mul_f32 v{SUM+2*tt+1}, s31, v{SUM+2*tt+1}")
        CSR = E + 8
        STR = CSR + 36
        VM0, VE0 = STR + 16, STR + 18
        OUT = XF
        assert VE0 + 2 <= ACC
        if vor:
            k(f"s_lshl_b32 s30, s28, 7\nv_lshlrev_b32 v{AD+4}, 2, v{VI}\nv_add_u32 v{AD+4}, s30, v{AD+4}")
            k("s_mov_b64 exec, 0xffff")
            for tt in range(2):
                k(f"ds_write_b32 v{AD+4}, v{SUM+2*tt} offset:{STAT+tt*64}\nds_write_b32 v{AD+4}, v{SUM+2*tt+1} offset:{STAT+512+tt*64}")
            k("s_mov_b64 exec, -1")
        if not vor:
            k(f"v_lshrrev_b32 v{T0}, 1, v{VG}\nv_lshl_add_u32 v{T0}, v{T0}, 5, v{VI}\nv_lshlrev_b32 v{T0}, 4, v{T0}")
            k(f"v_and_b32 v{T1}, 1, v{VG}\nv_lshl_add_u32 v{VM0}, v{T1}, 3, v{T0}\nv_add_u32 v{VM0+1}, 256, v{VM0}")
            k(f"v_lshlrev_b32 v{T0}, 14, v{VG}\nv_lshl_add_u32 v{VE0}, v{VI}, 3, v{T0}\nv_add_u32 v{VE0+1}, 128, v{VE0}")
            k(f"s_lshl_b32 s50, s26, 21\ns_lshl_b32 s30, s27, 19\ns_add_u32 s50, s50, s30")
            k(f"s_lshl_b32 s30, s24, 2\ns_add_u32 s30, s30, s28\ns_lshl_b32 s31, s30, 10\ns_add_u32 s50, s50, s31")
            k(f"s_lshl_b32 s51, s26, 18\ns_add_u32 s51, s51, {WS_Q8}\ns_lshl_b32 s31, s27, 16\ns_add_u32 s51, s51, s31")
            k(f"s_lshl_b32 s31, s30, 8\ns_add_u32 s51, s51, s31")
        else:
            k(f"v_and_b32 v{T0}, 1, v{VG}\nv_lshrrev_b32 v{T1}, 1, v{VG}\nv_lshlrev_b32 v{T1}, 3, v{T1}")
            k(f"v_lshl_add_u32 v{VM0}, v{T0}, 8, v{T1}\nv_lshl_add_u32 v{VM0}, v{VI}, 4, v{VM0}\nv_add_u32 v{VM0+1}, 512, v{VM0}")
            k(f"v_lshl_add_u32 v{VE0}, v{T0}, 6, v{T1}\nv_and_b32 v{T0}, 3, v{VI}\nv_lshl_add_u32 v{VE0}, v{T0}, 4, v{VE0}")
            k(f"v_lshrrev_b32 v{T0}, 2, v{VI}\nv_lshl_add_u32 v{VE0}, v{T0}, 14, v{VE0}\nv_add_u32 v{VE0+1}, 128, v{VE0}")
            k(f"s_lshl_b32 s30, s24, 2\ns_add_u32 s30, s30, s28")
            k(f"s_lshl_b32 s50, s27, 19\ns_add_u32 s50, s50, {WS_VM}\ns_lshl_b32 s31, s30, 10\ns_add_u32 s50, s50, s31")
            k(f"s_lshl_b32 s51, s27, 16\ns_add_u32 s51, s51, {WS_V8}\ns_lshl_b32 s31, s30, 8\ns_add_u32 s51, s51, s31")
        for j in range(9):
            k(f"s_lshl_b32 s30, s{40+j}, 6\nv_add_u32 v{VTR+j}, s30, v{AD}")
        k("s_waitcnt lgkmcnt(0)\ns_barrier")
        if 'st2' in X1: k("STAMP 0")
        if not vor:
            for j in range(9): k(f"ds_read_b128 {v(CSR+4*j,4)}, v{VTR+j} offset:{CS}")
        else:
            k(f"s_lshl_b32 s30, s28, 7\nv_lshlrev_b32 v{T0}, 4, v{VG}\nv_add_u32 v{T0}, s30, v{T0}")
            for tt in range(2):
                for hf in range(2):
                    k(f"ds_read_b128 {v(STR+tt*8+hf*4,4)}, v{T0} offset:{STAT+tt*64+hf*512}")
            for j in range(9): k(f"ds_read_b32 v{CSR+j}, v{VTR+j} offset:{CS}")
        for j in range(9):
            k(f"s_lshl_b32 s{60+j}, s{40+j}, 16\ns_add_u32 s{60+j}, s{60+j}, s50\ns_cmp_eq_u32 s{40+j}, 8\ns_cselect_b32 s{60+j}, s51, s{60+j}")
        for j in range(9):
            k(f"s_waitcnt lgkmcnt({8-j})")
            k(f"s_cmp_eq_u32 s{40+j}, 8\ns_cselect_b64 s[38:39], -1, 0")
            for tt in range(2):
                ac = ACC + (j * 2 + tt) * 4
                o = OUT + ((j * 2 + tt) % 4) * 4
                for h2 in range(2):
                    if not vor:
                        k(f"v_pk_fma_f32 {v(ac+2*h2,2)}, {v(SUM+2*tt,2)}, {v(CSR+4*j+2*h2,2)}, {v(ac+2*h2,2)} op_sel_hi:[0,1,1] neg_lo:[1,0,0] neg_hi:[1,0,0]")
                    else:
                        c = CSR + (j & ~1); sel = j & 1
                        k(f"v_pk_fma_f32 {v(ac+2*h2,2)}, {v(STR+tt*8+2*h2,2)}, {v(c,2)}, {v(ac+2*h2,2)} op_sel:[0,{sel},0] op_sel_hi:[1,{sel},1] neg_lo:[1,0,0] neg_hi:[1,0,0]")
                for h2 in range(2):
                    if not vor: k(f"v_pk_mul_f32 {v(ac+2*h2,2)}, {v(ac+2*h2,2)}, {v(SUM+2*tt,2)} op_sel:[0,1] op_sel_hi:[1,1]")
                    else: k(f"v_pk_mul_f32 {v(ac+2*h2,2)}, {v(ac+2*h2,2)}, {v(STR+tt*8+4+2*h2,2)}")
                k(f"v_cndmask_b32 v{o+2}, v{VM0+tt}, v{VE0+tt}, s[38:39]")
                k(f"v_cvt_pk_bf16_f32 v{o}, v{ac}, v{ac+1}\nv_cvt_pk_bf16_f32 v{o+1}, v{ac+2}, v{ac+3}")
                k(f"buffer_store_dwordx2 {v(o,2)}, v{o+2}, s[20:23], s{60+j} offen")
        if 'st2' in X1: k("STAMP 1")
        k("s_endpgm")
    LV = k.lab("VOR")
    k(f"s_cmp_eq_u32 s26, 2\ns_cbranch_scc1 {LV}")
    body(False)
    k(f"{LV}:")
    body(True)
    k(f"{PROD}:")
    PFP = k.lab("PFP")
    k(f"s_cmp_ge_u32 s11, 24\ns_cbranch_scc1 {PFP}")
    k("s_and_b32 s29, s28, 1")
    VWD = 8
    VXD = 17
    for q in range(2):
        k(f"v_lshrrev_b32 v{T0}, 3, v{VL}\nv_add_u32 v{T0}, {8*q}, v{T0}")
        k(f"v_bfe_u32 v{T1}, v{T0}, 1, 3\nv_and_b32 v{T2}, 7, v{VL}\nv_xor_b32 v{T1}, v{T1}, v{T2}\nv_lshlrev_b32 v{T1}, 4, v{T1}")
        k(f"v_mul_u32_u24 v{T0}, 1152, v{T0}\nv_add_u32 v{VXD+q}, v{T0}, v{T1}")
    for q in range(2, 8): k(f"v_add_u32 v{VXD+q}, {16*1152}, v{VXD+q-2}")
    k(f"s_mov_b32 s30, {3456-288}")
    for q in range(9):
        k(f"v_add_u32 v{T0}, {q*64}, v{VL}\nv_mul_u32_u24 v{T1}, 3641, v{T0}\nv_lshrrev_b32 v{T1}, 16, v{T1}")
        k(f"v_lshlrev_b32 v{T0}, 4, v{T0}\nv_mad_u32_u24 v{VWD+q}, v{T1}, s30, v{T0}")
    k("s_lshl_b32 s32, s24, 7\ns_lshl_b32 s30, s29, 6\ns_add_u32 s32, s32, s30\ns_mul_i32 s32, s32, 1152")
    k(f"s_mul_i32 s33, s25, 288\ns_mul_i32 s30, s29, {32*3456}\ns_add_u32 s33, s33, s30")
    k(f"s_mul_i32 s34, s29, 9216\ns_lshl_b32 s35, s29, 13\ns_add_u32 s35, s35, {XO}")
    k("s_waitcnt lgkmcnt(0)")
    srd(k, 12, 4, S_ * D_ * 2)
    srd(k, 16, 6, D_ * 1728 * 2)
    def issue(st, slot):
        out = []
        base = slot * STG
        for q in range(9):
            if q < 8:
                out.append(f"s_add_u32 m0, s35, {base + q*1024}\ns_nop 0\nbuffer_load_dwordx4 v{VXD+q}, s[12:15], s32 offen lds")
            out.append(f"s_add_u32 m0, s34, {base + q*1024}\ns_nop 0\nbuffer_load_dwordx4 v{VWD+q}, s[16:19], s33 offen lds")
        out.append(f"s_add_u32 s32, s32, 128\ns_add_u32 s33, s33, {64*3456}")
        return out
    producer_loop(k, N, R, 17, issue)
    k(f"{PFP}:\ns_waitcnt lgkmcnt(0)")
    srd(k, 20, 8, WS_SIZE)
    k(f"{PF}:")
    k("s_sub_u32 s30, s2, 192\ns_mul_i32 s30, s30, 3072\nv_lshlrev_b32 v14, 3, v0\nv_mov_b32 v12, 0\nv_mov_b32 v13, 0")
    k(f"s_add_u32 s31, s30, {WS_ST}\nbuffer_store_dwordx2 v[12:13], v14, s[20:23], s31 offen")
    k(f"s_add_u32 s31, s30, {WS_FL}\nbuffer_store_dwordx2 v[12:13], v14, s[20:23], s31 offen")
    if 'nocode' not in X1:
        k("s_sub_u32 s11, s11, 24")
        code_touch(k, 11, 8, 384, 30)
    k("s_sub_u32 s11, s2, 192")
    pf_env(k, "PF1", 11, 64, 384, 16)
    k(f"{END}:\ns_endpgm")
    return k
```

```python
import sys
sys.path.insert(0, "gen")
from common import *
from k0 import gen_k0
from k1 import gen_k1
from k2 import gen_k2
from k3 import gen_k3
from k4 import gen_k4
from k5 import gen_k5

HDR = open("sequential_preLN__sliding_block__mixer_token_mlp__prompt.s.ref").read().split("; Override launch")[0]

def build(kerns, launches=None):
    launches = launches or kerns
    out = HDR
    for kk in launches:
        out += f"; @launch kernel={kk.name} grid=({kk.grid},1,1) block=({kk.block},1,1) lds={kk.lds}\n"
    out += '.amdgcn_target "amdgcn-amd-amdhsa--gfx950"\n.text\nL_text_begin:\n'
    kds = ""
    for kk in kerns:
        b, kd = kk.finish()
        print(kk.name, kk.stats, "lds", kk.lds, file=sys.stderr)
        out += b; kds += kd
    return out + 'L_text_end:\n' + kds

if __name__ == "__main__":
    ks = [gen_k1(), gen_k2(), gen_k3(), gen_k4(), gen_k5()]
    import os
    only = os.environ.get("ONLY")
    if only: ks = [kk for kk in ks if kk.name[:2] in only.split(",") or kk.name[:3] in only.split(",")]
    dst = sys.argv[1] if len(sys.argv) > 1 else "sequential_preLN__sliding_block__mixer_token_mlp__prompt.s"
    if len(sys.argv) > 2 and sys.argv[2] == "ts":
        for i, kk in enumerate(ks): kk.instrument(i, 64 * MB)
    if len(sys.argv) > 2 and sys.argv[2] == "dbg":
        for i, kk in enumerate(ks): kk.instrument_dbg(i, {4: 40, 3: 52}.get(i))
    order = os.environ.get("ORDER")
    if order and '0' in order: ks.append(gen_k0())
    launches = [ks[int(c) - 1] for c in order] if order else None
    open(dst, "w").write(build(ks, launches))
```

```python
from common import *
import os
def code_touch(k, sidx, nwg, nthreads, tmp, s0=60):
    H = k.lab("PC")
    k(f"s_getpc_b64 s[{s0}:{s0+1}]\n{H}:")
    k(f"s_sub_u32 s{s0}, s{s0}, {H}-L_text_begin\ns_subb_u32 s{s0+1}, s{s0+1}, 0")
    k(f"s_mul_i32 s{s0+2}, s{sidx}, {nthreads*128}\nv_lshlrev_b32 v{tmp}, 7, v0\nv_add_u32 v{tmp}, s{s0+2}, v{tmp}")
    k(f"s_mov_b32 s{s0+2}, L_text_end-L_text_begin\nv_cmp_gt_u32 vcc, s{s0+2}, v{tmp}\ns_and_saveexec_b64 s[{s0+2}:{s0+3}], vcc")
    SK = k.lab("SKC")
    k(f"s_cbranch_execz {SK}\nglobal_load_dword v{tmp+1}, v{tmp}, s[{s0}:{s0+1}]\n{SK}:\ns_mov_b64 exec, s[{s0+2}:{s0+3}]")

def gen_k0(name="k0_warm_kernel"):
    mode = os.environ.get("K0", "empty")
    G = 256 if "pf" in mode else 64
    k = Kern(name, 256, G, 0)
    END = k.lab("END")
    k(f"s_cmp_ge_u32 s2, {G}\ns_cbranch_scc1 {END}")
    if "pf" in mode:
        from pf import pf_flat
        k("s_load_dwordx2 s[56:57], s[0:1], 32\ns_load_dwordx2 s[58:59], s[0:1], 48\ns_waitcnt lgkmcnt(0)")
        for w in (56, 58):
            if w == 58 and "w1only" in mode: continue
            srd(k, 52, w, S_ * F_ * 2)
            pf_flat(k, 52, 2, 256, 256, 0, S_ * F_ * 2, tmp=4 if w == 56 else 20, flags="nt" if "nt" in mode else "")
    if "code" in mode:
        k("s_lshr_b32 s11, s2, 3")
        code_touch(k, 11, 8, 256, 4)
    if "tlb" in mode:
        k("s_load_dwordx2 s[4:5], s[0:1], 32\ns_load_dwordx2 s[6:7], s[0:1], 48\ns_load_dwordx2 s[8:9], s[0:1], 80\ns_load_dwordx2 s[10:11], s[0:1], 64")
        k("s_lshr_b32 s30, s2, 3\ns_lshl_b32 s30, s30, 8\nv_add_u32 v8, s30, v0\nv_lshlrev_b32 v8, 16, v8\ns_waitcnt lgkmcnt(0)")
        srd(k, 12, 4, S_ * F_ * 2); srd(k, 16, 6, S_ * F_ * 2); srd(k, 20, 8, WS_SIZE); srd(k, 24, 10, S_ * D_ * 2)
        for i, sr in enumerate((12, 16, 20, 24)):
            k(f"buffer_load_dword v{10+i}, v8, s[{sr}:{sr+3}], 0 offen")
    k(f"{END}:\ns_endpgm")
    return k
```

```python
import re

def v(i, n=1):
    return f"v{i}" if n == 1 else f"v[{i}:{i+n-1}]"
def a(i, n=1):
    return f"a{i}" if n == 1 else f"a[{i}:{i+n-1}]"
def s(i, n=1):
    return f"s{i}" if n == 1 else f"s[{i}:{i+n-1}]"

_REG = re.compile(r"^(-|abs\()?([vas])(?:(\d+)|\[(\d+):(\d+)\])\)?$")
def regs_of(op):
    op = op.strip()
    if op in ("vcc",): return {("s", 106), ("s", 107)}
    if op == "vcc_lo": return {("s", 106)}
    if op == "vcc_hi": return {("s", 107)}
    if op == "exec": return {("s", 126), ("s", 127)}
    if op == "m0": return {("s", 124)}
    m = _REG.match(op)
    if not m: return set()
    k = m.group(2)
    if m.group(3) is not None: return {(k, int(m.group(3)))}
    return {(k, i) for i in range(int(m.group(4)), int(m.group(5)) + 1)}

TRANS = ("v_exp_f32", "v_log_f32", "v_rcp_f32", "v_rsq_f32", "v_sqrt_f32", "v_sin_f32", "v_cos_f32", "v_rcp_iflag_f32")

class Ins:
    def __init__(self, text):
        self.text = text
        t = text.split(";")[0].strip()
        self.label = None
        self.op = None
        if not t or t.startswith("."):
            return
        if t.endswith(":"):
            self.label = t[:-1]; return
        parts = t.split(None, 1)
        self.op = parts[0]
        rest = parts[1] if len(parts) > 1 else ""
        ops, depth, cur = [], 0, ""
        for ch in rest:
            if ch in "[(": depth += 1
            if ch in "])": depth -= 1
            if ch == "," and depth == 0:
                ops.append(cur.strip()); cur = ""
            else: cur += ch
        if cur.strip(): ops.append(cur.strip())
        self.mods = ""
        if ops:
            last = ops[-1].split(None, 1)
            ops[-1] = last[0]
            self.mods = last[1] if len(last) > 1 else ""
        self.ops = ops
        self.classify()

    def classify(self):
        op, ops = self.op, self.ops
        R = regs_of
        self.kind = "other"; self.dst = set(); self.src = set()
        self.mfma = None; self.dpp = False; self.wide_store = set(); self.lds_dma = False
        if op.startswith("v_mfma"):
            self.kind = "mfma"
            self.passes = 8 if "32x32" in op else 4
            self.dst = R(ops[0]); self.A = R(ops[1]); self.B = R(ops[2]); self.C = R(ops[3])
            self.src = self.A | self.B | self.C
        elif op.startswith("v_"):
            self.kind = "valu"
            base = op.replace("_e32", "").replace("_e64", "").replace("_dpp", "")
            self.base = base
            self.dpp = "_dpp" in op or "row_" in self.mods or "quad_perm" in self.mods
            if base.startswith("v_cmp"):
                self.dst = R(ops[0]); self.src = set().union(*[R(o) for o in ops[1:]])
                if base.startswith("v_cmpx"): self.dst |= R("exec")
            elif base.startswith("v_permlane") and "swap" in base:
                self.dst = R(ops[0]) | R(ops[1]); self.src = set(self.dst)
            elif base in ("v_add_co_u32", "v_sub_co_u32", "v_addc_co_u32", "v_subb_co_u32"):
                self.dst = R(ops[0]) | R(ops[1]); self.src = set().union(*[R(o) for o in ops[2:]])
            else:
                self.dst = R(ops[0]); self.src = set().union(*[R(o) for o in ops[1:]]) if len(ops) > 1 else set()
                if base in ("v_fmac_f32", "v_dot2c_f32_bf16", "v_writelane_b32") or self.dpp: self.src |= self.dst
            self.trans = base in TRANS
        elif op.startswith("ds_"):
            self.kind = "ds"
            if op.startswith("ds_read") or op.startswith("ds_bpermute") or op.startswith("ds_swizzle") or op.startswith("ds_permute"):
                self.dst = R(ops[0]); self.src = set().union(*[R(o) for o in ops[1:]])
            else:
                self.src = set().union(*[R(o) for o in ops])
        elif op.startswith("buffer_") or op.startswith("global_"):
            self.kind = "vmem"
            allr = [R(o) for o in ops]
            lds = " lds" in (" " + self.mods) or "_lds_" in op
            if lds:
                self.lds_dma = True
                self.src = set().union(*allr) | R("m0")
            elif "_load" in op:
                self.dst = allr[0]; self.src = set().union(*allr[1:])
            elif "_store" in op:
                self.src = set().union(*allr)
                if "x3" in op or "x4" in op:
                    self.wide_store = allr[0] if op.startswith("buffer_") else allr[1]
            elif "atomic" in op:
                self.src = set().union(*allr)
                if "sc0" in self.mods: self.dst = allr[0]
            else:
                self.src = set().union(*allr) if allr else set()
        elif op.startswith("s_"):
            self.kind = "salu"
            if op in ("s_nop", "s_waitcnt", "s_barrier", "s_endpgm", "s_sleep", "s_setprio") or op.startswith("s_cbranch") or op == "s_branch" or op.startswith("s_cmp"):
                self.src = set().union(*[R(o) for o in ops]) if ops else set()
            else:
                self.dst = R(ops[0]) if ops else set()
                self.src = set().union(*[R(o) for o in ops[1:]]) if len(ops) > 1 else set()
                if "saveexec" in op: self.dst |= R("exec")

    def states(self):
        if self.op == "s_nop": return int(self.ops[0], 0) + 1
        return 1

def need(prod, cons):
    n = 0
    vg = lambda st: {r for r in st if r[0] in "va"}
    sg = lambda st: {r for r in st if r[0] == "s"}
    if prod.kind == "valu":
        pv, ps = vg(prod.dst), sg(prod.dst)
        if cons.kind == "mfma" and pv & cons.src: n = max(n, 2)
        if cons.kind == "valu":
            if prod.trans and (pv & cons.src) : n = max(n, 1)
            if cons.base in ("v_readfirstlane_b32", "v_readlane_b32") and pv & cons.src: n = max(n, 1)
            if cons.base.startswith("v_permlane") and pv & cons.src: n = max(n, 2)
            if cons.dpp and pv & cons.src: n = max(n, 2)
            if ps & cons.src:
                n = max(n, 4 if cons.base in ("v_readlane_b32", "v_writelane_b32") else 2)
            if ("s", 126) in ps:
                if cons.dpp: n = max(n, 5)
                if cons.base in ("v_readfirstlane_b32", "v_readlane_b32", "v_writelane_b32") or cons.base.startswith("v_permlane"): n = max(n, 4)
        if cons.kind == "mfma" and ("s", 126) in ps: n = max(n, 4)
        if prod.trans and cons.kind in ("mfma", "vmem", "ds") and pv & cons.src: n = max(n, 2 if cons.kind == "mfma" else 1)
        if cons.kind == "vmem" and ps & cons.src: n = max(n, 5)
        if cons.kind == "salu" and ps & cons.src: n = max(n, 1)
    elif prod.kind == "mfma":
        big = 12 if prod.passes == 8 else 8
        D = prod.dst
        if cons.kind == "mfma":
            if D & (cons.A | cons.B): n = max(n, big)
            if D & cons.C:
                if not (D == cons.C and prod.passes == cons.passes): n = max(n, big - 2)
            elif D & cons.dst: n = max(n, big)
        elif cons.kind in ("valu", "vmem", "ds"):
            if D & (cons.src | cons.dst): n = max(n, big)
        if cons.kind == "valu" and (prod.C & cons.dst): n = max(n, 7 if prod.passes == 8 else 3)
    elif prod.kind == "salu":
        if ("s", 124) in prod.dst and cons.kind == "vmem" and cons.lds_dma: n = max(n, 1)
    if prod.kind == "vmem" and prod.wide_store:
        if cons.kind in ("valu", "mfma", "ds", "vmem") and prod.wide_store & cons.dst: n = max(n, 2)
    return n

MAXAGE = 14

def fix_hazards(lines, name=""):
    ins = [Ins(l) for l in lines]
    labels = {x.label: i for i, x in enumerate(ins) if x.label}
    out = []
    state = []
    snaps = {}
    heads = {}
    inserted = 0
    def step(state, x):
        k = x.states()
        ns = [[p, ag + k] for p, ag in state if ag + k < MAXAGE]
        if x.kind in ("valu", "mfma", "salu") or x.wide_store: ns.append([x, 0])
        return ns
    for i, x in enumerate(ins):
        if x.label:
            for sn in snaps.get(x.label, []):
                state = state + sn
            heads[x.label] = len(out)
            out.append(x); continue
        if x.op is None:
            out.append(x); continue
        req = 0
        for p, ag in state:
            req = max(req, need(p, x) - ag)
        while req > 0:
            k = min(req, 16)
            nop = Ins(f"s_nop {k-1}")
            out.append(nop); state = step(state, nop); inserted += 1
            req -= k
        out.append(x)
        state = step(state, x)
        if x.op.startswith("s_cbranch") or x.op == "s_branch":
            tgt = x.ops[0]
            if tgt in heads:
                st = [list(e) for e in state]
                for y in out[heads[tgt]:heads[tgt] + 40]:
                    if y.op is None: continue
                    for p, ag in st:
                        if need(p, y) - ag > 0:
                            raise SystemExit(f"{name}: loop-carried hazard: '{p.text}' -> '{y.text}' short by {need(p, y) - ag}")
                    k = y.states()
                    st = [[p, ag + k] for p, ag in st if ag + k < MAXAGE]
            else:
                snaps.setdefault(tgt, []).append([list(e) for e in state])
            if x.op == "s_branch": state = []
        if x.op == "s_endpgm": state = []
    return [x.text for x in out], inserted

class Kern:
    def __init__(self, name, block, grid, lds):
        self.name, self.block, self.grid, self.lds = name, block, grid, lds
        self.L = []
        self.nv = 0; self.na = 0; self.ns = 0
        self._lab = 0
    def __call__(self, txt):
        for l in txt.split("\n"):
            l = l.strip()
            if l: self.L.append(l)
    def lab(self, base="L"):
        self._lab += 1
        return f"{base}_{self.name[:-7]}_{self._lab}"
    def instrument(self, idx, tsbase):
        L = ["s_memrealtime s[96:97]", "s_memtime s[86:87]", "s_load_dwordx2 s[98:99], s[0:1], 80", "v_lshrrev_b32 v1, 6, v0", "s_mov_b32 s100, s2", "v_readfirstlane_b32 s101, v1", "s_waitcnt lgkmcnt(0)", "s_mov_b32 s88, s96", "s_mov_b32 s90, s96", "s_mov_b32 s92, s96"]
        for l in self.L:
            if l.startswith("STAMP"):
                n = int(l.split()[1])
                L += [f"s_memrealtime s[{88+2*n}:{89+2*n}]"]
                continue
            if l == "s_endpgm":
                L += ["s_waitcnt vmcnt(0) lgkmcnt(0)", "s_memrealtime s[94:95]", "s_memtime s[84:85]", "s_mov_b64 exec, 1", "s_lshl_b32 s100, s100, 4", "s_add_u32 s100, s100, s101", "s_lshl_b32 s100, s100, 5",
                      f"s_add_u32 s100, s100, {tsbase + idx * 262144}", "v_mov_b32 v1, s100", "s_waitcnt lgkmcnt(0)", "v_mov_b32 v4, s96", "v_mov_b32 v5, s94", "v_mov_b32 v6, s88", "v_mov_b32 v7, s90",
                      "global_store_dwordx4 v1, v[4:7], s[98:99]", "v_mov_b32 v8, s92", "s_sub_u32 s84, s84, s86", "v_mov_b32 v9, s84", "global_store_dwordx2 v1, v[8:9], s[98:99] offset:16"]
            L.append(l)
        self.L = L
    def instrument_dbg(self, idx, extra=None):
        L = ["s_memrealtime s[96:97]", "s_load_dwordx2 s[98:99], s[0:1], 72", "v_lshrrev_b32 v1, 6, v0", "s_and_b32 s100, s2, 7", "v_readfirstlane_b32 s101, v1", "s_waitcnt lgkmcnt(0)",
             "s_or_b32 s100, s100, s101", "s_mov_b32 s88, s96", "s_mov_b32 s90, s96", "s_mov_b32 s92, s96"]
        n = 0
        for l in self.L:
            if l.startswith("STAMP"):
                q = int(l.split()[1]); L += [f"s_memrealtime s[{88+2*q}:{89+2*q}]"]; continue
            if l == "s_endpgm":
                n += 1
                lab = f"DBG_{self.name}_{n}"
                L += ["s_waitcnt vmcnt(0) lgkmcnt(0)", "s_memrealtime s[94:95]", "s_cmp_lg_u32 s100, 0", f"s_cbranch_scc1 {lab}", "s_mov_b64 exec, 1",
                      f"s_add_u32 s98, s98, {512*(4-idx)}", "s_addc_u32 s99, s99, 0", "v_mov_b32 v1, 0", "s_waitcnt lgkmcnt(0)", "s_not_b32 s96, s96", "v_mov_b32 v4, s96", "v_mov_b32 v5, s94",
                      f"global_atomic_umax v1, v4, s[98:99] offset:{8*idx}", f"global_atomic_umax v1, v5, s[98:99] offset:{8*idx+4}"]
                if extra is not None:
                    for q in range(3): L += [f"v_mov_b32 v{6+q}, s{88+2*q}", f"global_atomic_umax v1, v{6+q}, s[98:99] offset:{extra+4*q}"]
                L += [f"{lab}:"]
            L.append(l)
        self.L = L
    def finish(self):
        self.L = [l for l in self.L if not l.startswith("STAMP")]
        lines, n = fix_hazards(self.L, self.name)
        mv = ma = ms = -1
        for l in lines:
            x = Ins(l)
            if x.op is None: continue
            for k, i in (x.dst | x.src):
                if k == "v": mv = max(mv, i)
                elif k == "a": ma = max(ma, i)
                elif k == "s" and i < 102: ms = max(ms, i)
        acc = (mv + 1 + 3) // 4 * 4
        nfv = acc + ma + 1 if ma >= 0 else mv + 1
        assert mv < 256 and nfv <= 512, (self.name, mv, ma)
        self.stats = dict(vgpr=mv + 1, agpr=ma + 1, sgpr=ms + 1, nops=n, ninstr=len(lines))
        body = f".globl {self.name}\n.p2align 8\n.type {self.name},@function\n{self.name}:\n" + "\n".join("    " + l if not l.endswith(":") else l for l in lines) + "\n"
        kd = f""".section .rodata,"a"
.p2align 6
.amdhsa_kernel {self.name}
  .amdhsa_next_free_vgpr {max(nfv, 8)}
  .amdhsa_next_free_sgpr {max(ms + 1, 16)}
  .amdhsa_accum_offset {max(acc, 4)}
  .amdhsa_group_segment_fixed_size 0
  .amdhsa_kernarg_size 88
  .amdhsa_user_sgpr_count 2
  .amdhsa_user_sgpr_kernarg_segment_ptr 1
  .amdhsa_system_sgpr_workgroup_id_x 1
.end_amdhsa_kernel
"""
        return body, kd
```

```python
import re

def v(i, n=1):
    return f"v{i}" if n == 1 else f"v[{i}:{i+n-1}]"
def a(i, n=1):
    return f"a{i}" if n == 1 else f"a[{i}:{i+n-1}]"
def s(i, n=1):
    return f"s{i}" if n == 1 else f"s[{i}:{i+n-1}]"

_REG = re.compile(r"^(-|abs\()?([vas])(?:(\d+)|\[(\d+):(\d+)\])\)?$")
def regs_of(op):
    op = op.strip()
    if op in ("vcc",): return {("s", 106), ("s", 107)}
    if op == "vcc_lo": return {("s", 106)}
    if op == "vcc_hi": return {("s", 107)}
    if op == "exec": return {("s", 126), ("s", 127)}
    if op == "m0": return {("s", 124)}
    m = _REG.match(op)
    if not m: return set()
    k = m.group(2)
    if m.group(3) is not None: return {(k, int(m.group(3)))}
    return {(k, i) for i in range(int(m.group(4)), int(m.group(5)) + 1)}

TRANS = ("v_exp_f32", "v_log_f32", "v_rcp_f32", "v_rsq_f32", "v_sqrt_f32", "v_sin_f32", "v_cos_f32", "v_rcp_iflag_f32")

class Ins:
    def __init__(self, text):
        self.text = text
        t = text.split(";")[0].strip()
        self.label = None
        self.op = None
        if not t or t.startswith("."):
            return
        if t.endswith(":"):
            self.label = t[:-1]; return
        parts = t.split(None, 1)
        self.op = parts[0]
        rest = parts[1] if len(parts) > 1 else ""
        ops, depth, cur = [], 0, ""
        for ch in rest:
            if ch in "[(": depth += 1
            if ch in "])": depth -= 1
            if ch == "," and depth == 0:
                ops.append(cur.strip()); cur = ""
            else: cur += ch
        if cur.strip(): ops.append(cur.strip())
        self.mods = ""
        if ops:
            last = ops[-1].split(None, 1)
            ops[-1] = last[0]
            self.mods = last[1] if len(last) > 1 else ""
        self.ops = ops
        self.classify()

    def classify(self):
        op, ops = self.op, self.ops
        R = regs_of
        self.kind = "other"; self.dst = set(); self.src = set()
        self.mfma = None; self.dpp = False; self.wide_store = set(); self.lds_dma = False
        if op.startswith("v_mfma"):
            self.kind = "mfma"
            self.passes = 8 if "32x32" in op else 4
            self.dst = R(ops[0]); self.A = R(ops[1]); self.B = R(ops[2]); self.C = R(ops[3])
            self.src = self.A | self.B | self.C
        elif op.startswith("v_"):
            self.kind = "valu"
            base = op.replace("_e32", "").replace("_e64", "").replace("_dpp", "")
            self.base = base
            self.dpp = "_dpp" in op or "row_" in self.mods or "quad_perm" in self.mods
            if base.startswith("v_cmp"):
                self.dst = R(ops[0]); self.src = set().union(*[R(o) for o in ops[1:]])
                if base.startswith("v_cmpx"): self.dst |= R("exec")
            elif base.startswith("v_permlane") and "swap" in base:
                self.dst = R(ops[0]) | R(ops[1]); self.src = set(self.dst)
            elif base in ("v_add_co_u32", "v_sub_co_u32", "v_addc_co_u32", "v_subb_co_u32"):
                self.dst = R(ops[0]) | R(ops[1]); self.src = set().union(*[R(o) for o in ops[2:]])
            else:
                self.dst = R(ops[0]); self.src = set().union(*[R(o) for o in ops[1:]]) if len(ops) > 1 else set()
                if base in ("v_fmac_f32", "v_dot2c_f32_bf16", "v_writelane_b32") or self.dpp: self.src |= self.dst
            self.trans = base in TRANS
        elif op.startswith("ds_"):
            self.kind = "ds"
            if op.startswith("ds_read") or "_rtn_" in op or op.startswith("ds_bpermute") or op.startswith("ds_swizzle") or op.startswith("ds_permute"):
                self.dst = R(ops[0]); self.src = set().union(*[R(o) for o in ops[1:]])
            else:
                self.src = set().union(*[R(o) for o in ops])
        elif op.startswith("buffer_") or op.startswith("global_"):
            self.kind = "vmem"
            allr = [R(o) for o in ops]
            lds = " lds" in (" " + self.mods) or "_lds_" in op
            if lds:
                self.lds_dma = True
                self.src = set().union(*allr) | R("m0")
            elif "_load" in op:
                self.dst = allr[0]; self.src = set().union(*allr[1:])
            elif "_store" in op:
                self.src = set().union(*allr)
                if "x3" in op or "x4" in op:
                    self.wide_store = allr[0] if op.startswith("buffer_") else allr[1]
            elif "atomic" in op:
                self.src = set().union(*allr)
                if "sc0" in self.mods: self.dst = allr[0]
            else:
                self.src = set().union(*allr) if allr else set()
        elif op.startswith("s_"):
            self.kind = "salu"
            if op in ("s_nop", "s_waitcnt", "s_barrier", "s_endpgm", "s_sleep", "s_setprio") or op.startswith("s_cbranch") or op == "s_branch" or op.startswith("s_cmp"):
                self.src = set().union(*[R(o) for o in ops]) if ops else set()
            else:
                self.dst = R(ops[0]) if ops else set()
                self.src = set().union(*[R(o) for o in ops[1:]]) if len(ops) > 1 else set()
                if "saveexec" in op: self.dst |= R("exec")

    def states(self):
        if self.op == "s_nop": return int(self.ops[0], 0) + 1
        return 1

def need(prod, cons):
    n = 0
    vg = lambda st: {r for r in st if r[0] in "va"}
    sg = lambda st: {r for r in st if r[0] == "s"}
    if prod.kind == "valu":
        pv, ps = vg(prod.dst), sg(prod.dst)
        if cons.kind == "mfma" and pv & cons.src: n = max(n, 2)
        if cons.kind == "valu":
            if prod.trans and (pv & cons.src) : n = max(n, 1)
            if cons.base in ("v_readfirstlane_b32", "v_readlane_b32") and pv & cons.src: n = max(n, 1)
            if cons.base.startswith("v_permlane") and pv & cons.src: n = max(n, 2)
            if cons.dpp and pv & cons.src: n = max(n, 2)
            if ps & cons.src:
                n = max(n, 4 if cons.base in ("v_readlane_b32", "v_writelane_b32") else 2)
            if ("s", 126) in ps:
                if cons.dpp: n = max(n, 5)
                if cons.base in ("v_readfirstlane_b32", "v_readlane_b32", "v_writelane_b32") or cons.base.startswith("v_permlane"): n = max(n, 4)
        if cons.kind == "mfma" and ("s", 126) in ps: n = max(n, 4)
        if prod.trans and cons.kind in ("mfma", "vmem", "ds") and pv & cons.src: n = max(n, 2 if cons.kind == "mfma" else 1)
        if cons.kind == "vmem" and ps & cons.src: n = max(n, 5)
        if cons.kind == "salu" and ps & cons.src: n = max(n, 1)
    elif prod.kind == "mfma":
        big = 12 if prod.passes == 8 else 8
        D = prod.dst
        if cons.kind == "mfma":
            if D & (cons.A | cons.B): n = max(n, big)
            if D & cons.C:
                if not (D == cons.C and prod.passes == cons.passes): n = max(n, big - 2)
            elif D & cons.dst: n = max(n, big)
        elif cons.kind in ("valu", "vmem", "ds"):
            if D & (cons.src | cons.dst): n = max(n, big)
        if cons.kind == "valu" and (prod.C & cons.dst): n = max(n, 7 if prod.passes == 8 else 3)
    elif prod.kind == "salu":
        if ("s", 124) in prod.dst and cons.kind == "vmem" and cons.lds_dma: n = max(n, 1)
    if prod.kind == "vmem" and prod.wide_store:
        if cons.kind in ("valu", "mfma", "ds", "vmem") and prod.wide_store & cons.dst: n = max(n, 2)
    return n

MAXAGE = 14

def fix_hazards(lines, name=""):
    ins = [Ins(l) for l in lines]
    labels = {x.label: i for i, x in enumerate(ins) if x.label}
    out = []
    state = []
    snaps = {}
    heads = {}
    inserted = 0
    def step(state, x):
        k = x.states()
        ns = [[p, ag + k] for p, ag in state if ag + k < MAXAGE]
        if x.kind in ("valu", "mfma", "salu") or x.wide_store: ns.append([x, 0])
        return ns
    for i, x in enumerate(ins):
        if x.label:
            for sn in snaps.get(x.label, []):
                state = state + sn
            heads[x.label] = len(out)
            out.append(x); continue
        if x.op is None:
            out.append(x); continue
        req = 0
        for p, ag in state:
            req = max(req, need(p, x) - ag)
        while req > 0:
            k = min(req, 16)
            nop = Ins(f"s_nop {k-1}")
            out.append(nop); state = step(state, nop); inserted += 1
            req -= k
        out.append(x)
        state = step(state, x)
        if x.op.startswith("s_cbranch") or x.op == "s_branch":
            tgt = x.ops[0]
            if tgt in heads:
                st = [list(e) for e in state]
                for y in out[heads[tgt]:heads[tgt] + 40]:
                    if y.op is None: continue
                    for p, ag in st:
                        if need(p, y) - ag > 0:
                            raise SystemExit(f"{name}: loop-carried hazard: '{p.text}' -> '{y.text}' short by {need(p, y) - ag}")
                    k = y.states()
                    st = [[p, ag + k] for p, ag in st if ag + k < MAXAGE]
            else:
                snaps.setdefault(tgt, []).append([list(e) for e in state])
            if x.op == "s_branch": state = []
        if x.op == "s_endpgm": state = []
    return [x.text for x in out], inserted

class Kern:
    def __init__(self, name, block, grid, lds):
        self.name, self.block, self.grid, self.lds = name, block, grid, lds
        self.L = []
        self.nv = 0; self.na = 0; self.ns = 0
        self._lab = 0
    def __call__(self, txt):
        for l in txt.split("\n"):
            l = l.strip()
            if l: self.L.append(l)
    def lab(self, base="L"):
        self._lab += 1
        return f"{base}_{self.name[:-7]}_{self._lab}"
    def instrument(self, idx, tsbase):
        L = ["s_memrealtime s[96:97]", "s_memtime s[86:87]", "s_load_dwordx2 s[98:99], s[0:1], 80", "v_lshrrev_b32 v1, 6, v0", "s_mov_b32 s100, s2", "v_readfirstlane_b32 s101, v1", "s_waitcnt lgkmcnt(0)", "s_mov_b32 s88, s96", "s_mov_b32 s90, s96", "s_mov_b32 s92, s96"]
        for l in self.L:
            if l.startswith("STAMP"):
                n = int(l.split()[1])
                L += [f"s_memrealtime s[{88+2*n}:{89+2*n}]"]
                continue
            if l == "s_endpgm":
                L += ["s_waitcnt vmcnt(0) lgkmcnt(0)", "s_memrealtime s[94:95]", "s_memtime s[84:85]", "s_mov_b64 exec, 1", "s_lshl_b32 s100, s100, 4", "s_add_u32 s100, s100, s101", "s_lshl_b32 s100, s100, 5",
                      f"s_add_u32 s100, s100, {tsbase + idx * 262144}", "v_mov_b32 v1, s100", "s_waitcnt lgkmcnt(0)", "v_mov_b32 v4, s96", "v_mov_b32 v5, s94", "v_mov_b32 v6, s88", "v_mov_b32 v7, s90",
                      "global_store_dwordx4 v1, v[4:7], s[98:99]", "v_mov_b32 v8, s92", "s_sub_u32 s84, s84, s86", "v_mov_b32 v9, s84", "global_store_dwordx2 v1, v[8:9], s[98:99] offset:16"]
            L.append(l)
        self.L = L
    def instrument_mega(self, tsbase):
        def st(n): return ["s_memrealtime s[100:101]", "s_waitcnt lgkmcnt(0)", f"v_writelane_b32 v255, s100, {n}"]
        L = ["v_mov_b32 v255, 0"] + st(0)
        for l in self.L:
            if l.startswith("STAMP"):
                L += st(int(l.split()[1])); continue
            if l == "s_endpgm":
                L += ["s_waitcnt vmcnt(0)"] + st(11) + ["s_load_dwordx2 s[98:99], s[0:1], 80", "s_mov_b64 exec, 0xffff", "v_lshrrev_b32 v1, 6, v0", "s_lshl_b32 s100, s2, 3",
                      "v_add_u32 v1, s100, v1", "v_lshlrev_b32 v1, 6, v1", "v_and_b32 v2, 63, v0", "v_lshl_add_u32 v1, v2, 2, v1", f"v_add_u32 v1, {tsbase}, v1", "s_waitcnt lgkmcnt(0)",
                      "global_store_dword v1, v255, s[98:99]"]
            L.append(l)
        self.L = L
    def instrument_dbg(self, idx, extra=None):
        L = ["s_memrealtime s[96:97]", "s_load_dwordx2 s[98:99], s[0:1], 72", "v_lshrrev_b32 v1, 6, v0", "s_and_b32 s100, s2, 7", "v_readfirstlane_b32 s101, v1", "s_waitcnt lgkmcnt(0)",
             "s_or_b32 s100, s100, s101", "s_mov_b32 s88, s96", "s_mov_b32 s90, s96", "s_mov_b32 s92, s96"]
        n = 0
        for l in self.L:
            if l.startswith("STAMP"):
                q = int(l.split()[1]); L += [f"s_memrealtime s[{88+2*q}:{89+2*q}]"]; continue
            if l == "s_endpgm":
                n += 1
                lab = f"DBG_{self.name}_{n}"
                L += ["s_waitcnt vmcnt(0) lgkmcnt(0)", "s_memrealtime s[94:95]", "s_cmp_lg_u32 s100, 0", f"s_cbranch_scc1 {lab}", "s_mov_b64 exec, 1",
                      f"s_add_u32 s98, s98, {512*(4-idx)}", "s_addc_u32 s99, s99, 0", "v_mov_b32 v1, 0", "s_waitcnt lgkmcnt(0)", "s_not_b32 s96, s96", "v_mov_b32 v4, s96", "v_mov_b32 v5, s94",
                      f"global_atomic_umax v1, v4, s[98:99] offset:{8*idx}", f"global_atomic_umax v1, v5, s[98:99] offset:{8*idx+4}"]
                if extra is not None:
                    for q in range(3): L += [f"v_mov_b32 v{6+q}, s{88+2*q}", f"global_atomic_umax v1, v{6+q}, s[98:99] offset:{extra+4*q}"]
                L += [f"{lab}:"]
            L.append(l)
        self.L = L
    def finish(self):
        self.L = [l for l in self.L if not l.startswith("STAMP")]
        lines, n = fix_hazards(self.L, self.name)
        mv = ma = ms = -1
        for l in lines:
            x = Ins(l)
            if x.op is None: continue
            for k, i in (x.dst | x.src):
                if k == "v": mv = max(mv, i)
                elif k == "a": ma = max(ma, i)
                elif k == "s" and i < 102: ms = max(ms, i)
        acc = (mv + 1 + 3) // 4 * 4
        nfv = acc + ma + 1 if ma >= 0 else mv + 1
        assert mv < 256 and nfv <= 512, (self.name, mv, ma)
        self.stats = dict(vgpr=mv + 1, agpr=ma + 1, sgpr=ms + 1, nops=n, ninstr=len(lines))
        body = f".globl {self.name}\n.p2align 8\n.type {self.name},@function\n{self.name}:\n" + "\n".join("    " + l if not l.endswith(":") else l for l in lines) + "\n"
        kd = f""".section .rodata,"a"
.p2align 6
.amdhsa_kernel {self.name}
  .amdhsa_next_free_vgpr {max(nfv, 8)}
  .amdhsa_next_free_sgpr {max(ms + 1, 16)}
  .amdhsa_accum_offset {max(acc, 4)}
  .amdhsa_group_segment_fixed_size 0
  .amdhsa_kernarg_size 88
  .amdhsa_user_sgpr_count 2
  .amdhsa_user_sgpr_kernarg_segment_ptr 1
  .amdhsa_system_sgpr_workgroup_id_x 1
.end_amdhsa_kernel
"""
        return body, kd
```

```python
from common import *
from ring2 import *
import math, os
XM = os.environ.get('MX', '').split(',')
WT = " sc0 sc1"
SC = " sc1"
FL = WS_ST + 196608
F1 = FL; F2 = F1 + 32768; F3 = F2 + 32768; F4 = F3 + 24576; F5 = F4 + 27648; FEND = F5 + 131072
assert FEND - WS_ST <= 64 * 8192
LCNT = 139264
PX, PWQKV, PWO, PW1, PB1, PW2, PB2, POUT, PDBG, PWS = 64, 66, 68, 72, 74, 76, 78, 80, 82, 84
VL, VG, VI = 1, 3, 4
T0, T1, T2, T3 = 5, 6, 7, 8
DUMMY = 230

def pf_flat(k, srd_, sidx, nwg, nthreads, b0, b1, tmp, vt=0, s0=60):
    lines = (b1 - b0) // 128
    per = (lines + nwg - 1) // nwg
    n = (per + nthreads - 1) // nthreads
    k(f"s_mul_i32 s{s0}, s{sidx}, {per*128}\ns_add_u32 s{s0}, s{s0}, {b0}\nv_lshlrev_b32 v{tmp}, 7, v{vt}")
    for i in range(n):
        last = per - i * nthreads
        if last < nthreads:
            k(f"v_mov_b32 v{tmp+1}, 0x7ff00000\nv_cmp_gt_u32 vcc, {last}, v{vt}\nv_cndmask_b32 v{tmp}, v{tmp+1}, v{tmp}, vcc")
        k(f"buffer_load_dword v{DUMMY}, v{tmp}, s[{srd_}:{srd_+3}], s{s0} offen\ns_add_u32 s{s0}, s{s0}, {nthreads*128}")

PFDEF = dict(PF1="w1:0:104", PF2="w1:104:128", PF3="w2:0:56", PF4="w2:56:128")
def pf(k, name, sidx, nwg, nthreads, tmp, vt=0):
    spec = os.environ.get(name, PFDEF.get(name, ""))
    if not spec or spec == "0": return
    U = S_ * F_ * 2 // 128
    for it in spec.split(","):
        w, a_, b_ = it.split(":")
        srd(k, 52, PW1 if w == "w1" else PW2, S_ * F_ * 2)
        pf_flat(k, 52, sidx, nwg, nthreads, int(a_) * U, int(b_) * U, tmp, vt=vt)

def ids16(k):
    k(f"v_lshrrev_b32 v{VG}, 4, v{VL}\nv_and_b32 v{VI}, 15, v{VL}")

def p1(k, NXT):
    R = 4; STG = 34816; N = 9; XO = 18432
    CS = 2 * STG - 65536 + 65536 if False else 2 * STG
    PROD = k.lab("P1PROD"); PF = k.lab("P1PF"); PFP = k.lab("P1PFP"); PX_ = k.lab("P1PX")
    k("s_and_b32 s24, s10, 3\ns_lshl_b32 s24, s24, 2\ns_and_b32 s25, s11, 3\ns_add_u32 s24, s24, s25")
    k("s_lshr_b32 s25, s10, 2\ns_mul_i32 s25, s25, 6\ns_lshr_b32 s29, s11, 2\ns_add_u32 s25, s25, s29")
    ids16(k)
    k(f"s_cmp_ge_u32 s28, 4\ns_cbranch_scc1 {PROD}")
    k(f"v_mul_u32_u24 v{T0}, 4682, v{VL}\nv_lshrrev_b32 v{T0}, 16, v{T0}")
    k(f"v_mul_u32_u24 v{T1}, 14, v{T0}\nv_sub_u32 v{T1}, v{VL}, v{T1}")
    k(f"v_lshrrev_b32 v{T2}, 1, v{T0}\nv_mul_u32_u24 v{T2}, 62, v{T2}\nv_add_u32 v{T0}, v{T0}, v{T2}")
    k(f"v_mul_u32_u24 v{T0}, 3456, v{T0}\nv_lshl_add_u32 v{T0}, v{T1}, 7, v{T0}\nv_lshlrev_b32 v{T1}, 7, v{VL}")
    k(f"s_mul_i32 s30, s28, {128*3456}\ns_mul_i32 s31, s11, {2*3456}\ns_add_u32 s30, s30, s31\ns_lshr_b32 s31, s10, 2\ns_mul_i32 s31, s31, {13*128}\ns_add_u32 s30, s30, s31")
    k(f"s_and_b32 s31, s10, 3\ns_mul_i32 s31, s31, {512*1152}\ns_mul_i32 s29, s11, {16*1152}\ns_add_u32 s31, s31, s29\ns_mul_i32 s29, s28, {36*128}\ns_add_u32 s31, s31, s29")
    k("s_waitcnt lgkmcnt(0)")
    srd(k, 20, PWS, WS_SIZE)
    srd(k, 12, PX, S_ * D_ * 2)
    srd(k, 16, PWQKV, D_ * 1728 * 2)
    TD = 9
    k("s_mov_b32 exec_hi, 0xffffff")
    k(f"buffer_load_dword v{DUMMY}, v{T0}, s[16:19], s30 offen\ns_add_u32 s30, s30, {512*3456}")
    k("s_mov_b32 exec_hi, 0xf")
    k(f"buffer_load_dword v{DUMMY}, v{T1}, s[12:15], s31 offen")
    k(f"buffer_load_dword v{DUMMY}, v{T0}, s[16:19], s30 offen")
    k("s_mov_b32 exec_hi, -1")
    k(f"s_cmp_ge_u32 s11, 24\ns_cbranch_scc1 {PF}")
    k("s_lshr_b32 s26, s25, 2\ns_and_b32 s27, s25, 3")
    VTR, VXR, ONE, SUM, XF, WF = 12, 21, 28, 32, 36, 52
    ACC = WF + 72
    CSA, SUA, GRA = ACC + 72, ACC + 84, ACC + 92
    k(f"v_bfe_u32 v{T0}, v{VL}, 2, 2\nv_lshl_add_u32 v{T0}, v{VG}, 2, v{T0}\nv_mul_u32_u24 v{T0}, 288, v{T0}")
    k(f"v_and_b32 v{T1}, 3, v{VL}")
    for j in range(9):
        sT = 40 + j
        k(f"s_lshl_b32 s{sT}, s28, 1\ns_add_u32 s{sT}, s{sT}, {j}")
        k(f"s_sub_u32 s30, s{sT}, 9\ns_cmp_ge_u32 s{sT}, 9\ns_cselect_b32 s{sT}, s30, s{sT}")
        k(f"s_lshr_b32 s30, s{sT}, 1\ns_mul_i32 s30, s30, 72\ns_and_b32 s31, s{sT}, 1\ns_mul_i32 s31, s31, 40\ns_add_u32 s30, s30, s31")
        k(f"s_cmp_eq_u32 s{sT}, 8\ns_cselect_b32 s30, 32, s30\ns_cselect_b32 s31, 72, 8")
        k(f"v_mul_u32_u24 v{T2}, s31, v{T1}\nv_add3_u32 v{VTR+j}, v{T0}, v{T2}, s30")
    k(f"v_lshrrev_b32 v{T0}, 1, v{VI}\nv_lshrrev_b32 v{T1}, 1, v{VG}\nv_xor_b32 v{T0}, v{T0}, v{T1}\nv_lshlrev_b32 v{T0}, 4, v{T0}\nv_lshl_add_u32 v{T0}, v{VI}, 7, v{T0}")
    k(f"v_and_b32 v{T1}, 1, v{VG}\nv_lshl_add_u32 v{T0}, v{T1}, 3, v{T0}")
    k(f"s_lshl_b32 s30, s28, 12\ns_add_u32 s30, s30, {XO}\nv_add_u32 v{VXR}, s30, v{T0}")
    for q in range(1, 4): k(f"v_xor_b32 v{VXR+q}, {32*q}, v{VXR}")
    for r in range(4): k(f"v_mov_b32 v{ONE+r}, 0x3f803f80")
    for r in range(100): k(f"v_mov_b32 v{ACC+r}, 0")
    srd(k, 56, PDBG, 256)
    first = [True]
    def reads(st, slot, ks, rs):
        out = []
        if ks == 0 and not first[0]:
            d = STG if slot else -(R - 1) * STG
            regs = list(range(VXR, VXR + 4)) + list(range(VTR, VTR + 9))
            out += [f"v_add_u32 v{r}, {d}, v{r}" if d > 0 else f"v_subrev_u32 v{r}, {-d}, v{r}" for r in regs]
        first[0] = False
        for tt in range(2):
            for hf in range(2):
                out.append(f"ds_read_b64 {v(XF+rs*8+tt*4+hf*2,2)}, v{VXR+2*ks+hf} offset:{tt*2048}")
        for j in range(9):
            for hf in range(2):
                out.append(f"ds_read_b64_tr_b16 {v(WF+rs*36+j*4+hf*2,2)}, v{VTR+j} offset:{ks*9216+hf*4608}")
        return out
    STAT = 576
    def body(vor):
        first[0] = True
        def mf(st, ks, rs):
            g = []
            on = v(ONE, 4)
            for tt in range(2):
                xf = v(XF + rs * 8 + tt * 4, 4)
                g.append(f"v_mfma_f32_16x16x32_bf16 {v(SUA+tt*4,4)}, {on}, {xf}, {v(SUA+tt*4,4)}")
                g.append(f"v_mfma_f32_16x16x32_bf16 {v(GRA+tt*4,4)}, {xf}, {xf}, {v(GRA+tt*4,4)}")
            for j in range(9):
                wf = v(WF + rs * 36 + j * 4, 4)
                for tt in range(2):
                    xf = v(XF + rs * 8 + tt * 4, 4)
                    ac = v(ACC + (j * 2 + tt) * 4, 4)
                    g.append(f"v_mfma_f32_16x16x32_bf16 {ac}, {xf}, {wf}, {ac}" if vor else f"v_mfma_f32_16x16x32_bf16 {ac}, {wf}, {xf}, {ac}")
                if j < 3:
                    ac = v(CSA + j * 4, 4)
                    g.append(f"v_mfma_f32_16x16x32_bf16 {ac}, {on}, {wf}, {ac}" if vor else f"v_mfma_f32_16x16x32_bf16 {ac}, {wf}, {on}, {ac}")
            return g
        consumer_loop(k, N, R, reads, mf, per=[2] * 10 + [1], final_barrier=False)
        k("STAMP 1")
        E = WF; AD = E
        ZD = TD
        k(f"v_lshlrev_b32 v{T3}, 2, v{VL}\nbuffer_load_dword v{ZD}, v{T3}, s[56:59], 0 offen sc0 sc1")
        if not vor:
            k(f"v_cmp_eq_u32 vcc, 0, v{VI}\nv_lshlrev_b32 v{AD}, 4, v{VG}\nv_add_u32 v{AD}, {CS}, v{AD}")
            k("s_and_saveexec_b64 s[36:37], vcc")
            for j in range(3):
                k(f"s_lshl_b32 s30, s{40+j}, 6\nv_add_u32 v{AD+1+j}, s30, v{AD}\nds_write_b128 v{AD+1+j}, {v(CSA+4*j,4)}")
            k("s_mov_b64 exec, s[36:37]")
        else:
            k(f"v_cmp_eq_u32 vcc, 0, v{VG}\nv_lshlrev_b32 v{AD}, 2, v{VI}\nv_add_u32 v{AD}, {CS}, v{AD}")
            k("s_and_saveexec_b64 s[36:37], vcc")
            for j in range(3):
                k(f"s_lshl_b32 s30, s{40+j}, 6\nv_add_u32 v{AD+1+j}, s30, v{AD}\nds_write_b32 v{AD+1+j}, v{CSA+4*j}")
            k("s_mov_b64 exec, s[36:37]")
        k(f"v_and_b32 v{T0}, 3, v{VI}\nv_lshrrev_b32 v{T1}, 2, v{VI}")
        k(f"v_cmp_eq_u32 s[30:31], 1, v{T0}\nv_cmp_eq_u32 s[32:33], 2, v{T0}\nv_cmp_eq_u32 s[34:35], 3, v{T0}\nv_cmp_eq_u32 vcc, v{T1}, v{VG}")
        for r in range(1, 4):
            for tt in range(2): k(f"v_cndmask_b32 v{GRA+4*tt}, v{GRA+4*tt}, v{GRA+4*tt+r}, s[{28+2*r}:{29+2*r}]")
        for tt in range(2): k(f"v_cndmask_b32 v{SUM+2*tt+1}, 0, v{GRA+4*tt}, vcc")
        for sw in ("16", "32"):
            for tt in range(2): k(f"v_mov_b32 v{GRA+tt}, v{SUM+2*tt+1}")
            for tt in range(2): k(f"v_permlane{sw}_swap_b32 v{SUM+2*tt+1}, v{GRA+tt}")
            for tt in range(2): k(f"v_add_f32 v{SUM+2*tt+1}, v{SUM+2*tt+1}, v{GRA+tt}")
        k(f"s_mov_b32 s30, {f32(1.0/576)}")
        qs = 18 ** -0.5 * math.log2(math.e)
        k(f"s_cmp_eq_u32 s26, 0\ns_cselect_b32 s31, {f32(qs)}, 1.0")
        for tt in range(2): k(f"v_mul_f32 v{SUM+2*tt}, s30, v{SUA+4*tt}\nv_mul_f32 v{SUM+2*tt+1}, s30, v{SUM+2*tt+1}")
        for tt in range(2): k(f"v_fma_f32 v{SUM+2*tt+1}, -v{SUM+2*tt}, v{SUM+2*tt}, v{SUM+2*tt+1}")
        for tt in range(2): k(f"v_max_f32 v{SUM+2*tt+1}, 0, v{SUM+2*tt+1}")
        for tt in range(2): k(f"v_add_f32 v{SUM+2*tt+1}, {f32(1e-5)}, v{SUM+2*tt+1}")
        for tt in range(2): k(f"v_rsq_f32 v{SUM+2*tt+1}, v{SUM+2*tt+1}")
        for tt in range(2): k(f"v_mul_f32 v{SUM+2*tt+1}, s31, v{SUM+2*tt+1}")
        CSR = E + 8; STR = CSR + 36
        VM0 = STR + 16
        OUT = XF
        if vor:
            k(f"s_lshl_b32 s30, s28, 7\nv_add_u32 v{AD+4}, s30, v{AD}")
            k("s_mov_b64 exec, 0xffff")
            for tt in range(2):
                k(f"ds_write_b32 v{AD+4}, v{SUM+2*tt} offset:{STAT+tt*64}\nds_write_b32 v{AD+4}, v{SUM+2*tt+1} offset:{STAT+512+tt*64}")
            k("s_mov_b64 exec, -1")
        k(f"v_lshlrev_b32 v{VM0}, 4, v{VL}")
        k(f"s_mul_i32 s50, s25, {9*65536}\ns_lshl_b32 s30, s24, 2\ns_add_u32 s30, s30, s28\ns_lshl_b32 s30, s30, 10\ns_add_u32 s50, s50, s30")
        for j in range(9):
            k(f"s_lshl_b32 s30, s{40+j}, 6\nv_add_u32 v{VTR+j}, s30, v{AD}")
        k("s_waitcnt lgkmcnt(0)\ns_barrier")
        if not vor:
            for j in range(9): k(f"ds_read_b128 {v(CSR+4*j,4)}, v{VTR+j}")
        else:
            k(f"s_lshl_b32 s30, s28, 7\ns_add_u32 s30, s30, {CS}\nv_lshlrev_b32 v{T0}, 4, v{VG}\nv_add_u32 v{T0}, s30, v{T0}")
            for tt in range(2):
                for hf in range(2):
                    k(f"ds_read_b128 {v(STR+tt*8+hf*4,4)}, v{T0} offset:{STAT+tt*64+hf*512}")
            for j in range(9): k(f"ds_read_b32 v{CSR+j}, v{VTR+j}")
        for j in range(9):
            k(f"s_lshl_b32 s{86+j}, s{40+j}, 16\ns_add_u32 s{86+j}, s{86+j}, s50")
        sw = "32" if vor else "16"
        for j in range(9):
            k(f"s_waitcnt lgkmcnt({8-j})")
            o = OUT + (j % 4) * 4
            for tt in range(2):
                ac = ACC + (j * 2 + tt) * 4
                for h2 in range(2):
                    if not vor:
                        k(f"v_pk_fma_f32 {v(ac+2*h2,2)}, {v(SUM+2*tt,2)}, {v(CSR+4*j+2*h2,2)}, {v(ac+2*h2,2)} op_sel_hi:[0,1,1] neg_lo:[1,0,0] neg_hi:[1,0,0]")
                    else:
                        c = CSR + (j & ~1); sel = j & 1
                        k(f"v_pk_fma_f32 {v(ac+2*h2,2)}, {v(STR+tt*8+2*h2,2)}, {v(c,2)}, {v(ac+2*h2,2)} op_sel:[0,{sel},0] op_sel_hi:[1,{sel},1] neg_lo:[1,0,0] neg_hi:[1,0,0]")
            for tt in range(2):
                ac = ACC + (j * 2 + tt) * 4
                for h2 in range(2):
                    if not vor: k(f"v_pk_mul_f32 {v(ac+2*h2,2)}, {v(ac+2*h2,2)}, {v(SUM+2*tt,2)} op_sel:[0,1] op_sel_hi:[1,1]")
                    else: k(f"v_pk_mul_f32 {v(ac+2*h2,2)}, {v(ac+2*h2,2)}, {v(STR+tt*8+4+2*h2,2)}")
            for tt in range(2):
                ac = ACC + (j * 2 + tt) * 4
                k(f"v_cvt_pk_bf16_f32 v{o+2*tt}, v{ac}, v{ac+1}\nv_cvt_pk_bf16_f32 v{o+2*tt+1}, v{ac+2}, v{ac+3}")
            if j > 0:
                po = OUT + ((j - 1) % 4) * 4
                k(f"v_permlane{sw}_swap_b32 v{po}, v{po+2}\nv_permlane{sw}_swap_b32 v{po+1}, v{po+3}")
                k(f"buffer_store_dwordx4 {v(po,4)}, v{VM0}, s[20:23], s{86+j-1} offen{WT}")
        k(f"v_permlane{sw}_swap_b32 v{OUT}, v{OUT+2}\nv_permlane{sw}_swap_b32 v{OUT+1}, v{OUT+3}")
        k(f"buffer_store_dwordx4 {v(OUT,4)}, v{VM0}, s[20:23], s94 offen{WT}")
        k(f"s_lshl_b32 s30, s27, 4\ns_add_u32 s30, s30, s24\ns_lshl_b32 s30, s30, 2\ns_add_u32 s30, s30, s26\ns_lshl_b32 s30, s30, 7\ns_add_u32 s30, s30, {F1}")
        k(f"v_mov_b32 v{T0}, 0\nv_mov_b32 v{T1}, 1\ns_mov_b32 s31, 0\ns_waitcnt vmcnt(0)")
        OK = k.lab("ZOK")
        k(f"v_cmp_eq_u32 vcc, 0, v{ZD}\ns_nop 4\ns_cbranch_vccz {OK}")
        poll(k, T3, ZD, 1, 56, 31)
        k(f"{OK}:")
        last_wave_flag(k, T0, T1, T2, LCNT, 20, 30)
        k(f"s_branch {NXT[0]}")
    LV = k.lab("VOR")
    k(f"s_cmp_eq_u32 s26, 2\ns_cbranch_scc1 {LV}")
    body(False)
    k(f"{LV}:")
    body(True)
    k(f"{PROD}:")
    k(f"s_cmp_ge_u32 s11, 24\ns_cbranch_scc1 {PFP}")
    k(f"s_and_b32 s29, s28, 1\ns_cmp_ge_u32 s28, 6\ns_cbranch_scc1 {PX_}")
    VD = 10
    k(f"s_mov_b32 s30, {3456-288}")
    for q in range(9):
        k(f"v_add_u32 v{T0}, {q*64}, v{VL}\nv_mul_u32_u24 v{T1}, 3641, v{T0}\nv_lshrrev_b32 v{T1}, 16, v{T1}")
        k(f"v_lshlrev_b32 v{T0}, 4, v{T0}\nv_mad_u32_u24 v{VD+q}, v{T1}, s30, v{T0}")
    k(f"s_mul_i32 s33, s25, 288\ns_mul_i32 s30, s29, {32*3456}\ns_add_u32 s33, s33, s30\ns_mul_i32 s34, s29, 9216")
    k("s_waitcnt lgkmcnt(0)")
    srd(k, 16, PWQKV, D_ * 1728 * 2)
    srd(k, 20, PWS, WS_SIZE)
    producer_loop(k, N, R, 9, lambda st, slot: [dma(34, slot * STG + q * 1024, VD + q, 16, 33) for q in range(9)] + [f"s_add_u32 s33, s33, {64*3456}"], NXT[1])
    k(f"{PX_}:")
    for q in range(2):
        k(f"v_lshrrev_b32 v{T0}, 3, v{VL}\nv_add_u32 v{T0}, {8*q}, v{T0}")
        k(f"v_bfe_u32 v{T1}, v{T0}, 1, 3\nv_and_b32 v{T2}, 7, v{VL}\nv_xor_b32 v{T1}, v{T1}, v{T2}\nv_lshlrev_b32 v{T1}, 4, v{T1}")
        k(f"v_mul_u32_u24 v{T0}, 1152, v{T0}\nv_add_u32 v{VD+q}, v{T0}, v{T1}")
    for q in range(2, 8): k(f"v_add_u32 v{VD+q}, {16*1152}, v{VD+q-2}")
    k("s_lshl_b32 s32, s24, 7\ns_lshl_b32 s30, s29, 6\ns_add_u32 s32, s32, s30\ns_mul_i32 s32, s32, 1152")
    k(f"s_lshl_b32 s35, s29, 13\ns_add_u32 s35, s35, {XO}")
    k("s_waitcnt lgkmcnt(0)")
    srd(k, 12, PX, S_ * D_ * 2)
    srd(k, 20, PWS, WS_SIZE)
    producer_loop(k, N, R, 8, lambda st, slot: [dma(35, slot * STG + q * 1024, VD + q, 12, 32) for q in range(8)] + ["s_add_u32 s32, s32, 128"], NXT[1])
    k(f"{PFP}:\ns_waitcnt lgkmcnt(0)")
    srd(k, 20, PWS, WS_SIZE)
    k(f"{PF}:")
    srd(k, 56, PDBG, 256)
    k(f"s_sub_u32 s29, s2, 192\ns_lshl_b32 s30, s29, 13\ns_add_u32 s30, s30, {WS_ST}\nv_lshlrev_b32 v18, 4, v0\nv_mov_b32 v12, 0\nv_mov_b32 v13, 0\nv_mov_b32 v14, 0\nv_mov_b32 v15, 0\nv_mov_b32 v16, 1")
    k(f"buffer_store_dwordx4 v[12:15], v18, s[20:23], s30 offen{WT}\ns_waitcnt vmcnt(0)\ns_barrier")
    NZ = k.lab("NZ")
    k(f"s_lshl_b32 s30, s29, 2\ns_cmp_lg_u32 s28, 0\ns_cbranch_scc1 {NZ}")
    set_flag(k, 12, 16, 56, 30)
    k(f"{NZ}:")
    H = k.lab("PC")
    k(f"s_getpc_b64 s[60:61]\n{H}:\ns_sub_u32 s60, s60, {H}-L_text_begin\ns_subb_u32 s61, s61, 0")
    k(f"s_sub_u32 s62, s11, 24\ns_lshl_b32 s62, s62, 16\nv_lshlrev_b32 v16, 7, v0\nv_add_u32 v16, s62, v16")
    SK = k.lab("SKC")
    k(f"s_mov_b32 s62, L_text_end-L_text_begin\nv_cmp_gt_u32 vcc, s62, v16\ns_and_saveexec_b64 s[62:63], vcc\ns_cbranch_execz {SK}\nglobal_load_dword v{DUMMY}, v16, s[60:61]\n{SK}:\ns_mov_b64 exec, -1")
    pf(k, "PF1", 29, 64, 512, 18)
    k(f"s_branch {NXT[1]}")

def p2(k, ENT, NXT):
    LK8 = 24576; LV = 30720; REC = 1168; SEC = 36 * 65536
    VH, VQ = 3, 4
    V16, VV, V8A = 5, 6, 7
    QM, Q8 = 8, 12
    KF, K8F, VF, O = 16, 28, 40, 56
    MX, MX2, TA, TB = 72, 73, 74, 75
    AK, AK8, AV = 76, 77, 78
    VV8, VK8 = 79, 2
    S0 = 80
    k(f"{ENT[1]}:\ns_waitcnt vmcnt(0)\ns_cmp_lg_u32 s28, 7\ns_cbranch_scc1 {ENT[0]}")
    srd(k, 56, PDBG, 256)
    k(f"v_lshlrev_b32 v{TA}, 2, v{VL}\ns_mov_b32 s31, 0")
    poll(k, TA, TB, 1, 56, 31)
    k(f"{ENT[0]}:")
    k("STAMP 2")
    k("s_lshl_b32 s24, s10, 1\ns_and_b32 s25, s11, 1\ns_add_u32 s24, s24, s25\ns_lshr_b32 s25, s11, 1")
    k(f"v_lshrrev_b32 v{VH}, 5, v{VL}\nv_and_b32 v{VQ}, 31, v{VL}")
    k("s_lshr_b32 s26, s28, 2\ns_and_b32 s27, s28, 3")
    k(f"v_lshlrev_b32 v{V16}, 4, v{VL}")
    k(f"v_lshlrev_b32 v{VV}, 4, v{VQ}\nv_lshl_add_u32 v{VV}, v{VH}, 16, v{VV}")
    k("s_lshr_b32 s47, s24, 2\ns_and_b32 s31, s24, 3\ns_mul_i32 s34, s47, 9\ns_lshl_b32 s32, s31, 1\ns_add_u32 s44, s32, s34\ns_add_u32 s32, s44, s26\ns_lshl_b32 s32, s32, 16")
    k(f"s_add_u32 s34, s34, 8\ns_lshl_b32 s34, s34, 16\ns_lshl_b32 s44, s44, 16\ns_add_u32 s44, s44, {2*SEC}")
    k("s_lshr_b32 s30, s31, 1\ns_lshl_b32 s30, s30, 9\ns_add_u32 s41, s34, s30")
    k(f"s_and_b32 s30, s31, 1\ns_lshl_b32 s30, s30, 3\nv_lshlrev_b32 v{V8A}, 4, v{VQ}\nv_add_u32 v{V8A}, s30, v{V8A}")
    k(f"s_lshl_b32 s45, s31, 6\ns_add_u32 s45, s45, s34\ns_add_u32 s45, s45, {2*SEC}")
    k(f"v_lshrrev_b32 v{TA}, 2, v{VL}\nv_lshlrev_b32 v{TA}, 8, v{TA}\nv_and_b32 v{TB}, 3, v{VL}\nv_lshl_add_u32 v{VV8}, v{TB}, 4, v{TA}")
    k(f"v_lshlrev_b32 v{VK8}, 4, v{VQ}\nv_lshl_add_u32 v{VK8}, v{VH}, 10, v{VK8}")
    k("s_lshl_b32 s33, s25, 2\ns_mul_i32 s30, s27, 3\ns_add_i32 s35, s33, s30\ns_sub_i32 s35, s35, 8")
    k("s_mul_i32 s31, s26, 12\ns_add_u32 s31, s31, s30\ns_lshl_b32 s46, s31, 10")
    k(f"s_lshl_b32 s30, s28, 1\ns_add_i32 s30, s30, s33\ns_sub_i32 s30, s30, 8\ns_max_i32 s30, s30, 0\ns_lshl_b32 s30, s30, 10\ns_add_u32 s33, s33, s27")
    k(f"s_lshl_b32 s39, s33, 10\ns_add_u32 s40, s39, s41\ns_add_u32 s39, s39, s32\ns_add_u32 s41, s41, s30\ns_add_u32 s41, s41, {SEC}\ns_add_u32 s38, s32, {SEC}")
    k(f"s_lshl_b32 s42, s28, 10\ns_add_u32 s42, s42, {LK8}")
    k(f"s_mul_i32 s43, s28, 3\ns_lshl_b32 s36, s25, 3\ns_add_i32 s36, s36, s43\ns_sub_i32 s36, s36, 16\ns_mul_i32 s43, s43, {REC}\ns_add_u32 s43, s43, {LV}")
    NEG = f32(-1e30)
    k(f"v_lshlrev_b32 v{TA}, 2, v{VH}\nv_sub_u32 v{TA}, v{VQ}, v{TA}\nv_mov_b32 v{TB}, {NEG}")
    for b in range(4):
        for r in range(4): k(f"v_cmp_gt_i32 s[{86+2*r}:{87+2*r}], {8*b+r}, v{TA}")
        for r in range(4): k(f"v_cndmask_b32 v{S0+4*b+r}, v{TB}, 0, s[{86+2*r}:{87+2*r}]")
        for r in range(4): k(f"v_cndmask_b32 v{S0+128+4*b+r}, 0, v{TB}, s[{86+2*r}:{87+2*r}]")
    k(f"s_mul_i32 s30, s26, 12\ns_add_u32 s30, s30, s27\ns_lshl_b32 s30, s30, 10\nv_add_u32 v{AK}, s30, v{V16}")
    k(f"s_lshl_b32 s30, s27, 9\ns_add_u32 s30, s30, {LK8}\nv_add_u32 v{AK8}, s30, v{V8A}")
    for q in range(3):
        k(f"v_mov_b32 v{K8F+q*4+2}, 0\nv_mov_b32 v{K8F+q*4+3}, 0")
    k(f"v_mov_b32 v{Q8+2}, 0\nv_mov_b32 v{Q8+3}, 0")
    k(f"s_lshl_b32 s30, s26, 9\nv_lshlrev_b32 v{AV}, 8, v{VH}\nv_lshl_add_u32 v{AV}, v{VQ}, 4, v{AV}\nv_add_u32 v{AV}, s30, v{AV}")
    k(f"s_lshl_b32 s30, s26, 5\ns_add_u32 s30, s30, {1024-256}\nv_lshlrev_b32 v{TA}, 6, v{VH}\nv_lshl_add_u32 v{TA}, v{VQ}, 4, v{TA}\nv_add_u32 v{TA}, s30, v{TA}")
    k(f"v_cmp_lt_u32 vcc, 15, v{VQ}\nv_cmp_lt_u32 s[86:87], 17, v{VQ}\nv_mov_b32 v{MX2}, 1152\nv_cndmask_b32 v{AV}, v{AV}, v{TA}, vcc\nv_cndmask_b32 v{AV}, v{AV}, v{MX2}, s[86:87]")
    k(f"s_mul_i32 s30, s27, {2*REC}\ns_add_u32 s30, s30, {LV}\nv_add_u32 v{AV}, s30, v{AV}")
    SO = k.lab("SONE")
    k(f"s_cmp_lg_u32 s28, 7\ns_cbranch_scc1 {SO}")
    for r in range(4): k(f"v_mov_b32 v{KF+r}, 0x3f803f80")
    k(f"v_mul_u32_u24 v{TA}, {REC}, v{VL}\ns_mov_b64 exec, 0xffffff")
    k(f"ds_write_b128 v{TA}, {v(KF,4)} offset:{LV+1152}")
    k(f"s_lshl_b32 s30, s47, 13\ns_lshl_b32 s31, s25, 9\ns_add_u32 s30, s30, s31\ns_add_u32 s30, s30, {F1-1024}")
    k(f"s_mov_b64 exec, -1\nv_lshlrev_b32 v{TA}, 7, v{VL}\ns_movk_i32 s31, 0x760\ns_cmp_eq_u32 s25, 0\ns_cselect_b32 s31, 0x700, s31\ns_cmp_ge_u32 s25, 2\ns_cselect_b32 exec_lo, 0x766, s31\ns_mov_b32 exec_hi, 0")
    poll(k, TA, MX, 1, 20, 30)
    k(f"s_mov_b64 exec, -1\n{SO}:\ns_barrier")
    k("STAMP 3")
    SK = k.lab("SK8")
    k(f"s_mov_b32 m0, s42\ns_cmp_ge_u32 s28, 6\ns_cbranch_scc1 {SK}")
    k(f"buffer_load_dwordx4 v{VK8}, s[20:23], s41 offen{SC} lds\n{SK}:")
    for q in range(3):
        k(f"s_add_i32 s30, s35, {q}\ns_max_i32 s30, s30, 0\ns_lshl_b32 s30, s30, 10\ns_add_u32 m0, s46, {q*1024}\ns_add_u32 s30, s30, s38")
        k(f"buffer_load_dwordx4 v{V16}, s[20:23], s30 offen{SC} lds")
    k(f"buffer_load_dwordx4 {v(QM,4)}, v{V16}, s[20:23], s39 offen{SC}")
    k(f"buffer_load_dwordx2 {v(Q8,2)}, v{V8A}, s[20:23], s40 offen{SC}")
    for q in range(3):
        k(f"s_add_i32 s30, s36, {q}\ns_max_i32 s30, s30, 0\ns_lshl_b32 s31, s30, 9\ns_add_u32 m0, s43, {q*REC}\ns_add_u32 s31, s31, s44")
        k(f"buffer_load_dwordx4 v{VV}, s[20:23], s31 offen{SC} lds")
        k(f"s_lshl_b32 s31, s30, 9\ns_add_u32 m0, s43, {q*REC+1024}\ns_add_u32 s31, s31, s45\ns_mov_b64 exec, 0xff")
        k(f"buffer_load_dwordx4 v{VV8}, s[20:23], s31 offen{SC} lds\ns_mov_b64 exec, -1")
    srd(k, 48, PWO, D_ * D_ * 2)
    k(f"v_mov_b32 v{MX}, v{TB}\ns_sub_i32 s35, 8, s33")
    k("s_cmp_eq_u32 s26, 0\ns_cselect_b32 s38, -1, 0\ns_cselect_b32 s40, 0, -1\ns_mov_b32 s39, 0\ns_mov_b32 s41, 0")
    k("s_waitcnt vmcnt(6) lgkmcnt(0)")
    k(f"v_cndmask_b32 v{Q8}, 0, v{Q8}, s[38:39]\nv_cndmask_b32 v{Q8+1}, 0, v{Q8+1}, s[40:41]")
    k("s_barrier")
    def kread(j):
        return [f"ds_read_b128 {v(KF+(j%3)*4,4)}, v{AK} offset:{j*1024}", f"ds_read_b64 {v(K8F+(j%3)*4,2)}, v{AK8} offset:{j*512}"]
    def mx(j):
        return [f"v_max3_f32 v{MX}, v{MX}, v{S0+j*16+2*r}, v{S0+j*16+2*r+1}" for r in range(8)]
    for t in kread(0) + kread(1): k(t)
    inv = []
    for j in range(9):
        if j + 2 < 9:
            for t in kread(j + 2): k(t)
        sj = v(S0 + j * 16, 16)
        if j < 8:
            li, lb = k.lab("INV"), k.lab("BK")
            inv.append((j, li, lb))
            k(f"s_cmp_gt_i32 s35, {j}\ns_cbranch_scc1 {li}")
        k(f"s_waitcnt lgkmcnt({min(2, 8-j)*2})")
        k(f"v_mfma_f32_32x32x16_bf16 {sj}, {v(KF+(j%3)*4,4)}, {v(QM,4)}, {sj if j in (0, 8) else 0}")
        k(f"v_mfma_f32_32x32x16_bf16 {sj}, {v(K8F+(j%3)*4,4)}, {v(Q8,4)}, {sj}")
        if j < 8: k(f"{lb}:")
        if j >= 2:
            for t in mx(j - 2): k(t)
    for t in mx(7): k(t)
    k("s_waitcnt vmcnt(0)\ns_barrier")
    def vread(t): return f"ds_read_b128 {v(VF+(t%4)*4,4)}, v{AV} offset:{t*REC}"
    k(vread(0)); k(vread(1))
    k(f"v_lshlrev_b32 v224, 7, v0\ns_mul_i32 s30, s11, {162*128}\nv_cmp_gt_u32 vcc, 162, v0\ns_and_saveexec_b64 s[44:45], vcc")
    k(f"buffer_load_dword v{DUMMY}, v224, s[48:51], s30 offen\ns_mov_b64 exec, s[44:45]")
    pf(k, "PF2", 2, 256, 512, 226)
    for t in mx(8): k(t)
    k(f"v_mov_b32 v{MX2}, v{MX}\nv_permlane32_swap_b32 v{MX}, v{MX2}\nv_max_f32 v{MX}, v{MX}, v{MX2}")
    def soft(j):
        b = S0 + j * 16
        out = [f"v_sub_f32 v{b+r}, v{b+r}, v{MX}" for r in range(16)]
        out += [f"v_exp_f32 v{b+r}, v{b+r}" for r in range(16)]
        out += [f"v_cvt_pk_bf16_f32 v{b+r}, v{b+2*r}, v{b+2*r+1}" for r in range(8)]
        return out
    def pv(j):
        b = S0 + j * 16
        return [f"v_mfma_f32_32x32x16_bf16 {v(O,16)}, {v(VF+((2*j+s_)%4)*4,4)}, {v(b+4*s_,4)}, {v(O,16) if (j or s_) else 0}" for s_ in range(2)]
    for t in soft(0): k(t)
    for j in range(9):
        nxt = soft(j + 1) if j < 8 else []
        if j < 8:
            k(vread(2 * j + 2)); k(vread(2 * j + 3))
        p = pv(j)
        for t in nxt[:4]: k(t)
        k(f"s_waitcnt lgkmcnt({2 if j < 8 else 0})")
        k(p[0])
        for t in nxt[4:20]: k(t)
        k(p[1])
        for t in nxt[20:]: k(t)
    k(f"s_lshl_b32 s34, s24, 1\ns_add_u32 s34, s34, s26\ns_lshl_b32 s30, s34, 16\ns_lshl_b32 s31, s33, 10\ns_add_u32 s30, s30, s31\ns_add_u32 s30, s30, {WS_OM}")
    k(f"s_lshl_b32 s31, s34, 13\ns_lshl_b32 s34, s33, 7\ns_add_u32 s31, s31, s34\ns_add_u32 s31, s31, {WS_O8}\nv_lshlrev_b32 v{AK8}, 2, v{VQ}")
    k(f"v_rcp_f32 v{MX}, v{O+10}")
    for r in range(10): k(f"v_mul_f32 v{O+r}, v{O+r}, v{MX}")
    for r in range(5): k(f"v_cvt_pk_bf16_f32 v{KF+r}, v{O+2*r}, v{O+2*r+1}")
    k(f"buffer_store_dwordx4 {v(KF,4)}, v{V16}, s[20:23], s30 offen{WT}")
    k("s_mov_b32 exec_hi, 0")
    k(f"buffer_store_dword v{KF+4}, v{AK8}, s[20:23], s31 offen{WT}")
    k("s_mov_b32 exec_hi, -1")
    k(f"s_lshl_b32 s30, s25, 11\ns_lshl_b32 s31, s24, 7\ns_add_u32 s30, s30, s31\ns_add_u32 s30, s30, {F2}\nv_mov_b32 v{TA}, 0\nv_mov_b32 v{TB}, 1")
    k(f"s_waitcnt vmcnt(0)\ns_barrier\ns_cmp_lg_u32 s28, 0\ns_cbranch_scc1 {NXT}")
    set_flag(k, TA, TB, 20, 30)
    k(f"s_branch {NXT}")
    for j, li, lb in inv:
        k(f"{li}:")
        for r in range(16): k(f"v_mov_b32 v{S0+j*16+r}, v{TB}")
        k(f"s_branch {lb}")

def p3(k, ENT, NXT):
    R = 4; WS_ = 12288; WB = 73728; N = 9
    LAB = WB + R * WS_
    PF = k.lab("P3PF"); PROD = k.lab("P3PROD"); PO = k.lab("P3PO")
    k(f"{ENT}:\nSTAMP 4")
    k(f"s_cmp_ge_u32 s2, 192\ns_cbranch_scc1 {PF}")
    k("s_lshl_b32 s24, s10, 2\ns_and_b32 s25, s11, 3\ns_add_u32 s24, s24, s25\ns_lshr_b32 s25, s11, 2")
    ids16(k)
    V16 = 9
    k(f"v_lshlrev_b32 v{V16}, 4, v{VL}")
    k(f"s_cmp_ge_u32 s28, 4\ns_cbranch_scc1 {PROD}")
    k("s_lshr_b32 s26, s28, 1\ns_and_b32 s27, s28, 1")
    VTR, VAO, VAE, VX = 10, 13, 15, 16
    IDN, XR, ACC, AF, BF = 24, 28, 52, 76, 92
    k(f"v_and_b32 v{T1}, 1, v{VG}")
    k(f"v_mul_u32_u24 v{VX}, 1152, v{VI}\nv_lshl_add_u32 v{VX}, v{T1}, 4, v{VX}\nv_add_u32 v{VX+1}, {16*1152}, v{VX}")
    k("s_lshl_b32 s30, s24, 6\ns_lshl_b32 s31, s26, 5\ns_add_u32 s30, s30, s31\ns_mul_i32 s30, s30, 1152")
    k("s_mul_i32 s31, s25, 192\ns_add_u32 s30, s30, s31\ns_mul_i32 s31, s27, 96\ns_add_u32 s30, s30, s31")
    srd(k, 12, PX, S_ * D_ * 2)
    for tt in range(2):
        for dt in range(3):
            k(f"buffer_load_dwordx4 {v(XR+(tt*3+dt)*4,4)}, v{VX+tt}, s[12:15], s30 offen offset:{dt*32}")
    k(f"v_bfe_u32 v{T0}, v{VL}, 2, 2\nv_lshl_add_u32 v{T0}, v{VG}, 2, v{T0}\nv_mul_u32_u24 v{T0}, 192, v{T0}")
    k(f"v_and_b32 v{T2}, 3, v{VL}\nv_lshl_add_u32 v{T0}, v{T2}, 3, v{T0}\nv_add_u32 v{T0}, {WB}, v{T0}")
    k("s_mul_i32 s30, s27, 3")
    for dt in range(3):
        k(f"s_add_u32 s31, s30, {dt}\nv_xor_b32 v{T2}, s31, v{T1}\nv_lshl_add_u32 v{VTR+dt}, v{T2}, 5, v{T0}")
    k(f"s_lshl_b32 s30, s26, 11\nv_add_u32 v{VAO}, s30, v{V16}\nv_add_u32 v{VAO+1}, 32768, v{VAO}")
    k(f"v_lshlrev_b32 v{T0}, 8, v{VG}\nv_lshl_add_u32 v{T0}, v{VI}, 2, v{T0}\nv_add_u32 v{VAE}, s30, v{T0}\nv_add_u32 v{VAE}, 65536, v{VAE}")
    k(f"v_lshlrev_b32 v{T0}, 3, v{VG}\nv_sub_u32 v{T0}, v{VI}, v{T0}\nv_mov_b32 v{T1}, 0x3f80\nv_mov_b32 v{T2}, 0x3f800000")
    for j2 in range(4):
        k(f"v_cmp_eq_u32 vcc, {2*j2}, v{T0}\nv_cmp_eq_u32 s[30:31], {2*j2+1}, v{T0}\nv_cndmask_b32 v{IDN+j2}, 0, v{T1}, vcc")
        k(f"v_cndmask_b32 v{IDN+j2}, v{IDN+j2}, v{T2}, s[30:31]")
    def reads(st, slot, ks, rs):
        out = []
        for tt in range(2):
            if st < 8: out.append(f"ds_read_b128 {v(AF+rs*8+tt*4,4)}, v{VAO+(st>>2)} offset:{(st&3)*8192+ks*4096+tt*1024}")
            else:
                out += [f"ds_read_b32 v{AF+rs*8+tt*4+q}, v{VAE} offset:{ks*4096+tt*1024+q*64}" for q in range(4)]
        for dt in range(3):
            for hf in range(2):
                out.append(f"ds_read_b64_tr_b16 {v(BF+rs*12+dt*4+hf*2,2)}, v{VTR+dt} offset:{slot*WS_+ks*6144+hf*3072}")
        return out
    def mf(st, ks, rs):
        return [f"v_mfma_f32_16x16x32_bf16 {v(ACC+(tt*3+dt)*4,4)}, {v(AF+rs*8+tt*4,4)}, {v(BF+rs*12+dt*4,4)}, {v(ACC+(tt*3+dt)*4,4)}"
                for tt in range(2) for dt in range(3)]
    k("s_waitcnt vmcnt(0)")
    for q in range(6):
        k(f"v_mfma_f32_16x16x32_bf16 {v(ACC+q*4,4)}, {v(XR+q*4,4)}, {v(IDN,4)}, 0")
    consumer_loop(k, N, R, reads, mf, per=2, special_from=0)
    k("STAMP 5")
    PK = XR; ST = AF
    for dt in range(3):
        for tt in range(2):
            ac = ACC + (tt * 3 + dt) * 4
            k(f"v_cvt_pk_bf16_f32 v{PK+dt*4+tt*2}, v{ac}, v{ac+1}\nv_cvt_pk_bf16_f32 v{PK+dt*4+tt*2+1}, v{ac+2}, v{ac+3}")
    for dt in range(3):
        for tt in range(2):
            for h2 in range(2):
                p = PK + dt * 4 + tt * 2 + h2
                x0 = ACC + (tt * 3 + dt) * 4 + 2 * h2
                k(f"v_lshlrev_b32 v{x0}, 16, v{p}\nv_and_b32 v{x0+1}, 0xffff0000, v{p}")
                for e in range(2):
                    d = ST + tt * 8 + (h2 * 2 + e) * 2
                    if dt == 0: k(f"v_mov_b32 v{d}, v{x0+e}\nv_mul_f32 v{d+1}, v{x0+e}, v{x0+e}")
                    else: k(f"v_add_f32 v{d}, v{d}, v{x0+e}\nv_fmac_f32 v{d+1}, v{x0+e}, v{x0+e}")
    for sh in (8, 4, 2, 1):
        for r in range(16):
            k(f"v_add_f32_dpp v{ST+r}, v{ST+r}, v{ST+r} row_ror:{sh} row_mask:0xf bank_mask:0xf")
    for r in range(8): k(f"v_or_b32 v{ST+2*r+1}, 0x80000000, v{ST+2*r+1}")
    k(f"s_lshl_b32 s31, s24, 1\ns_add_u32 s31, s31, s26")
    k(f"s_lshl_b32 s33, s31, 8\ns_add_u32 s33, s33, {WS_ST}")
    k(f"s_lshl_b32 s30, s25, 1\ns_add_u32 s30, s30, s27\ns_lshl_b32 s30, s30, 14\ns_add_u32 s30, s30, s33")
    k(f"v_lshlrev_b32 v{T0}, 5, v{VG}\nv_cmp_eq_u32 vcc, 0, v{VI}\ns_and_saveexec_b64 s[38:39], vcc")
    for tt in range(2):
        for hf in range(2):
            k(f"buffer_store_dwordx4 {v(ST+tt*8+hf*4,4)}, v{T0}, s[20:23], s30 offen offset:{tt*128+hf*16}{WT}")
    k("s_mov_b64 exec, s[38:39]")
    VH = VTR
    k(f"v_lshlrev_b32 v{VH}, 4, v{VL}")
    k(f"s_mul_i32 s30, s25, 6\ns_mul_i32 s32, s27, 3\ns_add_u32 s30, s30, s32\ns_lshl_b32 s30, s30, 16")
    k(f"s_lshl_b32 s32, s31, 10\ns_add_u32 s30, s30, s32\ns_add_u32 s32, s30, {WS_HN}\ns_add_u32 s30, s30, {WS_H}")
    for dt in range(3):
        k(f"buffer_store_dwordx4 {v(PK+dt*4,4)}, v{VH}, s[20:23], s30 offen{WT}\ns_add_u32 s30, s30, 65536")
    VS = VTR + 1
    P = BF
    k(f"v_lshrrev_b32 v{T0}, 5, v{VL}\nv_mul_u32_u24 v{VS}, {6*16384}, v{T0}\nv_and_b32 v{T0}, 31, v{VL}\nv_lshl_add_u32 v{VS}, v{T0}, 3, v{VS}")
    for p in range(6): k(f"s_add_u32 s{40+p}, s33, {p*16384}")
    POLL = k.lab("POLL"); GO = k.lab("GO")
    k(f"s_mov_b32 s37, 0x100000\n{POLL}:")
    for p in range(6):
        k(f"buffer_load_dwordx2 {v(P+2*p,2)}, v{VS}, s[20:23], s{40+p} offen sc0 sc1")
    k("s_waitcnt vmcnt(0)")
    k(f"v_and_b32 v{T1}, v{P+1}, v{P+3}\nv_and_b32 v{T2}, v{P+5}, v{P+7}\nv_and_b32 v{T3}, v{P+9}, v{P+11}\nv_and_b32 v{T1}, v{T1}, v{T2}\nv_and_b32 v{T1}, v{T1}, v{T3}")
    k(f"v_cmp_le_i32 vcc, 0, v{T1}\ns_sub_u32 s37, s37, 1\ns_cmp_eq_u32 s37, 0\ns_cbranch_scc1 {GO}\ns_cbranch_vccz {GO}\ns_sleep 1\ns_branch {POLL}\n{GO}:")
    for p in range(1, 6):
        k(f"v_add_f32 v{P}, v{P}, v{P+2*p}\nv_add_f32 v{P+1}, v{P+1}, v{P+2*p+1}")
    k(f"v_mov_b32 v{P+2}, v{P}\nv_mov_b32 v{P+3}, v{P+1}")
    k(f"v_permlane32_swap_b32 v{P}, v{P+2}\nv_permlane32_swap_b32 v{P+1}, v{P+3}")
    k(f"v_add_f32 v{P}, v{P}, v{P+2}\nv_add_f32 v{P+1}, v{P+1}, v{P+3}")
    k(f"s_mov_b32 s34, {f32(1.0/576)}")
    mn, sq = P, P + 1
    k(f"v_mul_f32 v{mn}, s34, v{mn}\nv_mul_f32 v{sq}, s34, -v{sq}\nv_fma_f32 v{sq}, -v{mn}, v{mn}, v{sq}\nv_max_f32 v{sq}, 0, v{sq}")
    k(f"v_add_f32 v{P+2}, {f32(1e-5)}, v{sq}\nv_rsq_f32 v{P+2}, v{P+2}")
    k(f"v_mul_f32 v{sq}, v{sq}, v{P+2}\nv_mul_f32 v{sq}, v{sq}, v{P+2}\nv_add_f32 v{sq}, {f32(1e-5)}, v{sq}\nv_rsq_f32 v{sq}, v{sq}")
    k(f"v_mul_f32 v{P+2}, v{P+2}, v{sq}\nv_mul_f32 v{P+3}, -v{mn}, v{P+2}")
    k(f"s_lshl_b32 s33, s28, 8\ns_add_u32 s33, s33, {LAB}\nv_lshlrev_b32 v{T0}, 3, v{T0}\nv_add_u32 v{T0}, s33, v{T0}")
    k(f"ds_write_b64 v{T0}, {v(P+2,2)}")
    k(f"v_lshlrev_b32 v{T0}, 5, v{VG}\nv_add_u32 v{T0}, s33, v{T0}\ns_waitcnt lgkmcnt(0)")
    AB = ST
    for q in range(4):
        k(f"ds_read_b128 {v(AB+4*q,4)}, v{T0} offset:{(q>>1)*128+(q&1)*16}")
    k(f"s_lshl_b32 s30, s25, 12\ns_lshl_b32 s31, s24, 7\ns_add_u32 s30, s30, s31\ns_add_u32 s30, s30, {F3}\nv_mov_b32 v{T1}, 0\nv_mov_b32 v{T2}, 1")
    k("s_waitcnt lgkmcnt(0)")
    for dt in range(3):
        for tt in range(2):
            x0 = ACC + (tt * 3 + dt) * 4
            for r in range(4): k(f"v_fma_f32 v{x0+r}, v{x0+r}, v{AB+tt*8+2*r}, v{AB+tt*8+2*r+1}")
            k(f"v_cvt_pk_bf16_f32 v{PK+dt*4+tt*2}, v{x0}, v{x0+1}\nv_cvt_pk_bf16_f32 v{PK+dt*4+tt*2+1}, v{x0+2}, v{x0+3}")
        k(f"buffer_store_dwordx4 {v(PK+dt*4,4)}, v{VH}, s[20:23], s32 offen{WT}\ns_add_u32 s32, s32, 65536")
    k("s_waitcnt vmcnt(0)")
    last_wave_flag(k, T1, T2, T3, LCNT + 4, 20, 30)
    k(f"s_branch {NXT}")
    k(f"{PROD}:\ns_and_b32 s29, s28, 1\ns_cmp_ge_u32 s28, 6\ns_cbranch_scc1 {PO}")
    VWD, VWE = 10, 16
    for q in range(6):
        k(f"v_add_u32 v{T0}, {q*64}, v{VL}")
        k(f"v_mul_u32_u24 v{T1}, 5462, v{T0}\nv_lshrrev_b32 v{T1}, 16, v{T1}")
        k(f"v_mul_u32_u24 v{T2}, 12, v{T1}\nv_sub_u32 v{T0}, v{T0}, v{T2}")
        k(f"v_bfe_u32 v{T2}, v{T1}, 2, 1\nv_lshlrev_b32 v{T2}, 1, v{T2}\nv_xor_b32 v{T0}, v{T0}, v{T2}\nv_lshlrev_b32 v{VWE+q}, 4, v{T0}")
        k(f"v_and_b32 v{T2}, 7, v{T1}")
        k(f"v_bfe_u32 v{T3}, v{T1}, 3, 1\nv_mad_u32_u24 v{T2}, v{T3}, 20, v{T2}")
        k(f"v_bfe_u32 v{T3}, v{T1}, 4, 1\nv_lshl_add_u32 v{T2}, v{T3}, 3, v{T2}")
        k(f"v_mul_u32_u24 v{T2}, 1152, v{T2}\nv_add_u32 v{VWD+q}, v{T2}, v{VWE+q}")
    k(f"s_mul_i32 s33, s25, 192\ns_mul_i32 s30, s29, {8*36*1152}\ns_add_u32 s39, s33, s30\ns_mul_i32 s30, s29, {36*1152}\ns_add_u32 s33, s33, s30")
    k(f"s_mul_i32 s35, s29, 6144\ns_add_u32 s35, s35, {WB}")
    srd(k, 16, PWO, D_ * D_ * 2)
    def issue_w(st, slot):
        out = []
        if st == 4:
            for q in range(6):
                out.append(f"v_add_u32 v{T0}, {q*64}, v{VL}\nv_mul_u32_u24 v{T1}, 5462, v{T0}\nv_lshrrev_b32 v{T1}, 16, v{T1}\n"
                           f"v_bfe_u32 v{T2}, v{T1}, 2, 2\nv_lshlrev_b32 v{T2}, 1, v{T2}\nv_bfe_u32 v{T3}, v{T1}, 4, 1\nv_add_u32 v{T2}, v{T2}, v{T3}\nv_mul_u32_u24 v{T2}, 36, v{T2}\n"
                           f"v_and_b32 v{T3}, 3, v{T1}\nv_add3_u32 v{T2}, v{T2}, v{T3}, 16\nv_mul_u32_u24 v{T2}, 1152, v{T2}\nv_add_u32 v{VWE+q}, v{T2}, v{VWE+q}")
        out += [dma(35, slot * WS_ + q * 1024, (VWD if st < 8 else VWE) + q, 16, 33 if st < 8 else 39) for q in range(6)]
        out.append(f"s_add_u32 s33, s33, {72*1152}")
        return out
    issue_w.special_from = 0
    producer_loop(k, N, R, 6, issue_w, NXT, first=4)
    k(f"{PO}:")
    VO = 10
    k(f"v_lshrrev_b32 v{T0}, 1, v{VG}\nv_lshlrev_b32 v{T0}, 16, v{T0}\nv_and_b32 v{T1}, 1, v{VG}\nv_lshl_add_u32 v{T0}, v{T1}, 9, v{T0}\nv_lshl_add_u32 v{T0}, v{VI}, 4, v{T0}")
    k(f"v_lshrrev_b32 v{T1}, 2, v{VL}\nv_lshlrev_b32 v{T1}, 13, v{T1}\nv_and_b32 v{T2}, 3, v{VL}\nv_lshl_add_u32 v{T1}, v{T2}, 4, v{T1}")
    for q in range(4): k(f"v_add_u32 v{VO+q}, {(q>>1)*1024+(q&1)*256}, v{T0}\nv_add_u32 v{VO+4+q}, {q*64}, v{T1}")
    k(f"s_lshl_b32 s32, s24, 11\ns_lshl_b32 s30, s29, 17\ns_add_u32 s32, s32, s30\ns_add_u32 s32, s32, {WS_OM}")
    k(f"s_lshl_b32 s38, s24, 8\ns_add_u32 s38, s38, s30\ns_add_u32 s38, s38, {WS_O8}\ns_lshl_b32 s34, s29, 12")
    k(f"s_lshr_b32 s30, s24, 1\ns_lshl_b32 s30, s30, 11\ns_add_u32 s30, s30, {F2}\nv_lshlrev_b32 v{T0}, 7, v{VL}\ns_mov_b64 exec, 0xffff")
    poll(k, T0, T1, 1, 20, 30)
    k("s_mov_b64 exec, -1\nSTAMP 5")
    def issue_o(st, slot):
        return [dma(34, st * 8192 + q * 1024, VO + q + (4 if st == 8 else 0), 20, 32 if st < 8 else 38, SC) for q in range(4)] + ["s_add_u32 s32, s32, 262144"]
    issue_o.special_from = 0
    producer_loop(k, N, 9, 4, issue_o, NXT, first=3)
    k(f"{PF}:\ns_sub_u32 s29, s2, 192")
    pf(k, "PF3", 29, 64, 512, 10)
    k(f"s_branch {NXT}")

def p4(k, ENT, NXT):
    STG = 28672; R = 4; N = 32
    PROD = k.lab("P4PROD"); PF = k.lab("P4PF"); PA = k.lab("P4PA")
    k(f"{ENT}:\nSTAMP 6")
    k(f"s_cmp_ge_u32 s11, 27\ns_cbranch_scc1 {PF}")
    k("s_mul_i32 s24, s11, 10923\ns_lshr_b32 s24, s24, 16\ns_mul_i32 s25, s24, 6\ns_sub_u32 s25, s11, s25")
    k("s_and_b32 s29, s10, 1\ns_mul_i32 s30, s29, 5\ns_add_u32 s24, s24, s30")
    k("s_mul_i32 s30, s29, 3\ns_add_u32 s30, s30, s25")
    k("s_cmp_ge_u32 s11, 24\ns_cselect_b32 s24, 4, s24\ns_cselect_b32 s25, s30, s25\ns_mov_b32 s47, s24")
    k("s_lshr_b32 s30, s10, 1\ns_mul_i32 s30, s30, 9\ns_add_u32 s24, s24, s30")
    ids16(k)
    k(f"s_cmp_ge_u32 s28, 4\ns_cbranch_scc1 {PROD}")
    k("s_lshr_b32 s26, s28, 1\ns_and_b32 s27, s28, 1")
    VTR, VHR, B1, ACC, WF, HF = 12, 20, 26, 36, 84, 116
    srd(k, 16, PB1, F_ * 2)
    k(f"v_lshlrev_b32 v{T0}, 3, v{VG}\ns_lshl_b32 s30, s24, 8\ns_lshl_b32 s31, s26, 7\ns_add_u32 s30, s30, s31")
    for f4 in range(4):
        k(f"buffer_load_dwordx2 {v(B1+2*f4,2)}, v{T0}, s[16:19], s30 offen offset:{f4*32}")
    k(f"v_bfe_u32 v{T0}, v{VL}, 2, 2\nv_lshl_add_u32 v{T0}, v{VG}, 2, v{T0}")
    k(f"v_and_b32 v{T1}, 7, v{T0}\nv_lshlrev_b32 v{T0}, 8, v{T0}\nv_and_b32 v{T2}, 3, v{VL}\nv_lshl_add_u32 v{T0}, v{T2}, 3, v{T0}")
    k("s_lshl_b32 s30, s26, 2")
    for f4 in range(4):
        k(f"s_add_u32 s31, s30, {f4}\nv_xor_b32 v{T2}, s31, v{T1}\nv_lshl_add_u32 v{VTR+f4}, v{T2}, 5, v{T0}\nv_add_u32 v{VTR+4+f4}, {2*STG}, v{VTR+f4}")
    k(f"s_mul_i32 s30, s27, 3072\ns_add_u32 s30, s30, 16384\nv_lshlrev_b32 v{VHR}, 4, v{VL}\nv_add_u32 v{VHR}, s30, v{VHR}\nv_add_u32 v{VHR+1}, {2*STG}, v{VHR}")
    for r in range(48): k(f"v_mov_b32 v{ACC+r}, 0")
    k(f"s_mul_i32 s31, s25, 6\ns_mul_i32 s38, s27, 3\ns_add_u32 s31, s31, s38\ns_mul_i32 s31, s31, {144*1024}")
    k(f"s_lshl_b32 s38, s24, 12\ns_add_u32 s31, s31, s38\ns_lshl_b32 s38, s26, 11\ns_add_u32 s31, s31, s38\ns_add_u32 s40, s31, {WS_U}")
    k(f"s_lshr_b32 s30, s10, 1\ns_mul_i32 s30, s30, 6\ns_add_u32 s30, s30, s25\ns_mul_i32 s30, s30, 9\ns_add_u32 s30, s30, s47\ns_lshl_b32 s30, s30, 7\ns_add_u32 s41, s30, {F4}")
    def reads(st, slot, ks, rs):
        hi = slot >> 1; off = (slot & 1) * STG
        out = []
        for f4 in range(4):
            for hf in range(2):
                out.append(f"ds_read_b64_tr_b16 {v(WF+rs*16+f4*4+hf*2,2)}, v{VTR+4*hi+f4} offset:{off+ks*8192+hf*4096}")
            if f4 < 3:
                out.append(f"ds_read_b128 {v(HF+rs*12+f4*4,4)}, v{VHR+hi} offset:{off+ks*6144+f4*1024}")
        return out
    def mf(st, ks, rs):
        return [f"v_mfma_f32_16x16x32_bf16 {v(ACC+(f4*3+dt)*4,4)}, {v(WF+rs*16+f4*4,4)}, {v(HF+rs*12+dt*4,4)}, {v(ACC+(f4*3+dt)*4,4)}"
                for f4 in range(4) for dt in range(3)]
    consumer_loop(k, N, R, reads, mf, per=1)
    k("STAMP 7")
    c1 = -2.0 * math.sqrt(2.0 / math.pi) * math.log2(math.e)
    c2 = c1 * 0.044715
    k(f"s_mov_b32 s30, {f32(c2)}\nv_mov_b32 v{T2}, {f32(c1)}")
    BB = WF
    k("s_waitcnt vmcnt(0)")
    for f4 in range(4):
        for h2 in range(2):
            k(f"v_lshlrev_b32 v{BB+f4*4+h2*2}, 16, v{B1+f4*2+h2}\nv_and_b32 v{BB+f4*4+h2*2+1}, 0xffff0000, v{B1+f4*2+h2}")
    k(f"v_lshlrev_b32 v{T0}, 4, v{VL}")
    TT = WF + 16; PKD = HF
    for dt in range(3):
        for pr in range(2):
            xb = [ACC + ((2 * pr + h) * 3 + dt) * 4 for h in range(2)]
            xs = [xb[h] + r for h in range(2) for r in range(4)]
            for h in range(2):
                for h2 in range(2): k(f"v_pk_add_f32 {v(xb[h]+2*h2,2)}, {v(xb[h]+2*h2,2)}, {v(BB+(2*pr+h)*4+2*h2,2)}")
            for h in range(2):
                for h2 in range(2): k(f"v_pk_mul_f32 {v(TT+4*h+2*h2,2)}, {v(xb[h]+2*h2,2)}, {v(xb[h]+2*h2,2)}")
            for n in range(8): k(f"v_fma_f32 v{TT+n}, v{TT+n}, s30, v{T2}")
            for h in range(2):
                for h2 in range(2): k(f"v_pk_mul_f32 {v(TT+4*h+2*h2,2)}, {v(TT+4*h+2*h2,2)}, {v(xb[h]+2*h2,2)}")
            for n in range(8): k(f"v_exp_f32 v{TT+n}, v{TT+n}")
            for n in range(8): k(f"v_add_f32 v{TT+n}, 1.0, v{TT+n}")
            for n in range(8): k(f"v_rcp_f32 v{TT+n}, v{TT+n}")
            for h in range(2):
                for h2 in range(2): k(f"v_pk_mul_f32 {v(xb[h]+2*h2,2)}, {v(xb[h]+2*h2,2)}, {v(TT+4*h+2*h2,2)}")
            o = PKD + (dt * 2 + pr) * 4
            for n in range(4): k(f"v_cvt_pk_bf16_f32 v{o+n}, v{xs[2*n]}, v{xs[2*n+1]}")
            k(f"buffer_store_dwordx4 {v(o,4)}, v{T0}, s[20:23], s40 offen offset:{pr*1024}{WT}")
        k(f"s_add_u32 s40, s40, {144*1024}")
    k(f"v_mov_b32 v{T1}, 0\nv_mov_b32 v{T2}, 1\ns_waitcnt vmcnt(0)")
    last_wave_flag(k, T1, T2, T3, LCNT + 8, 20, 41)
    k(f"s_branch {NXT}")
    k(f"{PROD}:\ns_and_b32 s26, s28, 1\ns_cmp_ge_u32 s28, 6\ns_cbranch_scc1 {PA}")
    VD = 10
    for q in range(2):
        k(f"v_add_u32 v{T0}, {4*q}, v{VG}")
        k(f"v_lshlrev_b32 v{T1}, 1, v{T0}\nv_xor_b32 v{T1}, v{T1}, v{VI}\nv_lshlrev_b32 v{T1}, 4, v{T1}")
        k(f"v_mul_u32_u24 v{T0}, 9216, v{T0}\nv_add_u32 v{VD+q}, v{T0}, v{T1}")
    for q in range(2, 8): k(f"v_add_u32 v{VD+q}, {8*9216}, v{VD+q-2}")
    k(f"s_lshl_b32 s32, s24, 8\ns_mul_i32 s30, s26, {32*9216}\ns_add_u32 s32, s32, s30\ns_lshl_b32 s34, s26, 13")
    srd(k, 12, PW1, S_ * F_ * 2)
    producer_loop(k, N, R, 8, lambda st, slot: [dma(34, slot * STG + q * 1024, VD + q, 12, 32) for q in range(8)] + [f"s_add_u32 s32, s32, {64*9216}"], NXT, first=int(os.environ.get("FIRST4", 2)))
    k(f"{PA}:")
    k(f"v_lshlrev_b32 v{VD}, 4, v{VL}")
    for q in range(1, 6): k(f"v_add_u32 v{VD+q}, 65536, v{VD+q-1}")
    k(f"s_mul_i32 s33, s25, {6*65536}\ns_lshl_b32 s30, s26, 10\ns_add_u32 s33, s33, s30\ns_add_u32 s33, s33, {WS_HN}")
    k("s_mul_i32 s35, s26, 6144\ns_add_u32 s35, s35, 16384")
    k(f"s_lshl_b32 s30, s25, 12\ns_add_u32 s30, s30, {F3}\nv_lshlrev_b32 v{T0}, 7, v{VL}\ns_mov_b32 exec_hi, 0")
    poll(k, T0, 20, 1, 20, 30)
    k("s_mov_b32 exec_hi, -1\nSTAMP 7")
    producer_loop(k, N, R, 6, lambda st, slot: [dma(35, slot * STG + q * 1024, VD + q, 20, 33, SC) for q in range(6)] + ["s_add_u32 s33, s33, 2048"], NXT)
    k(f"{PF}:\ns_sub_u32 s29, s2, 216")
    pf(k, "PF4", 29, 40, 512, 10)
    k(f"s_branch {NXT}")

def p5(k, ENT):
    STG = 34816; R = 4; N = 18
    PROD = k.lab("P5PROD"); PA = k.lab("P5PA"); FIN = k.lab("FIN")
    k(f"{ENT}:\nSTAMP 8")
    k("s_lshr_b32 s26, s10, 1\ns_and_b32 s25, s11, 3\ns_lshr_b32 s24, s11, 2")
    k("s_and_b32 s29, s10, 1\ns_lshl_b32 s29, s29, 3\ns_add_u32 s24, s24, s29\ns_and_b32 s29, s26, 1")
    ids16(k)
    k(f"s_cmp_ge_u32 s28, 4\ns_cbranch_scc1 {PROD}")
    VTR = 10; VUR = VTR + 2 * R; B2 = VUR + R
    IDN, HR, UF = 24, 28, 48
    WF = UF + 72; ACC = WF + 16
    srd(k, 16, PB2, S_ * 2)
    srd(k, 40, POUT, S_ * D_ * 2)
    k(f"s_lshl_b32 s30, s24, 8\ns_lshl_b32 s31, s28, 6\ns_add_u32 s30, s30, s31\ns_lshl_b32 s31, s29, 5\ns_add_u32 s30, s30, s31\nv_lshlrev_b32 v{T0}, 1, v{VI}")
    k(f"buffer_load_ushort v{B2}, v{T0}, s[16:19], s30 offen")
    k(f"v_lshlrev_b32 v{T3}, 4, v{VL}")
    k(f"s_mul_i32 s49, s25, {9*65536}\ns_lshl_b32 s32, s24, 12\ns_add_u32 s49, s49, s32\ns_lshl_b32 s32, s28, 10\ns_add_u32 s49, s49, s32\ns_add_u32 s49, s49, {WS_H}")
    k(f"s_lshr_b32 s32, s26, 1\ns_mul_i32 s32, s32, {5*65536}\ns_add_u32 s49, s49, s32")
    k(f"v_bfe_u32 v{T0}, v{VL}, 2, 2\nv_lshl_add_u32 v{T0}, v{VG}, 2, v{T0}")
    k(f"v_and_b32 v{T1}, 7, v{T0}\nv_lshlrev_b32 v{T0}, 8, v{T0}\nv_and_b32 v{T2}, 3, v{VL}\nv_lshl_add_u32 v{T0}, v{T2}, 3, v{T0}")
    k("s_lshl_b32 s30, s28, 1\ns_add_u32 s30, s30, s29")
    for l in range(2):
        k(f"s_xor_b32 s31, s30, {l}\nv_xor_b32 v{T2}, s31, v{T1}\nv_lshl_add_u32 v{VTR+l}, v{T2}, 5, v{T0}")
        for sl in range(1, R): k(f"v_add_u32 v{VTR+2*sl+l}, {sl*STG}, v{VTR+l}")
    k(f"v_lshlrev_b32 v{VUR}, 4, v{VL}\nv_add_u32 v{VUR}, 16384, v{VUR}")
    for sl in range(1, R): k(f"v_add_u32 v{VUR+sl}, {sl*STG}, v{VUR}")
    k(f"v_lshlrev_b32 v{T0}, 2, v{VG}\nv_sub_u32 v{T0}, v{VI}, v{T0}\nv_mov_b32 v{T1}, 0x3f80\nv_mov_b32 v{T2}, 0x3f800000")
    k("s_cmp_eq_u32 s29, 0\ns_cselect_b64 s[38:39], -1, 0")
    for j2 in range(2):
        k(f"v_cmp_eq_u32 vcc, {2*j2}, v{T0}\nv_cndmask_b32 v{UF}, 0, v{T1}, vcc")
        k(f"v_cmp_eq_u32 vcc, {2*j2+1}, v{T0}\nv_cndmask_b32 v{UF}, v{UF}, v{T2}, vcc")
        k(f"v_cndmask_b32 v{IDN+j2}, 0, v{UF}, s[38:39]\nv_cndmask_b32 v{IDN+2+j2}, v{UF}, 0, s[38:39]")
    for r in range(72): k(f"v_mov_b32 v{ACC+r}, 0")
    k(f"s_lshl_b32 s32, s24, 2\ns_add_u32 s32, s32, s25")
    k(f"s_mul_i32 s33, s32, {48*2560}\ns_mul_i32 s30, s28, 2560\ns_add_u32 s33, s33, s30\ns_add_u32 s33, s33, {WS_P}")
    for x in (1, 2, 3):
        k(f"s_xor_b32 s30, s26, {x}\ns_sub_u32 s31, s26, s30\ns_sub_u32 s31, s31, 1\ns_and_b32 s31, s31, 3")
        k(f"s_mul_i32 s30, s30, 3\ns_add_u32 s30, s30, s31\ns_mul_i32 s30, s30, {4*2560}\ns_add_u32 s{44+x}, s30, s33")
    k(f"s_mul_i32 s30, s26, {12*2560}\ns_add_u32 s33, s33, s30")
    k(f"s_lshl_b32 s35, s32, 11\ns_lshl_b32 s30, s28, 9\ns_add_u32 s35, s35, s30\ns_add_u32 s35, s35, {F5}\ns_lshl_b32 s30, s26, 7\ns_add_u32 s34, s30, s35")
    k(f"s_lshl_b32 s48, s24, 7\ns_lshl_b32 s31, s28, 5\ns_add_u32 s48, s48, s31\ns_lshl_b32 s31, s29, 4\ns_add_u32 s48, s48, s31\ns_mul_i32 s48, s48, 1152\ns_mul_i32 s31, s25, 288\ns_add_u32 s48, s48, s31")
    firstr = [True]
    def reads(st, slot, ks, rs):
        out = []
        for l in range(2):
            for hf in range(2):
                out.append(f"ds_read_b64_tr_b16 {v(WF+rs*8+l*4+hf*2,2)}, v{VTR+2*slot+l} offset:{ks*8192+hf*4096}")
        for d in range(9):
            out.append(f"ds_read_b128 {v(UF+rs*36+d*4,4)}, v{VUR+slot} offset:{ks*9216+d*1024}")
        if firstr[0]:
            firstr[0] = False
            for d in range(5): out.append(f"buffer_load_dwordx4 {v(HR+4*d,4)}, v{T3}, s[20:23], s49 offen{SC}\ns_add_u32 s49, s49, 65536")
        return out
    def mf(st, ks, rs):
        return [f"v_mfma_f32_16x16x32_bf16 {v(ACC+(d*2+l)*4,4)}, {v(UF+rs*36+d*4,4)}, {v(WF+rs*8+l*4,4)}, {v(ACC+(d*2+l)*4,4)}"
                for d in range(9) for l in range(2)]
    consumer_loop(k, N, R, reads, mf, per=1, final_barrier=False)
    k("STAMP 9")
    V16, V8, VZ, VO = VTR, VTR + 1, VTR + 2, VTR + 3
    k(f"v_lshlrev_b32 v{V16}, 4, v{VL}\nv_lshlrev_b32 v{V8}, 3, v{VL}\nv_mov_b32 v{VZ}, 0\nv_mov_b32 v{T2}, 1\ns_waitcnt vmcnt(0)")
    GA, GB = [0, 1, 2, 3, 4], [5, 6, 7, 8]
    def epi(aa):
        own, oth = (GA, GB) if aa == 0 else (GB, GA)
        PK = UF
        n = 0
        for x, grp, l in ((2, oth, 0), (3, oth, 1), (1, own, 1)):
            for c in range(0, len(grp), 2):
                ds = grp[c:c + 2]
                for e, d in enumerate(ds):
                    ac = ACC + (d * 2 + l) * 4
                    k(f"v_cvt_pk_bf16_f32 v{PK+n+2*e}, v{ac}, v{ac+1}\nv_cvt_pk_bf16_f32 v{PK+n+2*e+1}, v{ac+2}, v{ac+3}")
                if len(ds) == 2: k(f"buffer_store_dwordx4 {v(PK+n,4)}, v{V16}, s[20:23], s{44+x} offen offset:{c*512}{WT}")
                else: k(f"buffer_store_dwordx2 {v(PK+n,2)}, v{V8}, s[20:23], s{44+x} offen offset:{c*512}{WT}")
                n += 4
        for e, d in enumerate(own):
            ac = v(ACC + d * 8, 4)
            k(f"v_mfma_f32_16x16x32_bf16 {ac}, {v(HR+4*e,4)}, {v(IDN,4)}, {ac}")
        k(f"v_lshlrev_b32 v{B2}, 16, v{B2}")
        k(f"v_mul_u32_u24 v{VO}, 1152, v{VI}\nv_lshl_add_u32 v{VO}, v{VG}, 3, v{VO}")
        k("s_waitcnt vmcnt(0)")
        set_flag(k, VZ, T2, 20, 34)
        for d in own:
            for h2 in range(2): k(f"v_pk_add_f32 {v(ACC+d*8+2*h2,2)}, {v(ACC+d*8+2*h2,2)}, {v(B2-(B2&1),2)} op_sel:[0,{B2&1}] op_sel_hi:[1,{B2&1}]")
        k(f"v_lshlrev_b32 v{T0}, 7, v{VL}\ns_mov_b64 exec, 0xf")
        poll(k, T0, HR, 1, 20, 35)
        k("s_mov_b64 exec, -1")
        k("STAMP 10")
        RR = UF + 40
        chunks = [own[c:c + 2] for c in range(0, len(own), 2)]
        k(f"s_add_u32 s30, s33, {4*2560}\ns_add_u32 s31, s33, {8*2560}")
        for ci, ds in enumerate(chunks):
            for sl, so in enumerate((33, 30, 31)):
                r = RR + (ci * 3 + sl) * 4
                if len(ds) == 2: k(f"buffer_load_dwordx4 {v(r,4)}, v{V16}, s[20:23], s{so} offen offset:{ci*1024} sc0 sc1")
                else: k(f"buffer_load_dwordx2 {v(r,2)}, v{V8}, s[20:23], s{so} offen offset:{ci*1024} sc0 sc1")
        nst = 0
        for ci, ds in enumerate(chunks):
            k(f"s_waitcnt vmcnt({3*(len(chunks)-1-ci)+nst})")
            for e, d in enumerate(ds):
                o = ACC + d * 8
                for sl in range(3):
                    for h2 in range(2):
                        p = RR + (ci * 3 + sl) * 4 + 2 * e + h2
                        t = PK + (sl * 2 + h2) * 2
                        k(f"v_lshlrev_b32 v{t}, 16, v{p}\nv_and_b32 v{t+1}, 0xffff0000, v{p}")
                for sl in range(3):
                    for h2 in range(2):
                        t = PK + (sl * 2 + h2) * 2
                        k(f"v_pk_add_f32 {v(o+2*h2,2)}, {v(o+2*h2,2)}, {v(t,2)}")
                k(f"v_cvt_pk_bf16_f32 v{o}, v{o}, v{o+1}\nv_cvt_pk_bf16_f32 v{o+1}, v{o+2}, v{o+3}")
                k(f"buffer_store_dwordx2 {v(o,2)}, v{VO}, s[40:43], s48 offen offset:{d*32}")
                nst += 1
        k("s_endpgm")
    A1 = k.lab("A1")
    k(f"s_cmp_ge_u32 s26, 2\ns_cbranch_scc1 {A1}")
    epi(0)
    k(f"{A1}:")
    epi(1)
    k(f"{PROD}:\ns_and_b32 s29, s28, 1\ns_cmp_ge_u32 s28, 6\ns_cbranch_scc1 {PA}")
    VD = 10
    for q in range(2):
        k(f"v_add_u32 v{T0}, {4*q}, v{VG}")
        k(f"v_lshlrev_b32 v{T1}, 1, v{T0}\nv_xor_b32 v{T1}, v{T1}, v{VI}\nv_lshlrev_b32 v{T1}, 4, v{T1}")
        k(f"v_lshl_add_u32 v{VD+q}, v{T0}, 12, v{T1}")
    for q in range(2, 8): k(f"v_add_u32 v{VD+q}, {8*4096}, v{VD+q-2}")
    k(f"s_mul_i32 s32, s26, {1152*4096}\ns_lshl_b32 s30, s29, 17\ns_add_u32 s32, s32, s30\ns_lshl_b32 s30, s24, 8\ns_add_u32 s32, s32, s30\ns_lshl_b32 s34, s29, 13")
    srd(k, 12, PW2, F_ * S_ * 2)
    producer_loop(k, N, R, 8, lambda st, slot: [dma(34, slot * STG + q * 1024, VD + q, 12, 32) for q in range(8)] + [f"s_add_u32 s32, s32, {64*4096}"], FIN, final_barrier=False, first=int(os.environ.get("FIRST5", 2)))
    k(f"{PA}:")
    k(f"v_lshlrev_b32 v{VD}, 4, v{VL}")
    for d in range(1, 9): k(f"v_add_u32 v{VD+d}, {144*1024}, v{VD+d-1}")
    k(f"s_mul_i32 s33, s25, {9*144*1024}\ns_mul_i32 s30, s26, {36*1024}\ns_add_u32 s33, s33, s30\ns_lshl_b32 s30, s29, 10\ns_add_u32 s33, s33, s30\ns_add_u32 s33, s33, {WS_U}")
    k("s_mul_i32 s35, s29, 9216\ns_add_u32 s35, s35, 16384")
    k(f"s_mul_i32 s30, s25, 3\ns_lshr_b32 s30, s30, 1\ns_mul_i32 s31, s26, 6\ns_add_u32 s30, s30, s31\ns_mul_i32 s30, s30, {9*128}\ns_add_u32 s30, s30, {F4}")
    k(f"v_lshlrev_b32 v{T0}, 7, v{VL}\ns_mov_b64 exec, 0x3ffff")
    poll(k, T0, 20, 1, 20, 30)
    k("s_mov_b64 exec, -1\nSTAMP 9")
    producer_loop(k, N, R, 9, lambda st, slot: [dma(35, slot * STG + q * 1024, VD + q, 20, 33, SC) for q in range(9)] + ["s_add_u32 s33, s33, 2048"], FIN, final_barrier=False)
    k(f"{FIN}:\ns_endpgm")

NAME = "sequential_preLN__sliding_block__mixer_token_mlp__prompt_kernel"
def gen_mega():
    k = Kern(NAME, 512, 256, LCNT + 64)
    k.lab = (lambda f: (lambda base="L": f(base).replace(NAME[:-7], "m")))(k.lab)
    END = k.lab("END")
    k(f"s_cmp_ge_u32 s2, 256\ns_cbranch_scc1 {END}")
    k("s_load_dwordx16 s[64:79], s[0:1], 0\ns_load_dwordx4 s[80:83], s[0:1], 64\ns_load_dwordx2 s[84:85], s[0:1], 80")
    lane_ids(k, VL, 2, 28)
    k("s_and_b32 s10, s2, 7\ns_lshr_b32 s11, s2, 3")
    k(f"v_lshlrev_b32 v{T0}, 2, v{VL}\nv_add_u32 v{T0}, {LCNT}, v{T0}\nv_mov_b32 v{T1}, 0\ns_mov_b64 exec, 0xffff\nds_write_b32 v{T0}, v{T1}\ns_mov_b64 exec, -1")
    E2a, E2b, E3, E4, E5 = [k.lab(n) for n in ("P2A", "P2B", "P3", "P4", "P5")]
    p1(k, (E2a, E2b))
    p2(k, (E2a, E2b), E3)
    p3(k, E3, E4)
    p4(k, E4, E5)
    p5(k, E5)
    k(f"{END}:\ns_endpgm")
    return k
```

```python
from common import *
import os

def producer_loop(k, N, R, P, issue, nxt, first=2, cnt=36, tail=None, final_barrier=True, gate=None):
    special = getattr(issue, "special_from", N)
    def do(st):
        if gate: gate(st)
        for t in issue(st, st % R): k(t)
    first = min(first, R)
    for st in range(first): do(st)
    k(f"s_waitcnt vmcnt({(first - 1) * P})\ns_barrier")
    issued = first
    for st in range(issued, min(N, R)): do(st)
    issued = min(N, R)
    k(f"s_waitcnt vmcnt({(issued - 2) * P})\ns_barrier")
    b = 1
    nsteady = N - R
    nloop = 0
    while gate is None and (nloop + 1) * R <= nsteady and R + (nloop + 1) * R - 1 < special: nloop += 1
    if nloop >= 2:
        L = k.lab("PL")
        k(f"s_mov_b32 s{cnt}, {nloop}\n{L}:")
        for i in range(R):
            do(R + i)
            k(f"s_waitcnt vmcnt({(R - 2) * P})\ns_barrier")
        k(f"s_sub_u32 s{cnt}, s{cnt}, 1\ns_cmp_lg_u32 s{cnt}, 0\ns_cbranch_scc1 {L}")
        b += nloop * R; issued += nloop * R
    while b < N - 1:
        if issued < N:
            do(issued); issued += 1
        k(f"s_waitcnt vmcnt({(issued - (b + 1) - 1) * P})")
        if b == N - 2 and tail: tail(k)
        k("s_barrier")
        b += 1
    if final_barrier: k("s_barrier")
    k(f"s_branch {nxt}")

def consumer_loop(k, N, R, reads, mf, cnt=36, per=2, special_from=None, final_barrier=True):
    special_from = N if special_from is None else special_from
    k("s_barrier")
    for t in reads(0, 0, 0, 0): k(t)
    def stage(st, last=False):
        slot = st % R
        k("s_waitcnt lgkmcnt(0)")
        for t in interleave(mf(st, 0, 0), reads(st, slot, 1, 1), 0, per): k(t)
        fill = []
        if not last:
            k("s_waitcnt lgkmcnt(0)\ns_barrier")
            fill = reads(st + 1, (slot + 1) % R, 0, 0)
        else:
            k("s_waitcnt lgkmcnt(0)")
            if final_barrier: k("s_barrier")
        for t in interleave(mf(st, 1, 1), fill, 0, per): k(t)
    nloop = 0
    while (nloop + 1) * R < N and (nloop + 1) * R < special_from: nloop += 1
    st = 0
    if nloop >= 2:
        L = k.lab("CL")
        k(f"s_mov_b32 s{cnt}, {nloop}\n{L}:")
        for i in range(R): stage(i)
        k(f"s_sub_u32 s{cnt}, s{cnt}, 1\ns_cmp_lg_u32 s{cnt}, 0\ns_cbranch_scc1 {L}")
        st = nloop * R
    while st < N:
        stage(st, st == N - 1); st += 1

def dma(m0base, off, vaddr, srd, soff, flags=""):
    return f"s_add_u32 m0, s{m0base}, {off}\ns_nop 0\nbuffer_load_dwordx4 v{vaddr}, s[{srd}:{srd+3}], s{soff} offen{flags} lds"

def poll(k, vaddr, vdst, nd, srd, soff, cnt=37, sleep=True):
    P, G = k.lab("POLL"), k.lab("GO")
    op = {1: "dword", 2: "dwordx2", 4: "dwordx4"}[nd]
    k(f"s_mov_b32 s{cnt}, 0x100000\n{P}:")
    k(f"buffer_load_{op} {v(vdst, nd)}, v{vaddr}, s[{srd}:{srd+3}], s{soff} offen sc0 sc1\ns_waitcnt vmcnt(0)")
    for i in range(1, nd): k(f"v_min_u32 v{vdst}, v{vdst}, v{vdst+i}")
    k(f"v_cmp_eq_u32 vcc, 0, v{vdst}\ns_sub_u32 s{cnt}, s{cnt}, 1\ns_cmp_eq_u32 s{cnt}, 0\ns_cbranch_scc1 {G}")
    if sleep:
        k(f"s_cbranch_vccz {G}\ns_sleep 1\ns_branch {P}\n{G}:")
    else:
        k(f"s_cbranch_vccnz {P}\n{G}:")

def set_flag(k, vz, vone, srd, soff):
    k(f"s_mov_b64 exec, 1\nbuffer_store_dword v{vone}, v{vz}, s[{srd}:{srd+3}], s{soff} offen sc0 sc1\ns_mov_b64 exec, -1")


def last_wave_flag(k, vz, vone, vt, ldsoff, srd, soff, n=4):
    S = k.lab("NL")
    k(f"v_mov_b32 v{vt}, {ldsoff}\ns_mov_b64 exec, 1\nds_add_rtn_u32 v{vt}, v{vt}, v{vone}\ns_waitcnt lgkmcnt(0)\nv_readfirstlane_b32 s31, v{vt}")
    k(f"s_cmp_lg_u32 s31, {n-1}\ns_cbranch_scc1 {S}\nbuffer_store_dword v{vone}, v{vz}, s[{srd}:{srd+3}], s{soff} offen sc0 sc1\n{S}:\ns_mov_b64 exec, -1")
```

```python
import sys, os
sys.path.insert(0, "gen")
from common import *
from mega import gen_mega
HDR = open("sequential_preLN__sliding_block__mixer_token_mlp__prompt.s.ref").read().split("; Override launch")[0]
k = gen_mega()
dst = sys.argv[1] if len(sys.argv) > 1 else "sequential_preLN__sliding_block__mixer_token_mlp__prompt.s"
if len(sys.argv) > 2 and sys.argv[2] == "ts": k.instrument_mega(64 * MB)
if len(sys.argv) > 2 and sys.argv[2] == "dbg": k.instrument_mega_dbg()
b, kd = k.finish()
print(k.stats, file=sys.stderr)
out = HDR + f"; @launch grid=({k.grid},1,1) block=({k.block},1,1) lds={k.lds}\n" + '.amdgcn_target "amdgcn-amd-amdhsa--gfx950"\n.text\nL_text_begin:\n' + b + "L_text_end:\n" + kd
open(dst, "w").write(out)
```

```python
import re

def v(i, n=1):
    return f"v{i}" if n == 1 else f"v[{i}:{i+n-1}]"
def a(i, n=1):
    return f"a{i}" if n == 1 else f"a[{i}:{i+n-1}]"
def s(i, n=1):
    return f"s{i}" if n == 1 else f"s[{i}:{i+n-1}]"

_REG = re.compile(r"^(-|abs\()?([vas])(?:(\d+)|\[(\d+):(\d+)\])\)?$")
def regs_of(op):
    op = op.strip()
    if op in ("vcc",): return {("s", 106), ("s", 107)}
    if op == "vcc_lo": return {("s", 106)}
    if op == "vcc_hi": return {("s", 107)}
    if op == "exec": return {("s", 126), ("s", 127)}
    if op == "m0": return {("s", 124)}
    m = _REG.match(op)
    if not m: return set()
    k = m.group(2)
    if m.group(3) is not None: return {(k, int(m.group(3)))}
    return {(k, i) for i in range(int(m.group(4)), int(m.group(5)) + 1)}

TRANS = ("v_exp_f32", "v_log_f32", "v_rcp_f32", "v_rsq_f32", "v_sqrt_f32", "v_sin_f32", "v_cos_f32", "v_rcp_iflag_f32")

class Ins:
    def __init__(self, text):
        self.text = text
        t = text.split(";")[0].strip()
        self.label = None
        self.op = None
        if not t or t.startswith("."):
            return
        if t.endswith(":"):
            self.label = t[:-1]; return
        parts = t.split(None, 1)
        self.op = parts[0]
        rest = parts[1] if len(parts) > 1 else ""
        ops, depth, cur = [], 0, ""
        for ch in rest:
            if ch in "[(": depth += 1
            if ch in "])": depth -= 1
            if ch == "," and depth == 0:
                ops.append(cur.strip()); cur = ""
            else: cur += ch
        if cur.strip(): ops.append(cur.strip())
        self.mods = ""
        if ops:
            last = ops[-1].split(None, 1)
            ops[-1] = last[0]
            self.mods = last[1] if len(last) > 1 else ""
        self.ops = ops
        self.classify()

    def classify(self):
        op, ops = self.op, self.ops
        R = regs_of
        self.kind = "other"; self.dst = set(); self.src = set()
        self.mfma = None; self.dpp = False; self.wide_store = set(); self.lds_dma = False
        if op.startswith("v_mfma"):
            self.kind = "mfma"
            self.passes = 8 if "32x32" in op else 4
            self.dst = R(ops[0]); self.A = R(ops[1]); self.B = R(ops[2]); self.C = R(ops[3])
            self.src = self.A | self.B | self.C
        elif op.startswith("v_"):
            self.kind = "valu"
            base = op.replace("_e32", "").replace("_e64", "").replace("_dpp", "")
            self.base = base
            self.dpp = "_dpp" in op or "row_" in self.mods or "quad_perm" in self.mods
            if base.startswith("v_cmp"):
                self.dst = R(ops[0]); self.src = set().union(*[R(o) for o in ops[1:]])
                if base.startswith("v_cmpx"): self.dst |= R("exec")
            elif base.startswith("v_permlane") and "swap" in base:
                self.dst = R(ops[0]) | R(ops[1]); self.src = set(self.dst)
            elif base in ("v_add_co_u32", "v_sub_co_u32", "v_addc_co_u32", "v_subb_co_u32"):
                self.dst = R(ops[0]) | R(ops[1]); self.src = set().union(*[R(o) for o in ops[2:]])
            else:
                self.dst = R(ops[0]); self.src = set().union(*[R(o) for o in ops[1:]]) if len(ops) > 1 else set()
                if base in ("v_fmac_f32", "v_dot2c_f32_bf16", "v_writelane_b32") or self.dpp: self.src |= self.dst
            self.trans = base in TRANS
        elif op.startswith("ds_"):
            self.kind = "ds"
            if op.startswith("ds_read") or "_rtn_" in op or op.startswith("ds_bpermute") or op.startswith("ds_swizzle") or op.startswith("ds_permute"):
                self.dst = R(ops[0]); self.src = set().union(*[R(o) for o in ops[1:]])
            else:
                self.src = set().union(*[R(o) for o in ops])
        elif op.startswith("buffer_") or op.startswith("global_"):
            self.kind = "vmem"
            allr = [R(o) for o in ops]
            lds = " lds" in (" " + self.mods) or "_lds_" in op
            if lds:
                self.lds_dma = True
                self.src = set().union(*allr) | R("m0")
            elif "_load" in op:
                self.dst = allr[0]; self.src = set().union(*allr[1:])
            elif "_store" in op:
                self.src = set().union(*allr)
                if "x3" in op or "x4" in op:
                    self.wide_store = allr[0] if op.startswith("buffer_") else allr[1]
            elif "atomic" in op:
                self.src = set().union(*allr)
                if "sc0" in self.mods: self.dst = allr[0]
            else:
                self.src = set().union(*allr) if allr else set()
        elif op.startswith("s_"):
            self.kind = "salu"
            if op in ("s_nop", "s_waitcnt", "s_barrier", "s_endpgm", "s_sleep", "s_setprio") or op.startswith("s_cbranch") or op == "s_branch" or op.startswith("s_cmp"):
                self.src = set().union(*[R(o) for o in ops]) if ops else set()
            else:
                self.dst = R(ops[0]) if ops else set()
                self.src = set().union(*[R(o) for o in ops[1:]]) if len(ops) > 1 else set()
                if "saveexec" in op: self.dst |= R("exec")

    def states(self):
        if self.op == "s_nop": return int(self.ops[0], 0) + 1
        return 1

def need(prod, cons):
    n = 0
    vg = lambda st: {r for r in st if r[0] in "va"}
    sg = lambda st: {r for r in st if r[0] == "s"}
    if prod.kind == "valu":
        pv, ps = vg(prod.dst), sg(prod.dst)
        if cons.kind == "mfma" and pv & cons.src: n = max(n, 2)
        if cons.kind == "valu":
            if prod.trans and (pv & cons.src) : n = max(n, 1)
            if cons.base in ("v_readfirstlane_b32", "v_readlane_b32") and pv & cons.src: n = max(n, 1)
            if cons.base.startswith("v_permlane") and pv & cons.src: n = max(n, 2)
            if cons.dpp and pv & cons.src: n = max(n, 2)
            if ps & cons.src:
                n = max(n, 4 if cons.base in ("v_readlane_b32", "v_writelane_b32") else 2)
            if ("s", 126) in ps:
                if cons.dpp: n = max(n, 5)
                if cons.base in ("v_readfirstlane_b32", "v_readlane_b32", "v_writelane_b32") or cons.base.startswith("v_permlane"): n = max(n, 4)
        if cons.kind == "mfma" and ("s", 126) in ps: n = max(n, 4)
        if prod.trans and cons.kind in ("mfma", "vmem", "ds") and pv & cons.src: n = max(n, 2 if cons.kind == "mfma" else 1)
        if cons.kind == "vmem" and ps & cons.src: n = max(n, 5)
        if cons.kind == "salu" and ps & cons.src: n = max(n, 1)
    elif prod.kind == "mfma":
        big = 12 if prod.passes == 8 else 8
        D = prod.dst
        if cons.kind == "mfma":
            if D & (cons.A | cons.B): n = max(n, big)
            if D & cons.C:
                if not (D == cons.C and prod.passes == cons.passes): n = max(n, big - 2)
            elif D & cons.dst: n = max(n, big)
        elif cons.kind in ("valu", "vmem", "ds"):
            if D & (cons.src | cons.dst): n = max(n, big)
        if cons.kind == "valu" and (prod.C & cons.dst): n = max(n, 7 if prod.passes == 8 else 3)
    elif prod.kind == "salu":
        if ("s", 124) in prod.dst and cons.kind == "vmem" and cons.lds_dma: n = max(n, 1)
    if prod.kind == "vmem" and prod.wide_store:
        if cons.kind in ("valu", "mfma", "ds", "vmem") and prod.wide_store & cons.dst: n = max(n, 2)
    return n

MAXAGE = 14

def fix_hazards(lines, name=""):
    ins = [Ins(l) for l in lines]
    labels = {x.label: i for i, x in enumerate(ins) if x.label}
    out = []
    state = []
    snaps = {}
    heads = {}
    inserted = 0
    def step(state, x):
        k = x.states()
        ns = [[p, ag + k] for p, ag in state if ag + k < MAXAGE]
        if x.kind in ("valu", "mfma", "salu") or x.wide_store: ns.append([x, 0])
        return ns
    for i, x in enumerate(ins):
        if x.label:
            for sn in snaps.get(x.label, []):
                state = state + sn
            heads[x.label] = len(out)
            out.append(x); continue
        if x.op is None:
            out.append(x); continue
        req = 0
        for p, ag in state:
            req = max(req, need(p, x) - ag)
        while req > 0:
            k = min(req, 16)
            nop = Ins(f"s_nop {k-1}")
            out.append(nop); state = step(state, nop); inserted += 1
            req -= k
        out.append(x)
        state = step(state, x)
        if x.op.startswith("s_cbranch") or x.op == "s_branch":
            tgt = x.ops[0]
            if tgt.startswith('.'): pass
            elif tgt in heads:
                st = [list(e) for e in state]
                for y in out[heads[tgt]:heads[tgt] + 40]:
                    if y.op is None: continue
                    for p, ag in st:
                        if need(p, y) - ag > 0:
                            raise SystemExit(f"{name}: loop-carried hazard: '{p.text}' -> '{y.text}' short by {need(p, y) - ag}")
                    k = y.states()
                    st = [[p, ag + k] for p, ag in st if ag + k < MAXAGE]
            else:
                snaps.setdefault(tgt, []).append([list(e) for e in state])
            if x.op == "s_branch": state = []
        if x.op == "s_endpgm": state = []
    return [x.text for x in out], inserted

class Kern:
    def __init__(self, name, block, grid, lds):
        self.name, self.block, self.grid, self.lds = name, block, grid, lds
        self.L = []
        self.nv = 0; self.na = 0; self.ns = 0
        self._lab = 0
    def __call__(self, txt):
        for l in txt.split("\n"):
            l = l.strip()
            if l: self.L.append(l)
    def lab(self, base="L"):
        self._lab += 1
        return f"{base}_{self.name[:-7]}_{self._lab}"
    def instrument(self, idx, tsbase):
        L = ["s_memrealtime s[96:97]", "s_memtime s[86:87]", "s_load_dwordx2 s[98:99], s[0:1], 80", "v_lshrrev_b32 v1, 6, v0", "s_mov_b32 s100, s2", "v_readfirstlane_b32 s101, v1", "s_waitcnt lgkmcnt(0)", "s_mov_b32 s88, s96", "s_mov_b32 s90, s96", "s_mov_b32 s92, s96"]
        for l in self.L:
            if l.startswith("STAMP"):
                n = int(l.split()[1])
                L += [f"s_memrealtime s[{88+2*n}:{89+2*n}]"]
                continue
            if l == "s_endpgm":
                L += ["s_waitcnt vmcnt(0) lgkmcnt(0)", "s_memrealtime s[94:95]", "s_memtime s[84:85]", "s_mov_b64 exec, 1", "s_lshl_b32 s100, s100, 4", "s_add_u32 s100, s100, s101", "s_lshl_b32 s100, s100, 5",
                      f"s_add_u32 s100, s100, {tsbase + idx * 262144}", "v_mov_b32 v1, s100", "s_waitcnt lgkmcnt(0)", "v_mov_b32 v4, s96", "v_mov_b32 v5, s94", "v_mov_b32 v6, s88", "v_mov_b32 v7, s90",
                      "global_store_dwordx4 v1, v[4:7], s[98:99]", "v_mov_b32 v8, s92", "s_sub_u32 s84, s84, s86", "v_mov_b32 v9, s84", "global_store_dwordx2 v1, v[8:9], s[98:99] offset:16"]
            L.append(l)
        self.L = L
    def instrument_mega_dbg(self):
        def st(n): return ["s_memrealtime s[100:101]", "s_waitcnt lgkmcnt(0)", f"v_writelane_b32 v255, s100, {n}"]
        L = ["v_mov_b32 v255, 0"] + st(0)
        n = 0
        for l in self.L:
            if l.startswith("STAMP"):
                L += st(int(l.split()[1])); continue
            if l == "s_endpgm":
                n += 1
                L += ["s_waitcnt vmcnt(0)"] + st(11) + ["s_load_dwordx2 s[98:99], s[0:1], 72", "v_readfirstlane_b32 s96, v0", "v_readlane_b32 s97, v255, 0", "s_waitcnt lgkmcnt(0)",
                      "s_cmp_lg_u32 s96, 0", f"s_cbranch_scc1 DBGE_{n}", "s_cmp_ge_u32 s2, 256", f"s_cbranch_scc1 DBGE_{n}", "s_mov_b64 exec, 1", "v_mov_b32 v1, 0", "s_not_b32 s97, s97", "v_mov_b32 v2, s100", "v_mov_b32 v3, s97",
                      "global_atomic_umax v1, v2, s[98:99] offset:48", "global_atomic_umax v1, v3, s[98:99] offset:52",
                      "s_cmp_lg_u32 s2, 8", f"s_cbranch_scc1 DBGE_{n}", "s_mov_b64 exec, 0xfff", "v_lshlrev_b32 v1, 2, v0", "global_store_dword v1, v255, s[98:99]", f"DBGE_{n}:"]
            L.append(l)
        self.L = L
    def instrument_mega(self, tsbase):
        def st(n): return ["s_memrealtime s[100:101]", "s_memtime s[98:99]", "s_waitcnt lgkmcnt(0)", f"v_writelane_b32 v255, s100, {n}", f"v_writelane_b32 v255, s98, {n+16}"]
        L = ["v_mov_b32 v255, 0"] + st(0)
        for l in self.L:
            if l.startswith("STAMP"):
                L += st(int(l.split()[1])); continue
            if l == "s_endpgm":
                L += ["s_waitcnt vmcnt(0)"] + st(11) + ["s_load_dwordx2 s[98:99], s[0:1], 80", "s_mov_b64 exec, -1", "s_mov_b32 exec_hi, 0", "v_lshrrev_b32 v1, 6, v0", "s_lshl_b32 s100, s2, 3",
                      "v_add_u32 v1, s100, v1", "v_lshlrev_b32 v1, 7, v1", "v_and_b32 v2, 63, v0", "v_lshl_add_u32 v1, v2, 2, v1", f"v_add_u32 v1, {tsbase}, v1", "s_waitcnt lgkmcnt(0)",
                      "global_store_dword v1, v255, s[98:99]"]
            L.append(l)
        self.L = L
    def instrument_dbg(self, idx, extra=None):
        L = ["s_memrealtime s[96:97]", "s_load_dwordx2 s[98:99], s[0:1], 72", "v_lshrrev_b32 v1, 6, v0", "s_and_b32 s100, s2, 7", "v_readfirstlane_b32 s101, v1", "s_waitcnt lgkmcnt(0)",
             "s_or_b32 s100, s100, s101", "s_mov_b32 s88, s96", "s_mov_b32 s90, s96", "s_mov_b32 s92, s96"]
        n = 0
        for l in self.L:
            if l.startswith("STAMP"):
                q = int(l.split()[1]); L += [f"s_memrealtime s[{88+2*q}:{89+2*q}]"]; continue
            if l == "s_endpgm":
                n += 1
                lab = f"DBG_{self.name}_{n}"
                L += ["s_waitcnt vmcnt(0) lgkmcnt(0)", "s_memrealtime s[94:95]", "s_cmp_lg_u32 s100, 0", f"s_cbranch_scc1 {lab}", "s_mov_b64 exec, 1",
                      f"s_add_u32 s98, s98, {512*(4-idx)}", "s_addc_u32 s99, s99, 0", "v_mov_b32 v1, 0", "s_waitcnt lgkmcnt(0)", "s_not_b32 s96, s96", "v_mov_b32 v4, s96", "v_mov_b32 v5, s94",
                      f"global_atomic_umax v1, v4, s[98:99] offset:{8*idx}", f"global_atomic_umax v1, v5, s[98:99] offset:{8*idx+4}"]
                if extra is not None:
                    for q in range(3): L += [f"v_mov_b32 v{6+q}, s{88+2*q}", f"global_atomic_umax v1, v{6+q}, s[98:99] offset:{extra+4*q}"]
                L += [f"{lab}:"]
            L.append(l)
        self.L = L
    def finish(self):
        self.L = [l for l in self.L if not l.startswith("STAMP")]
        lines, n = fix_hazards(self.L, self.name)
        mv = ma = ms = -1
        for l in lines:
            x = Ins(l)
            if x.op is None: continue
            for k, i in (x.dst | x.src):
                if k == "v": mv = max(mv, i)
                elif k == "a": ma = max(ma, i)
                elif k == "s" and i < 102: ms = max(ms, i)
        acc = (mv + 1 + 3) // 4 * 4
        nfv = acc + ma + 1 if ma >= 0 else mv + 1
        assert mv < 256 and nfv <= 512, (self.name, mv, ma)
        self.stats = dict(vgpr=mv + 1, agpr=ma + 1, sgpr=ms + 1, nops=n, ninstr=len(lines))
        body = f".globl {self.name}\n.p2align 8\n.type {self.name},@function\n{self.name}:\n" + "\n".join("    " + l if not (l.endswith(":") or l.startswith(";")) else l for l in lines) + "\n"
        kd = f""".section .rodata,"a"
.p2align 6
.amdhsa_kernel {self.name}
  .amdhsa_next_free_vgpr {max(nfv, 8)}
  .amdhsa_next_free_sgpr {max(ms + 1, 16)}
  .amdhsa_accum_offset {max(acc, 4)}
  .amdhsa_group_segment_fixed_size 0
  .amdhsa_kernarg_size 88
  .amdhsa_user_sgpr_count 2
  .amdhsa_user_sgpr_kernarg_segment_ptr 1
  .amdhsa_system_sgpr_workgroup_id_x 1
.end_amdhsa_kernel
"""
        return body, kd
```

```python
from common import *
from ring2 import *
import math, os
XM = os.environ.get('MX', 'notouch').split(',')
WT = " sc0 sc1"
SC = " sc1"
FL = WS_ST + 196608
F1 = FL; F2 = F1 + 32768; F3 = F2 + 32768; F4 = F3 + 24576; F5 = F4 + 27648; FEND = F5 + 131072
assert FEND - WS_ST <= 64 * 8192
LCNT = 148480
WS_XS = 22 * MB
WS_CS = WS_XS + 16384
PX, PWQKV, PWO, PW1, PB1, PW2, PB2, POUT, PDBG, PWS = 64, 66, 68, 72, 74, 76, 78, 80, 82, 84
VL, VG, VI = 1, 3, 4
T0, T1, T2, T3 = 5, 6, 7, 8
XR3 = 228
DUMMY = 252

def pf_flat(k, srd_, sidx, nwg, nthreads, b0, b1, tmp, vt=0, s0=60):
    lines = (b1 - b0) // 128
    per = (lines + nwg - 1) // nwg
    n = (per + nthreads - 1) // nthreads
    k(f"s_mul_i32 s{s0}, s{sidx}, {per*128}\ns_add_u32 s{s0}, s{s0}, {b0}\nv_lshlrev_b32 v{tmp}, 7, v{vt}")
    for i in range(n):
        last = per - i * nthreads
        if last < nthreads:
            k(f"v_mov_b32 v{tmp+1}, 0x7ff00000\nv_cmp_gt_u32 vcc, {last}, v{vt}\nv_cndmask_b32 v{tmp}, v{tmp+1}, v{tmp}, vcc")
        k(f"buffer_load_dword v{DUMMY}, v{tmp}, s[{srd_}:{srd_+3}], s{s0} offen\ns_add_u32 s{s0}, s{s0}, {nthreads*128}")

PFDEF = dict(PF1B="w1:0:44", PF2="w1:44:92", PF3="w1:92:128,w2:0:28", PF4="w2:28:128")
def pf(k, name, sidx, nwg, nthreads, tmp, vt=0):
    spec = os.environ.get(name, PFDEF.get(name, ""))
    if not spec or spec == "0": return
    U = S_ * F_ * 2 // 128
    for it in spec.split(","):
        w, a_, b_ = it.split(":")
        srd(k, 52, PW1 if w == "w1" else PW2, S_ * F_ * 2)
        pf_flat(k, 52, sidx, nwg, nthreads, int(a_) * U, int(b_) * U, tmp, vt=vt)

def w1_addr(k, tmp):
    srd(k, 52, PW1, S_ * F_ * 2)
    k("s_lshr_b32 s60, s10, 1\ns_mul_i32 s60, s60, 9\ns_and_b32 s61, s10, 1\ns_lshl_b32 s61, s61, 2\ns_add_u32 s60, s60, s61\ns_lshl_b32 s60, s60, 8")
    k(f"v_lshrrev_b32 v{tmp}, 4, v0\nv_mul_u32_u24 v{tmp}, 9216, v{tmp}\nv_and_b32 v{tmp+1}, 15, v0\nv_lshl_add_u32 v{tmp}, v{tmp+1}, 7, v{tmp}")
    k(f"v_cmp_lt_u32 vcc, 9, v{tmp+1}\nv_mov_b32 v{tmp+1}, 0x7ff00000\nv_cndmask_b32 v{tmp}, v{tmp}, v{tmp+1}, vcc")

def w1_rows(k, sidx, rows, r0, _):
    w1_addr(k, 10)
    k(f"s_mul_i32 s61, s{sidx}, {rows*9216}\ns_add_u32 s60, s60, s61\ns_add_u32 s60, s60, {r0*9216}")
    for i in range((rows + 31) // 32):
        k(f"buffer_load_dword v{DUMMY}, v10, s[52:55], s60 offen\ns_add_u32 s60, s60, {32*9216}")

def ids16(k):
    k(f"v_lshrrev_b32 v{VG}, 4, v{VL}\nv_and_b32 v{VI}, 15, v{VL}")

def p1(k, NXT):
    R = 4; STG = 34816; N = 9; XO = 18432
    PROD = k.lab("P1PROD"); PF = k.lab("P1PF"); PX_ = k.lab("P1PX")
    k("s_and_b32 s24, s10, 3\ns_lshl_b32 s24, s24, 2\ns_and_b32 s25, s11, 3\ns_add_u32 s24, s24, s25")
    k("s_lshr_b32 s25, s10, 2\ns_mul_i32 s25, s25, 6\ns_lshr_b32 s29, s11, 2\ns_add_u32 s25, s25, s29")
    ids16(k)
    def touch():
        k(f"v_mul_u32_u24 v{T0}, 4682, v{VL}\nv_lshrrev_b32 v{T0}, 16, v{T0}")
        k(f"v_mul_u32_u24 v{T1}, 14, v{T0}\nv_sub_u32 v{T1}, v{VL}, v{T1}")
        k(f"v_lshrrev_b32 v{T2}, 1, v{T0}\nv_mul_u32_u24 v{T2}, 62, v{T2}\nv_add_u32 v{T0}, v{T0}, v{T2}")
        k(f"v_mul_u32_u24 v{T0}, 3456, v{T0}\nv_lshl_add_u32 v{T0}, v{T1}, 7, v{T0}\nv_lshlrev_b32 v{T1}, 7, v{VL}")
        k(f"s_add_u32 s30, s28, 1\ns_mul_i32 s30, s30, {128*3456}\ns_mul_i32 s31, s11, {2*3456}\ns_add_u32 s30, s30, s31\ns_lshr_b32 s31, s10, 2\ns_mul_i32 s31, s31, {13*128}\ns_add_u32 s30, s30, s31")
        k(f"s_and_b32 s31, s10, 3\ns_mul_i32 s31, s31, {512*1152}\ns_mul_i32 s29, s11, {16*1152}\ns_add_u32 s31, s31, s29\ns_mul_i32 s29, s28, {36*128}\ns_add_u32 s31, s31, s29")
        k("s_waitcnt lgkmcnt(0)")
        srd(k, 12, PX, S_ * D_ * 2)
        srd(k, 16, PWQKV, D_ * 1728 * 2)
        if 'notouch' in XM: return
        k("s_mov_b32 exec_hi, 0xf")
        k(f"buffer_load_dword v{DUMMY}, v{T1}, s[12:15], s31 offen")
        k("s_mov_b32 exec_hi, 0xffffff")
        k(f"buffer_load_dword v{DUMMY}, v{T0}, s[16:19], s30 offen")
        k("s_mov_b32 exec_hi, -1")
    k(f"s_cmp_ge_u32 s11, 24\ns_cbranch_scc1 {PF}")
    k(f"s_cmp_ge_u32 s28, 4\ns_cbranch_scc1 {PROD}")
    k("s_lshr_b32 s26, s25, 2\ns_and_b32 s27, s25, 3")
    VTR, VXR, VC, ZD, XF, WF = 10, 12, 16, 18, 20, 36
    ACC = WF + 72
    CSR = ACC + 72; STR = CSR + 36
    assert STR + 16 <= DUMMY
    k(f"v_bfe_u32 v{T0}, v{VL}, 2, 2\nv_lshl_add_u32 v{T0}, v{VG}, 2, v{T0}\nv_mul_u32_u24 v{T0}, 288, v{T0}")
    k(f"v_and_b32 v{T1}, 3, v{VL}\nv_lshl_add_u32 v{VTR}, v{T1}, 3, v{T0}\nv_mul_u32_u24 v{T1}, 72, v{T1}\nv_add3_u32 v{VTR+1}, v{T0}, v{T1}, 32")
    k(f"v_lshrrev_b32 v{T0}, 1, v{VI}\nv_lshrrev_b32 v{T1}, 1, v{VG}\nv_xor_b32 v{T0}, v{T0}, v{T1}\nv_lshlrev_b32 v{T0}, 4, v{T0}\nv_lshl_add_u32 v{T0}, v{VI}, 7, v{T0}")
    k(f"v_and_b32 v{T1}, 1, v{VG}\nv_lshl_add_u32 v{T0}, v{T1}, 3, v{T0}")
    k(f"s_lshl_b32 s30, s28, 12\ns_add_u32 s30, s30, {XO}\nv_add_u32 v{VXR}, s30, v{T0}")
    for q in range(1, 4): k(f"v_xor_b32 v{VXR+q}, {32*q}, v{VXR}")
    for r in range(72): k(f"v_mov_b32 v{ACC+r}, 0")
    k(f"v_mov_b32 v{VC}, 0")
    touch()
    srd(k, 20, PWS, WS_SIZE)
    srd(k, 56, PDBG, 256)
    k(f"s_mul_i32 s50, s25, {9*PS}\ns_lshl_b32 s30, s24, 2\ns_add_u32 s30, s30, s28\ns_lshl_b32 s49, s30, 7\ns_lshl_b32 s30, s30, 10\ns_add_u32 s50, s50, s30")
    k(f"s_add_u32 s49, s49, {WS_XS}\ns_mul_i32 s51, s25, 576\ns_add_u32 s51, s51, {WS_CS}")
    k(f"s_lshl_b32 s48, s27, 4\ns_add_u32 s48, s48, s24\ns_lshl_b32 s48, s48, 2\ns_add_u32 s48, s48, s26\ns_lshl_b32 s48, s48, 7\ns_add_u32 s48, s48, {F1}")
    first = [True]
    coff = [72 * (T >> 1) + 40 * (T & 1) for T in range(8)]
    def body(vor):
        first[0] = True
        def side():
            OK = k.lab("ZOK")
            if not os.environ.get("STG_STAMP"): k("STAMP 13")
            k(f"s_waitcnt vmcnt(0)\nv_cmp_ne_u32 vcc, 64, v{ZD}\ns_mov_b32 s31, 0\ns_nop 3\ns_cbranch_vccz {OK}")
            poll(k, VC, ZD, 1, 56, 31, want=64)
            k(f"{OK}:")
            if not vor:
                k(f"v_lshlrev_b32 v{VC}, 4, v{VG}\nv_mul_u32_u24 v{VC+1}, 144, v{VG}\nv_lshlrev_b32 v{ZD}, 2, v{VI}")
                for tt in range(2):
                    k(f"buffer_load_dword v{STR+2*tt}, v{ZD}, s[20:23], s49 offen offset:{tt*64}{SC}")
                k("s_add_u32 s49, s49, 8192")
                for tt in range(2):
                    k(f"buffer_load_dword v{STR+2*tt+1}, v{ZD}, s[20:23], s49 offen offset:{tt*64}{SC}")
                for T in range(9):
                    k(f"buffer_load_dwordx4 {v(CSR+4*T,4)}, v{VC+(T==8)}, s[20:23], s51 offen offset:{2*coff[T] if T < 8 else 64}{SC}")
            else:
                k(f"v_lshlrev_b32 v{VC}, 2, v{VI}\nv_lshrrev_b32 v{VC+1}, 2, v{VI}\nv_mul_u32_u24 v{VC+1}, 128, v{VC+1}\nv_add_u32 v{VC+1}, v{VC+1}, v{VC}\nv_lshlrev_b32 v{ZD}, 4, v{VG}")
                for hf in range(2):
                    for tt in range(2):
                        k(f"buffer_load_dwordx4 {v(STR+tt*8+hf*4,4)}, v{ZD}, s[20:23], s49 offen offset:{tt*64}{SC}")
                    if hf == 0: k("s_add_u32 s49, s49, 8192")
                for T in range(9):
                    k(f"buffer_load_dword v{CSR+T}, v{VC+(T==8)}, s[20:23], s51 offen offset:{2*coff[T] if T < 8 else 64}{SC}")
        def reads(st, slot, ks, rs):
            out = []
            if ks == 0 and not first[0]:
                d = STG if slot else -(R - 1) * STG
                regs = list(range(VXR, VXR + 4)) + [VTR, VTR + 1]
                out += [f"v_add_u32 v{r}, {d}, v{r}" if d > 0 else f"v_subrev_u32 v{r}, {-d}, v{r}" for r in regs]
            first[0] = False
            for tt in range(2):
                for hf in range(2):
                    out.append(f"ds_read_b64 {v(XF+rs*8+tt*4+hf*2,2)}, v{VXR+2*ks+hf} offset:{tt*2048}")
            for j in range(9):
                for hf in range(2):
                    out.append(f"ds_read_b64_tr_b16 {v(WF+rs*36+j*4+hf*2,2)}, v{VTR+(j==8)} offset:{ks*9216+hf*4608+(coff[j] if j < 8 else 0)}")
            if slot == 3 and ks == 1 and not (os.environ.get('STG_STAMP') and st == 3):
                L = k.lab("ZS")
                out.append(f"s_cmp_lg_u32 s36, 1\ns_cbranch_scc1 {L}\nbuffer_load_dword v{ZD}, v{VC}, s[56:59], 0 offen sc0 sc1\n{L}:")
            return out
        def mf(st, ks, rs):
            g = []
            for j in range(9):
                wf = v(WF + rs * 36 + j * 4, 4)
                for tt in range(2):
                    xf = v(XF + rs * 8 + tt * 4, 4)
                    ac = v(ACC + (j * 2 + tt) * 4, 4)
                    g.append(f"v_mfma_f32_16x16x32_bf16 {ac}, {xf}, {wf}, {ac}" if vor else f"v_mfma_f32_16x16x32_bf16 {ac}, {wf}, {xf}, {ac}")
            return g
        consumer_loop(k, N, R, reads, mf, per=[2] * 8 + [1], final_barrier=False, before_last=side, stamp0=12)
        k("STAMP 1")
        qs = 18 ** -0.5 * math.log2(math.e)
        OUT = XF; VM0 = VTR
        k(f"v_lshlrev_b32 v{VM0}, 4, v{VL}\ns_waitcnt vmcnt(0)")
        if not vor:
            k(f"s_cmp_eq_u32 s26, 0\ns_cselect_b32 s31, {f32(qs)}, 1.0")
            for tt in range(2): k(f"v_mul_f32 v{STR+2*tt+1}, s31, v{STR+2*tt+1}")
        sw = "32" if vor else "16"
        def fin(j):
            po = OUT + (j % 4) * 4
            k(f"v_permlane{sw}_swap_b32 v{po}, v{po+2}\nv_permlane{sw}_swap_b32 v{po+1}, v{po+3}")
            k(f"buffer_store_dwordx4 {v(po,4)}, v{VM0}, s[20:23], s50 offen{WT}\ns_add_u32 s50, s50, {PS}")
        for j in range(9):
            o = OUT + (j % 4) * 4
            for tt in range(2):
                ac = ACC + (j * 2 + tt) * 4
                for h2 in range(2):
                    if not vor:
                        k(f"v_pk_fma_f32 {v(ac+2*h2,2)}, {v(STR+2*tt,2)}, {v(CSR+4*j+2*h2,2)}, {v(ac+2*h2,2)} op_sel_hi:[0,1,1] neg_lo:[1,0,0] neg_hi:[1,0,0]")
                    else:
                        c = CSR + (j & ~1); sel = j & 1
                        k(f"v_pk_fma_f32 {v(ac+2*h2,2)}, {v(STR+tt*8+2*h2,2)}, {v(c,2)}, {v(ac+2*h2,2)} op_sel:[0,{sel},0] op_sel_hi:[1,{sel},1] neg_lo:[1,0,0] neg_hi:[1,0,0]")
            for tt in range(2):
                ac = ACC + (j * 2 + tt) * 4
                for h2 in range(2):
                    if not vor: k(f"v_pk_mul_f32 {v(ac+2*h2,2)}, {v(ac+2*h2,2)}, {v(STR+2*tt,2)} op_sel:[0,1] op_sel_hi:[1,1]")
                    else: k(f"v_pk_mul_f32 {v(ac+2*h2,2)}, {v(ac+2*h2,2)}, {v(STR+tt*8+4+2*h2,2)}")
            for tt in range(2):
                ac = ACC + (j * 2 + tt) * 4
                k(f"v_cvt_pk_bf16_f32 v{o+2*tt}, v{ac}, v{ac+1}\nv_cvt_pk_bf16_f32 v{o+2*tt+1}, v{ac+2}, v{ac+3}")
            if j > 0: fin(j - 1)
        fin(8)
        k(f"v_mov_b32 v{T0}, 0\nv_mov_b32 v{T1}, 1\ns_waitcnt vmcnt(0)")
        last_wave_flag(k, T0, T1, T2, LCNT, 20, 48)
        k(f"s_branch {NXT[0]}")
    LV = k.lab("VOR")
    k(f"s_cmp_eq_u32 s26, 2\ns_cbranch_scc1 {LV}")
    body(False)
    k(f"{LV}:")
    body(True)
    k(f"{PROD}:")
    k(f"s_and_b32 s29, s28, 1\ns_cmp_ge_u32 s28, 6\ns_cbranch_scc1 {PX_}")
    VD = 10
    k(f"s_mov_b32 s30, {3456-288}")
    for q in range(9):
        k(f"v_add_u32 v{T0}, {q*64}, v{VL}\nv_mul_u32_u24 v{T1}, 3641, v{T0}\nv_lshrrev_b32 v{T1}, 16, v{T1}")
        k(f"v_lshlrev_b32 v{T0}, 4, v{T0}\nv_mad_u32_u24 v{VD+q}, v{T1}, s30, v{T0}")
    k(f"s_mul_i32 s33, s25, 288\ns_mul_i32 s30, s29, {32*3456}\ns_add_u32 s33, s33, s30\ns_mul_i32 s34, s29, 9216")
    k("s_waitcnt lgkmcnt(0)")
    srd(k, 16, PWQKV, D_ * 1728 * 2)
    srd(k, 20, PWS, WS_SIZE)
    def tail(kk):
        k("v_subrev_u32 v40, 256, v0")
        pf(k, "PF1T", 2, 192, 256, 42, vt=40)
    producer_loop(k, N, R, 9, lambda st, slot: [dma(34, slot * STG + q * 1024, VD + q, 16, 33) for q in range(9)] + [f"s_add_u32 s33, s33, {64*3456}"], NXT[1], final_barrier=False, tail=tail, first=int(os.environ.get('FIRST1', 2)))
    k(f"{PX_}:")
    for q in range(2):
        k(f"v_lshrrev_b32 v{T0}, 3, v{VL}\nv_add_u32 v{T0}, {8*q}, v{T0}")
        k(f"v_bfe_u32 v{T1}, v{T0}, 1, 3\nv_and_b32 v{T2}, 7, v{VL}\nv_xor_b32 v{T1}, v{T1}, v{T2}\nv_lshlrev_b32 v{T1}, 4, v{T1}")
        k(f"v_mul_u32_u24 v{T0}, 1152, v{T0}\nv_add_u32 v{VD+q}, v{T0}, v{T1}")
    for q in range(2, 8): k(f"v_add_u32 v{VD+q}, {16*1152}, v{VD+q-2}")
    k("s_lshl_b32 s32, s24, 7\ns_lshl_b32 s30, s29, 6\ns_add_u32 s32, s32, s30\ns_mul_i32 s32, s32, 1152")
    k(f"s_lshl_b32 s35, s29, 13\ns_add_u32 s35, s35, {XO}")
    k("s_waitcnt lgkmcnt(0)")
    srd(k, 12, PX, S_ * D_ * 2)
    srd(k, 20, PWS, WS_SIZE)
    producer_loop(k, N, R, 8, lambda st, slot: [dma(35, slot * STG + q * 1024, VD + q, 12, 32) for q in range(8)] + ["s_add_u32 s32, s32, 128"], NXT[1], final_barrier=False, tail=tail, first=int(os.environ.get('FIRST1', 2)))
    k(f"{PF}:")
    XA, WA, SM, CA = 12, 32, 52, 56
    NT_ = k.lab("NT")
    k(f"s_cmp_ge_u32 s28, 4\ns_cbranch_scc1 {NT_}")
    touch()
    k(f"{NT_}:\ns_sub_u32 s29, s2, 192")
    k(f"v_lshrrev_b32 v{T0}, 4, v0\nv_mul_u32_u24 v{T0}, 1152, v{T0}\nv_lshl_add_u32 v{T0}, v{VI}, 4, v{T0}")
    k(f"v_add_u32 v{T1}, 1024, v{T0}\nv_mov_b32 v{T2}, 0x7ff00000\nv_cmp_gt_u32 vcc, 8, v{VI}\nv_cndmask_b32 v{T1}, v{T2}, v{T1}, vcc")
    k(f"v_lshrrev_b32 v{T2}, 2, v0\nv_mul_u32_u24 v{T2}, 3456, v{T2}\nv_and_b32 v{T3}, 3, v0\nv_lshl_add_u32 v{T2}, v{T3}, 4, v{T2}")
    k(f"s_mul_i32 s30, s29, {32*1152}\ns_lshl_b32 s31, s29, 6\ns_cmp_ge_u32 s29, 54\ns_cselect_b32 s31, 0x7000000, s31")
    k("s_waitcnt lgkmcnt(0)")
    srd(k, 12, PX, S_ * D_ * 2)
    srd(k, 16, PWQKV, D_ * 1728 * 2)
    for q in range(5):
        k(f"buffer_load_dwordx4 {v(XA+4*q,4)}, v{T0 if q < 4 else T1}, s[12:15], s30 offen" + (f" offset:{q*256}" if q < 4 else ""))
    for q in range(5):
        k(f"buffer_load_dwordx4 {v(WA+4*q,4)}, v{T2}, s[16:19], s31 offen\ns_add_u32 s31, s31, {128*3456}")
    srd(k, 20, PWS, WS_SIZE)
    srd(k, 56, PDBG, 256)
    k(f"s_lshl_b32 s32, s29, 13\ns_add_u32 s32, s32, {WS_ST}\nv_lshlrev_b32 v{T3}, 4, v0")
    for r in range(4): k(f"v_mov_b32 v{CA+8+r}, 0")
    k(f"buffer_store_dwordx4 {v(CA+8,4)}, v{T3}, s[20:23], s32 offen{WT}")
    k(f"v_mov_b32 v{SM}, 0\nv_mov_b32 v{SM+1}, 0\nv_mov_b32 v{SM+2}, 0x3f803f80")
    k("s_waitcnt vmcnt(6)\nSTAMP 1")
    for r in range(20): k(f"v_dot2c_f32_bf16 v{SM}, v{XA+r}, v{SM+2}\nv_dot2c_f32_bf16 v{SM+1}, v{XA+r}, v{XA+r}")
    k("s_waitcnt vmcnt(1)")
    for q in range(5):
        for r in range(4):
            p = WA + 4 * q + r
            if q == 0: k(f"v_lshlrev_b32 v{CA+2*r}, 16, v{p}\nv_and_b32 v{CA+2*r+1}, 0xffff0000, v{p}")
            else: k(f"v_lshlrev_b32 v{T0}, 16, v{p}\nv_and_b32 v{T1}, 0xffff0000, v{p}\nv_add_f32 v{CA+2*r}, v{CA+2*r}, v{T0}\nv_add_f32 v{CA+2*r+1}, v{CA+2*r+1}, v{T1}")
    for sh in (8, 4, 2, 1):
        for r in range(2): k(f"v_add_f32_dpp v{SM+r}, v{SM+r}, v{SM+r} row_ror:{sh} row_mask:0xf bank_mask:0xf")
        if sh >= 4:
            for r in range(8): k(f"v_add_f32_dpp v{CA+r}, v{CA+r}, v{CA+r} row_ror:{sh} row_mask:0xf bank_mask:0xf")
    for sw in ("16", "32"):
        for r in range(8): k(f"v_mov_b32 v{XA+r}, v{CA+r}")
        for r in range(8): k(f"v_permlane{sw}_swap_b32 v{CA+r}, v{XA+r}")
        for r in range(8): k(f"v_add_f32 v{CA+r}, v{CA+r}, v{XA+r}")
    k(f"s_lshl_b32 s30, s28, 7\nv_lshlrev_b32 v{T0}, 5, v{VL}\nv_add_u32 v{T0}, s30, v{T0}\ns_mov_b64 exec, 0xf")
    k(f"ds_write_b128 v{T0}, {v(CA,4)}\nds_write_b128 v{T0}, {v(CA+4,4)} offset:16\ns_mov_b64 exec, -1")
    k(f"s_mov_b32 s30, {f32(1.0/576)}\nv_mul_f32 v{SM}, s30, v{SM}\nv_mul_f32 v{SM+1}, s30, v{SM+1}\nv_fma_f32 v{SM+1}, -v{SM}, v{SM}, v{SM+1}")
    k(f"v_max_f32 v{SM+1}, 0, v{SM+1}\nv_add_f32 v{SM+1}, {f32(1e-5)}, v{SM+1}\nv_rsq_f32 v{SM+1}, v{SM+1}")
    k(f"s_lshl_b32 s30, s29, 7\ns_add_u32 s30, s30, {WS_XS}\ns_add_u32 s31, s30, 8192\nv_lshrrev_b32 v{T0}, 4, v0\nv_lshlrev_b32 v{T0}, 2, v{T0}")
    k(f"v_cmp_eq_u32 vcc, 0, v{VI}\ns_and_saveexec_b64 s[62:63], vcc")
    k(f"buffer_store_dword v{SM}, v{T0}, s[20:23], s30 offen{WT}\nbuffer_store_dword v{SM+1}, v{T0}, s[20:23], s31 offen{WT}\ns_mov_b64 exec, -1")
    k("s_waitcnt lgkmcnt(0)\ns_barrier")
    NZ = k.lab("NZ"); NZ2 = k.lab("NZ")
    k(f"s_cmp_lg_u32 s28, 0\ns_cbranch_scc1 {NZ}\nv_lshlrev_b32 v{T0}, 2, v{VL}")
    for q in range(8): k(f"ds_read_b32 v{XA+q}, v{T0} offset:{q*128}")
    k(f"s_lshl_b32 s30, s29, 7\ns_add_u32 s30, s30, {WS_CS}\ns_waitcnt lgkmcnt(0)")
    for q in range(1, 8): k(f"v_add_f32 v{XA}, v{XA}, v{XA+q}")
    k(f"s_mov_b32 exec_hi, 0\nbuffer_store_dword v{XA}, v{T0}, s[20:23], s30 offen{WT}\ns_mov_b32 exec_hi, -1\n{NZ}:")
    k(f"v_mov_b32 v{T0}, 0\nv_mov_b32 v{T1}, 1\ns_waitcnt vmcnt(0)\nSTAMP 5\ns_barrier\ns_cmp_lg_u32 s28, 0\ns_cbranch_scc1 {NZ2}")
    k(f"s_mov_b64 exec, 1\nbuffer_atomic_add v{T1}, v{T0}, s[56:59], 0 offen sc1\ns_mov_b64 exec, -1\n{NZ2}:\ns_barrier")
    H = k.lab("PC")
    k(f"s_getpc_b64 s[60:61]\n{H}:\ns_sub_u32 s60, s60, {H}-L_text_begin\ns_subb_u32 s61, s61, 0")
    k(f"s_sub_u32 s62, s11, 24\ns_lshl_b32 s62, s62, 7\nv_lshlrev_b32 v{T0}, 10, v0\nv_add_u32 v{T0}, s62, v{T0}")
    SK = k.lab("SKC")
    k(f"s_mov_b32 s62, L_text_end-L_text_begin\nv_cmp_gt_u32 vcc, s62, v{T0}\ns_and_saveexec_b64 s[62:63], vcc\ns_cbranch_execz {SK}\nglobal_load_dword v{DUMMY}, v{T0}, s[60:61]\n{SK}:\ns_mov_b64 exec, -1")
    pf(k, "PF1B", 29, 64, 512, 66)
    k(f"s_branch {NXT[1]}")

def p2(k, ENT, NXT):
    LK8 = 24576; LV = 30720; REC = 1168; SEC = 36 * PS
    VH, VQ = 3, 4
    V16, VV, V8A = 5, 6, 7
    QM, Q8 = 8, 12
    KF, K8F, VF, O = 16, 28, 40, 56
    MX, MX2, TA, TB = 72, 73, 74, 75
    AK, AK8, AV = 76, 77, 78
    VV8, VK8 = 79, 2
    S0 = 80
    k(f"{ENT[1]}:\ns_waitcnt vmcnt(0)\ns_cmp_lg_u32 s28, 7\ns_cbranch_scc1 {ENT[0]}")
    srd(k, 56, PDBG, 256)
    k(f"v_mov_b32 v{TA}, 0\ns_mov_b32 s31, 0")
    poll(k, TA, TB, 1, 56, 31, want=64)
    k(f"{ENT[0]}:")
    k("STAMP 2")
    k("s_lshl_b32 s24, s10, 1\ns_and_b32 s25, s11, 1\ns_add_u32 s24, s24, s25\ns_lshr_b32 s25, s11, 1")
    k(f"v_lshrrev_b32 v{VH}, 5, v{VL}\nv_and_b32 v{VQ}, 31, v{VL}")
    k("s_lshr_b32 s26, s28, 2\ns_and_b32 s27, s28, 3")
    k(f"v_lshlrev_b32 v{V16}, 4, v{VL}")
    k(f"v_mul_u32_u24 v{VV}, {PS}, v{VH}\nv_lshl_add_u32 v{VV}, v{VQ}, 4, v{VV}")
    k(f"s_lshr_b32 s47, s24, 2\ns_and_b32 s31, s24, 3\ns_mul_i32 s34, s47, 9\ns_lshl_b32 s32, s31, 1\ns_add_u32 s44, s32, s34\ns_add_u32 s32, s44, s26\ns_mul_i32 s32, s32, {PS}")
    k(f"s_add_u32 s34, s34, 8\ns_mul_i32 s34, s34, {PS}\ns_mul_i32 s44, s44, {PS}\ns_add_u32 s44, s44, {2*SEC}")
    k("s_lshr_b32 s30, s31, 1\ns_lshl_b32 s30, s30, 9\ns_add_u32 s41, s34, s30")
    k(f"s_and_b32 s30, s31, 1\ns_lshl_b32 s30, s30, 3\nv_lshlrev_b32 v{V8A}, 4, v{VQ}\nv_add_u32 v{V8A}, s30, v{V8A}")
    k(f"s_lshl_b32 s45, s31, 6\ns_add_u32 s45, s45, s34\ns_add_u32 s45, s45, {2*SEC}")
    k(f"v_lshrrev_b32 v{TA}, 2, v{VL}\nv_lshlrev_b32 v{TA}, 8, v{TA}\nv_and_b32 v{TB}, 3, v{VL}\nv_lshl_add_u32 v{VV8}, v{TB}, 4, v{TA}")
    k(f"v_lshlrev_b32 v{VK8}, 4, v{VQ}\nv_lshl_add_u32 v{VK8}, v{VH}, 10, v{VK8}")
    k("s_lshl_b32 s33, s25, 2\ns_mul_i32 s30, s27, 3\ns_add_i32 s35, s33, s30\ns_sub_i32 s35, s35, 8")
    k("s_mul_i32 s31, s26, 12\ns_add_u32 s31, s31, s30\ns_lshl_b32 s46, s31, 10")
    k(f"s_lshl_b32 s30, s28, 1\ns_add_i32 s30, s30, s33\ns_sub_i32 s30, s30, 8\ns_max_i32 s30, s30, 0\ns_lshl_b32 s30, s30, 10\ns_add_u32 s33, s33, s27")
    k(f"s_lshl_b32 s39, s33, 10\ns_add_u32 s40, s39, s41\ns_add_u32 s39, s39, s32\ns_add_u32 s41, s41, s30\ns_add_u32 s41, s41, {SEC}\ns_add_u32 s38, s32, {SEC}")
    k(f"s_lshl_b32 s42, s28, 10\ns_add_u32 s42, s42, {LK8}")
    k(f"s_mul_i32 s43, s28, 3\ns_lshl_b32 s36, s25, 3\ns_add_i32 s36, s36, s43\ns_sub_i32 s36, s36, 16\ns_mul_i32 s43, s43, {REC}\ns_add_u32 s43, s43, {LV}")
    NEG = f32(-1e30)
    k(f"v_lshlrev_b32 v{TA}, 2, v{VH}\nv_sub_u32 v{TA}, v{VQ}, v{TA}\nv_mov_b32 v{TB}, {NEG}")
    for b in range(4):
        for r in range(4): k(f"v_cmp_gt_i32 s[{86+2*r}:{87+2*r}], {8*b+r}, v{TA}")
        for r in range(4): k(f"v_cndmask_b32 v{S0+4*b+r}, v{TB}, 0, s[{86+2*r}:{87+2*r}]")
        for r in range(4): k(f"v_cndmask_b32 v{S0+128+4*b+r}, 0, v{TB}, s[{86+2*r}:{87+2*r}]")
    k(f"s_mul_i32 s30, s26, 12\ns_add_u32 s30, s30, s27\ns_lshl_b32 s30, s30, 10\nv_add_u32 v{AK}, s30, v{V16}")
    k(f"s_lshl_b32 s30, s27, 9\ns_add_u32 s30, s30, {LK8}\nv_add_u32 v{AK8}, s30, v{V8A}")
    for q in range(3):
        k(f"v_mov_b32 v{K8F+q*4+2}, 0\nv_mov_b32 v{K8F+q*4+3}, 0")
    k(f"v_mov_b32 v{Q8+2}, 0\nv_mov_b32 v{Q8+3}, 0")
    k(f"s_lshl_b32 s30, s26, 9\nv_lshlrev_b32 v{AV}, 8, v{VH}\nv_lshl_add_u32 v{AV}, v{VQ}, 4, v{AV}\nv_add_u32 v{AV}, s30, v{AV}")
    k(f"s_lshl_b32 s30, s26, 5\ns_add_u32 s30, s30, {1024-256}\nv_lshlrev_b32 v{TA}, 6, v{VH}\nv_lshl_add_u32 v{TA}, v{VQ}, 4, v{TA}\nv_add_u32 v{TA}, s30, v{TA}")
    k(f"v_cmp_lt_u32 vcc, 15, v{VQ}\nv_cmp_lt_u32 s[86:87], 17, v{VQ}\nv_mov_b32 v{MX2}, 1152\nv_cndmask_b32 v{AV}, v{AV}, v{TA}, vcc\nv_cndmask_b32 v{AV}, v{AV}, v{MX2}, s[86:87]")
    k(f"s_mul_i32 s30, s27, {2*REC}\ns_add_u32 s30, s30, {LV}\nv_add_u32 v{AV}, s30, v{AV}")
    SO = k.lab("SONE")
    k(f"s_cmp_lg_u32 s28, 7\ns_cbranch_scc1 {SO}")
    if 'nogate' not in XM:
        NG = k.lab("NG")
        k(f"s_cmp_ge_u32 s2, 192\ns_cbranch_scc1 {NG}")
        wait_local(k, TA, LCNT)
        k(f"{NG}:")
    k(f"s_lshl_b32 s30, s47, 13\ns_lshl_b32 s31, s25, 9\ns_add_u32 s30, s30, s31\ns_add_u32 s30, s30, {F1-1024}")
    k(f"s_mov_b64 exec, -1\nv_lshlrev_b32 v{TA}, 7, v{VL}\ns_movk_i32 s31, 0x760\ns_cmp_eq_u32 s25, 0\ns_cselect_b32 s31, 0x700, s31\ns_cmp_ge_u32 s25, 2\ns_cselect_b32 exec_lo, 0x766, s31\ns_mov_b32 exec_hi, 0")
    poll(k, TA, MX, 1, 20, 30)
    k(f"s_mov_b64 exec, -1\n{SO}:\ns_barrier")
    k("STAMP 3")
    SK = k.lab("SK8")
    k(f"s_mov_b32 m0, s42\ns_cmp_ge_u32 s28, 6\ns_cbranch_scc1 {SK}")
    k(f"buffer_load_dwordx4 v{VK8}, s[20:23], s41 offen{SC} lds\n{SK}:")
    for q in range(3):
        k(f"s_add_i32 s30, s35, {q}\ns_max_i32 s30, s30, 0\ns_lshl_b32 s30, s30, 10\ns_add_u32 m0, s46, {q*1024}\ns_add_u32 s30, s30, s38")
        k(f"buffer_load_dwordx4 v{V16}, s[20:23], s30 offen{SC} lds")
    k(f"buffer_load_dwordx4 {v(QM,4)}, v{V16}, s[20:23], s39 offen{SC}")
    k(f"buffer_load_dwordx2 {v(Q8,2)}, v{V8A}, s[20:23], s40 offen{SC}")
    for q in range(3):
        k(f"s_add_i32 s30, s36, {q}\ns_max_i32 s30, s30, 0\ns_lshl_b32 s31, s30, 9\ns_add_u32 m0, s43, {q*REC}\ns_add_u32 s31, s31, s44")
        k(f"buffer_load_dwordx4 v{VV}, s[20:23], s31 offen{SC} lds")
        k(f"s_lshl_b32 s31, s30, 9\ns_add_u32 m0, s43, {q*REC+1024}\ns_add_u32 s31, s31, s45\ns_mov_b64 exec, 0xff")
        k(f"buffer_load_dwordx4 v{VV8}, s[20:23], s31 offen{SC} lds\ns_mov_b64 exec, -1")
    SO = k.lab("SONE")
    k(f"s_cmp_lg_u32 s28, 7\ns_cbranch_scc1 {SO}")
    for r in range(4): k(f"v_mov_b32 v{KF+r}, 0x3f803f80")
    k(f"v_mul_u32_u24 v{TA}, {REC}, v{VL}\ns_mov_b64 exec, 0xffffff")
    k(f"ds_write_b128 v{TA}, {v(KF,4)} offset:{LV+1152}")
    k(f"s_mov_b64 exec, -1\n{SO}:")
    srd(k, 48, PWO, D_ * D_ * 2)
    k(f"v_mov_b32 v{MX}, v{TB}\ns_sub_i32 s35, 8, s33")
    k("s_cmp_eq_u32 s26, 0\ns_cselect_b32 s38, -1, 0\ns_cselect_b32 s40, 0, -1\ns_mov_b32 s39, 0\ns_mov_b32 s41, 0")
    k("s_waitcnt vmcnt(6) lgkmcnt(0)")
    k(f"v_cndmask_b32 v{Q8}, 0, v{Q8}, s[38:39]\nv_cndmask_b32 v{Q8+1}, 0, v{Q8+1}, s[40:41]")
    k("s_barrier")
    def kread(j):
        return [f"ds_read_b128 {v(KF+(j%3)*4,4)}, v{AK} offset:{j*1024}", f"ds_read_b64 {v(K8F+(j%3)*4,2)}, v{AK8} offset:{j*512}"]
    def mx(j):
        return [f"v_max3_f32 v{MX}, v{MX}, v{S0+j*16+2*r}, v{S0+j*16+2*r+1}" for r in range(8)]
    for t in kread(0) + kread(1): k(t)
    inv = []
    for j in range(9):
        if j + 2 < 9:
            for t in kread(j + 2): k(t)
        sj = v(S0 + j * 16, 16)
        if j < 8:
            li, lb = k.lab("INV"), k.lab("BK")
            inv.append((j, li, lb))
            k(f"s_cmp_gt_i32 s35, {j}\ns_cbranch_scc1 {li}")
        k(f"s_waitcnt lgkmcnt({min(2, 8-j)*2})")
        k(f"v_mfma_f32_32x32x16_bf16 {sj}, {v(KF+(j%3)*4,4)}, {v(QM,4)}, {sj if j in (0, 8) else 0}")
        k(f"v_mfma_f32_32x32x16_bf16 {sj}, {v(K8F+(j%3)*4,4)}, {v(Q8,4)}, {sj}")
        if j < 8: k(f"{lb}:")
        if j >= 2:
            for t in mx(j - 2): k(t)
    for t in mx(7): k(t)
    k("s_waitcnt vmcnt(0)\ns_barrier")
    def vread(t): return f"ds_read_b128 {v(VF+(t%4)*4,4)}, v{AV} offset:{t*REC}"
    k(vread(0)); k(vread(1))
    k(f"v_lshlrev_b32 v224, 7, v0\ns_mul_i32 s30, s11, {162*128}\nv_cmp_gt_u32 vcc, 162, v0\ns_and_saveexec_b64 s[44:45], vcc")
    k(f"buffer_load_dword v{DUMMY}, v224, s[48:51], s30 offen\ns_mov_b64 exec, s[44:45]")
    XS = k.lab("XS")
    k(f"s_cmp_ge_u32 s2, 192\ns_cbranch_scc1 {XS}\ns_cmp_ge_u32 s28, 4\ns_cbranch_scc1 {XS}")
    srd(k, 12, PX, S_ * D_ * 2)
    k("s_lshl_b32 s30, s10, 2\ns_and_b32 s31, s11, 3\ns_add_u32 s30, s30, s31\ns_lshl_b32 s30, s30, 1\ns_lshr_b32 s31, s28, 1\ns_add_u32 s30, s30, s31\ns_mul_i32 s30, s30, 36864")
    k("s_lshr_b32 s31, s11, 2\ns_lshl_b32 s31, s31, 1\ns_and_b32 s44, s28, 1\ns_add_u32 s31, s31, s44\ns_mul_i32 s31, s31, 96\ns_add_u32 s30, s30, s31")
    k(f"v_and_b32 v224, 15, v{VL}\nv_mul_u32_u24 v224, 1152, v224\nv_and_b32 v225, 16, v{VL}\nv_add_u32 v224, v224, v225\nv_add_u32 v225, {16*1152}, v224")
    for tt in range(2):
        for dt in range(3):
            k(f"buffer_load_dwordx4 {v(XR3+(tt*3+dt)*4,4)}, v{224+tt}, s[12:15], s30 offen offset:{dt*32}")
    k(f"{XS}:")
    pf(k, "PF2", 2, 256, 512, 226)
    for t in mx(8): k(t)
    k(f"v_mov_b32 v{MX2}, v{MX}\nv_permlane32_swap_b32 v{MX}, v{MX2}\nv_max_f32 v{MX}, v{MX}, v{MX2}")
    def soft(j):
        b = S0 + j * 16
        out = [f"v_sub_f32 v{b+r}, v{b+r}, v{MX}" for r in range(16)]
        out += [f"v_exp_f32 v{b+r}, v{b+r}" for r in range(16)]
        out += [f"v_cvt_pk_bf16_f32 v{b+r}, v{b+2*r}, v{b+2*r+1}" for r in range(8)]
        return out
    def pv(j):
        b = S0 + j * 16
        return [f"v_mfma_f32_32x32x16_bf16 {v(O,16)}, {v(VF+((2*j+s_)%4)*4,4)}, {v(b+4*s_,4)}, {v(O,16) if (j or s_) else 0}" for s_ in range(2)]
    for t in soft(0): k(t)
    for j in range(9):
        nxt = soft(j + 1) if j < 8 else []
        if j < 8:
            k(vread(2 * j + 2)); k(vread(2 * j + 3))
        p = pv(j)
        for t in nxt[:4]: k(t)
        k(f"s_waitcnt lgkmcnt({2 if j < 8 else 0})")
        k(p[0])
        for t in nxt[4:20]: k(t)
        k(p[1])
        for t in nxt[20:]: k(t)
    k(f"s_lshl_b32 s34, s24, 1\ns_add_u32 s34, s34, s26\ns_mul_i32 s30, s34, {PS}\ns_lshl_b32 s31, s33, 10\ns_add_u32 s30, s30, s31\ns_add_u32 s30, s30, {WS_OM}")
    k(f"s_lshl_b32 s31, s34, 13\ns_lshl_b32 s34, s33, 7\ns_add_u32 s31, s31, s34\ns_add_u32 s31, s31, {WS_O8}\nv_lshlrev_b32 v{AK8}, 2, v{VQ}")
    k(f"v_rcp_f32 v{MX}, v{O+10}")
    for r in range(10): k(f"v_mul_f32 v{O+r}, v{O+r}, v{MX}")
    for r in range(5): k(f"v_cvt_pk_bf16_f32 v{KF+r}, v{O+2*r}, v{O+2*r+1}")
    k(f"buffer_store_dwordx4 {v(KF,4)}, v{V16}, s[20:23], s30 offen{WT}")
    k("s_mov_b32 exec_hi, 0")
    k(f"buffer_store_dword v{KF+4}, v{AK8}, s[20:23], s31 offen{WT}")
    k("s_mov_b32 exec_hi, -1")
    k(f"s_lshl_b32 s30, s25, 11\ns_lshl_b32 s31, s24, 7\ns_add_u32 s30, s30, s31\ns_add_u32 s30, s30, {F2}\nv_mov_b32 v{TA}, 0\nv_mov_b32 v{TB}, 1")
    k(f"s_waitcnt vmcnt(0)\ns_barrier\ns_cmp_lg_u32 s28, 0\ns_cbranch_scc1 {NXT}")
    set_flag(k, TA, TB, 20, 30)
    k(f"s_branch {NXT}")
    for j, li, lb in inv:
        k(f"{li}:")
        for r in range(16): k(f"v_mov_b32 v{S0+j*16+r}, v{TB}")
        k(f"s_branch {lb}")

def p3(k, ENT, NXT):
    R = 6; WS_ = 12288; WB = 73728; N = 9
    LAB = WB + R * WS_
    PF = k.lab("P3PF"); PROD = k.lab("P3PROD"); PO = k.lab("P3PO")
    k(f"{ENT}:\nSTAMP 4")
    k(f"s_cmp_ge_u32 s2, 192\ns_cbranch_scc1 {PF}")
    k("s_lshl_b32 s24, s10, 2\ns_and_b32 s25, s11, 3\ns_add_u32 s24, s24, s25\ns_lshr_b32 s25, s11, 2")
    ids16(k)
    V16 = 9
    k(f"v_lshlrev_b32 v{V16}, 4, v{VL}")
    k(f"s_cmp_ge_u32 s28, 4\ns_cbranch_scc1 {PROD}")
    k("s_lshr_b32 s26, s28, 1\ns_and_b32 s27, s28, 1")
    VTR, VAO, VAE = 10, 16, 18
    IDN, XR, ACC, AF, BF = 24, 28, 52, 76, 100
    k(f"v_and_b32 v{T1}, 1, v{VG}")
    k(f"v_bfe_u32 v{T0}, v{VL}, 2, 2\nv_lshl_add_u32 v{T0}, v{VG}, 2, v{T0}\nv_mul_u32_u24 v{T0}, 192, v{T0}")
    k(f"v_and_b32 v{T2}, 3, v{VL}\nv_lshl_add_u32 v{T0}, v{T2}, 3, v{T0}\nv_add_u32 v{T0}, {WB}, v{T0}")
    k("s_mul_i32 s30, s27, 3")
    for dt in range(3):
        k(f"s_add_u32 s31, s30, {dt}\nv_xor_b32 v{T2}, s31, v{T1}\nv_lshl_add_u32 v{VTR+dt}, v{T2}, 5, v{T0}\nv_add_u32 v{VTR+3+dt}, {3*WS_}, v{VTR+dt}")
    k(f"s_lshl_b32 s30, s26, 11\nv_add_u32 v{VAO}, s30, v{V16}\nv_add_u32 v{VAO+1}, 32768, v{VAO}")
    k(f"v_lshlrev_b32 v{T0}, 8, v{VG}\nv_lshl_add_u32 v{T0}, v{VI}, 2, v{T0}\nv_add_u32 v{VAE}, s30, v{T0}\nv_add_u32 v{VAE}, 65536, v{VAE}")
    k(f"v_lshlrev_b32 v{T0}, 3, v{VG}\nv_sub_u32 v{T0}, v{VI}, v{T0}\nv_mov_b32 v{T1}, 0x3f80\nv_mov_b32 v{T2}, 0x3f800000")
    for j2 in range(4):
        k(f"v_cmp_eq_u32 vcc, {2*j2}, v{T0}\nv_cmp_eq_u32 s[30:31], {2*j2+1}, v{T0}\nv_cndmask_b32 v{IDN+j2}, 0, v{T1}, vcc")
        k(f"v_cndmask_b32 v{IDN+j2}, v{IDN+j2}, v{T2}, s[30:31]")
    def reads(n):
        st, ks, rs = n >> 1, n & 1, n % 3
        slot = st % R
        out = []
        for tt in range(2):
            if st < 8: out.append(f"ds_read_b128 {v(AF+rs*8+tt*4,4)}, v{VAO+(st>>2)} offset:{(st&3)*8192+ks*4096+tt*1024}")
            else: out += [f"ds_read_b32 v{AF+rs*8+tt*4+q}, v{VAE} offset:{ks*4096+tt*1024+q*64}" for q in range(4)]
        for dt in range(3):
            for hf in range(2):
                out.append(f"ds_read_b64_tr_b16 {v(BF+rs*12+dt*4+hf*2,2)}, v{VTR+3*(slot//3)+dt} offset:{(slot%3)*WS_+ks*6144+hf*3072}")
        return out
    def mf(n):
        rs = n % 3
        return [f"v_mfma_f32_16x16x32_bf16 {v(ACC+(tt*3+dt)*4,4)}, {v(AF+rs*8+tt*4,4)}, {v(BF+rs*12+dt*4,4)}, {v(ACC+(tt*3+dt)*4,4)}"
                for tt in range(2) for dt in range(3)]
    for q in range(6):
        k(f"v_mfma_f32_16x16x32_bf16 {v(ACC+q*4,4)}, {v(XR3+q*4,4)}, {v(IDN,4)}, 0")
    k("s_barrier")
    if os.environ.get("P3S"): k("STAMP 12")
    for t in reads(0) + reads(1): k(t)
    for n in range(18):
        if n + 2 < 18 and (n + 2) % 6 == 0 or n == 16: k("s_waitcnt lgkmcnt(0)\ns_barrier")
        elif n < 16: k(f"s_waitcnt lgkmcnt({len(reads(n + 1))})")
        if os.environ.get("P3S") and n in (4, 10): k(f"STAMP {13 + (n == 10)}")
        for t in interleave(mf(n), reads(n + 2) if n + 2 < 18 else [], 0, 2): k(t)
    k("STAMP 5")
    PK = XR; ST = AF
    for dt in range(3):
        for tt in range(2):
            ac = ACC + (tt * 3 + dt) * 4
            k(f"v_cvt_pk_bf16_f32 v{PK+dt*4+tt*2}, v{ac}, v{ac+1}\nv_cvt_pk_bf16_f32 v{PK+dt*4+tt*2+1}, v{ac+2}, v{ac+3}")
    for dt in range(3):
        for tt in range(2):
            for h2 in range(2):
                p = PK + dt * 4 + tt * 2 + h2
                x0 = ACC + (tt * 3 + dt) * 4 + 2 * h2
                k(f"v_lshlrev_b32 v{x0}, 16, v{p}\nv_and_b32 v{x0+1}, 0xffff0000, v{p}")
                for e in range(2):
                    d = ST + tt * 8 + (h2 * 2 + e) * 2
                    if dt == 0: k(f"v_mov_b32 v{d}, v{x0+e}\nv_mul_f32 v{d+1}, v{x0+e}, v{x0+e}")
                    else: k(f"v_add_f32 v{d}, v{d}, v{x0+e}\nv_fmac_f32 v{d+1}, v{x0+e}, v{x0+e}")
    for sh in (8, 4, 2, 1):
        for r in range(16):
            k(f"v_add_f32_dpp v{ST+r}, v{ST+r}, v{ST+r} row_ror:{sh} row_mask:0xf bank_mask:0xf")
    for r in range(8): k(f"v_or_b32 v{ST+2*r+1}, 0x80000000, v{ST+2*r+1}")
    k(f"s_lshl_b32 s31, s24, 1\ns_add_u32 s31, s31, s26")
    k(f"s_lshl_b32 s33, s31, 8\ns_add_u32 s33, s33, {WS_ST}")
    k(f"s_lshl_b32 s30, s25, 1\ns_add_u32 s30, s30, s27\ns_lshl_b32 s30, s30, 14\ns_add_u32 s30, s30, s33")
    k(f"v_lshlrev_b32 v{T0}, 5, v{VG}\nv_cmp_eq_u32 vcc, 0, v{VI}\ns_and_saveexec_b64 s[38:39], vcc")
    for tt in range(2):
        for hf in range(2):
            k(f"buffer_store_dwordx4 {v(ST+tt*8+hf*4,4)}, v{T0}, s[20:23], s30 offen offset:{tt*128+hf*16}{WT}")
    k("s_mov_b64 exec, s[38:39]")
    VH = VTR
    k(f"v_lshlrev_b32 v{VH}, 4, v{VL}")
    k(f"s_mul_i32 s30, s25, 6\ns_mul_i32 s32, s27, 3\ns_add_u32 s30, s30, s32\ns_mul_i32 s30, s30, {PS}")
    k(f"s_lshl_b32 s32, s31, 10\ns_add_u32 s30, s30, s32\ns_add_u32 s32, s30, {WS_HN}\ns_add_u32 s30, s30, {WS_H}")
    k("s_mov_b32 s35, s30")
    VS = VTR + 1
    P = BF
    k(f"v_lshrrev_b32 v{T0}, 5, v{VL}\nv_mul_u32_u24 v{VS}, {6*16384}, v{T0}\nv_and_b32 v{T0}, 31, v{VL}\nv_lshl_add_u32 v{VS}, v{T0}, 3, v{VS}")
    for p in range(6): k(f"s_add_u32 s{40+p}, s33, {p*16384}")
    POLL = k.lab("POLL"); GO = k.lab("GO")
    k(f"s_mov_b32 s37, 0x100000\n{POLL}:")
    for p in range(6):
        k(f"buffer_load_dwordx2 {v(P+2*p,2)}, v{VS}, s[20:23], s{40+p} offen sc0 sc1")
    k("s_waitcnt vmcnt(0)")
    k(f"v_and_b32 v{T1}, v{P+1}, v{P+3}\nv_and_b32 v{T2}, v{P+5}, v{P+7}\nv_and_b32 v{T3}, v{P+9}, v{P+11}\nv_and_b32 v{T1}, v{T1}, v{T2}\nv_and_b32 v{T1}, v{T1}, v{T3}")
    k(f"v_cmp_le_i32 vcc, 0, v{T1}\ns_sub_u32 s37, s37, 1\ns_cmp_eq_u32 s37, 0\ns_cbranch_scc1 {GO}\ns_cbranch_vccz {GO}\ns_sleep 1\ns_branch {POLL}\n{GO}:")
    if os.environ.get("P3S"): k("STAMP 15")
    for dt in range(3):
        k(f"buffer_store_dwordx4 {v(PK+dt*4,4)}, v{VH}, s[20:23], s35 offen{WT}\ns_add_u32 s35, s35, {PS}")
    for p in range(1, 6):
        k(f"v_add_f32 v{P}, v{P}, v{P+2*p}\nv_add_f32 v{P+1}, v{P+1}, v{P+2*p+1}")
    k(f"v_mov_b32 v{P+2}, v{P}\nv_mov_b32 v{P+3}, v{P+1}")
    k(f"v_permlane32_swap_b32 v{P}, v{P+2}\nv_permlane32_swap_b32 v{P+1}, v{P+3}")
    k(f"v_add_f32 v{P}, v{P}, v{P+2}\nv_add_f32 v{P+1}, v{P+1}, v{P+3}")
    k(f"s_mov_b32 s34, {f32(1.0/576)}")
    mn, sq = P, P + 1
    k(f"v_mul_f32 v{mn}, s34, v{mn}\nv_mul_f32 v{sq}, s34, -v{sq}\nv_fma_f32 v{sq}, -v{mn}, v{mn}, v{sq}\nv_max_f32 v{sq}, 0, v{sq}")
    k(f"v_add_f32 v{P+2}, {f32(1e-5)}, v{sq}\nv_rsq_f32 v{P+2}, v{P+2}")
    k(f"v_mul_f32 v{sq}, v{sq}, v{P+2}\nv_mul_f32 v{sq}, v{sq}, v{P+2}\nv_add_f32 v{sq}, {f32(1e-5)}, v{sq}\nv_rsq_f32 v{sq}, v{sq}")
    k(f"v_mul_f32 v{P+2}, v{P+2}, v{sq}\nv_mul_f32 v{P+3}, -v{mn}, v{P+2}")
    k(f"s_lshl_b32 s33, s28, 8\ns_add_u32 s33, s33, {LAB}\nv_lshlrev_b32 v{T0}, 3, v{T0}\nv_add_u32 v{T0}, s33, v{T0}")
    k(f"ds_write_b64 v{T0}, {v(P+2,2)}")
    k(f"v_lshlrev_b32 v{T0}, 5, v{VG}\nv_add_u32 v{T0}, s33, v{T0}\ns_waitcnt lgkmcnt(0)")
    AB = ST
    for q in range(4):
        k(f"ds_read_b128 {v(AB+4*q,4)}, v{T0} offset:{(q>>1)*128+(q&1)*16}")
    k(f"s_lshl_b32 s30, s25, 12\ns_lshl_b32 s31, s24, 7\ns_add_u32 s30, s30, s31\ns_add_u32 s30, s30, {F3}\nv_mov_b32 v{T1}, 0\nv_mov_b32 v{T2}, 1")
    k("s_waitcnt lgkmcnt(0)")
    for dt in range(3):
        for tt in range(2):
            x0 = ACC + (tt * 3 + dt) * 4
            for r in range(4): k(f"v_fma_f32 v{x0+r}, v{x0+r}, v{AB+tt*8+2*r}, v{AB+tt*8+2*r+1}")
            k(f"v_cvt_pk_bf16_f32 v{PK+12+dt*4+tt*2}, v{x0}, v{x0+1}\nv_cvt_pk_bf16_f32 v{PK+12+dt*4+tt*2+1}, v{x0+2}, v{x0+3}")
        k(f"buffer_store_dwordx4 {v(PK+12+dt*4,4)}, v{VH}, s[20:23], s32 offen{WT}\ns_add_u32 s32, s32, {PS}")
    k("s_waitcnt vmcnt(0)")
    last_wave_flag(k, T1, T2, T3, LCNT + 4, 20, 30)
    k(f"s_branch {NXT}")
    k(f"{PROD}:\ns_and_b32 s29, s28, 1\ns_cmp_ge_u32 s28, 6\ns_cbranch_scc1 {PO}")
    VWD, VWE = 10, 16
    for q in range(6):
        k(f"v_add_u32 v{T0}, {q*64}, v{VL}")
        k(f"v_mul_u32_u24 v{T1}, 5462, v{T0}\nv_lshrrev_b32 v{T1}, 16, v{T1}")
        k(f"v_mul_u32_u24 v{T2}, 12, v{T1}\nv_sub_u32 v{T0}, v{T0}, v{T2}")
        k(f"v_bfe_u32 v{T2}, v{T1}, 2, 1\nv_lshlrev_b32 v{T2}, 1, v{T2}\nv_xor_b32 v{T0}, v{T0}, v{T2}\nv_lshlrev_b32 v{VWE+q}, 4, v{T0}")
        k(f"v_and_b32 v{T2}, 7, v{T1}")
        k(f"v_bfe_u32 v{T3}, v{T1}, 3, 1\nv_mad_u32_u24 v{T2}, v{T3}, 20, v{T2}")
        k(f"v_bfe_u32 v{T3}, v{T1}, 4, 1\nv_lshl_add_u32 v{T2}, v{T3}, 3, v{T2}")
        k(f"v_mul_u32_u24 v{T2}, 1152, v{T2}\nv_add_u32 v{VWD+q}, v{T2}, v{VWE+q}")
    k(f"s_mul_i32 s33, s25, 192\ns_mul_i32 s30, s29, {8*36*1152}\ns_add_u32 s39, s33, s30\ns_mul_i32 s30, s29, {36*1152}\ns_add_u32 s33, s33, s30")
    k(f"s_mul_i32 s35, s29, 6144\ns_add_u32 s35, s35, {WB}")
    srd(k, 16, PWO, D_ * D_ * 2)
    def issue_w(st):
        for q in range(6): k(dma(35, (st % R) * WS_ + q * 1024, (VWD if st < 8 else VWE) + q, 16, 33 if st < 8 else 39))
        k(f"s_add_u32 s33, s33, {72*1152}")
    for st in range(6): issue_w(st)
    for q in range(6):
        k(f"v_add_u32 v{T0}, {q*64}, v{VL}\nv_mul_u32_u24 v{T1}, 5462, v{T0}\nv_lshrrev_b32 v{T1}, 16, v{T1}\n"
          f"v_bfe_u32 v{T2}, v{T1}, 2, 2\nv_lshlrev_b32 v{T2}, 1, v{T2}\nv_bfe_u32 v{T3}, v{T1}, 4, 1\nv_add_u32 v{T2}, v{T2}, v{T3}\nv_mul_u32_u24 v{T2}, 36, v{T2}\n"
          f"v_and_b32 v{T3}, 3, v{T1}\nv_add3_u32 v{T2}, v{T2}, v{T3}, 16\nv_mul_u32_u24 v{T2}, 1152, v{T2}\nv_add_u32 v{VWE+q}, v{T2}, v{VWE+q}")
    k("s_waitcnt vmcnt(0)\ns_barrier\ns_barrier")
    for st in range(6, 9): issue_w(st)
    k(f"s_waitcnt vmcnt(0)\ns_barrier\ns_barrier\ns_branch {NXT}")
    k(f"{PO}:")
    VO = 10
    k(f"v_lshrrev_b32 v{T0}, 1, v{VG}\nv_mul_u32_u24 v{T0}, {PS}, v{T0}\nv_and_b32 v{T1}, 1, v{VG}\nv_lshl_add_u32 v{T0}, v{T1}, 9, v{T0}\nv_lshl_add_u32 v{T0}, v{VI}, 4, v{T0}")
    k(f"v_lshrrev_b32 v{T1}, 2, v{VL}\nv_lshlrev_b32 v{T1}, 13, v{T1}\nv_and_b32 v{T2}, 3, v{VL}\nv_lshl_add_u32 v{T1}, v{T2}, 4, v{T1}")
    for q in range(4): k(f"v_add_u32 v{VO+q}, {(q>>1)*1024+(q&1)*256}, v{T0}\nv_add_u32 v{VO+4+q}, {q*64}, v{T1}")
    k(f"s_lshl_b32 s32, s24, 11\ns_mul_i32 s30, s29, {2*PS}\ns_add_u32 s32, s32, s30\ns_add_u32 s32, s32, {WS_OM}\ns_lshl_b32 s30, s29, 17")
    k(f"s_lshl_b32 s38, s24, 8\ns_add_u32 s38, s38, s30\ns_add_u32 s38, s38, {WS_O8}\ns_lshl_b32 s34, s29, 12")
    k(f"s_lshr_b32 s30, s24, 1\ns_lshl_b32 s30, s30, 11\ns_add_u32 s30, s30, {F2}\nv_lshlrev_b32 v{T0}, 7, v{VL}\ns_mov_b64 exec, 0xffff")
    poll(k, T0, T1, 1, 20, 30)
    k("s_mov_b64 exec, -1\nSTAMP 5")
    def issue_o(st):
        for q in range(4): k(dma(34, st * 8192 + q * 1024, VO + q + (4 if st == 8 else 0), 20, 32 if st < 8 else 38, SC))
        k(f"s_add_u32 s32, s32, {4*PS}")
    for st in range(5): issue_o(st)
    k("s_waitcnt vmcnt(8)\ns_barrier")
    for st in range(5, 9): issue_o(st)
    k(f"s_waitcnt vmcnt(12)\ns_barrier\ns_waitcnt vmcnt(0)\ns_barrier\ns_barrier\ns_branch {NXT}")
    k(f"{PF}:\ns_sub_u32 s29, s2, 192")
    pf(k, "PF3", 29, 64, 512, 10)
    r1 = int(os.environ.get("L2W1", 0))
    if r1:
        k("s_sub_u32 s29, s11, 24")
        w1_rows(k, 29, r1 // 8, 0, 0)
    k(f"s_branch {NXT}")

def p4(k, ENT, NXT):
    STG = 28672; R = 4; N = 32
    PROD = k.lab("P4PROD"); PF = k.lab("P4PF"); PA = k.lab("P4PA")
    k(f"{ENT}:\nSTAMP 6")
    k(f"s_cmp_ge_u32 s11, 27\ns_cbranch_scc1 {PF}")
    k("s_mul_i32 s24, s11, 10923\ns_lshr_b32 s24, s24, 16\ns_mul_i32 s25, s24, 6\ns_sub_u32 s25, s11, s25")
    k("s_and_b32 s29, s10, 1\ns_mul_i32 s30, s29, 5\ns_add_u32 s24, s24, s30")
    k("s_mul_i32 s30, s29, 3\ns_add_u32 s30, s30, s25")
    k("s_cmp_ge_u32 s11, 24\ns_cselect_b32 s24, 4, s24\ns_cselect_b32 s25, s30, s25\ns_mov_b32 s47, s24")
    k("s_lshr_b32 s30, s10, 1\ns_mul_i32 s30, s30, 9\ns_add_u32 s24, s24, s30")
    ids16(k)
    k(f"s_cmp_ge_u32 s28, 4\ns_cbranch_scc1 {PROD}")
    k("s_lshr_b32 s26, s28, 1\ns_and_b32 s27, s28, 1")
    VTR, VHR, B1, ACC, WF, HF = 12, 20, 26, 36, 84, 116
    srd(k, 16, PB1, F_ * 2)
    k(f"v_lshlrev_b32 v{T0}, 3, v{VG}\ns_lshl_b32 s30, s24, 8\ns_lshl_b32 s31, s26, 7\ns_add_u32 s30, s30, s31")
    for f4 in range(4):
        k(f"buffer_load_dwordx2 {v(B1+2*f4,2)}, v{T0}, s[16:19], s30 offen offset:{f4*32}")
    k(f"v_bfe_u32 v{T0}, v{VL}, 2, 2\nv_lshl_add_u32 v{T0}, v{VG}, 2, v{T0}")
    k(f"v_and_b32 v{T1}, 7, v{T0}\nv_lshlrev_b32 v{T0}, 8, v{T0}\nv_and_b32 v{T2}, 3, v{VL}\nv_lshl_add_u32 v{T0}, v{T2}, 3, v{T0}")
    k("s_lshl_b32 s30, s26, 2")
    for f4 in range(4):
        k(f"s_add_u32 s31, s30, {f4}\nv_xor_b32 v{T2}, s31, v{T1}\nv_lshl_add_u32 v{VTR+f4}, v{T2}, 5, v{T0}\nv_add_u32 v{VTR+4+f4}, {2*STG}, v{VTR+f4}")
    k(f"s_mul_i32 s30, s27, 3072\ns_add_u32 s30, s30, 16384\nv_lshlrev_b32 v{VHR}, 4, v{VL}\nv_add_u32 v{VHR}, s30, v{VHR}\nv_add_u32 v{VHR+1}, {2*STG}, v{VHR}")
    for r in range(48): k(f"v_mov_b32 v{ACC+r}, 0")
    k(f"s_mul_i32 s31, s25, 6\ns_mul_i32 s38, s27, 3\ns_add_u32 s31, s31, s38\ns_mul_i32 s31, s31, {144*1024}")
    k(f"s_lshl_b32 s38, s24, 12\ns_add_u32 s31, s31, s38\ns_lshl_b32 s38, s26, 11\ns_add_u32 s31, s31, s38\ns_add_u32 s40, s31, {WS_U}")
    k(f"s_lshr_b32 s30, s10, 1\ns_mul_i32 s30, s30, 6\ns_add_u32 s30, s30, s25\ns_mul_i32 s30, s30, 9\ns_add_u32 s30, s30, s47\ns_lshl_b32 s30, s30, 7\ns_add_u32 s41, s30, {F4}")
    def reads(st, slot, ks, rs):
        hi = slot >> 1; off = (slot & 1) * STG
        out = []
        for f4 in range(4):
            for hf in range(2):
                out.append(f"ds_read_b64_tr_b16 {v(WF+rs*16+f4*4+hf*2,2)}, v{VTR+4*hi+f4} offset:{off+ks*8192+hf*4096}")
            if f4 < 3:
                out.append(f"ds_read_b128 {v(HF+rs*12+f4*4,4)}, v{VHR+hi} offset:{off+ks*6144+f4*1024}")
        return out
    def mf(st, ks, rs):
        return [f"v_mfma_f32_16x16x32_bf16 {v(ACC+(f4*3+dt)*4,4)}, {v(WF+rs*16+f4*4,4)}, {v(HF+rs*12+dt*4,4)}, {v(ACC+(f4*3+dt)*4,4)}"
                for f4 in range(4) for dt in range(3)]
    consumer_loop(k, N, R, reads, mf, per=1, stamp0=None if os.environ.get('P3S') else 14)
    k("STAMP 7")
    c1 = -2.0 * math.sqrt(2.0 / math.pi) * math.log2(math.e)
    c2 = c1 * 0.044715
    k(f"s_mov_b32 s30, {f32(c2)}\nv_mov_b32 v{T2}, {f32(c1)}")
    BB = WF
    k("s_waitcnt vmcnt(0)")
    for f4 in range(4):
        for h2 in range(2):
            k(f"v_lshlrev_b32 v{BB+f4*4+h2*2}, 16, v{B1+f4*2+h2}\nv_and_b32 v{BB+f4*4+h2*2+1}, 0xffff0000, v{B1+f4*2+h2}")
    k(f"v_lshlrev_b32 v{T0}, 4, v{VL}")
    TT = WF + 16; PKD = HF
    for dt in range(3):
        for pr in range(2):
            xb = [ACC + ((2 * pr + h) * 3 + dt) * 4 for h in range(2)]
            xs = [xb[h] + r for h in range(2) for r in range(4)]
            for h in range(2):
                for h2 in range(2): k(f"v_pk_add_f32 {v(xb[h]+2*h2,2)}, {v(xb[h]+2*h2,2)}, {v(BB+(2*pr+h)*4+2*h2,2)}")
            for h in range(2):
                for h2 in range(2): k(f"v_pk_mul_f32 {v(TT+4*h+2*h2,2)}, {v(xb[h]+2*h2,2)}, {v(xb[h]+2*h2,2)}")
            for n in range(8): k(f"v_fma_f32 v{TT+n}, v{TT+n}, s30, v{T2}")
            for h in range(2):
                for h2 in range(2): k(f"v_pk_mul_f32 {v(TT+4*h+2*h2,2)}, {v(TT+4*h+2*h2,2)}, {v(xb[h]+2*h2,2)}")
            for n in range(8): k(f"v_exp_f32 v{TT+n}, v{TT+n}")
            for n in range(8): k(f"v_add_f32 v{TT+n}, 1.0, v{TT+n}")
            for n in range(8): k(f"v_rcp_f32 v{TT+n}, v{TT+n}")
            for h in range(2):
                for h2 in range(2): k(f"v_pk_mul_f32 {v(xb[h]+2*h2,2)}, {v(xb[h]+2*h2,2)}, {v(TT+4*h+2*h2,2)}")
            o = PKD + (dt * 2 + pr) * 4
            for n in range(4): k(f"v_cvt_pk_bf16_f32 v{o+n}, v{xs[2*n]}, v{xs[2*n+1]}")
            k(f"buffer_store_dwordx4 {v(o,4)}, v{T0}, s[20:23], s40 offen offset:{pr*1024}{WT}")
        k(f"s_add_u32 s40, s40, {144*1024}")
    k(f"v_mov_b32 v{T1}, 0\nv_mov_b32 v{T2}, 1\ns_waitcnt vmcnt(0)")
    last_wave_flag(k, T1, T2, T3, LCNT + 8, 20, 41)
    k(f"s_branch {NXT}")
    k(f"{PROD}:\ns_and_b32 s26, s28, 1\ns_cmp_ge_u32 s28, 6\ns_cbranch_scc1 {PA}")
    VD = 10
    for q in range(2):
        k(f"v_add_u32 v{T0}, {4*q}, v{VG}")
        k(f"v_lshlrev_b32 v{T1}, 1, v{T0}\nv_xor_b32 v{T1}, v{T1}, v{VI}\nv_lshlrev_b32 v{T1}, 4, v{T1}")
        k(f"v_mul_u32_u24 v{T0}, 9216, v{T0}\nv_add_u32 v{VD+q}, v{T0}, v{T1}")
    for q in range(2, 8): k(f"v_add_u32 v{VD+q}, {8*9216}, v{VD+q-2}")
    k(f"s_lshl_b32 s32, s24, 8\ns_mul_i32 s30, s26, {32*9216}\ns_add_u32 s32, s32, s30\ns_lshl_b32 s34, s26, 13")
    srd(k, 12, PW1, S_ * F_ * 2)
    producer_loop(k, N, R, 8, lambda st, slot: [dma(34, slot * STG + q * 1024, VD + q, 12, 32) for q in range(8)] + [f"s_add_u32 s32, s32, {64*9216}"], NXT, first=int(os.environ.get("FIRST4", 2)))
    k(f"{PA}:")
    k(f"v_lshlrev_b32 v{VD}, 4, v{VL}")
    for q in range(1, 6): k(f"v_add_u32 v{VD+q}, {PS}, v{VD+q-1}")
    k(f"s_mul_i32 s33, s25, {6*PS}\ns_lshl_b32 s30, s26, 10\ns_add_u32 s33, s33, s30\ns_add_u32 s33, s33, {WS_HN}")
    k("s_mul_i32 s35, s26, 6144\ns_add_u32 s35, s35, 16384")
    k(f"s_lshl_b32 s30, s25, 12\ns_add_u32 s30, s30, {F3}\nv_lshlrev_b32 v{T0}, 7, v{VL}")
    if 'nogate' not in XM:
        NG, NG2 = k.lab("NG"), k.lab("NG")
        k(f"s_cmp_ge_u32 s2, 192\ns_cbranch_scc1 {NG}")
        wait_local(k, 20, LCNT + 4)
        k(f"s_branch {NG2}\n{NG}:\ns_mov_b64 exec, 1")
        poll(k, T0, 20, 1, 20, 30, sleep=8)
        k(f"s_mov_b64 exec, -1\n{NG2}:")
    k("s_mov_b32 exec_hi, 0")
    poll(k, T0, 20, 1, 20, 30)
    k("s_mov_b32 exec_hi, -1\nSTAMP 7")
    producer_loop(k, N, R, 6, lambda st, slot: [dma(35, slot * STG + q * 1024, VD + q, 20, 33, SC) for q in range(6)] + ["s_add_u32 s33, s33, 2048"], NXT)
    k(f"{PF}:\ns_sub_u32 s29, s2, 216")
    pf(k, "PF4", 29, 40, 512, 10)
    if os.environ.get("JIT4"):
        s0, sw = [int(t) for t in os.environ["JIT4"].split(",")]
        k(f"s_mov_b32 s30, {F3}\nv_lshlrev_b32 v12, 7, v0\nv_cmp_gt_u32 vcc, 192, v0\ns_and_saveexec_b64 s[62:63], vcc")
        NP = k.lab("NP")
        k(f"s_cbranch_execz {NP}")
        poll(k, 12, 13, 1, 20, 30)
        k(f"{NP}:\ns_mov_b64 exec, -1\ns_barrier")
        w1_addr(k, 10)
        k("s_sub_u32 s29, s11, 27")
        k(f"v_lshrrev_b32 v12, 4, v0\nv_mul_u32_u24 v12, {PS}, v12\nv_and_b32 v13, 15, v0\nv_lshl_add_u32 v12, v13, 7, v12")
        k(f"v_add_u32 v13, {32*PS}, v12\nv_mov_b32 v14, 0x7ff00000\nv_cmp_gt_u32 vcc, 64, v0\nv_cndmask_b32 v13, v14, v13, vcc")
        k(f"s_lshl_b32 s61, s29, 11\ns_add_u32 s61, s61, {WS_HN + s0*2048}\ns_mul_i32 s62, s29, {64*9216}\ns_add_u32 s60, s60, s62\ns_add_u32 s60, s60, {s0*64*9216}")
        for st in range(s0, 32, 5):
            k(f"buffer_load_dword v{DUMMY}, v12, s[20:23], s61 offen\nbuffer_load_dword v{DUMMY}, v13, s[20:23], s61 offen\ns_add_u32 s61, s61, {5*2048}")
            if st + 4 >= sw:
                k(f"buffer_load_dword v{DUMMY}, v10, s[52:55], s60 offen\ns_add_u32 s62, s60, {32*9216}\nbuffer_load_dword v{DUMMY}, v10, s[52:55], s62 offen")
            k(f"s_add_u32 s60, s60, {5*64*9216}")
    k(f"s_branch {NXT}")

def p5(k, ENT):
    STG = 34816; R = 4; N = 18
    PROD = k.lab("P5PROD"); PA = k.lab("P5PA"); FIN = k.lab("FIN")
    k(f"{ENT}:\nSTAMP 8")
    k("s_lshr_b32 s26, s10, 1\ns_and_b32 s25, s11, 3\ns_lshr_b32 s24, s11, 2")
    k("s_and_b32 s29, s10, 1\ns_lshl_b32 s29, s29, 3\ns_add_u32 s24, s24, s29\ns_and_b32 s29, s26, 1")
    ids16(k)
    k(f"s_cmp_ge_u32 s28, 4\ns_cbranch_scc1 {PROD}")
    VTR = 10; VUR = VTR + 2 * R; B2 = VUR + R
    IDN, HR, UF = 24, 28, 48
    WF = UF + 72; ACC = WF + 16
    srd(k, 16, PB2, S_ * 2)
    srd(k, 40, POUT, S_ * D_ * 2)
    k(f"s_lshl_b32 s30, s24, 8\ns_lshl_b32 s31, s28, 6\ns_add_u32 s30, s30, s31\ns_lshl_b32 s31, s29, 5\ns_add_u32 s30, s30, s31\nv_lshlrev_b32 v{T0}, 1, v{VI}")
    k(f"buffer_load_ushort v{B2}, v{T0}, s[16:19], s30 offen")
    k(f"v_lshlrev_b32 v{T3}, 4, v{VL}")
    k(f"s_mul_i32 s49, s25, {9*PS}\ns_lshl_b32 s32, s24, 12\ns_add_u32 s49, s49, s32\ns_lshl_b32 s32, s28, 10\ns_add_u32 s49, s49, s32\ns_add_u32 s49, s49, {WS_H}")
    k(f"s_lshr_b32 s32, s26, 1\ns_mul_i32 s32, s32, {5*PS}\ns_add_u32 s49, s49, s32")
    k(f"v_bfe_u32 v{T0}, v{VL}, 2, 2\nv_lshl_add_u32 v{T0}, v{VG}, 2, v{T0}")
    k(f"v_and_b32 v{T1}, 7, v{T0}\nv_lshlrev_b32 v{T0}, 8, v{T0}\nv_and_b32 v{T2}, 3, v{VL}\nv_lshl_add_u32 v{T0}, v{T2}, 3, v{T0}")
    k("s_lshl_b32 s30, s28, 1\ns_add_u32 s30, s30, s29")
    for l in range(2):
        k(f"s_xor_b32 s31, s30, {l}\nv_xor_b32 v{T2}, s31, v{T1}\nv_lshl_add_u32 v{VTR+l}, v{T2}, 5, v{T0}")
        for sl in range(1, R): k(f"v_add_u32 v{VTR+2*sl+l}, {sl*STG}, v{VTR+l}")
    k(f"v_lshlrev_b32 v{VUR}, 4, v{VL}\nv_add_u32 v{VUR}, 16384, v{VUR}")
    for sl in range(1, R): k(f"v_add_u32 v{VUR+sl}, {sl*STG}, v{VUR}")
    k(f"v_lshlrev_b32 v{T0}, 2, v{VG}\nv_sub_u32 v{T0}, v{VI}, v{T0}\nv_mov_b32 v{T1}, 0x3f80\nv_mov_b32 v{T2}, 0x3f800000")
    k("s_cmp_eq_u32 s29, 0\ns_cselect_b64 s[38:39], -1, 0")
    for j2 in range(2):
        k(f"v_cmp_eq_u32 vcc, {2*j2}, v{T0}\nv_cndmask_b32 v{UF}, 0, v{T1}, vcc")
        k(f"v_cmp_eq_u32 vcc, {2*j2+1}, v{T0}\nv_cndmask_b32 v{UF}, v{UF}, v{T2}, vcc")
        k(f"v_cndmask_b32 v{IDN+j2}, 0, v{UF}, s[38:39]\nv_cndmask_b32 v{IDN+2+j2}, v{UF}, 0, s[38:39]")
    for r in range(72): k(f"v_mov_b32 v{ACC+r}, 0")
    k(f"s_lshl_b32 s32, s24, 2\ns_add_u32 s32, s32, s25")
    k(f"s_mul_i32 s33, s32, {48*2560}\ns_mul_i32 s30, s28, 2560\ns_add_u32 s33, s33, s30\ns_add_u32 s33, s33, {WS_P}")
    for x in (1, 2, 3):
        k(f"s_xor_b32 s30, s26, {x}\ns_sub_u32 s31, s26, s30\ns_sub_u32 s31, s31, 1\ns_and_b32 s31, s31, 3")
        k(f"s_mul_i32 s30, s30, 3\ns_add_u32 s30, s30, s31\ns_mul_i32 s30, s30, {4*2560}\ns_add_u32 s{44+x}, s30, s33")
    k(f"s_mul_i32 s30, s26, {12*2560}\ns_add_u32 s33, s33, s30")
    k(f"s_lshl_b32 s35, s32, 11\ns_lshl_b32 s30, s28, 9\ns_add_u32 s35, s35, s30\ns_add_u32 s35, s35, {F5}\ns_lshl_b32 s30, s26, 7\ns_add_u32 s34, s30, s35")
    k(f"s_lshl_b32 s48, s24, 7\ns_lshl_b32 s31, s28, 5\ns_add_u32 s48, s48, s31\ns_lshl_b32 s31, s29, 4\ns_add_u32 s48, s48, s31\ns_mul_i32 s48, s48, 1152\ns_mul_i32 s31, s25, 288\ns_add_u32 s48, s48, s31")
    firstr = [True]
    def reads(st, slot, ks, rs):
        out = []
        for l in range(2):
            for hf in range(2):
                out.append(f"ds_read_b64_tr_b16 {v(WF+rs*8+l*4+hf*2,2)}, v{VTR+2*slot+l} offset:{ks*8192+hf*4096}")
        for d in range(9):
            out.append(f"ds_read_b128 {v(UF+rs*36+d*4,4)}, v{VUR+slot} offset:{ks*9216+d*1024}")
        if firstr[0]:
            firstr[0] = False
            for d in range(5): out.append(f"buffer_load_dwordx4 {v(HR+4*d,4)}, v{T3}, s[20:23], s49 offen{SC}\ns_add_u32 s49, s49, {PS}")
        return out
    def mf(st, ks, rs):
        return [f"v_mfma_f32_16x16x32_bf16 {v(ACC+(d*2+l)*4,4)}, {v(UF+rs*36+d*4,4)}, {v(WF+rs*8+l*4,4)}, {v(ACC+(d*2+l)*4,4)}"
                for d in range(9) for l in range(2)]
    consumer_loop(k, N, R, reads, mf, per=1, final_barrier=False, stamp0=None if os.environ.get('P3S') else 15)
    k("STAMP 9")
    V16, V8, VZ, VO = VTR, VTR + 1, VTR + 2, VTR + 3
    k(f"v_lshlrev_b32 v{V16}, 4, v{VL}\nv_lshlrev_b32 v{V8}, 3, v{VL}\nv_mov_b32 v{VZ}, 0\nv_mov_b32 v{T2}, 1\ns_waitcnt vmcnt(0)")
    GA, GB = [0, 1, 2, 3, 4], [5, 6, 7, 8]
    def epi(aa):
        own, oth = (GA, GB) if aa == 0 else (GB, GA)
        PK = UF
        n = 0
        for x, grp, l in ((2, oth, 0), (3, oth, 1), (1, own, 1)):
            for c in range(0, len(grp), 2):
                ds = grp[c:c + 2]
                for e, d in enumerate(ds):
                    ac = ACC + (d * 2 + l) * 4
                    k(f"v_cvt_pk_bf16_f32 v{PK+n+2*e}, v{ac}, v{ac+1}\nv_cvt_pk_bf16_f32 v{PK+n+2*e+1}, v{ac+2}, v{ac+3}")
                if len(ds) == 2: k(f"buffer_store_dwordx4 {v(PK+n,4)}, v{V16}, s[20:23], s{44+x} offen offset:{c*512}{WT}")
                else: k(f"buffer_store_dwordx2 {v(PK+n,2)}, v{V8}, s[20:23], s{44+x} offen offset:{c*512}{WT}")
                n += 4
        for e, d in enumerate(own):
            ac = v(ACC + d * 8, 4)
            k(f"v_mfma_f32_16x16x32_bf16 {ac}, {v(HR+4*e,4)}, {v(IDN,4)}, {ac}")
        k(f"v_lshlrev_b32 v{B2}, 16, v{B2}")
        k(f"v_mul_u32_u24 v{VO}, 1152, v{VI}\nv_lshl_add_u32 v{VO}, v{VG}, 3, v{VO}")
        k("s_waitcnt vmcnt(0)")
        set_flag(k, VZ, T2, 20, 34)
        for d in own:
            for h2 in range(2): k(f"v_pk_add_f32 {v(ACC+d*8+2*h2,2)}, {v(ACC+d*8+2*h2,2)}, {v(B2-(B2&1),2)} op_sel:[0,{B2&1}] op_sel_hi:[1,{B2&1}]")
        k(f"v_lshlrev_b32 v{T0}, 7, v{VL}\ns_mov_b64 exec, 0xf")
        poll(k, T0, HR, 1, 20, 35)
        k("s_mov_b64 exec, -1")
        k("STAMP 10")
        RR = UF + 40
        chunks = [own[c:c + 2] for c in range(0, len(own), 2)]
        k(f"s_add_u32 s30, s33, {4*2560}\ns_add_u32 s31, s33, {8*2560}")
        for ci, ds in enumerate(chunks):
            for sl, so in enumerate((33, 30, 31)):
                r = RR + (ci * 3 + sl) * 4
                if len(ds) == 2: k(f"buffer_load_dwordx4 {v(r,4)}, v{V16}, s[20:23], s{so} offen offset:{ci*1024} sc0 sc1")
                else: k(f"buffer_load_dwordx2 {v(r,2)}, v{V8}, s[20:23], s{so} offen offset:{ci*1024} sc0 sc1")
        nst = 0
        for ci, ds in enumerate(chunks):
            k(f"s_waitcnt vmcnt({3*(len(chunks)-1-ci)+nst})")
            for e, d in enumerate(ds):
                o = ACC + d * 8
                for sl in range(3):
                    for h2 in range(2):
                        p = RR + (ci * 3 + sl) * 4 + 2 * e + h2
                        t = PK + (sl * 2 + h2) * 2
                        k(f"v_lshlrev_b32 v{t}, 16, v{p}\nv_and_b32 v{t+1}, 0xffff0000, v{p}")
                for sl in range(3):
                    for h2 in range(2):
                        t = PK + (sl * 2 + h2) * 2
                        k(f"v_pk_add_f32 {v(o+2*h2,2)}, {v(o+2*h2,2)}, {v(t,2)}")
                k(f"v_cvt_pk_bf16_f32 v{o}, v{o}, v{o+1}\nv_cvt_pk_bf16_f32 v{o+1}, v{o+2}, v{o+3}")
                k(f"buffer_store_dwordx2 {v(o,2)}, v{VO}, s[40:43], s48 offen offset:{d*32}")
                nst += 1
        k("s_endpgm")
    A1 = k.lab("A1")
    k(f"s_cmp_ge_u32 s26, 2\ns_cbranch_scc1 {A1}")
    epi(0)
    k(f"{A1}:")
    epi(1)
    k(f"{PROD}:\ns_and_b32 s29, s28, 1\ns_cmp_ge_u32 s28, 6\ns_cbranch_scc1 {PA}")
    VD = 10
    for q in range(2):
        k(f"v_add_u32 v{T0}, {4*q}, v{VG}")
        k(f"v_lshlrev_b32 v{T1}, 1, v{T0}\nv_xor_b32 v{T1}, v{T1}, v{VI}\nv_lshlrev_b32 v{T1}, 4, v{T1}")
        k(f"v_lshl_add_u32 v{VD+q}, v{T0}, 12, v{T1}")
    for q in range(2, 8): k(f"v_add_u32 v{VD+q}, {8*4096}, v{VD+q-2}")
    k(f"s_mul_i32 s32, s26, {1152*4096}\ns_lshl_b32 s30, s29, 17\ns_add_u32 s32, s32, s30\ns_lshl_b32 s30, s24, 8\ns_add_u32 s32, s32, s30\ns_lshl_b32 s34, s29, 13")
    srd(k, 12, PW2, F_ * S_ * 2)
    producer_loop(k, N, R, 8, lambda st, slot: [dma(34, slot * STG + q * 1024, VD + q, 12, 32) for q in range(8)] + [f"s_add_u32 s32, s32, {64*4096}"], FIN, final_barrier=False, first=int(os.environ.get("FIRST5", 2)))
    k(f"{PA}:")
    k(f"v_lshlrev_b32 v{VD}, 4, v{VL}")
    for d in range(1, 9): k(f"v_add_u32 v{VD+d}, {144*1024}, v{VD+d-1}")
    k(f"s_mul_i32 s33, s25, {9*144*1024}\ns_mul_i32 s30, s26, {36*1024}\ns_add_u32 s33, s33, s30\ns_lshl_b32 s30, s29, 10\ns_add_u32 s33, s33, s30\ns_add_u32 s33, s33, {WS_U}")
    k("s_mul_i32 s35, s29, 9216\ns_add_u32 s35, s35, 16384")
    k(f"s_mul_i32 s30, s25, 3\ns_lshr_b32 s30, s30, 1\ns_mul_i32 s31, s26, 6\ns_add_u32 s30, s30, s31\ns_mul_i32 s30, s30, {9*128}\ns_add_u32 s30, s30, {F4}")
    k(f"v_lshlrev_b32 v{T0}, 7, v{VL}")
    if 'nogate' not in XM:
        NG, NG2 = k.lab("NG"), k.lab("NG")
        k(f"s_cmp_ge_u32 s2, 216\ns_cbranch_scc1 {NG}")
        wait_local(k, 20, LCNT + 8)
        k(f"s_branch {NG2}\n{NG}:\ns_mov_b64 exec, 1")
        poll(k, T0, 20, 1, 20, 30, sleep=8)
        k(f"{NG2}:")
    k("s_mov_b64 exec, 0x3ffff")
    poll(k, T0, 20, 1, 20, 30)
    k("s_mov_b64 exec, -1\nSTAMP 9")
    producer_loop(k, N, R, 9, lambda st, slot: [dma(35, slot * STG + q * 1024, VD + q, 20, 33, SC) for q in range(9)] + ["s_add_u32 s33, s33, 2048"], FIN, final_barrier=False)
    k(f"{FIN}:\ns_endpgm")

NAME = "sequential_preLN__sliding_block__mixer_token_mlp__prompt_kernel"
def gen_mega():
    k = Kern(NAME, 512, 256, LCNT + 64)
    k.lab = (lambda f: (lambda base="L": f(base).replace(NAME[:-7], "m")))(k.lab)
    END = k.lab("END")
    k(f"s_cmp_ge_u32 s2, 256\ns_cbranch_scc1 {END}")
    k("s_load_dwordx16 s[64:79], s[0:1], 0\ns_load_dwordx4 s[80:83], s[0:1], 64\ns_load_dwordx2 s[84:85], s[0:1], 80")
    lane_ids(k, VL, 2, 28)
    k("s_and_b32 s10, s2, 7\ns_lshr_b32 s11, s2, 3")
    k(f"v_lshlrev_b32 v{T0}, 2, v{VL}\nv_add_u32 v{T0}, {LCNT}, v{T0}\nv_mov_b32 v{T1}, 0\ns_mov_b64 exec, 0xffff\nds_write_b32 v{T0}, v{T1}\ns_mov_b64 exec, -1")
    E2a, E2b, E3, E4, E5 = [k.lab(n) for n in ("P2A", "P2B", "P3", "P4", "P5")]
    p1(k, (E2a, E2b))
    p2(k, (E2a, E2b), E3)
    p3(k, E3, E4)
    p4(k, E4, E5)
    p5(k, E5)
    k(f"{END}:\ns_endpgm")
    return k
```

```python
from common import *
import os

def producer_loop(k, N, R, P, issue, nxt, first=2, cnt=36, tail=None, final_barrier=True, gate=None):
    special = getattr(issue, "special_from", N)
    def do(st):
        if gate: gate(st)
        for t in issue(st, st % R): k(t)
    first = min(first, R)
    for st in range(first): do(st)
    k(f"s_waitcnt vmcnt({(first - 1) * P})\ns_barrier")
    issued = first
    for st in range(issued, min(N, R)): do(st)
    issued = min(N, R)
    k(f"s_waitcnt vmcnt({(issued - 2) * P})\ns_barrier")
    b = 1
    nsteady = N - R
    nloop = 0
    while gate is None and (nloop + 1) * R <= nsteady and R + (nloop + 1) * R - 1 < special: nloop += 1
    if nloop >= 2:
        L = k.lab("PL")
        k(f"s_mov_b32 s{cnt}, {nloop}\n{L}:")
        for i in range(R):
            do(R + i)
            k(f"s_waitcnt vmcnt({(R - 2) * P})\ns_barrier")
        k(f"s_sub_u32 s{cnt}, s{cnt}, 1\ns_cmp_lg_u32 s{cnt}, 0\ns_cbranch_scc1 {L}")
        b += nloop * R; issued += nloop * R
    while b < N - 1:
        if issued < N:
            do(issued); issued += 1
        k(f"s_waitcnt vmcnt({(issued - (b + 1) - 1) * P})")
        if b == N - 2 and tail: tail(k)
        k("s_barrier")
        b += 1
    if final_barrier: k("s_barrier")
    k(f"s_branch {nxt}")

def consumer_loop(k, N, R, reads, mf, cnt=36, per=2, special_from=None, final_barrier=True, before_last=None, stamp0=None):
    special_from = N if special_from is None else special_from
    if os.environ.get("STG_STAMP") and stamp0 == 12: special_from = 0; k("s_mov_b32 s36, 1")
    if os.environ.get("STG_STAMP") and stamp0 != 12: stamp0 = None
    k("s_barrier")
    if stamp0 is not None: k(f"STAMP {stamp0}")
    for t in reads(0, 0, 0, 0): k(t)
    def stage(st, last=False):
        slot = st % R
        k("s_waitcnt lgkmcnt(0)")
        for t in interleave(mf(st, 0, 0), reads(st, slot, 1, 1), 0, per): k(t)
        fill = []
        if not last:
            k("s_waitcnt lgkmcnt(0)\ns_barrier")
            fill = reads(st + 1, (slot + 1) % R, 0, 0)
        else:
            k("s_waitcnt lgkmcnt(0)")
            if final_barrier: k("s_barrier")
        for t in interleave(mf(st, 1, 1), fill, 0, per): k(t)
    nloop = 0
    while (nloop + 1) * R < N and (nloop + 1) * R < special_from: nloop += 1
    st = 0
    if nloop >= 2:
        L = k.lab("CL")
        k(f"s_mov_b32 s{cnt}, {nloop}\n{L}:")
        for i in range(R): stage(i)
        k(f"s_sub_u32 s{cnt}, s{cnt}, 1\ns_cmp_lg_u32 s{cnt}, 0\ns_cbranch_scc1 {L}")
        st = nloop * R
    while st < N:
        if os.environ.get("STG_STAMP") and stamp0 == 12 and st in (1, 2, 4): k(f"STAMP {13 + (1, 2, 4).index(st)}")
        if st == N - 1 and before_last: before_last()
        stage(st, st == N - 1); st += 1

def dma(m0base, off, vaddr, srd, soff, flags=""):
    return f"s_add_u32 m0, s{m0base}, {off}\ns_nop 0\nbuffer_load_dwordx4 v{vaddr}, s[{srd}:{srd+3}], s{soff} offen{flags} lds"

def poll(k, vaddr, vdst, nd, srd, soff, cnt=37, sleep=True, want=None):
    P, G = k.lab("POLL"), k.lab("GO")
    op = {1: "dword", 2: "dwordx2", 4: "dwordx4"}[nd]
    k(f"s_mov_b32 s{cnt}, 0x100000\n{P}:")
    k(f"buffer_load_{op} {v(vdst, nd)}, v{vaddr}, s[{srd}:{srd+3}], s{soff} offen sc0 sc1\ns_waitcnt vmcnt(0)")
    for i in range(1, nd): k(f"v_min_u32 v{vdst}, v{vdst}, v{vdst+i}")
    k((f"v_cmp_eq_u32 vcc, 0, v{vdst}" if want is None else f"v_cmp_ne_u32 vcc, {want}, v{vdst}") + f"\ns_sub_u32 s{cnt}, s{cnt}, 1\ns_cmp_eq_u32 s{cnt}, 0\ns_cbranch_scc1 {G}")
    if sleep:
        k(f"s_cbranch_vccz {G}\ns_sleep {int(sleep)}\ns_branch {P}\n{G}:")
    else:
        k(f"s_cbranch_vccnz {P}\n{G}:")

def set_flag(k, vz, vone, srd, soff):
    k(f"s_mov_b64 exec, 1\nbuffer_store_dword v{vone}, v{vz}, s[{srd}:{srd+3}], s{soff} offen sc0 sc1\ns_mov_b64 exec, -1")


def last_wave_flag(k, vz, vone, vt, ldsoff, srd, soff, n=4, atomic=False):
    S = k.lab("NL")
    k(f"v_mov_b32 v{vt}, {ldsoff}\ns_mov_b64 exec, 1\nds_add_rtn_u32 v{vt}, v{vt}, v{vone}\ns_waitcnt lgkmcnt(0)\nv_readfirstlane_b32 s31, v{vt}")
    k(f"s_cmp_lg_u32 s31, {n-1}\ns_cbranch_scc1 {S}\n" + (f"buffer_atomic_add v{vone}, v{vz}, s[{srd}:{srd+3}], s{soff} offen sc1" if atomic else f"buffer_store_dword v{vone}, v{vz}, s[{srd}:{srd+3}], s{soff} offen sc0 sc1") + f"\n{S}:\ns_mov_b64 exec, -1")


def wait_local(k, vt, ldsoff, n=4, cnt=37):
    P, G = k.lab("LW"), k.lab("LG")
    k(f"s_mov_b32 s{cnt}, 0x1000000\n{P}:\nv_mov_b32 v{vt}, {ldsoff}\nds_read_b32 v{vt}, v{vt}\ns_waitcnt lgkmcnt(0)\nv_readfirstlane_b32 s31, v{vt}")
    k(f"s_cmp_ge_u32 s31, {n}\ns_cbranch_scc1 {G}\ns_sub_u32 s{cnt}, s{cnt}, 1\ns_cmp_eq_u32 s{cnt}, 0\ns_cbranch_scc1 {G}\ns_sleep 1\ns_branch {P}\n{G}:")
```

```python
from common import *
from ring2 import *
import math, os
XM = os.environ.get('MX', 'notouch,nopoison,noslow').split(',')
WT = " sc0 sc1"
SC = " sc1"
FL = WS_ST + 196608
F1 = FL; F2 = F1 + 32768; F3 = F2 + 32768; F4 = F3 + 24576; F5 = F4 + 27648; FEND = F5 + 131072
assert FEND - WS_ST <= 64 * 8192
LX = 61440
LCNT = 160768
WS_XS = 22 * MB
WS_CS = WS_XS + 16384
PX, PWQKV, PWO, PW1, PB1, PW2, PB2, POUT, PDBG, PWS = 64, 66, 68, 72, 74, 76, 78, 80, 82, 84
VL, VG, VI = 1, 3, 4
T0, T1, T2, T3 = 5, 6, 7, 8
DUMMY = 234

def pf_flat(k, srd_, sidx, nwg, nthreads, b0, b1, tmp, vt=0, s0=60):
    lines = (b1 - b0) // 128
    per = (lines + nwg - 1) // nwg
    n = (per + nthreads - 1) // nthreads
    k(f"s_mul_i32 s{s0}, s{sidx}, {per*128}\ns_add_u32 s{s0}, s{s0}, {b0}\nv_lshlrev_b32 v{tmp}, 7, v{vt}")
    for i in range(n):
        last = per - i * nthreads
        if last < nthreads:
            k(f"v_mov_b32 v{tmp+1}, 0x7ff00000\nv_cmp_gt_u32 vcc, {last}, v{vt}\nv_cndmask_b32 v{tmp}, v{tmp+1}, v{tmp}, vcc")
        k(f"buffer_load_dword v{DUMMY}, v{tmp}, s[{srd_}:{srd_+3}], s{s0} offen\ns_add_u32 s{s0}, s{s0}, {nthreads*128}")

PFDEF = dict(PF1B="w1:0:44", PF2="w1:44:92", PF3="w1:92:128,w2:0:28", PF4="w2:28:128")
def pf(k, name, sidx, nwg, nthreads, tmp, vt=0):
    spec = os.environ.get(name, PFDEF.get(name, ""))
    if not spec or spec == "0": return
    U = S_ * F_ * 2 // 128
    for it in spec.split(","):
        w, a_, b_ = it.split(":")
        srd(k, 52, PW1 if w == "w1" else PW2, S_ * F_ * 2)
        pf_flat(k, 52, sidx, nwg, nthreads, int(a_) * U, int(b_) * U, tmp, vt=vt)

def w1_addr(k, tmp):
    srd(k, 52, PW1, S_ * F_ * 2)
    k("s_lshr_b32 s60, s10, 1\ns_mul_i32 s60, s60, 9\ns_and_b32 s61, s10, 1\ns_lshl_b32 s61, s61, 2\ns_add_u32 s60, s60, s61\ns_lshl_b32 s60, s60, 8")
    k(f"v_lshrrev_b32 v{tmp}, 4, v0\nv_mul_u32_u24 v{tmp}, 9216, v{tmp}\nv_and_b32 v{tmp+1}, 15, v0\nv_lshl_add_u32 v{tmp}, v{tmp+1}, 7, v{tmp}")
    k(f"v_cmp_lt_u32 vcc, 9, v{tmp+1}\nv_mov_b32 v{tmp+1}, 0x7ff00000\nv_cndmask_b32 v{tmp}, v{tmp}, v{tmp+1}, vcc")

def w1_rows(k, sidx, rows, r0, _):
    w1_addr(k, 10)
    k(f"s_mul_i32 s61, s{sidx}, {rows*9216}\ns_add_u32 s60, s60, s61\ns_add_u32 s60, s60, {r0*9216}")
    for i in range((rows + 31) // 32):
        k(f"buffer_load_dword v{DUMMY}, v10, s[52:55], s60 offen\ns_add_u32 s60, s60, {32*9216}")

def w1slow(k):
    srd(k, 52, PW1, S_ * F_ * 2)
    k("s_lshr_b32 s60, s10, 1\ns_mul_i32 s60, s60, 9\ns_and_b32 s61, s10, 1\ns_lshl_b32 s61, s61, 2\ns_add_u32 s60, s60, s61")
    k("s_sub_u32 s61, 1, s60\ns_and_b32 s61, s61, 3\ns_add_u32 s60, s60, s61\ns_lshl_b32 s60, s60, 8\ns_add_u32 s60, s60, 128")
    k(f"s_sub_u32 s62, s11, 27\nv_mul_u32_u24 v10, 5, v0\nv_add_u32 v10, s62, v10\nv_mul_u32_u24 v10, 9216, v10")
    k(f"buffer_load_dword v{DUMMY}, v10, s[52:55], s60 offen\ns_add_u32 s60, s60, 1024\ns_cmp_eq_u32 s61, 0\ns_cselect_b32 s54, s54, 0")
    k(f"buffer_load_dword v{DUMMY}, v10, s[52:55], s60 offen")

def ids16(k):
    k(f"v_lshrrev_b32 v{VG}, 4, v{VL}\nv_and_b32 v{VI}, 15, v{VL}")

def p1(k, NXT):
    R = 4; STG = 34816; N = 9; XO = 18432
    PROD = k.lab("P1PROD"); PF = k.lab("P1PF"); PX_ = k.lab("P1PX")
    k("s_and_b32 s24, s10, 3\ns_lshl_b32 s24, s24, 2\ns_and_b32 s25, s11, 3\ns_add_u32 s24, s24, s25")
    k("s_lshr_b32 s25, s10, 2\ns_mul_i32 s25, s25, 6\ns_lshr_b32 s29, s11, 2\ns_add_u32 s25, s25, s29")
    ids16(k)
    def touch():
        k(f"v_mul_u32_u24 v{T0}, 4682, v{VL}\nv_lshrrev_b32 v{T0}, 16, v{T0}")
        k(f"v_mul_u32_u24 v{T1}, 14, v{T0}\nv_sub_u32 v{T1}, v{VL}, v{T1}")
        k(f"v_lshrrev_b32 v{T2}, 1, v{T0}\nv_mul_u32_u24 v{T2}, 62, v{T2}\nv_add_u32 v{T0}, v{T0}, v{T2}")
        k(f"v_mul_u32_u24 v{T0}, 3456, v{T0}\nv_lshl_add_u32 v{T0}, v{T1}, 7, v{T0}\nv_lshlrev_b32 v{T1}, 7, v{VL}")
        k(f"s_add_u32 s30, s28, 1\ns_mul_i32 s30, s30, {128*3456}\ns_mul_i32 s31, s11, {2*3456}\ns_add_u32 s30, s30, s31\ns_lshr_b32 s31, s10, 2\ns_mul_i32 s31, s31, {13*128}\ns_add_u32 s30, s30, s31")
        k(f"s_and_b32 s31, s10, 3\ns_mul_i32 s31, s31, {512*1152}\ns_mul_i32 s29, s11, {16*1152}\ns_add_u32 s31, s31, s29\ns_mul_i32 s29, s28, {36*128}\ns_add_u32 s31, s31, s29")
        k("s_waitcnt lgkmcnt(0)")
        srd(k, 12, PX, S_ * D_ * 2)
        srd(k, 16, PWQKV, D_ * 1728 * 2)
        if 'notouch' in XM: return
        k("s_mov_b32 exec_hi, 0xf")
        k(f"buffer_load_dword v{DUMMY}, v{T1}, s[12:15], s31 offen")
        k("s_mov_b32 exec_hi, 0xffffff")
        k(f"buffer_load_dword v{DUMMY}, v{T0}, s[16:19], s30 offen")
        k("s_mov_b32 exec_hi, -1")
    k(f"s_cmp_ge_u32 s11, 24\ns_cbranch_scc1 {PF}")
    k(f"s_cmp_ge_u32 s28, 4\ns_cbranch_scc1 {PROD}")
    k("s_lshr_b32 s26, s25, 2\ns_and_b32 s27, s25, 3")
    VTR, VXR, VC, ZD, XF, WF = 10, 12, 16, 18, 20, 36
    ACC = WF + 72
    CSR = ACC + 72; STR = CSR + 36
    assert STR + 16 <= DUMMY
    k(f"v_bfe_u32 v{T0}, v{VL}, 2, 2\nv_lshl_add_u32 v{T0}, v{VG}, 2, v{T0}\nv_mul_u32_u24 v{T0}, 288, v{T0}")
    k(f"v_and_b32 v{T1}, 3, v{VL}\nv_lshl_add_u32 v{VTR}, v{T1}, 3, v{T0}\nv_mul_u32_u24 v{T1}, 72, v{T1}\nv_add3_u32 v{VTR+1}, v{T0}, v{T1}, 32")
    k(f"v_lshrrev_b32 v{T0}, 1, v{VI}\nv_lshrrev_b32 v{T1}, 1, v{VG}\nv_xor_b32 v{T0}, v{T0}, v{T1}\nv_lshlrev_b32 v{T0}, 4, v{T0}\nv_lshl_add_u32 v{T0}, v{VI}, 7, v{T0}")
    k(f"v_and_b32 v{T1}, 1, v{VG}\nv_lshl_add_u32 v{T0}, v{T1}, 3, v{T0}")
    k(f"s_lshl_b32 s30, s28, 12\ns_add_u32 s30, s30, {XO}\nv_add_u32 v{VXR}, s30, v{T0}")
    for q in range(1, 4): k(f"v_xor_b32 v{VXR+q}, {32*q}, v{VXR}")
    for r in range(72): k(f"v_mov_b32 v{ACC+r}, 0")
    k(f"v_mov_b32 v{VC}, 0")
    touch()
    srd(k, 20, PWS, WS_SIZE)
    srd(k, 56, PDBG, 256)
    k(f"s_mul_i32 s50, s25, {9*PS}\ns_lshl_b32 s30, s24, 2\ns_add_u32 s30, s30, s28\ns_lshl_b32 s49, s30, 7\ns_lshl_b32 s30, s30, 10\ns_add_u32 s50, s50, s30")
    k(f"s_add_u32 s49, s49, {WS_XS}\ns_mul_i32 s51, s25, 576\ns_add_u32 s51, s51, {WS_CS}")
    k(f"s_lshl_b32 s48, s27, 4\ns_add_u32 s48, s48, s24\ns_lshl_b32 s48, s48, 2\ns_add_u32 s48, s48, s26\ns_lshl_b32 s48, s48, 7\ns_add_u32 s48, s48, {F1}")
    first = [True]
    coff = [72 * (T >> 1) + 40 * (T & 1) for T in range(8)]
    def body(vor):
        first[0] = True
        def side():
            OK = k.lab("ZOK")
            if not os.environ.get("STG_STAMP"): k("STAMP 13")
            k(f"s_waitcnt vmcnt(0)\nv_cmp_gt_u32 vcc, 64, v{ZD}\ns_mov_b32 s31, 0\ns_nop 3\ns_cbranch_vccz {OK}")
            poll(k, VC, ZD, 1, 56, 31, want=64)
            k(f"{OK}:")
            if not vor:
                k(f"v_lshlrev_b32 v{VC}, 4, v{VG}\nv_mul_u32_u24 v{VC+1}, 144, v{VG}\nv_lshlrev_b32 v{ZD}, 2, v{VI}")
                for tt in range(2):
                    k(f"buffer_load_dword v{STR+2*tt}, v{ZD}, s[20:23], s49 offen offset:{tt*64}{SC}")
                k("s_add_u32 s49, s49, 8192")
                for tt in range(2):
                    k(f"buffer_load_dword v{STR+2*tt+1}, v{ZD}, s[20:23], s49 offen offset:{tt*64}{SC}")
                for T in range(9):
                    k(f"buffer_load_dwordx4 {v(CSR+4*T,4)}, v{VC+(T==8)}, s[20:23], s51 offen offset:{2*coff[T] if T < 8 else 64}{SC}")
            else:
                k(f"v_lshlrev_b32 v{VC}, 2, v{VI}\nv_lshrrev_b32 v{VC+1}, 2, v{VI}\nv_mul_u32_u24 v{VC+1}, 128, v{VC+1}\nv_add_u32 v{VC+1}, v{VC+1}, v{VC}\nv_lshlrev_b32 v{ZD}, 4, v{VG}")
                for hf in range(2):
                    for tt in range(2):
                        k(f"buffer_load_dwordx4 {v(STR+tt*8+hf*4,4)}, v{ZD}, s[20:23], s49 offen offset:{tt*64}{SC}")
                    if hf == 0: k("s_add_u32 s49, s49, 8192")
                for T in range(9):
                    k(f"buffer_load_dword v{CSR+T}, v{VC+(T==8)}, s[20:23], s51 offen offset:{2*coff[T] if T < 8 else 64}{SC}")
        def reads(st, slot, ks, rs):
            out = []
            if ks == 0 and not first[0]:
                d = STG if slot else -(R - 1) * STG
                regs = list(range(VXR, VXR + 4)) + [VTR, VTR + 1]
                out += [f"v_add_u32 v{r}, {d}, v{r}" if d > 0 else f"v_subrev_u32 v{r}, {-d}, v{r}" for r in regs]
            first[0] = False
            for tt in range(2):
                for hf in range(2):
                    out.append(f"ds_read_b64 {v(XF+rs*8+tt*4+hf*2,2)}, v{VXR+2*ks+hf} offset:{tt*2048}")
            for j in range(9):
                for hf in range(2):
                    out.append(f"ds_read_b64_tr_b16 {v(WF+rs*36+j*4+hf*2,2)}, v{VTR+(j==8)} offset:{ks*9216+hf*4608+(coff[j] if j < 8 else 0)}")
            if slot == 3 and ks == 1 and not (os.environ.get('STG_STAMP') and st == 3):
                L = k.lab("ZS")
                out.append(f"s_cmp_lg_u32 s36, 1\ns_cbranch_scc1 {L}\nbuffer_load_dword v{ZD}, v{VC}, s[56:59], 0 offen sc0 sc1\n{L}:")
            return out
        def mf(st, ks, rs):
            g = []
            for j in range(9):
                wf = v(WF + rs * 36 + j * 4, 4)
                for tt in range(2):
                    xf = v(XF + rs * 8 + tt * 4, 4)
                    ac = v(ACC + (j * 2 + tt) * 4, 4)
                    g.append(f"v_mfma_f32_16x16x32_bf16 {ac}, {xf}, {wf}, {ac}" if vor else f"v_mfma_f32_16x16x32_bf16 {ac}, {wf}, {xf}, {ac}")
            return g
        consumer_loop(k, N, R, reads, mf, per=[2] * 8 + [1], final_barrier=False, before_last=side, stamp0=12)
        k("STAMP 1")
        qs = 18 ** -0.5 * math.log2(math.e)
        OUT = XF; VM0 = VTR
        k(f"v_lshlrev_b32 v{VM0}, 4, v{VL}\ns_waitcnt vmcnt(0)")
        if not vor:
            k(f"s_cmp_eq_u32 s26, 0\ns_cselect_b32 s31, {f32(qs)}, 1.0")
            for tt in range(2): k(f"v_mul_f32 v{STR+2*tt+1}, s31, v{STR+2*tt+1}")
        sw = "32" if vor else "16"
        def fin(j):
            po = OUT + (j % 4) * 4
            k(f"v_permlane{sw}_swap_b32 v{po}, v{po+2}\nv_permlane{sw}_swap_b32 v{po+1}, v{po+3}")
            k(f"buffer_store_dwordx4 {v(po,4)}, v{VM0}, s[20:23], s50 offen{WT}\ns_add_u32 s50, s50, {PS}")
        for j in range(9):
            o = OUT + (j % 4) * 4
            for tt in range(2):
                ac = ACC + (j * 2 + tt) * 4
                for h2 in range(2):
                    if not vor:
                        k(f"v_pk_fma_f32 {v(ac+2*h2,2)}, {v(STR+2*tt,2)}, {v(CSR+4*j+2*h2,2)}, {v(ac+2*h2,2)} op_sel_hi:[0,1,1] neg_lo:[1,0,0] neg_hi:[1,0,0]")
                    else:
                        c = CSR + (j & ~1); sel = j & 1
                        k(f"v_pk_fma_f32 {v(ac+2*h2,2)}, {v(STR+tt*8+2*h2,2)}, {v(c,2)}, {v(ac+2*h2,2)} op_sel:[0,{sel},0] op_sel_hi:[1,{sel},1] neg_lo:[1,0,0] neg_hi:[1,0,0]")
            for tt in range(2):
                ac = ACC + (j * 2 + tt) * 4
                for h2 in range(2):
                    if not vor: k(f"v_pk_mul_f32 {v(ac+2*h2,2)}, {v(ac+2*h2,2)}, {v(STR+2*tt,2)} op_sel:[0,1] op_sel_hi:[1,1]")
                    else: k(f"v_pk_mul_f32 {v(ac+2*h2,2)}, {v(ac+2*h2,2)}, {v(STR+tt*8+4+2*h2,2)}")
            for tt in range(2):
                ac = ACC + (j * 2 + tt) * 4
                k(f"v_cvt_pk_bf16_f32 v{o+2*tt}, v{ac}, v{ac+1}\nv_cvt_pk_bf16_f32 v{o+2*tt+1}, v{ac+2}, v{ac+3}")
            if j > 0: fin(j - 1)
        fin(8)
        k(f"v_mov_b32 v{T0}, 0\nv_mov_b32 v{T1}, 1\ns_waitcnt vmcnt(0)")
        last_wave_flag(k, T0, T1, T2, LCNT, 20, 48)
        k(f"s_branch {NXT[0]}")
    LV = k.lab("VOR")
    k(f"s_cmp_eq_u32 s26, 2\ns_cbranch_scc1 {LV}")
    body(False)
    k(f"{LV}:")
    body(True)
    k(f"{PROD}:")
    k(f"s_and_b32 s29, s28, 1\ns_cmp_ge_u32 s28, 6\ns_cbranch_scc1 {PX_}")
    VD = 10
    k(f"s_mov_b32 s30, {3456-288}")
    for q in range(9):
        k(f"v_add_u32 v{T0}, {q*64}, v{VL}\nv_mul_u32_u24 v{T1}, 3641, v{T0}\nv_lshrrev_b32 v{T1}, 16, v{T1}")
        k(f"v_lshlrev_b32 v{T0}, 4, v{T0}\nv_mad_u32_u24 v{VD+q}, v{T1}, s30, v{T0}")
    k(f"s_mul_i32 s33, s25, 288\ns_mul_i32 s30, s29, {32*3456}\ns_add_u32 s33, s33, s30\ns_mul_i32 s34, s29, 9216")
    k("s_waitcnt lgkmcnt(0)")
    srd(k, 16, PWQKV, D_ * 1728 * 2)
    srd(k, 20, PWS, WS_SIZE)
    def tail(kk):
        k("v_subrev_u32 v40, 256, v0")
        pf(k, "PF1T", 2, 192, 256, 42, vt=40)
    producer_loop(k, N, R, 9, lambda st, slot: [dma(34, slot * STG + q * 1024, VD + q, 16, 33) for q in range(9)] + [f"s_add_u32 s33, s33, {64*3456}"], NXT[1], final_barrier=False, tail=tail, first=int(os.environ.get('FIRST1', 2)))
    k(f"{PX_}:")
    for q in range(2):
        k(f"v_lshrrev_b32 v{T0}, 3, v{VL}\nv_add_u32 v{T0}, {8*q}, v{T0}")
        k(f"v_bfe_u32 v{T1}, v{T0}, 1, 3\nv_and_b32 v{T2}, 7, v{VL}\nv_xor_b32 v{T1}, v{T1}, v{T2}\nv_lshlrev_b32 v{T1}, 4, v{T1}")
        k(f"v_mul_u32_u24 v{T0}, 1152, v{T0}\nv_add_u32 v{VD+q}, v{T0}, v{T1}")
    for q in range(2, 8): k(f"v_add_u32 v{VD+q}, {16*1152}, v{VD+q-2}")
    k("s_lshl_b32 s32, s24, 7\ns_lshl_b32 s30, s29, 6\ns_add_u32 s32, s32, s30\ns_mul_i32 s32, s32, 1152")
    k(f"s_lshl_b32 s35, s29, 13\ns_add_u32 s35, s35, {XO}")
    k("s_waitcnt lgkmcnt(0)")
    srd(k, 12, PX, S_ * D_ * 2)
    srd(k, 20, PWS, WS_SIZE)
    producer_loop(k, N, R, 8, lambda st, slot: [dma(35, slot * STG + q * 1024, VD + q, 12, 32) for q in range(8)] + ["s_add_u32 s32, s32, 128"], NXT[1], final_barrier=False, tail=tail, first=int(os.environ.get('FIRST1', 2)))
    k(f"{PF}:")
    XA, WA, SM, CA = 12, 32, 52, 56
    NT_ = k.lab("NT")
    k(f"s_cmp_ge_u32 s28, 4\ns_cbranch_scc1 {NT_}")
    touch()
    k(f"{NT_}:\ns_sub_u32 s29, s2, 192")
    k(f"v_lshrrev_b32 v{T0}, 4, v0\nv_mul_u32_u24 v{T0}, 1152, v{T0}\nv_lshl_add_u32 v{T0}, v{VI}, 4, v{T0}")
    k(f"v_add_u32 v{T1}, 1024, v{T0}\nv_mov_b32 v{T2}, 0x7ff00000\nv_cmp_gt_u32 vcc, 8, v{VI}\nv_cndmask_b32 v{T1}, v{T2}, v{T1}, vcc")
    k(f"v_lshrrev_b32 v{T2}, 2, v0\nv_mul_u32_u24 v{T2}, 3456, v{T2}\nv_and_b32 v{T3}, 3, v0\nv_lshl_add_u32 v{T2}, v{T3}, 4, v{T2}")
    k(f"s_mul_i32 s30, s29, {32*1152}\ns_lshl_b32 s31, s29, 6\ns_cmp_ge_u32 s29, 54\ns_cselect_b32 s31, 0x7000000, s31")
    k("s_waitcnt lgkmcnt(0)")
    srd(k, 12, PX, S_ * D_ * 2)
    srd(k, 16, PWQKV, D_ * 1728 * 2)
    for q in range(5):
        k(f"buffer_load_dwordx4 {v(XA+4*q,4)}, v{T0 if q < 4 else T1}, s[12:15], s30 offen" + (f" offset:{q*256}" if q < 4 else ""))
    for q in range(5):
        k(f"buffer_load_dwordx4 {v(WA+4*q,4)}, v{T2}, s[16:19], s31 offen\ns_add_u32 s31, s31, {128*3456}")
    srd(k, 20, PWS, WS_SIZE)
    srd(k, 56, PDBG, 256)
    k(f"s_lshl_b32 s32, s29, 13\ns_add_u32 s32, s32, {WS_ST}\nv_lshlrev_b32 v{T3}, 4, v0")
    for r in range(4): k(f"v_mov_b32 v{CA+8+r}, 0")
    k(f"buffer_store_dwordx4 {v(CA+8,4)}, v{T3}, s[20:23], s32 offen{WT}")
    k(f"v_mov_b32 v{SM}, 0\nv_mov_b32 v{SM+1}, 0\nv_mov_b32 v{SM+2}, 0x3f803f80")
    k("s_waitcnt vmcnt(6)\nSTAMP 1")
    for r in range(20): k(f"v_dot2c_f32_bf16 v{SM}, v{XA+r}, v{SM+2}\nv_dot2c_f32_bf16 v{SM+1}, v{XA+r}, v{XA+r}")
    k("s_waitcnt vmcnt(1)")
    for q in range(5):
        for r in range(4):
            p = WA + 4 * q + r
            if q == 0: k(f"v_lshlrev_b32 v{CA+2*r}, 16, v{p}\nv_and_b32 v{CA+2*r+1}, 0xffff0000, v{p}")
            else: k(f"v_lshlrev_b32 v{T0}, 16, v{p}\nv_and_b32 v{T1}, 0xffff0000, v{p}\nv_add_f32 v{CA+2*r}, v{CA+2*r}, v{T0}\nv_add_f32 v{CA+2*r+1}, v{CA+2*r+1}, v{T1}")
    for sh in (8, 4, 2, 1):
        for r in range(2): k(f"v_add_f32_dpp v{SM+r}, v{SM+r}, v{SM+r} row_ror:{sh} row_mask:0xf bank_mask:0xf")
        if sh >= 4:
            for r in range(8): k(f"v_add_f32_dpp v{CA+r}, v{CA+r}, v{CA+r} row_ror:{sh} row_mask:0xf bank_mask:0xf")
    for sw in ("16", "32"):
        for r in range(8): k(f"v_mov_b32 v{XA+r}, v{CA+r}")
        for r in range(8): k(f"v_permlane{sw}_swap_b32 v{CA+r}, v{XA+r}")
        for r in range(8): k(f"v_add_f32 v{CA+r}, v{CA+r}, v{XA+r}")
    k(f"s_lshl_b32 s30, s28, 7\nv_lshlrev_b32 v{T0}, 5, v{VL}\nv_add_u32 v{T0}, s30, v{T0}\ns_mov_b64 exec, 0xf")
    k(f"ds_write_b128 v{T0}, {v(CA,4)}\nds_write_b128 v{T0}, {v(CA+4,4)} offset:16\ns_mov_b64 exec, -1")
    k(f"s_mov_b32 s30, {f32(1.0/576)}\nv_mul_f32 v{SM}, s30, v{SM}\nv_mul_f32 v{SM+1}, s30, v{SM+1}\nv_fma_f32 v{SM+1}, -v{SM}, v{SM}, v{SM+1}")
    k(f"v_max_f32 v{SM+1}, 0, v{SM+1}\nv_add_f32 v{SM+1}, {f32(1e-5)}, v{SM+1}\nv_rsq_f32 v{SM+1}, v{SM+1}")
    k(f"s_lshl_b32 s30, s29, 7\ns_add_u32 s30, s30, {WS_XS}\ns_add_u32 s31, s30, 8192\nv_lshrrev_b32 v{T0}, 4, v0\nv_lshlrev_b32 v{T0}, 2, v{T0}")
    k(f"v_cmp_eq_u32 vcc, 0, v{VI}\ns_and_saveexec_b64 s[62:63], vcc")
    k(f"buffer_store_dword v{SM}, v{T0}, s[20:23], s30 offen{WT}\nbuffer_store_dword v{SM+1}, v{T0}, s[20:23], s31 offen{WT}\ns_mov_b64 exec, -1")
    k("s_waitcnt lgkmcnt(0)\ns_barrier")
    NZ = k.lab("NZ"); NZ2 = k.lab("NZ")
    k(f"s_cmp_lg_u32 s28, 0\ns_cbranch_scc1 {NZ}\nv_lshlrev_b32 v{T0}, 2, v{VL}")
    for q in range(8): k(f"ds_read_b32 v{XA+q}, v{T0} offset:{q*128}")
    k(f"s_lshl_b32 s30, s29, 7\ns_add_u32 s30, s30, {WS_CS}\ns_waitcnt lgkmcnt(0)")
    for q in range(1, 8): k(f"v_add_f32 v{XA}, v{XA}, v{XA+q}")
    k(f"s_mov_b32 exec_hi, 0\nbuffer_store_dword v{XA}, v{T0}, s[20:23], s30 offen{WT}\ns_mov_b32 exec_hi, -1\n{NZ}:")
    k(f"v_mov_b32 v{T0}, 0\nv_mov_b32 v{T1}, 1\ns_waitcnt vmcnt(0)\nSTAMP 5\ns_barrier\ns_cmp_lg_u32 s28, 0\ns_cbranch_scc1 {NZ2}")
    k(f"s_mov_b64 exec, 1\nbuffer_atomic_add v{T1}, v{T0}, s[56:59], 0 offen sc1\ns_mov_b64 exec, -1\n{NZ2}:\ns_barrier")
    pf(k, "PF1B", 29, 64, 512, 66)
    k(f"s_branch {NXT[1]}")

def p2(k, ENT, NXT):
    LK8 = 24576; LV = 30720; REC = 1168; SEC = 36 * PS
    VH, VQ = 3, 4
    V16, VV, V8A = 5, 6, 7
    QM, Q8 = 8, 12
    KF, K8F, VF, O = 16, 28, 40, 56
    MX, MX2, TA, TB = 72, 73, 74, 75
    AK, AK8, AV = 76, 77, 78
    VV8, VK8 = 79, 2
    S0 = 80
    k(f"{ENT[1]}:\ns_waitcnt vmcnt(0)\ns_cmp_lg_u32 s28, 7\ns_cbranch_scc1 {ENT[0]}")
    srd(k, 56, PDBG, 256)
    k(f"v_mov_b32 v{TA}, 0\ns_mov_b32 s31, 0")
    poll(k, TA, TB, 1, 56, 31, want=64)
    k(f"{ENT[0]}:")
    k("STAMP 2")
    k("s_lshl_b32 s24, s10, 1\ns_and_b32 s25, s11, 1\ns_add_u32 s24, s24, s25\ns_lshr_b32 s25, s11, 1")
    k(f"v_lshrrev_b32 v{VH}, 5, v{VL}\nv_and_b32 v{VQ}, 31, v{VL}")
    k("s_lshr_b32 s26, s28, 2\ns_and_b32 s27, s28, 3")
    k(f"v_lshlrev_b32 v{V16}, 4, v{VL}")
    k(f"v_mul_u32_u24 v{VV}, {PS}, v{VH}\nv_lshl_add_u32 v{VV}, v{VQ}, 4, v{VV}")
    k(f"s_lshr_b32 s47, s24, 2\ns_and_b32 s31, s24, 3\ns_mul_i32 s34, s47, 9\ns_lshl_b32 s32, s31, 1\ns_add_u32 s44, s32, s34\ns_add_u32 s32, s44, s26\ns_mul_i32 s32, s32, {PS}")
    k(f"s_add_u32 s34, s34, 8\ns_mul_i32 s34, s34, {PS}\ns_mul_i32 s44, s44, {PS}\ns_add_u32 s44, s44, {2*SEC}")
    k("s_lshr_b32 s30, s31, 1\ns_lshl_b32 s30, s30, 9\ns_add_u32 s41, s34, s30")
    k(f"s_and_b32 s30, s31, 1\ns_lshl_b32 s30, s30, 3\nv_lshlrev_b32 v{V8A}, 4, v{VQ}\nv_add_u32 v{V8A}, s30, v{V8A}")
    k(f"s_lshl_b32 s45, s31, 6\ns_add_u32 s45, s45, s34\ns_add_u32 s45, s45, {2*SEC}")
    k(f"v_lshrrev_b32 v{TA}, 2, v{VL}\nv_lshlrev_b32 v{TA}, 8, v{TA}\nv_and_b32 v{TB}, 3, v{VL}\nv_lshl_add_u32 v{VV8}, v{TB}, 4, v{TA}")
    k(f"v_lshlrev_b32 v{VK8}, 4, v{VQ}\nv_lshl_add_u32 v{VK8}, v{VH}, 10, v{VK8}")
    k("s_lshl_b32 s33, s25, 2\ns_mul_i32 s30, s27, 3\ns_add_i32 s35, s33, s30\ns_sub_i32 s35, s35, 8")
    k("s_mul_i32 s31, s26, 12\ns_add_u32 s31, s31, s30\ns_lshl_b32 s46, s31, 10")
    k(f"s_lshl_b32 s30, s28, 1\ns_add_i32 s30, s30, s33\ns_sub_i32 s30, s30, 8\ns_max_i32 s30, s30, 0\ns_lshl_b32 s30, s30, 10\ns_add_u32 s33, s33, s27")
    k(f"s_lshl_b32 s39, s33, 10\ns_add_u32 s40, s39, s41\ns_add_u32 s39, s39, s32\ns_add_u32 s41, s41, s30\ns_add_u32 s41, s41, {SEC}\ns_add_u32 s38, s32, {SEC}")
    k(f"s_lshl_b32 s42, s28, 10\ns_add_u32 s42, s42, {LK8}")
    k(f"s_mul_i32 s43, s28, 3\ns_lshl_b32 s36, s25, 3\ns_add_i32 s36, s36, s43\ns_sub_i32 s36, s36, 16\ns_mul_i32 s43, s43, {REC}\ns_add_u32 s43, s43, {LV}")
    NEG = f32(-1e30)
    k(f"v_lshlrev_b32 v{TA}, 2, v{VH}\nv_sub_u32 v{TA}, v{VQ}, v{TA}\nv_mov_b32 v{TB}, {NEG}")
    for b in range(4):
        for r in range(4): k(f"v_cmp_gt_i32 s[{86+2*r}:{87+2*r}], {8*b+r}, v{TA}")
        for r in range(4): k(f"v_cndmask_b32 v{S0+4*b+r}, v{TB}, 0, s[{86+2*r}:{87+2*r}]")
        for r in range(4): k(f"v_cndmask_b32 v{S0+128+4*b+r}, 0, v{TB}, s[{86+2*r}:{87+2*r}]")
    k(f"s_mul_i32 s30, s26, 12\ns_add_u32 s30, s30, s27\ns_lshl_b32 s30, s30, 10\nv_add_u32 v{AK}, s30, v{V16}")
    k(f"s_lshl_b32 s30, s27, 9\ns_add_u32 s30, s30, {LK8}\nv_add_u32 v{AK8}, s30, v{V8A}")
    for q in range(3):
        k(f"v_mov_b32 v{K8F+q*4+2}, 0\nv_mov_b32 v{K8F+q*4+3}, 0")
    k(f"v_mov_b32 v{Q8+2}, 0\nv_mov_b32 v{Q8+3}, 0")
    k(f"s_lshl_b32 s30, s26, 9\nv_lshlrev_b32 v{AV}, 8, v{VH}\nv_lshl_add_u32 v{AV}, v{VQ}, 4, v{AV}\nv_add_u32 v{AV}, s30, v{AV}")
    k(f"s_lshl_b32 s30, s26, 5\ns_add_u32 s30, s30, {1024-256}\nv_lshlrev_b32 v{TA}, 6, v{VH}\nv_lshl_add_u32 v{TA}, v{VQ}, 4, v{TA}\nv_add_u32 v{TA}, s30, v{TA}")
    k(f"v_cmp_lt_u32 vcc, 15, v{VQ}\nv_cmp_lt_u32 s[86:87], 17, v{VQ}\nv_mov_b32 v{MX2}, 1152\nv_cndmask_b32 v{AV}, v{AV}, v{TA}, vcc\nv_cndmask_b32 v{AV}, v{AV}, v{MX2}, s[86:87]")
    k(f"s_mul_i32 s30, s27, {2*REC}\ns_add_u32 s30, s30, {LV}\nv_add_u32 v{AV}, s30, v{AV}")
    for q in range(3):
        k(f"s_add_i32 s30, s35, {q}\ns_max_i32 s30, s30, 0\ns_lshl_b32 s30, s30, 10\ns_add_u32 s{86+q}, s30, s38")
        k(f"s_add_i32 s30, s36, {q}\ns_max_i32 s30, s30, 0\ns_lshl_b32 s30, s30, 9\ns_add_u32 s{89+q}, s30, s44\ns_add_u32 s{92+q}, s30, s45")
    SO = k.lab("SONE")
    k(f"s_cmp_lg_u32 s28, 7\ns_cbranch_scc1 {SO}")
    if 'nogate' not in XM:
        NG = k.lab("NG")
        k(f"s_cmp_ge_u32 s2, 192\ns_cbranch_scc1 {NG}")
        wait_local(k, TA, LCNT)
        k(f"{NG}:")
    k(f"s_lshl_b32 s30, s47, 13\ns_lshl_b32 s31, s25, 9\ns_add_u32 s30, s30, s31\ns_add_u32 s30, s30, {F1-1024}")
    k(f"s_mov_b64 exec, -1\nv_lshlrev_b32 v{TA}, 7, v{VL}\ns_movk_i32 s31, 0x760\ns_cmp_eq_u32 s25, 0\ns_cselect_b32 s31, 0x700, s31\ns_cmp_ge_u32 s25, 2\ns_cselect_b32 exec_lo, 0x766, s31\ns_mov_b32 exec_hi, 0")
    poll(k, TA, MX, 1, 20, 30)
    k(f"s_mov_b64 exec, -1\n{SO}:\ns_barrier")
    k("STAMP 3")
    SK = k.lab("SK8")
    k(f"s_mov_b32 m0, s42\ns_cmp_ge_u32 s28, 6\ns_cbranch_scc1 {SK}")
    k(f"buffer_load_dwordx4 v{VK8}, s[20:23], s41 offen{SC} lds\n{SK}:")
    for q in range(3): k(dma(46, q * 1024, V16, 20, 86 + q, SC))
    k(f"buffer_load_dwordx4 {v(QM,4)}, v{V16}, s[20:23], s39 offen{SC}")
    k(f"buffer_load_dwordx2 {v(Q8,2)}, v{V8A}, s[20:23], s40 offen{SC}")
    for q in range(3):
        k(dma(43, q * REC, VV, 20, 89 + q, SC))
        k(f"s_add_u32 m0, s43, {q*REC+1024}\ns_mov_b64 exec, 0xff\nbuffer_load_dwordx4 v{VV8}, s[20:23], s{92+q} offen{SC} lds\ns_mov_b64 exec, -1")
    SO = k.lab("SONE")
    k(f"s_cmp_lg_u32 s28, 7\ns_cbranch_scc1 {SO}")
    for r in range(4): k(f"v_mov_b32 v{KF+r}, 0x3f803f80")
    k(f"v_mul_u32_u24 v{TA}, {REC}, v{VL}\ns_mov_b64 exec, 0xffffff")
    k(f"ds_write_b128 v{TA}, {v(KF,4)} offset:{LV+1152}")
    k(f"s_mov_b64 exec, -1\n{SO}:")
    srd(k, 48, PWO, D_ * D_ * 2)
    k(f"v_mov_b32 v{MX}, v{TB}\ns_sub_i32 s35, 8, s33")
    k("s_cmp_eq_u32 s26, 0\ns_cselect_b32 s38, -1, 0\ns_cselect_b32 s40, 0, -1\ns_mov_b32 s39, 0\ns_mov_b32 s41, 0")
    k("s_waitcnt vmcnt(6) lgkmcnt(0)")
    k(f"v_cndmask_b32 v{Q8}, 0, v{Q8}, s[38:39]\nv_cndmask_b32 v{Q8+1}, 0, v{Q8+1}, s[40:41]")
    k("s_barrier")
    def kread(j):
        return [f"ds_read_b128 {v(KF+(j%3)*4,4)}, v{AK} offset:{j*1024}", f"ds_read_b64 {v(K8F+(j%3)*4,2)}, v{AK8} offset:{j*512}"]
    def mx(j):
        return [f"v_max3_f32 v{MX}, v{MX}, v{S0+j*16+2*r}, v{S0+j*16+2*r+1}" for r in range(8)]
    if os.environ.get("P2S"): k("STAMP 12")
    if 'prio' in XM: k("s_setprio 0")
    for t in kread(0) + kread(1): k(t)
    inv = []
    for j in range(9):
        if j + 2 < 9:
            for t in kread(j + 2): k(t)
        sj = v(S0 + j * 16, 16)
        if j < 8:
            li, lb = k.lab("INV"), k.lab("BK")
            inv.append((j, li, lb))
            k(f"s_cmp_gt_i32 s35, {j}\ns_cbranch_scc1 {li}")
        k(f"s_waitcnt lgkmcnt({min(2, 8-j)*2})")
        k(f"v_mfma_f32_32x32x16_bf16 {sj}, {v(KF+(j%3)*4,4)}, {v(QM,4)}, {sj if j in (0, 8) else 0}")
        k(f"v_mfma_f32_32x32x16_bf16 {sj}, {v(K8F+(j%3)*4,4)}, {v(Q8,4)}, {sj}")
        if j < 8: k(f"{lb}:")
        if j >= 2:
            for t in mx(j - 2): k(t)
    for t in mx(7): k(t)
    k("s_waitcnt vmcnt(0)\ns_barrier")
    def vread(t): return f"ds_read_b128 {v(VF+(t%4)*4,4)}, v{AV} offset:{t*REC}"
    if os.environ.get("P2S"): k("STAMP 13")
    k(vread(0)); k(vread(1))
    side = []
    class Rec:
        def __init__(self): self.L = []
        def __call__(self, t): self.L.append(t)
        lab = staticmethod(k.lab)
    r = Rec()
    r(f"v_lshlrev_b32 v224, 7, v0\ns_mul_i32 s30, s11, {162*128}\nv_cmp_gt_u32 vcc, 162, v0\ns_and_saveexec_b64 s[44:45], vcc")
    r(f"buffer_load_dword v{DUMMY}, v224, s[48:51], s30 offen\ns_mov_b64 exec, s[44:45]")
    side.append("\n".join(r.L))
    r = Rec(); pf(r, "PF2", 2, 256, 512, 226); side.append("\n".join(r.L))
    r = Rec()
    XS = k.lab("XS")
    r(f"s_cmp_ge_u32 s2, 192\ns_cbranch_scc1 {XS}\ns_cmp_lt_u32 s28, 4\ns_cbranch_scc1 {XS}")
    srd(r, 12, PX, S_ * D_ * 2)
    r("s_lshl_b32 s30, s10, 2\ns_and_b32 s31, s11, 3\ns_add_u32 s30, s30, s31\ns_lshl_b32 s30, s30, 2\ns_and_b32 s31, s28, 3\ns_add_u32 s30, s30, s31\ns_mul_i32 s30, s30, 18432")
    r(f"s_mul_i32 s44, s31, 3072\ns_add_u32 s44, s44, {LX}\ns_lshr_b32 s31, s11, 2\ns_mul_i32 s31, s31, 192\ns_add_u32 s43, s30, s31\ns_movk_i32 s30, 960")
    for q in range(3):
        r(f"v_add_u32 v224, {q*64}, v{VL}\nv_mul_u32_u24 v225, 5462, v224\nv_lshrrev_b32 v225, 16, v225\nv_lshlrev_b32 v224, 4, v224\nv_mad_u32_u24 v224, v225, s30, v224")
        r(dma(44, q * 1024, 224, 12, 43))
    r(f"{XS}:")
    side.append("\n".join(r.L))
    for t in mx(8): k(t)
    k(f"v_mov_b32 v{MX2}, v{MX}\nv_permlane32_swap_b32 v{MX}, v{MX2}\nv_max_f32 v{MX}, v{MX}, v{MX2}")
    def soft(j):
        b = S0 + j * 16
        out = [f"v_sub_f32 v{b+r}, v{b+r}, v{MX}" for r in range(16)]
        out += [f"v_exp_f32 v{b+r}, v{b+r}" for r in range(16)]
        if 'trunc' in XM: out += [f"v_perm_b32 v{b+r}, v{b+2*r+1}, v{b+2*r}, s86" for r in range(8)]
        else: out += [f"v_cvt_pk_bf16_f32 v{b+r}, v{b+2*r}, v{b+2*r+1}" for r in range(8)]
        return out
    k("s_mov_b32 s86, 0x07060302")
    def pv(j):
        b = S0 + j * 16
        return [f"v_mfma_f32_32x32x16_bf16 {v(O,16)}, {v(VF+((2*j+s_)%4)*4,4)}, {v(b+4*s_,4)}, {v(O,16) if (j or s_) else 0}" for s_ in range(2)]
    if os.environ.get("P2S"): k("STAMP 14")
    for t in soft(0): k(t)
    for j in range(9):
        nxt = soft(j + 1) if j < 8 else []
        if j < 8:
            k(vread(2 * j + 2)); k(vread(2 * j + 3))
        p = pv(j)
        for t in nxt[:4]: k(t)
        k(f"s_waitcnt lgkmcnt({2 if j < 8 else 0})")
        k(p[0])
        for t in nxt[4:20]: k(t)
        if j < len(side) and side[j]: k(side[j])
        k(p[1])
        for t in nxt[20:]: k(t)
    k(f"s_lshl_b32 s34, s24, 1\ns_add_u32 s34, s34, s26\ns_mul_i32 s30, s34, {PS}\ns_lshl_b32 s31, s33, 10\ns_add_u32 s30, s30, s31\ns_add_u32 s30, s30, {WS_OM}")
    k(f"s_lshl_b32 s31, s34, 13\ns_lshl_b32 s34, s33, 7\ns_add_u32 s31, s31, s34\ns_add_u32 s31, s31, {WS_O8}\nv_lshlrev_b32 v{AK8}, 2, v{VQ}")
    if os.environ.get("P2S"): k("STAMP 15")
    if 'prio' in XM: k("s_setprio 0")
    k(f"v_rcp_f32 v{MX}, v{O+10}")
    for r in range(10): k(f"v_mul_f32 v{O+r}, v{O+r}, v{MX}")
    for r in range(5): k(f"v_cvt_pk_bf16_f32 v{KF+r}, v{O+2*r}, v{O+2*r+1}")
    k(f"buffer_store_dwordx4 {v(KF,4)}, v{V16}, s[20:23], s30 offen{WT}")
    k("s_mov_b32 exec_hi, 0")
    k(f"buffer_store_dword v{KF+4}, v{AK8}, s[20:23], s31 offen{WT}")
    k("s_mov_b32 exec_hi, -1")
    k(f"s_lshl_b32 s30, s25, 11\ns_lshl_b32 s31, s24, 7\ns_add_u32 s30, s30, s31\ns_add_u32 s30, s30, {F2}\nv_mov_b32 v{TA}, 0\nv_mov_b32 v{TB}, 1")
    k(f"s_waitcnt vmcnt(0)\ns_barrier\ns_cmp_lg_u32 s28, 6\ns_cbranch_scc1 {NXT}")
    set_flag(k, TA, TB, 20, 30)
    k(f"s_branch {NXT}")
    for j, li, lb in inv:
        k(f"{li}:")
        for r in range(16): k(f"v_mov_b32 v{S0+j*16+r}, v{TB}")
        k(f"s_branch {lb}")

def p3(k, ENT, NXT):
    R = 7; WS_ = 12288; WB = 73728; N = 9
    LAB = WB + R * WS_
    PF = k.lab("P3PF"); PROD = k.lab("P3PROD"); PO = k.lab("P3PO")
    k(f"{ENT}:\nSTAMP 4")
    k(f"s_cmp_ge_u32 s2, 192\ns_cbranch_scc1 {PF}")
    k("s_lshl_b32 s24, s10, 2\ns_and_b32 s25, s11, 3\ns_add_u32 s24, s24, s25\ns_lshr_b32 s25, s11, 2")
    ids16(k)
    V16 = 9
    k(f"v_lshlrev_b32 v{V16}, 4, v{VL}")
    k(f"s_cmp_ge_u32 s28, 4\ns_cbranch_scc1 {PROD}")
    k("s_lshr_b32 s26, s28, 1\ns_and_b32 s27, s28, 1")
    VTR, VAO, VAE = 10, 16, 18
    IDN, XR, ACC, AF, BF = 24, 28, 52, 76, 100
    k(f"v_and_b32 v{T1}, 1, v{VG}")
    k(f"v_bfe_u32 v{T0}, v{VL}, 2, 2\nv_lshl_add_u32 v{T0}, v{VG}, 2, v{T0}\nv_mul_u32_u24 v{T0}, 192, v{T0}")
    k(f"v_and_b32 v{T2}, 3, v{VL}\nv_lshl_add_u32 v{T0}, v{T2}, 3, v{T0}\nv_add_u32 v{T0}, {WB}, v{T0}")
    k("s_mul_i32 s30, s27, 3")
    for dt in range(3):
        k(f"s_add_u32 s31, s30, {dt}\nv_xor_b32 v{T2}, s31, v{T1}\nv_lshl_add_u32 v{VTR+dt}, v{T2}, 5, v{T0}\nv_add_u32 v{VTR+3+dt}, {4*WS_}, v{VTR+dt}")
    k(f"s_lshl_b32 s30, s26, 11\nv_add_u32 v{VAO}, s30, v{V16}\nv_add_u32 v{VAO+1}, 32768, v{VAO}")
    k(f"v_lshlrev_b32 v{T0}, 8, v{VG}\nv_lshl_add_u32 v{T0}, v{VI}, 2, v{T0}\nv_add_u32 v{VAE}, s30, v{T0}\nv_add_u32 v{VAE}, 65536, v{VAE}")
    k(f"v_lshlrev_b32 v{T0}, 3, v{VG}\nv_sub_u32 v{T0}, v{VI}, v{T0}\nv_mov_b32 v{T1}, 0x3f80\nv_mov_b32 v{T2}, 0x3f800000")
    for j2 in range(4):
        k(f"v_cmp_eq_u32 vcc, {2*j2}, v{T0}\nv_cmp_eq_u32 s[30:31], {2*j2+1}, v{T0}\nv_cndmask_b32 v{IDN+j2}, 0, v{T1}, vcc")
        k(f"v_cndmask_b32 v{IDN+j2}, v{IDN+j2}, v{T2}, s[30:31]")
    def reads(n):
        st, ks, rs = n >> 1, n & 1, n % 3
        slot = st % R
        out = []
        for tt in range(2):
            if st < 8: out.append(f"ds_read_b128 {v(AF+rs*8+tt*4,4)}, v{VAO+(st>>2)} offset:{(st&3)*8192+ks*4096+tt*1024}")
            else: out += [f"ds_read_b32 v{AF+rs*8+tt*4+q}, v{VAE} offset:{ks*4096+tt*1024+q*64}" for q in range(4)]
        for dt in range(3):
            for hf in range(2):
                out.append(f"ds_read_b64_tr_b16 {v(BF+rs*12+dt*4+hf*2,2)}, v{VTR+3*(slot//4)+dt} offset:{(slot%4)*WS_+ks*6144+hf*3072}")
        return out
    def mf(n):
        rs = n % 3
        return [f"v_mfma_f32_16x16x32_bf16 {v(ACC+(tt*3+dt)*4,4)}, {v(AF+rs*8+tt*4,4)}, {v(BF+rs*12+dt*4,4)}, {v(ACC+(tt*3+dt)*4,4)}"
                for tt in range(2) for dt in range(3)]
    k(f"s_mul_i32 s30, s26, 6144\ns_mul_i32 s31, s27, 96\ns_add_u32 s30, s30, s31\ns_add_u32 s30, s30, {LX}\nv_mul_u32_u24 v{T0}, 192, v{VI}\nv_and_b32 v{T1}, 16, v{VL}\nv_add3_u32 v{T0}, v{T0}, v{T1}, s30")
    for q in range(6): k(f"ds_read_b128 {v(XR+q*4,4)}, v{T0} offset:{(q//3)*3072+(q%3)*32}")
    k("s_waitcnt lgkmcnt(0)")
    for q in range(6):
        k(f"v_mfma_f32_16x16x32_bf16 {v(ACC+q*4,4)}, {v(XR+q*4,4)}, {v(IDN,4)}, 0")
    k("s_barrier")
    if os.environ.get("P3S"): k("STAMP 12")
    for t in reads(0) + reads(1): k(t)
    for n in range(18):
        if n in (2, 16): k("s_waitcnt lgkmcnt(0)\ns_barrier")
        elif n in (8, 12): k(f"s_waitcnt lgkmcnt({len(reads(n + 1))})\ns_barrier")
        elif n < 16: k(f"s_waitcnt lgkmcnt({len(reads(n + 1))})")
        if os.environ.get("P3S") and n in (8, 12): k(f"STAMP {13 + (n == 12)}")
        for t in interleave(mf(n), reads(n + 2) if n + 2 < 18 else [], 0, 2): k(t)
    k("STAMP 5")
    PK = XR; ST = AF
    for dt in range(3):
        for tt in range(2):
            ac = ACC + (tt * 3 + dt) * 4
            k(f"v_cvt_pk_bf16_f32 v{PK+dt*4+tt*2}, v{ac}, v{ac+1}\nv_cvt_pk_bf16_f32 v{PK+dt*4+tt*2+1}, v{ac+2}, v{ac+3}")
    for dt in range(3):
        for tt in range(2):
            for h2 in range(2):
                p = PK + dt * 4 + tt * 2 + h2
                x0 = ACC + (tt * 3 + dt) * 4 + 2 * h2
                k(f"v_lshlrev_b32 v{x0}, 16, v{p}\nv_and_b32 v{x0+1}, 0xffff0000, v{p}")
                sm, sq_ = ST + tt * 4 + 2 * h2, ST + 8 + tt * 4 + 2 * h2
                if dt == 0: k(f"v_pk_mul_f32 {v(sq_,2)}, {v(x0,2)}, {v(x0,2)}")
                else: k(f"v_pk_fma_f32 {v(sq_,2)}, {v(x0,2)}, {v(x0,2)}, {v(sq_,2)}")
                if dt == 1: k(f"v_pk_add_f32 {v(sm,2)}, {v(x0-4,2)}, {v(x0,2)}")
                if dt == 2: k(f"v_pk_add_f32 {v(sm,2)}, {v(sm,2)}, {v(x0,2)}")
    for sh in (8, 4, 2, 1):
        for r in range(16):
            k(f"v_add_f32_dpp v{ST+r}, v{ST+r}, v{ST+r} row_ror:{sh} row_mask:0xf bank_mask:0xf")
    SG = BF + 12
    for r in range(8): k(f"v_mov_b32 v{SG+2*r}, v{ST+r}\nv_or_b32 v{SG+2*r+1}, 0x80000000, v{ST+8+r}")
    k(f"s_lshl_b32 s31, s24, 1\ns_add_u32 s31, s31, s26")
    k(f"s_lshl_b32 s33, s31, 8\ns_add_u32 s33, s33, {WS_ST}")
    k(f"s_lshl_b32 s30, s25, 1\ns_add_u32 s30, s30, s27\ns_lshl_b32 s30, s30, 14\ns_add_u32 s30, s30, s33")
    k(f"v_cmp_eq_u32 s[38:39], 1, v{VI}\nv_cmp_eq_u32 s[40:41], 2, v{VI}\nv_cmp_eq_u32 s[42:43], 3, v{VI}\nv_cmp_gt_u32 vcc, 4, v{VI}")
    k(f"v_lshrrev_b32 v{T0}, 1, v{VI}\nv_lshlrev_b32 v{T0}, 7, v{T0}\nv_lshl_add_u32 v{T0}, v{VG}, 5, v{T0}\nv_and_b32 v{T1}, 1, v{VI}\nv_lshl_add_u32 v{T0}, v{T1}, 4, v{T0}")
    for q in range(1, 4):
        for r in range(4): k(f"v_cndmask_b32 v{SG+r}, v{SG+r}, v{SG+4*q+r}, s[{36+2*q}:{37+2*q}]")
    k(f"s_and_saveexec_b64 s[38:39], vcc\nbuffer_store_dwordx4 {v(SG,4)}, v{T0}, s[20:23], s30 offen{WT}\ns_mov_b64 exec, s[38:39]")
    VH = VTR
    k(f"v_lshlrev_b32 v{VH}, 4, v{VL}")
    k(f"s_mul_i32 s30, s25, 6\ns_mul_i32 s32, s27, 3\ns_add_u32 s30, s30, s32\ns_mul_i32 s30, s30, {PS}")
    k(f"s_lshl_b32 s32, s31, 10\ns_add_u32 s30, s30, s32\ns_add_u32 s32, s30, {WS_HN}\ns_add_u32 s30, s30, {WS_H}")
    k("s_mov_b32 s35, s30")
    VS = VTR + 1
    P = BF
    k(f"v_lshrrev_b32 v{T0}, 5, v{VL}\nv_mul_u32_u24 v{VS}, {6*16384}, v{T0}\nv_and_b32 v{T0}, 31, v{VL}\nv_lshl_add_u32 v{VS}, v{T0}, 3, v{VS}")
    for p in range(6): k(f"s_add_u32 s{40+p}, s33, {p*16384}")
    POLL = k.lab("POLL"); GO = k.lab("GO")
    k(f"s_mov_b32 s37, 0x40000" + ("" if 'nosw' in XM else "\ns_waitcnt vmcnt(0)") + f"\n{POLL}:")
    for p in range(6):
        k(f"buffer_load_dwordx2 {v(P+2*p,2)}, v{VS}, s[20:23], s{40+p} offen sc0 sc1")
    k("s_waitcnt vmcnt(0)")
    k(f"v_and_b32 v{T1}, v{P+1}, v{P+3}\nv_and_b32 v{T2}, v{P+5}, v{P+7}\nv_and_b32 v{T3}, v{P+9}, v{P+11}\nv_and_b32 v{T1}, v{T1}, v{T2}\nv_and_b32 v{T1}, v{T1}, v{T3}")
    k(f"v_cmp_le_i32 vcc, 0, v{T1}\ns_sub_u32 s37, s37, 1\ns_cmp_eq_u32 s37, 0\ns_cbranch_scc1 {GO}\ns_cbranch_vccz {GO}\ns_sleep 1\ns_branch {POLL}\n{GO}:")
    if os.environ.get("P3S"): k("STAMP 15")
    for dt in range(3):
        k(f"buffer_store_dwordx4 {v(PK+dt*4,4)}, v{VH}, s[20:23], s35 offen{WT}\ns_add_u32 s35, s35, {PS}")
    for p in range(1, 6):
        k(f"v_add_f32 v{P}, v{P}, v{P+2*p}\nv_add_f32 v{P+1}, v{P+1}, v{P+2*p+1}")
    k(f"v_mov_b32 v{P+2}, v{P}\nv_mov_b32 v{P+3}, v{P+1}")
    k(f"v_permlane32_swap_b32 v{P}, v{P+2}\nv_permlane32_swap_b32 v{P+1}, v{P+3}")
    k(f"v_add_f32 v{P}, v{P}, v{P+2}\nv_add_f32 v{P+1}, v{P+1}, v{P+3}")
    k(f"s_mov_b32 s34, {f32(1.0/576)}")
    mn, sq = P, P + 1
    k(f"v_mul_f32 v{mn}, s34, v{mn}\nv_mul_f32 v{sq}, s34, -v{sq}\nv_fma_f32 v{sq}, -v{mn}, v{mn}, v{sq}\nv_max_f32 v{sq}, 0, v{sq}")
    k(f"v_add_f32 v{P+2}, {f32(1e-5)}, v{sq}\nv_rsq_f32 v{P+2}, v{P+2}")
    k(f"v_mul_f32 v{sq}, v{sq}, v{P+2}\nv_mul_f32 v{sq}, v{sq}, v{P+2}\nv_add_f32 v{sq}, {f32(1e-5)}, v{sq}\nv_rsq_f32 v{sq}, v{sq}")
    k(f"v_mul_f32 v{P+2}, v{P+2}, v{sq}\nv_mul_f32 v{P+3}, -v{mn}, v{P+2}")
    k(f"s_lshl_b32 s33, s28, 8\ns_add_u32 s33, s33, {LAB}\nv_lshlrev_b32 v{T0}, 3, v{T0}\nv_add_u32 v{T0}, s33, v{T0}")
    k(f"ds_write_b64 v{T0}, {v(P+2,2)}")
    k(f"v_lshlrev_b32 v{T0}, 5, v{VG}\nv_add_u32 v{T0}, s33, v{T0}\ns_waitcnt lgkmcnt(0)")
    AB = ST
    for q in range(4):
        k(f"ds_read_b128 {v(AB+4*q,4)}, v{T0} offset:{(q>>1)*128+(q&1)*16}")
    k(f"s_lshl_b32 s30, s25, 12\ns_lshl_b32 s31, s24, 7\ns_add_u32 s30, s30, s31\ns_add_u32 s30, s30, {F3}\nv_mov_b32 v{T1}, 0\nv_mov_b32 v{T2}, 1")
    k("s_waitcnt lgkmcnt(0)")
    for dt in range(3):
        for tt in range(2):
            x0 = ACC + (tt * 3 + dt) * 4
            for r in range(4): k(f"v_fma_f32 v{x0+r}, v{x0+r}, v{AB+tt*8+2*r}, v{AB+tt*8+2*r+1}")
            k(f"v_cvt_pk_bf16_f32 v{PK+12+dt*4+tt*2}, v{x0}, v{x0+1}\nv_cvt_pk_bf16_f32 v{PK+12+dt*4+tt*2+1}, v{x0+2}, v{x0+3}")
        k(f"buffer_store_dwordx4 {v(PK+12+dt*4,4)}, v{VH}, s[20:23], s32 offen{WT}\ns_add_u32 s32, s32, {PS}")
    k("s_waitcnt vmcnt(0)")
    last_wave_flag(k, T1, T2, T3, LCNT + 4, 20, 30)
    k(f"s_branch {NXT}")
    k(f"{PROD}:\ns_and_b32 s29, s28, 1\ns_cmp_ge_u32 s28, 6\ns_cbranch_scc1 {PO}")
    VWD, VWE = 10, 16
    for q in range(6):
        k(f"v_add_u32 v{T0}, {q*64}, v{VL}")
        k(f"v_mul_u32_u24 v{T1}, 5462, v{T0}\nv_lshrrev_b32 v{T1}, 16, v{T1}")
        k(f"v_mul_u32_u24 v{T2}, 12, v{T1}\nv_sub_u32 v{T0}, v{T0}, v{T2}")
        k(f"v_bfe_u32 v{T2}, v{T1}, 2, 1\nv_lshlrev_b32 v{T2}, 1, v{T2}\nv_xor_b32 v{T0}, v{T0}, v{T2}\nv_lshlrev_b32 v{VWE+q}, 4, v{T0}")
        k(f"v_and_b32 v{T2}, 7, v{T1}")
        k(f"v_bfe_u32 v{T3}, v{T1}, 3, 1\nv_mad_u32_u24 v{T2}, v{T3}, 20, v{T2}")
        k(f"v_bfe_u32 v{T3}, v{T1}, 4, 1\nv_lshl_add_u32 v{T2}, v{T3}, 3, v{T2}")
        k(f"v_mul_u32_u24 v{T2}, 1152, v{T2}\nv_add_u32 v{VWD+q}, v{T2}, v{VWE+q}")
    k(f"s_mul_i32 s33, s25, 192\ns_mul_i32 s30, s29, {8*36*1152}\ns_add_u32 s39, s33, s30\ns_mul_i32 s30, s29, {36*1152}\ns_add_u32 s33, s33, s30")
    k(f"s_mul_i32 s35, s29, 6144\ns_add_u32 s35, s35, {WB}")
    srd(k, 16, PWO, D_ * D_ * 2)
    def issue_w(st):
        for q in range(6): k(dma(35, (st % R) * WS_ + q * 1024, (VWD if st < 8 else VWE) + q, 16, 33 if st < 8 else 39))
        k(f"s_add_u32 s33, s33, {72*1152}")
    for st in range(7): issue_w(st)
    for q in range(6):
        k(f"v_add_u32 v{T0}, {q*64}, v{VL}\nv_mul_u32_u24 v{T1}, 5462, v{T0}\nv_lshrrev_b32 v{T1}, 16, v{T1}\n"
          f"v_bfe_u32 v{T2}, v{T1}, 2, 2\nv_lshlrev_b32 v{T2}, 1, v{T2}\nv_bfe_u32 v{T3}, v{T1}, 4, 1\nv_add_u32 v{T2}, v{T2}, v{T3}\nv_mul_u32_u24 v{T2}, 36, v{T2}\n"
          f"v_and_b32 v{T3}, 3, v{T1}\nv_add3_u32 v{T2}, v{T2}, v{T3}, 16\nv_mul_u32_u24 v{T2}, 1152, v{T2}\nv_add_u32 v{VWE+q}, v{T2}, v{VWE+q}")
    k("s_waitcnt vmcnt(0)\ns_barrier\ns_barrier")
    for st in range(7, 9): issue_w(st)
    k(f"s_barrier\ns_waitcnt vmcnt(0)\ns_barrier\ns_barrier\ns_branch {NXT}")
    k(f"{PO}:")
    VO = 10
    k(f"v_lshrrev_b32 v{T0}, 1, v{VG}\nv_mul_u32_u24 v{T0}, {PS}, v{T0}\nv_and_b32 v{T1}, 1, v{VG}\nv_lshl_add_u32 v{T0}, v{T1}, 9, v{T0}\nv_lshl_add_u32 v{T0}, v{VI}, 4, v{T0}")
    k(f"v_lshrrev_b32 v{T1}, 2, v{VL}\nv_lshlrev_b32 v{T1}, 13, v{T1}\nv_and_b32 v{T2}, 3, v{VL}\nv_lshl_add_u32 v{T1}, v{T2}, 4, v{T1}")
    for q in range(4): k(f"v_add_u32 v{VO+q}, {(q>>1)*1024+(q&1)*256}, v{T0}\nv_add_u32 v{VO+4+q}, {q*64}, v{T1}")
    k(f"s_lshl_b32 s32, s24, 11\ns_mul_i32 s30, s29, {2*PS}\ns_add_u32 s32, s32, s30\ns_add_u32 s32, s32, {WS_OM}\ns_lshl_b32 s30, s29, 17")
    k(f"s_lshl_b32 s38, s24, 8\ns_add_u32 s38, s38, s30\ns_add_u32 s38, s38, {WS_O8}\ns_lshl_b32 s34, s29, 12")
    k(f"s_lshr_b32 s30, s24, 1\ns_lshl_b32 s30, s30, 11\ns_add_u32 s30, s30, {F2}\nv_lshlrev_b32 v{T0}, 7, v{VL}")
    W7, WD = k.lab("W7"), k.lab("WD")
    k(f"s_cmp_eq_u32 s28, 7\ns_cbranch_scc1 {W7}\ns_waitcnt vmcnt(0)\ns_mov_b64 exec, 0xffff")
    poll(k, T0, T1, 1, 20, 30)
    k("s_mov_b64 exec, -1")
    lds_signal(k, T0, LCNT + 20)
    k(f"s_branch {WD}\n{W7}:")
    wait_local(k, T0, LCNT + 20, n=1)
    k(f"{WD}:\nSTAMP 5")
    def issue_o(st):
        for q in range(4): k(dma(34, st * 8192 + q * 1024, VO + q + (4 if st == 8 else 0), 20, 32 if st < 8 else 38, SC))
        k(f"s_add_u32 s32, s32, {4*PS}")
    for st in range(5): issue_o(st)
    k("s_waitcnt vmcnt(12)\ns_barrier")
    for st in range(5, 9): issue_o(st)
    k(f"s_waitcnt vmcnt(16)\ns_barrier\ns_waitcnt vmcnt(8)\ns_barrier\ns_waitcnt vmcnt(0)\ns_barrier\ns_barrier\ns_branch {NXT}")
    k(f"{PF}:\ns_sub_u32 s29, s2, 192")
    if 'early3' in XM:
        NE = k.lab("NE")
        k(f"s_cmp_lt_u32 s11, 27\ns_cbranch_scc1 {NE}")
        w1slow(k)
        k(f"{NE}:")
    pf(k, "PF3", 29, 64, 512, 10)
    r1 = int(os.environ.get("L2W1", 0))
    if r1:
        k("s_sub_u32 s29, s11, 24")
        w1_rows(k, 29, r1 // 8, 0, 0)
    k(f"s_branch {NXT}")

def p4(k, ENT, NXT):
    STG = 28672; R = 4; N = 32
    PROD = k.lab("P4PROD"); PF = k.lab("P4PF"); PA = k.lab("P4PA")
    k(f"{ENT}:\nSTAMP 6")
    k(f"s_cmp_ge_u32 s11, 27\ns_cbranch_scc1 {PF}")
    k("s_mul_i32 s24, s11, 10923\ns_lshr_b32 s24, s24, 16\ns_mul_i32 s25, s24, 6\ns_sub_u32 s25, s11, s25")
    k("s_and_b32 s29, s10, 1\ns_mul_i32 s30, s29, 5\ns_add_u32 s24, s24, s30")
    k("s_mul_i32 s30, s29, 3\ns_add_u32 s30, s30, s25")
    k("s_cmp_ge_u32 s11, 24\ns_cselect_b32 s24, 4, s24\ns_cselect_b32 s25, s30, s25\ns_mov_b32 s47, s24")
    k("s_lshr_b32 s30, s10, 1\ns_mul_i32 s30, s30, 9\ns_add_u32 s24, s24, s30")
    ids16(k)
    k(f"s_cmp_ge_u32 s28, 4\ns_cbranch_scc1 {PROD}")
    k("s_lshr_b32 s26, s28, 1\ns_and_b32 s27, s28, 1")
    VTR, VHR, B1, ACC, WF, HF = 12, 20, 26, 36, 84, 116
    srd(k, 16, PB1, F_ * 2)
    k(f"v_lshlrev_b32 v{T0}, 3, v{VG}\ns_lshl_b32 s30, s24, 8\ns_lshl_b32 s31, s26, 7\ns_add_u32 s30, s30, s31")
    for f4 in range(4):
        k(f"buffer_load_dwordx2 {v(B1+2*f4,2)}, v{T0}, s[16:19], s30 offen offset:{f4*32}")
    k(f"v_bfe_u32 v{T0}, v{VL}, 2, 2\nv_lshl_add_u32 v{T0}, v{VG}, 2, v{T0}")
    k(f"v_and_b32 v{T1}, 7, v{T0}\nv_lshlrev_b32 v{T0}, 8, v{T0}\nv_and_b32 v{T2}, 3, v{VL}\nv_lshl_add_u32 v{T0}, v{T2}, 3, v{T0}")
    k("s_lshl_b32 s30, s26, 2")
    for f4 in range(4):
        k(f"s_add_u32 s31, s30, {f4}\nv_xor_b32 v{T2}, s31, v{T1}\nv_lshl_add_u32 v{VTR+f4}, v{T2}, 5, v{T0}\nv_add_u32 v{VTR+4+f4}, {2*STG}, v{VTR+f4}")
    k(f"s_mul_i32 s30, s27, 3072\ns_add_u32 s30, s30, 16384\nv_lshlrev_b32 v{VHR}, 4, v{VL}\nv_add_u32 v{VHR}, s30, v{VHR}\nv_add_u32 v{VHR+1}, {2*STG}, v{VHR}")
    for r in range(48): k(f"v_mov_b32 v{ACC+r}, 0")
    k(f"s_mul_i32 s31, s25, 6\ns_mul_i32 s38, s27, 3\ns_add_u32 s31, s31, s38\ns_mul_i32 s31, s31, {144*1024}")
    k(f"s_lshl_b32 s38, s24, 12\ns_add_u32 s31, s31, s38\ns_lshl_b32 s38, s26, 11\ns_add_u32 s31, s31, s38\ns_add_u32 s40, s31, {WS_U}")
    k(f"s_lshr_b32 s30, s10, 1\ns_mul_i32 s30, s30, 6\ns_add_u32 s30, s30, s25\ns_mul_i32 s30, s30, 9\ns_add_u32 s30, s30, s47\ns_lshl_b32 s30, s30, 7\ns_add_u32 s41, s30, {F4}")
    def reads(st, slot, ks, rs):
        hi = slot >> 1; off = (slot & 1) * STG
        out = []
        for f4 in range(4):
            for hf in range(2):
                out.append(f"ds_read_b64_tr_b16 {v(WF+rs*16+f4*4+hf*2,2)}, v{VTR+4*hi+f4} offset:{off+ks*8192+hf*4096}")
            if f4 < 3:
                out.append(f"ds_read_b128 {v(HF+rs*12+f4*4,4)}, v{VHR+hi} offset:{off+ks*6144+f4*1024}")
        return out
    def mf(st, ks, rs):
        return [f"v_mfma_f32_16x16x32_bf16 {v(ACC+(f4*3+dt)*4,4)}, {v(WF+rs*16+f4*4,4)}, {v(HF+rs*12+dt*4,4)}, {v(ACC+(f4*3+dt)*4,4)}"
                for f4 in range(4) for dt in range(3)]
    consumer_loop(k, N, R, reads, mf, per=1, stamp0=None if (os.environ.get('P3S') or os.environ.get('P2S')) else 14)
    k("STAMP 7")
    c1 = -2.0 * math.sqrt(2.0 / math.pi) * math.log2(math.e)
    c2 = c1 * 0.044715
    k(f"s_mov_b32 s30, {f32(c2)}\nv_mov_b32 v{T2}, {f32(c1)}")
    BB = WF
    k("s_waitcnt vmcnt(0)")
    for f4 in range(4):
        for h2 in range(2):
            k(f"v_lshlrev_b32 v{BB+f4*4+h2*2}, 16, v{B1+f4*2+h2}\nv_and_b32 v{BB+f4*4+h2*2+1}, 0xffff0000, v{B1+f4*2+h2}")
    k(f"v_lshlrev_b32 v{T0}, 4, v{VL}")
    TT = WF + 16; PKD = HF
    for dt in range(3):
        for pr in range(2):
            xb = [ACC + ((2 * pr + h) * 3 + dt) * 4 for h in range(2)]
            xs = [xb[h] + r for h in range(2) for r in range(4)]
            for h in range(2):
                for h2 in range(2): k(f"v_pk_add_f32 {v(xb[h]+2*h2,2)}, {v(xb[h]+2*h2,2)}, {v(BB+(2*pr+h)*4+2*h2,2)}")
            for h in range(2):
                for h2 in range(2): k(f"v_pk_mul_f32 {v(TT+4*h+2*h2,2)}, {v(xb[h]+2*h2,2)}, {v(xb[h]+2*h2,2)}")
            for n in range(8): k(f"v_fma_f32 v{TT+n}, v{TT+n}, s30, v{T2}")
            for h in range(2):
                for h2 in range(2): k(f"v_pk_mul_f32 {v(TT+4*h+2*h2,2)}, {v(TT+4*h+2*h2,2)}, {v(xb[h]+2*h2,2)}")
            for n in range(8): k(f"v_exp_f32 v{TT+n}, v{TT+n}")
            for n in range(8): k(f"v_add_f32 v{TT+n}, 1.0, v{TT+n}")
            for n in range(8): k(f"v_rcp_f32 v{TT+n}, v{TT+n}")
            for h in range(2):
                for h2 in range(2): k(f"v_pk_mul_f32 {v(xb[h]+2*h2,2)}, {v(xb[h]+2*h2,2)}, {v(TT+4*h+2*h2,2)}")
            o = PKD + (dt * 2 + pr) * 4
            for n in range(4): k(f"v_cvt_pk_bf16_f32 v{o+n}, v{xs[2*n]}, v{xs[2*n+1]}")
            k(f"buffer_store_dwordx4 {v(o,4)}, v{T0}, s[20:23], s40 offen offset:{pr*1024}{WT}")
        k(f"s_add_u32 s40, s40, {144*1024}")
    k(f"v_mov_b32 v{T1}, 0\nv_mov_b32 v{T2}, 1\ns_waitcnt vmcnt(0)")
    last_wave_flag(k, T1, T2, T3, LCNT + 8, 20, 41)
    k(f"s_branch {NXT}")
    k(f"{PROD}:\ns_and_b32 s26, s28, 1\ns_cmp_ge_u32 s28, 6\ns_cbranch_scc1 {PA}")
    VD = 10
    for q in range(2):
        k(f"v_add_u32 v{T0}, {4*q}, v{VG}")
        k(f"v_lshlrev_b32 v{T1}, 1, v{T0}\nv_xor_b32 v{T1}, v{T1}, v{VI}\nv_lshlrev_b32 v{T1}, 4, v{T1}")
        k(f"v_mul_u32_u24 v{T0}, 9216, v{T0}\nv_add_u32 v{VD+q}, v{T0}, v{T1}")
    for q in range(2, 8): k(f"v_add_u32 v{VD+q}, {8*9216}, v{VD+q-2}")
    k(f"s_lshl_b32 s32, s24, 8\ns_mul_i32 s30, s26, {32*9216}\ns_add_u32 s32, s32, s30\ns_lshl_b32 s34, s26, 13")
    srd(k, 12, PW1, S_ * F_ * 2)
    producer_loop(k, N, R, 8, lambda st, slot: [dma(34, slot * STG + q * 1024, VD + q, 12, 32) for q in range(8)] + [f"s_add_u32 s32, s32, {64*9216}"], NXT, first=int(os.environ.get("FIRST4", 2)))
    k(f"{PA}:")
    k(f"v_lshlrev_b32 v{VD}, 4, v{VL}")
    for q in range(1, 6): k(f"v_add_u32 v{VD+q}, {PS}, v{VD+q-1}")
    k(f"s_mul_i32 s33, s25, {6*PS}\ns_lshl_b32 s30, s26, 10\ns_add_u32 s33, s33, s30\ns_add_u32 s33, s33, {WS_HN}")
    k("s_mul_i32 s35, s26, 6144\ns_add_u32 s35, s35, 16384")
    k(f"s_lshl_b32 s30, s25, 12\ns_add_u32 s30, s30, {F3}\nv_lshlrev_b32 v{T0}, 7, v{VL}")
    W7, WD = k.lab("W7"), k.lab("WD")
    k(f"s_cmp_eq_u32 s28, 7\ns_cbranch_scc1 {W7}")
    if 'nogate' not in XM:
        NG, NG2 = k.lab("NG"), k.lab("NG")
        k(f"s_cmp_ge_u32 s2, 192\ns_cbranch_scc1 {NG}")
        wait_local(k, 20, LCNT + 4)
        k(f"s_branch {NG2}\n{NG}:\ns_mov_b64 exec, 1")
        poll(k, T0, 20, 1, 20, 30, sleep=8)
        k(f"s_mov_b64 exec, -1\n{NG2}:")
    k("s_mov_b32 exec_hi, 0")
    poll(k, T0, 20, 1, 20, 30)
    k("s_mov_b32 exec_hi, -1")
    lds_signal(k, 20, LCNT + 24)
    k(f"s_branch {WD}\n{W7}:")
    wait_local(k, 20, LCNT + 24, n=1)
    k(f"{WD}:\nSTAMP 7")
    producer_loop(k, N, R, 6, lambda st, slot: [dma(35, slot * STG + q * 1024, VD + q, 20, 33, SC) for q in range(6)] + ["s_add_u32 s33, s33, 2048"], NXT)
    k(f"{PF}:\ns_sub_u32 s29, s2, 216")
    pf(k, "PF4", 29, 40, 512, 10)
    if 'early4' in XM: w1slow(k)
    if 'nopoison' not in XM:
        srd(k, 56, PDBG, 256)
        k(f"s_mul_i32 s30, s29, 196608\ns_add_u32 s30, s30, {WS_P}\nv_lshlrev_b32 v10, 4, v0\nv_mov_b32 v12, -1\nv_mov_b32 v13, -1\nv_mov_b32 v14, -1\nv_mov_b32 v15, -1")
        for i in range(24): k(f"buffer_store_dwordx4 v[12:15], v10, s[20:23], s30 offen{WT}\ns_add_u32 s30, s30, 8192")
        NZ = k.lab("NZ")
        k(f"v_mov_b32 v16, 4\nv_mov_b32 v17, 1\ns_waitcnt vmcnt(0)\ns_barrier\ns_cmp_lg_u32 s28, 0\ns_cbranch_scc1 {NZ}")
        k(f"s_mov_b64 exec, 1\nbuffer_atomic_add v17, v16, s[56:59], 0 offen sc1\ns_mov_b64 exec, -1\n{NZ}:")
    if 'noslow' not in XM:
        def gated(flag_off, lines_code):
            NP = k.lab("NP")
            k(f"s_cmp_lg_u32 s28, 0\ns_cbranch_scc1 {NP}\ns_mov_b32 s30, {flag_off}\nv_mov_b32 v12, 0\ns_mov_b64 exec, 1")
            poll(k, 12, 13, 1, 20, 30, sleep=8)
            k(f"s_mov_b64 exec, -1\n{NP}:\ns_barrier")
            lines_code()
        def w2slow():
            srd(k, 52, PW2, S_ * F_ * 2)
            k(f"s_lshr_b32 s60, s10, 1\ns_mul_i32 s60, s60, {1152*4096}\ns_and_b32 s61, s10, 1\ns_lshl_b32 s61, s61, 11\ns_add_u32 s60, s60, s61\ns_add_u32 s60, s60, 384")
            k(f"s_sub_u32 s62, s11, 27\nv_lshrrev_b32 v10, 1, v0\nv_mul_u32_u24 v10, 5, v10\nv_add_u32 v10, s62, v10\nv_lshlrev_b32 v10, 12, v10\nv_and_b32 v11, 1, v0\nv_lshl_add_u32 v10, v11, 10, v10")
            k(f"v_cmp_gt_u32 vcc, {2*231}, v0\nv_mov_b32 v11, 0x7ff00000\nv_cndmask_b32 v10, v11, v10, vcc")
            k(f"buffer_load_dword v{DUMMY}, v10, s[52:55], s60 offen")
        gated(F3, lambda: w1slow(k))
        if 'now2' not in XM: gated(F4 + 128 * 2, w2slow)
    if os.environ.get("JIT4"):
        s0, sw = [int(t) for t in os.environ["JIT4"].split(",")]
        k(f"s_mov_b32 s30, {F3}\nv_lshlrev_b32 v12, 7, v0\nv_cmp_gt_u32 vcc, 192, v0\ns_and_saveexec_b64 s[62:63], vcc")
        NP = k.lab("NP")
        k(f"s_cbranch_execz {NP}")
        poll(k, 12, 13, 1, 20, 30)
        k(f"{NP}:\ns_mov_b64 exec, -1\ns_barrier")
        w1_addr(k, 10)
        k("s_sub_u32 s29, s11, 27")
        k(f"v_lshrrev_b32 v12, 4, v0\nv_mul_u32_u24 v12, {PS}, v12\nv_and_b32 v13, 15, v0\nv_lshl_add_u32 v12, v13, 7, v12")
        k(f"v_add_u32 v13, {32*PS}, v12\nv_mov_b32 v14, 0x7ff00000\nv_cmp_gt_u32 vcc, 64, v0\nv_cndmask_b32 v13, v14, v13, vcc")
        k(f"s_lshl_b32 s61, s29, 11\ns_add_u32 s61, s61, {WS_HN + s0*2048}\ns_mul_i32 s62, s29, {64*9216}\ns_add_u32 s60, s60, s62\ns_add_u32 s60, s60, {s0*64*9216}")
        for st in range(s0, 32, 5):
            k(f"buffer_load_dword v{DUMMY}, v12, s[20:23], s61 offen\nbuffer_load_dword v{DUMMY}, v13, s[20:23], s61 offen\ns_add_u32 s61, s61, {5*2048}")
            if st + 4 >= sw:
                k(f"buffer_load_dword v{DUMMY}, v10, s[52:55], s60 offen\ns_add_u32 s62, s60, {32*9216}\nbuffer_load_dword v{DUMMY}, v10, s[52:55], s62 offen")
            k(f"s_add_u32 s60, s60, {5*64*9216}")
    k(f"s_branch {NXT}")

def p5(k, ENT):
    STG = 34816; R = 4; N = 18
    PROD = k.lab("P5PROD"); PA = k.lab("P5PA"); FIN = k.lab("FIN")
    k(f"{ENT}:\nSTAMP 8")
    k("s_lshr_b32 s26, s10, 1\ns_and_b32 s25, s11, 3\ns_lshr_b32 s24, s11, 2")
    k("s_and_b32 s29, s10, 1\ns_lshl_b32 s29, s29, 3\ns_add_u32 s24, s24, s29\ns_and_b32 s29, s26, 1")
    ids16(k)
    k(f"s_cmp_ge_u32 s28, 4\ns_cbranch_scc1 {PROD}")
    VTR = 10; VUR = VTR + 2 * R; B2 = VUR + R
    IDN, HR, UF = 24, 28, 48
    WF = UF + 72; ACC = WF + 16
    srd(k, 16, PB2, S_ * 2)
    srd(k, 40, POUT, S_ * D_ * 2)
    k(f"s_lshl_b32 s30, s24, 8\ns_lshl_b32 s31, s28, 6\ns_add_u32 s30, s30, s31\ns_lshl_b32 s31, s29, 5\ns_add_u32 s30, s30, s31\nv_lshlrev_b32 v{T0}, 1, v{VI}")
    k(f"buffer_load_ushort v{B2}, v{T0}, s[16:19], s30 offen")
    k(f"v_lshlrev_b32 v{T3}, 4, v{VL}")
    k(f"s_mul_i32 s49, s25, {9*PS}\ns_lshl_b32 s32, s24, 12\ns_add_u32 s49, s49, s32\ns_lshl_b32 s32, s28, 10\ns_add_u32 s49, s49, s32\ns_add_u32 s49, s49, {WS_H}")
    k(f"s_lshr_b32 s32, s26, 1\ns_mul_i32 s32, s32, {5*PS}\ns_add_u32 s49, s49, s32")
    k(f"v_bfe_u32 v{T0}, v{VL}, 2, 2\nv_lshl_add_u32 v{T0}, v{VG}, 2, v{T0}")
    k(f"v_and_b32 v{T1}, 7, v{T0}\nv_lshlrev_b32 v{T0}, 8, v{T0}\nv_and_b32 v{T2}, 3, v{VL}\nv_lshl_add_u32 v{T0}, v{T2}, 3, v{T0}")
    k("s_lshl_b32 s30, s28, 1\ns_add_u32 s30, s30, s29")
    for l in range(2):
        k(f"s_xor_b32 s31, s30, {l}\nv_xor_b32 v{T2}, s31, v{T1}\nv_lshl_add_u32 v{VTR+l}, v{T2}, 5, v{T0}")
        for sl in range(1, R): k(f"v_add_u32 v{VTR+2*sl+l}, {sl*STG}, v{VTR+l}")
    k(f"v_lshlrev_b32 v{VUR}, 4, v{VL}\nv_add_u32 v{VUR}, 16384, v{VUR}")
    for sl in range(1, R): k(f"v_add_u32 v{VUR+sl}, {sl*STG}, v{VUR}")
    k(f"v_lshlrev_b32 v{T0}, 2, v{VG}\nv_sub_u32 v{T0}, v{VI}, v{T0}\nv_mov_b32 v{T1}, 0x3f80\nv_mov_b32 v{T2}, 0x3f800000")
    k("s_cmp_eq_u32 s29, 0\ns_cselect_b64 s[38:39], -1, 0")
    for j2 in range(2):
        k(f"v_cmp_eq_u32 vcc, {2*j2}, v{T0}\nv_cndmask_b32 v{UF}, 0, v{T1}, vcc")
        k(f"v_cmp_eq_u32 vcc, {2*j2+1}, v{T0}\nv_cndmask_b32 v{UF}, v{UF}, v{T2}, vcc")
        k(f"v_cndmask_b32 v{IDN+j2}, 0, v{UF}, s[38:39]\nv_cndmask_b32 v{IDN+2+j2}, v{UF}, 0, s[38:39]")
    for r in range(72): k(f"v_mov_b32 v{ACC+r}, 0")
    k(f"s_lshl_b32 s32, s24, 2\ns_add_u32 s32, s32, s25")
    k(f"s_mul_i32 s33, s32, {48*2560}\ns_mul_i32 s30, s28, 2560\ns_add_u32 s33, s33, s30\ns_add_u32 s33, s33, {WS_P}")
    for x in (1, 2, 3):
        k(f"s_xor_b32 s30, s26, {x}\ns_sub_u32 s31, s26, s30\ns_sub_u32 s31, s31, 1\ns_and_b32 s31, s31, 3")
        k(f"s_mul_i32 s30, s30, 3\ns_add_u32 s30, s30, s31\ns_mul_i32 s30, s30, {4*2560}\ns_add_u32 s{44+x}, s30, s33")
    k(f"s_mul_i32 s30, s26, {12*2560}\ns_add_u32 s33, s33, s30")
    k(f"s_lshl_b32 s35, s32, 11\ns_lshl_b32 s30, s28, 9\ns_add_u32 s35, s35, s30\ns_add_u32 s35, s35, {F5}\ns_lshl_b32 s30, s26, 7\ns_add_u32 s34, s30, s35")
    k(f"s_lshl_b32 s48, s24, 7\ns_lshl_b32 s31, s28, 5\ns_add_u32 s48, s48, s31\ns_lshl_b32 s31, s29, 4\ns_add_u32 s48, s48, s31\ns_mul_i32 s48, s48, 1152\ns_mul_i32 s31, s25, 288\ns_add_u32 s48, s48, s31")
    POIS = 'nopoison' not in XM
    PZ = ACC + 73
    srd(k, 56, PDBG, 256)
    k(f"v_mov_b32 v{PZ-1}, 4")
    firstr = [True]
    def reads(st, slot, ks, rs):
        out = []
        for l in range(2):
            for hf in range(2):
                out.append(f"ds_read_b64_tr_b16 {v(WF+rs*8+l*4+hf*2,2)}, v{VTR+2*slot+l} offset:{ks*8192+hf*4096}")
        for d in range(9):
            out.append(f"ds_read_b128 {v(UF+rs*36+d*4,4)}, v{VUR+slot} offset:{ks*9216+d*1024}")
        if firstr[0]:
            firstr[0] = False
            if POIS: out.append(f"buffer_load_dword v{PZ}, v{PZ-1}, s[56:59], 0 offen sc0 sc1")
            for d in range(5): out.append(f"buffer_load_dwordx4 {v(HR+4*d,4)}, v{T3}, s[20:23], s49 offen{SC}\ns_add_u32 s49, s49, {PS}")
        return out
    def mf(st, ks, rs):
        return [f"v_mfma_f32_16x16x32_bf16 {v(ACC+(d*2+l)*4,4)}, {v(UF+rs*36+d*4,4)}, {v(WF+rs*8+l*4,4)}, {v(ACC+(d*2+l)*4,4)}"
                for d in range(9) for l in range(2)]
    consumer_loop(k, N, R, reads, mf, per=1, final_barrier=False, stamp0=None if (os.environ.get('P3S') or os.environ.get('P2S')) else 15)
    k("STAMP 9")
    V16, V8, VZ, VO = VTR, VTR + 1, VTR + 2, VTR + 3
    k(f"v_lshlrev_b32 v{V16}, 4, v{VL}\nv_lshlrev_b32 v{V8}, 3, v{VL}\nv_mov_b32 v{VZ}, 0\nv_mov_b32 v{T2}, 1\ns_waitcnt vmcnt(0)")
    if POIS:
        OK = k.lab("POK")
        k(f"v_cmp_gt_u32 vcc, 40, v{PZ}\ns_mov_b32 s31, 0\ns_nop 3\ns_cbranch_vccz {OK}")
        poll(k, PZ - 1, PZ, 1, 56, 31, want=40)
        k(f"{OK}:")
    GA, GB = [0, 1, 2, 3, 4], [5, 6, 7, 8]
    def epi(aa):
        own, oth = (GA, GB) if aa == 0 else (GB, GA)
        PK = UF
        n = 0
        for x, grp, l in ((2, oth, 0), (3, oth, 1), (1, own, 1)):
            for c in range(0, len(grp), 2):
                ds = grp[c:c + 2]
                for e, d in enumerate(ds):
                    ac = ACC + (d * 2 + l) * 4
                    k(f"v_cvt_pk_bf16_f32 v{PK+n+2*e}, v{ac}, v{ac+1}\nv_cvt_pk_bf16_f32 v{PK+n+2*e+1}, v{ac+2}, v{ac+3}")
                if len(ds) == 2: k(f"buffer_store_dwordx4 {v(PK+n,4)}, v{V16}, s[20:23], s{44+x} offen offset:{c*512}{WT}")
                else: k(f"buffer_store_dwordx2 {v(PK+n,2)}, v{V8}, s[20:23], s{44+x} offen offset:{c*512}{WT}")
                n += 4
        for e, d in enumerate(own):
            ac = v(ACC + d * 8, 4)
            k(f"v_mfma_f32_16x16x32_bf16 {ac}, {v(HR+4*e,4)}, {v(IDN,4)}, {ac}")
        k(f"v_lshlrev_b32 v{B2}, 16, v{B2}")
        k(f"v_mul_u32_u24 v{VO}, 1152, v{VI}\nv_lshl_add_u32 v{VO}, v{VG}, 3, v{VO}")
        RR = UF + 40
        chunks = [own[c:c + 2] for c in range(0, len(own), 2)]
        k(f"s_add_u32 s30, s33, {4*2560}\ns_add_u32 s31, s33, {8*2560}")
        def inbox():
            regs = []
            for ci, ds in enumerate(chunks):
                for sl, so in enumerate((33, 30, 31)):
                    r = RR + (ci * 3 + sl) * 4
                    if len(ds) == 2: k(f"buffer_load_dwordx4 {v(r,4)}, v{V16}, s[20:23], s{so} offen offset:{ci*1024} sc0 sc1")
                    else: k(f"buffer_load_dwordx2 {v(r,2)}, v{V8}, s[20:23], s{so} offen offset:{ci*1024} sc0 sc1")
                    regs += list(range(r, r + 2 * len(ds)))
            return regs
        def addb2():
            for d in own:
                for h2 in range(2): k(f"v_pk_add_f32 {v(ACC+d*8+2*h2,2)}, {v(ACC+d*8+2*h2,2)}, {v(B2-(B2&1),2)} op_sel:[0,{B2&1}] op_sel_hi:[1,{B2&1}]")
        if POIS:
            addb2()
            PL, GO = k.lab("PP"), k.lab("PG")
            k(f"s_mov_b32 s37, 0x40000\ns_waitcnt vmcnt({os.environ.get('PWAIT', 0)})\n{PL}:")
            regs = inbox()
            k(f"s_waitcnt vmcnt(0)\nv_max_u32 v{T0}, v{regs[0]}, v{regs[1]}")
            for n in range(2, len(regs), 2): k(f"v_max3_u32 v{T0}, v{T0}, v{regs[n]}, v{regs[n+1]}")
            k(f"v_cmp_eq_u32 vcc, -1, v{T0}\ns_sub_u32 s37, s37, 1\ns_cmp_eq_u32 s37, 0\ns_cbranch_scc1 {GO}\ns_cbranch_vccz {GO}\ns_sleep 2\ns_branch {PL}\n{GO}:\nSTAMP 10")
        else:
            k("s_waitcnt vmcnt(0)")
            set_flag(k, VZ, T2, 20, 34)
            addb2()
            k(f"v_lshlrev_b32 v{T0}, 7, v{VL}\ns_mov_b64 exec, 0xf")
            poll(k, T0, HR, 1, 20, 35)
            k("s_mov_b64 exec, -1\nSTAMP 10")
            inbox()
        nst = 0
        for ci, ds in enumerate(chunks):
            if not POIS: k(f"s_waitcnt vmcnt({3*(len(chunks)-1-ci)+nst})")
            for e, d in enumerate(ds):
                o = ACC + d * 8
                for sl in range(3):
                    for h2 in range(2):
                        p = RR + (ci * 3 + sl) * 4 + 2 * e + h2
                        t = PK + (sl * 2 + h2) * 2
                        k(f"v_lshlrev_b32 v{t}, 16, v{p}\nv_and_b32 v{t+1}, 0xffff0000, v{p}")
                for sl in range(3):
                    for h2 in range(2):
                        t = PK + (sl * 2 + h2) * 2
                        k(f"v_pk_add_f32 {v(o+2*h2,2)}, {v(o+2*h2,2)}, {v(t,2)}")
                k(f"v_cvt_pk_bf16_f32 v{o}, v{o}, v{o+1}\nv_cvt_pk_bf16_f32 v{o+1}, v{o+2}, v{o+3}")
                k(f"buffer_store_dwordx2 {v(o,2)}, v{VO}, s[40:43], s48 offen offset:{d*32}" + os.environ.get("OUTF", ""))
                nst += 1
        k("s_endpgm")
    A1 = k.lab("A1")
    k(f"s_cmp_ge_u32 s26, 2\ns_cbranch_scc1 {A1}")
    epi(0)
    k(f"{A1}:")
    epi(1)
    k(f"{PROD}:\ns_and_b32 s29, s28, 1")
    ORD = 'noord' not in XM
    k("s_sub_u32 s38, 1, s26\ns_and_b32 s38, s38, 3\ns_cmp_eq_u32 s38, 0\ns_cselect_b32 s39, 6, 7")
    for n in range(9):
        if not ORD:
            k(f"s_mov_b32 s{40+n}, {n}"); continue
        k(f"s_mov_b32 s{40+n}, {n}")
        for d in (0, 3, 6):
            if n - d >= 0: k(f"s_cmp_le_u32 s38, {n-d}\ns_addc_u32 s{40+n}, s{40+n}, 0")
        if n >= 6: k(f"s_sub_u32 s30, {n}, s39\ns_lshl_b32 s30, s30, 2\ns_add_u32 s30, s30, s38\ns_cmp_le_u32 s39, {n}\ns_cselect_b32 s{40+n}, s30, s{40+n}")
    k(f"s_cmp_ge_u32 s28, 6\ns_cbranch_scc1 {PA}")
    VD = 10
    for q in range(2):
        k(f"v_add_u32 v{T0}, {4*q}, v{VG}")
        k(f"v_lshlrev_b32 v{T1}, 1, v{T0}\nv_xor_b32 v{T1}, v{T1}, v{VI}\nv_lshlrev_b32 v{T1}, 4, v{T1}")
        k(f"v_lshl_add_u32 v{VD+q}, v{T0}, 12, v{T1}")
    for q in range(2, 8): k(f"v_add_u32 v{VD+q}, {8*4096}, v{VD+q-2}")
    k(f"s_mul_i32 s32, s26, {1152*4096}\ns_lshl_b32 s30, s29, 17\ns_add_u32 s32, s32, s30\ns_lshl_b32 s30, s24, 8\ns_add_u32 s32, s32, s30\ns_lshl_b32 s34, s29, 13")
    srd(k, 12, PW2, F_ * S_ * 2)
    producer_loop(k, N, R, 8, lambda st, slot: [f"s_lshl_b32 s33, s{40+(st>>1)}, 19\ns_add_u32 s33, s33, s32" + (f"\ns_add_u32 s33, s33, {64*4096}" if st & 1 else "")] +
                  [dma(34, slot * STG + q * 1024, VD + q, 12, 33) for q in range(8)], FIN, final_barrier=False, first=int(os.environ.get("FIRST5", 2)), gate=lambda st: None)
    k(f"{PA}:")
    k(f"v_lshlrev_b32 v{VD}, 4, v{VL}")
    for d in range(1, 9): k(f"v_add_u32 v{VD+d}, {144*1024}, v{VD+d-1}")
    k(f"s_mul_i32 s33, s25, {9*144*1024}\ns_mul_i32 s30, s26, {36*1024}\ns_add_u32 s33, s33, s30\ns_lshl_b32 s30, s29, 10\ns_add_u32 s33, s33, s30\ns_add_u32 s33, s33, {WS_U}")
    k("s_mul_i32 s35, s29, 9216\ns_add_u32 s35, s35, 16384")
    k(f"s_mul_i32 s30, s25, 3\ns_lshr_b32 s30, s30, 1\ns_mul_i32 s31, s26, 6\ns_add_u32 s30, s30, s31\ns_mul_i32 s30, s30, {9*128}\ns_add_u32 s30, s30, {F4}")
    k(f"v_lshlrev_b32 v{T0}, 7, v{VL}")
    W7, WD = k.lab("W7"), k.lab("WD")
    k(f"s_mov_b32 s49, s30\ns_cmp_eq_u32 s28, 7\ns_cbranch_scc1 {W7}")
    if 'nogate' not in XM:
        NG, NG2 = k.lab("NG"), k.lab("NG")
        k(f"s_cmp_ge_u32 s2, 216\ns_cbranch_scc1 {NG}")
        wait_local(k, 20, LCNT + 8)
        k(f"s_branch {NG2}\n{NG}:\ns_lshl_b32 exec_lo, 1, s40\ns_mov_b32 exec_hi, 0")
        poll(k, T0, 20, 1, 20, 30, sleep=8)
        k(f"{NG2}:")
    k("s_lshl_b32 s31, 0x111, s38\ns_and_b32 s31, s31, 0x1ff\ns_mul_i32 s31, s31, 0x201\ns_andn2_b32 exec_lo, 0x3ffff, s31\ns_mov_b32 exec_hi, 0\ns_mov_b32 s49, s30" if ORD else "s_mov_b64 exec, 0x3ffff")
    poll(k, T0, 20, 1, 20, 30)
    k("s_mov_b64 exec, -1")
    lds_signal(k, 20, LCNT + 28)
    k(f"s_branch {WD}\n{W7}:")
    wait_local(k, 20, LCNT + 28, n=1)
    k(f"{WD}:\nSTAMP 9")
    def gate(st):
        if st == 12 and ORD:
            k("s_mov_b64 exec, 0x3ffff")
            poll(k, T0, 20, 1, 20, 49)
            k("s_mov_b64 exec, -1")
    producer_loop(k, N, R, 9, lambda st, slot: [f"s_lshl_b32 s32, s{40+(st>>1)}, 12\ns_add_u32 s32, s32, s33" + ("\ns_add_u32 s32, s32, 2048" if st & 1 else "")] +
                  [dma(35, slot * STG + q * 1024, VD + q, 20, 32, SC) for q in range(9)], FIN, final_barrier=False, gate=gate)
    k(f"{FIN}:\ns_endpgm")

NAME = "sequential_preLN__sliding_block__mixer_token_mlp__prompt_kernel"
def gen_mega():
    k = Kern(NAME, 512, 256, LCNT + 64)
    k.lab = (lambda f: (lambda base="L": f(base).replace(NAME[:-7], "m")))(k.lab)
    END = k.lab("END")
    k(f"s_cmp_ge_u32 s2, 256\ns_cbranch_scc1 {END}")
    k("s_load_dwordx16 s[64:79], s[0:1], 0\ns_load_dwordx4 s[80:83], s[0:1], 64\ns_load_dwordx2 s[84:85], s[0:1], 80")
    k("s_and_b32 s10, s2, 7\ns_lshr_b32 s11, s2, 3")
    if 'nocode' not in XM:
        H = k.lab("PC"); SK = k.lab("SKC")
        k(f"s_cmp_lt_u32 s2, 192\ns_cbranch_scc1 {SK}\ns_getpc_b64 s[60:61]\n{H}:\ns_sub_u32 s60, s60, {H}-L_text_begin\ns_subb_u32 s61, s61, 0")
        k(f"s_sub_u32 s62, s11, 24\ns_lshl_b32 s62, s62, 7\nv_lshlrev_b32 v{T0}, 10, v0\nv_add_u32 v{T0}, s62, v{T0}")
        k(f"s_mov_b32 s62, L_text_end-L_text_begin\nv_cmp_gt_u32 vcc, s62, v{T0}\ns_and_saveexec_b64 s[62:63], vcc\ns_cbranch_execz {SK}\nglobal_load_dword v{DUMMY}, v{T0}, s[60:61]\n{SK}:\ns_mov_b64 exec, -1")
    lane_ids(k, VL, 2, 28)
    k(f"v_lshlrev_b32 v{T0}, 2, v{VL}\nv_add_u32 v{T0}, {LCNT}, v{T0}\nv_mov_b32 v{T1}, 0\ns_mov_b64 exec, 0xffff\nds_write_b32 v{T0}, v{T1}\ns_mov_b64 exec, -1")
    E2a, E2b, E3, E4, E5 = [k.lab(n) for n in ("P2A", "P2B", "P3", "P4", "P5")]
    p1(k, (E2a, E2b))
    p2(k, (E2a, E2b), E3)
    p3(k, E3, E4)
    p4(k, E4, E5)
    p5(k, E5)
    k(f"{END}:\ns_endpgm")
    return k
```

```python
from common import *
import os

def producer_loop(k, N, R, P, issue, nxt, first=2, cnt=36, tail=None, final_barrier=True, gate=None):
    special = getattr(issue, "special_from", N)
    def do(st):
        if gate: gate(st)
        for t in issue(st, st % R): k(t)
    first = min(first, R)
    for st in range(first): do(st)
    k(f"s_waitcnt vmcnt({(first - 1) * P})\ns_barrier")
    issued = first
    for st in range(issued, min(N, R)): do(st)
    issued = min(N, R)
    k(f"s_waitcnt vmcnt({(issued - 2) * P})\ns_barrier")
    b = 1
    nsteady = N - R
    nloop = 0
    while gate is None and (nloop + 1) * R <= nsteady and R + (nloop + 1) * R - 1 < special: nloop += 1
    if nloop >= 2:
        L = k.lab("PL")
        k(f"s_mov_b32 s{cnt}, {nloop}\n{L}:")
        for i in range(R):
            do(R + i)
            k(f"s_waitcnt vmcnt({(R - 2) * P})\ns_barrier")
        k(f"s_sub_u32 s{cnt}, s{cnt}, 1\ns_cmp_lg_u32 s{cnt}, 0\ns_cbranch_scc1 {L}")
        b += nloop * R; issued += nloop * R
    while b < N - 1:
        if issued < N:
            do(issued); issued += 1
        k(f"s_waitcnt vmcnt({(issued - (b + 1) - 1) * P})")
        if b == N - 2 and tail: tail(k)
        k("s_barrier")
        b += 1
    if final_barrier: k("s_barrier")
    k(f"s_branch {nxt}")

def consumer_loop(k, N, R, reads, mf, cnt=36, per=2, special_from=None, final_barrier=True, before_last=None, stamp0=None):
    special_from = N if special_from is None else special_from
    if os.environ.get("STG_STAMP") and stamp0 == 12: special_from = 0; k("s_mov_b32 s36, 1")
    if os.environ.get("STG_STAMP") and stamp0 != 12: stamp0 = None
    k("s_barrier")
    if stamp0 is not None: k(f"STAMP {stamp0}")
    for t in reads(0, 0, 0, 0): k(t)
    def stage(st, last=False):
        slot = st % R
        k("s_waitcnt lgkmcnt(0)")
        for t in interleave(mf(st, 0, 0), reads(st, slot, 1, 1), 0, per): k(t)
        fill = []
        if not last:
            k("s_waitcnt lgkmcnt(0)\ns_barrier")
            fill = reads(st + 1, (slot + 1) % R, 0, 0)
        else:
            k("s_waitcnt lgkmcnt(0)")
            if final_barrier: k("s_barrier")
        for t in interleave(mf(st, 1, 1), fill, 0, per): k(t)
    nloop = 0
    while (nloop + 1) * R < N and (nloop + 1) * R < special_from: nloop += 1
    st = 0
    if nloop >= 2:
        L = k.lab("CL")
        k(f"s_mov_b32 s{cnt}, {nloop}\n{L}:")
        for i in range(R): stage(i)
        k(f"s_sub_u32 s{cnt}, s{cnt}, 1\ns_cmp_lg_u32 s{cnt}, 0\ns_cbranch_scc1 {L}")
        st = nloop * R
    while st < N:
        if os.environ.get("STG_STAMP") and stamp0 == 12 and st in (1, 2, 4): k(f"STAMP {13 + (1, 2, 4).index(st)}")
        if st == N - 1 and before_last: before_last()
        stage(st, st == N - 1); st += 1

def dma(m0base, off, vaddr, srd, soff, flags=""):
    return f"s_add_u32 m0, s{m0base}, {off}\ns_nop 0\nbuffer_load_dwordx4 v{vaddr}, s[{srd}:{srd+3}], s{soff} offen{flags} lds"

def poll(k, vaddr, vdst, nd, srd, soff, cnt=37, sleep=True, want=None):
    P, G = k.lab("POLL"), k.lab("GO")
    op = {1: "dword", 2: "dwordx2", 4: "dwordx4"}[nd]
    k(f"s_mov_b32 s{cnt}, 0x40000\n{P}:")
    k(f"buffer_load_{op} {v(vdst, nd)}, v{vaddr}, s[{srd}:{srd+3}], s{soff} offen sc0 sc1\ns_waitcnt vmcnt(0)")
    for i in range(1, nd): k(f"v_min_u32 v{vdst}, v{vdst}, v{vdst+i}")
    k((f"v_cmp_eq_u32 vcc, 0, v{vdst}" if want is None else f"v_cmp_gt_u32 vcc, {want}, v{vdst}") + f"\ns_sub_u32 s{cnt}, s{cnt}, 1\ns_cmp_eq_u32 s{cnt}, 0\ns_cbranch_scc1 {G}")
    if sleep:
        k(f"s_cbranch_vccz {G}\ns_sleep {int(sleep)}\ns_branch {P}\n{G}:")
    else:
        k(f"s_cbranch_vccnz {P}\n{G}:")

def set_flag(k, vz, vone, srd, soff):
    k(f"s_mov_b64 exec, 1\nbuffer_store_dword v{vone}, v{vz}, s[{srd}:{srd+3}], s{soff} offen sc0 sc1\ns_mov_b64 exec, -1")


def last_wave_flag(k, vz, vone, vt, ldsoff, srd, soff, n=4):
    S = k.lab("NL")
    k(f"v_mov_b32 v{vt}, {ldsoff}\ns_mov_b64 exec, 1\nds_add_rtn_u32 v{vt}, v{vt}, v{vone}\ns_waitcnt lgkmcnt(0)\nv_readfirstlane_b32 s31, v{vt}")
    k(f"s_cmp_lg_u32 s31, {n-1}\ns_cbranch_scc1 {S}\nbuffer_store_dword v{vone}, v{vz}, s[{srd}:{srd+3}], s{soff} offen sc0 sc1")
    k(f"v_mov_b32 v{vt}, {ldsoff}\ns_waitcnt vmcnt(0)\nds_add_u32 v{vt}, v{vone}\n{S}:\ns_mov_b64 exec, -1")

def lds_signal(k, vt, ldsoff):
    k(f"v_mov_b32 v{vt}, {ldsoff}\nv_mov_b32 v{vt+1}, 1\nds_write_b32 v{vt}, v{vt+1}")

def wait_local(k, vt, ldsoff, n=int(os.environ.get('LWN', 5)), cnt=37):
    P, G = k.lab("LW"), k.lab("LG")
    k(f"s_mov_b32 s{cnt}, 0x400000\n{P}:\nv_mov_b32 v{vt}, {ldsoff}\nds_read_b32 v{vt}, v{vt}\ns_waitcnt lgkmcnt(0)\nv_readfirstlane_b32 s31, v{vt}")
    k(f"s_cmp_ge_u32 s31, {n}\ns_cbranch_scc1 {G}\ns_sub_u32 s{cnt}, s{cnt}, 1\ns_cmp_eq_u32 s{cnt}, 0\ns_cbranch_scc1 {G}\ns_sleep 1\ns_branch {P}\n{G}:")
```

```python
from common import *
from ring2 import *
import math, os
XM = os.environ.get('MX', 'notouch,nopoison,noslow').split(',')
WT = " sc0 sc1"
SC = " sc1"
FL = WS_ST + 196608
F1 = FL; F2 = F1 + 32768; F3 = F2 + 32768; F4 = F3 + 24576; F5 = F4 + 27648; FEND = F5 + 131072
assert FEND - WS_ST <= 64 * 8192
LX = 61440
LCNT = 160768
WS_XS = 22 * MB
WS_CS = WS_XS + 16384
PX, PWQKV, PWO, PW1, PB1, PW2, PB2, POUT, PDBG, PWS = 64, 66, 68, 72, 74, 76, 78, 80, 82, 84
VL, VG, VI = 1, 3, 4
T0, T1, T2, T3 = 5, 6, 7, 8
DUMMY = 234

def pf_flat(k, srd_, sidx, nwg, nthreads, b0, b1, tmp, vt=0, s0=60):
    lines = (b1 - b0) // 128
    per = (lines + nwg - 1) // nwg
    n = (per + nthreads - 1) // nthreads
    k(f"s_mul_i32 s{s0}, s{sidx}, {per*128}\ns_add_u32 s{s0}, s{s0}, {b0}\nv_lshlrev_b32 v{tmp}, 7, v{vt}")
    for i in range(n):
        last = per - i * nthreads
        if last < nthreads:
            k(f"v_mov_b32 v{tmp+1}, 0x7ff00000\nv_cmp_gt_u32 vcc, {last}, v{vt}\nv_cndmask_b32 v{tmp}, v{tmp+1}, v{tmp}, vcc")
        k(f"buffer_load_dword v{DUMMY}, v{tmp}, s[{srd_}:{srd_+3}], s{s0} offen\ns_add_u32 s{s0}, s{s0}, {nthreads*128}")

PFDEF = dict(PF1B="w1:0:44", PF2="w1:44:92", PF3="w1:92:128,w2:0:28", PF4="w2:28:128")
def pf(k, name, sidx, nwg, nthreads, tmp, vt=0):
    spec = os.environ.get(name, PFDEF.get(name, ""))
    if not spec or spec == "0": return
    U = S_ * F_ * 2 // 128
    for it in spec.split(","):
        w, a_, b_ = it.split(":")
        srd(k, 52, PW1 if w == "w1" else PW2, S_ * F_ * 2)
        pf_flat(k, 52, sidx, nwg, nthreads, int(a_) * U, int(b_) * U, tmp, vt=vt)

def w1_addr(k, tmp):
    srd(k, 52, PW1, S_ * F_ * 2)
    k("s_lshr_b32 s60, s10, 1\ns_mul_i32 s60, s60, 9\ns_and_b32 s61, s10, 1\ns_lshl_b32 s61, s61, 2\ns_add_u32 s60, s60, s61\ns_lshl_b32 s60, s60, 8")
    k(f"v_lshrrev_b32 v{tmp}, 4, v0\nv_mul_u32_u24 v{tmp}, 9216, v{tmp}\nv_and_b32 v{tmp+1}, 15, v0\nv_lshl_add_u32 v{tmp}, v{tmp+1}, 7, v{tmp}")
    k(f"v_cmp_lt_u32 vcc, 9, v{tmp+1}\nv_mov_b32 v{tmp+1}, 0x7ff00000\nv_cndmask_b32 v{tmp}, v{tmp}, v{tmp+1}, vcc")

def w1_rows(k, sidx, rows, r0, _):
    w1_addr(k, 10)
    k(f"s_mul_i32 s61, s{sidx}, {rows*9216}\ns_add_u32 s60, s60, s61\ns_add_u32 s60, s60, {r0*9216}")
    for i in range((rows + 31) // 32):
        k(f"buffer_load_dword v{DUMMY}, v10, s[52:55], s60 offen\ns_add_u32 s60, s60, {32*9216}")

def w1slow(k):
    srd(k, 52, PW1, S_ * F_ * 2)
    k("s_lshr_b32 s60, s10, 1\ns_mul_i32 s60, s60, 9\ns_and_b32 s61, s10, 1\ns_lshl_b32 s61, s61, 2\ns_add_u32 s60, s60, s61")
    k("s_sub_u32 s61, 1, s60\ns_and_b32 s61, s61, 3\ns_add_u32 s60, s60, s61\ns_lshl_b32 s60, s60, 8\ns_add_u32 s60, s60, 128")
    k(f"s_sub_u32 s62, s11, 27\nv_mul_u32_u24 v10, 5, v0\nv_add_u32 v10, s62, v10\nv_mul_u32_u24 v10, 9216, v10")
    k(f"buffer_load_dword v{DUMMY}, v10, s[52:55], s60 offen\ns_add_u32 s60, s60, 1024\ns_cmp_eq_u32 s61, 0\ns_cselect_b32 s54, s54, 0")
    k(f"buffer_load_dword v{DUMMY}, v10, s[52:55], s60 offen")

def ids16(k):
    k(f"v_lshrrev_b32 v{VG}, 4, v{VL}\nv_and_b32 v{VI}, 15, v{VL}")

def p1(k, NXT):
    R = 4; STG = 34816; N = 9; XO = 18432
    PROD = k.lab("P1PROD"); PF = k.lab("P1PF"); PX_ = k.lab("P1PX")
    k("s_and_b32 s24, s10, 3\ns_lshl_b32 s24, s24, 2\ns_and_b32 s25, s11, 3\ns_add_u32 s24, s24, s25")
    k("s_lshr_b32 s25, s10, 2\ns_mul_i32 s25, s25, 6\ns_lshr_b32 s29, s11, 2\ns_add_u32 s25, s25, s29")
    ids16(k)
    def touch():
        k(f"v_mul_u32_u24 v{T0}, 4682, v{VL}\nv_lshrrev_b32 v{T0}, 16, v{T0}")
        k(f"v_mul_u32_u24 v{T1}, 14, v{T0}\nv_sub_u32 v{T1}, v{VL}, v{T1}")
        k(f"v_lshrrev_b32 v{T2}, 1, v{T0}\nv_mul_u32_u24 v{T2}, 62, v{T2}\nv_add_u32 v{T0}, v{T0}, v{T2}")
        k(f"v_mul_u32_u24 v{T0}, 3456, v{T0}\nv_lshl_add_u32 v{T0}, v{T1}, 7, v{T0}\nv_lshlrev_b32 v{T1}, 7, v{VL}")
        k(f"s_add_u32 s30, s28, 1\ns_mul_i32 s30, s30, {128*3456}\ns_mul_i32 s31, s11, {2*3456}\ns_add_u32 s30, s30, s31\ns_lshr_b32 s31, s10, 2\ns_mul_i32 s31, s31, {13*128}\ns_add_u32 s30, s30, s31")
        k(f"s_and_b32 s31, s10, 3\ns_mul_i32 s31, s31, {512*1152}\ns_mul_i32 s29, s11, {16*1152}\ns_add_u32 s31, s31, s29\ns_mul_i32 s29, s28, {36*128}\ns_add_u32 s31, s31, s29")
        k("s_waitcnt lgkmcnt(0)")
        srd(k, 12, PX, S_ * D_ * 2)
        srd(k, 16, PWQKV, D_ * 1728 * 2)
        if 'notouch' in XM: return
        k("s_mov_b32 exec_hi, 0xf")
        k(f"buffer_load_dword v{DUMMY}, v{T1}, s[12:15], s31 offen")
        k("s_mov_b32 exec_hi, 0xffffff")
        k(f"buffer_load_dword v{DUMMY}, v{T0}, s[16:19], s30 offen")
        k("s_mov_b32 exec_hi, -1")
    k(f"s_cmp_ge_u32 s11, 24\ns_cbranch_scc1 {PF}")
    k(f"s_cmp_ge_u32 s28, 4\ns_cbranch_scc1 {PROD}")
    k("s_lshr_b32 s26, s25, 2\ns_and_b32 s27, s25, 3")
    VTR, VXR, VC, ZD, XF, WF = 10, 12, 16, 18, 20, 36
    ACC = WF + 72
    CSR = ACC + 72; STR = CSR + 36
    assert STR + 16 <= DUMMY
    k(f"v_bfe_u32 v{T0}, v{VL}, 2, 2\nv_lshl_add_u32 v{T0}, v{VG}, 2, v{T0}\nv_mul_u32_u24 v{T0}, 288, v{T0}")
    k(f"v_and_b32 v{T1}, 3, v{VL}\nv_lshl_add_u32 v{VTR}, v{T1}, 3, v{T0}\nv_mul_u32_u24 v{T1}, 72, v{T1}\nv_add3_u32 v{VTR+1}, v{T0}, v{T1}, 32")
    k(f"v_lshrrev_b32 v{T0}, 1, v{VI}\nv_lshrrev_b32 v{T1}, 1, v{VG}\nv_xor_b32 v{T0}, v{T0}, v{T1}\nv_lshlrev_b32 v{T0}, 4, v{T0}\nv_lshl_add_u32 v{T0}, v{VI}, 7, v{T0}")
    k(f"v_and_b32 v{T1}, 1, v{VG}\nv_lshl_add_u32 v{T0}, v{T1}, 3, v{T0}")
    k(f"s_lshl_b32 s30, s28, 12\ns_add_u32 s30, s30, {XO}\nv_add_u32 v{VXR}, s30, v{T0}")
    for q in range(1, 4): k(f"v_xor_b32 v{VXR+q}, {32*q}, v{VXR}")
    for r in range(72): k(f"v_mov_b32 v{ACC+r}, 0")
    k(f"v_mov_b32 v{VC}, 0")
    touch()
    srd(k, 20, PWS, WS_SIZE)
    srd(k, 56, PDBG, 256)
    k(f"s_mul_i32 s50, s25, {9*PS}\ns_lshl_b32 s30, s24, 2\ns_add_u32 s30, s30, s28\ns_lshl_b32 s49, s30, 7\ns_lshl_b32 s30, s30, 10\ns_add_u32 s50, s50, s30")
    k(f"s_add_u32 s49, s49, {WS_XS}\ns_mul_i32 s51, s25, 576\ns_add_u32 s51, s51, {WS_CS}")
    k(f"s_lshl_b32 s48, s27, 4\ns_add_u32 s48, s48, s24\ns_lshl_b32 s48, s48, 2\ns_add_u32 s48, s48, s26\ns_lshl_b32 s48, s48, 7\ns_add_u32 s48, s48, {F1}")
    first = [True]
    coff = [72 * (T >> 1) + 40 * (T & 1) for T in range(8)]
    def body(vor):
        first[0] = True
        def side():
            OK = k.lab("ZOK")
            if not os.environ.get("STG_STAMP"): k("STAMP 13")
            k(f"s_waitcnt vmcnt(0)\nv_cmp_gt_u32 vcc, 64, v{ZD}\ns_mov_b32 s31, 0\ns_nop 3\ns_cbranch_vccz {OK}")
            poll(k, VC, ZD, 1, 56, 31, want=64)
            k(f"{OK}:")
            if not vor:
                k(f"v_lshlrev_b32 v{VC}, 4, v{VG}\nv_mul_u32_u24 v{VC+1}, 144, v{VG}\nv_lshlrev_b32 v{ZD}, 2, v{VI}")
                for tt in range(2):
                    k(f"buffer_load_dword v{STR+2*tt}, v{ZD}, s[20:23], s49 offen offset:{tt*64}{SC}")
                k("s_add_u32 s49, s49, 8192")
                for tt in range(2):
                    k(f"buffer_load_dword v{STR+2*tt+1}, v{ZD}, s[20:23], s49 offen offset:{tt*64}{SC}")
                for T in range(9):
                    k(f"buffer_load_dwordx4 {v(CSR+4*T,4)}, v{VC+(T==8)}, s[20:23], s51 offen offset:{2*coff[T] if T < 8 else 64}{SC}")
            else:
                k(f"v_lshlrev_b32 v{VC}, 2, v{VI}\nv_lshrrev_b32 v{VC+1}, 2, v{VI}\nv_mul_u32_u24 v{VC+1}, 128, v{VC+1}\nv_add_u32 v{VC+1}, v{VC+1}, v{VC}\nv_lshlrev_b32 v{ZD}, 4, v{VG}")
                for hf in range(2):
                    for tt in range(2):
                        k(f"buffer_load_dwordx4 {v(STR+tt*8+hf*4,4)}, v{ZD}, s[20:23], s49 offen offset:{tt*64}{SC}")
                    if hf == 0: k("s_add_u32 s49, s49, 8192")
                for T in range(9):
                    k(f"buffer_load_dword v{CSR+T}, v{VC+(T==8)}, s[20:23], s51 offen offset:{2*coff[T] if T < 8 else 64}{SC}")
        def reads(st, slot, ks, rs):
            out = []
            if ks == 0 and not first[0]:
                d = STG if slot else -(R - 1) * STG
                regs = list(range(VXR, VXR + 4)) + [VTR, VTR + 1]
                out += [f"v_add_u32 v{r}, {d}, v{r}" if d > 0 else f"v_subrev_u32 v{r}, {-d}, v{r}" for r in regs]
            first[0] = False
            for tt in range(2):
                for hf in range(2):
                    out.append(f"ds_read_b64 {v(XF+rs*8+tt*4+hf*2,2)}, v{VXR+2*ks+hf} offset:{tt*2048}")
            for j in range(9):
                for hf in range(2):
                    out.append(f"ds_read_b64_tr_b16 {v(WF+rs*36+j*4+hf*2,2)}, v{VTR+(j==8)} offset:{ks*9216+hf*4608+(coff[j] if j < 8 else 0)}")
            if slot == 3 and ks == 1 and not (os.environ.get('STG_STAMP') and st == 3):
                L = k.lab("ZS")
                out.append(f"s_cmp_lg_u32 s36, 1\ns_cbranch_scc1 {L}\nbuffer_load_dword v{ZD}, v{VC}, s[56:59], 0 offen sc0 sc1\n{L}:")
            return out
        def mf(st, ks, rs):
            g = []
            for j in range(9):
                wf = v(WF + rs * 36 + j * 4, 4)
                for tt in range(2):
                    xf = v(XF + rs * 8 + tt * 4, 4)
                    ac = v(ACC + (j * 2 + tt) * 4, 4)
                    g.append(f"v_mfma_f32_16x16x32_bf16 {ac}, {xf}, {wf}, {ac}" if vor else f"v_mfma_f32_16x16x32_bf16 {ac}, {wf}, {xf}, {ac}")
            return g
        consumer_loop(k, N, R, reads, mf, per=[2] * 8 + [1], final_barrier=False, before_last=side, stamp0=12)
        k("STAMP 1")
        qs = 18 ** -0.5 * math.log2(math.e)
        OUT = XF; VM0 = VTR
        k(f"v_lshlrev_b32 v{VM0}, 4, v{VL}\ns_waitcnt vmcnt(0)")
        if not vor:
            k(f"s_cmp_eq_u32 s26, 0\ns_cselect_b32 s31, {f32(qs)}, 1.0")
            for tt in range(2): k(f"v_mul_f32 v{STR+2*tt+1}, s31, v{STR+2*tt+1}")
        sw = "32" if vor else "16"
        def fin(j):
            po = OUT + (j % 4) * 4
            k(f"v_permlane{sw}_swap_b32 v{po}, v{po+2}\nv_permlane{sw}_swap_b32 v{po+1}, v{po+3}")
            k(f"buffer_store_dwordx4 {v(po,4)}, v{VM0}, s[20:23], s50 offen{WT}\ns_add_u32 s50, s50, {PS}")
        for j in range(9):
            o = OUT + (j % 4) * 4
            for tt in range(2):
                ac = ACC + (j * 2 + tt) * 4
                for h2 in range(2):
                    if not vor:
                        k(f"v_pk_fma_f32 {v(ac+2*h2,2)}, {v(STR+2*tt,2)}, {v(CSR+4*j+2*h2,2)}, {v(ac+2*h2,2)} op_sel_hi:[0,1,1] neg_lo:[1,0,0] neg_hi:[1,0,0]")
                    else:
                        c = CSR + (j & ~1); sel = j & 1
                        k(f"v_pk_fma_f32 {v(ac+2*h2,2)}, {v(STR+tt*8+2*h2,2)}, {v(c,2)}, {v(ac+2*h2,2)} op_sel:[0,{sel},0] op_sel_hi:[1,{sel},1] neg_lo:[1,0,0] neg_hi:[1,0,0]")
            for tt in range(2):
                ac = ACC + (j * 2 + tt) * 4
                for h2 in range(2):
                    if not vor: k(f"v_pk_mul_f32 {v(ac+2*h2,2)}, {v(ac+2*h2,2)}, {v(STR+2*tt,2)} op_sel:[0,1] op_sel_hi:[1,1]")
                    else: k(f"v_pk_mul_f32 {v(ac+2*h2,2)}, {v(ac+2*h2,2)}, {v(STR+tt*8+4+2*h2,2)}")
            for tt in range(2):
                ac = ACC + (j * 2 + tt) * 4
                k(f"v_cvt_pk_bf16_f32 v{o+2*tt}, v{ac}, v{ac+1}\nv_cvt_pk_bf16_f32 v{o+2*tt+1}, v{ac+2}, v{ac+3}")
            if j > 0: fin(j - 1)
        fin(8)
        k(f"v_mov_b32 v{T0}, 0\nv_mov_b32 v{T1}, 1\ns_waitcnt vmcnt(0)")
        last_wave_flag(k, T0, T1, T2, LCNT, 20, 48)
        k(f"s_branch {NXT[0]}")
    LV = k.lab("VOR")
    k(f"s_cmp_eq_u32 s26, 2\ns_cbranch_scc1 {LV}")
    body(False)
    k(f"{LV}:")
    body(True)
    k(f"{PROD}:")
    ra, rb = [int(t) for t in os.environ.get("ROT1", "9,6").split(",")]
    k(f"s_and_b32 s38, s11, 3\ns_mul_i32 s38, s38, {ra}\ns_lshr_b32 s39, s11, 2\ns_mul_i32 s39, s39, {rb}\ns_lshr_b32 s38, s38, 2\ns_lshr_b32 s39, s39, 2\ns_add_u32 s38, s38, s39")
    k("s_sub_u32 s39, s38, 9\ns_cmp_ge_u32 s38, 9\ns_cselect_b32 s38, s39, s38")
    k(f"s_and_b32 s29, s28, 1\ns_cmp_ge_u32 s28, 6\ns_cbranch_scc1 {PX_}")
    VD = 10
    def adv(reg, step):
        return [f"s_add_u32 s{reg}, s{reg}, {step}\ns_sub_u32 s39, s{reg}, {9*step}\ns_add_u32 s38, s38, 1\ns_cmp_eq_u32 s38, 9\ns_cselect_b32 s{reg}, s39, s{reg}"]
    k(f"s_mov_b32 s30, {3456-288}")
    for q in range(9):
        k(f"v_add_u32 v{T0}, {q*64}, v{VL}\nv_mul_u32_u24 v{T1}, 3641, v{T0}\nv_lshrrev_b32 v{T1}, 16, v{T1}")
        k(f"v_lshlrev_b32 v{T0}, 4, v{T0}\nv_mad_u32_u24 v{VD+q}, v{T1}, s30, v{T0}")
    k(f"s_mul_i32 s33, s25, 288\ns_mul_i32 s30, s29, {32*3456}\ns_add_u32 s33, s33, s30\ns_mul_i32 s34, s29, 9216\ns_mul_i32 s30, s38, {64*3456}\ns_add_u32 s33, s33, s30")
    k("s_waitcnt lgkmcnt(0)")
    srd(k, 16, PWQKV, D_ * 1728 * 2)
    srd(k, 20, PWS, WS_SIZE)
    def tail(kk):
        k("v_subrev_u32 v40, 256, v0")
        pf(k, "PF1T", 2, 192, 256, 42, vt=40)
    producer_loop(k, N, R, 9, lambda st, slot: [dma(34, slot * STG + q * 1024, VD + q, 16, 33) for q in range(9)] + adv(33, 64 * 3456), NXT[1], final_barrier=False, tail=tail, first=int(os.environ.get('FIRST1', 2)))
    k(f"{PX_}:")
    for q in range(2):
        k(f"v_lshrrev_b32 v{T0}, 3, v{VL}\nv_add_u32 v{T0}, {8*q}, v{T0}")
        k(f"v_bfe_u32 v{T1}, v{T0}, 1, 3\nv_and_b32 v{T2}, 7, v{VL}\nv_xor_b32 v{T1}, v{T1}, v{T2}\nv_lshlrev_b32 v{T1}, 4, v{T1}")
        k(f"v_mul_u32_u24 v{T0}, 1152, v{T0}\nv_add_u32 v{VD+q}, v{T0}, v{T1}")
    for q in range(2, 8): k(f"v_add_u32 v{VD+q}, {16*1152}, v{VD+q-2}")
    k("s_lshl_b32 s32, s24, 7\ns_lshl_b32 s30, s29, 6\ns_add_u32 s32, s32, s30\ns_mul_i32 s32, s32, 1152")
    k(f"s_lshl_b32 s35, s29, 13\ns_add_u32 s35, s35, {XO}\ns_lshl_b32 s30, s38, 7\ns_add_u32 s32, s32, s30")
    k("s_waitcnt lgkmcnt(0)")
    srd(k, 12, PX, S_ * D_ * 2)
    srd(k, 20, PWS, WS_SIZE)
    producer_loop(k, N, R, 8, lambda st, slot: [dma(35, slot * STG + q * 1024, VD + q, 12, 32) for q in range(8)] + adv(32, 128), NXT[1], final_barrier=False, tail=tail, first=int(os.environ.get('FIRST1', 2)))
    k(f"{PF}:")
    XA, WA, SM, CA = 12, 32, 52, 56
    NT_ = k.lab("NT")
    k(f"s_cmp_ge_u32 s28, 4\ns_cbranch_scc1 {NT_}")
    touch()
    k(f"{NT_}:\ns_sub_u32 s29, s2, 192")
    k(f"v_lshrrev_b32 v{T0}, 4, v0\nv_mul_u32_u24 v{T0}, 1152, v{T0}\nv_lshl_add_u32 v{T0}, v{VI}, 4, v{T0}")
    k(f"v_add_u32 v{T1}, 1024, v{T0}\nv_mov_b32 v{T2}, 0x7ff00000\nv_cmp_gt_u32 vcc, 8, v{VI}\nv_cndmask_b32 v{T1}, v{T2}, v{T1}, vcc")
    k(f"v_lshrrev_b32 v{T2}, 2, v0\nv_mul_u32_u24 v{T2}, 3456, v{T2}\nv_and_b32 v{T3}, 3, v0\nv_lshl_add_u32 v{T2}, v{T3}, 4, v{T2}")
    k(f"s_mul_i32 s30, s29, {32*1152}\ns_lshl_b32 s31, s29, 6\ns_cmp_ge_u32 s29, 54\ns_cselect_b32 s31, 0x7000000, s31")
    k("s_waitcnt lgkmcnt(0)")
    srd(k, 12, PX, S_ * D_ * 2)
    srd(k, 16, PWQKV, D_ * 1728 * 2)
    for q in range(5):
        k(f"buffer_load_dwordx4 {v(XA+4*q,4)}, v{T0 if q < 4 else T1}, s[12:15], s30 offen" + (f" offset:{q*256}" if q < 4 else ""))
    for q in range(5):
        k(f"buffer_load_dwordx4 {v(WA+4*q,4)}, v{T2}, s[16:19], s31 offen\ns_add_u32 s31, s31, {128*3456}")
    srd(k, 20, PWS, WS_SIZE)
    srd(k, 56, PDBG, 256)
    k(f"s_lshl_b32 s32, s29, 13\ns_add_u32 s32, s32, {WS_ST}\nv_lshlrev_b32 v{T3}, 4, v0")
    for r in range(4): k(f"v_mov_b32 v{CA+8+r}, 0")
    k(f"buffer_store_dwordx4 {v(CA+8,4)}, v{T3}, s[20:23], s32 offen{WT}")
    k(f"v_mov_b32 v{SM}, 0\nv_mov_b32 v{SM+1}, 0\nv_mov_b32 v{SM+2}, 0x3f803f80")
    k("s_waitcnt vmcnt(6)\nSTAMP 1")
    for r in range(20): k(f"v_dot2c_f32_bf16 v{SM}, v{XA+r}, v{SM+2}\nv_dot2c_f32_bf16 v{SM+1}, v{XA+r}, v{XA+r}")
    k("s_waitcnt vmcnt(1)")
    for q in range(5):
        for r in range(4):
            p = WA + 4 * q + r
            if q == 0: k(f"v_lshlrev_b32 v{CA+2*r}, 16, v{p}\nv_and_b32 v{CA+2*r+1}, 0xffff0000, v{p}")
            else: k(f"v_lshlrev_b32 v{T0}, 16, v{p}\nv_and_b32 v{T1}, 0xffff0000, v{p}\nv_add_f32 v{CA+2*r}, v{CA+2*r}, v{T0}\nv_add_f32 v{CA+2*r+1}, v{CA+2*r+1}, v{T1}")
    for sh in (8, 4, 2, 1):
        for r in range(2): k(f"v_add_f32_dpp v{SM+r}, v{SM+r}, v{SM+r} row_ror:{sh} row_mask:0xf bank_mask:0xf")
        if sh >= 4:
            for r in range(8): k(f"v_add_f32_dpp v{CA+r}, v{CA+r}, v{CA+r} row_ror:{sh} row_mask:0xf bank_mask:0xf")
    for sw in ("16", "32"):
        for r in range(8): k(f"v_mov_b32 v{XA+r}, v{CA+r}")
        for r in range(8): k(f"v_permlane{sw}_swap_b32 v{CA+r}, v{XA+r}")
        for r in range(8): k(f"v_add_f32 v{CA+r}, v{CA+r}, v{XA+r}")
    k(f"s_lshl_b32 s30, s28, 7\nv_lshlrev_b32 v{T0}, 5, v{VL}\nv_add_u32 v{T0}, s30, v{T0}\ns_mov_b64 exec, 0xf")
    k(f"ds_write_b128 v{T0}, {v(CA,4)}\nds_write_b128 v{T0}, {v(CA+4,4)} offset:16\ns_mov_b64 exec, -1")
    k(f"s_mov_b32 s30, {f32(1.0/576)}\nv_mul_f32 v{SM}, s30, v{SM}\nv_mul_f32 v{SM+1}, s30, v{SM+1}\nv_fma_f32 v{SM+1}, -v{SM}, v{SM}, v{SM+1}")
    def rbf(r): k(f"v_cvt_pk_bf16_f32 v{r}, v{r}, v{r}\nv_and_b32 v{r}, 0xffff0000, v{r}")
    k(f"v_max_f32 v{SM+1}, 0, v{SM+1}")
    rbf(SM); rbf(SM + 1)
    k(f"v_add_f32 v{SM+1}, {f32(1e-5)}, v{SM+1}")
    rbf(SM + 1)
    k(f"v_sqrt_f32 v{SM+1}, v{SM+1}")
    rbf(SM + 1)
    k(f"v_rcp_f32 v{SM+1}, v{SM+1}")
    k(f"s_lshl_b32 s30, s29, 7\ns_add_u32 s30, s30, {WS_XS}\ns_add_u32 s31, s30, 8192\nv_lshrrev_b32 v{T0}, 4, v0\nv_lshlrev_b32 v{T0}, 2, v{T0}")
    k(f"v_cmp_eq_u32 vcc, 0, v{VI}\ns_and_saveexec_b64 s[62:63], vcc")
    k(f"buffer_store_dword v{SM}, v{T0}, s[20:23], s30 offen{WT}\nbuffer_store_dword v{SM+1}, v{T0}, s[20:23], s31 offen{WT}\ns_mov_b64 exec, -1")
    k("s_waitcnt lgkmcnt(0)\ns_barrier")
    NZ = k.lab("NZ"); NZ2 = k.lab("NZ")
    k(f"s_cmp_lg_u32 s28, 0\ns_cbranch_scc1 {NZ}\nv_lshlrev_b32 v{T0}, 2, v{VL}")
    for q in range(8): k(f"ds_read_b32 v{XA+q}, v{T0} offset:{q*128}")
    k(f"s_lshl_b32 s30, s29, 7\ns_add_u32 s30, s30, {WS_CS}\ns_waitcnt lgkmcnt(0)")
    for q in range(1, 8): k(f"v_add_f32 v{XA}, v{XA}, v{XA+q}")
    k(f"s_mov_b32 exec_hi, 0\nbuffer_store_dword v{XA}, v{T0}, s[20:23], s30 offen{WT}\ns_mov_b32 exec_hi, -1\n{NZ}:")
    k(f"v_mov_b32 v{T0}, 0\nv_mov_b32 v{T1}, 1\ns_waitcnt vmcnt(0)\nSTAMP 5\ns_barrier\ns_cmp_lg_u32 s28, 0\ns_cbranch_scc1 {NZ2}")
    k(f"s_mov_b64 exec, 1\nbuffer_atomic_add v{T1}, v{T0}, s[56:59], 0 offen sc1\ns_mov_b64 exec, -1\n{NZ2}:\ns_barrier")
    pf(k, "PF1B", 29, 64, 512, 66)
    k(f"s_branch {NXT[1]}")

def p2(k, ENT, NXT):
    LK8 = 24576; LV = 30720; REC = 1168; SEC = 36 * PS
    VH, VQ = 3, 4
    V16, VV, V8A = 5, 6, 7
    QM, Q8 = 8, 12
    KF, K8F, VF, O = 16, 28, 40, 56
    MX, MX2, TA, TB = 72, 73, 74, 75
    AK, AK8, AV = 76, 77, 78
    VV8, VK8 = 79, 2
    S0 = 80
    k(f"{ENT[1]}:\ns_waitcnt vmcnt(0)\ns_cmp_lg_u32 s28, 7\ns_cbranch_scc1 {ENT[0]}")
    srd(k, 56, PDBG, 256)
    k(f"v_mov_b32 v{TA}, 0\ns_mov_b32 s31, 0")
    poll(k, TA, TB, 1, 56, 31, want=64)
    k(f"{ENT[0]}:")
    k("STAMP 2")
    k("s_lshl_b32 s24, s10, 1\ns_and_b32 s25, s11, 1\ns_add_u32 s24, s24, s25\ns_lshr_b32 s25, s11, 1")
    k(f"v_lshrrev_b32 v{VH}, 5, v{VL}\nv_and_b32 v{VQ}, 31, v{VL}")
    k("s_lshr_b32 s26, s28, 2\ns_and_b32 s27, s28, 3")
    k(f"v_lshlrev_b32 v{V16}, 4, v{VL}")
    k(f"v_mul_u32_u24 v{VV}, {PS}, v{VH}\nv_lshl_add_u32 v{VV}, v{VQ}, 4, v{VV}")
    k(f"s_lshr_b32 s47, s24, 2\ns_and_b32 s31, s24, 3\ns_mul_i32 s34, s47, 9\ns_lshl_b32 s32, s31, 1\ns_add_u32 s44, s32, s34\ns_add_u32 s32, s44, s26\ns_mul_i32 s32, s32, {PS}")
    k(f"s_add_u32 s34, s34, 8\ns_mul_i32 s34, s34, {PS}\ns_mul_i32 s44, s44, {PS}\ns_add_u32 s44, s44, {2*SEC}")
    k("s_lshr_b32 s30, s31, 1\ns_lshl_b32 s30, s30, 9\ns_add_u32 s41, s34, s30")
    k(f"s_and_b32 s30, s31, 1\ns_lshl_b32 s30, s30, 3\nv_lshlrev_b32 v{V8A}, 4, v{VQ}\nv_add_u32 v{V8A}, s30, v{V8A}")
    k(f"s_lshl_b32 s45, s31, 6\ns_add_u32 s45, s45, s34\ns_add_u32 s45, s45, {2*SEC}")
    k(f"v_lshrrev_b32 v{TA}, 2, v{VL}\nv_lshlrev_b32 v{TA}, 8, v{TA}\nv_and_b32 v{TB}, 3, v{VL}\nv_lshl_add_u32 v{VV8}, v{TB}, 4, v{TA}")
    k(f"v_lshlrev_b32 v{VK8}, 4, v{VQ}\nv_lshl_add_u32 v{VK8}, v{VH}, 10, v{VK8}")
    k("s_lshl_b32 s33, s25, 2\ns_mul_i32 s30, s27, 3\ns_add_i32 s35, s33, s30\ns_sub_i32 s35, s35, 8")
    k("s_mul_i32 s31, s26, 12\ns_add_u32 s31, s31, s30\ns_lshl_b32 s46, s31, 10")
    k(f"s_lshl_b32 s30, s28, 1\ns_add_i32 s30, s30, s33\ns_sub_i32 s30, s30, 8\ns_max_i32 s30, s30, 0\ns_lshl_b32 s30, s30, 10\ns_add_u32 s33, s33, s27")
    k(f"s_lshl_b32 s39, s33, 10\ns_add_u32 s40, s39, s41\ns_add_u32 s39, s39, s32\ns_add_u32 s41, s41, s30\ns_add_u32 s41, s41, {SEC}\ns_add_u32 s38, s32, {SEC}")
    k(f"s_lshl_b32 s42, s28, 10\ns_add_u32 s42, s42, {LK8}")
    k(f"s_mul_i32 s43, s28, 3\ns_lshl_b32 s36, s25, 3\ns_add_i32 s36, s36, s43\ns_sub_i32 s36, s36, 16\ns_mul_i32 s43, s43, {REC}\ns_add_u32 s43, s43, {LV}")
    NEG = f32(-1e30)
    k(f"v_lshlrev_b32 v{TA}, 2, v{VH}\nv_sub_u32 v{TA}, v{VQ}, v{TA}\nv_mov_b32 v{TB}, {NEG}")
    for b in range(4):
        for r in range(4): k(f"v_cmp_gt_i32 s[{86+2*r}:{87+2*r}], {8*b+r}, v{TA}")
        for r in range(4): k(f"v_cndmask_b32 v{S0+4*b+r}, v{TB}, 0, s[{86+2*r}:{87+2*r}]")
        for r in range(4): k(f"v_cndmask_b32 v{S0+128+4*b+r}, 0, v{TB}, s[{86+2*r}:{87+2*r}]")
    k(f"s_mul_i32 s30, s26, 12\ns_add_u32 s30, s30, s27\ns_lshl_b32 s30, s30, 10\nv_add_u32 v{AK}, s30, v{V16}")
    k(f"s_lshl_b32 s30, s27, 9\ns_add_u32 s30, s30, {LK8}\nv_add_u32 v{AK8}, s30, v{V8A}")
    for q in range(3):
        k(f"v_mov_b32 v{K8F+q*4+2}, 0\nv_mov_b32 v{K8F+q*4+3}, 0")
    k(f"v_mov_b32 v{Q8+2}, 0\nv_mov_b32 v{Q8+3}, 0")
    k(f"s_lshl_b32 s30, s26, 9\nv_lshlrev_b32 v{AV}, 8, v{VH}\nv_lshl_add_u32 v{AV}, v{VQ}, 4, v{AV}\nv_add_u32 v{AV}, s30, v{AV}")
    k(f"s_lshl_b32 s30, s26, 5\ns_add_u32 s30, s30, {1024-256}\nv_lshlrev_b32 v{TA}, 6, v{VH}\nv_lshl_add_u32 v{TA}, v{VQ}, 4, v{TA}\nv_add_u32 v{TA}, s30, v{TA}")
    k(f"v_cmp_lt_u32 vcc, 15, v{VQ}\nv_cmp_lt_u32 s[86:87], 17, v{VQ}\nv_mov_b32 v{MX2}, 1152\nv_cndmask_b32 v{AV}, v{AV}, v{TA}, vcc\nv_cndmask_b32 v{AV}, v{AV}, v{MX2}, s[86:87]")
    k(f"s_mul_i32 s30, s27, {2*REC}\ns_add_u32 s30, s30, {LV}\nv_add_u32 v{AV}, s30, v{AV}")
    for q in range(3):
        k(f"s_add_i32 s30, s35, {q}\ns_max_i32 s30, s30, 0\ns_lshl_b32 s30, s30, 10\ns_add_u32 s{86+q}, s30, s38")
        k(f"s_add_i32 s30, s36, {q}\ns_max_i32 s30, s30, 0\ns_lshl_b32 s30, s30, 9\ns_add_u32 s{89+q}, s30, s44\ns_add_u32 s{92+q}, s30, s45")
    SO = k.lab("SONE")
    k(f"s_cmp_lg_u32 s28, 7\ns_cbranch_scc1 {SO}")
    if 'nogate' not in XM:
        NG = k.lab("NG")
        k(f"s_cmp_ge_u32 s2, 192\ns_cbranch_scc1 {NG}")
        wait_local(k, TA, LCNT)
        k(f"{NG}:")
    k(f"s_lshl_b32 s30, s47, 13\ns_lshl_b32 s31, s25, 9\ns_add_u32 s30, s30, s31\ns_add_u32 s30, s30, {F1-1024}")
    k(f"s_mov_b64 exec, -1\nv_lshlrev_b32 v{TA}, 7, v{VL}\ns_movk_i32 s31, 0x760\ns_cmp_eq_u32 s25, 0\ns_cselect_b32 s31, 0x700, s31\ns_cmp_ge_u32 s25, 2\ns_cselect_b32 exec_lo, 0x766, s31\ns_mov_b32 exec_hi, 0")
    poll(k, TA, MX, 1, 20, 30)
    k(f"s_mov_b64 exec, -1\n{SO}:\ns_barrier")
    k("STAMP 3")
    SK = k.lab("SK8")
    k(f"s_mov_b32 m0, s42\ns_cmp_ge_u32 s28, 6\ns_cbranch_scc1 {SK}")
    k(f"buffer_load_dwordx4 v{VK8}, s[20:23], s41 offen{SC} lds\n{SK}:")
    for q in range(3): k(dma(46, q * 1024, V16, 20, 86 + q, SC))
    k(f"buffer_load_dwordx4 {v(QM,4)}, v{V16}, s[20:23], s39 offen{SC}")
    k(f"buffer_load_dwordx2 {v(Q8,2)}, v{V8A}, s[20:23], s40 offen{SC}")
    for q in range(3):
        k(dma(43, q * REC, VV, 20, 89 + q, SC))
        k(f"s_add_u32 m0, s43, {q*REC+1024}\ns_mov_b64 exec, 0xff\nbuffer_load_dwordx4 v{VV8}, s[20:23], s{92+q} offen{SC} lds\ns_mov_b64 exec, -1")
    SO = k.lab("SONE")
    k(f"s_cmp_lg_u32 s28, 7\ns_cbranch_scc1 {SO}")
    for r in range(4): k(f"v_mov_b32 v{KF+r}, 0x3f803f80")
    k(f"v_mul_u32_u24 v{TA}, {REC}, v{VL}\ns_mov_b64 exec, 0xffffff")
    k(f"ds_write_b128 v{TA}, {v(KF,4)} offset:{LV+1152}")
    k(f"s_mov_b64 exec, -1\n{SO}:")
    srd(k, 48, PWO, D_ * D_ * 2)
    k(f"v_mov_b32 v{MX}, v{TB}\ns_sub_i32 s35, 8, s33")
    k("s_cmp_eq_u32 s26, 0\ns_cselect_b32 s38, -1, 0\ns_cselect_b32 s40, 0, -1\ns_mov_b32 s39, 0\ns_mov_b32 s41, 0")
    k("s_waitcnt vmcnt(6) lgkmcnt(0)")
    k(f"v_cndmask_b32 v{Q8}, 0, v{Q8}, s[38:39]\nv_cndmask_b32 v{Q8+1}, 0, v{Q8+1}, s[40:41]")
    k("s_barrier")
    def kread(j):
        return [f"ds_read_b128 {v(KF+(j%3)*4,4)}, v{AK} offset:{j*1024}", f"ds_read_b64 {v(K8F+(j%3)*4,2)}, v{AK8} offset:{j*512}"]
    def mx(j):
        return [f"v_max3_f32 v{MX}, v{MX}, v{S0+j*16+2*r}, v{S0+j*16+2*r+1}" for r in range(8)]
    if os.environ.get("P2S"): k("STAMP 12")
    if 'prio' in XM: k("s_setprio 0")
    for t in kread(0) + kread(1): k(t)
    inv = []
    for j in range(9):
        if j + 2 < 9:
            for t in kread(j + 2): k(t)
        sj = v(S0 + j * 16, 16)
        if j < 8:
            li, lb = k.lab("INV"), k.lab("BK")
            inv.append((j, li, lb))
            k(f"s_cmp_gt_i32 s35, {j}\ns_cbranch_scc1 {li}")
        k(f"s_waitcnt lgkmcnt({min(2, 8-j)*2})")
        k(f"v_mfma_f32_32x32x16_bf16 {sj}, {v(KF+(j%3)*4,4)}, {v(QM,4)}, {sj if j in (0, 8) else 0}")
        k(f"v_mfma_f32_32x32x16_bf16 {sj}, {v(K8F+(j%3)*4,4)}, {v(Q8,4)}, {sj}")
        if j < 8: k(f"{lb}:")
        if j >= 2:
            for t in mx(j - 2): k(t)
    for t in mx(7): k(t)
    k("s_waitcnt vmcnt(0)\ns_barrier")
    def vread(t): return f"ds_read_b128 {v(VF+(t%4)*4,4)}, v{AV} offset:{t*REC}"
    if os.environ.get("P2S"): k("STAMP 13")
    k(vread(0)); k(vread(1))
    side = []
    class Rec:
        def __init__(self): self.L = []
        def __call__(self, t): self.L.append(t)
        lab = staticmethod(k.lab)
    r = Rec()
    r(f"v_lshlrev_b32 v224, 7, v0\ns_mul_i32 s30, s11, {162*128}\nv_cmp_gt_u32 vcc, 162, v0\ns_and_saveexec_b64 s[44:45], vcc")
    r(f"buffer_load_dword v{DUMMY}, v224, s[48:51], s30 offen\ns_mov_b64 exec, s[44:45]")
    side.append("\n".join(r.L))
    r = Rec(); pf(r, "PF2", 2, 256, 512, 226); side.append("\n".join(r.L))
    r = Rec()
    XS = k.lab("XS")
    r(f"s_cmp_ge_u32 s2, 192\ns_cbranch_scc1 {XS}\ns_cmp_lt_u32 s28, 4\ns_cbranch_scc1 {XS}")
    srd(r, 12, PX, S_ * D_ * 2)
    r("s_lshl_b32 s30, s10, 2\ns_and_b32 s31, s11, 3\ns_add_u32 s30, s30, s31\ns_lshl_b32 s30, s30, 2\ns_and_b32 s31, s28, 3\ns_add_u32 s30, s30, s31\ns_mul_i32 s30, s30, 18432")
    r(f"s_mul_i32 s44, s31, 3072\ns_add_u32 s44, s44, {LX}\ns_lshr_b32 s31, s11, 2\ns_mul_i32 s31, s31, 192\ns_add_u32 s43, s30, s31\ns_movk_i32 s30, 960")
    for q in range(3):
        r(f"v_add_u32 v224, {q*64}, v{VL}\nv_mul_u32_u24 v225, 5462, v224\nv_lshrrev_b32 v225, 16, v225\nv_lshlrev_b32 v224, 4, v224\nv_mad_u32_u24 v224, v225, s30, v224")
        r(dma(44, q * 1024, 224, 12, 43))
    r(f"{XS}:")
    side.append("\n".join(r.L))
    for t in mx(8): k(t)
    k(f"v_mov_b32 v{MX2}, v{MX}\nv_permlane32_swap_b32 v{MX}, v{MX2}\nv_max_f32 v{MX}, v{MX}, v{MX2}")
    def soft(j):
        b = S0 + j * 16
        out = [f"v_sub_f32 v{b+r}, v{b+r}, v{MX}" for r in range(16)]
        out += [f"v_exp_f32 v{b+r}, v{b+r}" for r in range(16)]
        if 'trunc' in XM: out += [f"v_perm_b32 v{b+r}, v{b+2*r+1}, v{b+2*r}, s86" for r in range(8)]
        else: out += [f"v_cvt_pk_bf16_f32 v{b+r}, v{b+2*r}, v{b+2*r+1}" for r in range(8)]
        return out
    k("s_mov_b32 s86, 0x07060302")
    def pv(j):
        b = S0 + j * 16
        return [f"v_mfma_f32_32x32x16_bf16 {v(O,16)}, {v(VF+((2*j+s_)%4)*4,4)}, {v(b+4*s_,4)}, {v(O,16) if (j or s_) else 0}" for s_ in range(2)]
    if os.environ.get("P2S"): k("STAMP 14")
    for t in soft(0): k(t)
    for j in range(9):
        nxt = soft(j + 1) if j < 8 else []
        if j < 8:
            k(vread(2 * j + 2)); k(vread(2 * j + 3))
        p = pv(j)
        for t in nxt[:4]: k(t)
        k(f"s_waitcnt lgkmcnt({2 if j < 8 else 0})")
        k(p[0])
        for t in nxt[4:20]: k(t)
        if j < len(side) and side[j]: k(side[j])
        k(p[1])
        for t in nxt[20:]: k(t)
    k(f"s_lshl_b32 s34, s24, 1\ns_add_u32 s34, s34, s26\ns_mul_i32 s30, s34, {PS}\ns_lshl_b32 s31, s33, 10\ns_add_u32 s30, s30, s31\ns_add_u32 s30, s30, {WS_OM}")
    k(f"s_lshl_b32 s31, s34, 13\ns_lshl_b32 s34, s33, 7\ns_add_u32 s31, s31, s34\ns_add_u32 s31, s31, {WS_O8}\nv_lshlrev_b32 v{AK8}, 2, v{VQ}")
    if os.environ.get("P2S"): k("STAMP 15")
    if 'prio' in XM: k("s_setprio 0")
    k(f"v_rcp_f32 v{MX}, v{O+10}")
    for r in range(10): k(f"v_mul_f32 v{O+r}, v{O+r}, v{MX}")
    for r in range(5): k(f"v_cvt_pk_bf16_f32 v{KF+r}, v{O+2*r}, v{O+2*r+1}")
    k(f"buffer_store_dwordx4 {v(KF,4)}, v{V16}, s[20:23], s30 offen{WT}")
    k("s_mov_b32 exec_hi, 0")
    k(f"buffer_store_dword v{KF+4}, v{AK8}, s[20:23], s31 offen{WT}")
    k("s_mov_b32 exec_hi, -1")
    k(f"s_lshl_b32 s30, s25, 11\ns_lshl_b32 s31, s24, 7\ns_add_u32 s30, s30, s31\ns_add_u32 s30, s30, {F2}\nv_mov_b32 v{TA}, 0\nv_mov_b32 v{TB}, 1")
    k(f"s_waitcnt vmcnt(0)\ns_barrier\ns_cmp_lg_u32 s28, 6\ns_cbranch_scc1 {NXT}")
    set_flag(k, TA, TB, 20, 30)
    k(f"s_branch {NXT}")
    for j, li, lb in inv:
        k(f"{li}:")
        for r in range(16): k(f"v_mov_b32 v{S0+j*16+r}, v{TB}")
        k(f"s_branch {lb}")

def p3(k, ENT, NXT):
    R = 7; WS_ = 12288; WB = 73728; N = 9
    LAB = WB + R * WS_
    PF = k.lab("P3PF"); PROD = k.lab("P3PROD"); PO = k.lab("P3PO")
    k(f"{ENT}:\nSTAMP 4")
    k(f"s_cmp_ge_u32 s2, 192\ns_cbranch_scc1 {PF}")
    k("s_lshl_b32 s24, s10, 2\ns_and_b32 s25, s11, 3\ns_add_u32 s24, s24, s25\ns_lshr_b32 s25, s11, 2")
    ids16(k)
    V16 = 9
    k(f"v_lshlrev_b32 v{V16}, 4, v{VL}")
    k(f"s_cmp_ge_u32 s28, 4\ns_cbranch_scc1 {PROD}")
    k("s_lshr_b32 s26, s28, 1\ns_and_b32 s27, s28, 1")
    VTR, VAO, VAE = 10, 16, 18
    IDN, XR, ACC, AF, BF = 24, 28, 52, 76, 100
    k(f"v_and_b32 v{T1}, 1, v{VG}")
    k(f"v_bfe_u32 v{T0}, v{VL}, 2, 2\nv_lshl_add_u32 v{T0}, v{VG}, 2, v{T0}\nv_mul_u32_u24 v{T0}, 192, v{T0}")
    k(f"v_and_b32 v{T2}, 3, v{VL}\nv_lshl_add_u32 v{T0}, v{T2}, 3, v{T0}\nv_add_u32 v{T0}, {WB}, v{T0}")
    k("s_mul_i32 s30, s27, 3")
    for dt in range(3):
        k(f"s_add_u32 s31, s30, {dt}\nv_xor_b32 v{T2}, s31, v{T1}\nv_lshl_add_u32 v{VTR+dt}, v{T2}, 5, v{T0}\nv_add_u32 v{VTR+3+dt}, {4*WS_}, v{VTR+dt}")
    k(f"s_lshl_b32 s30, s26, 11\nv_add_u32 v{VAO}, s30, v{V16}\nv_add_u32 v{VAO+1}, 32768, v{VAO}")
    k(f"v_lshlrev_b32 v{T0}, 8, v{VG}\nv_lshl_add_u32 v{T0}, v{VI}, 2, v{T0}\nv_add_u32 v{VAE}, s30, v{T0}\nv_add_u32 v{VAE}, 65536, v{VAE}")
    k(f"v_lshlrev_b32 v{T0}, 3, v{VG}\nv_sub_u32 v{T0}, v{VI}, v{T0}\nv_mov_b32 v{T1}, 0x3f80\nv_mov_b32 v{T2}, 0x3f800000")
    for j2 in range(4):
        k(f"v_cmp_eq_u32 vcc, {2*j2}, v{T0}\nv_cmp_eq_u32 s[30:31], {2*j2+1}, v{T0}\nv_cndmask_b32 v{IDN+j2}, 0, v{T1}, vcc")
        k(f"v_cndmask_b32 v{IDN+j2}, v{IDN+j2}, v{T2}, s[30:31]")
    def reads(n):
        st, ks, rs = n >> 1, n & 1, n % 3
        slot = st % R
        out = []
        for tt in range(2):
            if st < 8: out.append(f"ds_read_b128 {v(AF+rs*8+tt*4,4)}, v{VAO+(st>>2)} offset:{(st&3)*8192+ks*4096+tt*1024}")
            else: out += [f"ds_read_b32 v{AF+rs*8+tt*4+q}, v{VAE} offset:{ks*4096+tt*1024+q*64}" for q in range(4)]
        for dt in range(3):
            for hf in range(2):
                out.append(f"ds_read_b64_tr_b16 {v(BF+rs*12+dt*4+hf*2,2)}, v{VTR+3*(slot//4)+dt} offset:{(slot%4)*WS_+ks*6144+hf*3072}")
        return out
    def mf(n):
        rs = n % 3
        return [f"v_mfma_f32_16x16x32_bf16 {v(ACC+(tt*3+dt)*4,4)}, {v(AF+rs*8+tt*4,4)}, {v(BF+rs*12+dt*4,4)}, {v(ACC+(tt*3+dt)*4,4)}"
                for tt in range(2) for dt in range(3)]
    k(f"s_mul_i32 s30, s26, 6144\ns_mul_i32 s31, s27, 96\ns_add_u32 s30, s30, s31\ns_add_u32 s30, s30, {LX}\nv_mul_u32_u24 v{T0}, 192, v{VI}\nv_and_b32 v{T1}, 16, v{VL}\nv_add3_u32 v{T0}, v{T0}, v{T1}, s30")
    for q in range(6): k(f"ds_read_b128 {v(XR+q*4,4)}, v{T0} offset:{(q//3)*3072+(q%3)*32}")
    k("s_waitcnt lgkmcnt(0)")
    for q in range(6):
        k(f"v_mfma_f32_16x16x32_bf16 {v(ACC+q*4,4)}, {v(XR+q*4,4)}, {v(IDN,4)}, 0")
    k("s_barrier")
    if os.environ.get("P3S"): k("STAMP 12")
    for t in reads(0) + reads(1): k(t)
    for n in range(18):
        if n in (2, 16): k("s_waitcnt lgkmcnt(0)\ns_barrier")
        elif n in (8, 12): k(f"s_waitcnt lgkmcnt({len(reads(n + 1))})\ns_barrier")
        elif n < 16: k(f"s_waitcnt lgkmcnt({len(reads(n + 1))})")
        if os.environ.get("P3S") and n in (8, 12): k(f"STAMP {13 + (n == 12)}")
        for t in interleave(mf(n), reads(n + 2) if n + 2 < 18 else [], 0, 2): k(t)
    k("STAMP 5")
    PK = XR; ST = AF
    for dt in range(3):
        for tt in range(2):
            ac = ACC + (tt * 3 + dt) * 4
            k(f"v_cvt_pk_bf16_f32 v{PK+dt*4+tt*2}, v{ac}, v{ac+1}\nv_cvt_pk_bf16_f32 v{PK+dt*4+tt*2+1}, v{ac+2}, v{ac+3}")
    for dt in range(3):
        for tt in range(2):
            for h2 in range(2):
                p = PK + dt * 4 + tt * 2 + h2
                x0 = ACC + (tt * 3 + dt) * 4 + 2 * h2
                k(f"v_lshlrev_b32 v{x0}, 16, v{p}\nv_and_b32 v{x0+1}, 0xffff0000, v{p}")
                sm, sq_ = ST + tt * 4 + 2 * h2, ST + 8 + tt * 4 + 2 * h2
                if dt == 0: k(f"v_pk_mul_f32 {v(sq_,2)}, {v(x0,2)}, {v(x0,2)}")
                else: k(f"v_pk_fma_f32 {v(sq_,2)}, {v(x0,2)}, {v(x0,2)}, {v(sq_,2)}")
                if dt == 1: k(f"v_pk_add_f32 {v(sm,2)}, {v(x0-4,2)}, {v(x0,2)}")
                if dt == 2: k(f"v_pk_add_f32 {v(sm,2)}, {v(sm,2)}, {v(x0,2)}")
    for sh in (8, 4, 2, 1):
        for r in range(16):
            k(f"v_add_f32_dpp v{ST+r}, v{ST+r}, v{ST+r} row_ror:{sh} row_mask:0xf bank_mask:0xf")
    SG = BF + 12
    for r in range(8): k(f"v_mov_b32 v{SG+2*r}, v{ST+r}\nv_or_b32 v{SG+2*r+1}, 0x80000000, v{ST+8+r}")
    k(f"s_lshl_b32 s31, s24, 1\ns_add_u32 s31, s31, s26")
    k(f"s_lshl_b32 s33, s31, 8\ns_add_u32 s33, s33, {WS_ST}")
    k(f"s_lshl_b32 s30, s25, 1\ns_add_u32 s30, s30, s27\ns_lshl_b32 s30, s30, 14\ns_add_u32 s30, s30, s33")
    k(f"v_cmp_eq_u32 s[38:39], 1, v{VI}\nv_cmp_eq_u32 s[40:41], 2, v{VI}\nv_cmp_eq_u32 s[42:43], 3, v{VI}\nv_cmp_gt_u32 vcc, 4, v{VI}")
    k(f"v_lshrrev_b32 v{T0}, 1, v{VI}\nv_lshlrev_b32 v{T0}, 7, v{T0}\nv_lshl_add_u32 v{T0}, v{VG}, 5, v{T0}\nv_and_b32 v{T1}, 1, v{VI}\nv_lshl_add_u32 v{T0}, v{T1}, 4, v{T0}")
    for q in range(1, 4):
        for r in range(4): k(f"v_cndmask_b32 v{SG+r}, v{SG+r}, v{SG+4*q+r}, s[{36+2*q}:{37+2*q}]")
    k(f"s_and_saveexec_b64 s[38:39], vcc\nbuffer_store_dwordx4 {v(SG,4)}, v{T0}, s[20:23], s30 offen{WT}\ns_mov_b64 exec, s[38:39]")
    VH = VTR
    k(f"v_lshlrev_b32 v{VH}, 4, v{VL}")
    k(f"s_mul_i32 s30, s25, 6\ns_mul_i32 s32, s27, 3\ns_add_u32 s30, s30, s32\ns_mul_i32 s30, s30, {PS}")
    k(f"s_lshl_b32 s32, s31, 10\ns_add_u32 s30, s30, s32\ns_add_u32 s32, s30, {WS_HN}\ns_add_u32 s30, s30, {WS_H}")
    k("s_mov_b32 s35, s30")
    VS = VTR + 1
    P = BF
    k(f"v_lshrrev_b32 v{T0}, 5, v{VL}\nv_mul_u32_u24 v{VS}, {6*16384}, v{T0}\nv_and_b32 v{T0}, 31, v{VL}\nv_lshl_add_u32 v{VS}, v{T0}, 3, v{VS}")
    for p in range(6): k(f"s_add_u32 s{40+p}, s33, {p*16384}")
    POLL = k.lab("POLL"); GO = k.lab("GO")
    k(f"s_mov_b32 s37, 0x40000" + ("" if 'nosw' in XM else "\ns_waitcnt vmcnt(0)") + f"\n{POLL}:")
    for p in range(6):
        k(f"buffer_load_dwordx2 {v(P+2*p,2)}, v{VS}, s[20:23], s{40+p} offen sc0 sc1")
    k("s_waitcnt vmcnt(0)")
    k(f"v_and_b32 v{T1}, v{P+1}, v{P+3}\nv_and_b32 v{T2}, v{P+5}, v{P+7}\nv_and_b32 v{T3}, v{P+9}, v{P+11}\nv_and_b32 v{T1}, v{T1}, v{T2}\nv_and_b32 v{T1}, v{T1}, v{T3}")
    k(f"v_cmp_le_i32 vcc, 0, v{T1}\ns_sub_u32 s37, s37, 1\ns_cmp_eq_u32 s37, 0\ns_cbranch_scc1 {GO}\ns_cbranch_vccz {GO}\ns_sleep 1\ns_branch {POLL}\n{GO}:")
    if os.environ.get("P3S"): k("STAMP 15")
    for dt in range(3):
        k(f"buffer_store_dwordx4 {v(PK+dt*4,4)}, v{VH}, s[20:23], s35 offen{WT}\ns_add_u32 s35, s35, {PS}")
    for p in range(1, 6):
        k(f"v_add_f32 v{P}, v{P}, v{P+2*p}\nv_add_f32 v{P+1}, v{P+1}, v{P+2*p+1}")
    k(f"v_mov_b32 v{P+2}, v{P}\nv_mov_b32 v{P+3}, v{P+1}")
    k(f"v_permlane32_swap_b32 v{P}, v{P+2}\nv_permlane32_swap_b32 v{P+1}, v{P+3}")
    k(f"v_add_f32 v{P}, v{P}, v{P+2}\nv_add_f32 v{P+1}, v{P+1}, v{P+3}")
    k(f"s_mov_b32 s34, {f32(1.0/576)}")
    mn, sq = P, P + 1
    k(f"v_mul_f32 v{mn}, s34, v{mn}\nv_mul_f32 v{sq}, s34, -v{sq}\nv_fma_f32 v{sq}, -v{mn}, v{mn}, v{sq}\nv_max_f32 v{sq}, 0, v{sq}")
    k(f"v_add_f32 v{P+2}, {f32(1e-5)}, v{sq}\nv_rsq_f32 v{P+2}, v{P+2}")
    k(f"v_mul_f32 v{sq}, v{sq}, v{P+2}\nv_mul_f32 v{sq}, v{sq}, v{P+2}\nv_add_f32 v{sq}, {f32(1e-5)}, v{sq}\nv_rsq_f32 v{sq}, v{sq}")
    k(f"v_mul_f32 v{P+2}, v{P+2}, v{sq}\nv_mul_f32 v{P+3}, -v{mn}, v{P+2}")
    k(f"s_lshl_b32 s33, s28, 8\ns_add_u32 s33, s33, {LAB}\nv_lshlrev_b32 v{T0}, 3, v{T0}\nv_add_u32 v{T0}, s33, v{T0}")
    k(f"ds_write_b64 v{T0}, {v(P+2,2)}")
    k(f"v_lshlrev_b32 v{T0}, 5, v{VG}\nv_add_u32 v{T0}, s33, v{T0}\ns_waitcnt lgkmcnt(0)")
    AB = ST
    for q in range(4):
        k(f"ds_read_b128 {v(AB+4*q,4)}, v{T0} offset:{(q>>1)*128+(q&1)*16}")
    k(f"s_lshl_b32 s30, s25, 12\ns_lshl_b32 s31, s24, 7\ns_add_u32 s30, s30, s31\ns_add_u32 s30, s30, {F3}\nv_mov_b32 v{T1}, 0\nv_mov_b32 v{T2}, 1")
    k("s_waitcnt lgkmcnt(0)")
    for dt in range(3):
        for tt in range(2):
            x0 = ACC + (tt * 3 + dt) * 4
            for r in range(4): k(f"v_fma_f32 v{x0+r}, v{x0+r}, v{AB+tt*8+2*r}, v{AB+tt*8+2*r+1}")
            k(f"v_cvt_pk_bf16_f32 v{PK+12+dt*4+tt*2}, v{x0}, v{x0+1}\nv_cvt_pk_bf16_f32 v{PK+12+dt*4+tt*2+1}, v{x0+2}, v{x0+3}")
        k(f"buffer_store_dwordx4 {v(PK+12+dt*4,4)}, v{VH}, s[20:23], s32 offen{WT}\ns_add_u32 s32, s32, {PS}")
    k("s_waitcnt vmcnt(0)")
    last_wave_flag(k, T1, T2, T3, LCNT + 4, 20, 30)
    k(f"s_branch {NXT}")
    k(f"{PROD}:\ns_and_b32 s29, s28, 1\ns_cmp_ge_u32 s28, 6\ns_cbranch_scc1 {PO}")
    VWD, VWE = 10, 16
    for q in range(6):
        k(f"v_add_u32 v{T0}, {q*64}, v{VL}")
        k(f"v_mul_u32_u24 v{T1}, 5462, v{T0}\nv_lshrrev_b32 v{T1}, 16, v{T1}")
        k(f"v_mul_u32_u24 v{T2}, 12, v{T1}\nv_sub_u32 v{T0}, v{T0}, v{T2}")
        k(f"v_bfe_u32 v{T2}, v{T1}, 2, 1\nv_lshlrev_b32 v{T2}, 1, v{T2}\nv_xor_b32 v{T0}, v{T0}, v{T2}\nv_lshlrev_b32 v{VWE+q}, 4, v{T0}")
        k(f"v_and_b32 v{T2}, 7, v{T1}")
        k(f"v_bfe_u32 v{T3}, v{T1}, 3, 1\nv_mad_u32_u24 v{T2}, v{T3}, 20, v{T2}")
        k(f"v_bfe_u32 v{T3}, v{T1}, 4, 1\nv_lshl_add_u32 v{T2}, v{T3}, 3, v{T2}")
        k(f"v_mul_u32_u24 v{T2}, 1152, v{T2}\nv_add_u32 v{VWD+q}, v{T2}, v{VWE+q}")
    k(f"s_mul_i32 s33, s25, 192\ns_mul_i32 s30, s29, {8*36*1152}\ns_add_u32 s39, s33, s30\ns_mul_i32 s30, s29, {36*1152}\ns_add_u32 s33, s33, s30")
    k(f"s_mul_i32 s35, s29, 6144\ns_add_u32 s35, s35, {WB}")
    srd(k, 16, PWO, D_ * D_ * 2)
    def issue_w(st):
        for q in range(6): k(dma(35, (st % R) * WS_ + q * 1024, (VWD if st < 8 else VWE) + q, 16, 33 if st < 8 else 39))
        k(f"s_add_u32 s33, s33, {72*1152}")
    for st in range(7): issue_w(st)
    for q in range(6):
        k(f"v_add_u32 v{T0}, {q*64}, v{VL}\nv_mul_u32_u24 v{T1}, 5462, v{T0}\nv_lshrrev_b32 v{T1}, 16, v{T1}\n"
          f"v_bfe_u32 v{T2}, v{T1}, 2, 2\nv_lshlrev_b32 v{T2}, 1, v{T2}\nv_bfe_u32 v{T3}, v{T1}, 4, 1\nv_add_u32 v{T2}, v{T2}, v{T3}\nv_mul_u32_u24 v{T2}, 36, v{T2}\n"
          f"v_and_b32 v{T3}, 3, v{T1}\nv_add3_u32 v{T2}, v{T2}, v{T3}, 16\nv_mul_u32_u24 v{T2}, 1152, v{T2}\nv_add_u32 v{VWE+q}, v{T2}, v{VWE+q}")
    k("s_waitcnt vmcnt(0)\ns_barrier\ns_barrier")
    for st in range(7, 9): issue_w(st)
    k(f"s_barrier\ns_waitcnt vmcnt(0)\ns_barrier\ns_barrier\ns_branch {NXT}")
    k(f"{PO}:")
    VO = 10
    k(f"v_lshrrev_b32 v{T0}, 1, v{VG}\nv_mul_u32_u24 v{T0}, {PS}, v{T0}\nv_and_b32 v{T1}, 1, v{VG}\nv_lshl_add_u32 v{T0}, v{T1}, 9, v{T0}\nv_lshl_add_u32 v{T0}, v{VI}, 4, v{T0}")
    k(f"v_lshrrev_b32 v{T1}, 2, v{VL}\nv_lshlrev_b32 v{T1}, 13, v{T1}\nv_and_b32 v{T2}, 3, v{VL}\nv_lshl_add_u32 v{T1}, v{T2}, 4, v{T1}")
    for q in range(4): k(f"v_add_u32 v{VO+q}, {(q>>1)*1024+(q&1)*256}, v{T0}\nv_add_u32 v{VO+4+q}, {q*64}, v{T1}")
    k(f"s_lshl_b32 s32, s24, 11\ns_mul_i32 s30, s29, {2*PS}\ns_add_u32 s32, s32, s30\ns_add_u32 s32, s32, {WS_OM}\ns_lshl_b32 s30, s29, 17")
    k(f"s_lshl_b32 s38, s24, 8\ns_add_u32 s38, s38, s30\ns_add_u32 s38, s38, {WS_O8}\ns_lshl_b32 s34, s29, 12")
    k(f"s_lshr_b32 s30, s24, 1\ns_lshl_b32 s30, s30, 11\ns_add_u32 s30, s30, {F2}\nv_lshlrev_b32 v{T0}, 7, v{VL}")
    W7, WD = k.lab("W7"), k.lab("WD")
    k(f"s_cmp_eq_u32 s28, 7\ns_cbranch_scc1 {W7}\ns_waitcnt vmcnt(0)\ns_mov_b64 exec, 0xffff")
    poll(k, T0, T1, 1, 20, 30)
    k("s_mov_b64 exec, -1")
    lds_signal(k, T0, LCNT + 20)
    k(f"s_branch {WD}\n{W7}:")
    wait_local(k, T0, LCNT + 20, n=1)
    k(f"{WD}:\nSTAMP 5")
    def issue_o(st):
        for q in range(4): k(dma(34, st * 8192 + q * 1024, VO + q + (4 if st == 8 else 0), 20, 32 if st < 8 else 38, SC))
        k(f"s_add_u32 s32, s32, {4*PS}")
    for st in range(5): issue_o(st)
    k("s_waitcnt vmcnt(12)\ns_barrier")
    for st in range(5, 9): issue_o(st)
    k(f"s_waitcnt vmcnt(16)\ns_barrier\ns_waitcnt vmcnt(8)\ns_barrier\ns_waitcnt vmcnt(0)\ns_barrier\ns_barrier\ns_branch {NXT}")
    k(f"{PF}:\ns_sub_u32 s29, s2, 192")
    if 'early3' in XM:
        NE = k.lab("NE")
        k(f"s_cmp_lt_u32 s11, 27\ns_cbranch_scc1 {NE}")
        w1slow(k)
        k(f"{NE}:")
    pf(k, "PF3", 29, 64, 512, 10)
    r1 = int(os.environ.get("L2W1", 0))
    if r1:
        k("s_sub_u32 s29, s11, 24")
        w1_rows(k, 29, r1 // 8, 0, 0)
    k(f"s_branch {NXT}")

def p4(k, ENT, NXT):
    STG = 28672; R = 4; N = 32
    PROD = k.lab("P4PROD"); PF = k.lab("P4PF"); PA = k.lab("P4PA")
    k(f"{ENT}:\nSTAMP 6")
    k(f"s_cmp_ge_u32 s11, 27\ns_cbranch_scc1 {PF}")
    k("s_mul_i32 s24, s11, 10923\ns_lshr_b32 s24, s24, 16\ns_mul_i32 s25, s24, 6\ns_sub_u32 s25, s11, s25")
    k("s_and_b32 s29, s10, 1\ns_mul_i32 s30, s29, 5\ns_add_u32 s24, s24, s30")
    k("s_mul_i32 s30, s29, 3\ns_add_u32 s30, s30, s25")
    k("s_cmp_ge_u32 s11, 24\ns_cselect_b32 s24, 4, s24\ns_cselect_b32 s25, s30, s25\ns_mov_b32 s47, s24")
    k("s_lshr_b32 s30, s10, 1\ns_mul_i32 s30, s30, 9\ns_add_u32 s24, s24, s30")
    ids16(k)
    k(f"s_cmp_ge_u32 s28, 4\ns_cbranch_scc1 {PROD}")
    k("s_lshr_b32 s26, s28, 1\ns_and_b32 s27, s28, 1")
    VTR, VHR, B1, ACC, WF, HF = 12, 20, 26, 36, 84, 116
    srd(k, 16, PB1, F_ * 2)
    k(f"v_lshlrev_b32 v{T0}, 3, v{VG}\ns_lshl_b32 s30, s24, 8\ns_lshl_b32 s31, s26, 7\ns_add_u32 s30, s30, s31")
    for f4 in range(4):
        k(f"buffer_load_dwordx2 {v(B1+2*f4,2)}, v{T0}, s[16:19], s30 offen offset:{f4*32}")
    k(f"v_bfe_u32 v{T0}, v{VL}, 2, 2\nv_lshl_add_u32 v{T0}, v{VG}, 2, v{T0}")
    k(f"v_and_b32 v{T1}, 7, v{T0}\nv_lshlrev_b32 v{T0}, 8, v{T0}\nv_and_b32 v{T2}, 3, v{VL}\nv_lshl_add_u32 v{T0}, v{T2}, 3, v{T0}")
    k("s_lshl_b32 s30, s26, 2")
    for f4 in range(4):
        k(f"s_add_u32 s31, s30, {f4}\nv_xor_b32 v{T2}, s31, v{T1}\nv_lshl_add_u32 v{VTR+f4}, v{T2}, 5, v{T0}\nv_add_u32 v{VTR+4+f4}, {2*STG}, v{VTR+f4}")
    k(f"s_mul_i32 s30, s27, 3072\ns_add_u32 s30, s30, 16384\nv_lshlrev_b32 v{VHR}, 4, v{VL}\nv_add_u32 v{VHR}, s30, v{VHR}\nv_add_u32 v{VHR+1}, {2*STG}, v{VHR}")
    for r in range(48): k(f"v_mov_b32 v{ACC+r}, 0")
    k(f"s_mul_i32 s31, s25, 6\ns_mul_i32 s38, s27, 3\ns_add_u32 s31, s31, s38\ns_mul_i32 s31, s31, {144*1024}")
    k(f"s_lshl_b32 s38, s24, 12\ns_add_u32 s31, s31, s38\ns_lshl_b32 s38, s26, 11\ns_add_u32 s31, s31, s38\ns_add_u32 s40, s31, {WS_U}")
    k(f"s_lshr_b32 s30, s10, 1\ns_mul_i32 s30, s30, 6\ns_add_u32 s30, s30, s25\ns_mul_i32 s30, s30, 9\ns_add_u32 s30, s30, s47\ns_lshl_b32 s30, s30, 7\ns_add_u32 s41, s30, {F4}")
    def reads(st, slot, ks, rs):
        hi = slot >> 1; off = (slot & 1) * STG
        out = []
        for f4 in range(4):
            for hf in range(2):
                out.append(f"ds_read_b64_tr_b16 {v(WF+rs*16+f4*4+hf*2,2)}, v{VTR+4*hi+f4} offset:{off+ks*8192+hf*4096}")
            if f4 < 3:
                out.append(f"ds_read_b128 {v(HF+rs*12+f4*4,4)}, v{VHR+hi} offset:{off+ks*6144+f4*1024}")
        return out
    def mf(st, ks, rs):
        return [f"v_mfma_f32_16x16x32_bf16 {v(ACC+(f4*3+dt)*4,4)}, {v(WF+rs*16+f4*4,4)}, {v(HF+rs*12+dt*4,4)}, {v(ACC+(f4*3+dt)*4,4)}"
                for f4 in range(4) for dt in range(3)]
    consumer_loop(k, N, R, reads, mf, per=1, stamp0=None if (os.environ.get('P3S') or os.environ.get('P2S')) else 14)
    k("STAMP 7")
    c1 = -2.0 * math.sqrt(2.0 / math.pi) * math.log2(math.e)
    c2 = c1 * 0.044715
    k(f"s_mov_b32 s30, {f32(c2)}\nv_mov_b32 v{T2}, {f32(c1)}")
    BB = WF
    k("s_waitcnt vmcnt(0)")
    for f4 in range(4):
        for h2 in range(2):
            k(f"v_lshlrev_b32 v{BB+f4*4+h2*2}, 16, v{B1+f4*2+h2}\nv_and_b32 v{BB+f4*4+h2*2+1}, 0xffff0000, v{B1+f4*2+h2}")
    k(f"v_lshlrev_b32 v{T0}, 4, v{VL}")
    TT = WF + 16; PKD = HF
    for dt in range(3):
        for pr in range(2):
            xb = [ACC + ((2 * pr + h) * 3 + dt) * 4 for h in range(2)]
            xs = [xb[h] + r for h in range(2) for r in range(4)]
            for h in range(2):
                for h2 in range(2): k(f"v_pk_add_f32 {v(xb[h]+2*h2,2)}, {v(xb[h]+2*h2,2)}, {v(BB+(2*pr+h)*4+2*h2,2)}")
            for h in range(2):
                for h2 in range(2): k(f"v_pk_mul_f32 {v(TT+4*h+2*h2,2)}, {v(xb[h]+2*h2,2)}, {v(xb[h]+2*h2,2)}")
            for n in range(8): k(f"v_fma_f32 v{TT+n}, v{TT+n}, s30, v{T2}")
            for h in range(2):
                for h2 in range(2): k(f"v_pk_mul_f32 {v(TT+4*h+2*h2,2)}, {v(TT+4*h+2*h2,2)}, {v(xb[h]+2*h2,2)}")
            for n in range(8): k(f"v_exp_f32 v{TT+n}, v{TT+n}")
            for n in range(8): k(f"v_add_f32 v{TT+n}, 1.0, v{TT+n}")
            for n in range(8): k(f"v_rcp_f32 v{TT+n}, v{TT+n}")
            for h in range(2):
                for h2 in range(2): k(f"v_pk_mul_f32 {v(xb[h]+2*h2,2)}, {v(xb[h]+2*h2,2)}, {v(TT+4*h+2*h2,2)}")
            o = PKD + (dt * 2 + pr) * 4
            for n in range(4): k(f"v_cvt_pk_bf16_f32 v{o+n}, v{xs[2*n]}, v{xs[2*n+1]}")
            k(f"buffer_store_dwordx4 {v(o,4)}, v{T0}, s[20:23], s40 offen offset:{pr*1024}{WT}")
        k(f"s_add_u32 s40, s40, {144*1024}")
    k(f"v_mov_b32 v{T1}, 0\nv_mov_b32 v{T2}, 1\ns_waitcnt vmcnt(0)")
    last_wave_flag(k, T1, T2, T3, LCNT + 8, 20, 41)
    k(f"s_branch {NXT}")
    k(f"{PROD}:\ns_and_b32 s26, s28, 1\ns_cmp_ge_u32 s28, 6\ns_cbranch_scc1 {PA}")
    VD = 10
    for q in range(2):
        k(f"v_add_u32 v{T0}, {4*q}, v{VG}")
        k(f"v_lshlrev_b32 v{T1}, 1, v{T0}\nv_xor_b32 v{T1}, v{T1}, v{VI}\nv_lshlrev_b32 v{T1}, 4, v{T1}")
        k(f"v_mul_u32_u24 v{T0}, 9216, v{T0}\nv_add_u32 v{VD+q}, v{T0}, v{T1}")
    for q in range(2, 8): k(f"v_add_u32 v{VD+q}, {8*9216}, v{VD+q-2}")
    k(f"s_lshl_b32 s32, s24, 8\ns_mul_i32 s30, s26, {32*9216}\ns_add_u32 s32, s32, s30\ns_lshl_b32 s34, s26, 13")
    srd(k, 12, PW1, S_ * F_ * 2)
    producer_loop(k, N, R, 8, lambda st, slot: [dma(34, slot * STG + q * 1024, VD + q, 12, 32) for q in range(8)] + [f"s_add_u32 s32, s32, {64*9216}"], NXT, first=int(os.environ.get("FIRST4", 2)))
    k(f"{PA}:")
    k(f"v_lshlrev_b32 v{VD}, 4, v{VL}")
    for q in range(1, 6): k(f"v_add_u32 v{VD+q}, {PS}, v{VD+q-1}")
    k(f"s_mul_i32 s33, s25, {6*PS}\ns_lshl_b32 s30, s26, 10\ns_add_u32 s33, s33, s30\ns_add_u32 s33, s33, {WS_HN}")
    k("s_mul_i32 s35, s26, 6144\ns_add_u32 s35, s35, 16384")
    k(f"s_lshl_b32 s30, s25, 12\ns_add_u32 s30, s30, {F3}\nv_lshlrev_b32 v{T0}, 7, v{VL}")
    W7, WD = k.lab("W7"), k.lab("WD")
    k(f"s_cmp_eq_u32 s28, 7\ns_cbranch_scc1 {W7}")
    if 'nogate' not in XM:
        NG, NG2 = k.lab("NG"), k.lab("NG")
        k(f"s_cmp_ge_u32 s2, 192\ns_cbranch_scc1 {NG}")
        wait_local(k, 20, LCNT + 4)
        k(f"s_branch {NG2}\n{NG}:\ns_mov_b64 exec, 1")
        poll(k, T0, 20, 1, 20, 30, sleep=8)
        k(f"s_mov_b64 exec, -1\n{NG2}:")
    k("s_mov_b32 exec_hi, 0")
    poll(k, T0, 20, 1, 20, 30)
    k("s_mov_b32 exec_hi, -1")
    lds_signal(k, 20, LCNT + 24)
    k(f"s_branch {WD}\n{W7}:")
    wait_local(k, 20, LCNT + 24, n=1)
    k(f"{WD}:\nSTAMP 7")
    producer_loop(k, N, R, 6, lambda st, slot: [dma(35, slot * STG + q * 1024, VD + q, 20, 33, SC) for q in range(6)] + ["s_add_u32 s33, s33, 2048"], NXT)
    k(f"{PF}:\ns_sub_u32 s29, s2, 216")
    pf(k, "PF4", 29, 40, 512, 10)
    if 'early4' in XM: w1slow(k)
    if 'nopoison' not in XM:
        srd(k, 56, PDBG, 256)
        k(f"s_mul_i32 s30, s29, 196608\ns_add_u32 s30, s30, {WS_P}\nv_lshlrev_b32 v10, 4, v0\nv_mov_b32 v12, -1\nv_mov_b32 v13, -1\nv_mov_b32 v14, -1\nv_mov_b32 v15, -1")
        for i in range(24): k(f"buffer_store_dwordx4 v[12:15], v10, s[20:23], s30 offen{WT}\ns_add_u32 s30, s30, 8192")
        NZ = k.lab("NZ")
        k(f"v_mov_b32 v16, 4\nv_mov_b32 v17, 1\ns_waitcnt vmcnt(0)\ns_barrier\ns_cmp_lg_u32 s28, 0\ns_cbranch_scc1 {NZ}")
        k(f"s_mov_b64 exec, 1\nbuffer_atomic_add v17, v16, s[56:59], 0 offen sc1\ns_mov_b64 exec, -1\n{NZ}:")
    if 'noslow' not in XM:
        def gated(flag_off, lines_code):
            NP = k.lab("NP")
            k(f"s_cmp_lg_u32 s28, 0\ns_cbranch_scc1 {NP}\ns_mov_b32 s30, {flag_off}\nv_mov_b32 v12, 0\ns_mov_b64 exec, 1")
            poll(k, 12, 13, 1, 20, 30, sleep=8)
            k(f"s_mov_b64 exec, -1\n{NP}:\ns_barrier")
            lines_code()
        def w2slow():
            srd(k, 52, PW2, S_ * F_ * 2)
            k(f"s_lshr_b32 s60, s10, 1\ns_mul_i32 s60, s60, {1152*4096}\ns_and_b32 s61, s10, 1\ns_lshl_b32 s61, s61, 11\ns_add_u32 s60, s60, s61\ns_add_u32 s60, s60, 384")
            k(f"s_sub_u32 s62, s11, 27\nv_lshrrev_b32 v10, 1, v0\nv_mul_u32_u24 v10, 5, v10\nv_add_u32 v10, s62, v10\nv_lshlrev_b32 v10, 12, v10\nv_and_b32 v11, 1, v0\nv_lshl_add_u32 v10, v11, 10, v10")
            k(f"v_cmp_gt_u32 vcc, {2*231}, v0\nv_mov_b32 v11, 0x7ff00000\nv_cndmask_b32 v10, v11, v10, vcc")
            k(f"buffer_load_dword v{DUMMY}, v10, s[52:55], s60 offen")
        gated(F3, lambda: w1slow(k))
        if 'now2' not in XM: gated(F4 + 128 * 2, w2slow)
    if os.environ.get("JIT4"):
        s0, sw = [int(t) for t in os.environ["JIT4"].split(",")]
        k(f"s_mov_b32 s30, {F3}\nv_lshlrev_b32 v12, 7, v0\nv_cmp_gt_u32 vcc, 192, v0\ns_and_saveexec_b64 s[62:63], vcc")
        NP = k.lab("NP")
        k(f"s_cbranch_execz {NP}")
        poll(k, 12, 13, 1, 20, 30)
        k(f"{NP}:\ns_mov_b64 exec, -1\ns_barrier")
        w1_addr(k, 10)
        k("s_sub_u32 s29, s11, 27")
        k(f"v_lshrrev_b32 v12, 4, v0\nv_mul_u32_u24 v12, {PS}, v12\nv_and_b32 v13, 15, v0\nv_lshl_add_u32 v12, v13, 7, v12")
        k(f"v_add_u32 v13, {32*PS}, v12\nv_mov_b32 v14, 0x7ff00000\nv_cmp_gt_u32 vcc, 64, v0\nv_cndmask_b32 v13, v14, v13, vcc")
        k(f"s_lshl_b32 s61, s29, 11\ns_add_u32 s61, s61, {WS_HN + s0*2048}\ns_mul_i32 s62, s29, {64*9216}\ns_add_u32 s60, s60, s62\ns_add_u32 s60, s60, {s0*64*9216}")
        for st in range(s0, 32, 5):
            k(f"buffer_load_dword v{DUMMY}, v12, s[20:23], s61 offen\nbuffer_load_dword v{DUMMY}, v13, s[20:23], s61 offen\ns_add_u32 s61, s61, {5*2048}")
            if st + 4 >= sw:
                k(f"buffer_load_dword v{DUMMY}, v10, s[52:55], s60 offen\ns_add_u32 s62, s60, {32*9216}\nbuffer_load_dword v{DUMMY}, v10, s[52:55], s62 offen")
            k(f"s_add_u32 s60, s60, {5*64*9216}")
    k(f"s_branch {NXT}")

def p5(k, ENT):
    STG = 34816; R = 4; N = 18
    PROD = k.lab("P5PROD"); PA = k.lab("P5PA"); FIN = k.lab("FIN")
    k(f"{ENT}:\nSTAMP 8")
    k("s_lshr_b32 s26, s10, 1\ns_and_b32 s25, s11, 3\ns_lshr_b32 s24, s11, 2")
    k("s_and_b32 s29, s10, 1\ns_lshl_b32 s29, s29, 3\ns_add_u32 s24, s24, s29\ns_and_b32 s29, s26, 1")
    ids16(k)
    k(f"s_cmp_ge_u32 s28, 4\ns_cbranch_scc1 {PROD}")
    VTR = 10; VUR = VTR + 2 * R; B2 = VUR + R
    IDN, HR, UF = 24, 28, 48
    WF = UF + 72; ACC = WF + 16
    srd(k, 16, PB2, S_ * 2)
    srd(k, 40, POUT, S_ * D_ * 2)
    k(f"s_lshl_b32 s30, s24, 8\ns_lshl_b32 s31, s28, 6\ns_add_u32 s30, s30, s31\ns_lshl_b32 s31, s29, 5\ns_add_u32 s30, s30, s31\nv_lshlrev_b32 v{T0}, 1, v{VI}")
    k(f"buffer_load_ushort v{B2}, v{T0}, s[16:19], s30 offen")
    k(f"v_lshlrev_b32 v{T3}, 4, v{VL}")
    k(f"s_mul_i32 s49, s25, {9*PS}\ns_lshl_b32 s32, s24, 12\ns_add_u32 s49, s49, s32\ns_lshl_b32 s32, s28, 10\ns_add_u32 s49, s49, s32\ns_add_u32 s49, s49, {WS_H}")
    k(f"s_lshr_b32 s32, s26, 1\ns_mul_i32 s32, s32, {5*PS}\ns_add_u32 s49, s49, s32")
    k(f"v_bfe_u32 v{T0}, v{VL}, 2, 2\nv_lshl_add_u32 v{T0}, v{VG}, 2, v{T0}")
    k(f"v_and_b32 v{T1}, 7, v{T0}\nv_lshlrev_b32 v{T0}, 8, v{T0}\nv_and_b32 v{T2}, 3, v{VL}\nv_lshl_add_u32 v{T0}, v{T2}, 3, v{T0}")
    k("s_lshl_b32 s30, s28, 1\ns_add_u32 s30, s30, s29")
    for l in range(2):
        k(f"s_xor_b32 s31, s30, {l}\nv_xor_b32 v{T2}, s31, v{T1}\nv_lshl_add_u32 v{VTR+l}, v{T2}, 5, v{T0}")
        for sl in range(1, R): k(f"v_add_u32 v{VTR+2*sl+l}, {sl*STG}, v{VTR+l}")
    k(f"v_lshlrev_b32 v{VUR}, 4, v{VL}\nv_add_u32 v{VUR}, 16384, v{VUR}")
    for sl in range(1, R): k(f"v_add_u32 v{VUR+sl}, {sl*STG}, v{VUR}")
    k(f"v_lshlrev_b32 v{T0}, 2, v{VG}\nv_sub_u32 v{T0}, v{VI}, v{T0}\nv_mov_b32 v{T1}, 0x3f80\nv_mov_b32 v{T2}, 0x3f800000")
    k("s_cmp_eq_u32 s29, 0\ns_cselect_b64 s[38:39], -1, 0")
    for j2 in range(2):
        k(f"v_cmp_eq_u32 vcc, {2*j2}, v{T0}\nv_cndmask_b32 v{UF}, 0, v{T1}, vcc")
        k(f"v_cmp_eq_u32 vcc, {2*j2+1}, v{T0}\nv_cndmask_b32 v{UF}, v{UF}, v{T2}, vcc")
        k(f"v_cndmask_b32 v{IDN+j2}, 0, v{UF}, s[38:39]\nv_cndmask_b32 v{IDN+2+j2}, v{UF}, 0, s[38:39]")
    for r in range(72): k(f"v_mov_b32 v{ACC+r}, 0")
    k(f"s_lshl_b32 s32, s24, 2\ns_add_u32 s32, s32, s25")
    k(f"s_mul_i32 s33, s32, {48*2560}\ns_mul_i32 s30, s28, 2560\ns_add_u32 s33, s33, s30\ns_add_u32 s33, s33, {WS_P}")
    for x in (1, 2, 3):
        k(f"s_xor_b32 s30, s26, {x}\ns_sub_u32 s31, s26, s30\ns_sub_u32 s31, s31, 1\ns_and_b32 s31, s31, 3")
        k(f"s_mul_i32 s30, s30, 3\ns_add_u32 s30, s30, s31\ns_mul_i32 s30, s30, {4*2560}\ns_add_u32 s{44+x}, s30, s33")
    k(f"s_mul_i32 s30, s26, {12*2560}\ns_add_u32 s33, s33, s30")
    k(f"s_lshl_b32 s35, s32, 11\ns_lshl_b32 s30, s28, 9\ns_add_u32 s35, s35, s30\ns_add_u32 s35, s35, {F5}\ns_lshl_b32 s30, s26, 7\ns_add_u32 s34, s30, s35")
    k(f"s_lshl_b32 s48, s24, 7\ns_lshl_b32 s31, s28, 5\ns_add_u32 s48, s48, s31\ns_lshl_b32 s31, s29, 4\ns_add_u32 s48, s48, s31\ns_mul_i32 s48, s48, 1152\ns_mul_i32 s31, s25, 288\ns_add_u32 s48, s48, s31")
    POIS = 'nopoison' not in XM
    PZ = ACC + 73
    srd(k, 56, PDBG, 256)
    k(f"v_mov_b32 v{PZ-1}, 4")
    firstr = [True]
    def reads(st, slot, ks, rs):
        out = []
        for l in range(2):
            for hf in range(2):
                out.append(f"ds_read_b64_tr_b16 {v(WF+rs*8+l*4+hf*2,2)}, v{VTR+2*slot+l} offset:{ks*8192+hf*4096}")
        for d in range(9):
            out.append(f"ds_read_b128 {v(UF+rs*36+d*4,4)}, v{VUR+slot} offset:{ks*9216+d*1024}")
        if firstr[0]:
            firstr[0] = False
            if POIS: out.append(f"buffer_load_dword v{PZ}, v{PZ-1}, s[56:59], 0 offen sc0 sc1")
            for d in range(5): out.append(f"buffer_load_dwordx4 {v(HR+4*d,4)}, v{T3}, s[20:23], s49 offen{SC}\ns_add_u32 s49, s49, {PS}")
        return out
    def mf(st, ks, rs):
        return [f"v_mfma_f32_16x16x32_bf16 {v(ACC+(d*2+l)*4,4)}, {v(UF+rs*36+d*4,4)}, {v(WF+rs*8+l*4,4)}, {v(ACC+(d*2+l)*4,4)}"
                for d in range(9) for l in range(2)]
    consumer_loop(k, N, R, reads, mf, per=1, final_barrier=False, stamp0=None if (os.environ.get('P3S') or os.environ.get('P2S')) else 15)
    k("STAMP 9")
    V16, V8, VZ, VO = VTR, VTR + 1, VTR + 2, VTR + 3
    k(f"v_lshlrev_b32 v{V16}, 4, v{VL}\nv_lshlrev_b32 v{V8}, 3, v{VL}\nv_mov_b32 v{VZ}, 0\nv_mov_b32 v{T2}, 1\ns_waitcnt vmcnt(0)")
    if POIS:
        OK = k.lab("POK")
        k(f"v_cmp_gt_u32 vcc, 40, v{PZ}\ns_mov_b32 s31, 0\ns_nop 3\ns_cbranch_vccz {OK}")
        poll(k, PZ - 1, PZ, 1, 56, 31, want=40)
        k(f"{OK}:")
    GA, GB = [0, 1, 2, 3, 4], [5, 6, 7, 8]
    def epi(aa):
        own, oth = (GA, GB) if aa == 0 else (GB, GA)
        PK = UF
        n = 0
        for x, grp, l in ((2, oth, 0), (3, oth, 1), (1, own, 1)):
            for c in range(0, len(grp), 2):
                ds = grp[c:c + 2]
                for e, d in enumerate(ds):
                    ac = ACC + (d * 2 + l) * 4
                    k(f"v_cvt_pk_bf16_f32 v{PK+n+2*e}, v{ac}, v{ac+1}\nv_cvt_pk_bf16_f32 v{PK+n+2*e+1}, v{ac+2}, v{ac+3}")
                if len(ds) == 2: k(f"buffer_store_dwordx4 {v(PK+n,4)}, v{V16}, s[20:23], s{44+x} offen offset:{c*512}{WT}")
                else: k(f"buffer_store_dwordx2 {v(PK+n,2)}, v{V8}, s[20:23], s{44+x} offen offset:{c*512}{WT}")
                n += 4
        for e, d in enumerate(own):
            ac = v(ACC + d * 8, 4)
            k(f"v_mfma_f32_16x16x32_bf16 {ac}, {v(HR+4*e,4)}, {v(IDN,4)}, {ac}")
        k(f"v_lshlrev_b32 v{B2}, 16, v{B2}")
        k(f"v_mul_u32_u24 v{VO}, 1152, v{VI}\nv_lshl_add_u32 v{VO}, v{VG}, 3, v{VO}")
        RR = UF + 40
        chunks = [own[c:c + 2] for c in range(0, len(own), 2)]
        k(f"s_add_u32 s30, s33, {4*2560}\ns_add_u32 s31, s33, {8*2560}")
        def inbox():
            regs = []
            for ci, ds in enumerate(chunks):
                for sl, so in enumerate((33, 30, 31)):
                    r = RR + (ci * 3 + sl) * 4
                    if len(ds) == 2: k(f"buffer_load_dwordx4 {v(r,4)}, v{V16}, s[20:23], s{so} offen offset:{ci*1024} sc0 sc1")
                    else: k(f"buffer_load_dwordx2 {v(r,2)}, v{V8}, s[20:23], s{so} offen offset:{ci*1024} sc0 sc1")
                    regs += list(range(r, r + 2 * len(ds)))
            return regs
        def addb2():
            for d in own:
                for h2 in range(2): k(f"v_pk_add_f32 {v(ACC+d*8+2*h2,2)}, {v(ACC+d*8+2*h2,2)}, {v(B2-(B2&1),2)} op_sel:[0,{B2&1}] op_sel_hi:[1,{B2&1}]")
        if POIS:
            addb2()
            PL, GO = k.lab("PP"), k.lab("PG")
            k(f"s_mov_b32 s37, 0x40000\ns_waitcnt vmcnt({os.environ.get('PWAIT', 0)})\n{PL}:")
            regs = inbox()
            k(f"s_waitcnt vmcnt(0)\nv_max_u32 v{T0}, v{regs[0]}, v{regs[1]}")
            for n in range(2, len(regs), 2): k(f"v_max3_u32 v{T0}, v{T0}, v{regs[n]}, v{regs[n+1]}")
            k(f"v_cmp_eq_u32 vcc, -1, v{T0}\ns_sub_u32 s37, s37, 1\ns_cmp_eq_u32 s37, 0\ns_cbranch_scc1 {GO}\ns_cbranch_vccz {GO}\ns_sleep 2\ns_branch {PL}\n{GO}:\nSTAMP 10")
        else:
            k("s_waitcnt vmcnt(0)")
            set_flag(k, VZ, T2, 20, 34)
            addb2()
            k(f"v_lshlrev_b32 v{T0}, 7, v{VL}\ns_mov_b64 exec, 0xf")
            poll(k, T0, HR, 1, 20, 35)
            k("s_mov_b64 exec, -1\nSTAMP 10")
            inbox()
        nst = 0
        for ci, ds in enumerate(chunks):
            if not POIS: k(f"s_waitcnt vmcnt({3*(len(chunks)-1-ci)+nst})")
            for e, d in enumerate(ds):
                o = ACC + d * 8
                for sl in range(3):
                    for h2 in range(2):
                        p = RR + (ci * 3 + sl) * 4 + 2 * e + h2
                        t = PK + (sl * 2 + h2) * 2
                        k(f"v_lshlrev_b32 v{t}, 16, v{p}\nv_and_b32 v{t+1}, 0xffff0000, v{p}")
                for sl in range(3):
                    for h2 in range(2):
                        t = PK + (sl * 2 + h2) * 2
                        k(f"v_pk_add_f32 {v(o+2*h2,2)}, {v(o+2*h2,2)}, {v(t,2)}")
                k(f"v_cvt_pk_bf16_f32 v{o}, v{o}, v{o+1}\nv_cvt_pk_bf16_f32 v{o+1}, v{o+2}, v{o+3}")
                k(f"buffer_store_dwordx2 {v(o,2)}, v{VO}, s[40:43], s48 offen offset:{d*32}" + os.environ.get("OUTF", " nt"))
                nst += 1
        k("s_endpgm")
    A1 = k.lab("A1")
    k(f"s_cmp_ge_u32 s26, 2\ns_cbranch_scc1 {A1}")
    epi(0)
    k(f"{A1}:")
    epi(1)
    k(f"{PROD}:\ns_and_b32 s29, s28, 1")
    ORD = 'noord' not in XM
    k("s_sub_u32 s38, 1, s26\ns_and_b32 s38, s38, 3\ns_cmp_eq_u32 s38, 0\ns_cselect_b32 s39, 6, 7")
    for n in range(9):
        if not ORD:
            k(f"s_mov_b32 s{40+n}, {n}"); continue
        k(f"s_mov_b32 s{40+n}, {n}")
        for d in (0, 3, 6):
            if n - d >= 0: k(f"s_cmp_le_u32 s38, {n-d}\ns_addc_u32 s{40+n}, s{40+n}, 0")
        if n >= 6: k(f"s_sub_u32 s30, {n}, s39\ns_lshl_b32 s30, s30, 2\ns_add_u32 s30, s30, s38\ns_cmp_le_u32 s39, {n}\ns_cselect_b32 s{40+n}, s30, s{40+n}")
    k(f"s_cmp_ge_u32 s28, 6\ns_cbranch_scc1 {PA}")
    VD = 10
    for q in range(2):
        k(f"v_add_u32 v{T0}, {4*q}, v{VG}")
        k(f"v_lshlrev_b32 v{T1}, 1, v{T0}\nv_xor_b32 v{T1}, v{T1}, v{VI}\nv_lshlrev_b32 v{T1}, 4, v{T1}")
        k(f"v_lshl_add_u32 v{VD+q}, v{T0}, 12, v{T1}")
    for q in range(2, 8): k(f"v_add_u32 v{VD+q}, {8*4096}, v{VD+q-2}")
    k(f"s_mul_i32 s32, s26, {1152*4096}\ns_lshl_b32 s30, s29, 17\ns_add_u32 s32, s32, s30\ns_lshl_b32 s30, s24, 8\ns_add_u32 s32, s32, s30\ns_lshl_b32 s34, s29, 13")
    srd(k, 12, PW2, F_ * S_ * 2)
    producer_loop(k, N, R, 8, lambda st, slot: [f"s_lshl_b32 s33, s{40+(st>>1)}, 19\ns_add_u32 s33, s33, s32" + (f"\ns_add_u32 s33, s33, {64*4096}" if st & 1 else "")] +
                  [dma(34, slot * STG + q * 1024, VD + q, 12, 33) for q in range(8)], FIN, final_barrier=False, first=int(os.environ.get("FIRST5", 2)), gate=lambda st: None)
    k(f"{PA}:")
    k(f"v_lshlrev_b32 v{VD}, 4, v{VL}")
    for d in range(1, 9): k(f"v_add_u32 v{VD+d}, {144*1024}, v{VD+d-1}")
    k(f"s_mul_i32 s33, s25, {9*144*1024}\ns_mul_i32 s30, s26, {36*1024}\ns_add_u32 s33, s33, s30\ns_lshl_b32 s30, s29, 10\ns_add_u32 s33, s33, s30\ns_add_u32 s33, s33, {WS_U}")
    k("s_mul_i32 s35, s29, 9216\ns_add_u32 s35, s35, 16384")
    k(f"s_mul_i32 s30, s25, 3\ns_lshr_b32 s30, s30, 1\ns_mul_i32 s31, s26, 6\ns_add_u32 s30, s30, s31\ns_mul_i32 s30, s30, {9*128}\ns_add_u32 s30, s30, {F4}")
    k(f"v_lshlrev_b32 v{T0}, 7, v{VL}")
    W7, WD = k.lab("W7"), k.lab("WD")
    k(f"s_mov_b32 s49, s30\ns_cmp_eq_u32 s28, 7\ns_cbranch_scc1 {W7}")
    if 'nogate' not in XM:
        NG, NG2 = k.lab("NG"), k.lab("NG")
        k(f"s_cmp_ge_u32 s2, 216\ns_cbranch_scc1 {NG}")
        wait_local(k, 20, LCNT + 8)
        k(f"s_branch {NG2}\n{NG}:\ns_lshl_b32 exec_lo, 1, s40\ns_mov_b32 exec_hi, 0")
        poll(k, T0, 20, 1, 20, 30, sleep=8)
        k(f"{NG2}:")
    k("s_lshl_b32 s31, 0x111, s38\ns_and_b32 s31, s31, 0x1ff\ns_mul_i32 s31, s31, 0x201\ns_andn2_b32 exec_lo, 0x3ffff, s31\ns_mov_b32 exec_hi, 0\ns_mov_b32 s49, s30" if ORD else "s_mov_b64 exec, 0x3ffff")
    poll(k, T0, 20, 1, 20, 30)
    k("s_mov_b64 exec, -1")
    lds_signal(k, 20, LCNT + 28)
    k(f"s_branch {WD}\n{W7}:")
    wait_local(k, 20, LCNT + 28, n=1)
    k(f"{WD}:\nSTAMP 9")
    def gate(st):
        if st == 12 and ORD:
            k("s_mov_b64 exec, 0x3ffff")
            poll(k, T0, 20, 1, 20, 49)
            k("s_mov_b64 exec, -1")
    producer_loop(k, N, R, 9, lambda st, slot: [f"s_lshl_b32 s32, s{40+(st>>1)}, 12\ns_add_u32 s32, s32, s33" + ("\ns_add_u32 s32, s32, 2048" if st & 1 else "")] +
                  [dma(35, slot * STG + q * 1024, VD + q, 20, 32, SC) for q in range(9)], FIN, final_barrier=False, gate=gate)
    k(f"{FIN}:\ns_endpgm")

NAME = "sequential_preLN__sliding_block__mixer_token_mlp__prompt_kernel"
def gen_mega():
    k = Kern(NAME, 512, 256, LCNT + 64)
    k.lab = (lambda f: (lambda base="L": f(base).replace(NAME[:-7], "m")))(k.lab)
    END = k.lab("END")
    k(f"s_cmp_ge_u32 s2, 256\ns_cbranch_scc1 {END}")
    k("s_load_dwordx16 s[64:79], s[0:1], 0\ns_load_dwordx4 s[80:83], s[0:1], 64\ns_load_dwordx2 s[84:85], s[0:1], 80")
    k("s_and_b32 s10, s2, 7\ns_lshr_b32 s11, s2, 3")
    if 'nocode' not in XM:
        H = k.lab("PC"); SK = k.lab("SKC")
        k(f"s_cmp_lt_u32 s2, 192\ns_cbranch_scc1 {SK}\ns_getpc_b64 s[60:61]\n{H}:\ns_sub_u32 s60, s60, {H}-L_text_begin\ns_subb_u32 s61, s61, 0")
        k(f"s_sub_u32 s62, s11, 24\ns_lshl_b32 s62, s62, 7\nv_lshlrev_b32 v{T0}, 10, v0\nv_add_u32 v{T0}, s62, v{T0}")
        k(f"s_mov_b32 s62, L_text_end-L_text_begin\nv_cmp_gt_u32 vcc, s62, v{T0}\ns_and_saveexec_b64 s[62:63], vcc\ns_cbranch_execz {SK}\nglobal_load_dword v{DUMMY}, v{T0}, s[60:61]\n{SK}:\ns_mov_b64 exec, -1")
    lane_ids(k, VL, 2, 28)
    k(f"v_lshlrev_b32 v{T0}, 2, v{VL}\nv_add_u32 v{T0}, {LCNT}, v{T0}\nv_mov_b32 v{T1}, 0\ns_mov_b64 exec, 0xffff\nds_write_b32 v{T0}, v{T1}\ns_mov_b64 exec, -1")
    E2a, E2b, E3, E4, E5 = [k.lab(n) for n in ("P2A", "P2B", "P3", "P4", "P5")]
    p1(k, (E2a, E2b))
    p2(k, (E2a, E2b), E3)
    p3(k, E3, E4)
    p4(k, E4, E5)
    p5(k, E5)
    k(f"{END}:\ns_endpgm")
    return k
```

```python
from common import *
import os

def producer_loop(k, N, R, P, issue, nxt, first=2, cnt=36, tail=None, final_barrier=True, gate=None):
    special = getattr(issue, "special_from", N)
    def do(st):
        if gate: gate(st)
        for t in issue(st, st % R): k(t)
    first = min(first, R)
    for st in range(first): do(st)
    k(f"s_waitcnt vmcnt({(first - 1) * P})\ns_barrier")
    issued = first
    for st in range(issued, min(N, R)): do(st)
    issued = min(N, R)
    k(f"s_waitcnt vmcnt({(issued - 2) * P})\ns_barrier")
    b = 1
    nsteady = N - R
    nloop = 0
    while gate is None and (nloop + 1) * R <= nsteady and R + (nloop + 1) * R - 1 < special: nloop += 1
    if nloop >= 2:
        L = k.lab("PL")
        k(f"s_mov_b32 s{cnt}, {nloop}\n{L}:")
        for i in range(R):
            do(R + i)
            k(f"s_waitcnt vmcnt({(R - 2) * P})\ns_barrier")
        k(f"s_sub_u32 s{cnt}, s{cnt}, 1\ns_cmp_lg_u32 s{cnt}, 0\ns_cbranch_scc1 {L}")
        b += nloop * R; issued += nloop * R
    while b < N - 1:
        if issued < N:
            do(issued); issued += 1
        k(f"s_waitcnt vmcnt({(issued - (b + 1) - 1) * P})")
        if b == N - 2 and tail: tail(k)
        k("s_barrier")
        b += 1
    if final_barrier: k("s_barrier")
    k(f"s_branch {nxt}")

def consumer_loop(k, N, R, reads, mf, cnt=36, per=2, special_from=None, final_barrier=True, before_last=None, stamp0=None):
    special_from = N if special_from is None else special_from
    if os.environ.get("STG_STAMP") and stamp0 == 12: special_from = 0; k("s_mov_b32 s36, 1")
    if os.environ.get("STG_STAMP") and stamp0 != 12: stamp0 = None
    k("s_barrier")
    if stamp0 is not None: k(f"STAMP {stamp0}")
    for t in reads(0, 0, 0, 0): k(t)
    def stage(st, last=False):
        slot = st % R
        k("s_waitcnt lgkmcnt(0)")
        for t in interleave(mf(st, 0, 0), reads(st, slot, 1, 1), 0, per): k(t)
        fill = []
        if not last:
            k("s_waitcnt lgkmcnt(0)\ns_barrier")
            fill = reads(st + 1, (slot + 1) % R, 0, 0)
        else:
            k("s_waitcnt lgkmcnt(0)")
            if final_barrier: k("s_barrier")
        for t in interleave(mf(st, 1, 1), fill, 0, per): k(t)
    nloop = 0
    while (nloop + 1) * R < N and (nloop + 1) * R < special_from: nloop += 1
    st = 0
    if nloop >= 2:
        L = k.lab("CL")
        k(f"s_mov_b32 s{cnt}, {nloop}\n{L}:")
        for i in range(R): stage(i)
        k(f"s_sub_u32 s{cnt}, s{cnt}, 1\ns_cmp_lg_u32 s{cnt}, 0\ns_cbranch_scc1 {L}")
        st = nloop * R
    while st < N:
        if os.environ.get("STG_STAMP") and stamp0 == 12 and st in (1, 2, 4): k(f"STAMP {13 + (1, 2, 4).index(st)}")
        if st == N - 1 and before_last: before_last()
        stage(st, st == N - 1); st += 1

def dma(m0base, off, vaddr, srd, soff, flags=""):
    return f"s_add_u32 m0, s{m0base}, {off}\ns_nop 0\nbuffer_load_dwordx4 v{vaddr}, s[{srd}:{srd+3}], s{soff} offen{flags} lds"

def poll(k, vaddr, vdst, nd, srd, soff, cnt=37, sleep=True, want=None):
    P, G = k.lab("POLL"), k.lab("GO")
    op = {1: "dword", 2: "dwordx2", 4: "dwordx4"}[nd]
    k(f"s_mov_b32 s{cnt}, 0x40000\n{P}:")
    k(f"buffer_load_{op} {v(vdst, nd)}, v{vaddr}, s[{srd}:{srd+3}], s{soff} offen sc0 sc1\ns_waitcnt vmcnt(0)")
    for i in range(1, nd): k(f"v_min_u32 v{vdst}, v{vdst}, v{vdst+i}")
    k((f"v_cmp_eq_u32 vcc, 0, v{vdst}" if want is None else f"v_cmp_gt_u32 vcc, {want}, v{vdst}") + f"\ns_sub_u32 s{cnt}, s{cnt}, 1\ns_cmp_eq_u32 s{cnt}, 0\ns_cbranch_scc1 {G}")
    if sleep:
        k(f"s_cbranch_vccz {G}\ns_sleep {int(sleep)}\ns_branch {P}\n{G}:")
    else:
        k(f"s_cbranch_vccnz {P}\n{G}:")

def set_flag(k, vz, vone, srd, soff):
    k(f"s_mov_b64 exec, 1\nbuffer_store_dword v{vone}, v{vz}, s[{srd}:{srd+3}], s{soff} offen sc0 sc1\ns_mov_b64 exec, -1")


def last_wave_flag(k, vz, vone, vt, ldsoff, srd, soff, n=4):
    S = k.lab("NL")
    k(f"v_mov_b32 v{vt}, {ldsoff}\ns_mov_b64 exec, 1\nds_add_rtn_u32 v{vt}, v{vt}, v{vone}\ns_waitcnt lgkmcnt(0)\nv_readfirstlane_b32 s31, v{vt}")
    k(f"s_cmp_lg_u32 s31, {n-1}\ns_cbranch_scc1 {S}\nbuffer_store_dword v{vone}, v{vz}, s[{srd}:{srd+3}], s{soff} offen sc0 sc1")
    k(f"v_mov_b32 v{vt}, {ldsoff}\ns_waitcnt vmcnt(0)\nds_add_u32 v{vt}, v{vone}\n{S}:\ns_mov_b64 exec, -1")

def lds_signal(k, vt, ldsoff):
    k(f"v_mov_b32 v{vt}, {ldsoff}\nv_mov_b32 v{vt+1}, 1\nds_write_b32 v{vt}, v{vt+1}")

def wait_local(k, vt, ldsoff, n=int(os.environ.get('LWN', 5)), cnt=37):
    P, G = k.lab("LW"), k.lab("LG")
    k(f"s_mov_b32 s{cnt}, 0x400000\n{P}:\nv_mov_b32 v{vt}, {ldsoff}\nds_read_b32 v{vt}, v{vt}\ns_waitcnt lgkmcnt(0)\nv_readfirstlane_b32 s31, v{vt}")
    k(f"s_cmp_ge_u32 s31, {n}\ns_cbranch_scc1 {G}\ns_sub_u32 s{cnt}, s{cnt}, 1\ns_cmp_eq_u32 s{cnt}, 0\ns_cbranch_scc1 {G}\ns_sleep 1\ns_branch {P}\n{G}:")


from asmlib import Ins

def producer_loop2(k, N, R, P, issue, nxt, first=2, cnt=36, tail=None, final_barrier=True, gate=None):
    special = getattr(issue, "special_from", N)
    def do(st):
        if gate: gate(st)
        for t in issue(st, st % R): k(t)
    first = min(first, R)
    for st in range(first): do(st)
    k(f"s_waitcnt vmcnt({(first - 1) * P})\ns_barrier")
    for st in range(first, min(N, R)): do(st)
    issued = min(N, R)
    k(f"s_waitcnt vmcnt({(issued - 2) * P})\ns_barrier")
    k(f"s_waitcnt vmcnt({(issued - 3) * P})\ns_barrier")
    b = 2
    nsteady = N - R
    nloop = 0
    while gate is None and (nloop + 1) * R <= nsteady and R + (nloop + 1) * R - 1 < special: nloop += 1
    if nloop >= 2:
        L = k.lab("PL")
        k(f"s_mov_b32 s{cnt}, {nloop}\n{L}:")
        for i in range(R):
            do(R + i)
            k(f"s_waitcnt vmcnt({(R - 3) * P})\ns_barrier")
        k(f"s_sub_u32 s{cnt}, s{cnt}, 1\ns_cmp_lg_u32 s{cnt}, 0\ns_cbranch_scc1 {L}")
        b += nloop * R; issued += nloop * R
    while b < N - 1:
        if issued < N:
            do(issued); issued += 1
        k(f"s_waitcnt vmcnt({(issued - (b + 1) - 1) * P})")
        if b == N - 2 and tail: tail(k)
        k("s_barrier")
        b += 1
    if final_barrier: k("s_barrier")
    k(f"s_branch {nxt}")

def spread(main, fill):
    out = []; fi = 0; n = max(len(main) - 1, 1)
    for i, m in enumerate(main):
        out.append(m)
        tgt = min(len(fill), -(-len(fill) * (i + 1) // n))
        while fi < tgt: out.append(fill[fi]); fi += 1
    return out + fill[fi:]

def consumer_loop2(k, N, R, reads, mf, cnt=36, per=None, special_from=None, final_barrier=True, before_last=None, stamp0=None):
    special_from = N if special_from is None else special_from
    if os.environ.get("CONS") in ("nomfma", "none"): mf = lambda *a_: ["s_nop 0"]
    if os.environ.get("CONS") in ("noread", "none"):
        r0 = reads
        reads = lambda *a_: [t for t in r0(*a_) if not t.startswith("ds_")]
    pend = []
    def emit(items):
        for it in items:
            for line in it.split("\n"):
                x = Ins(line)
                if x.op and x.kind == "mfma":
                    last = -1
                    for n, d in enumerate(pend):
                        if d & x.src: last = n
                    if last >= 0:
                        keep = min(len(pend) - 1 - last, 15)
                        k(f"s_waitcnt lgkmcnt({keep})")
                        del pend[:len(pend) - keep]
                if x.op and x.kind == "ds": pend.append(set(x.dst))
                k(line)
    k("s_barrier")
    if stamp0 is not None: k(f"STAMP {stamp0}")
    emit(reads(0, 0, 0, 0))
    def stage(st, last=False):
        slot = st % R
        emit(spread(mf(st, 0, 0), reads(st, slot, 1, 1)))
        fill = []
        if not last:
            k("s_barrier")
            fill = reads(st + 1, (slot + 1) % R, 0, 0)
        elif final_barrier:
            k("s_waitcnt lgkmcnt(0)\ns_barrier"); del pend[:]
        emit(spread(mf(st, 1, 1), fill))
    nloop = 0
    while (nloop + 1) * R < N and (nloop + 1) * R < special_from: nloop += 1
    st = 0
    if nloop >= 2:
        L = k.lab("CL")
        entry = [set(d) for d in pend]
        k(f"s_mov_b32 s{cnt}, {nloop}\n{L}:")
        for i in range(R): stage(i)
        assert [set(d) for d in pend] == entry[len(entry) - len(pend):], (pend, entry)
        k(f"s_sub_u32 s{cnt}, s{cnt}, 1\ns_cmp_lg_u32 s{cnt}, 0\ns_cbranch_scc1 {L}")
        st = nloop * R
    while st < N:
        if st == N - 1 and before_last: before_last()
        stage(st, st == N - 1); st += 1

if os.environ.get("PIPE", "2") == "2":
    producer_loop, consumer_loop = producer_loop2, consumer_loop2
```

```python
from common import *
from ring2 import *
import math, os
XM = os.environ.get('MX', 'notouch,nopoison,noslow,fw').split(',')
WT = " sc0 sc1"
SC = " sc1"
FL = WS_ST + 196608
F1 = FL; F2 = F1 + 32768; F3 = F2 + 32768; F4 = F3 + 24576; F5 = F4 + 27648; FEND = F5 + 131072
assert FEND - WS_ST <= 64 * 8192
PB = int(os.environ.get('PB', WS_P))
LX = 61440
LCNT = 160768
WS_XS = 22 * MB
WS_CS = WS_XS + 16384
PX, PWQKV, PWO, PW1, PB1, PW2, PB2, POUT, PDBG, PWS = 64, 66, 68, 72, 74, 76, 78, 80, 82, 84
VL, VG, VI = 1, 3, 4
T0, T1, T2, T3 = 5, 6, 7, 8
DUMMY = 234

def pf_flat(k, srd_, sidx, nwg, nthreads, b0, b1, tmp, vt=0, s0=60):
    lines = (b1 - b0) // 128
    per = (lines + nwg - 1) // nwg
    n = (per + nthreads - 1) // nthreads
    k(f"s_mul_i32 s{s0}, s{sidx}, {per*128}\ns_add_u32 s{s0}, s{s0}, {b0}\nv_lshlrev_b32 v{tmp}, 7, v{vt}")
    for i in range(n):
        last = per - i * nthreads
        if last < nthreads:
            k(f"v_mov_b32 v{tmp+1}, 0x7ff00000\nv_cmp_gt_u32 vcc, {last}, v{vt}\nv_cndmask_b32 v{tmp}, v{tmp+1}, v{tmp}, vcc")
        k(f"buffer_load_dword v{DUMMY}, v{tmp}, s[{srd_}:{srd_+3}], s{s0} offen\ns_add_u32 s{s0}, s{s0}, {nthreads*128}")

PFDEF = dict(PF1B="w1:0:44", PF2="w1:44:92", PF3="w1:92:128,w2:0:28", PF4="w2:28:128")
def pf(k, name, sidx, nwg, nthreads, tmp, vt=0):
    spec = os.environ.get(name, PFDEF.get(name, ""))
    if not spec or spec == "0": return
    U = S_ * F_ * 2 // 128
    for it in spec.split(","):
        w, a_, b_ = it.split(":")
        srd(k, 52, PW1 if w == "w1" else PW2, S_ * F_ * 2)
        pf_flat(k, 52, sidx, nwg, nthreads, int(a_) * U, int(b_) * U, tmp, vt=vt)

def w1_addr(k, tmp):
    srd(k, 52, PW1, S_ * F_ * 2)
    k("s_lshr_b32 s60, s10, 1\ns_mul_i32 s60, s60, 9\ns_and_b32 s61, s10, 1\ns_lshl_b32 s61, s61, 2\ns_add_u32 s60, s60, s61\ns_lshl_b32 s60, s60, 8")
    k(f"v_lshrrev_b32 v{tmp}, 4, v0\nv_mul_u32_u24 v{tmp}, 9216, v{tmp}\nv_and_b32 v{tmp+1}, 15, v0\nv_lshl_add_u32 v{tmp}, v{tmp+1}, 7, v{tmp}")
    k(f"v_cmp_lt_u32 vcc, 9, v{tmp+1}\nv_mov_b32 v{tmp+1}, 0x7ff00000\nv_cndmask_b32 v{tmp}, v{tmp}, v{tmp+1}, vcc")

def w1_rows(k, sidx, rows, r0, _):
    w1_addr(k, 10)
    k(f"s_mul_i32 s61, s{sidx}, {rows*9216}\ns_add_u32 s60, s60, s61\ns_add_u32 s60, s60, {r0*9216}")
    for i in range((rows + 31) // 32):
        k(f"buffer_load_dword v{DUMMY}, v10, s[52:55], s60 offen\ns_add_u32 s60, s60, {32*9216}")

def w1slow(k):
    srd(k, 52, PW1, S_ * F_ * 2)
    k("s_lshr_b32 s60, s10, 1\ns_mul_i32 s60, s60, 9\ns_and_b32 s61, s10, 1\ns_lshl_b32 s61, s61, 2\ns_add_u32 s60, s60, s61")
    k("s_sub_u32 s61, 1, s60\ns_and_b32 s61, s61, 3\ns_add_u32 s60, s60, s61\ns_lshl_b32 s60, s60, 8\ns_add_u32 s60, s60, 128")
    k(f"s_sub_u32 s62, s11, 27\nv_mul_u32_u24 v10, 5, v0\nv_add_u32 v10, s62, v10\nv_mul_u32_u24 v10, 9216, v10")
    k(f"buffer_load_dword v{DUMMY}, v10, s[52:55], s60 offen\ns_add_u32 s60, s60, 1024\ns_cmp_eq_u32 s61, 0\ns_cselect_b32 s54, s54, 0")
    k(f"buffer_load_dword v{DUMMY}, v10, s[52:55], s60 offen")

def ids16(k):
    k(f"v_lshrrev_b32 v{VG}, 4, v{VL}\nv_and_b32 v{VI}, 15, v{VL}")

def p1(k, NXT):
    R = 4; STG = 34816; N = 9; XO = 18432
    PROD = k.lab("P1PROD"); PF = k.lab("P1PF"); PX_ = k.lab("P1PX")
    k("s_and_b32 s24, s10, 3\ns_lshl_b32 s24, s24, 2\ns_and_b32 s25, s11, 3\ns_add_u32 s24, s24, s25")
    k("s_lshr_b32 s25, s10, 2\ns_mul_i32 s25, s25, 6\ns_lshr_b32 s29, s11, 2\ns_add_u32 s25, s25, s29")
    ids16(k)
    def touch():
        k(f"v_mul_u32_u24 v{T0}, 4682, v{VL}\nv_lshrrev_b32 v{T0}, 16, v{T0}")
        k(f"v_mul_u32_u24 v{T1}, 14, v{T0}\nv_sub_u32 v{T1}, v{VL}, v{T1}")
        k(f"v_lshrrev_b32 v{T2}, 1, v{T0}\nv_mul_u32_u24 v{T2}, 62, v{T2}\nv_add_u32 v{T0}, v{T0}, v{T2}")
        k(f"v_mul_u32_u24 v{T0}, 3456, v{T0}\nv_lshl_add_u32 v{T0}, v{T1}, 7, v{T0}\nv_lshlrev_b32 v{T1}, 7, v{VL}")
        k(f"s_add_u32 s30, s28, 1\ns_mul_i32 s30, s30, {128*3456}\ns_mul_i32 s31, s11, {2*3456}\ns_add_u32 s30, s30, s31\ns_lshr_b32 s31, s10, 2\ns_mul_i32 s31, s31, {13*128}\ns_add_u32 s30, s30, s31")
        k(f"s_and_b32 s31, s10, 3\ns_mul_i32 s31, s31, {512*1152}\ns_mul_i32 s29, s11, {16*1152}\ns_add_u32 s31, s31, s29\ns_mul_i32 s29, s28, {36*128}\ns_add_u32 s31, s31, s29")
        k("s_waitcnt lgkmcnt(0)")
        srd(k, 12, PX, S_ * D_ * 2)
        srd(k, 16, PWQKV, D_ * 1728 * 2)
        if 'notouch' in XM: return
        k("s_mov_b32 exec_hi, 0xf")
        k(f"buffer_load_dword v{DUMMY}, v{T1}, s[12:15], s31 offen")
        k("s_mov_b32 exec_hi, 0xffffff")
        k(f"buffer_load_dword v{DUMMY}, v{T0}, s[16:19], s30 offen")
        k("s_mov_b32 exec_hi, -1")
    k(f"s_cmp_ge_u32 s11, 24\ns_cbranch_scc1 {PF}")
    k(f"s_cmp_ge_u32 s28, 4\ns_cbranch_scc1 {PROD}")
    k("s_lshr_b32 s26, s25, 2\ns_and_b32 s27, s25, 3")
    VTR, VXR, VC, ZD, XF, WF = 10, 12, 16, 18, 20, 36
    ACC = WF + 72
    CSR = ACC + 72; STR = CSR + 36
    assert STR + 16 <= DUMMY
    k(f"v_bfe_u32 v{T0}, v{VL}, 2, 2\nv_lshl_add_u32 v{T0}, v{VG}, 2, v{T0}\nv_mul_u32_u24 v{T0}, 288, v{T0}")
    k(f"v_and_b32 v{T1}, 3, v{VL}\nv_lshl_add_u32 v{VTR}, v{T1}, 3, v{T0}\nv_mul_u32_u24 v{T1}, 72, v{T1}\nv_add3_u32 v{VTR+1}, v{T0}, v{T1}, 32")
    k(f"v_lshrrev_b32 v{T0}, 1, v{VI}\nv_lshrrev_b32 v{T1}, 1, v{VG}\nv_xor_b32 v{T0}, v{T0}, v{T1}\nv_lshlrev_b32 v{T0}, 4, v{T0}\nv_lshl_add_u32 v{T0}, v{VI}, 7, v{T0}")
    k(f"v_and_b32 v{T1}, 1, v{VG}\nv_lshl_add_u32 v{T0}, v{T1}, 3, v{T0}")
    k(f"s_lshl_b32 s30, s28, 12\ns_add_u32 s30, s30, {XO}\nv_add_u32 v{VXR}, s30, v{T0}")
    for q in range(1, 4): k(f"v_xor_b32 v{VXR+q}, {32*q}, v{VXR}")
    for r in range(72): k(f"v_mov_b32 v{ACC+r}, 0")
    k(f"v_mov_b32 v{VC}, 0")
    touch()
    srd(k, 20, PWS, WS_SIZE)
    srd(k, 56, PDBG, 256)
    k(f"s_mul_i32 s50, s25, {9*PS}\ns_lshl_b32 s30, s24, 2\ns_add_u32 s30, s30, s28\ns_lshl_b32 s49, s30, 7\ns_lshl_b32 s30, s30, 10\ns_add_u32 s50, s50, s30")
    k(f"s_add_u32 s49, s49, {WS_XS}\ns_mul_i32 s51, s25, 576\ns_add_u32 s51, s51, {WS_CS}")
    k(f"s_lshl_b32 s48, s27, 4\ns_add_u32 s48, s48, s24\ns_lshl_b32 s48, s48, 2\ns_add_u32 s48, s48, s26\ns_lshl_b32 s48, s48, 7\ns_add_u32 s48, s48, {F1}")
    first = [True]
    coff = [72 * (T >> 1) + 40 * (T & 1) for T in range(8)]
    def body(vor):
        first[0] = True
        def side():
            OK = k.lab("ZOK")
            if not os.environ.get("STG_STAMP"): k("STAMP 13")
            k(f"s_waitcnt vmcnt(0)\nv_cmp_gt_u32 vcc, 64, v{ZD}\ns_mov_b32 s31, 0\ns_nop 3\ns_cbranch_vccz {OK}")
            poll(k, VC, ZD, 1, 56, 31, want=64)
            k(f"{OK}:")
            if not vor:
                k(f"v_lshlrev_b32 v{VC}, 4, v{VG}\nv_mul_u32_u24 v{VC+1}, 144, v{VG}\nv_lshlrev_b32 v{ZD}, 2, v{VI}")
                for tt in range(2):
                    k(f"buffer_load_dword v{STR+2*tt}, v{ZD}, s[20:23], s49 offen offset:{tt*64}{SC}")
                k("s_add_u32 s49, s49, 8192")
                for tt in range(2):
                    k(f"buffer_load_dword v{STR+2*tt+1}, v{ZD}, s[20:23], s49 offen offset:{tt*64}{SC}")
                for T in range(9):
                    k(f"buffer_load_dwordx4 {v(CSR+4*T,4)}, v{VC+(T==8)}, s[20:23], s51 offen offset:{2*coff[T] if T < 8 else 64}{SC}")
            else:
                k(f"v_lshlrev_b32 v{VC}, 2, v{VI}\nv_lshrrev_b32 v{VC+1}, 2, v{VI}\nv_mul_u32_u24 v{VC+1}, 128, v{VC+1}\nv_add_u32 v{VC+1}, v{VC+1}, v{VC}\nv_lshlrev_b32 v{ZD}, 4, v{VG}")
                for hf in range(2):
                    for tt in range(2):
                        k(f"buffer_load_dwordx4 {v(STR+tt*8+hf*4,4)}, v{ZD}, s[20:23], s49 offen offset:{tt*64}{SC}")
                    if hf == 0: k("s_add_u32 s49, s49, 8192")
                for T in range(9):
                    k(f"buffer_load_dword v{CSR+T}, v{VC+(T==8)}, s[20:23], s51 offen offset:{2*coff[T] if T < 8 else 64}{SC}")
        def reads(st, slot, ks, rs):
            out = []
            if ks == 0 and not first[0]:
                d = STG if slot else -(R - 1) * STG
                regs = list(range(VXR, VXR + 4)) + [VTR, VTR + 1]
                out += [f"v_add_u32 v{r}, {d}, v{r}" if d > 0 else f"v_subrev_u32 v{r}, {-d}, v{r}" for r in regs]
            first[0] = False
            for tt in range(2):
                for hf in range(2):
                    out.append(f"ds_read_b64 {v(XF+rs*8+tt*4+hf*2,2)}, v{VXR+2*ks+hf} offset:{tt*2048}")
            for j in range(9):
                for hf in range(2):
                    out.append(f"ds_read_b64_tr_b16 {v(WF+rs*36+j*4+hf*2,2)}, v{VTR+(j==8)} offset:{ks*9216+hf*4608+(coff[j] if j < 8 else 0)}")
            if slot == 3 and ks == 1 and not (os.environ.get('STG_STAMP') and st == 3):
                L = k.lab("ZS")
                out.append(f"s_cmp_lg_u32 s36, 1\ns_cbranch_scc1 {L}\nbuffer_load_dword v{ZD}, v{VC}, s[56:59], 0 offen sc0 sc1\n{L}:")
            return out
        def mf(st, ks, rs):
            g = []
            for j in range(9):
                wf = v(WF + rs * 36 + j * 4, 4)
                for tt in range(2):
                    xf = v(XF + rs * 8 + tt * 4, 4)
                    ac = v(ACC + (j * 2 + tt) * 4, 4)
                    g.append(f"v_mfma_f32_16x16x32_bf16 {ac}, {xf}, {wf}, {ac}" if vor else f"v_mfma_f32_16x16x32_bf16 {ac}, {wf}, {xf}, {ac}")
            return g
        consumer_loop(k, N, R, reads, mf, per=[2] * 8 + [1], final_barrier=False, before_last=side, stamp0=12)
        k("STAMP 1")
        qs = 18 ** -0.5 * math.log2(math.e)
        OUT = XF; VM0 = VTR
        k(f"v_lshlrev_b32 v{VM0}, 4, v{VL}\ns_waitcnt vmcnt(0)")
        if not vor:
            k(f"s_cmp_eq_u32 s26, 0\ns_cselect_b32 s31, {f32(qs)}, 1.0")
            for tt in range(2): k(f"v_mul_f32 v{STR+2*tt+1}, s31, v{STR+2*tt+1}")
        sw = "32" if vor else "16"
        def fin(j):
            po = OUT + (j % 4) * 4
            k(f"v_permlane{sw}_swap_b32 v{po}, v{po+2}\nv_permlane{sw}_swap_b32 v{po+1}, v{po+3}")
            k(f"buffer_store_dwordx4 {v(po,4)}, v{VM0}, s[20:23], s50 offen{WT}\ns_add_u32 s50, s50, {PS}")
        for j in range(9):
            o = OUT + (j % 4) * 4
            for tt in range(2):
                ac = ACC + (j * 2 + tt) * 4
                for h2 in range(2):
                    if not vor:
                        k(f"v_pk_fma_f32 {v(ac+2*h2,2)}, {v(STR+2*tt,2)}, {v(CSR+4*j+2*h2,2)}, {v(ac+2*h2,2)} op_sel_hi:[0,1,1] neg_lo:[1,0,0] neg_hi:[1,0,0]")
                    else:
                        c = CSR + (j & ~1); sel = j & 1
                        k(f"v_pk_fma_f32 {v(ac+2*h2,2)}, {v(STR+tt*8+2*h2,2)}, {v(c,2)}, {v(ac+2*h2,2)} op_sel:[0,{sel},0] op_sel_hi:[1,{sel},1] neg_lo:[1,0,0] neg_hi:[1,0,0]")
            for tt in range(2):
                ac = ACC + (j * 2 + tt) * 4
                for h2 in range(2):
                    if not vor: k(f"v_pk_mul_f32 {v(ac+2*h2,2)}, {v(ac+2*h2,2)}, {v(STR+2*tt,2)} op_sel:[0,1] op_sel_hi:[1,1]")
                    else: k(f"v_pk_mul_f32 {v(ac+2*h2,2)}, {v(ac+2*h2,2)}, {v(STR+tt*8+4+2*h2,2)}")
            for tt in range(2):
                ac = ACC + (j * 2 + tt) * 4
                k(f"v_cvt_pk_bf16_f32 v{o+2*tt}, v{ac}, v{ac+1}\nv_cvt_pk_bf16_f32 v{o+2*tt+1}, v{ac+2}, v{ac+3}")
            if j > 0: fin(j - 1)
        fin(8)
        k(f"v_mov_b32 v{T0}, 0\nv_mov_b32 v{T1}, 1\ns_waitcnt vmcnt(0)")
        last_wave_flag(k, T0, T1, T2, LCNT, 20, 48)
        k(f"s_branch {NXT[0]}")
    LV = k.lab("VOR")
    k(f"s_cmp_eq_u32 s26, 2\ns_cbranch_scc1 {LV}")
    body(False)
    k(f"{LV}:")
    body(True)
    k(f"{PROD}:")
    ra, rb = [int(t) for t in os.environ.get("ROT1", "0,0").split(",")]
    k(f"s_and_b32 s38, s11, 3\ns_mul_i32 s38, s38, {ra}\ns_lshr_b32 s39, s11, 2\ns_mul_i32 s39, s39, {rb}\ns_lshr_b32 s38, s38, 2\ns_lshr_b32 s39, s39, 2\ns_add_u32 s38, s38, s39")
    k("s_sub_u32 s39, s38, 9\ns_cmp_ge_u32 s38, 9\ns_cselect_b32 s38, s39, s38")
    k(f"s_and_b32 s29, s28, 1\ns_cmp_ge_u32 s28, 6\ns_cbranch_scc1 {PX_}")
    VD = 10
    def adv(reg, step):
        return [f"s_add_u32 s{reg}, s{reg}, {step}\ns_sub_u32 s39, s{reg}, {9*step}\ns_add_u32 s38, s38, 1\ns_cmp_eq_u32 s38, 9\ns_cselect_b32 s{reg}, s39, s{reg}"]
    k(f"s_mov_b32 s30, {3456-288}")
    for q in range(9):
        k(f"v_add_u32 v{T0}, {q*64}, v{VL}\nv_mul_u32_u24 v{T1}, 3641, v{T0}\nv_lshrrev_b32 v{T1}, 16, v{T1}")
        k(f"v_lshlrev_b32 v{T0}, 4, v{T0}\nv_mad_u32_u24 v{VD+q}, v{T1}, s30, v{T0}")
    k(f"s_mul_i32 s33, s25, 288\ns_mul_i32 s30, s29, {32*3456}\ns_add_u32 s33, s33, s30\ns_mul_i32 s34, s29, 9216\ns_mul_i32 s30, s38, {64*3456}\ns_add_u32 s33, s33, s30")
    k("s_waitcnt lgkmcnt(0)")
    srd(k, 16, PWQKV, D_ * 1728 * 2)
    srd(k, 20, PWS, WS_SIZE)
    def tail(kk):
        k("v_subrev_u32 v40, 256, v0")
        pf(k, "PF1T", 2, 192, 256, 42, vt=40)
    producer_loop(k, N, R, 9, lambda st, slot: [dma(34, slot * STG + q * 1024, VD + q, 16, 33, ' nt' if st < int(os.environ.get('NT1', 0)) else '') for q in range(9)] + adv(33, 64 * 3456), NXT[1], final_barrier=False, tail=tail, first=int(os.environ.get('FIRST1', 2)))
    k(f"{PX_}:")
    for q in range(2):
        k(f"v_lshrrev_b32 v{T0}, 3, v{VL}\nv_add_u32 v{T0}, {8*q}, v{T0}")
        k(f"v_bfe_u32 v{T1}, v{T0}, 1, 3\nv_and_b32 v{T2}, 7, v{VL}\nv_xor_b32 v{T1}, v{T1}, v{T2}\nv_lshlrev_b32 v{T1}, 4, v{T1}")
        k(f"v_mul_u32_u24 v{T0}, 1152, v{T0}\nv_add_u32 v{VD+q}, v{T0}, v{T1}")
    for q in range(2, 8): k(f"v_add_u32 v{VD+q}, {16*1152}, v{VD+q-2}")
    k("s_lshl_b32 s32, s24, 7\ns_lshl_b32 s30, s29, 6\ns_add_u32 s32, s32, s30\ns_mul_i32 s32, s32, 1152")
    k(f"s_lshl_b32 s35, s29, 13\ns_add_u32 s35, s35, {XO}\ns_lshl_b32 s30, s38, 7\ns_add_u32 s32, s32, s30")
    k("s_waitcnt lgkmcnt(0)")
    srd(k, 12, PX, S_ * D_ * 2)
    srd(k, 20, PWS, WS_SIZE)
    producer_loop(k, N, R, 8, lambda st, slot: [dma(35, slot * STG + q * 1024, VD + q, 12, 32, ' nt' if st < int(os.environ.get('NT1', 0)) else '') for q in range(8)] + adv(32, 128), NXT[1], final_barrier=False, tail=tail, first=int(os.environ.get('FIRST1', 2)))
    k(f"{PF}:")
    XA, WA, SM, CA = 12, 32, 52, 56
    NT_ = k.lab("NT")
    k(f"s_cmp_ge_u32 s28, 4\ns_cbranch_scc1 {NT_}")
    touch()
    k(f"{NT_}:\ns_sub_u32 s29, s2, 192")
    k(f"v_lshrrev_b32 v{T0}, 4, v0\nv_mul_u32_u24 v{T0}, 1152, v{T0}\nv_lshl_add_u32 v{T0}, v{VI}, 4, v{T0}")
    k(f"v_add_u32 v{T1}, 1024, v{T0}\nv_mov_b32 v{T2}, 0x7ff00000\nv_cmp_gt_u32 vcc, 8, v{VI}\nv_cndmask_b32 v{T1}, v{T2}, v{T1}, vcc")
    k(f"v_lshrrev_b32 v{T2}, 2, v0\nv_mul_u32_u24 v{T2}, 3456, v{T2}\nv_and_b32 v{T3}, 3, v0\nv_lshl_add_u32 v{T2}, v{T3}, 4, v{T2}")
    k(f"s_mul_i32 s30, s29, {32*1152}\ns_lshl_b32 s31, s29, 6\ns_cmp_ge_u32 s29, 54\ns_cselect_b32 s31, 0x7000000, s31")
    k("s_waitcnt lgkmcnt(0)")
    srd(k, 12, PX, S_ * D_ * 2)
    srd(k, 16, PWQKV, D_ * 1728 * 2)
    for q in range(5):
        k(f"buffer_load_dwordx4 {v(XA+4*q,4)}, v{T0 if q < 4 else T1}, s[12:15], s30 offen" + (f" offset:{q*256}" if q < 4 else ""))
    for q in range(5):
        k(f"buffer_load_dwordx4 {v(WA+4*q,4)}, v{T2}, s[16:19], s31 offen\ns_add_u32 s31, s31, {128*3456}")
    srd(k, 20, PWS, WS_SIZE)
    srd(k, 56, PDBG, 256)
    k(f"s_lshl_b32 s32, s29, 13\ns_add_u32 s32, s32, {WS_ST}\nv_lshlrev_b32 v{T3}, 4, v0")
    for r in range(4): k(f"v_mov_b32 v{CA+8+r}, 0")
    k(f"buffer_store_dwordx4 {v(CA+8,4)}, v{T3}, s[20:23], s32 offen{WT}")
    k(f"v_mov_b32 v{SM}, 0\nv_mov_b32 v{SM+1}, 0\nv_mov_b32 v{SM+2}, 0x3f803f80")
    k("s_waitcnt vmcnt(6)\nSTAMP 1")
    n0 = len(k.L)
    pf(k, "PF1", 29, 64, 512, 70)
    n1 = sum(1 for l in k.L[n0:] if l.startswith("buffer_load"))
    for r in range(20): k(f"v_dot2c_f32_bf16 v{SM}, v{XA+r}, v{SM+2}\nv_dot2c_f32_bf16 v{SM+1}, v{XA+r}, v{XA+r}")
    k(f"s_waitcnt vmcnt({1 + n1})")
    for q in range(5):
        for r in range(4):
            p = WA + 4 * q + r
            if q == 0: k(f"v_lshlrev_b32 v{CA+2*r}, 16, v{p}\nv_and_b32 v{CA+2*r+1}, 0xffff0000, v{p}")
            else: k(f"v_lshlrev_b32 v{T0}, 16, v{p}\nv_and_b32 v{T1}, 0xffff0000, v{p}\nv_add_f32 v{CA+2*r}, v{CA+2*r}, v{T0}\nv_add_f32 v{CA+2*r+1}, v{CA+2*r+1}, v{T1}")
    for sh in (8, 4, 2, 1):
        for r in range(2): k(f"v_add_f32_dpp v{SM+r}, v{SM+r}, v{SM+r} row_ror:{sh} row_mask:0xf bank_mask:0xf")
        if sh >= 4:
            for r in range(8): k(f"v_add_f32_dpp v{CA+r}, v{CA+r}, v{CA+r} row_ror:{sh} row_mask:0xf bank_mask:0xf")
    for sw in ("16", "32"):
        for r in range(8): k(f"v_mov_b32 v{XA+r}, v{CA+r}")
        for r in range(8): k(f"v_permlane{sw}_swap_b32 v{CA+r}, v{XA+r}")
        for r in range(8): k(f"v_add_f32 v{CA+r}, v{CA+r}, v{XA+r}")
    k(f"s_lshl_b32 s30, s28, 7\nv_lshlrev_b32 v{T0}, 5, v{VL}\nv_add_u32 v{T0}, s30, v{T0}\ns_mov_b64 exec, 0xf")
    k(f"ds_write_b128 v{T0}, {v(CA,4)}\nds_write_b128 v{T0}, {v(CA+4,4)} offset:16\ns_mov_b64 exec, -1")
    k(f"s_mov_b32 s30, {f32(1.0/576)}\nv_mul_f32 v{SM}, s30, v{SM}\nv_mul_f32 v{SM+1}, s30, v{SM+1}\nv_fma_f32 v{SM+1}, -v{SM}, v{SM}, v{SM+1}")
    def rbf(r): k(f"v_cvt_pk_bf16_f32 v{r}, v{r}, v{r}\nv_and_b32 v{r}, 0xffff0000, v{r}")
    k(f"v_max_f32 v{SM+1}, 0, v{SM+1}")
    rbf(SM); rbf(SM + 1)
    k(f"v_add_f32 v{SM+1}, {f32(1e-5)}, v{SM+1}")
    rbf(SM + 1)
    k(f"v_sqrt_f32 v{SM+1}, v{SM+1}")
    rbf(SM + 1)
    k(f"v_rcp_f32 v{SM+1}, v{SM+1}")
    k(f"s_lshl_b32 s30, s29, 7\ns_add_u32 s30, s30, {WS_XS}\ns_add_u32 s31, s30, 8192\nv_lshrrev_b32 v{T0}, 4, v0\nv_lshlrev_b32 v{T0}, 2, v{T0}")
    k(f"v_cmp_eq_u32 vcc, 0, v{VI}\ns_and_saveexec_b64 s[62:63], vcc")
    k(f"buffer_store_dword v{SM}, v{T0}, s[20:23], s30 offen{WT}\nbuffer_store_dword v{SM+1}, v{T0}, s[20:23], s31 offen{WT}\ns_mov_b64 exec, -1")
    k("s_waitcnt lgkmcnt(0)\ns_barrier")
    NZ = k.lab("NZ"); NZ2 = k.lab("NZ")
    k(f"s_cmp_lg_u32 s28, 0\ns_cbranch_scc1 {NZ}\nv_lshlrev_b32 v{T0}, 2, v{VL}")
    for q in range(8): k(f"ds_read_b32 v{XA+q}, v{T0} offset:{q*128}")
    k(f"s_lshl_b32 s30, s29, 7\ns_add_u32 s30, s30, {WS_CS}\ns_waitcnt lgkmcnt(0)")
    for q in range(1, 8): k(f"v_add_f32 v{XA}, v{XA}, v{XA+q}")
    k(f"s_mov_b32 exec_hi, 0\nbuffer_store_dword v{XA}, v{T0}, s[20:23], s30 offen{WT}\ns_mov_b32 exec_hi, -1\n{NZ}:")
    k(f"v_mov_b32 v{T0}, 0\nv_mov_b32 v{T1}, 1\ns_waitcnt vmcnt(0)\nSTAMP 5\ns_barrier\ns_cmp_lg_u32 s28, 0\ns_cbranch_scc1 {NZ2}")
    k(f"s_mov_b64 exec, 1\nbuffer_atomic_add v{T1}, v{T0}, s[56:59], 0 offen sc1\ns_mov_b64 exec, -1\n{NZ2}:\ns_barrier")
    pf(k, "PF1B", 29, 64, 512, 66)
    k(f"s_branch {NXT[1]}")

def p2(k, ENT, NXT):
    LK8 = 24576; LV = 30720; REC = 1168; SEC = 36 * PS
    VH, VQ = 3, 4
    V16, VV, V8A = 5, 6, 7
    QM, Q8 = 8, 12
    KF, K8F, VF, O = 16, 28, 40, 56
    MX, MX2, TA, TB = 72, 73, 74, 75
    AK, AK8, AV = 76, 77, 78
    VV8, VK8 = 79, 2
    S0 = 80
    k(f"{ENT[1]}:\ns_waitcnt vmcnt(0)\ns_cmp_lg_u32 s28, 7\ns_cbranch_scc1 {ENT[0]}")
    srd(k, 56, PDBG, 256)
    k(f"v_mov_b32 v{TA}, 0\ns_mov_b32 s31, 0")
    poll(k, TA, TB, 1, 56, 31, want=64)
    k(f"{ENT[0]}:")
    k("STAMP 2")
    k("s_lshl_b32 s24, s10, 1\ns_and_b32 s25, s11, 1\ns_add_u32 s24, s24, s25\ns_lshr_b32 s25, s11, 1")
    k(f"v_lshrrev_b32 v{VH}, 5, v{VL}\nv_and_b32 v{VQ}, 31, v{VL}")
    k("s_lshr_b32 s26, s28, 2\ns_and_b32 s27, s28, 3")
    k(f"v_lshlrev_b32 v{V16}, 4, v{VL}")
    k(f"v_mul_u32_u24 v{VV}, {PS}, v{VH}\nv_lshl_add_u32 v{VV}, v{VQ}, 4, v{VV}")
    k(f"s_lshr_b32 s47, s24, 2\ns_and_b32 s31, s24, 3\ns_mul_i32 s34, s47, 9\ns_lshl_b32 s32, s31, 1\ns_add_u32 s44, s32, s34\ns_add_u32 s32, s44, s26\ns_mul_i32 s32, s32, {PS}")
    k(f"s_add_u32 s34, s34, 8\ns_mul_i32 s34, s34, {PS}\ns_mul_i32 s44, s44, {PS}\ns_add_u32 s44, s44, {2*SEC}")
    k("s_lshr_b32 s30, s31, 1\ns_lshl_b32 s30, s30, 9\ns_add_u32 s41, s34, s30")
    k(f"s_and_b32 s30, s31, 1\ns_lshl_b32 s30, s30, 3\nv_lshlrev_b32 v{V8A}, 4, v{VQ}\nv_add_u32 v{V8A}, s30, v{V8A}")
    k(f"s_lshl_b32 s45, s31, 6\ns_add_u32 s45, s45, s34\ns_add_u32 s45, s45, {2*SEC}")
    k(f"v_lshrrev_b32 v{TA}, 2, v{VL}\nv_lshlrev_b32 v{TA}, 8, v{TA}\nv_and_b32 v{TB}, 3, v{VL}\nv_lshl_add_u32 v{VV8}, v{TB}, 4, v{TA}")
    k(f"v_lshlrev_b32 v{VK8}, 4, v{VQ}\nv_lshl_add_u32 v{VK8}, v{VH}, 10, v{VK8}")
    k("s_lshl_b32 s33, s25, 2\ns_mul_i32 s30, s27, 3\ns_add_i32 s35, s33, s30\ns_sub_i32 s35, s35, 8")
    k("s_mul_i32 s31, s26, 12\ns_add_u32 s31, s31, s30\ns_lshl_b32 s46, s31, 10")
    k(f"s_lshl_b32 s30, s28, 1\ns_add_i32 s30, s30, s33\ns_sub_i32 s30, s30, 8\ns_max_i32 s30, s30, 0\ns_lshl_b32 s30, s30, 10\ns_add_u32 s33, s33, s27")
    k(f"s_lshl_b32 s39, s33, 10\ns_add_u32 s40, s39, s41\ns_add_u32 s39, s39, s32\ns_add_u32 s41, s41, s30\ns_add_u32 s41, s41, {SEC}\ns_add_u32 s38, s32, {SEC}")
    k(f"s_lshl_b32 s42, s28, 10\ns_add_u32 s42, s42, {LK8}")
    k(f"s_mul_i32 s43, s28, 3\ns_lshl_b32 s36, s25, 3\ns_add_i32 s36, s36, s43\ns_sub_i32 s36, s36, 16\ns_mul_i32 s43, s43, {REC}\ns_add_u32 s43, s43, {LV}")
    NEG = f32(-1e30)
    k(f"v_lshlrev_b32 v{TA}, 2, v{VH}\nv_sub_u32 v{TA}, v{VQ}, v{TA}\nv_mov_b32 v{TB}, {NEG}")
    for b in range(4):
        for r in range(4): k(f"v_cmp_gt_i32 s[{86+2*r}:{87+2*r}], {8*b+r}, v{TA}")
        for r in range(4): k(f"v_cndmask_b32 v{S0+4*b+r}, v{TB}, 0, s[{86+2*r}:{87+2*r}]")
        for r in range(4): k(f"v_cndmask_b32 v{S0+128+4*b+r}, 0, v{TB}, s[{86+2*r}:{87+2*r}]")
    k(f"s_mul_i32 s30, s26, 12\ns_add_u32 s30, s30, s27\ns_lshl_b32 s30, s30, 10\nv_add_u32 v{AK}, s30, v{V16}")
    k(f"s_lshl_b32 s30, s27, 9\ns_add_u32 s30, s30, {LK8}\nv_add_u32 v{AK8}, s30, v{V8A}")
    for q in range(3):
        k(f"v_mov_b32 v{K8F+q*4+2}, 0\nv_mov_b32 v{K8F+q*4+3}, 0")
    k(f"v_mov_b32 v{Q8+2}, 0\nv_mov_b32 v{Q8+3}, 0")
    k(f"s_lshl_b32 s30, s26, 9\nv_lshlrev_b32 v{AV}, 8, v{VH}\nv_lshl_add_u32 v{AV}, v{VQ}, 4, v{AV}\nv_add_u32 v{AV}, s30, v{AV}")
    k(f"s_lshl_b32 s30, s26, 5\ns_add_u32 s30, s30, {1024-256}\nv_lshlrev_b32 v{TA}, 6, v{VH}\nv_lshl_add_u32 v{TA}, v{VQ}, 4, v{TA}\nv_add_u32 v{TA}, s30, v{TA}")
    k(f"v_cmp_lt_u32 vcc, 15, v{VQ}\nv_cmp_lt_u32 s[86:87], 17, v{VQ}\nv_mov_b32 v{MX2}, 1152\nv_cndmask_b32 v{AV}, v{AV}, v{TA}, vcc\nv_cndmask_b32 v{AV}, v{AV}, v{MX2}, s[86:87]")
    k(f"s_mul_i32 s30, s27, {2*REC}\ns_add_u32 s30, s30, {LV}\nv_add_u32 v{AV}, s30, v{AV}")
    for q in range(3):
        k(f"s_add_i32 s30, s35, {q}\ns_max_i32 s30, s30, 0\ns_lshl_b32 s30, s30, 10\ns_add_u32 s{86+q}, s30, s38")
        k(f"s_add_i32 s30, s36, {q}\ns_max_i32 s30, s30, 0\ns_lshl_b32 s30, s30, 9\ns_add_u32 s{89+q}, s30, s44\ns_add_u32 s{92+q}, s30, s45")
    SO = k.lab("SONE")
    k(f"s_cmp_lg_u32 s28, 7\ns_cbranch_scc1 {SO}")
    if 'nogate' not in XM:
        NG = k.lab("NG")
        k(f"s_cmp_ge_u32 s2, 192\ns_cbranch_scc1 {NG}")
        wait_local(k, TA, LCNT)
        k(f"{NG}:")
    k(f"s_lshl_b32 s30, s47, 13\ns_lshl_b32 s31, s25, 9\ns_add_u32 s30, s30, s31\ns_add_u32 s30, s30, {F1-1024}")
    k(f"s_mov_b64 exec, -1\nv_lshlrev_b32 v{TA}, 7, v{VL}\ns_movk_i32 s31, 0x760\ns_cmp_eq_u32 s25, 0\ns_cselect_b32 s31, 0x700, s31\ns_cmp_ge_u32 s25, 2\ns_cselect_b32 exec_lo, 0x766, s31\ns_mov_b32 exec_hi, 0")
    poll(k, TA, MX, 1, 20, 30)
    k(f"s_mov_b64 exec, -1\n{SO}:\ns_barrier")
    k("STAMP 3")
    SK = k.lab("SK8")
    k(f"s_mov_b32 m0, s42\ns_cmp_ge_u32 s28, 6\ns_cbranch_scc1 {SK}")
    k(f"buffer_load_dwordx4 v{VK8}, s[20:23], s41 offen{SC} lds\n{SK}:")
    for q in range(3): k(dma(46, q * 1024, V16, 20, 86 + q, SC))
    k(f"buffer_load_dwordx4 {v(QM,4)}, v{V16}, s[20:23], s39 offen{SC}")
    k(f"buffer_load_dwordx2 {v(Q8,2)}, v{V8A}, s[20:23], s40 offen{SC}")
    for q in range(3):
        k(dma(43, q * REC, VV, 20, 89 + q, SC))
        k(f"s_add_u32 m0, s43, {q*REC+1024}\ns_mov_b64 exec, 0xff\nbuffer_load_dwordx4 v{VV8}, s[20:23], s{92+q} offen{SC} lds\ns_mov_b64 exec, -1")
    SO = k.lab("SONE")
    k(f"s_cmp_lg_u32 s28, 7\ns_cbranch_scc1 {SO}")
    for r in range(4): k(f"v_mov_b32 v{KF+r}, 0x3f803f80")
    k(f"v_mul_u32_u24 v{TA}, {REC}, v{VL}\ns_mov_b64 exec, 0xffffff")
    k(f"ds_write_b128 v{TA}, {v(KF,4)} offset:{LV+1152}")
    k(f"s_mov_b64 exec, -1\n{SO}:")
    srd(k, 48, PWO, D_ * D_ * 2)
    k(f"v_mov_b32 v{MX}, v{TB}\ns_sub_i32 s35, 8, s33")
    k("s_cmp_eq_u32 s26, 0\ns_cselect_b32 s38, -1, 0\ns_cselect_b32 s40, 0, -1\ns_mov_b32 s39, 0\ns_mov_b32 s41, 0")
    k("s_waitcnt vmcnt(6) lgkmcnt(0)")
    k(f"v_cndmask_b32 v{Q8}, 0, v{Q8}, s[38:39]\nv_cndmask_b32 v{Q8+1}, 0, v{Q8+1}, s[40:41]")
    k("s_barrier")
    def kread(j):
        return [f"ds_read_b128 {v(KF+(j%3)*4,4)}, v{AK} offset:{j*1024}", f"ds_read_b64 {v(K8F+(j%3)*4,2)}, v{AK8} offset:{j*512}"]
    def mx(j):
        return [f"v_max3_f32 v{MX}, v{MX}, v{S0+j*16+2*r}, v{S0+j*16+2*r+1}" for r in range(8)]
    if os.environ.get("P2S"): k("STAMP 12")
    if 'prio' in XM: k("s_setprio 0")
    for t in kread(0) + kread(1): k(t)
    inv = []
    for j in range(9):
        if j + 2 < 9:
            for t in kread(j + 2): k(t)
        sj = v(S0 + j * 16, 16)
        if j < 8:
            li, lb = k.lab("INV"), k.lab("BK")
            inv.append((j, li, lb))
            k(f"s_cmp_gt_i32 s35, {j}\ns_cbranch_scc1 {li}")
        k(f"s_waitcnt lgkmcnt({min(2, 8-j)*2})")
        k(f"v_mfma_f32_32x32x16_bf16 {sj}, {v(KF+(j%3)*4,4)}, {v(QM,4)}, {sj if j in (0, 8) else 0}")
        k(f"v_mfma_f32_32x32x16_bf16 {sj}, {v(K8F+(j%3)*4,4)}, {v(Q8,4)}, {sj}")
        if j < 8: k(f"{lb}:")
        if j >= 2:
            for t in mx(j - 2): k(t)
    for t in mx(7): k(t)
    k("s_waitcnt vmcnt(0)\ns_barrier")
    def vread(t): return f"ds_read_b128 {v(VF+(t%4)*4,4)}, v{AV} offset:{t*REC}"
    if os.environ.get("P2S"): k("STAMP 13")
    k(vread(0)); k(vread(1))
    side = []
    class Rec:
        def __init__(self): self.L = []
        def __call__(self, t): self.L.append(t)
        lab = staticmethod(k.lab)
    r = Rec()
    r(f"v_lshlrev_b32 v224, 7, v0\ns_mul_i32 s30, s11, {162*128}\nv_cmp_gt_u32 vcc, 162, v0\ns_and_saveexec_b64 s[44:45], vcc")
    r(f"buffer_load_dword v{DUMMY}, v224, s[48:51], s30 offen\ns_mov_b64 exec, s[44:45]")
    side.append("\n".join(r.L))
    r = Rec(); pf(r, "PF2", 2, 256, 512, 226); side.append("\n".join(r.L))
    r = Rec()
    XS = k.lab("XS")
    r(f"s_cmp_ge_u32 s2, 192\ns_cbranch_scc1 {XS}\ns_cmp_lt_u32 s28, 4\ns_cbranch_scc1 {XS}")
    srd(r, 12, PX, S_ * D_ * 2)
    r("s_lshl_b32 s30, s10, 2\ns_and_b32 s31, s11, 3\ns_add_u32 s30, s30, s31\ns_lshl_b32 s30, s30, 2\ns_and_b32 s31, s28, 3\ns_add_u32 s30, s30, s31\ns_mul_i32 s30, s30, 18432")
    r(f"s_mul_i32 s44, s31, 3072\ns_add_u32 s44, s44, {LX}\ns_lshr_b32 s31, s11, 2\ns_mul_i32 s31, s31, 192\ns_add_u32 s43, s30, s31\ns_movk_i32 s30, 960")
    for q in range(3):
        r(f"v_add_u32 v224, {q*64}, v{VL}\nv_mul_u32_u24 v225, 5462, v224\nv_lshrrev_b32 v225, 16, v225\nv_lshlrev_b32 v224, 4, v224\nv_mad_u32_u24 v224, v225, s30, v224")
        r(dma(44, q * 1024, 224, 12, 43))
    r(f"{XS}:")
    side.append("\n".join(r.L))
    for t in mx(8): k(t)
    k(f"v_mov_b32 v{MX2}, v{MX}\nv_permlane32_swap_b32 v{MX}, v{MX2}\nv_max_f32 v{MX}, v{MX}, v{MX2}")
    def soft(j):
        b = S0 + j * 16
        out = [f"v_sub_f32 v{b+r}, v{b+r}, v{MX}" for r in range(16)]
        out += [f"v_exp_f32 v{b+r}, v{b+r}" for r in range(16)]
        if 'trunc' in XM: out += [f"v_perm_b32 v{b+r}, v{b+2*r+1}, v{b+2*r}, s86" for r in range(8)]
        else: out += [f"v_cvt_pk_bf16_f32 v{b+r}, v{b+2*r}, v{b+2*r+1}" for r in range(8)]
        return out
    k("s_mov_b32 s86, 0x07060302")
    def pv(j):
        b = S0 + j * 16
        return [f"v_mfma_f32_32x32x16_bf16 {v(O,16)}, {v(VF+((2*j+s_)%4)*4,4)}, {v(b+4*s_,4)}, {v(O,16) if (j or s_) else 0}" for s_ in range(2)]
    if os.environ.get("P2S"): k("STAMP 14")
    for t in soft(0): k(t)
    for j in range(9):
        nxt = soft(j + 1) if j < 8 else []
        if j < 8:
            k(vread(2 * j + 2)); k(vread(2 * j + 3))
        p = pv(j)
        for t in nxt[:4]: k(t)
        k(f"s_waitcnt lgkmcnt({2 if j < 8 else 0})")
        k(p[0])
        for t in nxt[4:20]: k(t)
        if j < len(side) and side[j]: k(side[j])
        k(p[1])
        for t in nxt[20:]: k(t)
    k(f"s_lshl_b32 s34, s24, 1\ns_add_u32 s34, s34, s26\ns_mul_i32 s30, s34, {PS}\ns_lshl_b32 s31, s33, 10\ns_add_u32 s30, s30, s31\ns_add_u32 s30, s30, {WS_OM}")
    k(f"s_lshl_b32 s31, s34, 13\ns_lshl_b32 s34, s33, 7\ns_add_u32 s31, s31, s34\ns_add_u32 s31, s31, {WS_O8}\nv_lshlrev_b32 v{AK8}, 2, v{VQ}")
    if os.environ.get("P2S"): k("STAMP 15")
    if 'prio' in XM: k("s_setprio 0")
    k(f"v_rcp_f32 v{MX}, v{O+10}")
    for r in range(10): k(f"v_mul_f32 v{O+r}, v{O+r}, v{MX}")
    for r in range(5): k(f"v_cvt_pk_bf16_f32 v{KF+r}, v{O+2*r}, v{O+2*r+1}")
    k(f"buffer_store_dwordx4 {v(KF,4)}, v{V16}, s[20:23], s30 offen{WT}")
    k("s_mov_b32 exec_hi, 0")
    k(f"buffer_store_dword v{KF+4}, v{AK8}, s[20:23], s31 offen{WT}")
    k("s_mov_b32 exec_hi, -1")
    k(f"s_lshl_b32 s30, s25, 11\ns_lshl_b32 s31, s24, 7\ns_add_u32 s30, s30, s31\ns_add_u32 s30, s30, {F2}\nv_mov_b32 v{TA}, 0\nv_mov_b32 v{TB}, 1")
    k(f"s_waitcnt vmcnt(0)\ns_barrier\ns_cmp_lg_u32 s28, 6\ns_cbranch_scc1 {NXT}")
    set_flag(k, TA, TB, 20, 30)
    k(f"s_branch {NXT}")
    for j, li, lb in inv:
        k(f"{li}:")
        for r in range(16): k(f"v_mov_b32 v{S0+j*16+r}, v{TB}")
        k(f"s_branch {lb}")

def p3(k, ENT, NXT):
    R = 7; WS_ = 12288; WB = 73728; N = 9
    LAB = WB + R * WS_
    PF = k.lab("P3PF"); PROD = k.lab("P3PROD"); PO = k.lab("P3PO")
    k(f"{ENT}:\nSTAMP 4")
    k(f"s_cmp_ge_u32 s2, 192\ns_cbranch_scc1 {PF}")
    k("s_lshl_b32 s24, s10, 2\ns_and_b32 s25, s11, 3\ns_add_u32 s24, s24, s25\ns_lshr_b32 s25, s11, 2")
    ids16(k)
    V16 = 9
    k(f"v_lshlrev_b32 v{V16}, 4, v{VL}")
    k(f"s_cmp_ge_u32 s28, 4\ns_cbranch_scc1 {PROD}")
    k("s_lshr_b32 s26, s28, 1\ns_and_b32 s27, s28, 1")
    VTR, VAO, VAE = 10, 16, 18
    IDN, XR, ACC, AF, BF = 24, 28, 52, 76, 100
    k(f"v_and_b32 v{T1}, 1, v{VG}")
    k(f"v_bfe_u32 v{T0}, v{VL}, 2, 2\nv_lshl_add_u32 v{T0}, v{VG}, 2, v{T0}\nv_mul_u32_u24 v{T0}, 192, v{T0}")
    k(f"v_and_b32 v{T2}, 3, v{VL}\nv_lshl_add_u32 v{T0}, v{T2}, 3, v{T0}\nv_add_u32 v{T0}, {WB}, v{T0}")
    k("s_mul_i32 s30, s27, 3")
    for dt in range(3):
        k(f"s_add_u32 s31, s30, {dt}\nv_xor_b32 v{T2}, s31, v{T1}\nv_lshl_add_u32 v{VTR+dt}, v{T2}, 5, v{T0}\nv_add_u32 v{VTR+3+dt}, {4*WS_}, v{VTR+dt}")
    k(f"s_lshl_b32 s30, s26, 11\nv_add_u32 v{VAO}, s30, v{V16}\nv_add_u32 v{VAO+1}, 32768, v{VAO}")
    k(f"v_lshlrev_b32 v{T0}, 8, v{VG}\nv_lshl_add_u32 v{T0}, v{VI}, 2, v{T0}\nv_add_u32 v{VAE}, s30, v{T0}\nv_add_u32 v{VAE}, 65536, v{VAE}")
    k(f"v_lshlrev_b32 v{T0}, 3, v{VG}\nv_sub_u32 v{T0}, v{VI}, v{T0}\nv_mov_b32 v{T1}, 0x3f80\nv_mov_b32 v{T2}, 0x3f800000")
    for j2 in range(4):
        k(f"v_cmp_eq_u32 vcc, {2*j2}, v{T0}\nv_cmp_eq_u32 s[30:31], {2*j2+1}, v{T0}\nv_cndmask_b32 v{IDN+j2}, 0, v{T1}, vcc")
        k(f"v_cndmask_b32 v{IDN+j2}, v{IDN+j2}, v{T2}, s[30:31]")
    def reads(n):
        st, ks, rs = n >> 1, n & 1, n % 3
        slot = st % R
        out = []
        for tt in range(2):
            if st < 8: out.append(f"ds_read_b128 {v(AF+rs*8+tt*4,4)}, v{VAO+(st>>2)} offset:{(st&3)*8192+ks*4096+tt*1024}")
            else: out += [f"ds_read_b32 v{AF+rs*8+tt*4+q}, v{VAE} offset:{ks*4096+tt*1024+q*64}" for q in range(4)]
        for dt in range(3):
            for hf in range(2):
                out.append(f"ds_read_b64_tr_b16 {v(BF+rs*12+dt*4+hf*2,2)}, v{VTR+3*(slot//4)+dt} offset:{(slot%4)*WS_+ks*6144+hf*3072}")
        return out
    def mf(n):
        rs = n % 3
        return [f"v_mfma_f32_16x16x32_bf16 {v(ACC+(tt*3+dt)*4,4)}, {v(AF+rs*8+tt*4,4)}, {v(BF+rs*12+dt*4,4)}, {v(ACC+(tt*3+dt)*4,4)}"
                for tt in range(2) for dt in range(3)]
    k(f"s_mul_i32 s30, s26, 6144\ns_mul_i32 s31, s27, 96\ns_add_u32 s30, s30, s31\ns_add_u32 s30, s30, {LX}\nv_mul_u32_u24 v{T0}, 192, v{VI}\nv_and_b32 v{T1}, 16, v{VL}\nv_add3_u32 v{T0}, v{T0}, v{T1}, s30")
    for q in range(6): k(f"ds_read_b128 {v(XR+q*4,4)}, v{T0} offset:{(q//3)*3072+(q%3)*32}")
    k("s_waitcnt lgkmcnt(0)")
    for q in range(6):
        k(f"v_mfma_f32_16x16x32_bf16 {v(ACC+q*4,4)}, {v(XR+q*4,4)}, {v(IDN,4)}, 0")
    k("s_barrier")
    if os.environ.get("P3S"): k("STAMP 12")
    for t in reads(0) + reads(1): k(t)
    for n in range(18):
        if n in (2, 16): k("s_waitcnt lgkmcnt(0)\ns_barrier")
        elif n in (8, 12): k(f"s_waitcnt lgkmcnt({len(reads(n + 1))})\ns_barrier")
        elif n < 16: k(f"s_waitcnt lgkmcnt({len(reads(n + 1))})")
        if os.environ.get("P3S") and n in (8, 12): k(f"STAMP {13 + (n == 12)}")
        for t in interleave(mf(n), reads(n + 2) if n + 2 < 18 else [], 0, 2): k(t)
    k("STAMP 5")
    PK = XR; ST = AF
    for dt in range(3):
        for tt in range(2):
            ac = ACC + (tt * 3 + dt) * 4
            k(f"v_cvt_pk_bf16_f32 v{PK+dt*4+tt*2}, v{ac}, v{ac+1}\nv_cvt_pk_bf16_f32 v{PK+dt*4+tt*2+1}, v{ac+2}, v{ac+3}")
    for dt in range(3):
        for tt in range(2):
            for h2 in range(2):
                p = PK + dt * 4 + tt * 2 + h2
                x0 = ACC + (tt * 3 + dt) * 4 + 2 * h2
                k(f"v_lshlrev_b32 v{x0}, 16, v{p}\nv_and_b32 v{x0+1}, 0xffff0000, v{p}")
                sm, sq_ = ST + tt * 4 + 2 * h2, ST + 8 + tt * 4 + 2 * h2
                if dt == 0: k(f"v_pk_mul_f32 {v(sq_,2)}, {v(x0,2)}, {v(x0,2)}")
                else: k(f"v_pk_fma_f32 {v(sq_,2)}, {v(x0,2)}, {v(x0,2)}, {v(sq_,2)}")
                if dt == 1: k(f"v_pk_add_f32 {v(sm,2)}, {v(x0-4,2)}, {v(x0,2)}")
                if dt == 2: k(f"v_pk_add_f32 {v(sm,2)}, {v(sm,2)}, {v(x0,2)}")
    for sh in (8, 4, 2, 1):
        for r in range(16):
            k(f"v_add_f32_dpp v{ST+r}, v{ST+r}, v{ST+r} row_ror:{sh} row_mask:0xf bank_mask:0xf")
    SG = BF + 12
    for r in range(8): k(f"v_mov_b32 v{SG+2*r}, v{ST+r}\nv_or_b32 v{SG+2*r+1}, 0x80000000, v{ST+8+r}")
    k(f"s_lshl_b32 s31, s24, 1\ns_add_u32 s31, s31, s26")
    k(f"s_lshl_b32 s33, s31, 8\ns_add_u32 s33, s33, {WS_ST}")
    k(f"s_lshl_b32 s30, s25, 1\ns_add_u32 s30, s30, s27\ns_lshl_b32 s30, s30, 14\ns_add_u32 s30, s30, s33")
    k(f"v_cmp_eq_u32 s[38:39], 1, v{VI}\nv_cmp_eq_u32 s[40:41], 2, v{VI}\nv_cmp_eq_u32 s[42:43], 3, v{VI}\nv_cmp_gt_u32 vcc, 4, v{VI}")
    k(f"v_lshrrev_b32 v{T0}, 1, v{VI}\nv_lshlrev_b32 v{T0}, 7, v{T0}\nv_lshl_add_u32 v{T0}, v{VG}, 5, v{T0}\nv_and_b32 v{T1}, 1, v{VI}\nv_lshl_add_u32 v{T0}, v{T1}, 4, v{T0}")
    for q in range(1, 4):
        for r in range(4): k(f"v_cndmask_b32 v{SG+r}, v{SG+r}, v{SG+4*q+r}, s[{36+2*q}:{37+2*q}]")
    k(f"s_and_saveexec_b64 s[38:39], vcc\nbuffer_store_dwordx4 {v(SG,4)}, v{T0}, s[20:23], s30 offen{WT}\ns_mov_b64 exec, s[38:39]")
    VH = VTR
    k(f"v_lshlrev_b32 v{VH}, 4, v{VL}")
    k(f"s_mul_i32 s30, s25, 6\ns_mul_i32 s32, s27, 3\ns_add_u32 s30, s30, s32\ns_mul_i32 s30, s30, {PS}")
    k(f"s_lshl_b32 s32, s31, 10\ns_add_u32 s30, s30, s32\ns_add_u32 s32, s30, {WS_HN}\ns_add_u32 s30, s30, {WS_H}")
    k("s_mov_b32 s35, s30")
    VS = VTR + 1
    P = BF
    k(f"v_lshrrev_b32 v{T0}, 5, v{VL}\nv_mul_u32_u24 v{VS}, {6*16384}, v{T0}\nv_and_b32 v{T0}, 31, v{VL}\nv_lshl_add_u32 v{VS}, v{T0}, 3, v{VS}")
    for p in range(6): k(f"s_add_u32 s{40+p}, s33, {p*16384}")
    POLL = k.lab("POLL"); GO = k.lab("GO")
    k(f"s_mov_b32 s37, 0x40000" + ("" if 'nosw' in XM else "\ns_waitcnt vmcnt(0)") + f"\n{POLL}:")
    for p in range(6):
        k(f"buffer_load_dwordx2 {v(P+2*p,2)}, v{VS}, s[20:23], s{40+p} offen sc0 sc1")
    k("s_waitcnt vmcnt(0)")
    k(f"v_and_b32 v{T1}, v{P+1}, v{P+3}\nv_and_b32 v{T2}, v{P+5}, v{P+7}\nv_and_b32 v{T3}, v{P+9}, v{P+11}\nv_and_b32 v{T1}, v{T1}, v{T2}\nv_and_b32 v{T1}, v{T1}, v{T3}")
    k(f"v_cmp_le_i32 vcc, 0, v{T1}\ns_sub_u32 s37, s37, 1\ns_cmp_eq_u32 s37, 0\ns_cbranch_scc1 {GO}\ns_cbranch_vccz {GO}\ns_sleep 1\ns_branch {POLL}\n{GO}:")
    if os.environ.get("P3S"): k("STAMP 15")
    for dt in range(3):
        k(f"buffer_store_dwordx4 {v(PK+dt*4,4)}, v{VH}, s[20:23], s35 offen{WT}\ns_add_u32 s35, s35, {PS}")
    for p in range(1, 6):
        k(f"v_add_f32 v{P}, v{P}, v{P+2*p}\nv_add_f32 v{P+1}, v{P+1}, v{P+2*p+1}")
    k(f"v_mov_b32 v{P+2}, v{P}\nv_mov_b32 v{P+3}, v{P+1}")
    k(f"v_permlane32_swap_b32 v{P}, v{P+2}\nv_permlane32_swap_b32 v{P+1}, v{P+3}")
    k(f"v_add_f32 v{P}, v{P}, v{P+2}\nv_add_f32 v{P+1}, v{P+1}, v{P+3}")
    k(f"s_mov_b32 s34, {f32(1.0/576)}")
    mn, sq = P, P + 1
    k(f"v_mul_f32 v{mn}, s34, v{mn}\nv_mul_f32 v{sq}, s34, -v{sq}\nv_fma_f32 v{sq}, -v{mn}, v{mn}, v{sq}\nv_max_f32 v{sq}, 0, v{sq}")
    k(f"v_add_f32 v{P+2}, {f32(1e-5)}, v{sq}\nv_rsq_f32 v{P+2}, v{P+2}")
    k(f"v_mul_f32 v{sq}, v{sq}, v{P+2}\nv_mul_f32 v{sq}, v{sq}, v{P+2}\nv_add_f32 v{sq}, {f32(1e-5)}, v{sq}\nv_rsq_f32 v{sq}, v{sq}")
    k(f"v_mul_f32 v{P+2}, v{P+2}, v{sq}\nv_mul_f32 v{P+3}, -v{mn}, v{P+2}")
    k(f"s_lshl_b32 s33, s28, 8\ns_add_u32 s33, s33, {LAB}\nv_lshlrev_b32 v{T0}, 3, v{T0}\nv_add_u32 v{T0}, s33, v{T0}")
    k(f"ds_write_b64 v{T0}, {v(P+2,2)}")
    k(f"v_lshlrev_b32 v{T0}, 5, v{VG}\nv_add_u32 v{T0}, s33, v{T0}\ns_waitcnt lgkmcnt(0)")
    AB = ST
    for q in range(4):
        k(f"ds_read_b128 {v(AB+4*q,4)}, v{T0} offset:{(q>>1)*128+(q&1)*16}")
    k(f"s_lshl_b32 s30, s25, 12\ns_lshl_b32 s31, s24, 7\ns_add_u32 s30, s30, s31\ns_add_u32 s30, s30, {F3}\nv_mov_b32 v{T1}, 0\nv_mov_b32 v{T2}, 1")
    k("s_waitcnt lgkmcnt(0)")
    for dt in range(3):
        for tt in range(2):
            x0 = ACC + (tt * 3 + dt) * 4
            for r in range(4): k(f"v_fma_f32 v{x0+r}, v{x0+r}, v{AB+tt*8+2*r}, v{AB+tt*8+2*r+1}")
            k(f"v_cvt_pk_bf16_f32 v{PK+12+dt*4+tt*2}, v{x0}, v{x0+1}\nv_cvt_pk_bf16_f32 v{PK+12+dt*4+tt*2+1}, v{x0+2}, v{x0+3}")
        k(f"buffer_store_dwordx4 {v(PK+12+dt*4,4)}, v{VH}, s[20:23], s32 offen{WT}\ns_add_u32 s32, s32, {PS}")
    k("s_waitcnt vmcnt(0)")
    last_wave_flag(k, T1, T2, T3, LCNT + 4, 20, 30)
    k(f"s_branch {NXT}")
    k(f"{PROD}:\ns_and_b32 s29, s28, 1\ns_cmp_ge_u32 s28, 6\ns_cbranch_scc1 {PO}")
    VWD, VWE = 10, 16
    for q in range(6):
        k(f"v_add_u32 v{T0}, {q*64}, v{VL}")
        k(f"v_mul_u32_u24 v{T1}, 5462, v{T0}\nv_lshrrev_b32 v{T1}, 16, v{T1}")
        k(f"v_mul_u32_u24 v{T2}, 12, v{T1}\nv_sub_u32 v{T0}, v{T0}, v{T2}")
        k(f"v_bfe_u32 v{T2}, v{T1}, 2, 1\nv_lshlrev_b32 v{T2}, 1, v{T2}\nv_xor_b32 v{T0}, v{T0}, v{T2}\nv_lshlrev_b32 v{VWE+q}, 4, v{T0}")
        k(f"v_and_b32 v{T2}, 7, v{T1}")
        k(f"v_bfe_u32 v{T3}, v{T1}, 3, 1\nv_mad_u32_u24 v{T2}, v{T3}, 20, v{T2}")
        k(f"v_bfe_u32 v{T3}, v{T1}, 4, 1\nv_lshl_add_u32 v{T2}, v{T3}, 3, v{T2}")
        k(f"v_mul_u32_u24 v{T2}, 1152, v{T2}\nv_add_u32 v{VWD+q}, v{T2}, v{VWE+q}")
    k(f"s_mul_i32 s33, s25, 192\ns_mul_i32 s30, s29, {8*36*1152}\ns_add_u32 s39, s33, s30\ns_mul_i32 s30, s29, {36*1152}\ns_add_u32 s33, s33, s30")
    k(f"s_mul_i32 s35, s29, 6144\ns_add_u32 s35, s35, {WB}")
    srd(k, 16, PWO, D_ * D_ * 2)
    def issue_w(st):
        for q in range(6): k(dma(35, (st % R) * WS_ + q * 1024, (VWD if st < 8 else VWE) + q, 16, 33 if st < 8 else 39))
        k(f"s_add_u32 s33, s33, {72*1152}")
    for st in range(7): issue_w(st)
    for q in range(6):
        k(f"v_add_u32 v{T0}, {q*64}, v{VL}\nv_mul_u32_u24 v{T1}, 5462, v{T0}\nv_lshrrev_b32 v{T1}, 16, v{T1}\n"
          f"v_bfe_u32 v{T2}, v{T1}, 2, 2\nv_lshlrev_b32 v{T2}, 1, v{T2}\nv_bfe_u32 v{T3}, v{T1}, 4, 1\nv_add_u32 v{T2}, v{T2}, v{T3}\nv_mul_u32_u24 v{T2}, 36, v{T2}\n"
          f"v_and_b32 v{T3}, 3, v{T1}\nv_add3_u32 v{T2}, v{T2}, v{T3}, 16\nv_mul_u32_u24 v{T2}, 1152, v{T2}\nv_add_u32 v{VWE+q}, v{T2}, v{VWE+q}")
    k("s_waitcnt vmcnt(0)\ns_barrier\ns_barrier")
    for st in range(7, 9): issue_w(st)
    k(f"s_barrier\ns_waitcnt vmcnt(0)\ns_barrier\ns_barrier\ns_branch {NXT}")
    k(f"{PO}:")
    VO = 10
    k(f"v_lshrrev_b32 v{T0}, 1, v{VG}\nv_mul_u32_u24 v{T0}, {PS}, v{T0}\nv_and_b32 v{T1}, 1, v{VG}\nv_lshl_add_u32 v{T0}, v{T1}, 9, v{T0}\nv_lshl_add_u32 v{T0}, v{VI}, 4, v{T0}")
    k(f"v_lshrrev_b32 v{T1}, 2, v{VL}\nv_lshlrev_b32 v{T1}, 13, v{T1}\nv_and_b32 v{T2}, 3, v{VL}\nv_lshl_add_u32 v{T1}, v{T2}, 4, v{T1}")
    for q in range(4): k(f"v_add_u32 v{VO+q}, {(q>>1)*1024+(q&1)*256}, v{T0}\nv_add_u32 v{VO+4+q}, {q*64}, v{T1}")
    k(f"s_lshl_b32 s32, s24, 11\ns_mul_i32 s30, s29, {2*PS}\ns_add_u32 s32, s32, s30\ns_add_u32 s32, s32, {WS_OM}\ns_lshl_b32 s30, s29, 17")
    k(f"s_lshl_b32 s38, s24, 8\ns_add_u32 s38, s38, s30\ns_add_u32 s38, s38, {WS_O8}\ns_lshl_b32 s34, s29, 12")
    k(f"s_lshr_b32 s30, s24, 1\ns_lshl_b32 s30, s30, 11\ns_add_u32 s30, s30, {F2}\nv_lshlrev_b32 v{T0}, 7, v{VL}")
    W7, WD = k.lab("W7"), k.lab("WD")
    k(f"s_cmp_eq_u32 s28, 7\ns_cbranch_scc1 {W7}\ns_waitcnt vmcnt(0)\ns_mov_b64 exec, 0xffff")
    poll(k, T0, T1, 1, 20, 30)
    k("s_mov_b64 exec, -1")
    lds_signal(k, T0, LCNT + 20)
    k(f"s_branch {WD}\n{W7}:")
    wait_local(k, T0, LCNT + 20, n=1)
    k(f"{WD}:\nSTAMP 5")
    def issue_o(st):
        for q in range(4): k(dma(34, st * 8192 + q * 1024, VO + q + (4 if st == 8 else 0), 20, 32 if st < 8 else 38, SC))
        k(f"s_add_u32 s32, s32, {4*PS}")
    for st in range(5): issue_o(st)
    k("s_waitcnt vmcnt(12)\ns_barrier")
    for st in range(5, 9): issue_o(st)
    k(f"s_waitcnt vmcnt(16)\ns_barrier\ns_waitcnt vmcnt(8)\ns_barrier\ns_waitcnt vmcnt(0)\ns_barrier\ns_barrier\ns_branch {NXT}")
    k(f"{PF}:\ns_sub_u32 s29, s2, 192")
    if 'early3' in XM:
        NE = k.lab("NE")
        k(f"s_cmp_lt_u32 s11, 27\ns_cbranch_scc1 {NE}")
        w1slow(k)
        k(f"{NE}:")
    pf(k, "PF3", 29, 64, 512, 10)
    r1 = int(os.environ.get("L2W1", 0))
    if r1:
        k("s_sub_u32 s29, s11, 24")
        w1_rows(k, 29, r1 // 8, 0, 0)
    k(f"s_branch {NXT}")

def p4(k, ENT, NXT):
    STG = 28672; R = 4; N = 32
    PROD = k.lab("P4PROD"); PF = k.lab("P4PF"); PA = k.lab("P4PA")
    k(f"{ENT}:\nSTAMP 6")
    k(f"s_cmp_ge_u32 s11, 27\ns_cbranch_scc1 {PF}")
    k("s_mul_i32 s24, s11, 10923\ns_lshr_b32 s24, s24, 16\ns_mul_i32 s25, s24, 6\ns_sub_u32 s25, s11, s25")
    k("s_and_b32 s29, s10, 1\ns_mul_i32 s30, s29, 5\ns_add_u32 s24, s24, s30")
    k("s_mul_i32 s30, s29, 3\ns_add_u32 s30, s30, s25")
    k("s_cmp_ge_u32 s11, 24\ns_cselect_b32 s24, 4, s24\ns_cselect_b32 s25, s30, s25\ns_mov_b32 s47, s24")
    k("s_lshr_b32 s30, s10, 1\ns_mul_i32 s30, s30, 9\ns_add_u32 s24, s24, s30")
    ids16(k)
    k(f"s_cmp_ge_u32 s28, 4\ns_cbranch_scc1 {PROD}")
    k("s_lshr_b32 s26, s28, 1\ns_and_b32 s27, s28, 1")
    VTR, VHR, B1, ACC, WF, HF = 12, 20, 26, 36, 84, 116
    srd(k, 16, PB1, F_ * 2)
    k(f"v_lshlrev_b32 v{T0}, 3, v{VG}\ns_lshl_b32 s30, s24, 8\ns_lshl_b32 s31, s26, 7\ns_add_u32 s30, s30, s31")
    for f4 in range(4):
        k(f"buffer_load_dwordx2 {v(B1+2*f4,2)}, v{T0}, s[16:19], s30 offen offset:{f4*32}")
    k(f"v_bfe_u32 v{T0}, v{VL}, 2, 2\nv_lshl_add_u32 v{T0}, v{VG}, 2, v{T0}")
    k(f"v_and_b32 v{T1}, 7, v{T0}\nv_lshlrev_b32 v{T0}, 8, v{T0}\nv_and_b32 v{T2}, 3, v{VL}\nv_lshl_add_u32 v{T0}, v{T2}, 3, v{T0}")
    k("s_lshl_b32 s30, s26, 2")
    for f4 in range(4):
        k(f"s_add_u32 s31, s30, {f4}\nv_xor_b32 v{T2}, s31, v{T1}\nv_lshl_add_u32 v{VTR+f4}, v{T2}, 5, v{T0}\nv_add_u32 v{VTR+4+f4}, {2*STG}, v{VTR+f4}")
    k(f"s_mul_i32 s30, s27, 3072\ns_add_u32 s30, s30, 16384\nv_lshlrev_b32 v{VHR}, 4, v{VL}\nv_add_u32 v{VHR}, s30, v{VHR}\nv_add_u32 v{VHR+1}, {2*STG}, v{VHR}")
    for r in range(48): k(f"v_mov_b32 v{ACC+r}, 0")
    k(f"s_mul_i32 s31, s25, 6\ns_mul_i32 s38, s27, 3\ns_add_u32 s31, s31, s38\ns_mul_i32 s31, s31, {144*1024}")
    k(f"s_lshl_b32 s38, s24, 12\ns_add_u32 s31, s31, s38\ns_lshl_b32 s38, s26, 11\ns_add_u32 s31, s31, s38\ns_add_u32 s40, s31, {WS_U}")
    k(f"s_lshr_b32 s30, s10, 1\ns_mul_i32 s30, s30, 6\ns_add_u32 s30, s30, s25\ns_mul_i32 s30, s30, 9\ns_add_u32 s30, s30, s47\ns_lshl_b32 s30, s30, 7\ns_add_u32 s41, s30, {F4}")
    def reads(st, slot, ks, rs):
        hi = slot >> 1; off = (slot & 1) * STG
        out = []
        for f4 in range(4):
            for hf in range(2):
                out.append(f"ds_read_b64_tr_b16 {v(WF+rs*16+f4*4+hf*2,2)}, v{VTR+4*hi+f4} offset:{off+ks*8192+hf*4096}")
            if f4 < 3:
                out.append(f"ds_read_b128 {v(HF+rs*12+f4*4,4)}, v{VHR+hi} offset:{off+ks*6144+f4*1024}")
        return out
    def mf(st, ks, rs):
        return [f"v_mfma_f32_16x16x32_bf16 {v(ACC+(f4*3+dt)*4,4)}, {v(WF+rs*16+f4*4,4)}, {v(HF+rs*12+dt*4,4)}, {v(ACC+(f4*3+dt)*4,4)}"
                for f4 in range(4) for dt in range(3)]
    consumer_loop(k, N, R, reads, mf, per=1, stamp0=None if (os.environ.get('P3S') or os.environ.get('P2S')) else 14)
    k("STAMP 7")
    c1 = -2.0 * math.sqrt(2.0 / math.pi) * math.log2(math.e)
    c2 = c1 * 0.044715
    CC = VTR
    k(f"v_mov_b32 v{CC}, {f32(c2)}\nv_mov_b32 v{CC+1}, {f32(c1)}")
    BB = WF
    k("s_waitcnt vmcnt(0)")
    for f4 in range(4):
        for h2 in range(2):
            k(f"v_lshlrev_b32 v{BB+f4*4+h2*2}, 16, v{B1+f4*2+h2}\nv_and_b32 v{BB+f4*4+h2*2+1}, 0xffff0000, v{B1+f4*2+h2}")
    k(f"v_lshlrev_b32 v{T0}, 4, v{VL}")
    TT = WF + 16; PKD = HF
    for dt in range(3):
        for pr in range(2):
            xb = [ACC + ((2 * pr + h) * 3 + dt) * 4 for h in range(2)]
            xs = [xb[h] + r for h in range(2) for r in range(4)]
            for h in range(2):
                for h2 in range(2): k(f"v_pk_add_f32 {v(xb[h]+2*h2,2)}, {v(xb[h]+2*h2,2)}, {v(BB+(2*pr+h)*4+2*h2,2)}")
            for h in range(2):
                for h2 in range(2): k(f"v_pk_mul_f32 {v(TT+4*h+2*h2,2)}, {v(xb[h]+2*h2,2)}, {v(xb[h]+2*h2,2)}")
            for n in range(4): k(f"v_pk_fma_f32 {v(TT+2*n,2)}, {v(TT+2*n,2)}, {v(CC,2)}, {v(CC,2)} op_sel:[0,0,1] op_sel_hi:[1,0,1]")
            for h in range(2):
                for h2 in range(2): k(f"v_pk_mul_f32 {v(TT+4*h+2*h2,2)}, {v(TT+4*h+2*h2,2)}, {v(xb[h]+2*h2,2)}")
            for n in range(8): k(f"v_exp_f32 v{TT+n}, v{TT+n}")
            for n in range(4): k(f"v_pk_add_f32 {v(TT+2*n,2)}, {v(TT+2*n,2)}, 1.0 op_sel_hi:[1,0]")
            for n in range(8): k(f"v_rcp_f32 v{TT+n}, v{TT+n}")
            for h in range(2):
                for h2 in range(2): k(f"v_pk_mul_f32 {v(xb[h]+2*h2,2)}, {v(xb[h]+2*h2,2)}, {v(TT+4*h+2*h2,2)}")
            o = PKD + (dt * 2 + pr) * 4
            for n in range(4): k(f"v_cvt_pk_bf16_f32 v{o+n}, v{xs[2*n]}, v{xs[2*n+1]}")
            k(f"buffer_store_dwordx4 {v(o,4)}, v{T0}, s[20:23], s40 offen offset:{pr*1024}{WT}")
        k(f"s_add_u32 s40, s40, {144*1024}")
    k(f"v_mov_b32 v{T1}, 0\nv_mov_b32 v{T2}, 1\ns_waitcnt vmcnt(0)")
    last_wave_flag(k, T1, T2, T3, LCNT + 8, 20, 41)
    k(f"s_branch {NXT}")
    k(f"{PROD}:\ns_and_b32 s26, s28, 1\ns_cmp_ge_u32 s28, 6\ns_cbranch_scc1 {PA}")
    VD = 10
    for q in range(2):
        k(f"v_add_u32 v{T0}, {4*q}, v{VG}")
        k(f"v_lshlrev_b32 v{T1}, 1, v{T0}\nv_xor_b32 v{T1}, v{T1}, v{VI}\nv_lshlrev_b32 v{T1}, 4, v{T1}")
        k(f"v_mul_u32_u24 v{T0}, 9216, v{T0}\nv_add_u32 v{VD+q}, v{T0}, v{T1}")
    for q in range(2, 8): k(f"v_add_u32 v{VD+q}, {8*9216}, v{VD+q-2}")
    k(f"s_lshl_b32 s32, s24, 8\ns_mul_i32 s30, s26, {32*9216}\ns_add_u32 s32, s32, s30\ns_lshl_b32 s34, s26, 13")
    srd(k, 12, PW1, S_ * F_ * 2)
    producer_loop(k, N, R, 8, lambda st, slot: [dma(34, slot * STG + q * 1024, VD + q, 12, 32) for q in range(8)] + [f"s_add_u32 s32, s32, {64*9216}"], NXT, first=int(os.environ.get("FIRST4", 2)))
    k(f"{PA}:")
    k(f"v_lshlrev_b32 v{VD}, 4, v{VL}")
    for q in range(1, 6): k(f"v_add_u32 v{VD+q}, {PS}, v{VD+q-1}")
    k(f"s_mul_i32 s33, s25, {6*PS}\ns_lshl_b32 s30, s26, 10\ns_add_u32 s33, s33, s30\ns_add_u32 s33, s33, {WS_HN}")
    k("s_mul_i32 s35, s26, 6144\ns_add_u32 s35, s35, 16384")
    k(f"s_lshl_b32 s30, s25, 12\ns_add_u32 s30, s30, {F3}\nv_lshlrev_b32 v{T0}, 7, v{VL}")
    W7, WD = k.lab("W7"), k.lab("WD")
    k(f"s_cmp_eq_u32 s28, 7\ns_cbranch_scc1 {W7}")
    if 'nogate' not in XM:
        NG, NG2 = k.lab("NG"), k.lab("NG")
        k(f"s_cmp_ge_u32 s2, 192\ns_cbranch_scc1 {NG}")
        wait_local(k, 20, LCNT + 4)
        k(f"s_branch {NG2}\n{NG}:\ns_mov_b64 exec, 1")
        poll(k, T0, 20, 1, 20, 30, sleep=8)
        k(f"s_mov_b64 exec, -1\n{NG2}:")
    k("s_mov_b32 exec_hi, 0")
    poll(k, T0, 20, 1, 20, 30)
    k("s_mov_b32 exec_hi, -1")
    lds_signal(k, 20, LCNT + 24)
    k(f"s_branch {WD}\n{W7}:")
    wait_local(k, 20, LCNT + 24, n=1)
    k(f"{WD}:\nSTAMP 7")
    producer_loop(k, N, R, 6, lambda st, slot: [dma(35, slot * STG + q * 1024, VD + q, 20, 33, SC) for q in range(6)] + ["s_add_u32 s33, s33, 2048"], NXT)
    k(f"{PF}:\ns_sub_u32 s29, s2, 216")
    pf(k, "PF4", 29, 40, 512, 10)
    if 'early4' in XM: w1slow(k)
    if 'nopoison' not in XM:
        srd(k, 56, PDBG, 256)
        k(f"s_mul_i32 s30, s29, 196608\ns_add_u32 s30, s30, {WS_P}\nv_lshlrev_b32 v10, 4, v0\nv_mov_b32 v12, -1\nv_mov_b32 v13, -1\nv_mov_b32 v14, -1\nv_mov_b32 v15, -1")
        for i in range(24): k(f"buffer_store_dwordx4 v[12:15], v10, s[20:23], s30 offen{WT}\ns_add_u32 s30, s30, 8192")
        NZ = k.lab("NZ")
        k(f"v_mov_b32 v16, 4\nv_mov_b32 v17, 1\ns_waitcnt vmcnt(0)\ns_barrier\ns_cmp_lg_u32 s28, 0\ns_cbranch_scc1 {NZ}")
        k(f"s_mov_b64 exec, 1\nbuffer_atomic_add v17, v16, s[56:59], 0 offen sc1\ns_mov_b64 exec, -1\n{NZ}:")
    if 'noslow' not in XM:
        def gated(flag_off, lines_code):
            NP = k.lab("NP")
            k(f"s_cmp_lg_u32 s28, 0\ns_cbranch_scc1 {NP}\ns_mov_b32 s30, {flag_off}\nv_mov_b32 v12, 0\ns_mov_b64 exec, 1")
            poll(k, 12, 13, 1, 20, 30, sleep=8)
            k(f"s_mov_b64 exec, -1\n{NP}:\ns_barrier")
            lines_code()
        def w2slow():
            srd(k, 52, PW2, S_ * F_ * 2)
            k(f"s_lshr_b32 s60, s10, 1\ns_mul_i32 s60, s60, {1152*4096}\ns_and_b32 s61, s10, 1\ns_lshl_b32 s61, s61, 11\ns_add_u32 s60, s60, s61\ns_add_u32 s60, s60, 384")
            k(f"s_sub_u32 s62, s11, 27\nv_lshrrev_b32 v10, 1, v0\nv_mul_u32_u24 v10, 5, v10\nv_add_u32 v10, s62, v10\nv_lshlrev_b32 v10, 12, v10\nv_and_b32 v11, 1, v0\nv_lshl_add_u32 v10, v11, 10, v10")
            k(f"v_cmp_gt_u32 vcc, {2*231}, v0\nv_mov_b32 v11, 0x7ff00000\nv_cndmask_b32 v10, v11, v10, vcc")
            k(f"buffer_load_dword v{DUMMY}, v10, s[52:55], s60 offen")
        gated(F3, lambda: w1slow(k))
        if 'now2' not in XM: gated(F4 + 128 * 2, w2slow)
    if os.environ.get("JIT4"):
        s0, sw = [int(t) for t in os.environ["JIT4"].split(",")]
        k(f"s_mov_b32 s30, {F3}\nv_lshlrev_b32 v12, 7, v0\nv_cmp_gt_u32 vcc, 192, v0\ns_and_saveexec_b64 s[62:63], vcc")
        NP = k.lab("NP")
        k(f"s_cbranch_execz {NP}")
        poll(k, 12, 13, 1, 20, 30)
        k(f"{NP}:\ns_mov_b64 exec, -1\ns_barrier")
        w1_addr(k, 10)
        k("s_sub_u32 s29, s11, 27")
        k(f"v_lshrrev_b32 v12, 4, v0\nv_mul_u32_u24 v12, {PS}, v12\nv_and_b32 v13, 15, v0\nv_lshl_add_u32 v12, v13, 7, v12")
        k(f"v_add_u32 v13, {32*PS}, v12\nv_mov_b32 v14, 0x7ff00000\nv_cmp_gt_u32 vcc, 64, v0\nv_cndmask_b32 v13, v14, v13, vcc")
        k(f"s_lshl_b32 s61, s29, 11\ns_add_u32 s61, s61, {WS_HN + s0*2048}\ns_mul_i32 s62, s29, {64*9216}\ns_add_u32 s60, s60, s62\ns_add_u32 s60, s60, {s0*64*9216}")
        for st in range(s0, 32, 5):
            k(f"buffer_load_dword v{DUMMY}, v12, s[20:23], s61 offen\nbuffer_load_dword v{DUMMY}, v13, s[20:23], s61 offen\ns_add_u32 s61, s61, {5*2048}")
            if st + 4 >= sw:
                k(f"buffer_load_dword v{DUMMY}, v10, s[52:55], s60 offen\ns_add_u32 s62, s60, {32*9216}\nbuffer_load_dword v{DUMMY}, v10, s[52:55], s62 offen")
            k(f"s_add_u32 s60, s60, {5*64*9216}")
    k(f"s_branch {NXT}")

def p5(k, ENT):
    STG = 34816; R = 4; N = 18
    PROD = k.lab("P5PROD"); PA = k.lab("P5PA"); FIN = k.lab("FIN")
    k(f"{ENT}:\nSTAMP 8")
    k("s_lshr_b32 s26, s10, 1\ns_and_b32 s25, s11, 3\ns_lshr_b32 s24, s11, 2")
    if 'nomap5' not in XM:
        k("s_sub_u32 s30, s10, 5\ns_cmp_lt_u32 s30, 2\ns_cselect_b32 s30, 7, 6\ns_add_u32 s24, s24, s30\ns_and_b32 s24, s24, 7")
    k("s_and_b32 s29, s10, 1\ns_lshl_b32 s29, s29, 3\ns_add_u32 s24, s24, s29\ns_and_b32 s29, s26, 1")
    ids16(k)
    k(f"s_cmp_ge_u32 s28, 4\ns_cbranch_scc1 {PROD}")
    VTR = 10; VUR = VTR + 2 * R; B2 = VUR + R
    IDN, HR, UF = 24, 28, 48
    WF = UF + 72; ACC = WF + 16
    srd(k, 16, PB2, S_ * 2)
    srd(k, 40, POUT, S_ * D_ * 2)
    k(f"s_lshl_b32 s30, s24, 8\ns_lshl_b32 s31, s28, 6\ns_add_u32 s30, s30, s31\ns_lshl_b32 s31, s29, 5\ns_add_u32 s30, s30, s31\nv_lshlrev_b32 v{T0}, 1, v{VI}")
    k(f"buffer_load_ushort v{B2}, v{T0}, s[16:19], s30 offen")
    k(f"v_lshlrev_b32 v{T3}, 4, v{VL}")
    k(f"s_mul_i32 s49, s25, {9*PS}\ns_lshl_b32 s32, s24, 12\ns_add_u32 s49, s49, s32\ns_lshl_b32 s32, s28, 10\ns_add_u32 s49, s49, s32\ns_add_u32 s49, s49, {WS_H}")
    k(f"s_lshr_b32 s32, s26, 1\ns_mul_i32 s32, s32, {5*PS}\ns_add_u32 s49, s49, s32")
    k(f"v_bfe_u32 v{T0}, v{VL}, 2, 2\nv_lshl_add_u32 v{T0}, v{VG}, 2, v{T0}")
    k(f"v_and_b32 v{T1}, 7, v{T0}\nv_lshlrev_b32 v{T0}, 8, v{T0}\nv_and_b32 v{T2}, 3, v{VL}\nv_lshl_add_u32 v{T0}, v{T2}, 3, v{T0}")
    k("s_lshl_b32 s30, s28, 1\ns_add_u32 s30, s30, s29")
    for l in range(2):
        k(f"s_xor_b32 s31, s30, {l}\nv_xor_b32 v{T2}, s31, v{T1}\nv_lshl_add_u32 v{VTR+l}, v{T2}, 5, v{T0}")
        for sl in range(1, R): k(f"v_add_u32 v{VTR+2*sl+l}, {sl*STG}, v{VTR+l}")
    k(f"v_lshlrev_b32 v{VUR}, 4, v{VL}\nv_add_u32 v{VUR}, 16384, v{VUR}")
    for sl in range(1, R): k(f"v_add_u32 v{VUR+sl}, {sl*STG}, v{VUR}")
    k(f"v_lshlrev_b32 v{T0}, 2, v{VG}\nv_sub_u32 v{T0}, v{VI}, v{T0}\nv_mov_b32 v{T1}, 0x3f80\nv_mov_b32 v{T2}, 0x3f800000")
    k("s_cmp_eq_u32 s29, 0\ns_cselect_b64 s[38:39], -1, 0")
    for j2 in range(2):
        k(f"v_cmp_eq_u32 vcc, {2*j2}, v{T0}\nv_cndmask_b32 v{UF}, 0, v{T1}, vcc")
        k(f"v_cmp_eq_u32 vcc, {2*j2+1}, v{T0}\nv_cndmask_b32 v{UF}, v{UF}, v{T2}, vcc")
        k(f"v_cndmask_b32 v{IDN+j2}, 0, v{UF}, s[38:39]\nv_cndmask_b32 v{IDN+2+j2}, v{UF}, 0, s[38:39]")
    for r in range(72): k(f"v_mov_b32 v{ACC+r}, 0")
    k(f"s_lshl_b32 s32, s24, 2\ns_add_u32 s32, s32, s25")
    k(f"s_mul_i32 s33, s32, {48*2560}\ns_mul_i32 s30, s28, 2560\ns_add_u32 s33, s33, s30\ns_add_u32 s33, s33, {PB}")
    for x in (1, 2, 3):
        k(f"s_xor_b32 s30, s26, {x}\ns_sub_u32 s31, s26, s30\ns_sub_u32 s31, s31, 1\ns_and_b32 s31, s31, 3")
        k(f"s_mul_i32 s30, s30, 3\ns_add_u32 s30, s30, s31\ns_mul_i32 s30, s30, {4*2560}\ns_add_u32 s{44+x}, s30, s33")
    k(f"s_mul_i32 s30, s26, {12*2560}\ns_add_u32 s33, s33, s30")
    k(f"s_lshl_b32 s35, s32, 11\ns_lshl_b32 s30, s28, 9\ns_add_u32 s35, s35, s30\ns_add_u32 s35, s35, {F5}\ns_lshl_b32 s30, s26, 7\ns_add_u32 s34, s30, s35")
    k(f"s_lshl_b32 s48, s24, 7\ns_lshl_b32 s31, s28, 5\ns_add_u32 s48, s48, s31\ns_lshl_b32 s31, s29, 4\ns_add_u32 s48, s48, s31\ns_mul_i32 s48, s48, 1152\ns_mul_i32 s31, s25, 288\ns_add_u32 s48, s48, s31")
    POIS = 'nopoison' not in XM
    PZ = ACC + 73
    srd(k, 56, PDBG, 256)
    k(f"v_mov_b32 v{PZ-1}, 4")
    firstr = [True]
    def reads(st, slot, ks, rs):
        out = []
        for l in range(2):
            for hf in range(2):
                out.append(f"ds_read_b64_tr_b16 {v(WF+rs*8+l*4+hf*2,2)}, v{VTR+2*slot+l} offset:{ks*8192+hf*4096}")
        for d in range(9):
            out.append(f"ds_read_b128 {v(UF+rs*36+d*4,4)}, v{VUR+slot} offset:{ks*9216+d*1024}")
        if firstr[0]:
            firstr[0] = False
            if POIS: out.append(f"buffer_load_dword v{PZ}, v{PZ-1}, s[56:59], 0 offen sc0 sc1")
            for d in range(5): out.append(f"buffer_load_dwordx4 {v(HR+4*d,4)}, v{T3}, s[20:23], s49 offen{SC}\ns_add_u32 s49, s49, {PS}")
        return out
    def mf(st, ks, rs):
        return [f"v_mfma_f32_16x16x32_bf16 {v(ACC+(d*2+l)*4,4)}, {v(UF+rs*36+d*4,4)}, {v(WF+rs*8+l*4,4)}, {v(ACC+(d*2+l)*4,4)}"
                for d in range(9) for l in range(2)]
    consumer_loop(k, N, R, reads, mf, per=1, final_barrier=False, stamp0=None if (os.environ.get('P3S') or os.environ.get('P2S')) else 15)
    k("STAMP 9")
    V16, V8, VZ, VO = VTR, VTR + 1, VTR + 2, VTR + 3
    k(f"v_lshlrev_b32 v{V16}, 4, v{VL}\nv_lshlrev_b32 v{V8}, 3, v{VL}\nv_mov_b32 v{VZ}, 0\nv_mov_b32 v{T2}, 1\ns_waitcnt vmcnt(0)")
    if POIS:
        OK = k.lab("POK")
        k(f"v_cmp_gt_u32 vcc, 40, v{PZ}\ns_mov_b32 s31, 0\ns_nop 3\ns_cbranch_vccz {OK}")
        poll(k, PZ - 1, PZ, 1, 56, 31, want=40)
        k(f"{OK}:")
    GA, GB = [0, 1, 2, 3, 4], [5, 6, 7, 8]
    def epi(aa):
        own, oth = (GA, GB) if aa == 0 else (GB, GA)
        PK = UF
        n = 0
        for x, grp, l in ((2, oth, 0), (3, oth, 1), (1, own, 1)):
            for c in range(0, len(grp), 2):
                ds = grp[c:c + 2]
                for e, d in enumerate(ds):
                    ac = ACC + (d * 2 + l) * 4
                    k(f"v_cvt_pk_bf16_f32 v{PK+n+2*e}, v{ac}, v{ac+1}\nv_cvt_pk_bf16_f32 v{PK+n+2*e+1}, v{ac+2}, v{ac+3}")
                if len(ds) == 2: k(f"buffer_store_dwordx4 {v(PK+n,4)}, v{V16}, s[20:23], s{44+x} offen offset:{c*512}{WT}")
                else: k(f"buffer_store_dwordx2 {v(PK+n,2)}, v{V8}, s[20:23], s{44+x} offen offset:{c*512}{WT}")
                n += 4
        for e, d in enumerate(own):
            ac = v(ACC + d * 8, 4)
            k(f"v_mfma_f32_16x16x32_bf16 {ac}, {v(HR+4*e,4)}, {v(IDN,4)}, {ac}")
        k(f"v_lshlrev_b32 v{B2}, 16, v{B2}")
        k(f"v_mul_u32_u24 v{VO}, 1152, v{VI}\nv_lshl_add_u32 v{VO}, v{VG}, 3, v{VO}")
        RR = UF + 40
        chunks = [own[c:c + 2] for c in range(0, len(own), 2)]
        k(f"s_add_u32 s30, s33, {4*2560}\ns_add_u32 s31, s33, {8*2560}")
        def inbox():
            regs = []
            for ci, ds in enumerate(chunks):
                for sl, so in enumerate((33, 30, 31)):
                    r = RR + (ci * 3 + sl) * 4
                    if len(ds) == 2: k(f"buffer_load_dwordx4 {v(r,4)}, v{V16}, s[20:23], s{so} offen offset:{ci*1024} sc0 sc1")
                    else: k(f"buffer_load_dwordx2 {v(r,2)}, v{V8}, s[20:23], s{so} offen offset:{ci*1024} sc0 sc1")
                    regs += list(range(r, r + 2 * len(ds)))
            return regs
        def addb2():
            for d in own:
                for h2 in range(2): k(f"v_pk_add_f32 {v(ACC+d*8+2*h2,2)}, {v(ACC+d*8+2*h2,2)}, {v(B2-(B2&1),2)} op_sel:[0,{B2&1}] op_sel_hi:[1,{B2&1}]")
        if POIS:
            addb2()
            PL, GO = k.lab("PP"), k.lab("PG")
            k(f"s_mov_b32 s37, 0x40000\ns_waitcnt vmcnt({os.environ.get('PWAIT', 0)})\n{PL}:")
            regs = inbox()
            k(f"s_waitcnt vmcnt(0)\nv_max_u32 v{T0}, v{regs[0]}, v{regs[1]}")
            for n in range(2, len(regs), 2): k(f"v_max3_u32 v{T0}, v{T0}, v{regs[n]}, v{regs[n+1]}")
            k(f"v_cmp_eq_u32 vcc, -1, v{T0}\ns_sub_u32 s37, s37, 1\ns_cmp_eq_u32 s37, 0\ns_cbranch_scc1 {GO}\ns_cbranch_vccz {GO}\ns_sleep 2\ns_branch {PL}\n{GO}:\nSTAMP 10")
        else:
            k("s_waitcnt vmcnt(0)\nSTAMP 12")
            set_flag(k, VZ, T2, 20, 34)
            if 'fw' in XM: k("s_waitcnt vmcnt(0)")
            addb2()
            k(f"v_lshlrev_b32 v{T0}, 7, v{VL}\ns_mov_b64 exec, 0xf")
            poll(k, T0, HR, 1, 20, 35)
            k("s_mov_b64 exec, -1\nSTAMP 10")
            inbox()
        nst = 0
        for ci, ds in enumerate(chunks):
            if not POIS: k(f"s_waitcnt vmcnt({3*(len(chunks)-1-ci)+nst})")
            for e, d in enumerate(ds):
                o = ACC + d * 8
                for sl in range(3):
                    for h2 in range(2):
                        p = RR + (ci * 3 + sl) * 4 + 2 * e + h2
                        t = PK + (sl * 2 + h2) * 2
                        k(f"v_lshlrev_b32 v{t}, 16, v{p}\nv_and_b32 v{t+1}, 0xffff0000, v{p}")
                for sl in range(3):
                    for h2 in range(2):
                        t = PK + (sl * 2 + h2) * 2
                        k(f"v_pk_add_f32 {v(o+2*h2,2)}, {v(o+2*h2,2)}, {v(t,2)}")
                k(f"v_cvt_pk_bf16_f32 v{o}, v{o}, v{o+1}\nv_cvt_pk_bf16_f32 v{o+1}, v{o+2}, v{o+3}")
                k(f"buffer_store_dwordx2 {v(o,2)}, v{VO}, s[40:43], s48 offen offset:{d*32}" + os.environ.get("OUTF", " nt"))
                nst += 1
        k("s_endpgm")
    A1 = k.lab("A1")
    k(f"s_cmp_ge_u32 s26, 2\ns_cbranch_scc1 {A1}")
    epi(0)
    k(f"{A1}:")
    epi(1)
    k(f"{PROD}:\ns_and_b32 s29, s28, 1")
    ORD = 'noord' not in XM
    k("s_sub_u32 s38, 1, s26\ns_and_b32 s38, s38, 3\ns_cmp_eq_u32 s38, 0\ns_cselect_b32 s39, 6, 7")
    for n in range(9):
        if not ORD:
            k(f"s_mov_b32 s{40+n}, {n}"); continue
        k(f"s_mov_b32 s{40+n}, {n}")
        for d in (0, 3, 6):
            if n - d >= 0: k(f"s_cmp_le_u32 s38, {n-d}\ns_addc_u32 s{40+n}, s{40+n}, 0")
        if n >= 6: k(f"s_sub_u32 s30, {n}, s39\ns_lshl_b32 s30, s30, 2\ns_add_u32 s30, s30, s38\ns_cmp_le_u32 s39, {n}\ns_cselect_b32 s{40+n}, s30, s{40+n}")
    k(f"s_cmp_ge_u32 s28, 6\ns_cbranch_scc1 {PA}")
    VD = 10
    for q in range(2):
        k(f"v_add_u32 v{T0}, {4*q}, v{VG}")
        k(f"v_lshlrev_b32 v{T1}, 1, v{T0}\nv_xor_b32 v{T1}, v{T1}, v{VI}\nv_lshlrev_b32 v{T1}, 4, v{T1}")
        k(f"v_lshl_add_u32 v{VD+q}, v{T0}, 12, v{T1}")
    for q in range(2, 8): k(f"v_add_u32 v{VD+q}, {8*4096}, v{VD+q-2}")
    k(f"s_mul_i32 s32, s26, {1152*4096}\ns_lshl_b32 s30, s29, 17\ns_add_u32 s32, s32, s30\ns_lshl_b32 s30, s24, 8\ns_add_u32 s32, s32, s30\ns_lshl_b32 s34, s29, 13")
    srd(k, 12, PW2, F_ * S_ * 2)
    producer_loop(k, N, R, 8, lambda st, slot: [f"s_lshl_b32 s33, s{40+(st>>1)}, 19\ns_add_u32 s33, s33, s32" + (f"\ns_add_u32 s33, s33, {64*4096}" if st & 1 else "")] +
                  [dma(34, slot * STG + q * 1024, VD + q, 12, 33) for q in range(8)], FIN, final_barrier=False, first=int(os.environ.get("FIRST5", 2)), gate=lambda st: None)
    k(f"{PA}:")
    k(f"v_lshlrev_b32 v{VD}, 4, v{VL}")
    for d in range(1, 9): k(f"v_add_u32 v{VD+d}, {144*1024}, v{VD+d-1}")
    k(f"s_mul_i32 s33, s25, {9*144*1024}\ns_mul_i32 s30, s26, {36*1024}\ns_add_u32 s33, s33, s30\ns_lshl_b32 s30, s29, 10\ns_add_u32 s33, s33, s30\ns_add_u32 s33, s33, {WS_U}")
    k("s_mul_i32 s35, s29, 9216\ns_add_u32 s35, s35, 16384")
    k(f"s_mul_i32 s30, s25, 3\ns_lshr_b32 s30, s30, 1\ns_mul_i32 s31, s26, 6\ns_add_u32 s30, s30, s31\ns_mul_i32 s30, s30, {9*128}\ns_add_u32 s30, s30, {F4}")
    k(f"v_lshlrev_b32 v{T0}, 7, v{VL}")
    W7, WD = k.lab("W7"), k.lab("WD")
    k(f"s_mov_b32 s49, s30\ns_cmp_eq_u32 s28, 7\ns_cbranch_scc1 {W7}")
    if 'nogate' not in XM:
        NG, NG2 = k.lab("NG"), k.lab("NG")
        k(f"s_cmp_ge_u32 s2, 216\ns_cbranch_scc1 {NG}")
        wait_local(k, 20, LCNT + 8)
        k(f"s_branch {NG2}\n{NG}:\ns_lshl_b32 exec_lo, 1, s40\ns_mov_b32 exec_hi, 0")
        poll(k, T0, 20, 1, 20, 30, sleep=8)
        k(f"{NG2}:")
    k("s_lshl_b32 s31, 0x111, s38\ns_and_b32 s31, s31, 0x1ff\ns_mul_i32 s31, s31, 0x201\ns_andn2_b32 exec_lo, 0x3ffff, s31\ns_mov_b32 exec_hi, 0\ns_mov_b32 s49, s30" if ORD else "s_mov_b64 exec, 0x3ffff")
    poll(k, T0, 20, 1, 20, 30)
    k("s_mov_b64 exec, -1")
    lds_signal(k, 20, LCNT + 28)
    k(f"s_branch {WD}\n{W7}:")
    wait_local(k, 20, LCNT + 28, n=1)
    k(f"{WD}:\nSTAMP 9")
    def gate(st):
        if st == 12 and ORD:
            k("s_mov_b64 exec, 0x3ffff")
            poll(k, T0, 20, 1, 20, 49)
            k("s_mov_b64 exec, -1")
    producer_loop(k, N, R, 9, lambda st, slot: [f"s_lshl_b32 s32, s{40+(st>>1)}, 12\ns_add_u32 s32, s32, s33" + ("\ns_add_u32 s32, s32, 2048" if st & 1 else "")] +
                  [dma(35, slot * STG + q * 1024, VD + q, 20, 32, SC) for q in range(9)], FIN, final_barrier=False, gate=gate)
    k(f"{FIN}:\ns_endpgm")

NAME = "sequential_preLN__sliding_block__mixer_token_mlp__prompt_kernel"
def gen_mega():
    k = Kern(NAME, 512, 256, LCNT + 64)
    k.lab = (lambda f: (lambda base="L": f(base).replace(NAME[:-7], "m")))(k.lab)
    END = k.lab("END")
    k(f"s_cmp_ge_u32 s2, 256\ns_cbranch_scc1 {END}")
    k("s_load_dwordx16 s[64:79], s[0:1], 0\ns_load_dwordx4 s[80:83], s[0:1], 64\ns_load_dwordx2 s[84:85], s[0:1], 80")
    k("s_and_b32 s10, s2, 7\ns_lshr_b32 s11, s2, 3")
    if 'nocode' not in XM:
        H = k.lab("PC"); SK = k.lab("SKC")
        k(f"s_cmp_lt_u32 s2, 192\ns_cbranch_scc1 {SK}\ns_getpc_b64 s[60:61]\n{H}:\ns_sub_u32 s60, s60, {H}-L_text_begin\ns_subb_u32 s61, s61, 0")
        k(f"s_sub_u32 s62, s11, 24\ns_lshl_b32 s62, s62, 7\nv_lshlrev_b32 v{T0}, 10, v0\nv_add_u32 v{T0}, s62, v{T0}")
        k(f"s_mov_b32 s62, L_text_end-L_text_begin\nv_cmp_gt_u32 vcc, s62, v{T0}\ns_and_saveexec_b64 s[62:63], vcc\ns_cbranch_execz {SK}\nglobal_load_dword v{DUMMY}, v{T0}, s[60:61]\n{SK}:\ns_mov_b64 exec, -1")
    lane_ids(k, VL, 2, 28)
    k(f"v_lshlrev_b32 v{T0}, 2, v{VL}\nv_add_u32 v{T0}, {LCNT}, v{T0}\nv_mov_b32 v{T1}, 0\ns_mov_b64 exec, 0xffff\nds_write_b32 v{T0}, v{T1}\ns_mov_b64 exec, -1")
    E2a, E2b, E3, E4, E5 = [k.lab(n) for n in ("P2A", "P2B", "P3", "P4", "P5")]
    p1(k, (E2a, E2b))
    p2(k, (E2a, E2b), E3)
    p3(k, E3, E4)
    p4(k, E4, E5)
    p5(k, E5)
    k(f"{END}:\ns_endpgm")
    return k
```

```python
import sys, os
sys.path.insert(0, "gen")
from common import *
from mega import gen_mega
HDR = open("sequential_preLN__sliding_block__mixer_token_mlp__prompt.s.ref").read().split("; Override launch")[0]
k = gen_mega()
dst = sys.argv[1] if len(sys.argv) > 1 else "sequential_preLN__sliding_block__mixer_token_mlp__prompt.s"
if len(sys.argv) > 2 and sys.argv[2] == "ts": k.instrument_mega(64 * MB)
if len(sys.argv) > 2 and sys.argv[2] == "dbg": k.instrument_mega_dbg()
b, kd = k.finish()
print(k.stats, file=sys.stderr)
DOC = """; One persistent launch, 256 workgroups (one per CU) x 8 waves, five phases chained by write-through stores + flags in d_ws:
; GEMM phases: waves 0-3 MFMA consumers, waves 4-7 LDS-DMA producers over an LDS ring.  Generated by the author's own scripts.
"""
out = HDR + DOC + f"; @launch grid=({k.grid},1,1) block=({k.block},1,1) lds={k.lds}\n" + '.amdgcn_target "amdgcn-amd-amdhsa--gfx950"\n.text\nL_text_begin:\n' + b + "L_text_end:\n" + kd
open(dst, "w").write(out)
```

```python
from common import *
from ring2 import *
import math, os
XM = os.environ.get('MX', 'notouch,nopoison,noslow,fw').split(',')
WT = " sc0 sc1"
SC = " sc1"
FL = WS_ST + 196608
F1 = FL; F2 = F1 + 32768; F3 = F2 + 32768; F4 = F3 + 24576; F5 = F4 + 27648; FEND = F5 + 131072
assert FEND - WS_ST <= 64 * 8192
PB = int(os.environ.get('PB', WS_P))
LX = 61440
LCNT = 160768
WS_XS = 22 * MB
WS_CS = WS_XS + 16384
PX, PWQKV, PWO, PW1, PB1, PW2, PB2, POUT, PDBG, PWS = 64, 66, 68, 72, 74, 76, 78, 80, 82, 84
VL, VG, VI = 1, 3, 4
T0, T1, T2, T3 = 5, 6, 7, 8
DUMMY = 234

def pf_flat(k, srd_, sidx, nwg, nthreads, b0, b1, tmp, vt=0, s0=60):
    lines = (b1 - b0) // 128
    per = (lines + nwg - 1) // nwg
    n = (per + nthreads - 1) // nthreads
    k(f"s_mul_i32 s{s0}, s{sidx}, {per*128}\ns_add_u32 s{s0}, s{s0}, {b0}\nv_lshlrev_b32 v{tmp}, 7, v{vt}")
    for i in range(n):
        last = per - i * nthreads
        if last < nthreads:
            k(f"v_mov_b32 v{tmp+1}, 0x7ff00000\nv_cmp_gt_u32 vcc, {last}, v{vt}\nv_cndmask_b32 v{tmp}, v{tmp+1}, v{tmp}, vcc")
        k(f"buffer_load_dword v{DUMMY}, v{tmp}, s[{srd_}:{srd_+3}], s{s0} offen\ns_add_u32 s{s0}, s{s0}, {nthreads*128}")

PFDEF = dict(PF1B="w1:0:48", PF2="w1:48:96", PF3="w1:96:128,w2:0:32", PF4="w2:32:128")
def pf(k, name, sidx, nwg, nthreads, tmp, vt=0):
    spec = os.environ.get(name, PFDEF.get(name, ""))
    if not spec or spec == "0": return
    U = S_ * F_ * 2 // 128
    for it in spec.split(","):
        w, a_, b_ = it.split(":")
        srd(k, 52, PW1 if w == "w1" else PW2, S_ * F_ * 2)
        pf_flat(k, 52, sidx, nwg, nthreads, int(a_) * U, int(b_) * U, tmp, vt=vt)

def w1_addr(k, tmp):
    srd(k, 52, PW1, S_ * F_ * 2)
    k("s_lshr_b32 s60, s10, 1\ns_mul_i32 s60, s60, 9\ns_and_b32 s61, s10, 1\ns_lshl_b32 s61, s61, 2\ns_add_u32 s60, s60, s61\ns_lshl_b32 s60, s60, 8")
    k(f"v_lshrrev_b32 v{tmp}, 4, v0\nv_mul_u32_u24 v{tmp}, 9216, v{tmp}\nv_and_b32 v{tmp+1}, 15, v0\nv_lshl_add_u32 v{tmp}, v{tmp+1}, 7, v{tmp}")
    k(f"v_cmp_lt_u32 vcc, 9, v{tmp+1}\nv_mov_b32 v{tmp+1}, 0x7ff00000\nv_cndmask_b32 v{tmp}, v{tmp}, v{tmp+1}, vcc")

def w1_rows(k, sidx, rows, r0, _):
    w1_addr(k, 10)
    k(f"s_mul_i32 s61, s{sidx}, {rows*9216}\ns_add_u32 s60, s60, s61\ns_add_u32 s60, s60, {r0*9216}")
    for i in range((rows + 31) // 32):
        k(f"buffer_load_dword v{DUMMY}, v10, s[52:55], s60 offen\ns_add_u32 s60, s60, {32*9216}")

def w1slow(k):
    srd(k, 52, PW1, S_ * F_ * 2)
    k("s_lshr_b32 s60, s10, 1\ns_mul_i32 s60, s60, 9\ns_and_b32 s61, s10, 1\ns_lshl_b32 s61, s61, 2\ns_add_u32 s60, s60, s61")
    k("s_sub_u32 s61, 1, s60\ns_and_b32 s61, s61, 3\ns_add_u32 s60, s60, s61\ns_lshl_b32 s60, s60, 8\ns_add_u32 s60, s60, 128")
    k(f"s_sub_u32 s62, s11, 27\nv_mul_u32_u24 v10, 5, v0\nv_add_u32 v10, s62, v10\nv_mul_u32_u24 v10, 9216, v10")
    k(f"buffer_load_dword v{DUMMY}, v10, s[52:55], s60 offen\ns_add_u32 s60, s60, 1024\ns_cmp_eq_u32 s61, 0\ns_cselect_b32 s54, s54, 0")
    k(f"buffer_load_dword v{DUMMY}, v10, s[52:55], s60 offen")

def ids16(k):
    k(f"v_lshrrev_b32 v{VG}, 4, v{VL}\nv_and_b32 v{VI}, 15, v{VL}")

def p1(k, NXT):
    R = 4; STG = 34816; N = 9; XO = 18432
    PROD = k.lab("P1PROD"); PF = k.lab("P1PF"); PX_ = k.lab("P1PX")
    k("s_and_b32 s24, s10, 3\ns_lshl_b32 s24, s24, 2\ns_and_b32 s25, s11, 3\ns_add_u32 s24, s24, s25")
    k("s_lshr_b32 s25, s10, 2\ns_mul_i32 s25, s25, 6\ns_lshr_b32 s29, s11, 2\ns_add_u32 s25, s25, s29")
    ids16(k)
    def touch():
        k(f"v_mul_u32_u24 v{T0}, 4682, v{VL}\nv_lshrrev_b32 v{T0}, 16, v{T0}")
        k(f"v_mul_u32_u24 v{T1}, 14, v{T0}\nv_sub_u32 v{T1}, v{VL}, v{T1}")
        k(f"v_lshrrev_b32 v{T2}, 1, v{T0}\nv_mul_u32_u24 v{T2}, 62, v{T2}\nv_add_u32 v{T0}, v{T0}, v{T2}")
        k(f"v_mul_u32_u24 v{T0}, 3456, v{T0}\nv_lshl_add_u32 v{T0}, v{T1}, 7, v{T0}\nv_lshlrev_b32 v{T1}, 7, v{VL}")
        k(f"s_add_u32 s30, s28, 1\ns_mul_i32 s30, s30, {128*3456}\ns_mul_i32 s31, s11, {2*3456}\ns_add_u32 s30, s30, s31\ns_lshr_b32 s31, s10, 2\ns_mul_i32 s31, s31, {13*128}\ns_add_u32 s30, s30, s31")
        k(f"s_and_b32 s31, s10, 3\ns_mul_i32 s31, s31, {512*1152}\ns_mul_i32 s29, s11, {16*1152}\ns_add_u32 s31, s31, s29\ns_mul_i32 s29, s28, {36*128}\ns_add_u32 s31, s31, s29")
        k("s_waitcnt lgkmcnt(0)")
        srd(k, 12, PX, S_ * D_ * 2)
        srd(k, 16, PWQKV, D_ * 1728 * 2)
        if 'notouch' in XM: return
        k("s_mov_b32 exec_hi, 0xf")
        k(f"buffer_load_dword v{DUMMY}, v{T1}, s[12:15], s31 offen")
        k("s_mov_b32 exec_hi, 0xffffff")
        k(f"buffer_load_dword v{DUMMY}, v{T0}, s[16:19], s30 offen")
        k("s_mov_b32 exec_hi, -1")
    k(f"s_cmp_ge_u32 s11, 24\ns_cbranch_scc1 {PF}")
    k(f"s_cmp_ge_u32 s28, 4\ns_cbranch_scc1 {PROD}")
    k("s_lshr_b32 s26, s25, 2\ns_and_b32 s27, s25, 3")
    VTR, VXR, VC, ZD, XF, WF = 10, 12, 16, 18, 20, 36
    ACC = WF + 72
    CSR = ACC + 72; STR = CSR + 36
    assert STR + 16 <= DUMMY
    k(f"v_bfe_u32 v{T0}, v{VL}, 2, 2\nv_lshl_add_u32 v{T0}, v{VG}, 2, v{T0}\nv_mul_u32_u24 v{T0}, 288, v{T0}")
    k(f"v_and_b32 v{T1}, 3, v{VL}\nv_lshl_add_u32 v{VTR}, v{T1}, 3, v{T0}\nv_mul_u32_u24 v{T1}, 72, v{T1}\nv_add3_u32 v{VTR+1}, v{T0}, v{T1}, 32")
    k(f"v_lshrrev_b32 v{T0}, 1, v{VI}\nv_lshrrev_b32 v{T1}, 1, v{VG}\nv_xor_b32 v{T0}, v{T0}, v{T1}\nv_lshlrev_b32 v{T0}, 4, v{T0}\nv_lshl_add_u32 v{T0}, v{VI}, 7, v{T0}")
    k(f"v_and_b32 v{T1}, 1, v{VG}\nv_lshl_add_u32 v{T0}, v{T1}, 3, v{T0}")
    k(f"s_lshl_b32 s30, s28, 12\ns_add_u32 s30, s30, {XO}\nv_add_u32 v{VXR}, s30, v{T0}")
    for q in range(1, 4): k(f"v_xor_b32 v{VXR+q}, {32*q}, v{VXR}")
    for r in range(72): k(f"v_mov_b32 v{ACC+r}, 0")
    k(f"v_mov_b32 v{VC}, 0")
    touch()
    srd(k, 20, PWS, WS_SIZE)
    srd(k, 56, PDBG, 256)
    k(f"s_mul_i32 s50, s25, {9*PS}\ns_lshl_b32 s30, s24, 2\ns_add_u32 s30, s30, s28\ns_lshl_b32 s49, s30, 7\ns_lshl_b32 s30, s30, 10\ns_add_u32 s50, s50, s30")
    k(f"s_add_u32 s49, s49, {WS_XS}\ns_mul_i32 s51, s25, 576\ns_add_u32 s51, s51, {WS_CS}")
    k(f"s_lshl_b32 s48, s27, 4\ns_add_u32 s48, s48, s24\ns_lshl_b32 s48, s48, 2\ns_add_u32 s48, s48, s26\ns_lshl_b32 s48, s48, 7\ns_add_u32 s48, s48, {F1}")
    first = [True]
    coff = [72 * (T >> 1) + 40 * (T & 1) for T in range(8)]
    def body(vor):
        first[0] = True
        def side():
            OK = k.lab("ZOK")
            if not os.environ.get("STG_STAMP"): k("STAMP 13")
            k(f"s_waitcnt vmcnt(0)\nv_cmp_gt_u32 vcc, 64, v{ZD}\ns_mov_b32 s31, 0\ns_nop 3\ns_cbranch_vccz {OK}")
            poll(k, VC, ZD, 1, 56, 31, want=64)
            k(f"{OK}:")
            if not vor:
                k(f"v_lshlrev_b32 v{VC}, 4, v{VG}\nv_mul_u32_u24 v{VC+1}, 144, v{VG}\nv_lshlrev_b32 v{ZD}, 2, v{VI}")
                for tt in range(2):
                    k(f"buffer_load_dword v{STR+2*tt}, v{ZD}, s[20:23], s49 offen offset:{tt*64}{SC}")
                k("s_add_u32 s49, s49, 8192")
                for tt in range(2):
                    k(f"buffer_load_dword v{STR+2*tt+1}, v{ZD}, s[20:23], s49 offen offset:{tt*64}{SC}")
                for T in range(9):
                    k(f"buffer_load_dwordx4 {v(CSR+4*T,4)}, v{VC+(T==8)}, s[20:23], s51 offen offset:{2*coff[T] if T < 8 else 64}{SC}")
            else:
                k(f"v_lshlrev_b32 v{VC}, 2, v{VI}\nv_lshrrev_b32 v{VC+1}, 2, v{VI}\nv_mul_u32_u24 v{VC+1}, 128, v{VC+1}\nv_add_u32 v{VC+1}, v{VC+1}, v{VC}\nv_lshlrev_b32 v{ZD}, 4, v{VG}")
                for hf in range(2):
                    for tt in range(2):
                        k(f"buffer_load_dwordx4 {v(STR+tt*8+hf*4,4)}, v{ZD}, s[20:23], s49 offen offset:{tt*64}{SC}")
                    if hf == 0: k("s_add_u32 s49, s49, 8192")
                for T in range(9):
                    k(f"buffer_load_dword v{CSR+T}, v{VC+(T==8)}, s[20:23], s51 offen offset:{2*coff[T] if T < 8 else 64}{SC}")
        def reads(st, slot, ks, rs):
            out = []
            if ks == 0 and not first[0]:
                d = STG if slot else -(R - 1) * STG
                regs = list(range(VXR, VXR + 4)) + [VTR, VTR + 1]
                out += [f"v_add_u32 v{r}, {d}, v{r}" if d > 0 else f"v_subrev_u32 v{r}, {-d}, v{r}" for r in regs]
            first[0] = False
            for tt in range(2):
                for hf in range(2):
                    out.append(f"ds_read_b64 {v(XF+rs*8+tt*4+hf*2,2)}, v{VXR+2*ks+hf} offset:{tt*2048}")
            for j in range(9):
                for hf in range(2):
                    out.append(f"ds_read_b64_tr_b16 {v(WF+rs*36+j*4+hf*2,2)}, v{VTR+(j==8)} offset:{ks*9216+hf*4608+(coff[j] if j < 8 else 0)}")
            if slot == 3 and ks == 1 and not (os.environ.get('STG_STAMP') and st == 3):
                L = k.lab("ZS")
                out.append(f"s_cmp_lg_u32 s36, 1\ns_cbranch_scc1 {L}\nbuffer_load_dword v{ZD}, v{VC}, s[56:59], 0 offen sc0 sc1\n{L}:")
            return out
        def mf(st, ks, rs):
            g = []
            for j in range(9):
                wf = v(WF + rs * 36 + j * 4, 4)
                for tt in range(2):
                    xf = v(XF + rs * 8 + tt * 4, 4)
                    ac = v(ACC + (j * 2 + tt) * 4, 4)
                    g.append(f"v_mfma_f32_16x16x32_bf16 {ac}, {xf}, {wf}, {ac}" if vor else f"v_mfma_f32_16x16x32_bf16 {ac}, {wf}, {xf}, {ac}")
            return g
        consumer_loop(k, N, R, reads, mf, per=[2] * 8 + [1], final_barrier=False, before_last=side, stamp0=12)
        k("STAMP 1")
        qs = 18 ** -0.5 * math.log2(math.e)
        OUT = XF; VM0 = VTR
        k(f"v_lshlrev_b32 v{VM0}, 4, v{VL}\ns_waitcnt vmcnt(0)")
        if not vor:
            k(f"s_cmp_eq_u32 s26, 0\ns_cselect_b32 s31, {f32(qs)}, 1.0")
            for tt in range(2): k(f"v_mul_f32 v{STR+2*tt+1}, s31, v{STR+2*tt+1}")
        sw = "32" if vor else "16"
        def fin(j):
            po = OUT + (j % 4) * 4
            k(f"v_permlane{sw}_swap_b32 v{po}, v{po+2}\nv_permlane{sw}_swap_b32 v{po+1}, v{po+3}")
            k(f"buffer_store_dwordx4 {v(po,4)}, v{VM0}, s[20:23], s50 offen{WT}\ns_add_u32 s50, s50, {PS}")
        for j in range(9):
            o = OUT + (j % 4) * 4
            for tt in range(2):
                ac = ACC + (j * 2 + tt) * 4
                for h2 in range(2):
                    if not vor:
                        k(f"v_pk_fma_f32 {v(ac+2*h2,2)}, {v(STR+2*tt,2)}, {v(CSR+4*j+2*h2,2)}, {v(ac+2*h2,2)} op_sel_hi:[0,1,1] neg_lo:[1,0,0] neg_hi:[1,0,0]")
                    else:
                        c = CSR + (j & ~1); sel = j & 1
                        k(f"v_pk_fma_f32 {v(ac+2*h2,2)}, {v(STR+tt*8+2*h2,2)}, {v(c,2)}, {v(ac+2*h2,2)} op_sel:[0,{sel},0] op_sel_hi:[1,{sel},1] neg_lo:[1,0,0] neg_hi:[1,0,0]")
            for tt in range(2):
                ac = ACC + (j * 2 + tt) * 4
                for h2 in range(2):
                    if not vor: k(f"v_pk_mul_f32 {v(ac+2*h2,2)}, {v(ac+2*h2,2)}, {v(STR+2*tt,2)} op_sel:[0,1] op_sel_hi:[1,1]")
                    else: k(f"v_pk_mul_f32 {v(ac+2*h2,2)}, {v(ac+2*h2,2)}, {v(STR+tt*8+4+2*h2,2)}")
            for tt in range(2):
                ac = ACC + (j * 2 + tt) * 4
                k(f"v_cvt_pk_bf16_f32 v{o+2*tt}, v{ac}, v{ac+1}\nv_cvt_pk_bf16_f32 v{o+2*tt+1}, v{ac+2}, v{ac+3}")
            if j > 0: fin(j - 1)
        fin(8)
        k(f"v_mov_b32 v{T0}, 0\nv_mov_b32 v{T1}, 1\ns_waitcnt vmcnt(0)")
        last_wave_flag(k, T0, T1, T2, LCNT, 20, 48)
        k(f"s_branch {NXT[0]}")
    LV = k.lab("VOR")
    k(f"s_cmp_eq_u32 s26, 2\ns_cbranch_scc1 {LV}")
    body(False)
    k(f"{LV}:")
    body(True)
    k(f"{PROD}:")
    ra, rb = [int(t) for t in os.environ.get("ROT1", "0,0").split(",")]
    k(f"s_and_b32 s38, s11, 3\ns_mul_i32 s38, s38, {ra}\ns_lshr_b32 s39, s11, 2\ns_mul_i32 s39, s39, {rb}\ns_lshr_b32 s38, s38, 2\ns_lshr_b32 s39, s39, 2\ns_add_u32 s38, s38, s39")
    k("s_sub_u32 s39, s38, 9\ns_cmp_ge_u32 s38, 9\ns_cselect_b32 s38, s39, s38")
    k(f"s_and_b32 s29, s28, 1\ns_cmp_ge_u32 s28, 6\ns_cbranch_scc1 {PX_}")
    VD = 10
    def adv(reg, step):
        return [f"s_add_u32 s{reg}, s{reg}, {step}\ns_sub_u32 s39, s{reg}, {9*step}\ns_add_u32 s38, s38, 1\ns_cmp_eq_u32 s38, 9\ns_cselect_b32 s{reg}, s39, s{reg}"]
    k(f"s_mov_b32 s30, {3456-288}")
    for q in range(9):
        k(f"v_add_u32 v{T0}, {q*64}, v{VL}\nv_mul_u32_u24 v{T1}, 3641, v{T0}\nv_lshrrev_b32 v{T1}, 16, v{T1}")
        k(f"v_lshlrev_b32 v{T0}, 4, v{T0}\nv_mad_u32_u24 v{VD+q}, v{T1}, s30, v{T0}")
    k(f"s_mul_i32 s33, s25, 288\ns_mul_i32 s30, s29, {32*3456}\ns_add_u32 s33, s33, s30\ns_mul_i32 s34, s29, 9216\ns_mul_i32 s30, s38, {64*3456}\ns_add_u32 s33, s33, s30")
    k("s_waitcnt lgkmcnt(0)")
    srd(k, 16, PWQKV, D_ * 1728 * 2)
    srd(k, 20, PWS, WS_SIZE)
    def tail(kk):
        k("v_subrev_u32 v40, 256, v0")
        pf(k, "PF1T", 2, 192, 256, 42, vt=40)
    producer_loop(k, N, R, 9, lambda st, slot: [dma(34, slot * STG + q * 1024, VD + q, 16, 33, ' nt' if st < int(os.environ.get('NT1', 0)) else '') for q in range(9)] + adv(33, 64 * 3456), NXT[1], final_barrier=False, tail=tail, first=int(os.environ.get('FIRST1', 2)))
    k(f"{PX_}:")
    for q in range(2):
        k(f"v_lshrrev_b32 v{T0}, 3, v{VL}\nv_add_u32 v{T0}, {8*q}, v{T0}")
        k(f"v_bfe_u32 v{T1}, v{T0}, 1, 3\nv_and_b32 v{T2}, 7, v{VL}\nv_xor_b32 v{T1}, v{T1}, v{T2}\nv_lshlrev_b32 v{T1}, 4, v{T1}")
        k(f"v_mul_u32_u24 v{T0}, 1152, v{T0}\nv_add_u32 v{VD+q}, v{T0}, v{T1}")
    for q in range(2, 8): k(f"v_add_u32 v{VD+q}, {16*1152}, v{VD+q-2}")
    k("s_lshl_b32 s32, s24, 7\ns_lshl_b32 s30, s29, 6\ns_add_u32 s32, s32, s30\ns_mul_i32 s32, s32, 1152")
    k(f"s_lshl_b32 s35, s29, 13\ns_add_u32 s35, s35, {XO}\ns_lshl_b32 s30, s38, 7\ns_add_u32 s32, s32, s30")
    k("s_waitcnt lgkmcnt(0)")
    srd(k, 12, PX, S_ * D_ * 2)
    srd(k, 20, PWS, WS_SIZE)
    producer_loop(k, N, R, 8, lambda st, slot: [dma(35, slot * STG + q * 1024, VD + q, 12, 32, ' nt' if st < int(os.environ.get('NT1', 0)) else '') for q in range(8)] + adv(32, 128), NXT[1], final_barrier=False, tail=tail, first=int(os.environ.get('FIRST1', 2)))
    k(f"{PF}:\ns_sub_u32 s29, s2, 192")
    XA, SM, CA = 12, 48, 52
    CSW = k.lab("CSW"); NZ = k.lab("NZ"); NZ2 = k.lab("NZ"); DONE = k.lab("DN")
    k(f"v_lshrrev_b32 v{T1}, 3, v0\nv_and_b32 v{T2}, 7, v0\nv_lshlrev_b32 v{T2}, 4, v{T2}\ns_cmp_ge_u32 s29, 32\ns_cselect_b32 s30, 3456, 0\ns_cselect_b32 s31, 0, 1152\ns_add_u32 s30, s30, s31")
    k(f"v_mad_u32_u24 v{T0}, v{T1}, s30, v{T2}")
    k(f"s_lshl_b32 s32, s29, 13\ns_add_u32 s32, s32, {WS_ST}\nv_lshlrev_b32 v{T3}, 4, v0")
    for r in range(4): k(f"v_mov_b32 v{CA+8+r}, 0")
    k(f"v_mov_b32 v{SM}, 0\nv_mov_b32 v{SM+1}, 0\nv_mov_b32 v{SM+2}, 0x3f803f80\ns_mul_i32 s30, s29, {64*1152}")
    k(f"s_sub_u32 s33, s29, 32\ns_lshl_b32 s31, s33, 7\ns_cmp_ge_u32 s33, 27\ns_cselect_b32 s31, 0x7000000, s31")
    k("s_waitcnt lgkmcnt(0)")
    srd(k, 20, PWS, WS_SIZE)
    srd(k, 56, PDBG, 256)
    k(f"s_cmp_ge_u32 s29, 32\ns_cbranch_scc1 {CSW}")
    srd(k, 12, PX, S_ * D_ * 2)
    for q in range(9): k(f"buffer_load_dwordx4 {v(XA+4*q,4)}, v{T0}, s[12:15], s30 offen offset:{q*128}")
    k(f"buffer_store_dwordx4 {v(CA+8,4)}, v{T3}, s[20:23], s32 offen{WT}")
    for q in range(9):
        k(f"s_waitcnt vmcnt({9-q})")
        for r in range(4 * q, 4 * q + 4): k(f"v_dot2c_f32_bf16 v{SM}, v{XA+r}, v{SM+2}\nv_dot2c_f32_bf16 v{SM+1}, v{XA+r}, v{XA+r}")
    k("STAMP 1\ns_nop 2")
    for m in ("quad_perm:[1,0,3,2]", "quad_perm:[2,3,0,1]", "row_half_mirror"):
        for r in range(2): k(f"v_add_f32_dpp v{SM+r}, v{SM+r}, v{SM+r} {m} row_mask:0xf bank_mask:0xf")
    k(f"s_mov_b32 s30, {f32(1.0/576)}\nv_mul_f32 v{SM}, s30, v{SM}\nv_mul_f32 v{SM+1}, s30, v{SM+1}\nv_fma_f32 v{SM+1}, -v{SM}, v{SM}, v{SM+1}")
    def rbf(r): k(f"v_cvt_pk_bf16_f32 v{r}, v{r}, v{r}\nv_and_b32 v{r}, 0xffff0000, v{r}")
    k(f"v_max_f32 v{SM+1}, 0, v{SM+1}")
    rbf(SM); rbf(SM + 1)
    k(f"v_add_f32 v{SM+1}, {f32(1e-5)}, v{SM+1}")
    rbf(SM + 1)
    k(f"v_sqrt_f32 v{SM+1}, v{SM+1}")
    rbf(SM + 1)
    k(f"v_rcp_f32 v{SM+1}, v{SM+1}")
    k(f"s_lshl_b32 s30, s29, 8\ns_add_u32 s30, s30, {WS_XS}\ns_add_u32 s31, s30, 8192\nv_lshlrev_b32 v{T0}, 2, v{T1}\nv_and_b32 v{T3}, 7, v0")
    k(f"v_cmp_eq_u32 vcc, 0, v{T3}\ns_and_saveexec_b64 s[62:63], vcc")
    k(f"buffer_store_dword v{SM}, v{T0}, s[20:23], s30 offen{WT}\nbuffer_store_dword v{SM+1}, v{T0}, s[20:23], s31 offen{WT}\ns_mov_b64 exec, -1\ns_branch {DONE}\n{CSW}:")
    srd(k, 16, PWQKV, D_ * 1728 * 2)
    for q in range(9): k(f"buffer_load_dwordx4 {v(XA+4*q,4)}, v{T0}, s[16:19], s31 offen\ns_add_u32 s31, s31, {64*3456}")
    k(f"buffer_store_dwordx4 {v(CA+8,4)}, v{T3}, s[20:23], s32 offen{WT}")
    for q in range(9):
        k(f"s_waitcnt vmcnt({9-q})")
        for r in range(4):
            p = XA + 4 * q + r
            if q == 0: k(f"v_lshlrev_b32 v{CA+2*r}, 16, v{p}\nv_and_b32 v{CA+2*r+1}, 0xffff0000, v{p}")
            else: k(f"v_lshlrev_b32 v{SM}, 16, v{p}\nv_and_b32 v{SM+1}, 0xffff0000, v{p}\nv_pk_add_f32 {v(CA+2*r,2)}, {v(CA+2*r,2)}, {v(SM,2)}")
    k("STAMP 1")
    for r in range(8): k(f"v_add_f32_dpp v{CA+r}, v{CA+r}, v{CA+r} row_ror:8 row_mask:0xf bank_mask:0xf")
    for sw in ("16", "32"):
        for r in range(8): k(f"v_mov_b32 v{XA+r}, v{CA+r}")
        for r in range(8): k(f"v_permlane{sw}_swap_b32 v{CA+r}, v{XA+r}")
        for r in range(8): k(f"v_add_f32 v{CA+r}, v{CA+r}, v{XA+r}")
    k(f"s_lshl_b32 s30, s28, 8\nv_lshlrev_b32 v{T0}, 5, v{VL}\nv_add_u32 v{T0}, s30, v{T0}\ns_mov_b64 exec, 0xff")
    k(f"ds_write_b128 v{T0}, {v(CA,4)}\nds_write_b128 v{T0}, {v(CA+4,4)} offset:16\ns_mov_b64 exec, -1")
    k("s_waitcnt lgkmcnt(0)\ns_barrier")
    k(f"s_cmp_lg_u32 s28, 0\ns_cbranch_scc1 {DONE}\nv_lshlrev_b32 v{T0}, 2, v{VL}")
    for q in range(8): k(f"ds_read_b32 v{XA+q}, v{T0} offset:{q*256}")
    k(f"s_lshl_b32 s30, s33, 8\ns_add_u32 s30, s30, {WS_CS}\ns_waitcnt lgkmcnt(0)")
    for q in range(1, 8): k(f"v_add_f32 v{XA}, v{XA}, v{XA+q}")
    k(f"buffer_store_dword v{XA}, v{T0}, s[20:23], s30 offen{WT}\n{DONE}:")
    k(f"v_mov_b32 v{T0}, 0\nv_mov_b32 v{T1}, 1\ns_waitcnt vmcnt(0)\nSTAMP 5\ns_barrier\ns_cmp_lg_u32 s28, 0\ns_cbranch_scc1 {NZ2}")
    k(f"s_mov_b64 exec, 1\nbuffer_atomic_add v{T1}, v{T0}, s[56:59], 0 offen sc1\ns_mov_b64 exec, -1\n{NZ2}:\ns_barrier")
    pf(k, "PF1B", 29, 64, 512, 66)
    k(f"s_branch {NXT[1]}")

def p2(k, ENT, NXT):
    LK8 = 24576; LV = 30720; REC = 1168; SEC = 36 * PS
    VH, VQ = 3, 4
    V16, VV, V8A = 5, 6, 7
    QM, Q8 = 8, 12
    KF, K8F, VF, O = 16, 28, 40, 56
    MX, MX2, TA, TB = 72, 73, 74, 75
    AK, AK8, AV = 76, 77, 78
    VV8, VK8 = 79, 2
    S0 = 80
    k(f"{ENT[1]}:\ns_waitcnt vmcnt(0)\ns_cmp_lg_u32 s28, 7\ns_cbranch_scc1 {ENT[0]}")
    srd(k, 56, PDBG, 256)
    k(f"v_mov_b32 v{TA}, 0\ns_mov_b32 s31, 0")
    poll(k, TA, TB, 1, 56, 31, want=64)
    k(f"{ENT[0]}:")
    k("STAMP 2")
    k("s_lshl_b32 s24, s10, 1\ns_and_b32 s25, s11, 1\ns_add_u32 s24, s24, s25\ns_lshr_b32 s25, s11, 1")
    k(f"v_lshrrev_b32 v{VH}, 5, v{VL}\nv_and_b32 v{VQ}, 31, v{VL}")
    k("s_lshr_b32 s26, s28, 2\ns_and_b32 s27, s28, 3")
    k(f"v_lshlrev_b32 v{V16}, 4, v{VL}")
    k(f"v_mul_u32_u24 v{VV}, {PS}, v{VH}\nv_lshl_add_u32 v{VV}, v{VQ}, 4, v{VV}")
    k(f"s_lshr_b32 s47, s24, 2\ns_and_b32 s31, s24, 3\ns_mul_i32 s34, s47, 9\ns_lshl_b32 s32, s31, 1\ns_add_u32 s44, s32, s34\ns_add_u32 s32, s44, s26\ns_mul_i32 s32, s32, {PS}")
    k(f"s_add_u32 s34, s34, 8\ns_mul_i32 s34, s34, {PS}\ns_mul_i32 s44, s44, {PS}\ns_add_u32 s44, s44, {2*SEC}")
    k("s_lshr_b32 s30, s31, 1\ns_lshl_b32 s30, s30, 9\ns_add_u32 s41, s34, s30")
    k(f"s_and_b32 s30, s31, 1\ns_lshl_b32 s30, s30, 3\nv_lshlrev_b32 v{V8A}, 4, v{VQ}\nv_add_u32 v{V8A}, s30, v{V8A}")
    k(f"s_lshl_b32 s45, s31, 6\ns_add_u32 s45, s45, s34\ns_add_u32 s45, s45, {2*SEC}")
    k(f"v_lshrrev_b32 v{TA}, 2, v{VL}\nv_lshlrev_b32 v{TA}, 8, v{TA}\nv_and_b32 v{TB}, 3, v{VL}\nv_lshl_add_u32 v{VV8}, v{TB}, 4, v{TA}")
    k(f"v_lshlrev_b32 v{VK8}, 4, v{VQ}\nv_lshl_add_u32 v{VK8}, v{VH}, 10, v{VK8}")
    k("s_lshl_b32 s33, s25, 2\ns_mul_i32 s30, s27, 3\ns_add_i32 s35, s33, s30\ns_sub_i32 s35, s35, 8")
    k("s_mul_i32 s31, s26, 12\ns_add_u32 s31, s31, s30\ns_lshl_b32 s46, s31, 10")
    k(f"s_lshl_b32 s30, s28, 1\ns_add_i32 s30, s30, s33\ns_sub_i32 s30, s30, 8\ns_max_i32 s30, s30, 0\ns_lshl_b32 s30, s30, 10\ns_add_u32 s33, s33, s27")
    k(f"s_lshl_b32 s39, s33, 10\ns_add_u32 s40, s39, s41\ns_add_u32 s39, s39, s32\ns_add_u32 s41, s41, s30\ns_add_u32 s41, s41, {SEC}\ns_add_u32 s38, s32, {SEC}")
    k(f"s_lshl_b32 s42, s28, 10\ns_add_u32 s42, s42, {LK8}")
    k(f"s_mul_i32 s43, s28, 3\ns_lshl_b32 s36, s25, 3\ns_add_i32 s36, s36, s43\ns_sub_i32 s36, s36, 16\ns_mul_i32 s43, s43, {REC}\ns_add_u32 s43, s43, {LV}")
    NEG = f32(-1e30)
    k(f"v_lshlrev_b32 v{TA}, 2, v{VH}\nv_sub_u32 v{TA}, v{VQ}, v{TA}\nv_mov_b32 v{TB}, {NEG}")
    for b in range(4):
        for r in range(4): k(f"v_cmp_gt_i32 s[{86+2*r}:{87+2*r}], {8*b+r}, v{TA}")
        for r in range(4): k(f"v_cndmask_b32 v{S0+4*b+r}, v{TB}, 0, s[{86+2*r}:{87+2*r}]")
        for r in range(4): k(f"v_cndmask_b32 v{S0+128+4*b+r}, 0, v{TB}, s[{86+2*r}:{87+2*r}]")
    k(f"s_mul_i32 s30, s26, 12\ns_add_u32 s30, s30, s27\ns_lshl_b32 s30, s30, 10\nv_add_u32 v{AK}, s30, v{V16}")
    k(f"s_lshl_b32 s30, s27, 9\ns_add_u32 s30, s30, {LK8}\nv_add_u32 v{AK8}, s30, v{V8A}")
    for q in range(3):
        k(f"v_mov_b32 v{K8F+q*4+2}, 0\nv_mov_b32 v{K8F+q*4+3}, 0")
    k(f"v_mov_b32 v{Q8+2}, 0\nv_mov_b32 v{Q8+3}, 0")
    k(f"s_lshl_b32 s30, s26, 9\nv_lshlrev_b32 v{AV}, 8, v{VH}\nv_lshl_add_u32 v{AV}, v{VQ}, 4, v{AV}\nv_add_u32 v{AV}, s30, v{AV}")
    k(f"s_lshl_b32 s30, s26, 5\ns_add_u32 s30, s30, {1024-256}\nv_lshlrev_b32 v{TA}, 6, v{VH}\nv_lshl_add_u32 v{TA}, v{VQ}, 4, v{TA}\nv_add_u32 v{TA}, s30, v{TA}")
    k(f"v_cmp_lt_u32 vcc, 15, v{VQ}\nv_cmp_lt_u32 s[86:87], 17, v{VQ}\nv_mov_b32 v{MX2}, 1152\nv_cndmask_b32 v{AV}, v{AV}, v{TA}, vcc\nv_cndmask_b32 v{AV}, v{AV}, v{MX2}, s[86:87]")
    k(f"s_mul_i32 s30, s27, {2*REC}\ns_add_u32 s30, s30, {LV}\nv_add_u32 v{AV}, s30, v{AV}")
    NI = k.lab("NI")
    k("s_sub_i32 s30, 8, s33")
    for j in range(8):
        k(f"s_cmp_le_i32 s30, {j}\ns_cbranch_scc1 {NI}")
        for r in range(16): k(f"v_mov_b32 v{S0+j*16+r}, v{TB}")
    k(f"{NI}:")
    for q in range(3):
        k(f"s_add_i32 s30, s35, {q}\ns_max_i32 s30, s30, 0\ns_lshl_b32 s30, s30, 10\ns_add_u32 s{86+q}, s30, s38")
        k(f"s_add_i32 s30, s36, {q}\ns_max_i32 s30, s30, 0\ns_lshl_b32 s30, s30, 9\ns_add_u32 s{89+q}, s30, s44\ns_add_u32 s{92+q}, s30, s45")
    SO = k.lab("SONE")
    k(f"s_cmp_lg_u32 s28, 7\ns_cbranch_scc1 {SO}")
    if 'nogate' not in XM:
        NG = k.lab("NG")
        k(f"s_cmp_ge_u32 s2, 192\ns_cbranch_scc1 {NG}")
        wait_local(k, TA, LCNT)
        k(f"{NG}:")
    k(f"s_lshl_b32 s30, s47, 13\ns_lshl_b32 s31, s25, 9\ns_add_u32 s30, s30, s31\ns_add_u32 s30, s30, {F1-1024}")
    k(f"s_mov_b64 exec, -1\nv_lshlrev_b32 v{TA}, 7, v{VL}\ns_movk_i32 s31, 0x760\ns_cmp_eq_u32 s25, 0\ns_cselect_b32 s31, 0x700, s31\ns_cmp_ge_u32 s25, 2\ns_cselect_b32 exec_lo, 0x766, s31\ns_mov_b32 exec_hi, 0")
    poll(k, TA, MX, 1, 20, 30)
    k(f"s_mov_b64 exec, -1\n{SO}:\ns_barrier")
    k("STAMP 3")
    SK = k.lab("SK8")
    k(f"s_mov_b32 m0, s42\ns_cmp_ge_u32 s28, 6\ns_cbranch_scc1 {SK}")
    k(f"buffer_load_dwordx4 v{VK8}, s[20:23], s41 offen{SC} lds\n{SK}:")
    for q in range(3): k(dma(46, q * 1024, V16, 20, 86 + q, SC))
    k(f"buffer_load_dwordx4 {v(QM,4)}, v{V16}, s[20:23], s39 offen{SC}")
    k(f"buffer_load_dwordx2 {v(Q8,2)}, v{V8A}, s[20:23], s40 offen{SC}")
    for q in range(3):
        k(dma(43, q * REC, VV, 20, 89 + q, SC))
        k(f"s_add_u32 m0, s43, {q*REC+1024}\ns_mov_b64 exec, 0xff\nbuffer_load_dwordx4 v{VV8}, s[20:23], s{92+q} offen{SC} lds\ns_mov_b64 exec, -1")
    SO = k.lab("SONE")
    k(f"s_cmp_lg_u32 s28, 7\ns_cbranch_scc1 {SO}")
    for r in range(4): k(f"v_mov_b32 v{KF+r}, 0x3f803f80")
    k(f"v_mul_u32_u24 v{TA}, {REC}, v{VL}\ns_mov_b64 exec, 0xffffff")
    k(f"ds_write_b128 v{TA}, {v(KF,4)} offset:{LV+1152}")
    k(f"s_mov_b64 exec, -1\n{SO}:")
    srd(k, 48, PWO, D_ * D_ * 2)
    k(f"v_mov_b32 v{MX}, v{TB}\ns_sub_i32 s35, 8, s33")
    k("s_cmp_eq_u32 s26, 0\ns_cselect_b32 s38, -1, 0\ns_cselect_b32 s40, 0, -1\ns_mov_b32 s39, 0\ns_mov_b32 s41, 0")
    k("s_waitcnt vmcnt(6) lgkmcnt(0)")
    k(f"v_cndmask_b32 v{Q8}, 0, v{Q8}, s[38:39]\nv_cndmask_b32 v{Q8+1}, 0, v{Q8+1}, s[40:41]")
    k("s_barrier")
    def kread(j):
        return [f"ds_read_b128 {v(KF+(j%3)*4,4)}, v{AK} offset:{j*1024}", f"ds_read_b64 {v(K8F+(j%3)*4,2)}, v{AK8} offset:{j*512}"]
    def mx(j):
        return [f"v_max3_f32 v{MX}, v{MX}, v{S0+j*16+2*r}, v{S0+j*16+2*r+1}" for r in range(8)]
    if os.environ.get("P2S"): k("STAMP 12")
    if 'prio' in XM: k("s_setprio 0")
    for t in kread(0) + kread(1): k(t)
    inv = []
    for j in range(9):
        if j + 2 < 9:
            for t in kread(j + 2): k(t)
        sj = v(S0 + j * 16, 16)
        if j < 8:
            lb = k.lab("BK")
            k(f"s_cmp_gt_i32 s35, {j}\ns_cbranch_scc1 {lb}")
        k(f"s_waitcnt lgkmcnt({min(2, 8-j)*2})")
        k(f"v_mfma_f32_32x32x16_bf16 {sj}, {v(KF+(j%3)*4,4)}, {v(QM,4)}, {sj if j in (0, 8) else 0}")
        k(f"v_mfma_f32_32x32x16_bf16 {sj}, {v(K8F+(j%3)*4,4)}, {v(Q8,4)}, {sj}")
        if j < 8: k(f"{lb}:")
        if j >= 2:
            for t in mx(j - 2): k(t)
    for t in mx(7): k(t)
    k("s_waitcnt vmcnt(0)\ns_barrier")
    def vread(t): return f"ds_read_b128 {v(VF+(t%4)*4,4)}, v{AV} offset:{t*REC}"
    if os.environ.get("P2S"): k("STAMP 13")
    k(vread(0)); k(vread(1))
    side = []
    class Rec:
        def __init__(self): self.L = []
        def __call__(self, t): self.L.append(t)
        lab = staticmethod(k.lab)
    r = Rec()
    r(f"v_lshlrev_b32 v224, 7, v0\ns_mul_i32 s30, s11, {162*128}\nv_cmp_gt_u32 vcc, 162, v0\ns_and_saveexec_b64 s[44:45], vcc")
    r(f"buffer_load_dword v{DUMMY}, v224, s[48:51], s30 offen\ns_mov_b64 exec, s[44:45]")
    side.append("\n".join(r.L))
    r = Rec(); pf(r, "PF2", 2, 256, 512, 226); side.append("\n".join(r.L))
    r = Rec()
    XS = k.lab("XS")
    r(f"s_cmp_ge_u32 s2, 192\ns_cbranch_scc1 {XS}\ns_cmp_lt_u32 s28, 4\ns_cbranch_scc1 {XS}")
    srd(r, 12, PX, S_ * D_ * 2)
    r("s_lshl_b32 s30, s10, 2\ns_and_b32 s31, s11, 3\ns_add_u32 s30, s30, s31\ns_lshl_b32 s30, s30, 2\ns_and_b32 s31, s28, 3\ns_add_u32 s30, s30, s31\ns_mul_i32 s30, s30, 18432")
    r(f"s_mul_i32 s44, s31, 3072\ns_add_u32 s44, s44, {LX}\ns_lshr_b32 s31, s11, 2\ns_mul_i32 s31, s31, 192\ns_add_u32 s43, s30, s31\ns_movk_i32 s30, 960")
    for q in range(3):
        r(f"v_add_u32 v224, {q*64}, v{VL}\nv_mul_u32_u24 v225, 5462, v224\nv_lshrrev_b32 v225, 16, v225\nv_lshlrev_b32 v224, 4, v224\nv_mad_u32_u24 v224, v225, s30, v224")
        r(dma(44, q * 1024, 224, 12, 43))
    r(f"{XS}:")
    side.append("\n".join(r.L))
    for t in mx(8): k(t)
    k(f"v_mov_b32 v{MX2}, v{MX}\nv_permlane32_swap_b32 v{MX}, v{MX2}\nv_max_f32 v{MX}, v{MX}, v{MX2}")
    def soft(j):
        b = S0 + j * 16
        out = [f"v_sub_f32 v{b+r}, v{b+r}, v{MX}" for r in range(16)]
        out += [f"v_exp_f32 v{b+r}, v{b+r}" for r in range(16)]
        if 'trunc' in XM: out += [f"v_perm_b32 v{b+r}, v{b+2*r+1}, v{b+2*r}, s86" for r in range(8)]
        else: out += [f"v_cvt_pk_bf16_f32 v{b+r}, v{b+2*r}, v{b+2*r+1}" for r in range(8)]
        return out
    k("s_mov_b32 s86, 0x07060302")
    def pv(j):
        b = S0 + j * 16
        return [f"v_mfma_f32_32x32x16_bf16 {v(O,16)}, {v(VF+((2*j+s_)%4)*4,4)}, {v(b+4*s_,4)}, {v(O,16) if (j or s_) else 0}" for s_ in range(2)]
    if os.environ.get("P2S"): k("STAMP 14")
    for t in soft(0): k(t)
    for j in range(9):
        nxt = soft(j + 1) if j < 8 else []
        if j < 8:
            k(vread(2 * j + 2)); k(vread(2 * j + 3))
        p = pv(j)
        for t in nxt[:4]: k(t)
        k(f"s_waitcnt lgkmcnt({2 if j < 8 else 0})")
        k(p[0])
        for t in nxt[4:20]: k(t)
        if j < len(side) and side[j]: k(side[j])
        k(p[1])
        for t in nxt[20:]: k(t)
    k(f"s_lshl_b32 s34, s24, 1\ns_add_u32 s34, s34, s26\ns_mul_i32 s30, s34, {PS}\ns_lshl_b32 s31, s33, 10\ns_add_u32 s30, s30, s31\ns_add_u32 s30, s30, {WS_OM}")
    k(f"s_lshl_b32 s31, s34, 13\ns_lshl_b32 s34, s33, 7\ns_add_u32 s31, s31, s34\ns_add_u32 s31, s31, {WS_O8}\nv_lshlrev_b32 v{AK8}, 2, v{VQ}")
    if os.environ.get("P2S"): k("STAMP 15")
    if 'prio' in XM: k("s_setprio 0")
    k(f"v_rcp_f32 v{MX}, v{O+10}")
    for r in range(10): k(f"v_mul_f32 v{O+r}, v{O+r}, v{MX}")
    for r in range(5): k(f"v_cvt_pk_bf16_f32 v{KF+r}, v{O+2*r}, v{O+2*r+1}")
    k(f"buffer_store_dwordx4 {v(KF,4)}, v{V16}, s[20:23], s30 offen{WT}")
    k("s_mov_b32 exec_hi, 0")
    k(f"buffer_store_dword v{KF+4}, v{AK8}, s[20:23], s31 offen{WT}")
    k("s_mov_b32 exec_hi, -1")
    k(f"s_lshl_b32 s30, s25, 11\ns_lshl_b32 s31, s24, 7\ns_add_u32 s30, s30, s31\ns_add_u32 s30, s30, {F2}\nv_mov_b32 v{TA}, 0\nv_mov_b32 v{TB}, 1")
    k(f"s_waitcnt vmcnt(0)\ns_barrier\ns_cmp_lg_u32 s28, 6\ns_cbranch_scc1 {NXT}")
    set_flag(k, TA, TB, 20, 30)
    k(f"s_branch {NXT}")
    for j, li, lb in inv:
        k(f"{li}:")
        for r in range(16): k(f"v_mov_b32 v{S0+j*16+r}, v{TB}")
        k(f"s_branch {lb}")

def p3(k, ENT, NXT):
    R = 7; WS_ = 12288; WB = 73728; N = 9
    LAB = WB + R * WS_
    PF = k.lab("P3PF"); PROD = k.lab("P3PROD"); PO = k.lab("P3PO")
    k(f"{ENT}:\nSTAMP 4")
    k(f"s_cmp_ge_u32 s2, 192\ns_cbranch_scc1 {PF}")
    k("s_lshl_b32 s24, s10, 2\ns_and_b32 s25, s11, 3\ns_add_u32 s24, s24, s25\ns_lshr_b32 s25, s11, 2")
    ids16(k)
    V16 = 9
    k(f"v_lshlrev_b32 v{V16}, 4, v{VL}")
    k(f"s_cmp_ge_u32 s28, 4\ns_cbranch_scc1 {PROD}")
    k("s_lshr_b32 s26, s28, 1\ns_and_b32 s27, s28, 1")
    VTR, VAO, VAE = 10, 16, 18
    IDN, XR, ACC, AF, BF = 24, 28, 52, 76, 100
    k(f"v_and_b32 v{T1}, 1, v{VG}")
    k(f"v_bfe_u32 v{T0}, v{VL}, 2, 2\nv_lshl_add_u32 v{T0}, v{VG}, 2, v{T0}\nv_mul_u32_u24 v{T0}, 192, v{T0}")
    k(f"v_and_b32 v{T2}, 3, v{VL}\nv_lshl_add_u32 v{T0}, v{T2}, 3, v{T0}\nv_add_u32 v{T0}, {WB}, v{T0}")
    k("s_mul_i32 s30, s27, 3")
    for dt in range(3):
        k(f"s_add_u32 s31, s30, {dt}\nv_xor_b32 v{T2}, s31, v{T1}\nv_lshl_add_u32 v{VTR+dt}, v{T2}, 5, v{T0}\nv_add_u32 v{VTR+3+dt}, {4*WS_}, v{VTR+dt}")
    k(f"s_lshl_b32 s30, s26, 11\nv_add_u32 v{VAO}, s30, v{V16}\nv_add_u32 v{VAO+1}, 32768, v{VAO}")
    k(f"v_lshlrev_b32 v{T0}, 8, v{VG}\nv_lshl_add_u32 v{T0}, v{VI}, 2, v{T0}\nv_add_u32 v{VAE}, s30, v{T0}\nv_add_u32 v{VAE}, 65536, v{VAE}")
    k(f"v_lshlrev_b32 v{T0}, 3, v{VG}\nv_sub_u32 v{T0}, v{VI}, v{T0}\nv_mov_b32 v{T1}, 0x3f80\nv_mov_b32 v{T2}, 0x3f800000")
    for j2 in range(4):
        k(f"v_cmp_eq_u32 vcc, {2*j2}, v{T0}\nv_cmp_eq_u32 s[30:31], {2*j2+1}, v{T0}\nv_cndmask_b32 v{IDN+j2}, 0, v{T1}, vcc")
        k(f"v_cndmask_b32 v{IDN+j2}, v{IDN+j2}, v{T2}, s[30:31]")
    def reads(n):
        st, ks, rs = n >> 1, n & 1, n % 3
        slot = st % R
        out = []
        for tt in range(2):
            if st < 8: out.append(f"ds_read_b128 {v(AF+rs*8+tt*4,4)}, v{VAO+(st>>2)} offset:{(st&3)*8192+ks*4096+tt*1024}")
            else: out += [f"ds_read_b32 v{AF+rs*8+tt*4+q}, v{VAE} offset:{ks*4096+tt*1024+q*64}" for q in range(4)]
        for dt in range(3):
            for hf in range(2):
                out.append(f"ds_read_b64_tr_b16 {v(BF+rs*12+dt*4+hf*2,2)}, v{VTR+3*(slot//4)+dt} offset:{(slot%4)*WS_+ks*6144+hf*3072}")
        return out
    def mf(n):
        rs = n % 3
        return [f"v_mfma_f32_16x16x32_bf16 {v(ACC+(tt*3+dt)*4,4)}, {v(AF+rs*8+tt*4,4)}, {v(BF+rs*12+dt*4,4)}, {v(ACC+(tt*3+dt)*4,4)}"
                for tt in range(2) for dt in range(3)]
    k(f"s_mul_i32 s30, s26, 6144\ns_mul_i32 s31, s27, 96\ns_add_u32 s30, s30, s31\ns_add_u32 s30, s30, {LX}\nv_mul_u32_u24 v{T0}, 192, v{VI}\nv_and_b32 v{T1}, 16, v{VL}\nv_add3_u32 v{T0}, v{T0}, v{T1}, s30")
    for q in range(6): k(f"ds_read_b128 {v(XR+q*4,4)}, v{T0} offset:{(q//3)*3072+(q%3)*32}")
    k("s_waitcnt lgkmcnt(0)")
    for q in range(6):
        k(f"v_mfma_f32_16x16x32_bf16 {v(ACC+q*4,4)}, {v(XR+q*4,4)}, {v(IDN,4)}, 0")
    k("s_barrier")
    if os.environ.get("P3S"): k("STAMP 12")
    for t in reads(0) + reads(1): k(t)
    for n in range(18):
        if n in (2, 16): k("s_waitcnt lgkmcnt(0)\ns_barrier")
        elif n in (8, 12): k(f"s_waitcnt lgkmcnt({len(reads(n + 1))})\ns_barrier")
        elif n < 16: k(f"s_waitcnt lgkmcnt({len(reads(n + 1))})")
        if os.environ.get("P3S") and n in (8, 12): k(f"STAMP {13 + (n == 12)}")
        for t in interleave(mf(n), reads(n + 2) if n + 2 < 18 else [], 0, 2): k(t)
    k("STAMP 5")
    PK = XR; ST = AF
    for dt in range(3):
        for tt in range(2):
            ac = ACC + (tt * 3 + dt) * 4
            k(f"v_cvt_pk_bf16_f32 v{PK+dt*4+tt*2}, v{ac}, v{ac+1}\nv_cvt_pk_bf16_f32 v{PK+dt*4+tt*2+1}, v{ac+2}, v{ac+3}")
    for dt in range(3):
        for tt in range(2):
            for h2 in range(2):
                p = PK + dt * 4 + tt * 2 + h2
                x0 = ACC + (tt * 3 + dt) * 4 + 2 * h2
                k(f"v_lshlrev_b32 v{x0}, 16, v{p}\nv_and_b32 v{x0+1}, 0xffff0000, v{p}")
                sm, sq_ = ST + tt * 4 + 2 * h2, ST + 8 + tt * 4 + 2 * h2
                if dt == 0: k(f"v_pk_mul_f32 {v(sq_,2)}, {v(x0,2)}, {v(x0,2)}")
                else: k(f"v_pk_fma_f32 {v(sq_,2)}, {v(x0,2)}, {v(x0,2)}, {v(sq_,2)}")
                if dt == 1: k(f"v_pk_add_f32 {v(sm,2)}, {v(x0-4,2)}, {v(x0,2)}")
                if dt == 2: k(f"v_pk_add_f32 {v(sm,2)}, {v(sm,2)}, {v(x0,2)}")
    for sh in (8, 4, 2, 1):
        for r in range(16):
            k(f"v_add_f32_dpp v{ST+r}, v{ST+r}, v{ST+r} row_ror:{sh} row_mask:0xf bank_mask:0xf")
    SG = BF + 12
    for r in range(8): k(f"v_mov_b32 v{SG+2*r}, v{ST+r}\nv_or_b32 v{SG+2*r+1}, 0x80000000, v{ST+8+r}")
    k(f"s_lshl_b32 s31, s24, 1\ns_add_u32 s31, s31, s26")
    k(f"s_lshl_b32 s33, s31, 8\ns_add_u32 s33, s33, {WS_ST}")
    k(f"s_lshl_b32 s30, s25, 1\ns_add_u32 s30, s30, s27\ns_lshl_b32 s30, s30, 14\ns_add_u32 s30, s30, s33")
    k(f"v_cmp_eq_u32 s[38:39], 1, v{VI}\nv_cmp_eq_u32 s[40:41], 2, v{VI}\nv_cmp_eq_u32 s[42:43], 3, v{VI}\nv_cmp_gt_u32 vcc, 4, v{VI}")
    k(f"v_lshrrev_b32 v{T0}, 1, v{VI}\nv_lshlrev_b32 v{T0}, 7, v{T0}\nv_lshl_add_u32 v{T0}, v{VG}, 5, v{T0}\nv_and_b32 v{T1}, 1, v{VI}\nv_lshl_add_u32 v{T0}, v{T1}, 4, v{T0}")
    for q in range(1, 4):
        for r in range(4): k(f"v_cndmask_b32 v{SG+r}, v{SG+r}, v{SG+4*q+r}, s[{36+2*q}:{37+2*q}]")
    k(f"s_and_saveexec_b64 s[38:39], vcc\nbuffer_store_dwordx4 {v(SG,4)}, v{T0}, s[20:23], s30 offen{WT}\ns_mov_b64 exec, s[38:39]")
    VH = VTR
    k(f"v_lshlrev_b32 v{VH}, 4, v{VL}")
    k(f"s_mul_i32 s30, s25, 6\ns_mul_i32 s32, s27, 3\ns_add_u32 s30, s30, s32\ns_mul_i32 s30, s30, {PS}")
    k(f"s_lshl_b32 s32, s31, 10\ns_add_u32 s30, s30, s32\ns_add_u32 s32, s30, {WS_HN}\ns_add_u32 s30, s30, {WS_H}")
    k("s_mov_b32 s35, s30")
    VS = VTR + 1
    P = BF
    k(f"v_lshrrev_b32 v{T0}, 5, v{VL}\nv_mul_u32_u24 v{VS}, {6*16384}, v{T0}\nv_and_b32 v{T0}, 31, v{VL}\nv_lshl_add_u32 v{VS}, v{T0}, 3, v{VS}")
    for p in range(6): k(f"s_add_u32 s{40+p}, s33, {p*16384}")
    POLL = k.lab("POLL"); GO = k.lab("GO")
    k(f"s_mov_b32 s37, 0x40000" + ("" if 'nosw' in XM else "\ns_waitcnt vmcnt(0)") + f"\n{POLL}:")
    for p in range(6):
        k(f"buffer_load_dwordx2 {v(P+2*p,2)}, v{VS}, s[20:23], s{40+p} offen sc0 sc1")
    k("s_waitcnt vmcnt(0)")
    k(f"v_and_b32 v{T1}, v{P+1}, v{P+3}\nv_and_b32 v{T2}, v{P+5}, v{P+7}\nv_and_b32 v{T3}, v{P+9}, v{P+11}\nv_and_b32 v{T1}, v{T1}, v{T2}\nv_and_b32 v{T1}, v{T1}, v{T3}")
    k(f"v_cmp_le_i32 vcc, 0, v{T1}\ns_sub_u32 s37, s37, 1\ns_cmp_eq_u32 s37, 0\ns_cbranch_scc1 {GO}\ns_cbranch_vccz {GO}\ns_sleep 1\ns_branch {POLL}\n{GO}:")
    if os.environ.get("P3S"): k("STAMP 15")
    for dt in range(3):
        k(f"buffer_store_dwordx4 {v(PK+dt*4,4)}, v{VH}, s[20:23], s35 offen{WT}\ns_add_u32 s35, s35, {PS}")
    for p in range(1, 6):
        k(f"v_add_f32 v{P}, v{P}, v{P+2*p}\nv_add_f32 v{P+1}, v{P+1}, v{P+2*p+1}")
    k(f"v_mov_b32 v{P+2}, v{P}\nv_mov_b32 v{P+3}, v{P+1}")
    k(f"v_permlane32_swap_b32 v{P}, v{P+2}\nv_permlane32_swap_b32 v{P+1}, v{P+3}")
    k(f"v_add_f32 v{P}, v{P}, v{P+2}\nv_add_f32 v{P+1}, v{P+1}, v{P+3}")
    k(f"s_mov_b32 s34, {f32(1.0/576)}")
    mn, sq = P, P + 1
    k(f"v_mul_f32 v{mn}, s34, v{mn}\nv_mul_f32 v{sq}, s34, -v{sq}\nv_fma_f32 v{sq}, -v{mn}, v{mn}, v{sq}\nv_max_f32 v{sq}, 0, v{sq}")
    k(f"v_add_f32 v{P+2}, {f32(1e-5)}, v{sq}\nv_rsq_f32 v{P+2}, v{P+2}")
    k(f"v_mul_f32 v{sq}, v{sq}, v{P+2}\nv_mul_f32 v{sq}, v{sq}, v{P+2}\nv_add_f32 v{sq}, {f32(1e-5)}, v{sq}\nv_rsq_f32 v{sq}, v{sq}")
    k(f"v_mul_f32 v{P+2}, v{P+2}, v{sq}\nv_mul_f32 v{P+3}, -v{mn}, v{P+2}")
    k(f"s_lshl_b32 s33, s28, 8\ns_add_u32 s33, s33, {LAB}\nv_lshlrev_b32 v{T0}, 3, v{T0}\nv_add_u32 v{T0}, s33, v{T0}")
    k(f"ds_write_b64 v{T0}, {v(P+2,2)}")
    k(f"v_lshlrev_b32 v{T0}, 5, v{VG}\nv_add_u32 v{T0}, s33, v{T0}\ns_waitcnt lgkmcnt(0)")
    AB = ST
    for q in range(4):
        k(f"ds_read_b128 {v(AB+4*q,4)}, v{T0} offset:{(q>>1)*128+(q&1)*16}")
    k(f"s_lshl_b32 s30, s25, 12\ns_lshl_b32 s31, s24, 7\ns_add_u32 s30, s30, s31\ns_add_u32 s30, s30, {F3}\nv_mov_b32 v{T1}, 0\nv_mov_b32 v{T2}, 1")
    k("s_waitcnt lgkmcnt(0)")
    for dt in range(3):
        for tt in range(2):
            x0 = ACC + (tt * 3 + dt) * 4
            for r in range(4): k(f"v_fma_f32 v{x0+r}, v{x0+r}, v{AB+tt*8+2*r}, v{AB+tt*8+2*r+1}")
            k(f"v_cvt_pk_bf16_f32 v{PK+12+dt*4+tt*2}, v{x0}, v{x0+1}\nv_cvt_pk_bf16_f32 v{PK+12+dt*4+tt*2+1}, v{x0+2}, v{x0+3}")
        k(f"buffer_store_dwordx4 {v(PK+12+dt*4,4)}, v{VH}, s[20:23], s32 offen{WT}\ns_add_u32 s32, s32, {PS}")
    k("s_waitcnt vmcnt(0)")
    last_wave_flag(k, T1, T2, T3, LCNT + 4, 20, 30)
    k(f"s_branch {NXT}")
    k(f"{PROD}:\ns_and_b32 s29, s28, 1\ns_cmp_ge_u32 s28, 6\ns_cbranch_scc1 {PO}")
    VWD, VWE = 10, 16
    for q in range(6):
        k(f"v_add_u32 v{T0}, {q*64}, v{VL}")
        k(f"v_mul_u32_u24 v{T1}, 5462, v{T0}\nv_lshrrev_b32 v{T1}, 16, v{T1}")
        k(f"v_mul_u32_u24 v{T2}, 12, v{T1}\nv_sub_u32 v{T0}, v{T0}, v{T2}")
        k(f"v_bfe_u32 v{T2}, v{T1}, 2, 1\nv_lshlrev_b32 v{T2}, 1, v{T2}\nv_xor_b32 v{T0}, v{T0}, v{T2}\nv_lshlrev_b32 v{VWE+q}, 4, v{T0}")
        k(f"v_and_b32 v{T2}, 7, v{T1}")
        k(f"v_bfe_u32 v{T3}, v{T1}, 3, 1\nv_mad_u32_u24 v{T2}, v{T3}, 20, v{T2}")
        k(f"v_bfe_u32 v{T3}, v{T1}, 4, 1\nv_lshl_add_u32 v{T2}, v{T3}, 3, v{T2}")
        k(f"v_mul_u32_u24 v{T2}, 1152, v{T2}\nv_add_u32 v{VWD+q}, v{T2}, v{VWE+q}")
    k(f"s_mul_i32 s33, s25, 192\ns_mul_i32 s30, s29, {8*36*1152}\ns_add_u32 s39, s33, s30\ns_mul_i32 s30, s29, {36*1152}\ns_add_u32 s33, s33, s30")
    k(f"s_mul_i32 s35, s29, 6144\ns_add_u32 s35, s35, {WB}")
    srd(k, 16, PWO, D_ * D_ * 2)
    def issue_w(st):
        for q in range(6): k(dma(35, (st % R) * WS_ + q * 1024, (VWD if st < 8 else VWE) + q, 16, 33 if st < 8 else 39))
        k(f"s_add_u32 s33, s33, {72*1152}")
    for st in range(7): issue_w(st)
    for q in range(6):
        k(f"v_add_u32 v{T0}, {q*64}, v{VL}\nv_mul_u32_u24 v{T1}, 5462, v{T0}\nv_lshrrev_b32 v{T1}, 16, v{T1}\n"
          f"v_bfe_u32 v{T2}, v{T1}, 2, 2\nv_lshlrev_b32 v{T2}, 1, v{T2}\nv_bfe_u32 v{T3}, v{T1}, 4, 1\nv_add_u32 v{T2}, v{T2}, v{T3}\nv_mul_u32_u24 v{T2}, 36, v{T2}\n"
          f"v_and_b32 v{T3}, 3, v{T1}\nv_add3_u32 v{T2}, v{T2}, v{T3}, 16\nv_mul_u32_u24 v{T2}, 1152, v{T2}\nv_add_u32 v{VWE+q}, v{T2}, v{VWE+q}")
    k("s_waitcnt vmcnt(0)\ns_barrier\ns_barrier")
    for st in range(7, 9): issue_w(st)
    k(f"s_barrier\ns_waitcnt vmcnt(0)\ns_barrier\ns_barrier\ns_branch {NXT}")
    k(f"{PO}:")
    VO = 10
    k(f"v_lshrrev_b32 v{T0}, 1, v{VG}\nv_mul_u32_u24 v{T0}, {PS}, v{T0}\nv_and_b32 v{T1}, 1, v{VG}\nv_lshl_add_u32 v{T0}, v{T1}, 9, v{T0}\nv_lshl_add_u32 v{T0}, v{VI}, 4, v{T0}")
    k(f"v_lshrrev_b32 v{T1}, 2, v{VL}\nv_lshlrev_b32 v{T1}, 13, v{T1}\nv_and_b32 v{T2}, 3, v{VL}\nv_lshl_add_u32 v{T1}, v{T2}, 4, v{T1}")
    for q in range(4): k(f"v_add_u32 v{VO+q}, {(q>>1)*1024+(q&1)*256}, v{T0}\nv_add_u32 v{VO+4+q}, {q*64}, v{T1}")
    k(f"s_lshl_b32 s32, s24, 11\ns_mul_i32 s30, s29, {2*PS}\ns_add_u32 s32, s32, s30\ns_add_u32 s32, s32, {WS_OM}\ns_lshl_b32 s30, s29, 17")
    k(f"s_lshl_b32 s38, s24, 8\ns_add_u32 s38, s38, s30\ns_add_u32 s38, s38, {WS_O8}\ns_lshl_b32 s34, s29, 12")
    k(f"s_lshr_b32 s30, s24, 1\ns_lshl_b32 s30, s30, 11\ns_add_u32 s30, s30, {F2}\nv_lshlrev_b32 v{T0}, 7, v{VL}")
    W7, WD = k.lab("W7"), k.lab("WD")
    k(f"s_cmp_eq_u32 s28, 7\ns_cbranch_scc1 {W7}\ns_waitcnt vmcnt(0)\ns_mov_b64 exec, 0xffff")
    poll(k, T0, T1, 1, 20, 30)
    k("s_mov_b64 exec, -1")
    lds_signal(k, T0, LCNT + 20)
    k(f"s_branch {WD}\n{W7}:")
    wait_local(k, T0, LCNT + 20, n=1)
    k(f"{WD}:\nSTAMP 5")
    def issue_o(st):
        for q in range(4): k(dma(34, st * 8192 + q * 1024, VO + q + (4 if st == 8 else 0), 20, 32 if st < 8 else 38, SC))
        k(f"s_add_u32 s32, s32, {4*PS}")
    for st in range(5): issue_o(st)
    k("s_waitcnt vmcnt(12)\ns_barrier")
    for st in range(5, 9): issue_o(st)
    k(f"s_waitcnt vmcnt(16)\ns_barrier\ns_waitcnt vmcnt(8)\ns_barrier\ns_waitcnt vmcnt(0)\ns_barrier\ns_barrier\ns_branch {NXT}")
    k(f"{PF}:\ns_sub_u32 s29, s2, 192")
    if 'early3' in XM:
        NE = k.lab("NE")
        k(f"s_cmp_lt_u32 s11, 27\ns_cbranch_scc1 {NE}")
        w1slow(k)
        k(f"{NE}:")
    pf(k, "PF3", 29, 64, 512, 10)
    r1 = int(os.environ.get("L2W1", 0))
    if r1:
        k("s_sub_u32 s29, s11, 24")
        w1_rows(k, 29, r1 // 8, 0, 0)
    k(f"s_branch {NXT}")

def p4(k, ENT, NXT):
    STG = 28672; R = 4; N = 32
    PROD = k.lab("P4PROD"); PF = k.lab("P4PF"); PA = k.lab("P4PA")
    k(f"{ENT}:\nSTAMP 6")
    k(f"s_cmp_ge_u32 s11, 27\ns_cbranch_scc1 {PF}")
    k("s_mul_i32 s24, s11, 10923\ns_lshr_b32 s24, s24, 16\ns_mul_i32 s25, s24, 6\ns_sub_u32 s25, s11, s25")
    k("s_and_b32 s29, s10, 1\ns_mul_i32 s30, s29, 5\ns_add_u32 s24, s24, s30")
    k("s_mul_i32 s30, s29, 3\ns_add_u32 s30, s30, s25")
    k("s_cmp_ge_u32 s11, 24\ns_cselect_b32 s24, 4, s24\ns_cselect_b32 s25, s30, s25\ns_mov_b32 s47, s24")
    k("s_lshr_b32 s30, s10, 1\ns_mul_i32 s30, s30, 9\ns_add_u32 s24, s24, s30")
    ids16(k)
    k(f"s_cmp_ge_u32 s28, 4\ns_cbranch_scc1 {PROD}")
    k("s_lshr_b32 s26, s28, 1\ns_and_b32 s27, s28, 1")
    VTR, VHR, B1, ACC, WF, HF = 12, 20, 26, 36, 84, 116
    srd(k, 16, PB1, F_ * 2)
    k(f"v_lshlrev_b32 v{T0}, 3, v{VG}\ns_lshl_b32 s30, s24, 8\ns_lshl_b32 s31, s26, 7\ns_add_u32 s30, s30, s31")
    for f4 in range(4):
        k(f"buffer_load_dwordx2 {v(B1+2*f4,2)}, v{T0}, s[16:19], s30 offen offset:{f4*32}")
    k(f"v_bfe_u32 v{T0}, v{VL}, 2, 2\nv_lshl_add_u32 v{T0}, v{VG}, 2, v{T0}")
    k(f"v_and_b32 v{T1}, 7, v{T0}\nv_lshlrev_b32 v{T0}, 8, v{T0}\nv_and_b32 v{T2}, 3, v{VL}\nv_lshl_add_u32 v{T0}, v{T2}, 3, v{T0}")
    k("s_lshl_b32 s30, s26, 2")
    for f4 in range(4):
        k(f"s_add_u32 s31, s30, {f4}\nv_xor_b32 v{T2}, s31, v{T1}\nv_lshl_add_u32 v{VTR+f4}, v{T2}, 5, v{T0}\nv_add_u32 v{VTR+4+f4}, {2*STG}, v{VTR+f4}")
    k(f"s_mul_i32 s30, s27, 3072\ns_add_u32 s30, s30, 16384\nv_lshlrev_b32 v{VHR}, 4, v{VL}\nv_add_u32 v{VHR}, s30, v{VHR}\nv_add_u32 v{VHR+1}, {2*STG}, v{VHR}")
    for r in range(48): k(f"v_mov_b32 v{ACC+r}, 0")
    k(f"s_mul_i32 s31, s25, 6\ns_mul_i32 s38, s27, 3\ns_add_u32 s31, s31, s38\ns_mul_i32 s31, s31, {144*1024}")
    k(f"s_lshl_b32 s38, s24, 12\ns_add_u32 s31, s31, s38\ns_lshl_b32 s38, s26, 11\ns_add_u32 s31, s31, s38\ns_add_u32 s40, s31, {WS_U}")
    k(f"s_lshr_b32 s30, s10, 1\ns_mul_i32 s30, s30, 6\ns_add_u32 s30, s30, s25\ns_mul_i32 s30, s30, 9\ns_add_u32 s30, s30, s47\ns_lshl_b32 s30, s30, 7\ns_add_u32 s41, s30, {F4}")
    def reads(st, slot, ks, rs):
        hi = slot >> 1; off = (slot & 1) * STG
        out = []
        for f4 in range(4):
            for hf in range(2):
                out.append(f"ds_read_b64_tr_b16 {v(WF+rs*16+f4*4+hf*2,2)}, v{VTR+4*hi+f4} offset:{off+ks*8192+hf*4096}")
            if f4 < 3:
                out.append(f"ds_read_b128 {v(HF+rs*12+f4*4,4)}, v{VHR+hi} offset:{off+ks*6144+f4*1024}")
        return out
    def mf(st, ks, rs):
        return [f"v_mfma_f32_16x16x32_bf16 {v(ACC+(f4*3+dt)*4,4)}, {v(WF+rs*16+f4*4,4)}, {v(HF+rs*12+dt*4,4)}, {v(ACC+(f4*3+dt)*4,4)}"
                for f4 in range(4) for dt in range(3)]
    consumer_loop(k, N, R, reads, mf, per=1, stamp0=None if (os.environ.get('P3S') or os.environ.get('P2S')) else 14)
    k("STAMP 7")
    c1 = -2.0 * math.sqrt(2.0 / math.pi) * math.log2(math.e)
    c2 = c1 * 0.044715
    CC = VTR
    k(f"v_mov_b32 v{CC}, {f32(c2)}\nv_mov_b32 v{CC+1}, {f32(c1)}")
    BB = WF
    k("s_waitcnt vmcnt(0)")
    for f4 in range(4):
        for h2 in range(2):
            k(f"v_lshlrev_b32 v{BB+f4*4+h2*2}, 16, v{B1+f4*2+h2}\nv_and_b32 v{BB+f4*4+h2*2+1}, 0xffff0000, v{B1+f4*2+h2}")
    k(f"v_lshlrev_b32 v{T0}, 4, v{VL}")
    TT = WF + 16; PKD = HF
    for dt in range(3):
        for pr in range(2):
            xb = [ACC + ((2 * pr + h) * 3 + dt) * 4 for h in range(2)]
            xs = [xb[h] + r for h in range(2) for r in range(4)]
            for h in range(2):
                for h2 in range(2): k(f"v_pk_add_f32 {v(xb[h]+2*h2,2)}, {v(xb[h]+2*h2,2)}, {v(BB+(2*pr+h)*4+2*h2,2)}")
            for h in range(2):
                for h2 in range(2): k(f"v_pk_mul_f32 {v(TT+4*h+2*h2,2)}, {v(xb[h]+2*h2,2)}, {v(xb[h]+2*h2,2)}")
            for n in range(4): k(f"v_pk_fma_f32 {v(TT+2*n,2)}, {v(TT+2*n,2)}, {v(CC,2)}, {v(CC,2)} op_sel:[0,0,1] op_sel_hi:[1,0,1]")
            for h in range(2):
                for h2 in range(2): k(f"v_pk_mul_f32 {v(TT+4*h+2*h2,2)}, {v(TT+4*h+2*h2,2)}, {v(xb[h]+2*h2,2)}")
            for n in range(8): k(f"v_exp_f32 v{TT+n}, v{TT+n}")
            for n in range(4): k(f"v_pk_add_f32 {v(TT+2*n,2)}, {v(TT+2*n,2)}, 1.0 op_sel_hi:[1,0]")
            for n in range(8): k(f"v_rcp_f32 v{TT+n}, v{TT+n}")
            for h in range(2):
                for h2 in range(2): k(f"v_pk_mul_f32 {v(xb[h]+2*h2,2)}, {v(xb[h]+2*h2,2)}, {v(TT+4*h+2*h2,2)}")
            o = PKD + (dt * 2 + pr) * 4
            for n in range(4): k(f"v_cvt_pk_bf16_f32 v{o+n}, v{xs[2*n]}, v{xs[2*n+1]}")
            k(f"buffer_store_dwordx4 {v(o,4)}, v{T0}, s[20:23], s40 offen offset:{pr*1024}{WT}")
        k(f"s_add_u32 s40, s40, {144*1024}")
    k(f"v_mov_b32 v{T1}, 0\nv_mov_b32 v{T2}, 1\ns_waitcnt vmcnt(0)")
    last_wave_flag(k, T1, T2, T3, LCNT + 8, 20, 41)
    k(f"s_branch {NXT}")
    k(f"{PROD}:\ns_and_b32 s26, s28, 1\ns_cmp_ge_u32 s28, 6\ns_cbranch_scc1 {PA}")
    VD = 10
    for q in range(2):
        k(f"v_add_u32 v{T0}, {4*q}, v{VG}")
        k(f"v_lshlrev_b32 v{T1}, 1, v{T0}\nv_xor_b32 v{T1}, v{T1}, v{VI}\nv_lshlrev_b32 v{T1}, 4, v{T1}")
        k(f"v_mul_u32_u24 v{T0}, 9216, v{T0}\nv_add_u32 v{VD+q}, v{T0}, v{T1}")
    for q in range(2, 8): k(f"v_add_u32 v{VD+q}, {8*9216}, v{VD+q-2}")
    k(f"s_lshl_b32 s32, s24, 8\ns_mul_i32 s30, s26, {32*9216}\ns_add_u32 s32, s32, s30\ns_lshl_b32 s34, s26, 13")
    srd(k, 12, PW1, S_ * F_ * 2)
    producer_loop(k, N, R, 8, lambda st, slot: [dma(34, slot * STG + q * 1024, VD + q, 12, 32) for q in range(8)] + [f"s_add_u32 s32, s32, {64*9216}"], NXT, first=int(os.environ.get("FIRST4", 2)))
    k(f"{PA}:")
    k(f"v_lshlrev_b32 v{VD}, 4, v{VL}")
    for q in range(1, 6): k(f"v_add_u32 v{VD+q}, {PS}, v{VD+q-1}")
    k(f"s_mul_i32 s33, s25, {6*PS}\ns_lshl_b32 s30, s26, 10\ns_add_u32 s33, s33, s30\ns_add_u32 s33, s33, {WS_HN}")
    k("s_mul_i32 s35, s26, 6144\ns_add_u32 s35, s35, 16384")
    k(f"s_lshl_b32 s30, s25, 12\ns_add_u32 s30, s30, {F3}\nv_lshlrev_b32 v{T0}, 7, v{VL}")
    W7, WD = k.lab("W7"), k.lab("WD")
    k(f"s_cmp_eq_u32 s28, 7\ns_cbranch_scc1 {W7}")
    if 'nogate' not in XM:
        NG, NG2 = k.lab("NG"), k.lab("NG")
        k(f"s_cmp_ge_u32 s2, 192\ns_cbranch_scc1 {NG}")
        wait_local(k, 20, LCNT + 4)
        k(f"s_branch {NG2}\n{NG}:\ns_mov_b64 exec, 1")
        poll(k, T0, 20, 1, 20, 30, sleep=8)
        k(f"s_mov_b64 exec, -1\n{NG2}:")
    k("s_mov_b32 exec_hi, 0")
    poll(k, T0, 20, 1, 20, 30)
    k("s_mov_b32 exec_hi, -1")
    lds_signal(k, 20, LCNT + 24)
    k(f"s_branch {WD}\n{W7}:")
    wait_local(k, 20, LCNT + 24, n=1)
    k(f"{WD}:\nSTAMP 7")
    producer_loop(k, N, R, 6, lambda st, slot: [dma(35, slot * STG + q * 1024, VD + q, 20, 33, SC) for q in range(6)] + ["s_add_u32 s33, s33, 2048"], NXT)
    k(f"{PF}:\ns_sub_u32 s29, s2, 216")
    pf(k, "PF4", 29, 40, 512, 10)
    if 'early4' in XM: w1slow(k)
    if 'nopoison' not in XM:
        srd(k, 56, PDBG, 256)
        k(f"s_mul_i32 s30, s29, 196608\ns_add_u32 s30, s30, {WS_P}\nv_lshlrev_b32 v10, 4, v0\nv_mov_b32 v12, -1\nv_mov_b32 v13, -1\nv_mov_b32 v14, -1\nv_mov_b32 v15, -1")
        for i in range(24): k(f"buffer_store_dwordx4 v[12:15], v10, s[20:23], s30 offen{WT}\ns_add_u32 s30, s30, 8192")
        NZ = k.lab("NZ")
        k(f"v_mov_b32 v16, 4\nv_mov_b32 v17, 1\ns_waitcnt vmcnt(0)\ns_barrier\ns_cmp_lg_u32 s28, 0\ns_cbranch_scc1 {NZ}")
        k(f"s_mov_b64 exec, 1\nbuffer_atomic_add v17, v16, s[56:59], 0 offen sc1\ns_mov_b64 exec, -1\n{NZ}:")
    if 'noslow' not in XM:
        def gated(flag_off, lines_code):
            NP = k.lab("NP")
            k(f"s_cmp_lg_u32 s28, 0\ns_cbranch_scc1 {NP}\ns_mov_b32 s30, {flag_off}\nv_mov_b32 v12, 0\ns_mov_b64 exec, 1")
            poll(k, 12, 13, 1, 20, 30, sleep=8)
            k(f"s_mov_b64 exec, -1\n{NP}:\ns_barrier")
            lines_code()
        def w2slow():
            srd(k, 52, PW2, S_ * F_ * 2)
            k(f"s_lshr_b32 s60, s10, 1\ns_mul_i32 s60, s60, {1152*4096}\ns_and_b32 s61, s10, 1\ns_lshl_b32 s61, s61, 11\ns_add_u32 s60, s60, s61\ns_add_u32 s60, s60, 384")
            k(f"s_sub_u32 s62, s11, 27\nv_lshrrev_b32 v10, 1, v0\nv_mul_u32_u24 v10, 5, v10\nv_add_u32 v10, s62, v10\nv_lshlrev_b32 v10, 12, v10\nv_and_b32 v11, 1, v0\nv_lshl_add_u32 v10, v11, 10, v10")
            k(f"v_cmp_gt_u32 vcc, {2*231}, v0\nv_mov_b32 v11, 0x7ff00000\nv_cndmask_b32 v10, v11, v10, vcc")
            k(f"buffer_load_dword v{DUMMY}, v10, s[52:55], s60 offen")
        gated(F3, lambda: w1slow(k))
        if 'now2' not in XM: gated(F4 + 128 * 2, w2slow)
    if os.environ.get("JIT4"):
        s0, sw = [int(t) for t in os.environ["JIT4"].split(",")]
        k(f"s_mov_b32 s30, {F3}\nv_lshlrev_b32 v12, 7, v0\nv_cmp_gt_u32 vcc, 192, v0\ns_and_saveexec_b64 s[62:63], vcc")
        NP = k.lab("NP")
        k(f"s_cbranch_execz {NP}")
        poll(k, 12, 13, 1, 20, 30)
        k(f"{NP}:\ns_mov_b64 exec, -1\ns_barrier")
        w1_addr(k, 10)
        k("s_sub_u32 s29, s11, 27")
        k(f"v_lshrrev_b32 v12, 4, v0\nv_mul_u32_u24 v12, {PS}, v12\nv_and_b32 v13, 15, v0\nv_lshl_add_u32 v12, v13, 7, v12")
        k(f"v_add_u32 v13, {32*PS}, v12\nv_mov_b32 v14, 0x7ff00000\nv_cmp_gt_u32 vcc, 64, v0\nv_cndmask_b32 v13, v14, v13, vcc")
        k(f"s_lshl_b32 s61, s29, 11\ns_add_u32 s61, s61, {WS_HN + s0*2048}\ns_mul_i32 s62, s29, {64*9216}\ns_add_u32 s60, s60, s62\ns_add_u32 s60, s60, {s0*64*9216}")
        for st in range(s0, 32, 5):
            k(f"buffer_load_dword v{DUMMY}, v12, s[20:23], s61 offen\nbuffer_load_dword v{DUMMY}, v13, s[20:23], s61 offen\ns_add_u32 s61, s61, {5*2048}")
            if st + 4 >= sw:
                k(f"buffer_load_dword v{DUMMY}, v10, s[52:55], s60 offen\ns_add_u32 s62, s60, {32*9216}\nbuffer_load_dword v{DUMMY}, v10, s[52:55], s62 offen")
            k(f"s_add_u32 s60, s60, {5*64*9216}")
    k(f"s_branch {NXT}")

def p5(k, ENT):
    STG = 34816; R = 4; N = 18
    PROD = k.lab("P5PROD"); PA = k.lab("P5PA"); FIN = k.lab("FIN")
    k(f"{ENT}:\nSTAMP 8")
    k("s_lshr_b32 s26, s10, 1\ns_and_b32 s25, s11, 3\ns_lshr_b32 s24, s11, 2")
    if 'nomap5' not in XM:
        k("s_sub_u32 s30, s10, 5\ns_cmp_lt_u32 s30, 2\ns_cselect_b32 s30, 7, 6\ns_add_u32 s24, s24, s30\ns_and_b32 s24, s24, 7")
    k("s_and_b32 s29, s10, 1\ns_lshl_b32 s29, s29, 3\ns_add_u32 s24, s24, s29\ns_and_b32 s29, s26, 1")
    ids16(k)
    k(f"s_cmp_ge_u32 s28, 4\ns_cbranch_scc1 {PROD}")
    VTR = 10; VUR = VTR + 2 * R; B2 = VUR + R
    IDN, HR, UF = 24, 28, 48
    WF = UF + 72; ACC = WF + 16
    srd(k, 16, PB2, S_ * 2)
    srd(k, 40, POUT, S_ * D_ * 2)
    k(f"s_lshl_b32 s30, s24, 8\ns_lshl_b32 s31, s28, 6\ns_add_u32 s30, s30, s31\ns_lshl_b32 s31, s29, 5\ns_add_u32 s30, s30, s31\nv_lshlrev_b32 v{T0}, 1, v{VI}")
    k(f"buffer_load_ushort v{B2}, v{T0}, s[16:19], s30 offen")
    k(f"v_lshlrev_b32 v{T3}, 4, v{VL}")
    k(f"s_mul_i32 s49, s25, {9*PS}\ns_lshl_b32 s32, s24, 12\ns_add_u32 s49, s49, s32\ns_lshl_b32 s32, s28, 10\ns_add_u32 s49, s49, s32\ns_add_u32 s49, s49, {WS_H}")
    k(f"s_lshr_b32 s32, s26, 1\ns_mul_i32 s32, s32, {5*PS}\ns_add_u32 s49, s49, s32")
    k(f"v_bfe_u32 v{T0}, v{VL}, 2, 2\nv_lshl_add_u32 v{T0}, v{VG}, 2, v{T0}")
    k(f"v_and_b32 v{T1}, 7, v{T0}\nv_lshlrev_b32 v{T0}, 8, v{T0}\nv_and_b32 v{T2}, 3, v{VL}\nv_lshl_add_u32 v{T0}, v{T2}, 3, v{T0}")
    k("s_lshl_b32 s30, s28, 1\ns_add_u32 s30, s30, s29")
    for l in range(2):
        k(f"s_xor_b32 s31, s30, {l}\nv_xor_b32 v{T2}, s31, v{T1}\nv_lshl_add_u32 v{VTR+l}, v{T2}, 5, v{T0}")
        for sl in range(1, R): k(f"v_add_u32 v{VTR+2*sl+l}, {sl*STG}, v{VTR+l}")
    k(f"v_lshlrev_b32 v{VUR}, 4, v{VL}\nv_add_u32 v{VUR}, 16384, v{VUR}")
    for sl in range(1, R): k(f"v_add_u32 v{VUR+sl}, {sl*STG}, v{VUR}")
    k(f"v_lshlrev_b32 v{T0}, 2, v{VG}\nv_sub_u32 v{T0}, v{VI}, v{T0}\nv_mov_b32 v{T1}, 0x3f80\nv_mov_b32 v{T2}, 0x3f800000")
    k("s_cmp_eq_u32 s29, 0\ns_cselect_b64 s[38:39], -1, 0")
    for j2 in range(2):
        k(f"v_cmp_eq_u32 vcc, {2*j2}, v{T0}\nv_cndmask_b32 v{UF}, 0, v{T1}, vcc")
        k(f"v_cmp_eq_u32 vcc, {2*j2+1}, v{T0}\nv_cndmask_b32 v{UF}, v{UF}, v{T2}, vcc")
        k(f"v_cndmask_b32 v{IDN+j2}, 0, v{UF}, s[38:39]\nv_cndmask_b32 v{IDN+2+j2}, v{UF}, 0, s[38:39]")
    for r in range(72): k(f"v_mov_b32 v{ACC+r}, 0")
    k(f"s_lshl_b32 s32, s24, 2\ns_add_u32 s32, s32, s25")
    k(f"s_mul_i32 s33, s32, {48*2560}\ns_mul_i32 s30, s28, 2560\ns_add_u32 s33, s33, s30\ns_add_u32 s33, s33, {PB}")
    for x in (1, 2, 3):
        k(f"s_xor_b32 s30, s26, {x}\ns_sub_u32 s31, s26, s30\ns_sub_u32 s31, s31, 1\ns_and_b32 s31, s31, 3")
        k(f"s_mul_i32 s30, s30, 3\ns_add_u32 s30, s30, s31\ns_mul_i32 s30, s30, {4*2560}\ns_add_u32 s{44+x}, s30, s33")
    k(f"s_mul_i32 s30, s26, {12*2560}\ns_add_u32 s33, s33, s30")
    k(f"s_lshl_b32 s35, s32, 11\ns_lshl_b32 s30, s28, 9\ns_add_u32 s35, s35, s30\ns_add_u32 s35, s35, {F5}\ns_lshl_b32 s30, s26, 7\ns_add_u32 s34, s30, s35")
    k(f"s_lshl_b32 s48, s24, 7\ns_lshl_b32 s31, s28, 5\ns_add_u32 s48, s48, s31\ns_lshl_b32 s31, s29, 4\ns_add_u32 s48, s48, s31\ns_mul_i32 s48, s48, 1152\ns_mul_i32 s31, s25, 288\ns_add_u32 s48, s48, s31")
    POIS = 'nopoison' not in XM
    PZ = ACC + 73
    srd(k, 56, PDBG, 256)
    k(f"v_mov_b32 v{PZ-1}, 4")
    firstr = [True]
    def reads(st, slot, ks, rs):
        out = []
        for l in range(2):
            for hf in range(2):
                out.append(f"ds_read_b64_tr_b16 {v(WF+rs*8+l*4+hf*2,2)}, v{VTR+2*slot+l} offset:{ks*8192+hf*4096}")
        for d in range(9):
            out.append(f"ds_read_b128 {v(UF+rs*36+d*4,4)}, v{VUR+slot} offset:{ks*9216+d*1024}")
        if firstr[0]:
            firstr[0] = False
            if POIS: out.append(f"buffer_load_dword v{PZ}, v{PZ-1}, s[56:59], 0 offen sc0 sc1")
            for d in range(5): out.append(f"buffer_load_dwordx4 {v(HR+4*d,4)}, v{T3}, s[20:23], s49 offen{SC}\ns_add_u32 s49, s49, {PS}")
        return out
    def mf(st, ks, rs):
        return [f"v_mfma_f32_16x16x32_bf16 {v(ACC+(d*2+l)*4,4)}, {v(UF+rs*36+d*4,4)}, {v(WF+rs*8+l*4,4)}, {v(ACC+(d*2+l)*4,4)}"
                for d in range(9) for l in range(2)]
    consumer_loop(k, N, R, reads, mf, per=1, final_barrier=False, stamp0=None if (os.environ.get('P3S') or os.environ.get('P2S')) else 15)
    k("STAMP 9")
    V16, V8, VZ, VO = VTR, VTR + 1, VTR + 2, VTR + 3
    k(f"v_lshlrev_b32 v{V16}, 4, v{VL}\nv_lshlrev_b32 v{V8}, 3, v{VL}\nv_mov_b32 v{VZ}, 0\nv_mov_b32 v{T2}, 1\ns_waitcnt vmcnt(0)")
    if POIS:
        OK = k.lab("POK")
        k(f"v_cmp_gt_u32 vcc, 40, v{PZ}\ns_mov_b32 s31, 0\ns_nop 3\ns_cbranch_vccz {OK}")
        poll(k, PZ - 1, PZ, 1, 56, 31, want=40)
        k(f"{OK}:")
    GA, GB = [0, 1, 2, 3, 4], [5, 6, 7, 8]
    def epi(aa):
        own, oth = (GA, GB) if aa == 0 else (GB, GA)
        PK = UF
        n = 0
        for x, grp, l in ((2, oth, 0), (3, oth, 1), (1, own, 1)):
            for c in range(0, len(grp), 2):
                ds = grp[c:c + 2]
                for e, d in enumerate(ds):
                    ac = ACC + (d * 2 + l) * 4
                    k(f"v_cvt_pk_bf16_f32 v{PK+n+2*e}, v{ac}, v{ac+1}\nv_cvt_pk_bf16_f32 v{PK+n+2*e+1}, v{ac+2}, v{ac+3}")
                if len(ds) == 2: k(f"buffer_store_dwordx4 {v(PK+n,4)}, v{V16}, s[20:23], s{44+x} offen offset:{c*512}{WT}")
                else: k(f"buffer_store_dwordx2 {v(PK+n,2)}, v{V8}, s[20:23], s{44+x} offen offset:{c*512}{WT}")
                n += 4
        for e, d in enumerate(own):
            ac = v(ACC + d * 8, 4)
            k(f"v_mfma_f32_16x16x32_bf16 {ac}, {v(HR+4*e,4)}, {v(IDN,4)}, {ac}")
        k(f"v_lshlrev_b32 v{B2}, 16, v{B2}")
        k(f"v_mul_u32_u24 v{VO}, 1152, v{VI}\nv_lshl_add_u32 v{VO}, v{VG}, 3, v{VO}")
        RR = UF + 40
        chunks = [own[c:c + 2] for c in range(0, len(own), 2)]
        k(f"s_add_u32 s30, s33, {4*2560}\ns_add_u32 s31, s33, {8*2560}")
        def inbox():
            regs = []
            for ci, ds in enumerate(chunks):
                for sl, so in enumerate((33, 30, 31)):
                    r = RR + (ci * 3 + sl) * 4
                    if len(ds) == 2: k(f"buffer_load_dwordx4 {v(r,4)}, v{V16}, s[20:23], s{so} offen offset:{ci*1024} sc0 sc1")
                    else: k(f"buffer_load_dwordx2 {v(r,2)}, v{V8}, s[20:23], s{so} offen offset:{ci*1024} sc0 sc1")
                    regs += list(range(r, r + 2 * len(ds)))
            return regs
        def addb2():
            for d in own:
                for h2 in range(2): k(f"v_pk_add_f32 {v(ACC+d*8+2*h2,2)}, {v(ACC+d*8+2*h2,2)}, {v(B2-(B2&1),2)} op_sel:[0,{B2&1}] op_sel_hi:[1,{B2&1}]")
        if POIS:
            addb2()
            PL, GO = k.lab("PP"), k.lab("PG")
            k(f"s_mov_b32 s37, 0x40000\ns_waitcnt vmcnt({os.environ.get('PWAIT', 0)})\n{PL}:")
            regs = inbox()
            k(f"s_waitcnt vmcnt(0)\nv_max_u32 v{T0}, v{regs[0]}, v{regs[1]}")
            for n in range(2, len(regs), 2): k(f"v_max3_u32 v{T0}, v{T0}, v{regs[n]}, v{regs[n+1]}")
            k(f"v_cmp_eq_u32 vcc, -1, v{T0}\ns_sub_u32 s37, s37, 1\ns_cmp_eq_u32 s37, 0\ns_cbranch_scc1 {GO}\ns_cbranch_vccz {GO}\ns_sleep 2\ns_branch {PL}\n{GO}:\nSTAMP 10")
        else:
            k("s_waitcnt vmcnt(0)\nSTAMP 12")
            set_flag(k, VZ, T2, 20, 34)
            if 'fw' in XM: k("s_waitcnt vmcnt(0)")
            addb2()
            k(f"v_lshlrev_b32 v{T0}, 7, v{VL}\ns_mov_b64 exec, 0xf")
            poll(k, T0, HR, 1, 20, 35)
            k("s_mov_b64 exec, -1\nSTAMP 10")
            inbox()
        TR = 'notr' not in XM
        nch = 2 * len(own)
        if TR:
            k(f"s_mul_i32 s30, s28, 2816\ns_add_u32 s30, s30, {3*STG}\nv_mul_u32_u24 v{VO}, 176, v{VI}\nv_lshl_add_u32 v{VO}, v{VG}, 3, v{VO}\nv_add_u32 v{VO}, s30, v{VO}")
            nin = -(-16 * nch // 64)
            for q in range(nin):
                k(f"v_add_u32 v{T0}, {q*64}, v{VL}\nv_mul_u32_u24 v{T1}, {-(-65536//nch)}, v{T0}\nv_lshrrev_b32 v{T1}, 16, v{T1}\nv_mul_u32_u24 v{T2}, {nch}, v{T1}\nv_sub_u32 v{T0}, v{T0}, v{T2}\nv_lshlrev_b32 v{T0}, 4, v{T0}")
                k(f"v_mul_u32_u24 v{T2}, 176, v{T1}\nv_add3_u32 v{HR+q}, v{T2}, v{T0}, s30\nv_mul_u32_u24 v{T2}, 1152, v{T1}\nv_add_u32 v{HR+4+q}, v{T2}, v{T0}")
        nst = 0
        for ci, ds in enumerate(chunks):
            if not POIS: k(f"s_waitcnt vmcnt({3*(len(chunks)-1-ci)+nst})")
            for e, d in enumerate(ds):
                o = ACC + d * 8
                for sl in range(3):
                    for h2 in range(2):
                        p = RR + (ci * 3 + sl) * 4 + 2 * e + h2
                        t = PK + (sl * 2 + h2) * 2
                        k(f"v_lshlrev_b32 v{t}, 16, v{p}\nv_and_b32 v{t+1}, 0xffff0000, v{p}")
                for sl in range(3):
                    for h2 in range(2):
                        t = PK + (sl * 2 + h2) * 2
                        k(f"v_pk_add_f32 {v(o+2*h2,2)}, {v(o+2*h2,2)}, {v(t,2)}")
                k(f"v_cvt_pk_bf16_f32 v{o}, v{o}, v{o+1}\nv_cvt_pk_bf16_f32 v{o+1}, v{o+2}, v{o+3}")
                if TR: k(f"ds_write_b64 v{VO}, {v(o,2)} offset:{(d-own[0])*32}")
                else:
                    k(f"buffer_store_dwordx2 {v(o,2)}, v{VO}, s[40:43], s48 offen offset:{d*32}" + os.environ.get("OUTF", " nt"))
                    nst += 1
        if TR:
            k("s_waitcnt lgkmcnt(0)")
            for q in range(nin): k(f"ds_read_b128 {v(PK+16+4*q,4)}, v{HR+q}")
            for q in range(nin):
                k(f"s_waitcnt lgkmcnt({nin-1-q})")
                if (q + 1) * 64 > 16 * nch: k("s_mov_b32 exec_hi, 0")
                k(f"buffer_store_dwordx4 {v(PK+16+4*q,4)}, v{HR+4+q}, s[40:43], s48 offen offset:{own[0]*32}" + os.environ.get("OUTF", " nt"))
        k("s_endpgm")
    A1 = k.lab("A1")
    k(f"s_cmp_ge_u32 s26, 2\ns_cbranch_scc1 {A1}")
    epi(0)
    k(f"{A1}:")
    epi(1)
    k(f"{PROD}:\ns_and_b32 s29, s28, 1")
    ORD = 'noord' not in XM
    k("s_sub_u32 s38, 1, s26\ns_and_b32 s38, s38, 3\ns_cmp_eq_u32 s38, 0\ns_cselect_b32 s39, 6, 7")
    for n in range(9):
        if not ORD:
            k(f"s_mov_b32 s{40+n}, {n}"); continue
        k(f"s_mov_b32 s{40+n}, {n}")
        for d in (0, 3, 6):
            if n - d >= 0: k(f"s_cmp_le_u32 s38, {n-d}\ns_addc_u32 s{40+n}, s{40+n}, 0")
        if n >= 6: k(f"s_sub_u32 s30, {n}, s39\ns_lshl_b32 s30, s30, 2\ns_add_u32 s30, s30, s38\ns_cmp_le_u32 s39, {n}\ns_cselect_b32 s{40+n}, s30, s{40+n}")
    k(f"s_cmp_ge_u32 s28, 6\ns_cbranch_scc1 {PA}")
    VD = 10
    for q in range(2):
        k(f"v_add_u32 v{T0}, {4*q}, v{VG}")
        k(f"v_lshlrev_b32 v{T1}, 1, v{T0}\nv_xor_b32 v{T1}, v{T1}, v{VI}\nv_lshlrev_b32 v{T1}, 4, v{T1}")
        k(f"v_lshl_add_u32 v{VD+q}, v{T0}, 12, v{T1}")
    for q in range(2, 8): k(f"v_add_u32 v{VD+q}, {8*4096}, v{VD+q-2}")
    k(f"s_mul_i32 s32, s26, {1152*4096}\ns_lshl_b32 s30, s29, 17\ns_add_u32 s32, s32, s30\ns_lshl_b32 s30, s24, 8\ns_add_u32 s32, s32, s30\ns_lshl_b32 s34, s29, 13")
    srd(k, 12, PW2, F_ * S_ * 2)
    producer_loop(k, N, R, 8, lambda st, slot: [f"s_lshl_b32 s33, s{40+(st>>1)}, 19\ns_add_u32 s33, s33, s32" + (f"\ns_add_u32 s33, s33, {64*4096}" if st & 1 else "")] +
                  [dma(34, slot * STG + q * 1024, VD + q, 12, 33) for q in range(8)], FIN, final_barrier=False, first=int(os.environ.get("FIRST5", 2)), gate=lambda st: None)
    k(f"{PA}:")
    k(f"v_lshlrev_b32 v{VD}, 4, v{VL}")
    for d in range(1, 9): k(f"v_add_u32 v{VD+d}, {144*1024}, v{VD+d-1}")
    k(f"s_mul_i32 s33, s25, {9*144*1024}\ns_mul_i32 s30, s26, {36*1024}\ns_add_u32 s33, s33, s30\ns_lshl_b32 s30, s29, 10\ns_add_u32 s33, s33, s30\ns_add_u32 s33, s33, {WS_U}")
    k("s_mul_i32 s35, s29, 9216\ns_add_u32 s35, s35, 16384")
    k(f"s_mul_i32 s30, s25, 3\ns_lshr_b32 s30, s30, 1\ns_mul_i32 s31, s26, 6\ns_add_u32 s30, s30, s31\ns_mul_i32 s30, s30, {9*128}\ns_add_u32 s30, s30, {F4}")
    k(f"v_lshlrev_b32 v{T0}, 7, v{VL}")
    W7, WD = k.lab("W7"), k.lab("WD")
    k(f"s_mov_b32 s49, s30\ns_cmp_eq_u32 s28, 7\ns_cbranch_scc1 {W7}")
    if 'nogate' not in XM:
        NG, NG2 = k.lab("NG"), k.lab("NG")
        k(f"s_cmp_ge_u32 s2, 216\ns_cbranch_scc1 {NG}")
        wait_local(k, 20, LCNT + 8)
        k(f"s_branch {NG2}\n{NG}:\ns_lshl_b32 exec_lo, 1, s40\ns_mov_b32 exec_hi, 0")
        poll(k, T0, 20, 1, 20, 30, sleep=8)
        k(f"{NG2}:")
    k("s_lshl_b32 s31, 0x111, s38\ns_and_b32 s31, s31, 0x1ff\ns_mul_i32 s31, s31, 0x201\ns_andn2_b32 exec_lo, 0x3ffff, s31\ns_mov_b32 exec_hi, 0\ns_mov_b32 s49, s30" if ORD else "s_mov_b64 exec, 0x3ffff")
    poll(k, T0, 20, 1, 20, 30)
    k("s_mov_b64 exec, -1")
    lds_signal(k, 20, LCNT + 28)
    k(f"s_branch {WD}\n{W7}:")
    wait_local(k, 20, LCNT + 28, n=1)
    k(f"{WD}:\nSTAMP 9")
    def gate(st):
        if st == 12 and ORD:
            k("s_mov_b64 exec, 0x3ffff")
            poll(k, T0, 20, 1, 20, 49)
            k("s_mov_b64 exec, -1")
    producer_loop(k, N, R, 9, lambda st, slot: [f"s_lshl_b32 s32, s{40+(st>>1)}, 12\ns_add_u32 s32, s32, s33" + ("\ns_add_u32 s32, s32, 2048" if st & 1 else "")] +
                  [dma(35, slot * STG + q * 1024, VD + q, 20, 32, SC) for q in range(9)], FIN, final_barrier=False, gate=gate)
    k(f"{FIN}:\ns_endpgm")

NAME = "sequential_preLN__sliding_block__mixer_token_mlp__prompt_kernel"
def gen_mega():
    k = Kern(NAME, 512, 256, LCNT + 64)
    k.lab = (lambda f: (lambda base="L": f(base).replace(NAME[:-7], "m")))(k.lab)
    END = k.lab("END")
    k(f"s_cmp_ge_u32 s2, 256\ns_cbranch_scc1 {END}")
    k("s_load_dwordx16 s[64:79], s[0:1], 0\ns_load_dwordx4 s[80:83], s[0:1], 64\ns_load_dwordx2 s[84:85], s[0:1], 80")
    k("s_and_b32 s10, s2, 7\ns_lshr_b32 s11, s2, 3")
    if 'nocode' not in XM:
        H = k.lab("PC"); SK = k.lab("SKC")
        k(f"s_cmp_lt_u32 s2, 192\ns_cbranch_scc1 {SK}\ns_getpc_b64 s[60:61]\n{H}:\ns_sub_u32 s60, s60, {H}-L_text_begin\ns_subb_u32 s61, s61, 0")
        k(f"s_sub_u32 s62, s11, 24\ns_lshl_b32 s62, s62, 7\nv_lshlrev_b32 v{T0}, 10, v0\nv_add_u32 v{T0}, s62, v{T0}")
        k(f"s_mov_b32 s62, L_text_end-L_text_begin\nv_cmp_gt_u32 vcc, s62, v{T0}\ns_and_saveexec_b64 s[62:63], vcc\ns_cbranch_execz {SK}\nglobal_load_dword v{DUMMY}, v{T0}, s[60:61]\n{SK}:\ns_mov_b64 exec, -1")
    lane_ids(k, VL, 2, 28)
    k(f"v_lshlrev_b32 v{T0}, 2, v{VL}\nv_add_u32 v{T0}, {LCNT}, v{T0}\nv_mov_b32 v{T1}, 0\ns_mov_b64 exec, 0xffff\nds_write_b32 v{T0}, v{T1}\ns_mov_b64 exec, -1")
    E2a, E2b, E3, E4, E5 = [k.lab(n) for n in ("P2A", "P2B", "P3", "P4", "P5")]
    p1(k, (E2a, E2b))
    p2(k, (E2a, E2b), E3)
    p3(k, E3, E4)
    p4(k, E4, E5)
    p5(k, E5)
    k(f"{END}:\ns_endpgm")
    return k
```

```python
from common import *
from ring2 import *
import math, os
XM = os.environ.get('MX', 'notouch,nopoison,noslow,fw').split(',')
WT = " sc0 sc1"
SC = " sc1"
FL = WS_ST + 196608
F1 = FL; F2 = F1 + 32768; F3 = F2 + 32768; F4 = F3 + 24576; F5 = F4 + 27648; FEND = F5 + 131072
assert FEND - WS_ST <= 64 * 8192
PB = int(os.environ.get('PB', WS_P))
LX = 61440
LCNT = 160768
WS_XS = 22 * MB
WS_CS = WS_XS + 16384
PX, PWQKV, PWO, PW1, PB1, PW2, PB2, POUT, PDBG, PWS = 64, 66, 68, 72, 74, 76, 78, 80, 82, 84
VL, VG, VI = 1, 3, 4
T0, T1, T2, T3 = 5, 6, 7, 8
DUMMY = 234

def pf_flat(k, srd_, sidx, nwg, nthreads, b0, b1, tmp, vt=0, s0=60):
    lines = (b1 - b0) // 128
    per = (lines + nwg - 1) // nwg
    n = (per + nthreads - 1) // nthreads
    k(f"s_mul_i32 s{s0}, s{sidx}, {per*128}\ns_add_u32 s{s0}, s{s0}, {b0}\nv_lshlrev_b32 v{tmp}, 7, v{vt}")
    for i in range(n):
        last = per - i * nthreads
        if last < nthreads:
            k(f"v_mov_b32 v{tmp+1}, 0x7ff00000\nv_cmp_gt_u32 vcc, {last}, v{vt}\nv_cndmask_b32 v{tmp}, v{tmp+1}, v{tmp}, vcc")
        k(f"buffer_load_dword v{DUMMY}, v{tmp}, s[{srd_}:{srd_+3}], s{s0} offen\ns_add_u32 s{s0}, s{s0}, {nthreads*128}")

PFDEF = dict(PF1B="w1:0:48", PF2="w1:48:88", PF3="w1:88:128,w2:0:26", PF4="w2:26:128")
def pf(k, name, sidx, nwg, nthreads, tmp, vt=0):
    spec = os.environ.get(name, PFDEF.get(name, ""))
    if not spec or spec == "0": return
    U = S_ * F_ * 2 // 128
    for it in spec.split(","):
        w, a_, b_ = it.split(":")
        srd(k, 52, PW1 if w == "w1" else PW2, S_ * F_ * 2)
        pf_flat(k, 52, sidx, nwg, nthreads, int(a_) * U, int(b_) * U, tmp, vt=vt)

def w1_addr(k, tmp):
    srd(k, 52, PW1, S_ * F_ * 2)
    k("s_lshr_b32 s60, s10, 1\ns_mul_i32 s60, s60, 9\ns_and_b32 s61, s10, 1\ns_lshl_b32 s61, s61, 2\ns_add_u32 s60, s60, s61\ns_lshl_b32 s60, s60, 8")
    k(f"v_lshrrev_b32 v{tmp}, 4, v0\nv_mul_u32_u24 v{tmp}, 9216, v{tmp}\nv_and_b32 v{tmp+1}, 15, v0\nv_lshl_add_u32 v{tmp}, v{tmp+1}, 7, v{tmp}")
    k(f"v_cmp_lt_u32 vcc, 9, v{tmp+1}\nv_mov_b32 v{tmp+1}, 0x7ff00000\nv_cndmask_b32 v{tmp}, v{tmp}, v{tmp+1}, vcc")

def w1_rows(k, sidx, rows, r0, _):
    w1_addr(k, 10)
    k(f"s_mul_i32 s61, s{sidx}, {rows*9216}\ns_add_u32 s60, s60, s61\ns_add_u32 s60, s60, {r0*9216}")
    for i in range((rows + 31) // 32):
        k(f"buffer_load_dword v{DUMMY}, v10, s[52:55], s60 offen\ns_add_u32 s60, s60, {32*9216}")

def w1slow(k):
    srd(k, 52, PW1, S_ * F_ * 2)
    k("s_lshr_b32 s60, s10, 1\ns_mul_i32 s60, s60, 9\ns_and_b32 s61, s10, 1\ns_lshl_b32 s61, s61, 2\ns_add_u32 s60, s60, s61")
    k("s_sub_u32 s61, 1, s60\ns_and_b32 s61, s61, 3\ns_add_u32 s60, s60, s61\ns_lshl_b32 s60, s60, 8\ns_add_u32 s60, s60, 128")
    k(f"s_sub_u32 s62, s11, 27\nv_mul_u32_u24 v10, 5, v0\nv_add_u32 v10, s62, v10\nv_mul_u32_u24 v10, 9216, v10")
    k(f"buffer_load_dword v{DUMMY}, v10, s[52:55], s60 offen\ns_add_u32 s60, s60, 1024\ns_cmp_eq_u32 s61, 0\ns_cselect_b32 s54, s54, 0")
    k(f"buffer_load_dword v{DUMMY}, v10, s[52:55], s60 offen")

def ids16(k):
    k(f"v_lshrrev_b32 v{VG}, 4, v{VL}\nv_and_b32 v{VI}, 15, v{VL}")

def p1(k, NXT):
    R = 4; STG = 34816; N = 9; XO = 18432
    PROD = k.lab("P1PROD"); PF = k.lab("P1PF"); PX_ = k.lab("P1PX")
    k("s_and_b32 s24, s10, 3\ns_lshl_b32 s24, s24, 2\ns_and_b32 s25, s11, 3\ns_add_u32 s24, s24, s25")
    k("s_lshr_b32 s25, s10, 2\ns_mul_i32 s25, s25, 6\ns_lshr_b32 s29, s11, 2\ns_add_u32 s25, s25, s29")
    ids16(k)
    def touch():
        k(f"v_mul_u32_u24 v{T0}, 4682, v{VL}\nv_lshrrev_b32 v{T0}, 16, v{T0}")
        k(f"v_mul_u32_u24 v{T1}, 14, v{T0}\nv_sub_u32 v{T1}, v{VL}, v{T1}")
        k(f"v_lshrrev_b32 v{T2}, 1, v{T0}\nv_mul_u32_u24 v{T2}, 62, v{T2}\nv_add_u32 v{T0}, v{T0}, v{T2}")
        k(f"v_mul_u32_u24 v{T0}, 3456, v{T0}\nv_lshl_add_u32 v{T0}, v{T1}, 7, v{T0}\nv_lshlrev_b32 v{T1}, 7, v{VL}")
        k(f"s_add_u32 s30, s28, 1\ns_mul_i32 s30, s30, {128*3456}\ns_mul_i32 s31, s11, {2*3456}\ns_add_u32 s30, s30, s31\ns_lshr_b32 s31, s10, 2\ns_mul_i32 s31, s31, {13*128}\ns_add_u32 s30, s30, s31")
        k(f"s_and_b32 s31, s10, 3\ns_mul_i32 s31, s31, {512*1152}\ns_mul_i32 s29, s11, {16*1152}\ns_add_u32 s31, s31, s29\ns_mul_i32 s29, s28, {36*128}\ns_add_u32 s31, s31, s29")
        k("s_waitcnt lgkmcnt(0)")
        srd(k, 12, PX, S_ * D_ * 2)
        srd(k, 16, PWQKV, D_ * 1728 * 2)
        if 'notouch' in XM: return
        k("s_mov_b32 exec_hi, 0xf")
        k(f"buffer_load_dword v{DUMMY}, v{T1}, s[12:15], s31 offen")
        k("s_mov_b32 exec_hi, 0xffffff")
        k(f"buffer_load_dword v{DUMMY}, v{T0}, s[16:19], s30 offen")
        k("s_mov_b32 exec_hi, -1")
    k(f"s_cmp_ge_u32 s11, 24\ns_cbranch_scc1 {PF}")
    k(f"s_cmp_ge_u32 s28, 4\ns_cbranch_scc1 {PROD}")
    k("s_lshr_b32 s26, s25, 2\ns_and_b32 s27, s25, 3")
    VTR, VXR, VC, ZD, XF, WF = 10, 12, 16, 18, 20, 36
    ACC = WF + 72
    CSR = ACC + 72; STR = CSR + 36
    assert STR + 16 <= DUMMY
    k(f"v_bfe_u32 v{T0}, v{VL}, 2, 2\nv_lshl_add_u32 v{T0}, v{VG}, 2, v{T0}\nv_mul_u32_u24 v{T0}, 288, v{T0}")
    k(f"v_and_b32 v{T1}, 3, v{VL}\nv_lshl_add_u32 v{VTR}, v{T1}, 3, v{T0}\nv_mul_u32_u24 v{T1}, 72, v{T1}\nv_add3_u32 v{VTR+1}, v{T0}, v{T1}, 32")
    k(f"v_lshrrev_b32 v{T0}, 1, v{VI}\nv_lshrrev_b32 v{T1}, 1, v{VG}\nv_xor_b32 v{T0}, v{T0}, v{T1}\nv_lshlrev_b32 v{T0}, 4, v{T0}\nv_lshl_add_u32 v{T0}, v{VI}, 7, v{T0}")
    k(f"v_and_b32 v{T1}, 1, v{VG}\nv_lshl_add_u32 v{T0}, v{T1}, 3, v{T0}")
    k(f"s_lshl_b32 s30, s28, 12\ns_add_u32 s30, s30, {XO}\nv_add_u32 v{VXR}, s30, v{T0}")
    for q in range(1, 4): k(f"v_xor_b32 v{VXR+q}, {32*q}, v{VXR}")
    for r in range(72): k(f"v_mov_b32 v{ACC+r}, 0")
    k(f"v_mov_b32 v{VC}, 0")
    touch()
    srd(k, 20, PWS, WS_SIZE)
    srd(k, 56, PDBG, 256)
    k(f"s_mul_i32 s50, s25, {9*PS}\ns_lshl_b32 s30, s24, 2\ns_add_u32 s30, s30, s28\ns_lshl_b32 s49, s30, 7\ns_lshl_b32 s30, s30, 10\ns_add_u32 s50, s50, s30")
    k(f"s_add_u32 s49, s49, {WS_XS}\ns_mul_i32 s51, s25, 576\ns_add_u32 s51, s51, {WS_CS}")
    k(f"s_lshl_b32 s48, s27, 4\ns_add_u32 s48, s48, s24\ns_lshl_b32 s48, s48, 2\ns_add_u32 s48, s48, s26\ns_lshl_b32 s48, s48, 7\ns_add_u32 s48, s48, {F1}")
    first = [True]
    coff = [72 * (T >> 1) + 40 * (T & 1) for T in range(8)]
    def body(vor):
        first[0] = True
        def side():
            OK = k.lab("ZOK")
            if not os.environ.get("STG_STAMP"): k("STAMP 13")
            k(f"s_waitcnt vmcnt(0)\nv_cmp_gt_u32 vcc, 64, v{ZD}\ns_mov_b32 s31, 0\ns_nop 3\ns_cbranch_vccz {OK}")
            poll(k, VC, ZD, 1, 56, 31, want=64)
            k(f"{OK}:")
            if not vor:
                k(f"v_lshlrev_b32 v{VC}, 4, v{VG}\nv_mul_u32_u24 v{VC+1}, 144, v{VG}\nv_lshlrev_b32 v{ZD}, 2, v{VI}")
                for tt in range(2):
                    k(f"buffer_load_dword v{STR+2*tt}, v{ZD}, s[20:23], s49 offen offset:{tt*64}{SC}")
                k("s_add_u32 s49, s49, 8192")
                for tt in range(2):
                    k(f"buffer_load_dword v{STR+2*tt+1}, v{ZD}, s[20:23], s49 offen offset:{tt*64}{SC}")
                for T in range(9):
                    k(f"buffer_load_dwordx4 {v(CSR+4*T,4)}, v{VC+(T==8)}, s[20:23], s51 offen offset:{2*coff[T] if T < 8 else 64}{SC}")
            else:
                k(f"v_lshlrev_b32 v{VC}, 2, v{VI}\nv_lshrrev_b32 v{VC+1}, 2, v{VI}\nv_mul_u32_u24 v{VC+1}, 128, v{VC+1}\nv_add_u32 v{VC+1}, v{VC+1}, v{VC}\nv_lshlrev_b32 v{ZD}, 4, v{VG}")
                for hf in range(2):
                    for tt in range(2):
                        k(f"buffer_load_dwordx4 {v(STR+tt*8+hf*4,4)}, v{ZD}, s[20:23], s49 offen offset:{tt*64}{SC}")
                    if hf == 0: k("s_add_u32 s49, s49, 8192")
                for T in range(9):
                    k(f"buffer_load_dword v{CSR+T}, v{VC+(T==8)}, s[20:23], s51 offen offset:{2*coff[T] if T < 8 else 64}{SC}")
        def reads(st, slot, ks, rs):
            out = []
            if ks == 0 and not first[0]:
                d = STG if slot else -(R - 1) * STG
                regs = list(range(VXR, VXR + 4)) + [VTR, VTR + 1]
                out += [f"v_add_u32 v{r}, {d}, v{r}" if d > 0 else f"v_subrev_u32 v{r}, {-d}, v{r}" for r in regs]
            first[0] = False
            for tt in range(2):
                for hf in range(2):
                    out.append(f"ds_read_b64 {v(XF+rs*8+tt*4+hf*2,2)}, v{VXR+2*ks+hf} offset:{tt*2048}")
            for j in range(9):
                for hf in range(2):
                    out.append(f"ds_read_b64_tr_b16 {v(WF+rs*36+j*4+hf*2,2)}, v{VTR+(j==8)} offset:{ks*9216+hf*4608+(coff[j] if j < 8 else 0)}")
            if slot == 3 and ks == 1 and not (os.environ.get('STG_STAMP') and st == 3):
                L = k.lab("ZS")
                out.append(f"s_cmp_lg_u32 s36, 1\ns_cbranch_scc1 {L}\nbuffer_load_dword v{ZD}, v{VC}, s[56:59], 0 offen sc0 sc1\n{L}:")
            return out
        def mf(st, ks, rs):
            g = []
            for j in range(9):
                wf = v(WF + rs * 36 + j * 4, 4)
                for tt in range(2):
                    xf = v(XF + rs * 8 + tt * 4, 4)
                    ac = v(ACC + (j * 2 + tt) * 4, 4)
                    g.append(f"v_mfma_f32_16x16x32_bf16 {ac}, {xf}, {wf}, {ac}" if vor else f"v_mfma_f32_16x16x32_bf16 {ac}, {wf}, {xf}, {ac}")
            return g
        consumer_loop(k, N, R, reads, mf, per=[2] * 8 + [1], final_barrier=False, before_last=side, stamp0=12)
        k("STAMP 1")
        qs = 18 ** -0.5 * math.log2(math.e)
        OUT = XF; VM0 = VTR
        k(f"v_lshlrev_b32 v{VM0}, 4, v{VL}\ns_waitcnt vmcnt(0)")
        if not vor:
            k(f"s_cmp_eq_u32 s26, 0\ns_cselect_b32 s31, {f32(qs)}, 1.0")
            for tt in range(2): k(f"v_mul_f32 v{STR+2*tt+1}, s31, v{STR+2*tt+1}")
        sw = "32" if vor else "16"
        def fin(j):
            po = OUT + (j % 4) * 4
            k(f"v_permlane{sw}_swap_b32 v{po}, v{po+2}\nv_permlane{sw}_swap_b32 v{po+1}, v{po+3}")
            k(f"buffer_store_dwordx4 {v(po,4)}, v{VM0}, s[20:23], s50 offen{WT}\ns_add_u32 s50, s50, {PS}")
        for j in range(9):
            o = OUT + (j % 4) * 4
            for tt in range(2):
                ac = ACC + (j * 2 + tt) * 4
                for h2 in range(2):
                    if not vor:
                        k(f"v_pk_fma_f32 {v(ac+2*h2,2)}, {v(STR+2*tt,2)}, {v(CSR+4*j+2*h2,2)}, {v(ac+2*h2,2)} op_sel_hi:[0,1,1] neg_lo:[1,0,0] neg_hi:[1,0,0]")
                    else:
                        c = CSR + (j & ~1); sel = j & 1
                        k(f"v_pk_fma_f32 {v(ac+2*h2,2)}, {v(STR+tt*8+2*h2,2)}, {v(c,2)}, {v(ac+2*h2,2)} op_sel:[0,{sel},0] op_sel_hi:[1,{sel},1] neg_lo:[1,0,0] neg_hi:[1,0,0]")
            for tt in range(2):
                ac = ACC + (j * 2 + tt) * 4
                for h2 in range(2):
                    if not vor: k(f"v_pk_mul_f32 {v(ac+2*h2,2)}, {v(ac+2*h2,2)}, {v(STR+2*tt,2)} op_sel:[0,1] op_sel_hi:[1,1]")
                    else: k(f"v_pk_mul_f32 {v(ac+2*h2,2)}, {v(ac+2*h2,2)}, {v(STR+tt*8+4+2*h2,2)}")
            for tt in range(2):
                ac = ACC + (j * 2 + tt) * 4
                k(f"v_cvt_pk_bf16_f32 v{o+2*tt}, v{ac}, v{ac+1}\nv_cvt_pk_bf16_f32 v{o+2*tt+1}, v{ac+2}, v{ac+3}")
            if j > 0: fin(j - 1)
        fin(8)
        k(f"v_mov_b32 v{T0}, 0\nv_mov_b32 v{T1}, 1\ns_waitcnt vmcnt(0)")
        last_wave_flag(k, T0, T1, T2, LCNT, 20, 48)
        k(f"s_branch {NXT[0]}")
    LV = k.lab("VOR")
    k(f"s_cmp_eq_u32 s26, 2\ns_cbranch_scc1 {LV}")
    body(False)
    k(f"{LV}:")
    body(True)
    k(f"{PROD}:")
    ra, rb = [int(t) for t in os.environ.get("ROT1", "0,0").split(",")]
    k(f"s_and_b32 s38, s11, 3\ns_mul_i32 s38, s38, {ra}\ns_lshr_b32 s39, s11, 2\ns_mul_i32 s39, s39, {rb}\ns_lshr_b32 s38, s38, 2\ns_lshr_b32 s39, s39, 2\ns_add_u32 s38, s38, s39")
    k("s_sub_u32 s39, s38, 9\ns_cmp_ge_u32 s38, 9\ns_cselect_b32 s38, s39, s38")
    k(f"s_and_b32 s29, s28, 1\ns_cmp_ge_u32 s28, 6\ns_cbranch_scc1 {PX_}")
    VD = 10
    def adv(reg, step):
        return [f"s_add_u32 s{reg}, s{reg}, {step}\ns_sub_u32 s39, s{reg}, {9*step}\ns_add_u32 s38, s38, 1\ns_cmp_eq_u32 s38, 9\ns_cselect_b32 s{reg}, s39, s{reg}"]
    k(f"s_mov_b32 s30, {3456-288}")
    for q in range(9):
        k(f"v_add_u32 v{T0}, {q*64}, v{VL}\nv_mul_u32_u24 v{T1}, 3641, v{T0}\nv_lshrrev_b32 v{T1}, 16, v{T1}")
        k(f"v_lshlrev_b32 v{T0}, 4, v{T0}\nv_mad_u32_u24 v{VD+q}, v{T1}, s30, v{T0}")
    k(f"s_mul_i32 s33, s25, 288\ns_mul_i32 s30, s29, {32*3456}\ns_add_u32 s33, s33, s30\ns_mul_i32 s34, s29, 9216\ns_mul_i32 s30, s38, {64*3456}\ns_add_u32 s33, s33, s30")
    k("s_waitcnt lgkmcnt(0)")
    srd(k, 16, PWQKV, D_ * 1728 * 2)
    srd(k, 20, PWS, WS_SIZE)
    def tail(kk):
        k("v_subrev_u32 v40, 256, v0")
        pf(k, "PF1T", 2, 192, 256, 42, vt=40)
    producer_loop(k, N, R, 9, lambda st, slot: [dma(34, slot * STG + q * 1024, VD + q, 16, 33, ' nt' if st < int(os.environ.get('NT1', 0)) else '') for q in range(9)] + adv(33, 64 * 3456), NXT[1], final_barrier=False, tail=tail, first=int(os.environ.get('FIRST1', 2)))
    k(f"{PX_}:")
    for q in range(2):
        k(f"v_lshrrev_b32 v{T0}, 3, v{VL}\nv_add_u32 v{T0}, {8*q}, v{T0}")
        k(f"v_bfe_u32 v{T1}, v{T0}, 1, 3\nv_and_b32 v{T2}, 7, v{VL}\nv_xor_b32 v{T1}, v{T1}, v{T2}\nv_lshlrev_b32 v{T1}, 4, v{T1}")
        k(f"v_mul_u32_u24 v{T0}, 1152, v{T0}\nv_add_u32 v{VD+q}, v{T0}, v{T1}")
    for q in range(2, 8): k(f"v_add_u32 v{VD+q}, {16*1152}, v{VD+q-2}")
    k("s_lshl_b32 s32, s24, 7\ns_lshl_b32 s30, s29, 6\ns_add_u32 s32, s32, s30\ns_mul_i32 s32, s32, 1152")
    k(f"s_lshl_b32 s35, s29, 13\ns_add_u32 s35, s35, {XO}\ns_lshl_b32 s30, s38, 7\ns_add_u32 s32, s32, s30")
    k("s_waitcnt lgkmcnt(0)")
    srd(k, 12, PX, S_ * D_ * 2)
    srd(k, 20, PWS, WS_SIZE)
    producer_loop(k, N, R, 8, lambda st, slot: [dma(35, slot * STG + q * 1024, VD + q, 12, 32, ' nt' if st < int(os.environ.get('NT1', 0)) else '') for q in range(8)] + adv(32, 128), NXT[1], final_barrier=False, tail=tail, first=int(os.environ.get('FIRST1', 2)))
    k(f"{PF}:\ns_sub_u32 s29, s2, 192")
    XA, SM, CA = 12, 48, 52
    CSW = k.lab("CSW"); NZ = k.lab("NZ"); NZ2 = k.lab("NZ"); DONE = k.lab("DN")
    k(f"v_lshrrev_b32 v{T1}, 3, v0\nv_and_b32 v{T2}, 7, v0\nv_lshlrev_b32 v{T2}, 4, v{T2}\ns_cmp_ge_u32 s29, 32\ns_cselect_b32 s30, 3456, 0\ns_cselect_b32 s31, 0, 1152\ns_add_u32 s30, s30, s31")
    k(f"v_mad_u32_u24 v{T0}, v{T1}, s30, v{T2}")
    k(f"s_lshl_b32 s32, s29, 13\ns_add_u32 s32, s32, {WS_ST}\nv_lshlrev_b32 v{T3}, 4, v0")
    for r in range(4): k(f"v_mov_b32 v{CA+8+r}, 0")
    k(f"v_mov_b32 v{SM}, 0\nv_mov_b32 v{SM+1}, 0\nv_mov_b32 v{SM+2}, 0x3f803f80\ns_mul_i32 s30, s29, {64*1152}")
    k(f"s_sub_u32 s33, s29, 32\ns_lshl_b32 s31, s33, 7\ns_cmp_ge_u32 s33, 27\ns_cselect_b32 s31, 0x7000000, s31")
    k("s_waitcnt lgkmcnt(0)")
    srd(k, 20, PWS, WS_SIZE)
    srd(k, 56, PDBG, 256)
    k(f"s_cmp_ge_u32 s29, 32\ns_cbranch_scc1 {CSW}")
    srd(k, 12, PX, S_ * D_ * 2)
    for q in range(9): k(f"buffer_load_dwordx4 {v(XA+4*q,4)}, v{T0}, s[12:15], s30 offen offset:{q*128}")
    k(f"buffer_store_dwordx4 {v(CA+8,4)}, v{T3}, s[20:23], s32 offen{WT}")
    for q in range(9):
        k(f"s_waitcnt vmcnt({9-q})")
        for r in range(4 * q, 4 * q + 4): k(f"v_dot2c_f32_bf16 v{SM}, v{XA+r}, v{SM+2}\nv_dot2c_f32_bf16 v{SM+1}, v{XA+r}, v{XA+r}")
    k("STAMP 1\ns_nop 2")
    for m in ("quad_perm:[1,0,3,2]", "quad_perm:[2,3,0,1]", "row_half_mirror"):
        for r in range(2): k(f"v_add_f32_dpp v{SM+r}, v{SM+r}, v{SM+r} {m} row_mask:0xf bank_mask:0xf")
    k(f"s_mov_b32 s30, {f32(1.0/576)}\nv_mul_f32 v{SM}, s30, v{SM}\nv_mul_f32 v{SM+1}, s30, v{SM+1}\nv_fma_f32 v{SM+1}, -v{SM}, v{SM}, v{SM+1}")
    def rbf(r): k(f"v_cvt_pk_bf16_f32 v{r}, v{r}, v{r}\nv_and_b32 v{r}, 0xffff0000, v{r}")
    k(f"v_max_f32 v{SM+1}, 0, v{SM+1}")
    rbf(SM); rbf(SM + 1)
    k(f"v_add_f32 v{SM+1}, {f32(1e-5)}, v{SM+1}")
    rbf(SM + 1)
    k(f"v_sqrt_f32 v{SM+1}, v{SM+1}")
    rbf(SM + 1)
    k(f"v_rcp_f32 v{SM+1}, v{SM+1}")
    k(f"s_lshl_b32 s30, s29, 8\ns_add_u32 s30, s30, {WS_XS}\ns_add_u32 s31, s30, 8192\nv_lshlrev_b32 v{T0}, 2, v{T1}\nv_and_b32 v{T3}, 7, v0")
    k(f"v_cmp_eq_u32 vcc, 0, v{T3}\ns_and_saveexec_b64 s[62:63], vcc")
    k(f"buffer_store_dword v{SM}, v{T0}, s[20:23], s30 offen{WT}\nbuffer_store_dword v{SM+1}, v{T0}, s[20:23], s31 offen{WT}\ns_mov_b64 exec, -1\ns_branch {DONE}\n{CSW}:")
    srd(k, 16, PWQKV, D_ * 1728 * 2)
    for q in range(9): k(f"buffer_load_dwordx4 {v(XA+4*q,4)}, v{T0}, s[16:19], s31 offen\ns_add_u32 s31, s31, {64*3456}")
    k(f"buffer_store_dwordx4 {v(CA+8,4)}, v{T3}, s[20:23], s32 offen{WT}")
    for q in range(9):
        k(f"s_waitcnt vmcnt({9-q})")
        for r in range(4):
            p = XA + 4 * q + r
            if q == 0: k(f"v_lshlrev_b32 v{CA+2*r}, 16, v{p}\nv_and_b32 v{CA+2*r+1}, 0xffff0000, v{p}")
            else: k(f"v_lshlrev_b32 v{SM}, 16, v{p}\nv_and_b32 v{SM+1}, 0xffff0000, v{p}\nv_pk_add_f32 {v(CA+2*r,2)}, {v(CA+2*r,2)}, {v(SM,2)}")
    k("STAMP 1")
    for r in range(8): k(f"v_add_f32_dpp v{CA+r}, v{CA+r}, v{CA+r} row_ror:8 row_mask:0xf bank_mask:0xf")
    for sw in ("16", "32"):
        for r in range(8): k(f"v_mov_b32 v{XA+r}, v{CA+r}")
        for r in range(8): k(f"v_permlane{sw}_swap_b32 v{CA+r}, v{XA+r}")
        for r in range(8): k(f"v_add_f32 v{CA+r}, v{CA+r}, v{XA+r}")
    k(f"s_lshl_b32 s30, s28, 8\nv_lshlrev_b32 v{T0}, 5, v{VL}\nv_add_u32 v{T0}, s30, v{T0}\ns_mov_b64 exec, 0xff")
    k(f"ds_write_b128 v{T0}, {v(CA,4)}\nds_write_b128 v{T0}, {v(CA+4,4)} offset:16\ns_mov_b64 exec, -1")
    k("s_waitcnt lgkmcnt(0)\ns_barrier")
    k(f"s_cmp_lg_u32 s28, 0\ns_cbranch_scc1 {DONE}\nv_lshlrev_b32 v{T0}, 2, v{VL}")
    for q in range(8): k(f"ds_read_b32 v{XA+q}, v{T0} offset:{q*256}")
    k(f"s_lshl_b32 s30, s33, 8\ns_add_u32 s30, s30, {WS_CS}\ns_waitcnt lgkmcnt(0)")
    for q in range(1, 8): k(f"v_add_f32 v{XA}, v{XA}, v{XA+q}")
    k(f"buffer_store_dword v{XA}, v{T0}, s[20:23], s30 offen{WT}\n{DONE}:")
    k(f"v_mov_b32 v{T0}, 0\nv_mov_b32 v{T1}, 1\ns_waitcnt vmcnt(0)\nSTAMP 5\ns_barrier\ns_cmp_lg_u32 s28, 0\ns_cbranch_scc1 {NZ2}")
    k(f"s_mov_b64 exec, 1\nbuffer_atomic_add v{T1}, v{T0}, s[56:59], 0 offen sc1\ns_mov_b64 exec, -1\n{NZ2}:\ns_barrier")
    pf(k, "PF1B", 29, 64, 512, 66)
    k(f"s_branch {NXT[1]}")

def p2(k, ENT, NXT):
    LK8 = 24576; LV = 30720; REC = 1168; SEC = 36 * PS
    VH, VQ = 3, 4
    V16, VV, V8A = 5, 6, 7
    QM, Q8 = 8, 12
    KF, K8F, VF, O = 16, 28, 40, 56
    MX, MX2, TA, TB = 72, 73, 74, 75
    AK, AK8, AV = 76, 77, 78
    VV8, VK8 = 79, 2
    S0 = 80
    k(f"{ENT[1]}:\ns_waitcnt vmcnt(0)\ns_cmp_lg_u32 s28, 7\ns_cbranch_scc1 {ENT[0]}")
    srd(k, 56, PDBG, 256)
    k(f"v_mov_b32 v{TA}, 0\ns_mov_b32 s31, 0")
    poll(k, TA, TB, 1, 56, 31, want=64)
    k(f"{ENT[0]}:")
    k("STAMP 2")
    k("s_lshl_b32 s24, s10, 1\ns_and_b32 s25, s11, 1\ns_add_u32 s24, s24, s25\ns_lshr_b32 s25, s11, 1")
    k(f"v_lshrrev_b32 v{VH}, 5, v{VL}\nv_and_b32 v{VQ}, 31, v{VL}")
    k("s_lshr_b32 s26, s28, 2\ns_and_b32 s27, s28, 3")
    k(f"v_lshlrev_b32 v{V16}, 4, v{VL}")
    k(f"v_mul_u32_u24 v{VV}, {PS}, v{VH}\nv_lshl_add_u32 v{VV}, v{VQ}, 4, v{VV}")
    k(f"s_lshr_b32 s47, s24, 2\ns_and_b32 s31, s24, 3\ns_mul_i32 s34, s47, 9\ns_lshl_b32 s32, s31, 1\ns_add_u32 s44, s32, s34\ns_add_u32 s32, s44, s26\ns_mul_i32 s32, s32, {PS}")
    k(f"s_add_u32 s34, s34, 8\ns_mul_i32 s34, s34, {PS}\ns_mul_i32 s44, s44, {PS}\ns_add_u32 s44, s44, {2*SEC}")
    k("s_lshr_b32 s30, s31, 1\ns_lshl_b32 s30, s30, 9\ns_add_u32 s41, s34, s30")
    k(f"s_and_b32 s30, s31, 1\ns_lshl_b32 s30, s30, 3\nv_lshlrev_b32 v{V8A}, 4, v{VQ}\nv_add_u32 v{V8A}, s30, v{V8A}")
    k(f"s_lshl_b32 s45, s31, 6\ns_add_u32 s45, s45, s34\ns_add_u32 s45, s45, {2*SEC}")
    k(f"v_lshrrev_b32 v{TA}, 2, v{VL}\nv_lshlrev_b32 v{TA}, 8, v{TA}\nv_and_b32 v{TB}, 3, v{VL}\nv_lshl_add_u32 v{VV8}, v{TB}, 4, v{TA}")
    k(f"v_lshlrev_b32 v{VK8}, 4, v{VQ}\nv_lshl_add_u32 v{VK8}, v{VH}, 10, v{VK8}")
    k("s_lshl_b32 s33, s25, 2\ns_mul_i32 s30, s27, 3\ns_add_i32 s35, s33, s30\ns_sub_i32 s35, s35, 8")
    k("s_mul_i32 s31, s26, 12\ns_add_u32 s31, s31, s30\ns_lshl_b32 s46, s31, 10")
    k(f"s_lshl_b32 s30, s28, 1\ns_add_i32 s30, s30, s33\ns_sub_i32 s30, s30, 8\ns_max_i32 s30, s30, 0\ns_lshl_b32 s30, s30, 10\ns_add_u32 s33, s33, s27")
    k(f"s_lshl_b32 s39, s33, 10\ns_add_u32 s40, s39, s41\ns_add_u32 s39, s39, s32\ns_add_u32 s41, s41, s30\ns_add_u32 s41, s41, {SEC}\ns_add_u32 s38, s32, {SEC}")
    k(f"s_lshl_b32 s42, s28, 10\ns_add_u32 s42, s42, {LK8}")
    k(f"s_mul_i32 s43, s28, 3\ns_lshl_b32 s36, s25, 3\ns_add_i32 s36, s36, s43\ns_sub_i32 s36, s36, 16\ns_mul_i32 s43, s43, {REC}\ns_add_u32 s43, s43, {LV}")
    NEG = f32(-1e30)
    k(f"v_lshlrev_b32 v{TA}, 2, v{VH}\nv_sub_u32 v{TA}, v{VQ}, v{TA}\nv_mov_b32 v{TB}, {NEG}")
    MRG = 'nomrg' not in XM; EM = 236
    if MRG: k(f"v_mov_b32 v{MX}, 0xffff\nv_mov_b32 v{MX2}, 0xffff0000")
    for b in range(4):
        for r in range(4): k(f"v_cmp_gt_i32 s[{86+2*r}:{87+2*r}], {8*b+r}, v{TA}")
        for r in range(4): k(f"v_cndmask_b32 v{S0+4*b+r}, v{TB}, 0, s[{86+2*r}:{87+2*r}]")
        for r in range(4): k(f"v_cndmask_b32 v{S0+128+4*b+r}, 0, v{TB}, s[{86+2*r}:{87+2*r}]")
        if MRG:
            for h in range(2):
                k(f"v_cndmask_b32 v{EM+2*b+h}, 0, v{MX}, s[{86+4*h}:{87+4*h}]\nv_cndmask_b32 v{AK}, 0, v{MX2}, s[{88+4*h}:{89+4*h}]\nv_or_b32 v{EM+2*b+h}, v{EM+2*b+h}, v{AK}")
    k(f"s_mul_i32 s30, s26, 12\ns_add_u32 s30, s30, s27\ns_lshl_b32 s30, s30, 10\nv_add_u32 v{AK}, s30, v{V16}")
    k(f"s_lshl_b32 s30, s27, 9\ns_add_u32 s30, s30, {LK8}\nv_add_u32 v{AK8}, s30, v{V8A}")
    for q in range(3):
        k(f"v_mov_b32 v{K8F+q*4+2}, 0\nv_mov_b32 v{K8F+q*4+3}, 0")
    k(f"v_mov_b32 v{Q8+2}, 0\nv_mov_b32 v{Q8+3}, 0")
    k(f"s_lshl_b32 s30, s26, 9\nv_lshlrev_b32 v{AV}, 8, v{VH}\nv_lshl_add_u32 v{AV}, v{VQ}, 4, v{AV}\nv_add_u32 v{AV}, s30, v{AV}")
    k(f"s_lshl_b32 s30, s26, 5\ns_add_u32 s30, s30, {1024-256}\nv_lshlrev_b32 v{TA}, 6, v{VH}\nv_lshl_add_u32 v{TA}, v{VQ}, 4, v{TA}\nv_add_u32 v{TA}, s30, v{TA}")
    k(f"v_cmp_lt_u32 vcc, 15, v{VQ}\nv_cmp_lt_u32 s[86:87], 17, v{VQ}\nv_mov_b32 v{MX2}, 1152\nv_cndmask_b32 v{AV}, v{AV}, v{TA}, vcc\nv_cndmask_b32 v{AV}, v{AV}, v{MX2}, s[86:87]")
    k(f"s_mul_i32 s30, s27, {2*REC}\ns_add_u32 s30, s30, {LV}\nv_add_u32 v{AV}, s30, v{AV}")
    NI = k.lab("NI")
    k("s_sub_i32 s30, 8, s33")
    for j in range(8):
        k(f"s_cmp_le_i32 s30, {j}\ns_cbranch_scc1 {NI}")
        for r in range(16): k(f"v_mov_b32 v{S0+j*16+r}, v{TB}")
    k(f"{NI}:")
    for q in range(3):
        k(f"s_add_i32 s30, s35, {q}\ns_max_i32 s30, s30, 0\ns_lshl_b32 s30, s30, 10\ns_add_u32 s{86+q}, s30, s38")
        k(f"s_add_i32 s30, s36, {q}\ns_max_i32 s30, s30, 0\ns_lshl_b32 s30, s30, 9\ns_add_u32 s{89+q}, s30, s44\ns_add_u32 s{92+q}, s30, s45")
    SO = k.lab("SONE")
    k(f"s_cmp_lg_u32 s28, 7\ns_cbranch_scc1 {SO}")
    if 'nogate' not in XM:
        NG = k.lab("NG")
        k(f"s_cmp_ge_u32 s2, 192\ns_cbranch_scc1 {NG}")
        wait_local(k, TA, LCNT)
        k(f"{NG}:")
    k(f"s_lshl_b32 s30, s47, 13\ns_lshl_b32 s31, s25, 9\ns_add_u32 s30, s30, s31\ns_add_u32 s30, s30, {F1-1024}")
    k(f"s_mov_b64 exec, -1\nv_lshlrev_b32 v{TA}, 7, v{VL}\ns_movk_i32 s31, 0x760\ns_cmp_eq_u32 s25, 0\ns_cselect_b32 s31, 0x700, s31\ns_cmp_ge_u32 s25, 2\ns_cselect_b32 exec_lo, 0x766, s31\ns_mov_b32 exec_hi, 0")
    poll(k, TA, MX, 1, 20, 30)
    k(f"s_mov_b64 exec, -1\n{SO}:\ns_barrier")
    k("STAMP 3")
    SK = k.lab("SK8")
    k(f"s_mov_b32 m0, s42\ns_cmp_ge_u32 s28, 6\ns_cbranch_scc1 {SK}")
    k(f"buffer_load_dwordx4 v{VK8}, s[20:23], s41 offen{SC} lds\n{SK}:")
    for q in range(3): k(dma(46, q * 1024, V16, 20, 86 + q, SC))
    k(f"buffer_load_dwordx4 {v(QM,4)}, v{V16}, s[20:23], s39 offen{SC}")
    k(f"buffer_load_dwordx2 {v(Q8,2)}, v{V8A}, s[20:23], s40 offen{SC}")
    for q in range(3):
        k(dma(43, q * REC, VV, 20, 89 + q, SC))
        k(f"s_add_u32 m0, s43, {q*REC+1024}\ns_mov_b64 exec, 0xff\nbuffer_load_dwordx4 v{VV8}, s[20:23], s{92+q} offen{SC} lds\ns_mov_b64 exec, -1")
    SO = k.lab("SONE")
    k(f"s_cmp_lg_u32 s28, 7\ns_cbranch_scc1 {SO}")
    for r in range(4): k(f"v_mov_b32 v{KF+r}, 0x3f803f80")
    k(f"v_mul_u32_u24 v{TA}, {REC}, v{VL}\ns_mov_b64 exec, 0xffffff")
    k(f"ds_write_b128 v{TA}, {v(KF,4)} offset:{LV+1152}")
    k(f"s_mov_b64 exec, -1\n{SO}:")
    srd(k, 48, PWO, D_ * D_ * 2)
    srd(k, 12, PX, S_ * D_ * 2)
    k("s_lshl_b32 s30, s10, 2\ns_and_b32 s31, s11, 3\ns_add_u32 s30, s30, s31\ns_lshl_b32 s30, s30, 2\ns_and_b32 s31, s28, 3\ns_add_u32 s30, s30, s31\ns_mul_i32 s30, s30, 18432")
    k(f"s_mul_i32 s44, s31, 3072\ns_add_u32 s44, s44, {LX}\ns_lshr_b32 s31, s11, 2\ns_mul_i32 s31, s31, 192\ns_add_u32 s43, s30, s31\ns_movk_i32 s30, 960")
    for q in range(3):
        k(f"v_add_u32 v{224+q}, {q*64}, v{VL}\nv_mul_u32_u24 v227, 5462, v{224+q}\nv_lshrrev_b32 v227, 16, v227\nv_lshlrev_b32 v{224+q}, 4, v{224+q}\nv_mad_u32_u24 v{224+q}, v227, s30, v{224+q}")
    k(f"v_lshlrev_b32 v227, 7, v{VL}\ns_mul_i32 s42, s11, {162*128}\ns_mul_i32 s30, s28, {21*128}\ns_add_u32 s42, s42, s30")
    k(f"v_mov_b32 v{MX}, v{TB}\ns_sub_i32 s35, 8, s33")
    k("s_cmp_eq_u32 s26, 0\ns_cselect_b32 s38, -1, 0\ns_cselect_b32 s40, 0, -1\ns_mov_b32 s39, 0\ns_mov_b32 s41, 0")
    k("s_waitcnt vmcnt(6) lgkmcnt(0)")
    k(f"v_cndmask_b32 v{Q8}, 0, v{Q8}, s[38:39]\nv_cndmask_b32 v{Q8+1}, 0, v{Q8+1}, s[40:41]")
    k("s_barrier")
    def kread(j):
        return [f"ds_read_b128 {v(KF+(j%3)*4,4)}, v{AK} offset:{j*1024}", f"ds_read_b64 {v(K8F+(j%3)*4,2)}, v{AK8} offset:{j*512}"]
    def mx(j):
        return [f"v_max3_f32 v{MX}, v{MX}, v{S0+j*16+2*r}, v{S0+j*16+2*r+1}" for r in range(8)]
    if os.environ.get("P2S"): k("STAMP 12")
    for t in kread(0) + kread(1): k(t)
    XS = k.lab("XS")
    k(f"s_cmp_ge_u32 s2, 192\ns_cbranch_scc1 {XS}\ns_cmp_lt_u32 s28, 4\ns_cbranch_scc1 {XS}")
    for q in range(3): k(dma(44, q * 1024, 224 + q, 12, 43))
    k(f"{XS}:")
    n0 = len(k.L)
    k(f"s_mov_b64 exec, 0x1fffff\nbuffer_load_dword v{DUMMY}, v227, s[48:51], s42 offen\ns_mov_b64 exec, -1")
    pf(k, "PF2", 2, 256, 512, 228)
    npf = sum(1 for l in k.L[n0:] if l.startswith("buffer_load"))
    inv = []
    for j in range(9):
        if j + 2 < 9:
            for t in kread(j + 2): k(t)
        sj = v(S0 + j * 16, 16)
        if j < 8:
            lb = k.lab("BK")
            k(f"s_cmp_gt_i32 s35, {j}\ns_cbranch_scc1 {lb}")
        k(f"s_waitcnt lgkmcnt({min(2, 8-j)*2})")
        k(f"v_mfma_f32_32x32x16_bf16 {sj}, {v(KF+(j%3)*4,4)}, {v(QM,4)}, {sj if j in (0, 8) else 0}")
        k(f"v_mfma_f32_32x32x16_bf16 {sj}, {v(K8F+(j%3)*4,4)}, {v(Q8,4)}, {sj}")
        if j < 8: k(f"{lb}:")
        if j >= 2 and not (MRG and j == 2):
            for t in mx(j - 2): k(t)
    for t in mx(7): k(t)
    WA_, WB_ = k.lab("WA"), k.lab("WB")
    k(f"s_cmp_ge_u32 s2, 192\ns_cbranch_scc1 {WA_}\ns_cmp_lt_u32 s28, 4\ns_cbranch_scc1 {WA_}\ns_waitcnt vmcnt({npf+3})\ns_branch {WB_}\n{WA_}:\ns_waitcnt vmcnt({npf})\n{WB_}:\ns_barrier")
    def vread(t): return f"ds_read_b128 {v(VF+(t%4)*4,4)}, v{AV} offset:{t*REC}"
    if os.environ.get("P2S"): k("STAMP 13")
    k(vread(0)); k(vread(1))
    side = []
    if MRG:
        for r in range(16): k(f"v_max_f32 v{S0+r}, v{S0+r}, v{S0+128+r}")
    for t in mx(0 if MRG else 8): k(t)
    k(f"v_mov_b32 v{MX2}, v{MX}\nv_permlane32_swap_b32 v{MX}, v{MX2}\nv_max_f32 v{MX}, v{MX}, v{MX2}")
    def soft(j):
        b = S0 + j * 16
        if MRG and j == 8: return []
        out = [f"v_sub_f32 v{b+r}, v{b+r}, v{MX}" for r in range(16)]
        if 'pksub' in XM: out = [f"v_pk_add_f32 {v(b+2*r,2)}, {v(b+2*r,2)}, {v(MX,2)} op_sel_hi:[1,0] neg_lo:[0,1] neg_hi:[0,1]" for r in range(8)]
        out += [f"v_exp_f32 v{b+r}, v{b+r}" for r in range(16)]
        if 'trunc' in XM: out += [f"v_perm_b32 v{b+r}, v{b+2*r+1}, v{b+2*r}, s86" for r in range(8)]
        else: out += [f"v_cvt_pk_bf16_f32 v{b+r}, v{b+2*r}, v{b+2*r+1}" for r in range(8)]
        if MRG and j == 0:
            out += [f"v_bfi_b32 v{S0+128+r}, v{EM+r}, 0, v{b+r}" for r in range(8)] + [f"v_and_b32 v{b+r}, v{EM+r}, v{b+r}" for r in range(8)]
        return out
    k("s_mov_b32 s86, 0x07060302")
    def pv(j):
        b = S0 + j * 16
        return [f"v_mfma_f32_32x32x16_bf16 {v(O,16)}, {v(VF+((2*j+s_)%4)*4,4)}, {v(b+4*s_,4)}, {v(O,16) if (j or s_) else 0}" for s_ in range(2)]
    if os.environ.get("P2S"): k("STAMP 14")
    for t in soft(0): k(t)
    for j in range(9):
        nxt = soft(j + 1) if j < 8 else []
        if j < 8:
            k(vread(2 * j + 2)); k(vread(2 * j + 3))
        p = pv(j)
        for t in nxt[:4]: k(t)
        k(f"s_waitcnt lgkmcnt({2 if j < 8 else 0})")
        k(p[0])
        for t in nxt[4:20]: k(t)
        if j < len(side) and side[j]: k(side[j])
        k(p[1])
        for t in nxt[20:]: k(t)
    k(f"s_lshl_b32 s34, s24, 1\ns_add_u32 s34, s34, s26\ns_mul_i32 s30, s34, {PS}\ns_lshl_b32 s31, s33, 10\ns_add_u32 s30, s30, s31\ns_add_u32 s30, s30, {WS_OM}")
    k(f"s_lshl_b32 s31, s34, 13\ns_lshl_b32 s34, s33, 7\ns_add_u32 s31, s31, s34\ns_add_u32 s31, s31, {WS_O8}\nv_lshlrev_b32 v{AK8}, 2, v{VQ}")
    if os.environ.get("P2S"): k("STAMP 15")
    if 'prio' in XM: k("s_setprio 0")
    k(f"v_rcp_f32 v{MX}, v{O+10}")
    for r in range(10): k(f"v_mul_f32 v{O+r}, v{O+r}, v{MX}")
    for r in range(5): k(f"v_cvt_pk_bf16_f32 v{KF+r}, v{O+2*r}, v{O+2*r+1}")
    k(f"buffer_store_dwordx4 {v(KF,4)}, v{V16}, s[20:23], s30 offen{WT}")
    k("s_mov_b32 exec_hi, 0")
    k(f"buffer_store_dword v{KF+4}, v{AK8}, s[20:23], s31 offen{WT}")
    k("s_mov_b32 exec_hi, -1")
    k(f"s_lshl_b32 s30, s25, 11\ns_lshl_b32 s31, s24, 7\ns_add_u32 s30, s30, s31\ns_add_u32 s30, s30, {F2}\nv_mov_b32 v{TA}, 0\nv_mov_b32 v{TB}, 1")
    k(f"s_waitcnt vmcnt(0)\ns_barrier\ns_cmp_lg_u32 s28, 6\ns_cbranch_scc1 {NXT}")
    set_flag(k, TA, TB, 20, 30)
    k(f"s_branch {NXT}")
    for j, li, lb in inv:
        k(f"{li}:")
        for r in range(16): k(f"v_mov_b32 v{S0+j*16+r}, v{TB}")
        k(f"s_branch {lb}")

def p3(k, ENT, NXT):
    R = 7; WS_ = 12288; WB = 73728; N = 9
    LAB = WB + R * WS_
    PF = k.lab("P3PF"); PROD = k.lab("P3PROD"); PO = k.lab("P3PO")
    k(f"{ENT}:\nSTAMP 4")
    k(f"s_cmp_ge_u32 s2, 192\ns_cbranch_scc1 {PF}")
    k("s_lshl_b32 s24, s10, 2\ns_and_b32 s25, s11, 3\ns_add_u32 s24, s24, s25\ns_lshr_b32 s25, s11, 2")
    ids16(k)
    V16 = 9
    k(f"v_lshlrev_b32 v{V16}, 4, v{VL}")
    k(f"s_cmp_ge_u32 s28, 4\ns_cbranch_scc1 {PROD}")
    k("s_lshr_b32 s26, s28, 1\ns_and_b32 s27, s28, 1")
    VTR, VAO, VAE = 10, 16, 18
    IDN, XR, ACC, AF, BF = 24, 28, 52, 76, 100
    k(f"v_and_b32 v{T1}, 1, v{VG}")
    k(f"v_bfe_u32 v{T0}, v{VL}, 2, 2\nv_lshl_add_u32 v{T0}, v{VG}, 2, v{T0}\nv_mul_u32_u24 v{T0}, 192, v{T0}")
    k(f"v_and_b32 v{T2}, 3, v{VL}\nv_lshl_add_u32 v{T0}, v{T2}, 3, v{T0}\nv_add_u32 v{T0}, {WB}, v{T0}")
    k("s_mul_i32 s30, s27, 3")
    for dt in range(3):
        k(f"s_add_u32 s31, s30, {dt}\nv_xor_b32 v{T2}, s31, v{T1}\nv_lshl_add_u32 v{VTR+dt}, v{T2}, 5, v{T0}\nv_add_u32 v{VTR+3+dt}, {4*WS_}, v{VTR+dt}")
    k(f"s_lshl_b32 s30, s26, 11\nv_add_u32 v{VAO}, s30, v{V16}\nv_add_u32 v{VAO+1}, 32768, v{VAO}")
    k(f"v_lshlrev_b32 v{T0}, 8, v{VG}\nv_lshl_add_u32 v{T0}, v{VI}, 2, v{T0}\nv_add_u32 v{VAE}, s30, v{T0}\nv_add_u32 v{VAE}, 65536, v{VAE}")
    k(f"v_lshlrev_b32 v{T0}, 3, v{VG}\nv_sub_u32 v{T0}, v{VI}, v{T0}\nv_mov_b32 v{T1}, 0x3f80\nv_mov_b32 v{T2}, 0x3f800000")
    for j2 in range(4):
        k(f"v_cmp_eq_u32 vcc, {2*j2}, v{T0}\nv_cmp_eq_u32 s[30:31], {2*j2+1}, v{T0}\nv_cndmask_b32 v{IDN+j2}, 0, v{T1}, vcc")
        k(f"v_cndmask_b32 v{IDN+j2}, v{IDN+j2}, v{T2}, s[30:31]")
    def reads(n):
        st, ks, rs = n >> 1, n & 1, n % 3
        slot = st % R
        out = []
        for tt in range(2):
            if st < 8: out.append(f"ds_read_b128 {v(AF+rs*8+tt*4,4)}, v{VAO+(st>>2)} offset:{(st&3)*8192+ks*4096+tt*1024}")
            else: out += [f"ds_read_b32 v{AF+rs*8+tt*4+q}, v{VAE} offset:{ks*4096+tt*1024+q*64}" for q in range(4)]
        for dt in range(3):
            for hf in range(2):
                out.append(f"ds_read_b64_tr_b16 {v(BF+rs*12+dt*4+hf*2,2)}, v{VTR+3*(slot//4)+dt} offset:{(slot%4)*WS_+ks*6144+hf*3072}")
        return out
    def mf(n):
        rs = n % 3
        return [f"v_mfma_f32_16x16x32_bf16 {v(ACC+(tt*3+dt)*4,4)}, {v(AF+rs*8+tt*4,4)}, {v(BF+rs*12+dt*4,4)}, {v(ACC+(tt*3+dt)*4,4)}"
                for tt in range(2) for dt in range(3)]
    k(f"s_mul_i32 s30, s26, 6144\ns_mul_i32 s31, s27, 96\ns_add_u32 s30, s30, s31\ns_add_u32 s30, s30, {LX}\nv_mul_u32_u24 v{T0}, 192, v{VI}\nv_and_b32 v{T1}, 16, v{VL}\nv_add3_u32 v{T0}, v{T0}, v{T1}, s30")
    for q in range(6): k(f"ds_read_b128 {v(XR+q*4,4)}, v{T0} offset:{(q//3)*3072+(q%3)*32}")
    k("s_waitcnt lgkmcnt(0)")
    for q in range(6):
        k(f"v_mfma_f32_16x16x32_bf16 {v(ACC+q*4,4)}, {v(XR+q*4,4)}, {v(IDN,4)}, 0")
    k("s_barrier")
    if os.environ.get("P3S"): k("STAMP 12")
    for t in reads(0) + reads(1): k(t)
    for n in range(18):
        if n in (2, 16): k("s_waitcnt lgkmcnt(0)\ns_barrier")
        elif n in (8, 12): k(f"s_waitcnt lgkmcnt({len(reads(n + 1))})\ns_barrier")
        elif n < 16: k(f"s_waitcnt lgkmcnt({len(reads(n + 1))})")
        if os.environ.get("P3S") and n in (8, 12): k(f"STAMP {13 + (n == 12)}")
        for t in interleave(mf(n), reads(n + 2) if n + 2 < 18 else [], 0, 2): k(t)
    k("STAMP 5")
    PK = XR; ST = AF
    for dt in range(3):
        for tt in range(2):
            ac = ACC + (tt * 3 + dt) * 4
            k(f"v_cvt_pk_bf16_f32 v{PK+dt*4+tt*2}, v{ac}, v{ac+1}\nv_cvt_pk_bf16_f32 v{PK+dt*4+tt*2+1}, v{ac+2}, v{ac+3}")
    for dt in range(3):
        for tt in range(2):
            for h2 in range(2):
                p = PK + dt * 4 + tt * 2 + h2
                x0 = ACC + (tt * 3 + dt) * 4 + 2 * h2
                k(f"v_lshlrev_b32 v{x0}, 16, v{p}\nv_and_b32 v{x0+1}, 0xffff0000, v{p}")
                sm, sq_ = ST + tt * 4 + 2 * h2, ST + 8 + tt * 4 + 2 * h2
                if dt == 0: k(f"v_pk_mul_f32 {v(sq_,2)}, {v(x0,2)}, {v(x0,2)}")
                else: k(f"v_pk_fma_f32 {v(sq_,2)}, {v(x0,2)}, {v(x0,2)}, {v(sq_,2)}")
                if dt == 1: k(f"v_pk_add_f32 {v(sm,2)}, {v(x0-4,2)}, {v(x0,2)}")
                if dt == 2: k(f"v_pk_add_f32 {v(sm,2)}, {v(sm,2)}, {v(x0,2)}")
    for sh in (8, 4, 2, 1):
        for r in range(16):
            k(f"v_add_f32_dpp v{ST+r}, v{ST+r}, v{ST+r} row_ror:{sh} row_mask:0xf bank_mask:0xf")
    SG = BF + 12
    for r in range(8): k(f"v_mov_b32 v{SG+2*r}, v{ST+r}\nv_or_b32 v{SG+2*r+1}, 0x80000000, v{ST+8+r}")
    k(f"s_lshl_b32 s31, s24, 1\ns_add_u32 s31, s31, s26")
    k(f"s_lshl_b32 s33, s31, 8\ns_add_u32 s33, s33, {WS_ST}")
    k(f"s_lshl_b32 s30, s25, 1\ns_add_u32 s30, s30, s27\ns_lshl_b32 s30, s30, 14\ns_add_u32 s30, s30, s33")
    k(f"v_cmp_eq_u32 s[38:39], 1, v{VI}\nv_cmp_eq_u32 s[40:41], 2, v{VI}\nv_cmp_eq_u32 s[42:43], 3, v{VI}\nv_cmp_gt_u32 vcc, 4, v{VI}")
    k(f"v_lshrrev_b32 v{T0}, 1, v{VI}\nv_lshlrev_b32 v{T0}, 7, v{T0}\nv_lshl_add_u32 v{T0}, v{VG}, 5, v{T0}\nv_and_b32 v{T1}, 1, v{VI}\nv_lshl_add_u32 v{T0}, v{T1}, 4, v{T0}")
    for q in range(1, 4):
        for r in range(4): k(f"v_cndmask_b32 v{SG+r}, v{SG+r}, v{SG+4*q+r}, s[{36+2*q}:{37+2*q}]")
    k(f"s_and_saveexec_b64 s[38:39], vcc\nbuffer_store_dwordx4 {v(SG,4)}, v{T0}, s[20:23], s30 offen{WT}\ns_mov_b64 exec, s[38:39]")
    VH = VTR
    k(f"v_lshlrev_b32 v{VH}, 4, v{VL}")
    k(f"s_mul_i32 s30, s25, 6\ns_mul_i32 s32, s27, 3\ns_add_u32 s30, s30, s32\ns_mul_i32 s30, s30, {PS}")
    k(f"s_lshl_b32 s32, s31, 10\ns_add_u32 s30, s30, s32\ns_add_u32 s32, s30, {WS_HN}\ns_add_u32 s30, s30, {WS_H}")
    k("s_mov_b32 s35, s30")
    VS = VTR + 1
    P = BF
    k(f"v_lshrrev_b32 v{T0}, 5, v{VL}\nv_mul_u32_u24 v{VS}, {6*16384}, v{T0}\nv_and_b32 v{T0}, 31, v{VL}\nv_lshl_add_u32 v{VS}, v{T0}, 3, v{VS}")
    for p in range(6): k(f"s_add_u32 s{40+p}, s33, {p*16384}")
    POLL = k.lab("POLL"); GO = k.lab("GO")
    k(f"s_mov_b32 s37, 0x40000" + ("" if 'nosw' in XM else "\ns_waitcnt vmcnt(0)") + f"\n{POLL}:")
    for p in range(6):
        k(f"buffer_load_dwordx2 {v(P+2*p,2)}, v{VS}, s[20:23], s{40+p} offen sc0 sc1")
    k("s_waitcnt vmcnt(0)")
    k(f"v_and_b32 v{T1}, v{P+1}, v{P+3}\nv_and_b32 v{T2}, v{P+5}, v{P+7}\nv_and_b32 v{T3}, v{P+9}, v{P+11}\nv_and_b32 v{T1}, v{T1}, v{T2}\nv_and_b32 v{T1}, v{T1}, v{T3}")
    k(f"v_cmp_le_i32 vcc, 0, v{T1}\ns_sub_u32 s37, s37, 1\ns_cmp_eq_u32 s37, 0\ns_cbranch_scc1 {GO}\ns_cbranch_vccz {GO}\ns_sleep 1\ns_branch {POLL}\n{GO}:")
    if os.environ.get("P3S"): k("STAMP 15")
    for dt in range(3):
        k(f"buffer_store_dwordx4 {v(PK+dt*4,4)}, v{VH}, s[20:23], s35 offen{WT}\ns_add_u32 s35, s35, {PS}")
    for p in range(1, 6):
        k(f"v_add_f32 v{P}, v{P}, v{P+2*p}\nv_add_f32 v{P+1}, v{P+1}, v{P+2*p+1}")
    k(f"v_mov_b32 v{P+2}, v{P}\nv_mov_b32 v{P+3}, v{P+1}")
    k(f"v_permlane32_swap_b32 v{P}, v{P+2}\nv_permlane32_swap_b32 v{P+1}, v{P+3}")
    k(f"v_add_f32 v{P}, v{P}, v{P+2}\nv_add_f32 v{P+1}, v{P+1}, v{P+3}")
    k(f"s_mov_b32 s34, {f32(1.0/576)}")
    mn, sq = P, P + 1
    k(f"v_mul_f32 v{mn}, s34, v{mn}\nv_mul_f32 v{sq}, s34, -v{sq}\nv_fma_f32 v{sq}, -v{mn}, v{mn}, v{sq}\nv_max_f32 v{sq}, 0, v{sq}")
    k(f"v_add_f32 v{P+2}, {f32(1e-5)}, v{sq}\nv_rsq_f32 v{P+2}, v{P+2}")
    k(f"v_mul_f32 v{sq}, v{sq}, v{P+2}\nv_mul_f32 v{sq}, v{sq}, v{P+2}\nv_add_f32 v{sq}, {f32(1e-5)}, v{sq}\nv_rsq_f32 v{sq}, v{sq}")
    k(f"v_mul_f32 v{P+2}, v{P+2}, v{sq}\nv_mul_f32 v{P+3}, -v{mn}, v{P+2}")
    k(f"s_lshl_b32 s33, s28, 8\ns_add_u32 s33, s33, {LAB}\nv_lshlrev_b32 v{T0}, 3, v{T0}\nv_add_u32 v{T0}, s33, v{T0}")
    k(f"ds_write_b64 v{T0}, {v(P+2,2)}")
    k(f"v_lshlrev_b32 v{T0}, 5, v{VG}\nv_add_u32 v{T0}, s33, v{T0}\ns_waitcnt lgkmcnt(0)")
    AB = ST
    for q in range(4):
        k(f"ds_read_b128 {v(AB+4*q,4)}, v{T0} offset:{(q>>1)*128+(q&1)*16}")
    k(f"s_lshl_b32 s30, s25, 12\ns_lshl_b32 s31, s24, 7\ns_add_u32 s30, s30, s31\ns_add_u32 s30, s30, {F3}\nv_mov_b32 v{T1}, 0\nv_mov_b32 v{T2}, 1")
    k("s_waitcnt lgkmcnt(0)")
    for dt in range(3):
        for tt in range(2):
            x0 = ACC + (tt * 3 + dt) * 4
            for r in range(4): k(f"v_fma_f32 v{x0+r}, v{x0+r}, v{AB+tt*8+2*r}, v{AB+tt*8+2*r+1}")
            k(f"v_cvt_pk_bf16_f32 v{PK+12+dt*4+tt*2}, v{x0}, v{x0+1}\nv_cvt_pk_bf16_f32 v{PK+12+dt*4+tt*2+1}, v{x0+2}, v{x0+3}")
        k(f"buffer_store_dwordx4 {v(PK+12+dt*4,4)}, v{VH}, s[20:23], s32 offen{WT}\ns_add_u32 s32, s32, {PS}")
    k("s_waitcnt vmcnt(0)")
    last_wave_flag(k, T1, T2, T3, LCNT + 4, 20, 30)
    k(f"s_branch {NXT}")
    k(f"{PROD}:\ns_and_b32 s29, s28, 1\ns_cmp_ge_u32 s28, 6\ns_cbranch_scc1 {PO}")
    VWD, VWE = 10, 16
    for q in range(6):
        k(f"v_add_u32 v{T0}, {q*64}, v{VL}")
        k(f"v_mul_u32_u24 v{T1}, 5462, v{T0}\nv_lshrrev_b32 v{T1}, 16, v{T1}")
        k(f"v_mul_u32_u24 v{T2}, 12, v{T1}\nv_sub_u32 v{T0}, v{T0}, v{T2}")
        k(f"v_bfe_u32 v{T2}, v{T1}, 2, 1\nv_lshlrev_b32 v{T2}, 1, v{T2}\nv_xor_b32 v{T0}, v{T0}, v{T2}\nv_lshlrev_b32 v{VWE+q}, 4, v{T0}")
        k(f"v_and_b32 v{T2}, 7, v{T1}")
        k(f"v_bfe_u32 v{T3}, v{T1}, 3, 1\nv_mad_u32_u24 v{T2}, v{T3}, 20, v{T2}")
        k(f"v_bfe_u32 v{T3}, v{T1}, 4, 1\nv_lshl_add_u32 v{T2}, v{T3}, 3, v{T2}")
        k(f"v_mul_u32_u24 v{T2}, 1152, v{T2}\nv_add_u32 v{VWD+q}, v{T2}, v{VWE+q}")
    k(f"s_mul_i32 s33, s25, 192\ns_mul_i32 s30, s29, {8*36*1152}\ns_add_u32 s39, s33, s30\ns_mul_i32 s30, s29, {36*1152}\ns_add_u32 s33, s33, s30")
    k(f"s_mul_i32 s35, s29, 6144\ns_add_u32 s35, s35, {WB}")
    srd(k, 16, PWO, D_ * D_ * 2)
    def issue_w(st):
        for q in range(6): k(dma(35, (st % R) * WS_ + q * 1024, (VWD if st < 8 else VWE) + q, 16, 33 if st < 8 else 39))
        k(f"s_add_u32 s33, s33, {72*1152}")
    for st in range(7): issue_w(st)
    for q in range(6):
        k(f"v_add_u32 v{T0}, {q*64}, v{VL}\nv_mul_u32_u24 v{T1}, 5462, v{T0}\nv_lshrrev_b32 v{T1}, 16, v{T1}\n"
          f"v_bfe_u32 v{T2}, v{T1}, 2, 2\nv_lshlrev_b32 v{T2}, 1, v{T2}\nv_bfe_u32 v{T3}, v{T1}, 4, 1\nv_add_u32 v{T2}, v{T2}, v{T3}\nv_mul_u32_u24 v{T2}, 36, v{T2}\n"
          f"v_and_b32 v{T3}, 3, v{T1}\nv_add3_u32 v{T2}, v{T2}, v{T3}, 16\nv_mul_u32_u24 v{T2}, 1152, v{T2}\nv_add_u32 v{VWE+q}, v{T2}, v{VWE+q}")
    k("s_waitcnt vmcnt(0)\ns_barrier\ns_barrier")
    for st in range(7, 9): issue_w(st)
    k(f"s_barrier\ns_waitcnt vmcnt(0)\ns_barrier\ns_barrier\ns_branch {NXT}")
    k(f"{PO}:")
    VO = 10
    k(f"v_lshrrev_b32 v{T0}, 1, v{VG}\nv_mul_u32_u24 v{T0}, {PS}, v{T0}\nv_and_b32 v{T1}, 1, v{VG}\nv_lshl_add_u32 v{T0}, v{T1}, 9, v{T0}\nv_lshl_add_u32 v{T0}, v{VI}, 4, v{T0}")
    k(f"v_lshrrev_b32 v{T1}, 2, v{VL}\nv_lshlrev_b32 v{T1}, 13, v{T1}\nv_and_b32 v{T2}, 3, v{VL}\nv_lshl_add_u32 v{T1}, v{T2}, 4, v{T1}")
    for q in range(4): k(f"v_add_u32 v{VO+q}, {(q>>1)*1024+(q&1)*256}, v{T0}\nv_add_u32 v{VO+4+q}, {q*64}, v{T1}")
    k(f"s_lshl_b32 s32, s24, 11\ns_mul_i32 s30, s29, {2*PS}\ns_add_u32 s32, s32, s30\ns_add_u32 s32, s32, {WS_OM}\ns_lshl_b32 s30, s29, 17")
    k(f"s_lshl_b32 s38, s24, 8\ns_add_u32 s38, s38, s30\ns_add_u32 s38, s38, {WS_O8}\ns_lshl_b32 s34, s29, 12")
    k(f"s_lshr_b32 s30, s24, 1\ns_lshl_b32 s30, s30, 11\ns_add_u32 s30, s30, {F2}\nv_lshlrev_b32 v{T0}, 7, v{VL}")
    W7, WD = k.lab("W7"), k.lab("WD")
    k(f"s_cmp_eq_u32 s28, 7\ns_cbranch_scc1 {W7}\ns_waitcnt vmcnt(0)\ns_mov_b64 exec, 0xffff")
    poll(k, T0, T1, 1, 20, 30)
    k("s_mov_b64 exec, -1")
    lds_signal(k, T0, LCNT + 20)
    k(f"s_branch {WD}\n{W7}:")
    wait_local(k, T0, LCNT + 20, n=1)
    k(f"{WD}:\nSTAMP 5")
    def issue_o(st):
        for q in range(4): k(dma(34, st * 8192 + q * 1024, VO + q + (4 if st == 8 else 0), 20, 32 if st < 8 else 38, SC))
        k(f"s_add_u32 s32, s32, {4*PS}")
    for st in range(5): issue_o(st)
    k("s_waitcnt vmcnt(12)\ns_barrier")
    for st in range(5, 9): issue_o(st)
    k(f"s_waitcnt vmcnt(16)\ns_barrier\ns_waitcnt vmcnt(8)\ns_barrier\ns_waitcnt vmcnt(0)\ns_barrier\ns_barrier\ns_branch {NXT}")
    k(f"{PF}:\ns_sub_u32 s29, s2, 192")
    if 'early3' in XM:
        NE = k.lab("NE")
        k(f"s_cmp_lt_u32 s11, 27\ns_cbranch_scc1 {NE}")
        w1slow(k)
        k(f"{NE}:")
    pf(k, "PF3", 29, 64, 512, 10)
    r1 = int(os.environ.get("L2W1", 0))
    if r1:
        k("s_sub_u32 s29, s11, 24")
        w1_rows(k, 29, r1 // 8, 0, 0)
    k(f"s_branch {NXT}")

def p4(k, ENT, NXT):
    STG = 28672; R = 4; N = 32
    PROD = k.lab("P4PROD"); PF = k.lab("P4PF"); PA = k.lab("P4PA")
    k(f"{ENT}:\nSTAMP 6")
    k(f"s_cmp_ge_u32 s11, 27\ns_cbranch_scc1 {PF}")
    k("s_mul_i32 s24, s11, 10923\ns_lshr_b32 s24, s24, 16\ns_mul_i32 s25, s24, 6\ns_sub_u32 s25, s11, s25")
    k("s_and_b32 s29, s10, 1\ns_mul_i32 s30, s29, 5\ns_add_u32 s24, s24, s30")
    k("s_mul_i32 s30, s29, 3\ns_add_u32 s30, s30, s25")
    k("s_cmp_ge_u32 s11, 24\ns_cselect_b32 s24, 4, s24\ns_cselect_b32 s25, s30, s25\ns_mov_b32 s47, s24")
    k("s_lshr_b32 s30, s10, 1\ns_mul_i32 s30, s30, 9\ns_add_u32 s24, s24, s30")
    ids16(k)
    k(f"s_cmp_ge_u32 s28, 4\ns_cbranch_scc1 {PROD}")
    k("s_lshr_b32 s26, s28, 1\ns_and_b32 s27, s28, 1")
    VTR, VHR, B1, ACC, WF, HF = 12, 20, 26, 36, 84, 116
    srd(k, 16, PB1, F_ * 2)
    k(f"v_lshlrev_b32 v{T0}, 3, v{VG}\ns_lshl_b32 s30, s24, 8\ns_lshl_b32 s31, s26, 7\ns_add_u32 s30, s30, s31")
    for f4 in range(4):
        k(f"buffer_load_dwordx2 {v(B1+2*f4,2)}, v{T0}, s[16:19], s30 offen offset:{f4*32}")
    k(f"v_bfe_u32 v{T0}, v{VL}, 2, 2\nv_lshl_add_u32 v{T0}, v{VG}, 2, v{T0}")
    k(f"v_and_b32 v{T1}, 7, v{T0}\nv_lshlrev_b32 v{T0}, 8, v{T0}\nv_and_b32 v{T2}, 3, v{VL}\nv_lshl_add_u32 v{T0}, v{T2}, 3, v{T0}")
    k("s_lshl_b32 s30, s26, 2")
    for f4 in range(4):
        k(f"s_add_u32 s31, s30, {f4}\nv_xor_b32 v{T2}, s31, v{T1}\nv_lshl_add_u32 v{VTR+f4}, v{T2}, 5, v{T0}\nv_add_u32 v{VTR+4+f4}, {2*STG}, v{VTR+f4}")
    k(f"s_mul_i32 s30, s27, 3072\ns_add_u32 s30, s30, 16384\nv_lshlrev_b32 v{VHR}, 4, v{VL}\nv_add_u32 v{VHR}, s30, v{VHR}\nv_add_u32 v{VHR+1}, {2*STG}, v{VHR}")
    for r in range(48): k(f"v_mov_b32 v{ACC+r}, 0")
    k(f"s_mul_i32 s31, s25, 6\ns_mul_i32 s38, s27, 3\ns_add_u32 s31, s31, s38\ns_mul_i32 s31, s31, {144*1024}")
    k(f"s_lshl_b32 s38, s24, 12\ns_add_u32 s31, s31, s38\ns_lshl_b32 s38, s26, 11\ns_add_u32 s31, s31, s38\ns_add_u32 s40, s31, {WS_U}")
    k(f"s_lshr_b32 s30, s10, 1\ns_mul_i32 s30, s30, 6\ns_add_u32 s30, s30, s25\ns_mul_i32 s30, s30, 9\ns_add_u32 s30, s30, s47\ns_lshl_b32 s30, s30, 7\ns_add_u32 s41, s30, {F4}")
    def reads(st, slot, ks, rs):
        hi = slot >> 1; off = (slot & 1) * STG
        out = []
        for f4 in range(4):
            for hf in range(2):
                out.append(f"ds_read_b64_tr_b16 {v(WF+rs*16+f4*4+hf*2,2)}, v{VTR+4*hi+f4} offset:{off+ks*8192+hf*4096}")
            if f4 < 3:
                out.append(f"ds_read_b128 {v(HF+rs*12+f4*4,4)}, v{VHR+hi} offset:{off+ks*6144+f4*1024}")
        return out
    def mf(st, ks, rs):
        return [f"v_mfma_f32_16x16x32_bf16 {v(ACC+(f4*3+dt)*4,4)}, {v(WF+rs*16+f4*4,4)}, {v(HF+rs*12+dt*4,4)}, {v(ACC+(f4*3+dt)*4,4)}"
                for f4 in range(4) for dt in range(3)]
    consumer_loop(k, N, R, reads, mf, per=1, stamp0=None if (os.environ.get('P3S') or os.environ.get('P2S')) else 14)
    k("STAMP 7")
    c1 = -2.0 * math.sqrt(2.0 / math.pi) * math.log2(math.e)
    c2 = c1 * 0.044715
    CC = VTR
    k(f"v_mov_b32 v{CC}, {f32(c2)}\nv_mov_b32 v{CC+1}, {f32(c1)}")
    BB = WF
    k("s_waitcnt vmcnt(0)")
    for f4 in range(4):
        for h2 in range(2):
            k(f"v_lshlrev_b32 v{BB+f4*4+h2*2}, 16, v{B1+f4*2+h2}\nv_and_b32 v{BB+f4*4+h2*2+1}, 0xffff0000, v{B1+f4*2+h2}")
    k(f"v_lshlrev_b32 v{T0}, 4, v{VL}")
    TT = WF + 16; PKD = HF
    for dt in range(3):
        for pr in range(2):
            xb = [ACC + ((2 * pr + h) * 3 + dt) * 4 for h in range(2)]
            xs = [xb[h] + r for h in range(2) for r in range(4)]
            for h in range(2):
                for h2 in range(2): k(f"v_pk_add_f32 {v(xb[h]+2*h2,2)}, {v(xb[h]+2*h2,2)}, {v(BB+(2*pr+h)*4+2*h2,2)}")
            for h in range(2):
                for h2 in range(2): k(f"v_pk_mul_f32 {v(TT+4*h+2*h2,2)}, {v(xb[h]+2*h2,2)}, {v(xb[h]+2*h2,2)}")
            for n in range(4): k(f"v_pk_fma_f32 {v(TT+2*n,2)}, {v(TT+2*n,2)}, {v(CC,2)}, {v(CC,2)} op_sel:[0,0,1] op_sel_hi:[1,0,1]")
            for h in range(2):
                for h2 in range(2): k(f"v_pk_mul_f32 {v(TT+4*h+2*h2,2)}, {v(TT+4*h+2*h2,2)}, {v(xb[h]+2*h2,2)}")
            for n in range(8): k(f"v_exp_f32 v{TT+n}, v{TT+n}")
            for n in range(4): k(f"v_pk_add_f32 {v(TT+2*n,2)}, {v(TT+2*n,2)}, 1.0 op_sel_hi:[1,0]")
            for n in range(8): k(f"v_rcp_f32 v{TT+n}, v{TT+n}")
            for h in range(2):
                for h2 in range(2): k(f"v_pk_mul_f32 {v(xb[h]+2*h2,2)}, {v(xb[h]+2*h2,2)}, {v(TT+4*h+2*h2,2)}")
            o = PKD + (dt * 2 + pr) * 4
            for n in range(4): k(f"v_cvt_pk_bf16_f32 v{o+n}, v{xs[2*n]}, v{xs[2*n+1]}")
            k(f"buffer_store_dwordx4 {v(o,4)}, v{T0}, s[20:23], s40 offen offset:{pr*1024}{WT}")
        k(f"s_add_u32 s40, s40, {144*1024}")
    k(f"v_mov_b32 v{T1}, 0\nv_mov_b32 v{T2}, 1\ns_waitcnt vmcnt(0)")
    last_wave_flag(k, T1, T2, T3, LCNT + 8, 20, 41)
    k(f"s_branch {NXT}")
    k(f"{PROD}:\ns_and_b32 s26, s28, 1\ns_cmp_ge_u32 s28, 6\ns_cbranch_scc1 {PA}")
    VD = 10
    for q in range(2):
        k(f"v_add_u32 v{T0}, {4*q}, v{VG}")
        k(f"v_lshlrev_b32 v{T1}, 1, v{T0}\nv_xor_b32 v{T1}, v{T1}, v{VI}\nv_lshlrev_b32 v{T1}, 4, v{T1}")
        k(f"v_mul_u32_u24 v{T0}, 9216, v{T0}\nv_add_u32 v{VD+q}, v{T0}, v{T1}")
    for q in range(2, 8): k(f"v_add_u32 v{VD+q}, {8*9216}, v{VD+q-2}")
    k(f"s_lshl_b32 s32, s24, 8\ns_mul_i32 s30, s26, {32*9216}\ns_add_u32 s32, s32, s30\ns_lshl_b32 s34, s26, 13")
    srd(k, 12, PW1, S_ * F_ * 2)
    if 'g4' in XM:
        NG = k.lab("NG")
        k(f"s_cmp_ge_u32 s2, 192\ns_cbranch_scc1 {NG}")
        wait_local(k, 20, LCNT + 4, n=4)
        k(f"{NG}:")
    producer_loop(k, N, R, 8, lambda st, slot: [dma(34, slot * STG + q * 1024, VD + q, 12, 32) for q in range(8)] + [f"s_add_u32 s32, s32, {64*9216}"], NXT, first=int(os.environ.get("FIRST4", 2)))
    k(f"{PA}:")
    k(f"v_lshlrev_b32 v{VD}, 4, v{VL}")
    for q in range(1, 6): k(f"v_add_u32 v{VD+q}, {PS}, v{VD+q-1}")
    k(f"s_mul_i32 s33, s25, {6*PS}\ns_lshl_b32 s30, s26, 10\ns_add_u32 s33, s33, s30\ns_add_u32 s33, s33, {WS_HN}")
    k("s_mul_i32 s35, s26, 6144\ns_add_u32 s35, s35, 16384")
    k(f"s_lshl_b32 s30, s25, 12\ns_add_u32 s30, s30, {F3}\nv_lshlrev_b32 v{T0}, 7, v{VL}")
    W7, WD = k.lab("W7"), k.lab("WD")
    k(f"s_cmp_eq_u32 s28, 7\ns_cbranch_scc1 {W7}")
    if 'nogate' not in XM:
        NG, NG2 = k.lab("NG"), k.lab("NG")
        k(f"s_cmp_ge_u32 s2, 192\ns_cbranch_scc1 {NG}")
        wait_local(k, 20, LCNT + 4)
        k(f"s_branch {NG2}\n{NG}:\ns_mov_b64 exec, 1")
        poll(k, T0, 20, 1, 20, 30, sleep=8)
        k(f"s_mov_b64 exec, -1\n{NG2}:")
    k("s_mov_b32 exec_hi, 0")
    poll(k, T0, 20, 1, 20, 30)
    k("s_mov_b32 exec_hi, -1")
    lds_signal(k, 20, LCNT + 24)
    k(f"s_branch {WD}\n{W7}:")
    wait_local(k, 20, LCNT + 24, n=1)
    k(f"{WD}:\nSTAMP 7")
    producer_loop(k, N, R, 6, lambda st, slot: [dma(35, slot * STG + q * 1024, VD + q, 20, 33, SC) for q in range(6)] + ["s_add_u32 s33, s33, 2048"], NXT)
    k(f"{PF}:\ns_sub_u32 s29, s2, 216")
    pf(k, "PF4", 29, 40, 512, 10)
    if 'early4' in XM: w1slow(k)
    if 'nopoison' not in XM:
        srd(k, 56, PDBG, 256)
        k(f"s_mul_i32 s30, s29, 196608\ns_add_u32 s30, s30, {WS_P}\nv_lshlrev_b32 v10, 4, v0\nv_mov_b32 v12, -1\nv_mov_b32 v13, -1\nv_mov_b32 v14, -1\nv_mov_b32 v15, -1")
        for i in range(24): k(f"buffer_store_dwordx4 v[12:15], v10, s[20:23], s30 offen{WT}\ns_add_u32 s30, s30, 8192")
        NZ = k.lab("NZ")
        k(f"v_mov_b32 v16, 4\nv_mov_b32 v17, 1\ns_waitcnt vmcnt(0)\ns_barrier\ns_cmp_lg_u32 s28, 0\ns_cbranch_scc1 {NZ}")
        k(f"s_mov_b64 exec, 1\nbuffer_atomic_add v17, v16, s[56:59], 0 offen sc1\ns_mov_b64 exec, -1\n{NZ}:")
    if 'noslow' not in XM:
        def gated(flag_off, lines_code):
            NP = k.lab("NP")
            k(f"s_cmp_lg_u32 s28, 0\ns_cbranch_scc1 {NP}\ns_mov_b32 s30, {flag_off}\nv_mov_b32 v12, 0\ns_mov_b64 exec, 1")
            poll(k, 12, 13, 1, 20, 30, sleep=8)
            k(f"s_mov_b64 exec, -1\n{NP}:\ns_barrier")
            lines_code()
        def w2slow():
            srd(k, 52, PW2, S_ * F_ * 2)
            k(f"s_lshr_b32 s60, s10, 1\ns_mul_i32 s60, s60, {1152*4096}\ns_and_b32 s61, s10, 1\ns_lshl_b32 s61, s61, 11\ns_add_u32 s60, s60, s61\ns_add_u32 s60, s60, 384")
            k(f"s_sub_u32 s62, s11, 27\nv_lshrrev_b32 v10, 1, v0\nv_mul_u32_u24 v10, 5, v10\nv_add_u32 v10, s62, v10\nv_lshlrev_b32 v10, 12, v10\nv_and_b32 v11, 1, v0\nv_lshl_add_u32 v10, v11, 10, v10")
            k(f"v_cmp_gt_u32 vcc, {2*231}, v0\nv_mov_b32 v11, 0x7ff00000\nv_cndmask_b32 v10, v11, v10, vcc")
            k(f"buffer_load_dword v{DUMMY}, v10, s[52:55], s60 offen")
        gated(F3, lambda: w1slow(k))
        if 'now2' not in XM: gated(F4 + 128 * 2, w2slow)
    if os.environ.get("JIT4"):
        s0, sw = [int(t) for t in os.environ["JIT4"].split(",")]
        k(f"s_mov_b32 s30, {F3}\nv_lshlrev_b32 v12, 7, v0\nv_cmp_gt_u32 vcc, 192, v0\ns_and_saveexec_b64 s[62:63], vcc")
        NP = k.lab("NP")
        k(f"s_cbranch_execz {NP}")
        poll(k, 12, 13, 1, 20, 30)
        k(f"{NP}:\ns_mov_b64 exec, -1\ns_barrier")
        w1_addr(k, 10)
        k("s_sub_u32 s29, s11, 27")
        k(f"v_lshrrev_b32 v12, 4, v0\nv_mul_u32_u24 v12, {PS}, v12\nv_and_b32 v13, 15, v0\nv_lshl_add_u32 v12, v13, 7, v12")
        k(f"v_add_u32 v13, {32*PS}, v12\nv_mov_b32 v14, 0x7ff00000\nv_cmp_gt_u32 vcc, 64, v0\nv_cndmask_b32 v13, v14, v13, vcc")
        k(f"s_lshl_b32 s61, s29, 11\ns_add_u32 s61, s61, {WS_HN + s0*2048}\ns_mul_i32 s62, s29, {64*9216}\ns_add_u32 s60, s60, s62\ns_add_u32 s60, s60, {s0*64*9216}")
        for st in range(s0, 32, 5):
            k(f"buffer_load_dword v{DUMMY}, v12, s[20:23], s61 offen\nbuffer_load_dword v{DUMMY}, v13, s[20:23], s61 offen\ns_add_u32 s61, s61, {5*2048}")
            if st + 4 >= sw:
                k(f"buffer_load_dword v{DUMMY}, v10, s[52:55], s60 offen\ns_add_u32 s62, s60, {32*9216}\nbuffer_load_dword v{DUMMY}, v10, s[52:55], s62 offen")
            k(f"s_add_u32 s60, s60, {5*64*9216}")
    k(f"s_branch {NXT}")

def p5(k, ENT):
    STG = 34816; R = 4; N = 18
    PROD = k.lab("P5PROD"); PA = k.lab("P5PA"); FIN = k.lab("FIN")
    k(f"{ENT}:\nSTAMP 8")
    k("s_lshr_b32 s26, s10, 1\ns_and_b32 s25, s11, 3\ns_lshr_b32 s24, s11, 2")
    if 'nomap5' not in XM:
        k("s_sub_u32 s30, s10, 5\ns_cmp_lt_u32 s30, 2\ns_cselect_b32 s30, 7, 6\ns_add_u32 s24, s24, s30\ns_and_b32 s24, s24, 7")
    k("s_and_b32 s29, s10, 1\ns_lshl_b32 s29, s29, 3\ns_add_u32 s24, s24, s29\ns_and_b32 s29, s26, 1")
    ids16(k)
    k(f"s_cmp_ge_u32 s28, 4\ns_cbranch_scc1 {PROD}")
    VTR = 10; VUR = VTR + 2 * R; B2 = VUR + R
    IDN, HR, UF = 24, 28, 48
    WF = UF + 72; ACC = WF + 16
    srd(k, 16, PB2, S_ * 2)
    srd(k, 40, POUT, S_ * D_ * 2)
    k(f"s_lshl_b32 s30, s24, 8\ns_lshl_b32 s31, s28, 6\ns_add_u32 s30, s30, s31\ns_lshl_b32 s31, s29, 5\ns_add_u32 s30, s30, s31\nv_lshlrev_b32 v{T0}, 1, v{VI}")
    k(f"buffer_load_ushort v{B2}, v{T0}, s[16:19], s30 offen")
    k(f"v_lshlrev_b32 v{T3}, 4, v{VL}")
    k(f"s_mul_i32 s49, s25, {9*PS}\ns_lshl_b32 s32, s24, 12\ns_add_u32 s49, s49, s32\ns_lshl_b32 s32, s28, 10\ns_add_u32 s49, s49, s32\ns_add_u32 s49, s49, {WS_H}")
    k(f"s_lshr_b32 s32, s26, 1\ns_mul_i32 s32, s32, {5*PS}\ns_add_u32 s49, s49, s32")
    k(f"v_bfe_u32 v{T0}, v{VL}, 2, 2\nv_lshl_add_u32 v{T0}, v{VG}, 2, v{T0}")
    k(f"v_and_b32 v{T1}, 7, v{T0}\nv_lshlrev_b32 v{T0}, 8, v{T0}\nv_and_b32 v{T2}, 3, v{VL}\nv_lshl_add_u32 v{T0}, v{T2}, 3, v{T0}")
    k("s_lshl_b32 s30, s28, 1\ns_add_u32 s30, s30, s29")
    for l in range(2):
        k(f"s_xor_b32 s31, s30, {l}\nv_xor_b32 v{T2}, s31, v{T1}\nv_lshl_add_u32 v{VTR+l}, v{T2}, 5, v{T0}")
        for sl in range(1, R): k(f"v_add_u32 v{VTR+2*sl+l}, {sl*STG}, v{VTR+l}")
    k(f"v_lshlrev_b32 v{VUR}, 4, v{VL}\nv_add_u32 v{VUR}, 16384, v{VUR}")
    for sl in range(1, R): k(f"v_add_u32 v{VUR+sl}, {sl*STG}, v{VUR}")
    k(f"v_lshlrev_b32 v{T0}, 2, v{VG}\nv_sub_u32 v{T0}, v{VI}, v{T0}\nv_mov_b32 v{T1}, 0x3f80\nv_mov_b32 v{T2}, 0x3f800000")
    k("s_cmp_eq_u32 s29, 0\ns_cselect_b64 s[38:39], -1, 0")
    for j2 in range(2):
        k(f"v_cmp_eq_u32 vcc, {2*j2}, v{T0}\nv_cndmask_b32 v{UF}, 0, v{T1}, vcc")
        k(f"v_cmp_eq_u32 vcc, {2*j2+1}, v{T0}\nv_cndmask_b32 v{UF}, v{UF}, v{T2}, vcc")
        k(f"v_cndmask_b32 v{IDN+j2}, 0, v{UF}, s[38:39]\nv_cndmask_b32 v{IDN+2+j2}, v{UF}, 0, s[38:39]")
    for r in range(72): k(f"v_mov_b32 v{ACC+r}, 0")
    k(f"s_lshl_b32 s32, s24, 2\ns_add_u32 s32, s32, s25")
    k(f"s_mul_i32 s33, s32, {48*2560}\ns_mul_i32 s30, s28, 2560\ns_add_u32 s33, s33, s30\ns_add_u32 s33, s33, {PB}")
    for x in (1, 2, 3):
        k(f"s_xor_b32 s30, s26, {x}\ns_sub_u32 s31, s26, s30\ns_sub_u32 s31, s31, 1\ns_and_b32 s31, s31, 3")
        k(f"s_mul_i32 s30, s30, 3\ns_add_u32 s30, s30, s31\ns_mul_i32 s30, s30, {4*2560}\ns_add_u32 s{44+x}, s30, s33")
    k(f"s_mul_i32 s30, s26, {12*2560}\ns_add_u32 s33, s33, s30")
    k(f"s_lshl_b32 s35, s32, 11\ns_lshl_b32 s30, s28, 9\ns_add_u32 s35, s35, s30\ns_add_u32 s35, s35, {F5}\ns_lshl_b32 s30, s26, 7\ns_add_u32 s34, s30, s35")
    k(f"s_lshl_b32 s48, s24, 7\ns_lshl_b32 s31, s28, 5\ns_add_u32 s48, s48, s31\ns_lshl_b32 s31, s29, 4\ns_add_u32 s48, s48, s31\ns_mul_i32 s48, s48, 1152\ns_mul_i32 s31, s25, 288\ns_add_u32 s48, s48, s31")
    POIS = 'nopoison' not in XM
    PZ = ACC + 73
    srd(k, 56, PDBG, 256)
    k(f"v_mov_b32 v{PZ-1}, 4")
    firstr = [True]
    def reads(st, slot, ks, rs):
        out = []
        for l in range(2):
            for hf in range(2):
                out.append(f"ds_read_b64_tr_b16 {v(WF+rs*8+l*4+hf*2,2)}, v{VTR+2*slot+l} offset:{ks*8192+hf*4096}")
        for d in range(9):
            out.append(f"ds_read_b128 {v(UF+rs*36+d*4,4)}, v{VUR+slot} offset:{ks*9216+d*1024}")
        if firstr[0]:
            firstr[0] = False
            if POIS: out.append(f"buffer_load_dword v{PZ}, v{PZ-1}, s[56:59], 0 offen sc0 sc1")
            for d in range(5): out.append(f"buffer_load_dwordx4 {v(HR+4*d,4)}, v{T3}, s[20:23], s49 offen{SC}\ns_add_u32 s49, s49, {PS}")
        return out
    def mf(st, ks, rs):
        return [f"v_mfma_f32_16x16x32_bf16 {v(ACC+(d*2+l)*4,4)}, {v(UF+rs*36+d*4,4)}, {v(WF+rs*8+l*4,4)}, {v(ACC+(d*2+l)*4,4)}"
                for d in range(9) for l in range(2)]
    consumer_loop(k, N, R, reads, mf, per=1, final_barrier=False, stamp0=None if (os.environ.get('P3S') or os.environ.get('P2S')) else 15)
    k("STAMP 9")
    V16, V8, VZ, VO = VTR, VTR + 1, VTR + 2, VTR + 3
    k(f"v_lshlrev_b32 v{V16}, 4, v{VL}\nv_lshlrev_b32 v{V8}, 3, v{VL}\nv_mov_b32 v{VZ}, 0\nv_mov_b32 v{T2}, 1\ns_waitcnt vmcnt(0)")
    if POIS:
        OK = k.lab("POK")
        k(f"v_cmp_gt_u32 vcc, 40, v{PZ}\ns_mov_b32 s31, 0\ns_nop 3\ns_cbranch_vccz {OK}")
        poll(k, PZ - 1, PZ, 1, 56, 31, want=40)
        k(f"{OK}:")
    GA, GB = [0, 1, 2, 3, 4], [5, 6, 7, 8]
    def epi(aa):
        own, oth = (GA, GB) if aa == 0 else (GB, GA)
        PK = UF
        n = 0
        for x, grp, l in ((2, oth, 0), (3, oth, 1), (1, own, 1)):
            for c in range(0, len(grp), 2):
                ds = grp[c:c + 2]
                for e, d in enumerate(ds):
                    ac = ACC + (d * 2 + l) * 4
                    k(f"v_cvt_pk_bf16_f32 v{PK+n+2*e}, v{ac}, v{ac+1}\nv_cvt_pk_bf16_f32 v{PK+n+2*e+1}, v{ac+2}, v{ac+3}")
                if len(ds) == 2: k(f"buffer_store_dwordx4 {v(PK+n,4)}, v{V16}, s[20:23], s{44+x} offen offset:{c*512}{WT}")
                else: k(f"buffer_store_dwordx2 {v(PK+n,2)}, v{V8}, s[20:23], s{44+x} offen offset:{c*512}{WT}")
                n += 4
        for e, d in enumerate(own):
            ac = v(ACC + d * 8, 4)
            k(f"v_mfma_f32_16x16x32_bf16 {ac}, {v(HR+4*e,4)}, {v(IDN,4)}, {ac}")
        k(f"v_lshlrev_b32 v{B2}, 16, v{B2}")
        k(f"v_mul_u32_u24 v{VO}, 1152, v{VI}\nv_lshl_add_u32 v{VO}, v{VG}, 3, v{VO}")
        RR = UF + 40
        chunks = [own[c:c + 2] for c in range(0, len(own), 2)]
        k(f"s_add_u32 s30, s33, {4*2560}\ns_add_u32 s31, s33, {8*2560}")
        def inbox():
            regs = []
            for ci, ds in enumerate(chunks):
                for sl, so in enumerate((33, 30, 31)):
                    r = RR + (ci * 3 + sl) * 4
                    if len(ds) == 2: k(f"buffer_load_dwordx4 {v(r,4)}, v{V16}, s[20:23], s{so} offen offset:{ci*1024} sc0 sc1")
                    else: k(f"buffer_load_dwordx2 {v(r,2)}, v{V8}, s[20:23], s{so} offen offset:{ci*1024} sc0 sc1")
                    regs += list(range(r, r + 2 * len(ds)))
            return regs
        def addb2():
            for d in own:
                for h2 in range(2): k(f"v_pk_add_f32 {v(ACC+d*8+2*h2,2)}, {v(ACC+d*8+2*h2,2)}, {v(B2-(B2&1),2)} op_sel:[0,{B2&1}] op_sel_hi:[1,{B2&1}]")
        if POIS:
            addb2()
            PL, GO = k.lab("PP"), k.lab("PG")
            k(f"s_mov_b32 s37, 0x40000\ns_waitcnt vmcnt({os.environ.get('PWAIT', 0)})\n{PL}:")
            regs = inbox()
            k(f"s_waitcnt vmcnt(0)\nv_max_u32 v{T0}, v{regs[0]}, v{regs[1]}")
            for n in range(2, len(regs), 2): k(f"v_max3_u32 v{T0}, v{T0}, v{regs[n]}, v{regs[n+1]}")
            k(f"v_cmp_eq_u32 vcc, -1, v{T0}\ns_sub_u32 s37, s37, 1\ns_cmp_eq_u32 s37, 0\ns_cbranch_scc1 {GO}\ns_cbranch_vccz {GO}\ns_sleep 2\ns_branch {PL}\n{GO}:\nSTAMP 10")
        else:
            k("s_waitcnt vmcnt(0)\nSTAMP 12")
            set_flag(k, VZ, T2, 20, 34)
            if 'fw' in XM: k("s_waitcnt vmcnt(0)")
            addb2()
            k(f"v_lshlrev_b32 v{T0}, 7, v{VL}\ns_mov_b64 exec, 0xf")
            poll(k, T0, HR, 1, 20, 35)
            k("s_mov_b64 exec, -1\nSTAMP 10")
            inbox()
        TR = 'notr' not in XM
        nch = 2 * len(own)
        if TR:
            k(f"s_mul_i32 s30, s28, 2816\ns_add_u32 s30, s30, {3*STG}\nv_mul_u32_u24 v{VO}, 176, v{VI}\nv_lshl_add_u32 v{VO}, v{VG}, 3, v{VO}\nv_add_u32 v{VO}, s30, v{VO}")
            nin = -(-16 * nch // 64)
            for q in range(nin):
                k(f"v_add_u32 v{T0}, {q*64}, v{VL}\nv_mul_u32_u24 v{T1}, {-(-65536//nch)}, v{T0}\nv_lshrrev_b32 v{T1}, 16, v{T1}\nv_mul_u32_u24 v{T2}, {nch}, v{T1}\nv_sub_u32 v{T0}, v{T0}, v{T2}\nv_lshlrev_b32 v{T0}, 4, v{T0}")
                k(f"v_mul_u32_u24 v{T2}, 176, v{T1}\nv_add3_u32 v{HR+q}, v{T2}, v{T0}, s30\nv_mul_u32_u24 v{T2}, 1152, v{T1}\nv_add_u32 v{HR+4+q}, v{T2}, v{T0}")
        nst = 0
        for ci, ds in enumerate(chunks):
            if not POIS: k(f"s_waitcnt vmcnt({3*(len(chunks)-1-ci)+nst})")
            for e, d in enumerate(ds):
                o = ACC + d * 8
                for sl in range(3):
                    for h2 in range(2):
                        p = RR + (ci * 3 + sl) * 4 + 2 * e + h2
                        t = PK + (sl * 2 + h2) * 2
                        k(f"v_lshlrev_b32 v{t}, 16, v{p}\nv_and_b32 v{t+1}, 0xffff0000, v{p}")
                for sl in range(3):
                    for h2 in range(2):
                        t = PK + (sl * 2 + h2) * 2
                        k(f"v_pk_add_f32 {v(o+2*h2,2)}, {v(o+2*h2,2)}, {v(t,2)}")
                k(f"v_cvt_pk_bf16_f32 v{o}, v{o}, v{o+1}\nv_cvt_pk_bf16_f32 v{o+1}, v{o+2}, v{o+3}")
                if TR: k(f"ds_write_b64 v{VO}, {v(o,2)} offset:{(d-own[0])*32}")
                else:
                    k(f"buffer_store_dwordx2 {v(o,2)}, v{VO}, s[40:43], s48 offen offset:{d*32}" + os.environ.get("OUTF", " nt"))
                    nst += 1
        if TR:
            k("s_waitcnt lgkmcnt(0)")
            for q in range(nin): k(f"ds_read_b128 {v(PK+16+4*q,4)}, v{HR+q}")
            for q in range(nin):
                k(f"s_waitcnt lgkmcnt({nin-1-q})")
                if (q + 1) * 64 > 16 * nch: k("s_mov_b32 exec_hi, 0")
                k(f"buffer_store_dwordx4 {v(PK+16+4*q,4)}, v{HR+4+q}, s[40:43], s48 offen offset:{own[0]*32}" + os.environ.get("OUTF", " nt"))
        k("s_endpgm")
    A1 = k.lab("A1")
    k(f"s_cmp_ge_u32 s26, 2\ns_cbranch_scc1 {A1}")
    epi(0)
    k(f"{A1}:")
    epi(1)
    k(f"{PROD}:\ns_and_b32 s29, s28, 1")
    ORD = 'noord' not in XM
    k("s_sub_u32 s38, 1, s26\ns_and_b32 s38, s38, 3\ns_cmp_eq_u32 s38, 0\ns_cselect_b32 s39, 6, 7")
    for n in range(9):
        if not ORD:
            k(f"s_mov_b32 s{40+n}, {n}"); continue
        k(f"s_mov_b32 s{40+n}, {n}")
        for d in (0, 3, 6):
            if n - d >= 0: k(f"s_cmp_le_u32 s38, {n-d}\ns_addc_u32 s{40+n}, s{40+n}, 0")
        if n >= 6: k(f"s_sub_u32 s30, {n}, s39\ns_lshl_b32 s30, s30, 2\ns_add_u32 s30, s30, s38\ns_cmp_le_u32 s39, {n}\ns_cselect_b32 s{40+n}, s30, s{40+n}")
    k(f"s_cmp_ge_u32 s28, 6\ns_cbranch_scc1 {PA}")
    VD = 10
    for q in range(2):
        k(f"v_add_u32 v{T0}, {4*q}, v{VG}")
        k(f"v_lshlrev_b32 v{T1}, 1, v{T0}\nv_xor_b32 v{T1}, v{T1}, v{VI}\nv_lshlrev_b32 v{T1}, 4, v{T1}")
        k(f"v_lshl_add_u32 v{VD+q}, v{T0}, 12, v{T1}")
    for q in range(2, 8): k(f"v_add_u32 v{VD+q}, {8*4096}, v{VD+q-2}")
    k(f"s_mul_i32 s32, s26, {1152*4096}\ns_lshl_b32 s30, s29, 17\ns_add_u32 s32, s32, s30\ns_lshl_b32 s30, s24, 8\ns_add_u32 s32, s32, s30\ns_lshl_b32 s34, s29, 13")
    srd(k, 12, PW2, F_ * S_ * 2)
    if 'g5' in XM:
        NG = k.lab("NG")
        k(f"s_cmp_ge_u32 s2, 216\ns_cbranch_scc1 {NG}")
        wait_local(k, 20, LCNT + 8, n=4)
        k(f"{NG}:")
    producer_loop(k, N, R, 8, lambda st, slot: [f"s_lshl_b32 s33, s{40+(st>>1)}, 19\ns_add_u32 s33, s33, s32" + (f"\ns_add_u32 s33, s33, {64*4096}" if st & 1 else "")] +
                  [dma(34, slot * STG + q * 1024, VD + q, 12, 33) for q in range(8)], FIN, final_barrier=False, first=int(os.environ.get("FIRST5", 2)), gate=lambda st: None)
    k(f"{PA}:")
    k(f"v_lshlrev_b32 v{VD}, 4, v{VL}")
    for d in range(1, 9): k(f"v_add_u32 v{VD+d}, {144*1024}, v{VD+d-1}")
    k(f"s_mul_i32 s33, s25, {9*144*1024}\ns_mul_i32 s30, s26, {36*1024}\ns_add_u32 s33, s33, s30\ns_lshl_b32 s30, s29, 10\ns_add_u32 s33, s33, s30\ns_add_u32 s33, s33, {WS_U}")
    k("s_mul_i32 s35, s29, 9216\ns_add_u32 s35, s35, 16384")
    k(f"s_mul_i32 s30, s25, 3\ns_lshr_b32 s30, s30, 1\ns_mul_i32 s31, s26, 6\ns_add_u32 s30, s30, s31\ns_mul_i32 s30, s30, {9*128}\ns_add_u32 s30, s30, {F4}")
    k(f"v_lshlrev_b32 v{T0}, 7, v{VL}")
    W7, WD = k.lab("W7"), k.lab("WD")
    k(f"s_mov_b32 s49, s30\ns_cmp_eq_u32 s28, 7\ns_cbranch_scc1 {W7}")
    if 'nogate' not in XM:
        NG, NG2 = k.lab("NG"), k.lab("NG")
        k(f"s_cmp_ge_u32 s2, 216\ns_cbranch_scc1 {NG}")
        wait_local(k, 20, LCNT + 8)
        k(f"s_branch {NG2}\n{NG}:\ns_lshl_b32 exec_lo, 1, s40\ns_mov_b32 exec_hi, 0")
        poll(k, T0, 20, 1, 20, 30, sleep=8)
        k(f"{NG2}:")
    k("s_lshl_b32 s31, 0x111, s38\ns_and_b32 s31, s31, 0x1ff\ns_mul_i32 s31, s31, 0x201\ns_andn2_b32 exec_lo, 0x3ffff, s31\ns_mov_b32 exec_hi, 0\ns_mov_b32 s49, s30" if ORD else "s_mov_b64 exec, 0x3ffff")
    poll(k, T0, 20, 1, 20, 30)
    k("s_mov_b64 exec, -1")
    lds_signal(k, 20, LCNT + 28)
    k(f"s_branch {WD}\n{W7}:")
    wait_local(k, 20, LCNT + 28, n=1)
    k(f"{WD}:\nSTAMP 9")
    def gate(st):
        if st == 12 and ORD:
            k("s_mov_b64 exec, 0x3ffff")
            poll(k, T0, 20, 1, 20, 49)
            k("s_mov_b64 exec, -1")
    producer_loop(k, N, R, 9, lambda st, slot: [f"s_lshl_b32 s32, s{40+(st>>1)}, 12\ns_add_u32 s32, s32, s33" + ("\ns_add_u32 s32, s32, 2048" if st & 1 else "")] +
                  [dma(35, slot * STG + q * 1024, VD + q, 20, 32, SC) for q in range(9)], FIN, final_barrier=False, gate=gate)
    k(f"{FIN}:\ns_endpgm")

NAME = "sequential_preLN__sliding_block__mixer_token_mlp__prompt_kernel"
def gen_mega():
    k = Kern(NAME, 512, 256, LCNT + 64)
    k.lab = (lambda f: (lambda base="L": f(base).replace(NAME[:-7], "m")))(k.lab)
    END = k.lab("END")
    k(f"s_cmp_ge_u32 s2, 256\ns_cbranch_scc1 {END}")
    k("s_load_dwordx16 s[64:79], s[0:1], 0\ns_load_dwordx4 s[80:83], s[0:1], 64\ns_load_dwordx2 s[84:85], s[0:1], 80")
    k("s_and_b32 s10, s2, 7\ns_lshr_b32 s11, s2, 3")
    if 'nocode' not in XM:
        H = k.lab("PC"); SK = k.lab("SKC")
        k(f"s_cmp_lt_u32 s2, 192\ns_cbranch_scc1 {SK}\ns_getpc_b64 s[60:61]\n{H}:\ns_sub_u32 s60, s60, {H}-L_text_begin\ns_subb_u32 s61, s61, 0")
        k(f"s_sub_u32 s62, s11, 24\ns_lshl_b32 s62, s62, 7\nv_lshlrev_b32 v{T0}, 10, v0\nv_add_u32 v{T0}, s62, v{T0}")
        k(f"s_mov_b32 s62, L_text_end-L_text_begin\nv_cmp_gt_u32 vcc, s62, v{T0}\ns_and_saveexec_b64 s[62:63], vcc\ns_cbranch_execz {SK}\nglobal_load_dword v{DUMMY}, v{T0}, s[60:61]\n{SK}:\ns_mov_b64 exec, -1")
    lane_ids(k, VL, 2, 28)
    k(f"v_lshlrev_b32 v{T0}, 2, v{VL}\nv_add_u32 v{T0}, {LCNT}, v{T0}\nv_mov_b32 v{T1}, 0\ns_mov_b64 exec, 0xffff\nds_write_b32 v{T0}, v{T1}\ns_mov_b64 exec, -1")
    E2a, E2b, E3, E4, E5 = [k.lab(n) for n in ("P2A", "P2B", "P3", "P4", "P5")]
    p1(k, (E2a, E2b))
    p2(k, (E2a, E2b), E3)
    p3(k, E3, E4)
    p4(k, E4, E5)
    p5(k, E5)
    k(f"{END}:\ns_endpgm")
    return k
```

```python
from common import *
from ring2 import *
import math, os
XM = os.environ.get('MX', 'notouch,nopoison,noslow,fw').split(',')
WT = " sc0 sc1"
SC = " sc1"
FL = WS_ST + 196608
F1 = FL; F2 = F1 + 32768; F3 = F2 + 32768; F4 = F3 + 24576; F5 = F4 + 27648; FEND = F5 + 131072
assert FEND - WS_ST <= 64 * 8192
PB = int(os.environ.get('PB', WS_P))
LX = 61440
LCNT = 160768
WS_XS = 22 * MB
WS_CS = WS_XS + 16384
PX, PWQKV, PWO, PW1, PB1, PW2, PB2, POUT, PDBG, PWS = 64, 66, 68, 72, 74, 76, 78, 80, 82, 84
VL, VG, VI = 1, 3, 4
T0, T1, T2, T3 = 5, 6, 7, 8
DUMMY = 234

def pf_flat(k, srd_, sidx, nwg, nthreads, b0, b1, tmp, vt=0, s0=60):
    lines = (b1 - b0) // 128
    per = (lines + nwg - 1) // nwg
    n = (per + nthreads - 1) // nthreads
    k(f"s_mul_i32 s{s0}, s{sidx}, {per*128}\ns_add_u32 s{s0}, s{s0}, {b0}\nv_lshlrev_b32 v{tmp}, 7, v{vt}")
    for i in range(n):
        last = per - i * nthreads
        if last < nthreads:
            k(f"v_mov_b32 v{tmp+1}, 0x7ff00000\nv_cmp_gt_u32 vcc, {last}, v{vt}\nv_cndmask_b32 v{tmp}, v{tmp+1}, v{tmp}, vcc")
        k(f"buffer_load_dword v{DUMMY}, v{tmp}, s[{srd_}:{srd_+3}], s{s0} offen\ns_add_u32 s{s0}, s{s0}, {nthreads*128}")

PFDEF = dict(PF1B="w1:0:48", PF2="w1:48:88", PF3="w1:88:128,w2:0:26", PF4="w2:26:128")
def pf(k, name, sidx, nwg, nthreads, tmp, vt=0):
    spec = os.environ.get(name, PFDEF.get(name, ""))
    if not spec or spec == "0": return
    U = S_ * F_ * 2 // 128
    for it in spec.split(","):
        w, a_, b_ = it.split(":")
        srd(k, 52, PW1 if w == "w1" else PW2, S_ * F_ * 2)
        pf_flat(k, 52, sidx, nwg, nthreads, int(a_) * U, int(b_) * U, tmp, vt=vt)

def w1_addr(k, tmp):
    srd(k, 52, PW1, S_ * F_ * 2)
    k("s_lshr_b32 s60, s10, 1\ns_mul_i32 s60, s60, 9\ns_and_b32 s61, s10, 1\ns_lshl_b32 s61, s61, 2\ns_add_u32 s60, s60, s61\ns_lshl_b32 s60, s60, 8")
    k(f"v_lshrrev_b32 v{tmp}, 4, v0\nv_mul_u32_u24 v{tmp}, 9216, v{tmp}\nv_and_b32 v{tmp+1}, 15, v0\nv_lshl_add_u32 v{tmp}, v{tmp+1}, 7, v{tmp}")
    k(f"v_cmp_lt_u32 vcc, 9, v{tmp+1}\nv_mov_b32 v{tmp+1}, 0x7ff00000\nv_cndmask_b32 v{tmp}, v{tmp}, v{tmp+1}, vcc")

def w1_rows(k, sidx, rows, r0, _):
    w1_addr(k, 10)
    k(f"s_mul_i32 s61, s{sidx}, {rows*9216}\ns_add_u32 s60, s60, s61\ns_add_u32 s60, s60, {r0*9216}")
    for i in range((rows + 31) // 32):
        k(f"buffer_load_dword v{DUMMY}, v10, s[52:55], s60 offen\ns_add_u32 s60, s60, {32*9216}")

def w1slow(k):
    srd(k, 52, PW1, S_ * F_ * 2)
    k("s_lshr_b32 s60, s10, 1\ns_mul_i32 s60, s60, 9\ns_and_b32 s61, s10, 1\ns_lshl_b32 s61, s61, 2\ns_add_u32 s60, s60, s61")
    k("s_sub_u32 s61, 1, s60\ns_and_b32 s61, s61, 3\ns_add_u32 s60, s60, s61\ns_lshl_b32 s60, s60, 8\ns_add_u32 s60, s60, 128")
    k(f"s_sub_u32 s62, s11, 27\nv_mul_u32_u24 v10, 5, v0\nv_add_u32 v10, s62, v10\nv_mul_u32_u24 v10, 9216, v10")
    k(f"buffer_load_dword v{DUMMY}, v10, s[52:55], s60 offen\ns_add_u32 s60, s60, 1024\ns_cmp_eq_u32 s61, 0\ns_cselect_b32 s54, s54, 0")
    k(f"buffer_load_dword v{DUMMY}, v10, s[52:55], s60 offen")

def ids16(k):
    k(f"v_lshrrev_b32 v{VG}, 4, v{VL}\nv_and_b32 v{VI}, 15, v{VL}")

def p1(k, NXT):
    R = 4; STG = 34816; N = 9; XO = 18432
    PROD = k.lab("P1PROD"); PF = k.lab("P1PF"); PX_ = k.lab("P1PX")
    k("s_and_b32 s24, s10, 3\ns_lshl_b32 s24, s24, 2\ns_and_b32 s25, s11, 3\ns_add_u32 s24, s24, s25")
    k("s_lshr_b32 s25, s10, 2\ns_mul_i32 s25, s25, 6\ns_lshr_b32 s29, s11, 2\ns_add_u32 s25, s25, s29")
    ids16(k)
    def touch():
        k(f"v_mul_u32_u24 v{T0}, 4682, v{VL}\nv_lshrrev_b32 v{T0}, 16, v{T0}")
        k(f"v_mul_u32_u24 v{T1}, 14, v{T0}\nv_sub_u32 v{T1}, v{VL}, v{T1}")
        k(f"v_lshrrev_b32 v{T2}, 1, v{T0}\nv_mul_u32_u24 v{T2}, 62, v{T2}\nv_add_u32 v{T0}, v{T0}, v{T2}")
        k(f"v_mul_u32_u24 v{T0}, 3456, v{T0}\nv_lshl_add_u32 v{T0}, v{T1}, 7, v{T0}\nv_lshlrev_b32 v{T1}, 7, v{VL}")
        k(f"s_add_u32 s30, s28, 1\ns_mul_i32 s30, s30, {128*3456}\ns_mul_i32 s31, s11, {2*3456}\ns_add_u32 s30, s30, s31\ns_lshr_b32 s31, s10, 2\ns_mul_i32 s31, s31, {13*128}\ns_add_u32 s30, s30, s31")
        k(f"s_and_b32 s31, s10, 3\ns_mul_i32 s31, s31, {512*1152}\ns_mul_i32 s29, s11, {16*1152}\ns_add_u32 s31, s31, s29\ns_mul_i32 s29, s28, {36*128}\ns_add_u32 s31, s31, s29")
        k("s_waitcnt lgkmcnt(0)")
        srd(k, 12, PX, S_ * D_ * 2)
        srd(k, 16, PWQKV, D_ * 1728 * 2)
        if 'notouch' in XM: return
        k("s_mov_b32 exec_hi, 0xf")
        k(f"buffer_load_dword v{DUMMY}, v{T1}, s[12:15], s31 offen")
        k("s_mov_b32 exec_hi, 0xffffff")
        k(f"buffer_load_dword v{DUMMY}, v{T0}, s[16:19], s30 offen")
        k("s_mov_b32 exec_hi, -1")
    k(f"s_cmp_ge_u32 s11, 24\ns_cbranch_scc1 {PF}")
    k(f"s_cmp_ge_u32 s28, 4\ns_cbranch_scc1 {PROD}")
    k("s_lshr_b32 s26, s25, 2\ns_and_b32 s27, s25, 3")
    VTR, VXR, VC, ZD, XF, WF = 10, 12, 16, 18, 20, 36
    ACC = WF + 72
    CSR = ACC + 72; STR = CSR + 36
    assert STR + 16 <= DUMMY
    k(f"v_bfe_u32 v{T0}, v{VL}, 2, 2\nv_lshl_add_u32 v{T0}, v{VG}, 2, v{T0}\nv_mul_u32_u24 v{T0}, 288, v{T0}")
    k(f"v_and_b32 v{T1}, 3, v{VL}\nv_lshl_add_u32 v{VTR}, v{T1}, 3, v{T0}\nv_mul_u32_u24 v{T1}, 72, v{T1}\nv_add3_u32 v{VTR+1}, v{T0}, v{T1}, 32")
    k(f"v_lshrrev_b32 v{T0}, 1, v{VI}\nv_lshrrev_b32 v{T1}, 1, v{VG}\nv_xor_b32 v{T0}, v{T0}, v{T1}\nv_lshlrev_b32 v{T0}, 4, v{T0}\nv_lshl_add_u32 v{T0}, v{VI}, 7, v{T0}")
    k(f"v_and_b32 v{T1}, 1, v{VG}\nv_lshl_add_u32 v{T0}, v{T1}, 3, v{T0}")
    k(f"s_lshl_b32 s30, s28, 12\ns_add_u32 s30, s30, {XO}\nv_add_u32 v{VXR}, s30, v{T0}")
    for q in range(1, 4): k(f"v_xor_b32 v{VXR+q}, {32*q}, v{VXR}")
    for r in range(72): k(f"v_mov_b32 v{ACC+r}, 0")
    k(f"v_mov_b32 v{VC}, 0")
    touch()
    srd(k, 20, PWS, WS_SIZE)
    srd(k, 56, PDBG, 256)
    k(f"s_mul_i32 s50, s25, {9*PS}\ns_lshl_b32 s30, s24, 2\ns_add_u32 s30, s30, s28\ns_lshl_b32 s49, s30, 7\ns_lshl_b32 s30, s30, 10\ns_add_u32 s50, s50, s30")
    k(f"s_add_u32 s49, s49, {WS_XS}\ns_mul_i32 s51, s25, 576\ns_add_u32 s51, s51, {WS_CS}")
    k(f"s_lshl_b32 s48, s27, 4\ns_add_u32 s48, s48, s24\ns_lshl_b32 s48, s48, 2\ns_add_u32 s48, s48, s26\ns_lshl_b32 s48, s48, 7\ns_add_u32 s48, s48, {F1}")
    first = [True]
    coff = [72 * (T >> 1) + 40 * (T & 1) for T in range(8)]
    def body(vor):
        first[0] = True
        def side():
            OK = k.lab("ZOK")
            if not os.environ.get("STG_STAMP"): k("STAMP 13")
            k(f"s_waitcnt vmcnt(0)\nv_cmp_gt_u32 vcc, 64, v{ZD}\ns_mov_b32 s31, 0\ns_nop 3\ns_cbranch_vccz {OK}")
            poll(k, VC, ZD, 1, 56, 31, want=64)
            k(f"{OK}:")
            if not vor:
                k(f"v_lshlrev_b32 v{VC}, 4, v{VG}\nv_mul_u32_u24 v{VC+1}, 144, v{VG}\nv_lshlrev_b32 v{ZD}, 2, v{VI}")
                for tt in range(2):
                    k(f"buffer_load_dword v{STR+2*tt}, v{ZD}, s[20:23], s49 offen offset:{tt*64}{SC}")
                k("s_add_u32 s49, s49, 8192")
                for tt in range(2):
                    k(f"buffer_load_dword v{STR+2*tt+1}, v{ZD}, s[20:23], s49 offen offset:{tt*64}{SC}")
                for T in range(9):
                    k(f"buffer_load_dwordx4 {v(CSR+4*T,4)}, v{VC+(T==8)}, s[20:23], s51 offen offset:{2*coff[T] if T < 8 else 64}{SC}")
            else:
                k(f"v_lshlrev_b32 v{VC}, 2, v{VI}\nv_lshrrev_b32 v{VC+1}, 2, v{VI}\nv_mul_u32_u24 v{VC+1}, 128, v{VC+1}\nv_add_u32 v{VC+1}, v{VC+1}, v{VC}\nv_lshlrev_b32 v{ZD}, 4, v{VG}")
                for hf in range(2):
                    for tt in range(2):
                        k(f"buffer_load_dwordx4 {v(STR+tt*8+hf*4,4)}, v{ZD}, s[20:23], s49 offen offset:{tt*64}{SC}")
                    if hf == 0: k("s_add_u32 s49, s49, 8192")
                for T in range(9):
                    k(f"buffer_load_dword v{CSR+T}, v{VC+(T==8)}, s[20:23], s51 offen offset:{2*coff[T] if T < 8 else 64}{SC}")
        def reads(st, slot, ks, rs):
            out = []
            if ks == 0 and not first[0]:
                d = STG if slot else -(R - 1) * STG
                regs = list(range(VXR, VXR + 4)) + [VTR, VTR + 1]
                out += [f"v_add_u32 v{r}, {d}, v{r}" if d > 0 else f"v_subrev_u32 v{r}, {-d}, v{r}" for r in regs]
            first[0] = False
            for tt in range(2):
                for hf in range(2):
                    out.append(f"ds_read_b64 {v(XF+rs*8+tt*4+hf*2,2)}, v{VXR+2*ks+hf} offset:{tt*2048}")
            for j in range(9):
                for hf in range(2):
                    out.append(f"ds_read_b64_tr_b16 {v(WF+rs*36+j*4+hf*2,2)}, v{VTR+(j==8)} offset:{ks*9216+hf*4608+(coff[j] if j < 8 else 0)}")
            if slot == 3 and ks == 1 and not (os.environ.get('STG_STAMP') and st == 3):
                L = k.lab("ZS")
                out.append(f"s_cmp_lg_u32 s36, 1\ns_cbranch_scc1 {L}\nbuffer_load_dword v{ZD}, v{VC}, s[56:59], 0 offen sc0 sc1\n{L}:")
            return out
        def mf(st, ks, rs):
            g = []
            for j in range(9):
                wf = v(WF + rs * 36 + j * 4, 4)
                for tt in range(2):
                    xf = v(XF + rs * 8 + tt * 4, 4)
                    ac = v(ACC + (j * 2 + tt) * 4, 4)
                    g.append(f"v_mfma_f32_16x16x32_bf16 {ac}, {xf}, {wf}, {ac}" if vor else f"v_mfma_f32_16x16x32_bf16 {ac}, {wf}, {xf}, {ac}")
            return g
        consumer_loop(k, N, R, reads, mf, per=[2] * 8 + [1], final_barrier=False, before_last=side, stamp0=12)
        k("STAMP 1")
        qs = 18 ** -0.5 * math.log2(math.e)
        OUT = XF; VM0 = VTR
        k(f"v_lshlrev_b32 v{VM0}, 4, v{VL}\ns_waitcnt vmcnt(0)")
        if not vor:
            k(f"s_cmp_eq_u32 s26, 0\ns_cselect_b32 s31, {f32(qs)}, 1.0")
            for tt in range(2): k(f"v_mul_f32 v{STR+2*tt+1}, s31, v{STR+2*tt+1}")
        sw = "32" if vor else "16"
        def fin(j):
            po = OUT + (j % 4) * 4
            k(f"v_permlane{sw}_swap_b32 v{po}, v{po+2}\nv_permlane{sw}_swap_b32 v{po+1}, v{po+3}")
            k(f"buffer_store_dwordx4 {v(po,4)}, v{VM0}, s[20:23], s50 offen{WT}\ns_add_u32 s50, s50, {PS}")
        for j in range(9):
            o = OUT + (j % 4) * 4
            for tt in range(2):
                ac = ACC + (j * 2 + tt) * 4
                for h2 in range(2):
                    if not vor:
                        k(f"v_pk_fma_f32 {v(ac+2*h2,2)}, {v(STR+2*tt,2)}, {v(CSR+4*j+2*h2,2)}, {v(ac+2*h2,2)} op_sel_hi:[0,1,1] neg_lo:[1,0,0] neg_hi:[1,0,0]")
                    else:
                        c = CSR + (j & ~1); sel = j & 1
                        k(f"v_pk_fma_f32 {v(ac+2*h2,2)}, {v(STR+tt*8+2*h2,2)}, {v(c,2)}, {v(ac+2*h2,2)} op_sel:[0,{sel},0] op_sel_hi:[1,{sel},1] neg_lo:[1,0,0] neg_hi:[1,0,0]")
            for tt in range(2):
                ac = ACC + (j * 2 + tt) * 4
                for h2 in range(2):
                    if not vor: k(f"v_pk_mul_f32 {v(ac+2*h2,2)}, {v(ac+2*h2,2)}, {v(STR+2*tt,2)} op_sel:[0,1] op_sel_hi:[1,1]")
                    else: k(f"v_pk_mul_f32 {v(ac+2*h2,2)}, {v(ac+2*h2,2)}, {v(STR+tt*8+4+2*h2,2)}")
            for tt in range(2):
                ac = ACC + (j * 2 + tt) * 4
                k(f"v_cvt_pk_bf16_f32 v{o+2*tt}, v{ac}, v{ac+1}\nv_cvt_pk_bf16_f32 v{o+2*tt+1}, v{ac+2}, v{ac+3}")
            if j > 0: fin(j - 1)
        fin(8)
        k(f"v_mov_b32 v{T0}, 0\nv_mov_b32 v{T1}, 1\ns_waitcnt vmcnt(0)")
        last_wave_flag(k, T0, T1, T2, LCNT, 20, 48)
        k(f"s_branch {NXT[0]}")
    LV = k.lab("VOR")
    k(f"s_cmp_eq_u32 s26, 2\ns_cbranch_scc1 {LV}")
    body(False)
    k(f"{LV}:")
    body(True)
    k(f"{PROD}:")
    ra, rb = [int(t) for t in os.environ.get("ROT1", "0,0").split(",")]
    k(f"s_and_b32 s38, s11, 3\ns_mul_i32 s38, s38, {ra}\ns_lshr_b32 s39, s11, 2\ns_mul_i32 s39, s39, {rb}\ns_lshr_b32 s38, s38, 2\ns_lshr_b32 s39, s39, 2\ns_add_u32 s38, s38, s39")
    k("s_sub_u32 s39, s38, 9\ns_cmp_ge_u32 s38, 9\ns_cselect_b32 s38, s39, s38")
    k(f"s_and_b32 s29, s28, 1\ns_cmp_ge_u32 s28, 6\ns_cbranch_scc1 {PX_}")
    VD = 10
    def adv(reg, step):
        return [f"s_add_u32 s{reg}, s{reg}, {step}\ns_sub_u32 s39, s{reg}, {9*step}\ns_add_u32 s38, s38, 1\ns_cmp_eq_u32 s38, 9\ns_cselect_b32 s{reg}, s39, s{reg}"]
    k(f"s_mov_b32 s30, {3456-288}")
    for q in range(9):
        k(f"v_add_u32 v{T0}, {q*64}, v{VL}\nv_mul_u32_u24 v{T1}, 3641, v{T0}\nv_lshrrev_b32 v{T1}, 16, v{T1}")
        k(f"v_lshlrev_b32 v{T0}, 4, v{T0}\nv_mad_u32_u24 v{VD+q}, v{T1}, s30, v{T0}")
    k(f"s_mul_i32 s33, s25, 288\ns_mul_i32 s30, s29, {32*3456}\ns_add_u32 s33, s33, s30\ns_mul_i32 s34, s29, 9216\ns_mul_i32 s30, s38, {64*3456}\ns_add_u32 s33, s33, s30")
    k("s_waitcnt lgkmcnt(0)")
    srd(k, 16, PWQKV, D_ * 1728 * 2)
    srd(k, 20, PWS, WS_SIZE)
    def tail(kk):
        k("v_subrev_u32 v40, 256, v0")
        pf(k, "PF1T", 2, 192, 256, 42, vt=40)
    producer_loop(k, N, R, 9, lambda st, slot: [dma(34, slot * STG + q * 1024, VD + q, 16, 33, ' nt' if st < int(os.environ.get('NT1', 0)) else '') for q in range(9)] + adv(33, 64 * 3456), NXT[1], final_barrier=False, tail=tail, first=int(os.environ.get('FIRST1', 2)))
    k(f"{PX_}:")
    for q in range(2):
        k(f"v_lshrrev_b32 v{T0}, 3, v{VL}\nv_add_u32 v{T0}, {8*q}, v{T0}")
        k(f"v_bfe_u32 v{T1}, v{T0}, 1, 3\nv_and_b32 v{T2}, 7, v{VL}\nv_xor_b32 v{T1}, v{T1}, v{T2}\nv_lshlrev_b32 v{T1}, 4, v{T1}")
        k(f"v_mul_u32_u24 v{T0}, 1152, v{T0}\nv_add_u32 v{VD+q}, v{T0}, v{T1}")
    for q in range(2, 8): k(f"v_add_u32 v{VD+q}, {16*1152}, v{VD+q-2}")
    k("s_lshl_b32 s32, s24, 7\ns_lshl_b32 s30, s29, 6\ns_add_u32 s32, s32, s30\ns_mul_i32 s32, s32, 1152")
    k(f"s_lshl_b32 s35, s29, 13\ns_add_u32 s35, s35, {XO}\ns_lshl_b32 s30, s38, 7\ns_add_u32 s32, s32, s30")
    k("s_waitcnt lgkmcnt(0)")
    srd(k, 12, PX, S_ * D_ * 2)
    srd(k, 20, PWS, WS_SIZE)
    producer_loop(k, N, R, 8, lambda st, slot: [dma(35, slot * STG + q * 1024, VD + q, 12, 32, ' nt' if st < int(os.environ.get('NT1', 0)) else '') for q in range(8)] + adv(32, 128), NXT[1], final_barrier=False, tail=tail, first=int(os.environ.get('FIRST1', 2)))
    k(f"{PF}:\ns_sub_u32 s29, s2, 192")
    XA, SM, CA = 12, 48, 52
    CSW = k.lab("CSW"); NZ = k.lab("NZ"); NZ2 = k.lab("NZ"); DONE = k.lab("DN")
    k(f"v_lshrrev_b32 v{T1}, 3, v0\nv_and_b32 v{T2}, 7, v0\nv_lshlrev_b32 v{T2}, 4, v{T2}\ns_cmp_ge_u32 s29, 32\ns_cselect_b32 s30, 3456, 0\ns_cselect_b32 s31, 0, 1152\ns_add_u32 s30, s30, s31")
    k(f"v_mad_u32_u24 v{T0}, v{T1}, s30, v{T2}")
    k(f"s_lshl_b32 s32, s29, 13\ns_add_u32 s32, s32, {WS_ST}\nv_lshlrev_b32 v{T3}, 4, v0")
    for r in range(4): k(f"v_mov_b32 v{CA+8+r}, 0")
    k(f"v_mov_b32 v{SM}, 0\nv_mov_b32 v{SM+1}, 0\nv_mov_b32 v{SM+2}, 0x3f803f80\ns_mul_i32 s30, s29, {64*1152}")
    k(f"s_sub_u32 s33, s29, 32\ns_lshl_b32 s31, s33, 7\ns_cmp_ge_u32 s33, 27\ns_cselect_b32 s31, 0x7000000, s31")
    k("s_waitcnt lgkmcnt(0)")
    srd(k, 20, PWS, WS_SIZE)
    srd(k, 56, PDBG, 256)
    k(f"s_cmp_ge_u32 s29, 32\ns_cbranch_scc1 {CSW}")
    srd(k, 12, PX, S_ * D_ * 2)
    for q in range(9): k(f"buffer_load_dwordx4 {v(XA+4*q,4)}, v{T0}, s[12:15], s30 offen offset:{q*128}")
    k(f"buffer_store_dwordx4 {v(CA+8,4)}, v{T3}, s[20:23], s32 offen{WT}")
    for q in range(9):
        k(f"s_waitcnt vmcnt({9-q})")
        for r in range(4 * q, 4 * q + 4): k(f"v_dot2c_f32_bf16 v{SM}, v{XA+r}, v{SM+2}\nv_dot2c_f32_bf16 v{SM+1}, v{XA+r}, v{XA+r}")
    k("STAMP 1\ns_nop 2")
    for m in ("quad_perm:[1,0,3,2]", "quad_perm:[2,3,0,1]", "row_half_mirror"):
        for r in range(2): k(f"v_add_f32_dpp v{SM+r}, v{SM+r}, v{SM+r} {m} row_mask:0xf bank_mask:0xf")
    k(f"s_mov_b32 s30, {f32(1.0/576)}\nv_mul_f32 v{SM}, s30, v{SM}\nv_mul_f32 v{SM+1}, s30, v{SM+1}\nv_fma_f32 v{SM+1}, -v{SM}, v{SM}, v{SM+1}")
    def rbf(r): k(f"v_cvt_pk_bf16_f32 v{r}, v{r}, v{r}\nv_and_b32 v{r}, 0xffff0000, v{r}")
    k(f"v_max_f32 v{SM+1}, 0, v{SM+1}")
    rbf(SM); rbf(SM + 1)
    k(f"v_add_f32 v{SM+1}, {f32(1e-5)}, v{SM+1}")
    rbf(SM + 1)
    k(f"v_sqrt_f32 v{SM+1}, v{SM+1}")
    rbf(SM + 1)
    k(f"v_rcp_f32 v{SM+1}, v{SM+1}")
    k(f"s_lshl_b32 s30, s29, 8\ns_add_u32 s30, s30, {WS_XS}\ns_add_u32 s31, s30, 8192\nv_lshlrev_b32 v{T0}, 2, v{T1}\nv_and_b32 v{T3}, 7, v0")
    k(f"v_cmp_eq_u32 vcc, 0, v{T3}\ns_and_saveexec_b64 s[62:63], vcc")
    k(f"buffer_store_dword v{SM}, v{T0}, s[20:23], s30 offen{WT}\nbuffer_store_dword v{SM+1}, v{T0}, s[20:23], s31 offen{WT}\ns_mov_b64 exec, -1\ns_branch {DONE}\n{CSW}:")
    srd(k, 16, PWQKV, D_ * 1728 * 2)
    for q in range(9): k(f"buffer_load_dwordx4 {v(XA+4*q,4)}, v{T0}, s[16:19], s31 offen\ns_add_u32 s31, s31, {64*3456}")
    k(f"buffer_store_dwordx4 {v(CA+8,4)}, v{T3}, s[20:23], s32 offen{WT}")
    for q in range(9):
        k(f"s_waitcnt vmcnt({9-q})")
        for r in range(4):
            p = XA + 4 * q + r
            if q == 0: k(f"v_lshlrev_b32 v{CA+2*r}, 16, v{p}\nv_and_b32 v{CA+2*r+1}, 0xffff0000, v{p}")
            else: k(f"v_lshlrev_b32 v{SM}, 16, v{p}\nv_and_b32 v{SM+1}, 0xffff0000, v{p}\nv_pk_add_f32 {v(CA+2*r,2)}, {v(CA+2*r,2)}, {v(SM,2)}")
    k("STAMP 1")
    for r in range(8): k(f"v_add_f32_dpp v{CA+r}, v{CA+r}, v{CA+r} row_ror:8 row_mask:0xf bank_mask:0xf")
    for sw in ("16", "32"):
        for r in range(8): k(f"v_mov_b32 v{XA+r}, v{CA+r}")
        for r in range(8): k(f"v_permlane{sw}_swap_b32 v{CA+r}, v{XA+r}")
        for r in range(8): k(f"v_add_f32 v{CA+r}, v{CA+r}, v{XA+r}")
    k(f"s_lshl_b32 s30, s28, 8\nv_lshlrev_b32 v{T0}, 5, v{VL}\nv_add_u32 v{T0}, s30, v{T0}\ns_mov_b64 exec, 0xff")
    k(f"ds_write_b128 v{T0}, {v(CA,4)}\nds_write_b128 v{T0}, {v(CA+4,4)} offset:16\ns_mov_b64 exec, -1")
    k("s_waitcnt lgkmcnt(0)\ns_barrier")
    k(f"s_cmp_lg_u32 s28, 0\ns_cbranch_scc1 {DONE}\nv_lshlrev_b32 v{T0}, 2, v{VL}")
    for q in range(8): k(f"ds_read_b32 v{XA+q}, v{T0} offset:{q*256}")
    k(f"s_lshl_b32 s30, s33, 8\ns_add_u32 s30, s30, {WS_CS}\ns_waitcnt lgkmcnt(0)")
    for q in range(1, 8): k(f"v_add_f32 v{XA}, v{XA}, v{XA+q}")
    k(f"buffer_store_dword v{XA}, v{T0}, s[20:23], s30 offen{WT}\n{DONE}:")
    k(f"v_mov_b32 v{T0}, 0\nv_mov_b32 v{T1}, 1\ns_waitcnt vmcnt(0)\nSTAMP 5\ns_barrier\ns_cmp_lg_u32 s28, 0\ns_cbranch_scc1 {NZ2}")
    k(f"s_mov_b64 exec, 1\nbuffer_atomic_add v{T1}, v{T0}, s[56:59], 0 offen sc1\ns_mov_b64 exec, -1\n{NZ2}:\ns_barrier")
    pf(k, "PF1B", 29, 64, 512, 66)
    k(f"s_branch {NXT[1]}")

def p2(k, ENT, NXT):
    LK8 = 24576; LV = 30720; REC = 1168; SEC = 36 * PS
    VH, VQ = 3, 4
    V16, VV, V8A = 5, 6, 7
    QM, Q8 = 8, 12
    KF, K8F, VF, O = 16, 28, 40, 56
    MX, MX2, TA, TB = 72, 73, 74, 75
    AK, AK8, AV = 76, 77, 78
    VV8, VK8 = 79, 2
    S0 = 80
    k(f"{ENT[1]}:\ns_waitcnt vmcnt(0)\ns_cmp_lg_u32 s28, 7\ns_cbranch_scc1 {ENT[0]}")
    srd(k, 56, PDBG, 256)
    k(f"v_mov_b32 v{TA}, 0\ns_mov_b32 s31, 0")
    poll(k, TA, TB, 1, 56, 31, want=64)
    k(f"{ENT[0]}:")
    k("STAMP 2")
    k("s_lshl_b32 s24, s10, 1\ns_and_b32 s25, s11, 1\ns_add_u32 s24, s24, s25\ns_lshr_b32 s25, s11, 1")
    k(f"v_lshrrev_b32 v{VH}, 5, v{VL}\nv_and_b32 v{VQ}, 31, v{VL}")
    k("s_lshr_b32 s26, s28, 2\ns_and_b32 s27, s28, 3")
    k(f"v_lshlrev_b32 v{V16}, 4, v{VL}")
    k(f"v_mul_u32_u24 v{VV}, {PS}, v{VH}\nv_lshl_add_u32 v{VV}, v{VQ}, 4, v{VV}")
    k(f"s_lshr_b32 s47, s24, 2\ns_and_b32 s31, s24, 3\ns_mul_i32 s34, s47, 9\ns_lshl_b32 s32, s31, 1\ns_add_u32 s44, s32, s34\ns_add_u32 s32, s44, s26\ns_mul_i32 s32, s32, {PS}")
    k(f"s_add_u32 s34, s34, 8\ns_mul_i32 s34, s34, {PS}\ns_mul_i32 s44, s44, {PS}\ns_add_u32 s44, s44, {2*SEC}")
    k("s_lshr_b32 s30, s31, 1\ns_lshl_b32 s30, s30, 9\ns_add_u32 s41, s34, s30")
    k(f"s_and_b32 s30, s31, 1\ns_lshl_b32 s30, s30, 3\nv_lshlrev_b32 v{V8A}, 4, v{VQ}\nv_add_u32 v{V8A}, s30, v{V8A}")
    k(f"s_lshl_b32 s45, s31, 6\ns_add_u32 s45, s45, s34\ns_add_u32 s45, s45, {2*SEC}")
    k(f"v_lshrrev_b32 v{TA}, 2, v{VL}\nv_lshlrev_b32 v{TA}, 8, v{TA}\nv_and_b32 v{TB}, 3, v{VL}\nv_lshl_add_u32 v{VV8}, v{TB}, 4, v{TA}")
    k(f"v_lshlrev_b32 v{VK8}, 4, v{VQ}\nv_lshl_add_u32 v{VK8}, v{VH}, 10, v{VK8}")
    k("s_lshl_b32 s33, s25, 2\ns_mul_i32 s30, s27, 3\ns_add_i32 s35, s33, s30\ns_sub_i32 s35, s35, 8")
    k("s_mul_i32 s31, s26, 12\ns_add_u32 s31, s31, s30\ns_lshl_b32 s46, s31, 10")
    k(f"s_lshl_b32 s30, s28, 1\ns_add_i32 s30, s30, s33\ns_sub_i32 s30, s30, 8\ns_max_i32 s30, s30, 0\ns_lshl_b32 s30, s30, 10\ns_add_u32 s33, s33, s27")
    k(f"s_lshl_b32 s39, s33, 10\ns_add_u32 s40, s39, s41\ns_add_u32 s39, s39, s32\ns_add_u32 s41, s41, s30\ns_add_u32 s41, s41, {SEC}\ns_add_u32 s38, s32, {SEC}")
    k(f"s_lshl_b32 s42, s28, 10\ns_add_u32 s42, s42, {LK8}")
    k(f"s_mul_i32 s43, s28, 3\ns_lshl_b32 s36, s25, 3\ns_add_i32 s36, s36, s43\ns_sub_i32 s36, s36, 16\ns_mul_i32 s43, s43, {REC}\ns_add_u32 s43, s43, {LV}")
    NEG = f32(-1e30)
    k(f"v_lshlrev_b32 v{TA}, 2, v{VH}\nv_sub_u32 v{TA}, v{VQ}, v{TA}\nv_mov_b32 v{TB}, {NEG}")
    MRG = 'nomrg' not in XM; EM = 236
    if MRG: k(f"v_mov_b32 v{MX}, 0xffff\nv_mov_b32 v{MX2}, 0xffff0000")
    for b in range(4):
        for r in range(4): k(f"v_cmp_gt_i32 s[{86+2*r}:{87+2*r}], {8*b+r}, v{TA}")
        for r in range(4): k(f"v_cndmask_b32 v{S0+4*b+r}, v{TB}, 0, s[{86+2*r}:{87+2*r}]")
        for r in range(4): k(f"v_cndmask_b32 v{S0+128+4*b+r}, 0, v{TB}, s[{86+2*r}:{87+2*r}]")
        if MRG:
            for h in range(2):
                k(f"v_cndmask_b32 v{EM+2*b+h}, 0, v{MX}, s[{86+4*h}:{87+4*h}]\nv_cndmask_b32 v{AK}, 0, v{MX2}, s[{88+4*h}:{89+4*h}]\nv_or_b32 v{EM+2*b+h}, v{EM+2*b+h}, v{AK}")
    k(f"s_mul_i32 s30, s26, 12\ns_add_u32 s30, s30, s27\ns_lshl_b32 s30, s30, 10\nv_add_u32 v{AK}, s30, v{V16}")
    k(f"s_lshl_b32 s30, s27, 9\ns_add_u32 s30, s30, {LK8}\nv_add_u32 v{AK8}, s30, v{V8A}")
    for q in range(3):
        k(f"v_mov_b32 v{K8F+q*4+2}, 0\nv_mov_b32 v{K8F+q*4+3}, 0")
    k(f"v_mov_b32 v{Q8+2}, 0\nv_mov_b32 v{Q8+3}, 0")
    k(f"s_lshl_b32 s30, s26, 9\nv_lshlrev_b32 v{AV}, 8, v{VH}\nv_lshl_add_u32 v{AV}, v{VQ}, 4, v{AV}\nv_add_u32 v{AV}, s30, v{AV}")
    k(f"s_lshl_b32 s30, s26, 5\ns_add_u32 s30, s30, {1024-256}\nv_lshlrev_b32 v{TA}, 6, v{VH}\nv_lshl_add_u32 v{TA}, v{VQ}, 4, v{TA}\nv_add_u32 v{TA}, s30, v{TA}")
    k(f"v_cmp_lt_u32 vcc, 15, v{VQ}\nv_cmp_lt_u32 s[86:87], 17, v{VQ}\nv_mov_b32 v{MX2}, 1152\nv_cndmask_b32 v{AV}, v{AV}, v{TA}, vcc\nv_cndmask_b32 v{AV}, v{AV}, v{MX2}, s[86:87]")
    k(f"s_mul_i32 s30, s27, {2*REC}\ns_add_u32 s30, s30, {LV}\nv_add_u32 v{AV}, s30, v{AV}")
    NI = k.lab("NI")
    k("s_sub_i32 s30, 8, s33")
    for j in range(8):
        k(f"s_cmp_le_i32 s30, {j}\ns_cbranch_scc1 {NI}")
        for r in range(16): k(f"v_mov_b32 v{S0+j*16+r}, v{TB}")
    k(f"{NI}:")
    for q in range(3):
        k(f"s_add_i32 s30, s35, {q}\ns_max_i32 s30, s30, 0\ns_lshl_b32 s30, s30, 10\ns_add_u32 s{86+q}, s30, s38")
        k(f"s_add_i32 s30, s36, {q}\ns_max_i32 s30, s30, 0\ns_lshl_b32 s30, s30, 9\ns_add_u32 s{89+q}, s30, s44\ns_add_u32 s{92+q}, s30, s45")
    SO = k.lab("SONE")
    k(f"s_cmp_lg_u32 s28, 7\ns_cbranch_scc1 {SO}")
    if 'nogate' not in XM:
        NG = k.lab("NG")
        k(f"s_cmp_ge_u32 s2, 192\ns_cbranch_scc1 {NG}")
        wait_local(k, TA, LCNT)
        k(f"{NG}:")
    k(f"s_lshl_b32 s30, s47, 13\ns_lshl_b32 s31, s25, 9\ns_add_u32 s30, s30, s31\ns_add_u32 s30, s30, {F1-1024}")
    k(f"s_mov_b64 exec, -1\nv_lshlrev_b32 v{TA}, 7, v{VL}\ns_movk_i32 s31, 0x760\ns_cmp_eq_u32 s25, 0\ns_cselect_b32 s31, 0x700, s31\ns_cmp_ge_u32 s25, 2\ns_cselect_b32 exec_lo, 0x766, s31\ns_mov_b32 exec_hi, 0")
    poll(k, TA, MX, 1, 20, 30)
    k(f"s_mov_b64 exec, -1\n{SO}:\ns_barrier")
    k("STAMP 3")
    SK = k.lab("SK8")
    k(f"s_mov_b32 m0, s42\ns_cmp_ge_u32 s28, 6\ns_cbranch_scc1 {SK}")
    k(f"buffer_load_dwordx4 v{VK8}, s[20:23], s41 offen{SC} lds\n{SK}:")
    for q in range(3): k(dma(46, q * 1024, V16, 20, 86 + q, SC))
    k(f"buffer_load_dwordx4 {v(QM,4)}, v{V16}, s[20:23], s39 offen{SC}")
    k(f"buffer_load_dwordx2 {v(Q8,2)}, v{V8A}, s[20:23], s40 offen{SC}")
    for q in range(3):
        k(dma(43, q * REC, VV, 20, 89 + q, SC))
        k(f"s_add_u32 m0, s43, {q*REC+1024}\ns_mov_b64 exec, 0xff\nbuffer_load_dwordx4 v{VV8}, s[20:23], s{92+q} offen{SC} lds\ns_mov_b64 exec, -1")
    SO = k.lab("SONE")
    k(f"s_cmp_lg_u32 s28, 7\ns_cbranch_scc1 {SO}")
    for r in range(4): k(f"v_mov_b32 v{KF+r}, 0x3f803f80")
    k(f"v_mul_u32_u24 v{TA}, {REC}, v{VL}\ns_mov_b64 exec, 0xffffff")
    k(f"ds_write_b128 v{TA}, {v(KF,4)} offset:{LV+1152}")
    k(f"s_mov_b64 exec, -1\n{SO}:")
    srd(k, 48, PWO, D_ * D_ * 2)
    srd(k, 12, PX, S_ * D_ * 2)
    k("s_lshl_b32 s30, s10, 2\ns_and_b32 s31, s11, 3\ns_add_u32 s30, s30, s31\ns_lshl_b32 s30, s30, 2\ns_and_b32 s31, s28, 3\ns_add_u32 s30, s30, s31\ns_mul_i32 s30, s30, 18432")
    k(f"s_mul_i32 s44, s31, 3072\ns_add_u32 s44, s44, {LX}\ns_lshr_b32 s31, s11, 2\ns_mul_i32 s31, s31, 192\ns_add_u32 s43, s30, s31\ns_movk_i32 s30, 960")
    for q in range(3):
        k(f"v_add_u32 v{224+q}, {q*64}, v{VL}\nv_mul_u32_u24 v227, 5462, v{224+q}\nv_lshrrev_b32 v227, 16, v227\nv_lshlrev_b32 v{224+q}, 4, v{224+q}\nv_mad_u32_u24 v{224+q}, v227, s30, v{224+q}")
    k(f"v_lshlrev_b32 v227, 7, v{VL}\ns_mul_i32 s42, s11, {162*128}\ns_mul_i32 s30, s28, {21*128}\ns_add_u32 s42, s42, s30")
    k(f"v_mov_b32 v{MX}, v{TB}\ns_sub_i32 s35, 8, s33")
    k("s_cmp_eq_u32 s26, 0\ns_cselect_b32 s38, -1, 0\ns_cselect_b32 s40, 0, -1\ns_mov_b32 s39, 0\ns_mov_b32 s41, 0")
    k("s_waitcnt vmcnt(6) lgkmcnt(0)")
    k(f"v_cndmask_b32 v{Q8}, 0, v{Q8}, s[38:39]\nv_cndmask_b32 v{Q8+1}, 0, v{Q8+1}, s[40:41]")
    k("s_barrier")
    def kread(j):
        return [f"ds_read_b128 {v(KF+(j%3)*4,4)}, v{AK} offset:{j*1024}", f"ds_read_b64 {v(K8F+(j%3)*4,2)}, v{AK8} offset:{j*512}"]
    def mx(j):
        return [f"v_max3_f32 v{MX}, v{MX}, v{S0+j*16+2*r}, v{S0+j*16+2*r+1}" for r in range(8)]
    if os.environ.get("P2S"): k("STAMP 12")
    for t in kread(0) + kread(1): k(t)
    XS = k.lab("XS")
    k(f"s_cmp_ge_u32 s2, 192\ns_cbranch_scc1 {XS}\ns_cmp_lt_u32 s28, 4\ns_cbranch_scc1 {XS}")
    for q in range(3): k(dma(44, q * 1024, 224 + q, 12, 43))
    k(f"{XS}:")
    n0 = len(k.L)
    k(f"s_mov_b64 exec, 0x1fffff\nbuffer_load_dword v{DUMMY}, v227, s[48:51], s42 offen\ns_mov_b64 exec, -1")
    pf(k, "PF2", 2, 256, 512, 228)
    npf = sum(1 for l in k.L[n0:] if l.startswith("buffer_load"))
    inv = []
    for j in range(9):
        if j + 2 < 9:
            for t in kread(j + 2): k(t)
        sj = v(S0 + j * 16, 16)
        if j < 8:
            lb = k.lab("BK")
            k(f"s_cmp_gt_i32 s35, {j}\ns_cbranch_scc1 {lb}")
        k(f"s_waitcnt lgkmcnt({min(2, 8-j)*2})")
        k(f"v_mfma_f32_32x32x16_bf16 {sj}, {v(KF+(j%3)*4,4)}, {v(QM,4)}, {sj if j in (0, 8) else 0}")
        k(f"v_mfma_f32_32x32x16_bf16 {sj}, {v(K8F+(j%3)*4,4)}, {v(Q8,4)}, {sj}")
        if j < 8: k(f"{lb}:")
        if j >= 2 and not (MRG and j == 2):
            for t in mx(j - 2): k(t)
    for t in mx(7): k(t)
    WA_, WB_ = k.lab("WA"), k.lab("WB")
    k(f"s_cmp_ge_u32 s2, 192\ns_cbranch_scc1 {WA_}\ns_cmp_lt_u32 s28, 4\ns_cbranch_scc1 {WA_}\ns_waitcnt vmcnt({npf+3})\ns_branch {WB_}\n{WA_}:\ns_waitcnt vmcnt({npf})\n{WB_}:\ns_barrier")
    def vread(t): return f"ds_read_b128 {v(VF+(t%4)*4,4)}, v{AV} offset:{t*REC}"
    if os.environ.get("P2S"): k("STAMP 13")
    k(vread(0)); k(vread(1))
    side = []
    if MRG:
        for r in range(16): k(f"v_max_f32 v{S0+r}, v{S0+r}, v{S0+128+r}")
    for t in mx(0 if MRG else 8): k(t)
    k(f"v_mov_b32 v{MX2}, v{MX}\nv_permlane32_swap_b32 v{MX}, v{MX2}\nv_max_f32 v{MX}, v{MX}, v{MX2}")
    def soft(j):
        b = S0 + j * 16
        if MRG and j == 8: return []
        out = [f"v_sub_f32 v{b+r}, v{b+r}, v{MX}" for r in range(16)]
        if 'pksub' in XM: out = [f"v_pk_add_f32 {v(b+2*r,2)}, {v(b+2*r,2)}, {v(MX,2)} op_sel_hi:[1,0] neg_lo:[0,1] neg_hi:[0,1]" for r in range(8)]
        out += [f"v_exp_f32 v{b+r}, v{b+r}" for r in range(16)]
        if 'trunc' in XM: out += [f"v_perm_b32 v{b+r}, v{b+2*r+1}, v{b+2*r}, s86" for r in range(8)]
        else: out += [f"v_cvt_pk_bf16_f32 v{b+r}, v{b+2*r}, v{b+2*r+1}" for r in range(8)]
        if MRG and j == 0:
            out += [f"v_bfi_b32 v{S0+128+r}, v{EM+r}, 0, v{b+r}" for r in range(8)] + [f"v_and_b32 v{b+r}, v{EM+r}, v{b+r}" for r in range(8)]
        return out
    k("s_mov_b32 s86, 0x07060302")
    def pv(j):
        b = S0 + j * 16
        return [f"v_mfma_f32_32x32x16_bf16 {v(O,16)}, {v(VF+((2*j+s_)%4)*4,4)}, {v(b+4*s_,4)}, {v(O,16) if (j or s_) else 0}" for s_ in range(2)]
    if os.environ.get("P2S"): k("STAMP 14")
    for t in soft(0): k(t)
    for j in range(9):
        nxt = soft(j + 1) if j < 8 else []
        if j < 8:
            k(vread(2 * j + 2)); k(vread(2 * j + 3))
        p = pv(j)
        for t in nxt[:4]: k(t)
        k(f"s_waitcnt lgkmcnt({2 if j < 8 else 0})")
        k(p[0])
        for t in nxt[4:20]: k(t)
        if j < len(side) and side[j]: k(side[j])
        k(p[1])
        for t in nxt[20:]: k(t)
    k(f"s_lshl_b32 s34, s24, 1\ns_add_u32 s34, s34, s26\ns_mul_i32 s30, s34, {PS}\ns_lshl_b32 s31, s33, 10\ns_add_u32 s30, s30, s31\ns_add_u32 s30, s30, {WS_OM}")
    k(f"s_lshl_b32 s31, s34, 13\ns_lshl_b32 s34, s33, 7\ns_add_u32 s31, s31, s34\ns_add_u32 s31, s31, {WS_O8}\nv_lshlrev_b32 v{AK8}, 2, v{VQ}")
    if os.environ.get("P2S"): k("STAMP 15")
    if 'prio' in XM: k("s_setprio 0")
    k(f"v_rcp_f32 v{MX}, v{O+10}")
    for r in range(10): k(f"v_mul_f32 v{O+r}, v{O+r}, v{MX}")
    for r in range(5): k(f"v_cvt_pk_bf16_f32 v{KF+r}, v{O+2*r}, v{O+2*r+1}")
    k(f"buffer_store_dwordx4 {v(KF,4)}, v{V16}, s[20:23], s30 offen{WT}")
    k("s_mov_b32 exec_hi, 0")
    k(f"buffer_store_dword v{KF+4}, v{AK8}, s[20:23], s31 offen{WT}")
    k("s_mov_b32 exec_hi, -1")
    k(f"s_lshl_b32 s30, s25, 11\ns_lshl_b32 s31, s24, 7\ns_add_u32 s30, s30, s31\ns_add_u32 s30, s30, {F2}\nv_mov_b32 v{TA}, 0\nv_mov_b32 v{TB}, 1")
    k(f"s_waitcnt vmcnt(0)\ns_barrier\ns_cmp_lg_u32 s28, 6\ns_cbranch_scc1 {NXT}")
    set_flag(k, TA, TB, 20, 30)
    k(f"s_branch {NXT}")
    for j, li, lb in inv:
        k(f"{li}:")
        for r in range(16): k(f"v_mov_b32 v{S0+j*16+r}, v{TB}")
        k(f"s_branch {lb}")

def p3(k, ENT, NXT):
    R = 7; WS_ = 12288; WB = 73728; N = 9
    LAB = WB + R * WS_
    PF = k.lab("P3PF"); PROD = k.lab("P3PROD"); PO = k.lab("P3PO")
    k(f"{ENT}:\nSTAMP 4")
    k(f"s_cmp_ge_u32 s2, 192\ns_cbranch_scc1 {PF}")
    k("s_lshl_b32 s24, s10, 2\ns_and_b32 s25, s11, 3\ns_add_u32 s24, s24, s25\ns_lshr_b32 s25, s11, 2")
    ids16(k)
    V16 = 9
    k(f"v_lshlrev_b32 v{V16}, 4, v{VL}")
    k(f"s_cmp_ge_u32 s28, 4\ns_cbranch_scc1 {PROD}")
    k("s_lshr_b32 s26, s28, 1\ns_and_b32 s27, s28, 1")
    VTR, VAO, VAE = 10, 16, 18
    IDN, XR, ACC, AF, BF = 24, 28, 52, 76, 100
    k(f"v_and_b32 v{T1}, 1, v{VG}")
    k(f"v_bfe_u32 v{T0}, v{VL}, 2, 2\nv_lshl_add_u32 v{T0}, v{VG}, 2, v{T0}\nv_mul_u32_u24 v{T0}, 192, v{T0}")
    k(f"v_and_b32 v{T2}, 3, v{VL}\nv_lshl_add_u32 v{T0}, v{T2}, 3, v{T0}\nv_add_u32 v{T0}, {WB}, v{T0}")
    k("s_mul_i32 s30, s27, 3")
    for dt in range(3):
        k(f"s_add_u32 s31, s30, {dt}\nv_xor_b32 v{T2}, s31, v{T1}\nv_lshl_add_u32 v{VTR+dt}, v{T2}, 5, v{T0}\nv_add_u32 v{VTR+3+dt}, {4*WS_}, v{VTR+dt}")
    k(f"s_lshl_b32 s30, s26, 11\nv_add_u32 v{VAO}, s30, v{V16}\nv_add_u32 v{VAO+1}, 32768, v{VAO}")
    k(f"v_lshlrev_b32 v{T0}, 8, v{VG}\nv_lshl_add_u32 v{T0}, v{VI}, 2, v{T0}\nv_add_u32 v{VAE}, s30, v{T0}\nv_add_u32 v{VAE}, 65536, v{VAE}")
    k(f"v_lshlrev_b32 v{T0}, 3, v{VG}\nv_sub_u32 v{T0}, v{VI}, v{T0}\nv_mov_b32 v{T1}, 0x3f80\nv_mov_b32 v{T2}, 0x3f800000")
    for j2 in range(4):
        k(f"v_cmp_eq_u32 vcc, {2*j2}, v{T0}\nv_cmp_eq_u32 s[30:31], {2*j2+1}, v{T0}\nv_cndmask_b32 v{IDN+j2}, 0, v{T1}, vcc")
        k(f"v_cndmask_b32 v{IDN+j2}, v{IDN+j2}, v{T2}, s[30:31]")
    def reads(n):
        st, ks, rs = n >> 1, n & 1, n % 3
        slot = st % R
        out = []
        for tt in range(2):
            if st < 8: out.append(f"ds_read_b128 {v(AF+rs*8+tt*4,4)}, v{VAO+(st>>2)} offset:{(st&3)*8192+ks*4096+tt*1024}")
            else: out += [f"ds_read_b32 v{AF+rs*8+tt*4+q}, v{VAE} offset:{ks*4096+tt*1024+q*64}" for q in range(4)]
        for dt in range(3):
            for hf in range(2):
                out.append(f"ds_read_b64_tr_b16 {v(BF+rs*12+dt*4+hf*2,2)}, v{VTR+3*(slot//4)+dt} offset:{(slot%4)*WS_+ks*6144+hf*3072}")
        return out
    def mf(n):
        rs = n % 3
        return [f"v_mfma_f32_16x16x32_bf16 {v(ACC+(tt*3+dt)*4,4)}, {v(AF+rs*8+tt*4,4)}, {v(BF+rs*12+dt*4,4)}, {v(ACC+(tt*3+dt)*4,4)}"
                for tt in range(2) for dt in range(3)]
    k(f"s_mul_i32 s30, s26, 6144\ns_mul_i32 s31, s27, 96\ns_add_u32 s30, s30, s31\ns_add_u32 s30, s30, {LX}\nv_mul_u32_u24 v{T0}, 192, v{VI}\nv_and_b32 v{T1}, 16, v{VL}\nv_add3_u32 v{T0}, v{T0}, v{T1}, s30")
    for q in range(6): k(f"ds_read_b128 {v(XR+q*4,4)}, v{T0} offset:{(q//3)*3072+(q%3)*32}")
    k("s_waitcnt lgkmcnt(0)")
    for q in range(6):
        k(f"v_mfma_f32_16x16x32_bf16 {v(ACC+q*4,4)}, {v(XR+q*4,4)}, {v(IDN,4)}, 0")
    k("s_barrier")
    if os.environ.get("P3S"): k("STAMP 12")
    for t in reads(0) + reads(1): k(t)
    for n in range(18):
        if n in (2, 16): k("s_waitcnt lgkmcnt(0)\ns_barrier")
        elif n in (8, 12): k(f"s_waitcnt lgkmcnt({len(reads(n + 1))})\ns_barrier")
        elif n < 16: k(f"s_waitcnt lgkmcnt({len(reads(n + 1))})")
        if os.environ.get("P3S") and n in (8, 12): k(f"STAMP {13 + (n == 12)}")
        for t in interleave(mf(n), reads(n + 2) if n + 2 < 18 else [], 0, 2): k(t)
    k("STAMP 5")
    PK = XR; ST = AF
    for dt in range(3):
        for tt in range(2):
            ac = ACC + (tt * 3 + dt) * 4
            k(f"v_cvt_pk_bf16_f32 v{PK+dt*4+tt*2}, v{ac}, v{ac+1}\nv_cvt_pk_bf16_f32 v{PK+dt*4+tt*2+1}, v{ac+2}, v{ac+3}")
    for dt in range(3):
        for tt in range(2):
            for h2 in range(2):
                p = PK + dt * 4 + tt * 2 + h2
                x0 = ACC + (tt * 3 + dt) * 4 + 2 * h2
                k(f"v_lshlrev_b32 v{x0}, 16, v{p}\nv_and_b32 v{x0+1}, 0xffff0000, v{p}")
                sm, sq_ = ST + tt * 4 + 2 * h2, ST + 8 + tt * 4 + 2 * h2
                if dt == 0: k(f"v_pk_mul_f32 {v(sq_,2)}, {v(x0,2)}, {v(x0,2)}")
                else: k(f"v_pk_fma_f32 {v(sq_,2)}, {v(x0,2)}, {v(x0,2)}, {v(sq_,2)}")
                if dt == 1: k(f"v_pk_add_f32 {v(sm,2)}, {v(x0-4,2)}, {v(x0,2)}")
                if dt == 2: k(f"v_pk_add_f32 {v(sm,2)}, {v(sm,2)}, {v(x0,2)}")
    for sh in (8, 4, 2, 1):
        for r in range(16):
            k(f"v_add_f32_dpp v{ST+r}, v{ST+r}, v{ST+r} row_ror:{sh} row_mask:0xf bank_mask:0xf")
    SG = BF + 12
    for r in range(8): k(f"v_mov_b32 v{SG+2*r}, v{ST+r}\nv_or_b32 v{SG+2*r+1}, 0x80000000, v{ST+8+r}")
    k(f"s_lshl_b32 s31, s24, 1\ns_add_u32 s31, s31, s26")
    k(f"s_lshl_b32 s33, s31, 8\ns_add_u32 s33, s33, {WS_ST}")
    k(f"s_lshl_b32 s30, s25, 1\ns_add_u32 s30, s30, s27\ns_lshl_b32 s30, s30, 14\ns_add_u32 s30, s30, s33")
    k(f"v_cmp_eq_u32 s[38:39], 1, v{VI}\nv_cmp_eq_u32 s[40:41], 2, v{VI}\nv_cmp_eq_u32 s[42:43], 3, v{VI}\nv_cmp_gt_u32 vcc, 4, v{VI}")
    k(f"v_lshrrev_b32 v{T0}, 1, v{VI}\nv_lshlrev_b32 v{T0}, 7, v{T0}\nv_lshl_add_u32 v{T0}, v{VG}, 5, v{T0}\nv_and_b32 v{T1}, 1, v{VI}\nv_lshl_add_u32 v{T0}, v{T1}, 4, v{T0}")
    for q in range(1, 4):
        for r in range(4): k(f"v_cndmask_b32 v{SG+r}, v{SG+r}, v{SG+4*q+r}, s[{36+2*q}:{37+2*q}]")
    k(f"s_and_saveexec_b64 s[38:39], vcc\nbuffer_store_dwordx4 {v(SG,4)}, v{T0}, s[20:23], s30 offen{WT}\ns_mov_b64 exec, s[38:39]")
    VH = VTR
    k(f"v_lshlrev_b32 v{VH}, 4, v{VL}")
    k(f"s_mul_i32 s30, s25, 6\ns_mul_i32 s32, s27, 3\ns_add_u32 s30, s30, s32\ns_mul_i32 s30, s30, {PS}")
    k(f"s_lshl_b32 s32, s31, 10\ns_add_u32 s30, s30, s32\ns_add_u32 s32, s30, {WS_HN}\ns_add_u32 s30, s30, {WS_H}")
    k("s_mov_b32 s35, s30")
    VS = VTR + 1
    P = BF
    k(f"v_lshrrev_b32 v{T0}, 5, v{VL}\nv_mul_u32_u24 v{VS}, {6*16384}, v{T0}\nv_and_b32 v{T0}, 31, v{VL}\nv_lshl_add_u32 v{VS}, v{T0}, 3, v{VS}")
    for p in range(6): k(f"s_add_u32 s{40+p}, s33, {p*16384}")
    POLL = k.lab("POLL"); GO = k.lab("GO")
    k(f"s_mov_b32 s37, 0x40000" + ("" if 'nosw' in XM else "\ns_waitcnt vmcnt(0)") + f"\n{POLL}:")
    for p in range(6):
        k(f"buffer_load_dwordx2 {v(P+2*p,2)}, v{VS}, s[20:23], s{40+p} offen sc0 sc1")
    k("s_waitcnt vmcnt(0)")
    k(f"v_and_b32 v{T1}, v{P+1}, v{P+3}\nv_and_b32 v{T2}, v{P+5}, v{P+7}\nv_and_b32 v{T3}, v{P+9}, v{P+11}\nv_and_b32 v{T1}, v{T1}, v{T2}\nv_and_b32 v{T1}, v{T1}, v{T3}")
    k(f"v_cmp_le_i32 vcc, 0, v{T1}\ns_sub_u32 s37, s37, 1\ns_cmp_eq_u32 s37, 0\ns_cbranch_scc1 {GO}\ns_cbranch_vccz {GO}\ns_sleep 1\ns_branch {POLL}\n{GO}:")
    if os.environ.get("P3S"): k("STAMP 15")
    for dt in range(3):
        k(f"buffer_store_dwordx4 {v(PK+dt*4,4)}, v{VH}, s[20:23], s35 offen{WT}\ns_add_u32 s35, s35, {PS}")
    for p in range(1, 6):
        k(f"v_add_f32 v{P}, v{P}, v{P+2*p}\nv_add_f32 v{P+1}, v{P+1}, v{P+2*p+1}")
    k(f"v_mov_b32 v{P+2}, v{P}\nv_mov_b32 v{P+3}, v{P+1}")
    k(f"v_permlane32_swap_b32 v{P}, v{P+2}\nv_permlane32_swap_b32 v{P+1}, v{P+3}")
    k(f"v_add_f32 v{P}, v{P}, v{P+2}\nv_add_f32 v{P+1}, v{P+1}, v{P+3}")
    k(f"s_mov_b32 s34, {f32(1.0/576)}")
    mn, sq = P, P + 1
    k(f"v_mul_f32 v{mn}, s34, v{mn}\nv_mul_f32 v{sq}, s34, -v{sq}\nv_fma_f32 v{sq}, -v{mn}, v{mn}, v{sq}\nv_max_f32 v{sq}, 0, v{sq}")
    k(f"v_add_f32 v{P+2}, {f32(1e-5)}, v{sq}\nv_rsq_f32 v{P+2}, v{P+2}")
    k(f"v_mul_f32 v{sq}, v{sq}, v{P+2}\nv_mul_f32 v{sq}, v{sq}, v{P+2}\nv_add_f32 v{sq}, {f32(1e-5)}, v{sq}\nv_rsq_f32 v{sq}, v{sq}")
    k(f"v_mul_f32 v{P+2}, v{P+2}, v{sq}\nv_mul_f32 v{P+3}, -v{mn}, v{P+2}")
    k(f"s_lshl_b32 s33, s28, 8\ns_add_u32 s33, s33, {LAB}\nv_lshlrev_b32 v{T0}, 3, v{T0}\nv_add_u32 v{T0}, s33, v{T0}")
    k(f"ds_write_b64 v{T0}, {v(P+2,2)}")
    k(f"v_lshlrev_b32 v{T0}, 5, v{VG}\nv_add_u32 v{T0}, s33, v{T0}\ns_waitcnt lgkmcnt(0)")
    AB = ST
    for q in range(4):
        k(f"ds_read_b128 {v(AB+4*q,4)}, v{T0} offset:{(q>>1)*128+(q&1)*16}")
    k(f"s_lshl_b32 s30, s25, 12\ns_lshl_b32 s31, s24, 7\ns_add_u32 s30, s30, s31\ns_add_u32 s30, s30, {F3}\nv_mov_b32 v{T1}, 0\nv_mov_b32 v{T2}, 1")
    k("s_waitcnt lgkmcnt(0)")
    for dt in range(3):
        for tt in range(2):
            x0 = ACC + (tt * 3 + dt) * 4
            for r in range(4): k(f"v_fma_f32 v{x0+r}, v{x0+r}, v{AB+tt*8+2*r}, v{AB+tt*8+2*r+1}")
            k(f"v_cvt_pk_bf16_f32 v{PK+12+dt*4+tt*2}, v{x0}, v{x0+1}\nv_cvt_pk_bf16_f32 v{PK+12+dt*4+tt*2+1}, v{x0+2}, v{x0+3}")
        k(f"buffer_store_dwordx4 {v(PK+12+dt*4,4)}, v{VH}, s[20:23], s32 offen{WT}\ns_add_u32 s32, s32, {PS}")
    k("s_waitcnt vmcnt(0)")
    last_wave_flag(k, T1, T2, T3, LCNT + 4, 20, 30)
    k(f"s_branch {NXT}")
    k(f"{PROD}:\ns_and_b32 s29, s28, 1\ns_cmp_ge_u32 s28, 6\ns_cbranch_scc1 {PO}")
    VWD, VWE = 10, 16
    for q in range(6):
        k(f"v_add_u32 v{T0}, {q*64}, v{VL}")
        k(f"v_mul_u32_u24 v{T1}, 5462, v{T0}\nv_lshrrev_b32 v{T1}, 16, v{T1}")
        k(f"v_mul_u32_u24 v{T2}, 12, v{T1}\nv_sub_u32 v{T0}, v{T0}, v{T2}")
        k(f"v_bfe_u32 v{T2}, v{T1}, 2, 1\nv_lshlrev_b32 v{T2}, 1, v{T2}\nv_xor_b32 v{T0}, v{T0}, v{T2}\nv_lshlrev_b32 v{VWE+q}, 4, v{T0}")
        k(f"v_and_b32 v{T2}, 7, v{T1}")
        k(f"v_bfe_u32 v{T3}, v{T1}, 3, 1\nv_mad_u32_u24 v{T2}, v{T3}, 20, v{T2}")
        k(f"v_bfe_u32 v{T3}, v{T1}, 4, 1\nv_lshl_add_u32 v{T2}, v{T3}, 3, v{T2}")
        k(f"v_mul_u32_u24 v{T2}, 1152, v{T2}\nv_add_u32 v{VWD+q}, v{T2}, v{VWE+q}")
    k(f"s_mul_i32 s33, s25, 192\ns_mul_i32 s30, s29, {8*36*1152}\ns_add_u32 s39, s33, s30\ns_mul_i32 s30, s29, {36*1152}\ns_add_u32 s33, s33, s30")
    k(f"s_mul_i32 s35, s29, 6144\ns_add_u32 s35, s35, {WB}")
    srd(k, 16, PWO, D_ * D_ * 2)
    def issue_w(st):
        for q in range(6): k(dma(35, (st % R) * WS_ + q * 1024, (VWD if st < 8 else VWE) + q, 16, 33 if st < 8 else 39))
        k(f"s_add_u32 s33, s33, {72*1152}")
    for st in range(7): issue_w(st)
    for q in range(6):
        k(f"v_add_u32 v{T0}, {q*64}, v{VL}\nv_mul_u32_u24 v{T1}, 5462, v{T0}\nv_lshrrev_b32 v{T1}, 16, v{T1}\n"
          f"v_bfe_u32 v{T2}, v{T1}, 2, 2\nv_lshlrev_b32 v{T2}, 1, v{T2}\nv_bfe_u32 v{T3}, v{T1}, 4, 1\nv_add_u32 v{T2}, v{T2}, v{T3}\nv_mul_u32_u24 v{T2}, 36, v{T2}\n"
          f"v_and_b32 v{T3}, 3, v{T1}\nv_add3_u32 v{T2}, v{T2}, v{T3}, 16\nv_mul_u32_u24 v{T2}, 1152, v{T2}\nv_add_u32 v{VWE+q}, v{T2}, v{VWE+q}")
    k("s_waitcnt vmcnt(0)\ns_barrier\ns_barrier")
    for st in range(7, 9): issue_w(st)
    k(f"s_barrier\ns_waitcnt vmcnt(0)\ns_barrier\ns_barrier\ns_branch {NXT}")
    k(f"{PO}:")
    VO = 10
    k(f"v_lshrrev_b32 v{T0}, 1, v{VG}\nv_mul_u32_u24 v{T0}, {PS}, v{T0}\nv_and_b32 v{T1}, 1, v{VG}\nv_lshl_add_u32 v{T0}, v{T1}, 9, v{T0}\nv_lshl_add_u32 v{T0}, v{VI}, 4, v{T0}")
    k(f"v_lshrrev_b32 v{T1}, 2, v{VL}\nv_lshlrev_b32 v{T1}, 13, v{T1}\nv_and_b32 v{T2}, 3, v{VL}\nv_lshl_add_u32 v{T1}, v{T2}, 4, v{T1}")
    for q in range(4): k(f"v_add_u32 v{VO+q}, {(q>>1)*1024+(q&1)*256}, v{T0}\nv_add_u32 v{VO+4+q}, {q*64}, v{T1}")
    k(f"s_lshl_b32 s32, s24, 11\ns_mul_i32 s30, s29, {2*PS}\ns_add_u32 s32, s32, s30\ns_add_u32 s32, s32, {WS_OM}\ns_lshl_b32 s30, s29, 17")
    k(f"s_lshl_b32 s38, s24, 8\ns_add_u32 s38, s38, s30\ns_add_u32 s38, s38, {WS_O8}\ns_lshl_b32 s34, s29, 12")
    k(f"s_lshr_b32 s30, s24, 1\ns_lshl_b32 s30, s30, 11\ns_add_u32 s30, s30, {F2}\nv_lshlrev_b32 v{T0}, 7, v{VL}")
    W7, WD = k.lab("W7"), k.lab("WD")
    k(f"s_cmp_eq_u32 s28, 7\ns_cbranch_scc1 {W7}\ns_waitcnt vmcnt(0)\ns_mov_b64 exec, 0xffff")
    poll(k, T0, T1, 1, 20, 30)
    k("s_mov_b64 exec, -1")
    lds_signal(k, T0, LCNT + 20)
    k(f"s_branch {WD}\n{W7}:")
    wait_local(k, T0, LCNT + 20, n=1)
    k(f"{WD}:\nSTAMP 5")
    def issue_o(st):
        for q in range(4): k(dma(34, st * 8192 + q * 1024, VO + q + (4 if st == 8 else 0), 20, 32 if st < 8 else 38, SC))
        k(f"s_add_u32 s32, s32, {4*PS}")
    for st in range(5): issue_o(st)
    k("s_waitcnt vmcnt(12)\ns_barrier")
    for st in range(5, 9): issue_o(st)
    k(f"s_waitcnt vmcnt(16)\ns_barrier\ns_waitcnt vmcnt(8)\ns_barrier\ns_waitcnt vmcnt(0)\ns_barrier\ns_barrier\ns_branch {NXT}")
    k(f"{PF}:\ns_sub_u32 s29, s2, 192")
    if 'early3' in XM:
        NE = k.lab("NE")
        k(f"s_cmp_lt_u32 s11, 27\ns_cbranch_scc1 {NE}")
        w1slow(k)
        k(f"{NE}:")
    pf(k, "PF3", 29, 64, 512, 10)
    r1 = int(os.environ.get("L2W1", 0))
    if r1:
        k("s_sub_u32 s29, s11, 24")
        w1_rows(k, 29, r1 // 8, 0, 0)
    k(f"s_branch {NXT}")

def p4(k, ENT, NXT):
    STG = 28672; R = int(os.environ.get('R4', 5)); N = 32; NS = (R + 1) // 2
    PROD = k.lab("P4PROD"); PF = k.lab("P4PF"); PA = k.lab("P4PA")
    k(f"{ENT}:\nSTAMP 6")
    k(f"s_cmp_ge_u32 s11, 27\ns_cbranch_scc1 {PF}")
    k("s_mul_i32 s24, s11, 10923\ns_lshr_b32 s24, s24, 16\ns_mul_i32 s25, s24, 6\ns_sub_u32 s25, s11, s25")
    k("s_and_b32 s29, s10, 1\ns_mul_i32 s30, s29, 5\ns_add_u32 s24, s24, s30")
    k("s_mul_i32 s30, s29, 3\ns_add_u32 s30, s30, s25")
    k("s_cmp_ge_u32 s11, 24\ns_cselect_b32 s24, 4, s24\ns_cselect_b32 s25, s30, s25\ns_mov_b32 s47, s24")
    k("s_lshr_b32 s30, s10, 1\ns_mul_i32 s30, s30, 9\ns_add_u32 s24, s24, s30")
    ids16(k)
    k(f"s_cmp_ge_u32 s28, 4\ns_cbranch_scc1 {PROD}")
    k("s_lshr_b32 s26, s28, 1\ns_and_b32 s27, s28, 1")
    VTR, VHR, B1, ACC, WF, HF = 10, 22, 26, 36, 84, 116
    srd(k, 16, PB1, F_ * 2)
    k(f"v_lshlrev_b32 v{T0}, 3, v{VG}\ns_lshl_b32 s30, s24, 8\ns_lshl_b32 s31, s26, 7\ns_add_u32 s30, s30, s31")
    for f4 in range(4):
        k(f"buffer_load_dwordx2 {v(B1+2*f4,2)}, v{T0}, s[16:19], s30 offen offset:{f4*32}")
    k(f"v_bfe_u32 v{T0}, v{VL}, 2, 2\nv_lshl_add_u32 v{T0}, v{VG}, 2, v{T0}")
    k(f"v_and_b32 v{T1}, 7, v{T0}\nv_lshlrev_b32 v{T0}, 8, v{T0}\nv_and_b32 v{T2}, 3, v{VL}\nv_lshl_add_u32 v{T0}, v{T2}, 3, v{T0}")
    k("s_lshl_b32 s30, s26, 2")
    for f4 in range(4):
        k(f"s_add_u32 s31, s30, {f4}\nv_xor_b32 v{T2}, s31, v{T1}\nv_lshl_add_u32 v{VTR+f4}, v{T2}, 5, v{T0}")
        for q in range(1, NS): k(f"v_add_u32 v{VTR+4*q+f4}, {2*q*STG}, v{VTR+f4}")
    k(f"s_mul_i32 s30, s27, 3072\ns_add_u32 s30, s30, 16384\nv_lshlrev_b32 v{VHR}, 4, v{VL}\nv_add_u32 v{VHR}, s30, v{VHR}")
    for q in range(1, NS): k(f"v_add_u32 v{VHR+q}, {2*q*STG}, v{VHR}")
    k(f"s_mul_i32 s31, s25, 6\ns_mul_i32 s38, s27, 3\ns_add_u32 s31, s31, s38\ns_mul_i32 s31, s31, {144*1024}")
    k(f"s_lshl_b32 s38, s24, 12\ns_add_u32 s31, s31, s38\ns_lshl_b32 s38, s26, 11\ns_add_u32 s31, s31, s38\ns_add_u32 s40, s31, {WS_U}")
    k(f"s_lshr_b32 s30, s10, 1\ns_mul_i32 s30, s30, 6\ns_add_u32 s30, s30, s25\ns_mul_i32 s30, s30, 9\ns_add_u32 s30, s30, s47\ns_lshl_b32 s30, s30, 7\ns_add_u32 s41, s30, {F4}")
    k("s_waitcnt vmcnt(0)")
    for f4 in range(4):
        for dt in range(3):
            for h2 in range(2):
                k(f"v_lshlrev_b32 v{ACC+(f4*3+dt)*4+2*h2}, 16, v{B1+f4*2+h2}\nv_and_b32 v{ACC+(f4*3+dt)*4+2*h2+1}, 0xffff0000, v{B1+f4*2+h2}")
    def reads(st, slot, ks, rs):
        hi = slot >> 1; off = (slot & 1) * STG
        out = []
        for f4 in range(4):
            for hf in range(2):
                out.append(f"ds_read_b64_tr_b16 {v(WF+rs*16+f4*4+hf*2,2)}, v{VTR+4*hi+f4} offset:{off+ks*8192+hf*4096}")
            if f4 < 3:
                out.append(f"ds_read_b128 {v(HF+rs*12+f4*4,4)}, v{VHR+hi} offset:{off+ks*6144+f4*1024}")
        return out
    def mf(st, ks, rs):
        return [f"v_mfma_f32_16x16x32_bf16 {v(ACC+(f4*3+dt)*4,4)}, {v(WF+rs*16+f4*4,4)}, {v(HF+rs*12+dt*4,4)}, {v(ACC+(f4*3+dt)*4,4)}"
                for f4 in range(4) for dt in range(3)]
    consumer_loop(k, N, R, reads, mf, per=1, stamp0=None if (os.environ.get('P3S') or os.environ.get('P2S')) else 14)
    k("STAMP 7")
    c1 = -2.0 * math.sqrt(2.0 / math.pi) * math.log2(math.e)
    c2 = c1 * 0.044715
    CC = VTR
    k(f"v_mov_b32 v{CC}, {f32(c2)}\nv_mov_b32 v{CC+1}, {f32(c1)}")
    k(f"v_lshlrev_b32 v{T0}, 4, v{VL}")
    TT = WF + 16; PKD = HF
    for dt in range(3):
        for pr in range(2):
            xb = [ACC + ((2 * pr + h) * 3 + dt) * 4 for h in range(2)]
            xs = [xb[h] + r for h in range(2) for r in range(4)]
            for h in range(2):
                for h2 in range(2): k(f"v_pk_mul_f32 {v(TT+4*h+2*h2,2)}, {v(xb[h]+2*h2,2)}, {v(xb[h]+2*h2,2)}")
            for n in range(4): k(f"v_pk_fma_f32 {v(TT+2*n,2)}, {v(TT+2*n,2)}, {v(CC,2)}, {v(CC,2)} op_sel:[0,0,1] op_sel_hi:[1,0,1]")
            for h in range(2):
                for h2 in range(2): k(f"v_pk_mul_f32 {v(TT+4*h+2*h2,2)}, {v(TT+4*h+2*h2,2)}, {v(xb[h]+2*h2,2)}")
            for n in range(8): k(f"v_exp_f32 v{TT+n}, v{TT+n}")
            for n in range(4): k(f"v_pk_add_f32 {v(TT+2*n,2)}, {v(TT+2*n,2)}, 1.0 op_sel_hi:[1,0]")
            for n in range(8): k(f"v_rcp_f32 v{TT+n}, v{TT+n}")
            for h in range(2):
                for h2 in range(2): k(f"v_pk_mul_f32 {v(xb[h]+2*h2,2)}, {v(xb[h]+2*h2,2)}, {v(TT+4*h+2*h2,2)}")
            o = PKD + (dt * 2 + pr) * 4
            for n in range(4): k(f"v_cvt_pk_bf16_f32 v{o+n}, v{xs[2*n]}, v{xs[2*n+1]}")
            k(f"buffer_store_dwordx4 {v(o,4)}, v{T0}, s[20:23], s40 offen offset:{pr*1024}{WT}")
        k(f"s_add_u32 s40, s40, {144*1024}")
    k(f"v_mov_b32 v{T1}, 0\nv_mov_b32 v{T2}, 1\ns_waitcnt vmcnt(0)")
    last_wave_flag(k, T1, T2, T3, LCNT + 8, 20, 41)
    k(f"s_branch {NXT}")
    k(f"{PROD}:\ns_and_b32 s26, s28, 1\ns_cmp_ge_u32 s28, 6\ns_cbranch_scc1 {PA}")
    VD = 10
    for q in range(2):
        k(f"v_add_u32 v{T0}, {4*q}, v{VG}")
        k(f"v_lshlrev_b32 v{T1}, 1, v{T0}\nv_xor_b32 v{T1}, v{T1}, v{VI}\nv_lshlrev_b32 v{T1}, 4, v{T1}")
        k(f"v_mul_u32_u24 v{T0}, 9216, v{T0}\nv_add_u32 v{VD+q}, v{T0}, v{T1}")
    for q in range(2, 8): k(f"v_add_u32 v{VD+q}, {8*9216}, v{VD+q-2}")
    k(f"s_lshl_b32 s32, s24, 8\ns_mul_i32 s30, s26, {32*9216}\ns_add_u32 s32, s32, s30\ns_lshl_b32 s34, s26, 13")
    srd(k, 12, PW1, S_ * F_ * 2)
    if 'g4' in XM:
        NG = k.lab("NG")
        k(f"s_cmp_ge_u32 s2, 192\ns_cbranch_scc1 {NG}")
        wait_local(k, 20, LCNT + 4, n=4)
        k(f"{NG}:")
    producer_loop(k, N, R, 8, lambda st, slot: [dma(34, slot * STG + q * 1024, VD + q, 12, 32) for q in range(8)] + [f"s_add_u32 s32, s32, {64*9216}"], NXT, first=int(os.environ.get("FIRST4", 2)))
    k(f"{PA}:")
    k(f"v_lshlrev_b32 v{VD}, 4, v{VL}")
    for q in range(1, 6): k(f"v_add_u32 v{VD+q}, {PS}, v{VD+q-1}")
    k(f"s_mul_i32 s33, s25, {6*PS}\ns_lshl_b32 s30, s26, 10\ns_add_u32 s33, s33, s30\ns_add_u32 s33, s33, {WS_HN}")
    k("s_mul_i32 s35, s26, 6144\ns_add_u32 s35, s35, 16384")
    k(f"s_lshl_b32 s30, s25, 12\ns_add_u32 s30, s30, {F3}\nv_lshlrev_b32 v{T0}, 7, v{VL}")
    W7, WD = k.lab("W7"), k.lab("WD")
    k(f"s_cmp_eq_u32 s28, 7\ns_cbranch_scc1 {W7}")
    if 'nogate' not in XM:
        NG, NG2 = k.lab("NG"), k.lab("NG")
        k(f"s_cmp_ge_u32 s2, 192\ns_cbranch_scc1 {NG}")
        wait_local(k, 20, LCNT + 4)
        k(f"s_branch {NG2}\n{NG}:\ns_mov_b64 exec, 1")
        poll(k, T0, 20, 1, 20, 30, sleep=8)
        k(f"s_mov_b64 exec, -1\n{NG2}:")
    k("s_mov_b32 exec_hi, 0")
    poll(k, T0, 20, 1, 20, 30)
    k("s_mov_b32 exec_hi, -1")
    lds_signal(k, 20, LCNT + 24)
    k(f"s_branch {WD}\n{W7}:")
    wait_local(k, 20, LCNT + 24, n=1)
    k(f"{WD}:\nSTAMP 7")
    producer_loop(k, N, R, 6, lambda st, slot: [dma(35, slot * STG + q * 1024, VD + q, 20, 33, SC) for q in range(6)] + ["s_add_u32 s33, s33, 2048"], NXT)
    k(f"{PF}:\ns_sub_u32 s29, s2, 216")
    pf(k, "PF4", 29, 40, 512, 10)
    if 'early4' in XM: w1slow(k)
    if 'nopoison' not in XM:
        srd(k, 56, PDBG, 256)
        k(f"s_mul_i32 s30, s29, 196608\ns_add_u32 s30, s30, {WS_P}\nv_lshlrev_b32 v10, 4, v0\nv_mov_b32 v12, -1\nv_mov_b32 v13, -1\nv_mov_b32 v14, -1\nv_mov_b32 v15, -1")
        for i in range(24): k(f"buffer_store_dwordx4 v[12:15], v10, s[20:23], s30 offen{WT}\ns_add_u32 s30, s30, 8192")
        NZ = k.lab("NZ")
        k(f"v_mov_b32 v16, 4\nv_mov_b32 v17, 1\ns_waitcnt vmcnt(0)\ns_barrier\ns_cmp_lg_u32 s28, 0\ns_cbranch_scc1 {NZ}")
        k(f"s_mov_b64 exec, 1\nbuffer_atomic_add v17, v16, s[56:59], 0 offen sc1\ns_mov_b64 exec, -1\n{NZ}:")
    if 'noslow' not in XM:
        def gated(flag_off, lines_code):
            NP = k.lab("NP")
            k(f"s_cmp_lg_u32 s28, 0\ns_cbranch_scc1 {NP}\ns_mov_b32 s30, {flag_off}\nv_mov_b32 v12, 0\ns_mov_b64 exec, 1")
            poll(k, 12, 13, 1, 20, 30, sleep=8)
            k(f"s_mov_b64 exec, -1\n{NP}:\ns_barrier")
            lines_code()
        def w2slow():
            srd(k, 52, PW2, S_ * F_ * 2)
            k(f"s_lshr_b32 s60, s10, 1\ns_mul_i32 s60, s60, {1152*4096}\ns_and_b32 s61, s10, 1\ns_lshl_b32 s61, s61, 11\ns_add_u32 s60, s60, s61\ns_add_u32 s60, s60, 384")
            k(f"s_sub_u32 s62, s11, 27\nv_lshrrev_b32 v10, 1, v0\nv_mul_u32_u24 v10, 5, v10\nv_add_u32 v10, s62, v10\nv_lshlrev_b32 v10, 12, v10\nv_and_b32 v11, 1, v0\nv_lshl_add_u32 v10, v11, 10, v10")
            k(f"v_cmp_gt_u32 vcc, {2*231}, v0\nv_mov_b32 v11, 0x7ff00000\nv_cndmask_b32 v10, v11, v10, vcc")
            k(f"buffer_load_dword v{DUMMY}, v10, s[52:55], s60 offen")
        gated(F3, lambda: w1slow(k))
        if 'now2' not in XM: gated(F4 + 128 * 2, w2slow)
    if os.environ.get("JIT4"):
        s0, sw = [int(t) for t in os.environ["JIT4"].split(",")]
        k(f"s_mov_b32 s30, {F3}\nv_lshlrev_b32 v12, 7, v0\nv_cmp_gt_u32 vcc, 192, v0\ns_and_saveexec_b64 s[62:63], vcc")
        NP = k.lab("NP")
        k(f"s_cbranch_execz {NP}")
        poll(k, 12, 13, 1, 20, 30)
        k(f"{NP}:\ns_mov_b64 exec, -1\ns_barrier")
        w1_addr(k, 10)
        k("s_sub_u32 s29, s11, 27")
        k(f"v_lshrrev_b32 v12, 4, v0\nv_mul_u32_u24 v12, {PS}, v12\nv_and_b32 v13, 15, v0\nv_lshl_add_u32 v12, v13, 7, v12")
        k(f"v_add_u32 v13, {32*PS}, v12\nv_mov_b32 v14, 0x7ff00000\nv_cmp_gt_u32 vcc, 64, v0\nv_cndmask_b32 v13, v14, v13, vcc")
        k(f"s_lshl_b32 s61, s29, 11\ns_add_u32 s61, s61, {WS_HN + s0*2048}\ns_mul_i32 s62, s29, {64*9216}\ns_add_u32 s60, s60, s62\ns_add_u32 s60, s60, {s0*64*9216}")
        for st in range(s0, 32, 5):
            k(f"buffer_load_dword v{DUMMY}, v12, s[20:23], s61 offen\nbuffer_load_dword v{DUMMY}, v13, s[20:23], s61 offen\ns_add_u32 s61, s61, {5*2048}")
            if st + 4 >= sw:
                k(f"buffer_load_dword v{DUMMY}, v10, s[52:55], s60 offen\ns_add_u32 s62, s60, {32*9216}\nbuffer_load_dword v{DUMMY}, v10, s[52:55], s62 offen")
            k(f"s_add_u32 s60, s60, {5*64*9216}")
    k(f"s_branch {NXT}")

def p5(k, ENT):
    STG = 34816; R = 4; N = 18
    PROD = k.lab("P5PROD"); PA = k.lab("P5PA"); FIN = k.lab("FIN")
    k(f"{ENT}:\nSTAMP 8")
    k("s_lshr_b32 s26, s10, 1\ns_and_b32 s25, s11, 3\ns_lshr_b32 s24, s11, 2")
    if 'nomap5' not in XM:
        k("s_sub_u32 s30, s10, 5\ns_cmp_lt_u32 s30, 2\ns_cselect_b32 s30, 7, 6\ns_add_u32 s24, s24, s30\ns_and_b32 s24, s24, 7")
    k("s_and_b32 s29, s10, 1\ns_lshl_b32 s29, s29, 3\ns_add_u32 s24, s24, s29\ns_and_b32 s29, s26, 1")
    ids16(k)
    k(f"s_cmp_ge_u32 s28, 4\ns_cbranch_scc1 {PROD}")
    VTR = 10; VUR = VTR + 2 * R; B2 = VUR + R
    IDN, HR, UF = 24, 28, 48
    WF = UF + 72; ACC = WF + 16
    srd(k, 16, PB2, S_ * 2)
    srd(k, 40, POUT, S_ * D_ * 2)
    k(f"s_lshl_b32 s30, s24, 8\ns_lshl_b32 s31, s28, 6\ns_add_u32 s30, s30, s31\ns_lshl_b32 s31, s29, 5\ns_add_u32 s30, s30, s31\nv_lshlrev_b32 v{T0}, 1, v{VI}")
    k(f"buffer_load_ushort v{B2}, v{T0}, s[16:19], s30 offen")
    k(f"v_lshlrev_b32 v{T3}, 4, v{VL}")
    k(f"s_mul_i32 s49, s25, {9*PS}\ns_lshl_b32 s32, s24, 12\ns_add_u32 s49, s49, s32\ns_lshl_b32 s32, s28, 10\ns_add_u32 s49, s49, s32\ns_add_u32 s49, s49, {WS_H}")
    k(f"s_lshr_b32 s32, s26, 1\ns_mul_i32 s32, s32, {5*PS}\ns_add_u32 s49, s49, s32")
    k(f"v_bfe_u32 v{T0}, v{VL}, 2, 2\nv_lshl_add_u32 v{T0}, v{VG}, 2, v{T0}")
    k(f"v_and_b32 v{T1}, 7, v{T0}\nv_lshlrev_b32 v{T0}, 8, v{T0}\nv_and_b32 v{T2}, 3, v{VL}\nv_lshl_add_u32 v{T0}, v{T2}, 3, v{T0}")
    k("s_lshl_b32 s30, s28, 1\ns_add_u32 s30, s30, s29")
    for l in range(2):
        k(f"s_xor_b32 s31, s30, {l}\nv_xor_b32 v{T2}, s31, v{T1}\nv_lshl_add_u32 v{VTR+l}, v{T2}, 5, v{T0}")
        for sl in range(1, R): k(f"v_add_u32 v{VTR+2*sl+l}, {sl*STG}, v{VTR+l}")
    k(f"v_lshlrev_b32 v{VUR}, 4, v{VL}\nv_add_u32 v{VUR}, 16384, v{VUR}")
    for sl in range(1, R): k(f"v_add_u32 v{VUR+sl}, {sl*STG}, v{VUR}")
    k(f"v_lshlrev_b32 v{T0}, 2, v{VG}\nv_sub_u32 v{T0}, v{VI}, v{T0}\nv_mov_b32 v{T1}, 0x3f80\nv_mov_b32 v{T2}, 0x3f800000")
    k("s_cmp_eq_u32 s29, 0\ns_cselect_b64 s[38:39], -1, 0")
    for j2 in range(2):
        k(f"v_cmp_eq_u32 vcc, {2*j2}, v{T0}\nv_cndmask_b32 v{UF}, 0, v{T1}, vcc")
        k(f"v_cmp_eq_u32 vcc, {2*j2+1}, v{T0}\nv_cndmask_b32 v{UF}, v{UF}, v{T2}, vcc")
        k(f"v_cndmask_b32 v{IDN+j2}, 0, v{UF}, s[38:39]\nv_cndmask_b32 v{IDN+2+j2}, v{UF}, 0, s[38:39]")
    for r in range(72): k(f"v_mov_b32 v{ACC+r}, 0")
    k(f"s_lshl_b32 s32, s24, 2\ns_add_u32 s32, s32, s25")
    k(f"s_mul_i32 s33, s32, {48*2560}\ns_mul_i32 s30, s28, 2560\ns_add_u32 s33, s33, s30\ns_add_u32 s33, s33, {PB}")
    for x in (1, 2, 3):
        k(f"s_xor_b32 s30, s26, {x}\ns_sub_u32 s31, s26, s30\ns_sub_u32 s31, s31, 1\ns_and_b32 s31, s31, 3")
        k(f"s_mul_i32 s30, s30, 3\ns_add_u32 s30, s30, s31\ns_mul_i32 s30, s30, {4*2560}\ns_add_u32 s{44+x}, s30, s33")
    k(f"s_mul_i32 s30, s26, {12*2560}\ns_add_u32 s33, s33, s30")
    k(f"s_lshl_b32 s35, s32, 11\ns_lshl_b32 s30, s28, 9\ns_add_u32 s35, s35, s30\ns_add_u32 s35, s35, {F5}\ns_lshl_b32 s30, s26, 7\ns_add_u32 s34, s30, s35")
    k(f"s_lshl_b32 s48, s24, 7\ns_lshl_b32 s31, s28, 5\ns_add_u32 s48, s48, s31\ns_lshl_b32 s31, s29, 4\ns_add_u32 s48, s48, s31\ns_mul_i32 s48, s48, 1152\ns_mul_i32 s31, s25, 288\ns_add_u32 s48, s48, s31")
    POIS = 'nopoison' not in XM
    PZ = ACC + 73
    srd(k, 56, PDBG, 256)
    k(f"v_mov_b32 v{PZ-1}, 4")
    firstr = [True]
    def reads(st, slot, ks, rs):
        out = []
        for l in range(2):
            for hf in range(2):
                out.append(f"ds_read_b64_tr_b16 {v(WF+rs*8+l*4+hf*2,2)}, v{VTR+2*slot+l} offset:{ks*8192+hf*4096}")
        for d in range(9):
            out.append(f"ds_read_b128 {v(UF+rs*36+d*4,4)}, v{VUR+slot} offset:{ks*9216+d*1024}")
        if firstr[0]:
            firstr[0] = False
            if POIS: out.append(f"buffer_load_dword v{PZ}, v{PZ-1}, s[56:59], 0 offen sc0 sc1")
            for d in range(5): out.append(f"buffer_load_dwordx4 {v(HR+4*d,4)}, v{T3}, s[20:23], s49 offen{SC}\ns_add_u32 s49, s49, {PS}")
        return out
    def mf(st, ks, rs):
        return [f"v_mfma_f32_16x16x32_bf16 {v(ACC+(d*2+l)*4,4)}, {v(UF+rs*36+d*4,4)}, {v(WF+rs*8+l*4,4)}, {v(ACC+(d*2+l)*4,4)}"
                for d in range(9) for l in range(2)]
    consumer_loop(k, N, R, reads, mf, per=1, final_barrier=False, stamp0=None if (os.environ.get('P3S') or os.environ.get('P2S')) else 15)
    k("STAMP 9")
    V16, V8, VZ, VO = VTR, VTR + 1, VTR + 2, VTR + 3
    k(f"v_lshlrev_b32 v{V16}, 4, v{VL}\nv_lshlrev_b32 v{V8}, 3, v{VL}\nv_mov_b32 v{VZ}, 0\nv_mov_b32 v{T2}, 1\ns_waitcnt vmcnt(0)")
    if POIS:
        OK = k.lab("POK")
        k(f"v_cmp_gt_u32 vcc, 40, v{PZ}\ns_mov_b32 s31, 0\ns_nop 3\ns_cbranch_vccz {OK}")
        poll(k, PZ - 1, PZ, 1, 56, 31, want=40)
        k(f"{OK}:")
    GA, GB = [0, 1, 2, 3, 4], [5, 6, 7, 8]
    def epi(aa):
        own, oth = (GA, GB) if aa == 0 else (GB, GA)
        PK = UF
        n = 0
        for x, grp, l in ((2, oth, 0), (3, oth, 1), (1, own, 1)):
            for c in range(0, len(grp), 2):
                ds = grp[c:c + 2]
                for e, d in enumerate(ds):
                    ac = ACC + (d * 2 + l) * 4
                    k(f"v_cvt_pk_bf16_f32 v{PK+n+2*e}, v{ac}, v{ac+1}\nv_cvt_pk_bf16_f32 v{PK+n+2*e+1}, v{ac+2}, v{ac+3}")
                if len(ds) == 2: k(f"buffer_store_dwordx4 {v(PK+n,4)}, v{V16}, s[20:23], s{44+x} offen offset:{c*512}{WT}")
                else: k(f"buffer_store_dwordx2 {v(PK+n,2)}, v{V8}, s[20:23], s{44+x} offen offset:{c*512}{WT}")
                n += 4
        for e, d in enumerate(own):
            ac = v(ACC + d * 8, 4)
            k(f"v_mfma_f32_16x16x32_bf16 {ac}, {v(HR+4*e,4)}, {v(IDN,4)}, {ac}")
        k(f"v_lshlrev_b32 v{B2}, 16, v{B2}")
        k(f"v_mul_u32_u24 v{VO}, 1152, v{VI}\nv_lshl_add_u32 v{VO}, v{VG}, 3, v{VO}")
        RR = UF + 40
        chunks = [own[c:c + 2] for c in range(0, len(own), 2)]
        k(f"s_add_u32 s30, s33, {4*2560}\ns_add_u32 s31, s33, {8*2560}")
        def inbox():
            regs = []
            for ci, ds in enumerate(chunks):
                for sl, so in enumerate((33, 30, 31)):
                    r = RR + (ci * 3 + sl) * 4
                    if len(ds) == 2: k(f"buffer_load_dwordx4 {v(r,4)}, v{V16}, s[20:23], s{so} offen offset:{ci*1024} sc0 sc1")
                    else: k(f"buffer_load_dwordx2 {v(r,2)}, v{V8}, s[20:23], s{so} offen offset:{ci*1024} sc0 sc1")
                    regs += list(range(r, r + 2 * len(ds)))
            return regs
        def addb2():
            for d in own:
                for h2 in range(2): k(f"v_pk_add_f32 {v(ACC+d*8+2*h2,2)}, {v(ACC+d*8+2*h2,2)}, {v(B2-(B2&1),2)} op_sel:[0,{B2&1}] op_sel_hi:[1,{B2&1}]")
        if POIS:
            addb2()
            PL, GO = k.lab("PP"), k.lab("PG")
            k(f"s_mov_b32 s37, 0x40000\ns_waitcnt vmcnt({os.environ.get('PWAIT', 0)})\n{PL}:")
            regs = inbox()
            k(f"s_waitcnt vmcnt(0)\nv_max_u32 v{T0}, v{regs[0]}, v{regs[1]}")
            for n in range(2, len(regs), 2): k(f"v_max3_u32 v{T0}, v{T0}, v{regs[n]}, v{regs[n+1]}")
            k(f"v_cmp_eq_u32 vcc, -1, v{T0}\ns_sub_u32 s37, s37, 1\ns_cmp_eq_u32 s37, 0\ns_cbranch_scc1 {GO}\ns_cbranch_vccz {GO}\ns_sleep 2\ns_branch {PL}\n{GO}:\nSTAMP 10")
        else:
            k("s_waitcnt vmcnt(0)\nSTAMP 12")
            set_flag(k, VZ, T2, 20, 34)
            if 'fw' in XM: k("s_waitcnt vmcnt(0)")
            addb2()
            k(f"v_lshlrev_b32 v{T0}, 7, v{VL}\ns_mov_b64 exec, 0xf")
            poll(k, T0, HR, 1, 20, 35)
            k("s_mov_b64 exec, -1\nSTAMP 10")
            inbox()
        TR = 'notr' not in XM
        nch = 2 * len(own)
        if TR:
            k(f"s_mul_i32 s30, s28, 2816\ns_add_u32 s30, s30, {3*STG}\nv_mul_u32_u24 v{VO}, 176, v{VI}\nv_lshl_add_u32 v{VO}, v{VG}, 3, v{VO}\nv_add_u32 v{VO}, s30, v{VO}")
            nin = -(-16 * nch // 64)
            for q in range(nin):
                k(f"v_add_u32 v{T0}, {q*64}, v{VL}\nv_mul_u32_u24 v{T1}, {-(-65536//nch)}, v{T0}\nv_lshrrev_b32 v{T1}, 16, v{T1}\nv_mul_u32_u24 v{T2}, {nch}, v{T1}\nv_sub_u32 v{T0}, v{T0}, v{T2}\nv_lshlrev_b32 v{T0}, 4, v{T0}")
                k(f"v_mul_u32_u24 v{T2}, 176, v{T1}\nv_add3_u32 v{HR+q}, v{T2}, v{T0}, s30\nv_mul_u32_u24 v{T2}, 1152, v{T1}\nv_add_u32 v{HR+4+q}, v{T2}, v{T0}")
        nst = 0
        for ci, ds in enumerate(chunks):
            if not POIS: k(f"s_waitcnt vmcnt({3*(len(chunks)-1-ci)+nst})")
            for e, d in enumerate(ds):
                o = ACC + d * 8
                for sl in range(3):
                    for h2 in range(2):
                        p = RR + (ci * 3 + sl) * 4 + 2 * e + h2
                        t = PK + (sl * 2 + h2) * 2
                        k(f"v_lshlrev_b32 v{t}, 16, v{p}\nv_and_b32 v{t+1}, 0xffff0000, v{p}")
                for sl in range(3):
                    for h2 in range(2):
                        t = PK + (sl * 2 + h2) * 2
                        k(f"v_pk_add_f32 {v(o+2*h2,2)}, {v(o+2*h2,2)}, {v(t,2)}")
                k(f"v_cvt_pk_bf16_f32 v{o}, v{o}, v{o+1}\nv_cvt_pk_bf16_f32 v{o+1}, v{o+2}, v{o+3}")
                if TR: k(f"ds_write_b64 v{VO}, {v(o,2)} offset:{(d-own[0])*32}")
                else:
                    k(f"buffer_store_dwordx2 {v(o,2)}, v{VO}, s[40:43], s48 offen offset:{d*32}" + os.environ.get("OUTF", " nt"))
                    nst += 1
        if TR:
            k("s_waitcnt lgkmcnt(0)")
            for q in range(nin): k(f"ds_read_b128 {v(PK+16+4*q,4)}, v{HR+q}")
            for q in range(nin):
                k(f"s_waitcnt lgkmcnt({nin-1-q})")
                if (q + 1) * 64 > 16 * nch: k("s_mov_b32 exec_hi, 0")
                k(f"buffer_store_dwordx4 {v(PK+16+4*q,4)}, v{HR+4+q}, s[40:43], s48 offen offset:{own[0]*32}" + os.environ.get("OUTF", " nt"))
        k("s_endpgm")
    A1 = k.lab("A1")
    k(f"s_cmp_ge_u32 s26, 2\ns_cbranch_scc1 {A1}")
    epi(0)
    k(f"{A1}:")
    epi(1)
    k(f"{PROD}:\ns_and_b32 s29, s28, 1")
    ORD = 'noord' not in XM
    k("s_sub_u32 s38, 1, s26\ns_and_b32 s38, s38, 3\ns_cmp_eq_u32 s38, 0\ns_cselect_b32 s39, 6, 7")
    for n in range(9):
        if not ORD:
            k(f"s_mov_b32 s{40+n}, {n}"); continue
        k(f"s_mov_b32 s{40+n}, {n}")
        for d in (0, 3, 6):
            if n - d >= 0: k(f"s_cmp_le_u32 s38, {n-d}\ns_addc_u32 s{40+n}, s{40+n}, 0")
        if n >= 6: k(f"s_sub_u32 s30, {n}, s39\ns_lshl_b32 s30, s30, 2\ns_add_u32 s30, s30, s38\ns_cmp_le_u32 s39, {n}\ns_cselect_b32 s{40+n}, s30, s{40+n}")
    k(f"s_cmp_ge_u32 s28, 6\ns_cbranch_scc1 {PA}")
    VD = 10
    for q in range(2):
        k(f"v_add_u32 v{T0}, {4*q}, v{VG}")
        k(f"v_lshlrev_b32 v{T1}, 1, v{T0}\nv_xor_b32 v{T1}, v{T1}, v{VI}\nv_lshlrev_b32 v{T1}, 4, v{T1}")
        k(f"v_lshl_add_u32 v{VD+q}, v{T0}, 12, v{T1}")
    for q in range(2, 8): k(f"v_add_u32 v{VD+q}, {8*4096}, v{VD+q-2}")
    k(f"s_mul_i32 s32, s26, {1152*4096}\ns_lshl_b32 s30, s29, 17\ns_add_u32 s32, s32, s30\ns_lshl_b32 s30, s24, 8\ns_add_u32 s32, s32, s30\ns_lshl_b32 s34, s29, 13")
    srd(k, 12, PW2, F_ * S_ * 2)
    if 'g5' in XM:
        NG = k.lab("NG")
        k(f"s_cmp_ge_u32 s2, 216\ns_cbranch_scc1 {NG}")
        wait_local(k, 20, LCNT + 8, n=4)
        k(f"{NG}:")
    producer_loop(k, N, R, 8, lambda st, slot: [f"s_lshl_b32 s33, s{40+(st>>1)}, 19\ns_add_u32 s33, s33, s32" + (f"\ns_add_u32 s33, s33, {64*4096}" if st & 1 else "")] +
                  [dma(34, slot * STG + q * 1024, VD + q, 12, 33) for q in range(8)], FIN, final_barrier=False, first=int(os.environ.get("FIRST5", 2)), gate=lambda st: None)
    k(f"{PA}:")
    k(f"v_lshlrev_b32 v{VD}, 4, v{VL}")
    for d in range(1, 9): k(f"v_add_u32 v{VD+d}, {144*1024}, v{VD+d-1}")
    k(f"s_mul_i32 s33, s25, {9*144*1024}\ns_mul_i32 s30, s26, {36*1024}\ns_add_u32 s33, s33, s30\ns_lshl_b32 s30, s29, 10\ns_add_u32 s33, s33, s30\ns_add_u32 s33, s33, {WS_U}")
    k("s_mul_i32 s35, s29, 9216\ns_add_u32 s35, s35, 16384")
    k(f"s_mul_i32 s30, s25, 3\ns_lshr_b32 s30, s30, 1\ns_mul_i32 s31, s26, 6\ns_add_u32 s30, s30, s31\ns_mul_i32 s30, s30, {9*128}\ns_add_u32 s30, s30, {F4}")
    k(f"v_lshlrev_b32 v{T0}, 7, v{VL}")
    W7, WD = k.lab("W7"), k.lab("WD")
    k(f"s_mov_b32 s49, s30\ns_cmp_eq_u32 s28, 7\ns_cbranch_scc1 {W7}")
    if 'nogate' not in XM:
        NG, NG2 = k.lab("NG"), k.lab("NG")
        k(f"s_cmp_ge_u32 s2, 216\ns_cbranch_scc1 {NG}")
        wait_local(k, 20, LCNT + 8)
        k(f"s_branch {NG2}\n{NG}:\ns_lshl_b32 exec_lo, 1, s40\ns_mov_b32 exec_hi, 0")
        poll(k, T0, 20, 1, 20, 30, sleep=8)
        k(f"{NG2}:")
    k("s_lshl_b32 s31, 0x111, s38\ns_and_b32 s31, s31, 0x1ff\ns_mul_i32 s31, s31, 0x201\ns_andn2_b32 exec_lo, 0x3ffff, s31\ns_mov_b32 exec_hi, 0\ns_mov_b32 s49, s30" if ORD else "s_mov_b64 exec, 0x3ffff")
    poll(k, T0, 20, 1, 20, 30)
    k("s_mov_b64 exec, -1")
    lds_signal(k, 20, LCNT + 28)
    k(f"s_branch {WD}\n{W7}:")
    wait_local(k, 20, LCNT + 28, n=1)
    k(f"{WD}:\nSTAMP 9")
    def gate(st):
        if st == 12 and ORD:
            k("s_mov_b64 exec, 0x3ffff")
            poll(k, T0, 20, 1, 20, 49)
            k("s_mov_b64 exec, -1")
    producer_loop(k, N, R, 9, lambda st, slot: [f"s_lshl_b32 s32, s{40+(st>>1)}, 12\ns_add_u32 s32, s32, s33" + ("\ns_add_u32 s32, s32, 2048" if st & 1 else "")] +
                  [dma(35, slot * STG + q * 1024, VD + q, 20, 32, SC) for q in range(9)], FIN, final_barrier=False, gate=gate)
    k(f"{FIN}:\ns_endpgm")

NAME = "sequential_preLN__sliding_block__mixer_token_mlp__prompt_kernel"
def gen_mega():
    k = Kern(NAME, 512, 256, LCNT + 64)
    k.lab = (lambda f: (lambda base="L": f(base).replace(NAME[:-7], "m")))(k.lab)
    END = k.lab("END")
    k(f"s_cmp_ge_u32 s2, 256\ns_cbranch_scc1 {END}")
    k("s_load_dwordx16 s[64:79], s[0:1], 0\ns_load_dwordx4 s[80:83], s[0:1], 64\ns_load_dwordx2 s[84:85], s[0:1], 80")
    k("s_and_b32 s10, s2, 7\ns_lshr_b32 s11, s2, 3")
    if 'nocode' not in XM:
        H = k.lab("PC"); SK = k.lab("SKC")
        k(f"s_cmp_lt_u32 s2, 192\ns_cbranch_scc1 {SK}\ns_getpc_b64 s[60:61]\n{H}:\ns_sub_u32 s60, s60, {H}-L_text_begin\ns_subb_u32 s61, s61, 0")
        k(f"s_sub_u32 s62, s11, 24\ns_lshl_b32 s62, s62, 7\nv_lshlrev_b32 v{T0}, 10, v0\nv_add_u32 v{T0}, s62, v{T0}")
        k(f"s_mov_b32 s62, L_text_end-L_text_begin\nv_cmp_gt_u32 vcc, s62, v{T0}\ns_and_saveexec_b64 s[62:63], vcc\ns_cbranch_execz {SK}\nglobal_load_dword v{DUMMY}, v{T0}, s[60:61]\n{SK}:\ns_mov_b64 exec, -1")
    lane_ids(k, VL, 2, 28)
    k(f"v_lshlrev_b32 v{T0}, 2, v{VL}\nv_add_u32 v{T0}, {LCNT}, v{T0}\nv_mov_b32 v{T1}, 0\ns_mov_b64 exec, 0xffff\nds_write_b32 v{T0}, v{T1}\ns_mov_b64 exec, -1")
    E2a, E2b, E3, E4, E5 = [k.lab(n) for n in ("P2A", "P2B", "P3", "P4", "P5")]
    p1(k, (E2a, E2b))
    p2(k, (E2a, E2b), E3)
    p3(k, E3, E4)
    p4(k, E4, E5)
    p5(k, E5)
    k(f"{END}:\ns_endpgm")
    return k
```

```python
from common import *
from ring2 import *
import math, os
XM = os.environ.get('MX', 'notouch,nopoison,noslow,fw').split(',')
WT = " sc0 sc1"
SC = " sc1"
FL = WS_ST + 196608
F1 = FL; F2 = F1 + 32768; F3 = F2 + 32768; F4 = F3 + 24576; F5 = F4 + 27648; FEND = F5 + 131072
assert FEND - WS_ST <= 64 * 8192
PB = int(os.environ.get('PB', WS_P))
LX = 61440
LCNT = 160768
WS_XS = 22 * MB
WS_CS = WS_XS + 16384
PX, PWQKV, PWO, PW1, PB1, PW2, PB2, POUT, PDBG, PWS = 64, 66, 68, 72, 74, 76, 78, 80, 82, 84
VL, VG, VI = 1, 3, 4
T0, T1, T2, T3 = 5, 6, 7, 8
DUMMY = 234

def pf_flat(k, srd_, sidx, nwg, nthreads, b0, b1, tmp, vt=0, s0=60):
    lines = (b1 - b0) // 128
    per = (lines + nwg - 1) // nwg
    n = (per + nthreads - 1) // nthreads
    k(f"s_mul_i32 s{s0}, s{sidx}, {per*128}\ns_add_u32 s{s0}, s{s0}, {b0}\nv_lshlrev_b32 v{tmp}, 7, v{vt}")
    for i in range(n):
        last = per - i * nthreads
        if last < nthreads:
            k(f"v_mov_b32 v{tmp+1}, 0x7ff00000\nv_cmp_gt_u32 vcc, {last}, v{vt}\nv_cndmask_b32 v{tmp}, v{tmp+1}, v{tmp}, vcc")
        k(f"buffer_load_dword v{DUMMY}, v{tmp}, s[{srd_}:{srd_+3}], s{s0} offen\ns_add_u32 s{s0}, s{s0}, {nthreads*128}")

PFDEF = dict(PF1B="w1:0:48", PF2="w1:48:88", PF3="w1:88:128,w2:0:26", PF4="w2:26:128")
def pf(k, name, sidx, nwg, nthreads, tmp, vt=0):
    spec = os.environ.get(name, PFDEF.get(name, ""))
    if not spec or spec == "0": return
    U = S_ * F_ * 2 // 128
    for it in spec.split(","):
        w, a_, b_ = it.split(":")
        srd(k, 52, PW1 if w == "w1" else PW2, S_ * F_ * 2)
        pf_flat(k, 52, sidx, nwg, nthreads, int(a_) * U, int(b_) * U, tmp, vt=vt)

def w1_addr(k, tmp):
    srd(k, 52, PW1, S_ * F_ * 2)
    k("s_lshr_b32 s60, s10, 1\ns_mul_i32 s60, s60, 9\ns_and_b32 s61, s10, 1\ns_lshl_b32 s61, s61, 2\ns_add_u32 s60, s60, s61\ns_lshl_b32 s60, s60, 8")
    k(f"v_lshrrev_b32 v{tmp}, 4, v0\nv_mul_u32_u24 v{tmp}, 9216, v{tmp}\nv_and_b32 v{tmp+1}, 15, v0\nv_lshl_add_u32 v{tmp}, v{tmp+1}, 7, v{tmp}")
    k(f"v_cmp_lt_u32 vcc, 9, v{tmp+1}\nv_mov_b32 v{tmp+1}, 0x7ff00000\nv_cndmask_b32 v{tmp}, v{tmp}, v{tmp+1}, vcc")

def w1_rows(k, sidx, rows, r0, _):
    w1_addr(k, 10)
    k(f"s_mul_i32 s61, s{sidx}, {rows*9216}\ns_add_u32 s60, s60, s61\ns_add_u32 s60, s60, {r0*9216}")
    for i in range((rows + 31) // 32):
        k(f"buffer_load_dword v{DUMMY}, v10, s[52:55], s60 offen\ns_add_u32 s60, s60, {32*9216}")

def w1slow(k):
    srd(k, 52, PW1, S_ * F_ * 2)
    k("s_lshr_b32 s60, s10, 1\ns_mul_i32 s60, s60, 9\ns_and_b32 s61, s10, 1\ns_lshl_b32 s61, s61, 2\ns_add_u32 s60, s60, s61")
    k("s_sub_u32 s61, 1, s60\ns_and_b32 s61, s61, 3\ns_add_u32 s60, s60, s61\ns_lshl_b32 s60, s60, 8\ns_add_u32 s60, s60, 128")
    k(f"s_sub_u32 s62, s11, 27\nv_mul_u32_u24 v10, 5, v0\nv_add_u32 v10, s62, v10\nv_mul_u32_u24 v10, 9216, v10")
    k(f"buffer_load_dword v{DUMMY}, v10, s[52:55], s60 offen\ns_add_u32 s60, s60, 1024\ns_cmp_eq_u32 s61, 0\ns_cselect_b32 s54, s54, 0")
    k(f"buffer_load_dword v{DUMMY}, v10, s[52:55], s60 offen")

def ids16(k):
    k(f"v_lshrrev_b32 v{VG}, 4, v{VL}\nv_and_b32 v{VI}, 15, v{VL}")

def p1(k, NXT):
    R = 4; STG = 34816; N = 9; XO = 18432
    PROD = k.lab("P1PROD"); PF = k.lab("P1PF"); PX_ = k.lab("P1PX")
    k("s_and_b32 s24, s10, 3\ns_lshl_b32 s24, s24, 2\ns_and_b32 s25, s11, 3\ns_add_u32 s24, s24, s25")
    k("s_lshr_b32 s25, s10, 2\ns_mul_i32 s25, s25, 6\ns_lshr_b32 s29, s11, 2\ns_add_u32 s25, s25, s29")
    ids16(k)
    def touch():
        k(f"v_mul_u32_u24 v{T0}, 4682, v{VL}\nv_lshrrev_b32 v{T0}, 16, v{T0}")
        k(f"v_mul_u32_u24 v{T1}, 14, v{T0}\nv_sub_u32 v{T1}, v{VL}, v{T1}")
        k(f"v_lshrrev_b32 v{T2}, 1, v{T0}\nv_mul_u32_u24 v{T2}, 62, v{T2}\nv_add_u32 v{T0}, v{T0}, v{T2}")
        k(f"v_mul_u32_u24 v{T0}, 3456, v{T0}\nv_lshl_add_u32 v{T0}, v{T1}, 7, v{T0}\nv_lshlrev_b32 v{T1}, 7, v{VL}")
        k(f"s_add_u32 s30, s28, 1\ns_mul_i32 s30, s30, {128*3456}\ns_mul_i32 s31, s11, {2*3456}\ns_add_u32 s30, s30, s31\ns_lshr_b32 s31, s10, 2\ns_mul_i32 s31, s31, {13*128}\ns_add_u32 s30, s30, s31")
        k(f"s_and_b32 s31, s10, 3\ns_mul_i32 s31, s31, {512*1152}\ns_mul_i32 s29, s11, {16*1152}\ns_add_u32 s31, s31, s29\ns_mul_i32 s29, s28, {36*128}\ns_add_u32 s31, s31, s29")
        k("s_waitcnt lgkmcnt(0)")
        srd(k, 12, PX, S_ * D_ * 2)
        srd(k, 16, PWQKV, D_ * 1728 * 2)
        if 'notouch' in XM: return
        k("s_mov_b32 exec_hi, 0xf")
        k(f"buffer_load_dword v{DUMMY}, v{T1}, s[12:15], s31 offen")
        k("s_mov_b32 exec_hi, 0xffffff")
        k(f"buffer_load_dword v{DUMMY}, v{T0}, s[16:19], s30 offen")
        k("s_mov_b32 exec_hi, -1")
    k(f"s_cmp_ge_u32 s11, 24\ns_cbranch_scc1 {PF}")
    k(f"s_cmp_ge_u32 s28, 4\ns_cbranch_scc1 {PROD}")
    k("s_lshr_b32 s26, s25, 2\ns_and_b32 s27, s25, 3")
    VTR, VXR, VC, ZD, XF, WF = 10, 12, 16, 18, 20, 36
    ACC = WF + 72
    CSR = ACC + 72; STR = CSR + 36
    assert STR + 16 <= DUMMY
    k(f"v_bfe_u32 v{T0}, v{VL}, 2, 2\nv_lshl_add_u32 v{T0}, v{VG}, 2, v{T0}\nv_mul_u32_u24 v{T0}, 288, v{T0}")
    k(f"v_and_b32 v{T1}, 3, v{VL}\nv_lshl_add_u32 v{VTR}, v{T1}, 3, v{T0}\nv_mul_u32_u24 v{T1}, 72, v{T1}\nv_add3_u32 v{VTR+1}, v{T0}, v{T1}, 32")
    k(f"v_lshrrev_b32 v{T0}, 1, v{VI}\nv_lshrrev_b32 v{T1}, 1, v{VG}\nv_xor_b32 v{T0}, v{T0}, v{T1}\nv_lshlrev_b32 v{T0}, 4, v{T0}\nv_lshl_add_u32 v{T0}, v{VI}, 7, v{T0}")
    k(f"v_and_b32 v{T1}, 1, v{VG}\nv_lshl_add_u32 v{T0}, v{T1}, 3, v{T0}")
    k(f"s_lshl_b32 s30, s28, 12\ns_add_u32 s30, s30, {XO}\nv_add_u32 v{VXR}, s30, v{T0}")
    for q in range(1, 4): k(f"v_xor_b32 v{VXR+q}, {32*q}, v{VXR}")
    for r in range(72): k(f"v_mov_b32 v{ACC+r}, 0")
    k(f"v_mov_b32 v{VC}, 0")
    touch()
    srd(k, 20, PWS, WS_SIZE)
    srd(k, 56, PDBG, 256)
    k(f"s_mul_i32 s50, s25, {9*PS}\ns_lshl_b32 s30, s24, 2\ns_add_u32 s30, s30, s28\ns_lshl_b32 s49, s30, 7\ns_lshl_b32 s30, s30, 10\ns_add_u32 s50, s50, s30")
    k(f"s_add_u32 s49, s49, {WS_XS}\ns_mul_i32 s51, s25, 576\ns_add_u32 s51, s51, {WS_CS}")
    k(f"s_lshl_b32 s48, s27, 4\ns_add_u32 s48, s48, s24\ns_lshl_b32 s48, s48, 2\ns_add_u32 s48, s48, s26\ns_lshl_b32 s48, s48, 7\ns_add_u32 s48, s48, {F1}")
    first = [True]
    coff = [72 * (T >> 1) + 40 * (T & 1) for T in range(8)]
    def body(vor):
        first[0] = True
        def side():
            OK = k.lab("ZOK")
            if not os.environ.get("STG_STAMP"): k("STAMP 13")
            k(f"s_waitcnt vmcnt(0)\nv_cmp_gt_u32 vcc, 64, v{ZD}\ns_mov_b32 s31, 0\ns_nop 3\ns_cbranch_vccz {OK}")
            poll(k, VC, ZD, 1, 56, 31, want=64)
            k(f"{OK}:")
            if not vor:
                k(f"v_lshlrev_b32 v{VC}, 4, v{VG}\nv_mul_u32_u24 v{VC+1}, 144, v{VG}\nv_lshlrev_b32 v{ZD}, 2, v{VI}")
                for tt in range(2):
                    k(f"buffer_load_dword v{STR+2*tt}, v{ZD}, s[20:23], s49 offen offset:{tt*64}{SC}")
                k("s_add_u32 s49, s49, 8192")
                for tt in range(2):
                    k(f"buffer_load_dword v{STR+2*tt+1}, v{ZD}, s[20:23], s49 offen offset:{tt*64}{SC}")
                for T in range(9):
                    k(f"buffer_load_dwordx4 {v(CSR+4*T,4)}, v{VC+(T==8)}, s[20:23], s51 offen offset:{2*coff[T] if T < 8 else 64}{SC}")
            else:
                k(f"v_lshlrev_b32 v{VC}, 2, v{VI}\nv_lshrrev_b32 v{VC+1}, 2, v{VI}\nv_mul_u32_u24 v{VC+1}, 128, v{VC+1}\nv_add_u32 v{VC+1}, v{VC+1}, v{VC}\nv_lshlrev_b32 v{ZD}, 4, v{VG}")
                for hf in range(2):
                    for tt in range(2):
                        k(f"buffer_load_dwordx4 {v(STR+tt*8+hf*4,4)}, v{ZD}, s[20:23], s49 offen offset:{tt*64}{SC}")
                    if hf == 0: k("s_add_u32 s49, s49, 8192")
                for T in range(9):
                    k(f"buffer_load_dword v{CSR+T}, v{VC+(T==8)}, s[20:23], s51 offen offset:{2*coff[T] if T < 8 else 64}{SC}")
        def reads(st, slot, ks, rs):
            out = []
            if ks == 0 and not first[0]:
                d = STG if slot else -(R - 1) * STG
                regs = list(range(VXR, VXR + 4)) + [VTR, VTR + 1]
                out += [f"v_add_u32 v{r}, {d}, v{r}" if d > 0 else f"v_subrev_u32 v{r}, {-d}, v{r}" for r in regs]
            first[0] = False
            for tt in range(2):
                for hf in range(2):
                    out.append(f"ds_read_b64 {v(XF+rs*8+tt*4+hf*2,2)}, v{VXR+2*ks+hf} offset:{tt*2048}")
            for j in range(9):
                for hf in range(2):
                    out.append(f"ds_read_b64_tr_b16 {v(WF+rs*36+j*4+hf*2,2)}, v{VTR+(j==8)} offset:{ks*9216+hf*4608+(coff[j] if j < 8 else 0)}")
            if slot == 3 and ks == 1 and not (os.environ.get('STG_STAMP') and st == 3):
                L = k.lab("ZS")
                out.append(f"s_cmp_lg_u32 s36, 1\ns_cbranch_scc1 {L}\nbuffer_load_dword v{ZD}, v{VC}, s[56:59], 0 offen sc0 sc1\n{L}:")
            return out
        def mf(st, ks, rs):
            g = []
            for j in range(9):
                wf = v(WF + rs * 36 + j * 4, 4)
                for tt in range(2):
                    xf = v(XF + rs * 8 + tt * 4, 4)
                    ac = v(ACC + (j * 2 + tt) * 4, 4)
                    g.append(f"v_mfma_f32_16x16x32_bf16 {ac}, {xf}, {wf}, {ac}" if vor else f"v_mfma_f32_16x16x32_bf16 {ac}, {wf}, {xf}, {ac}")
            return g
        consumer_loop(k, N, R, reads, mf, per=[2] * 8 + [1], final_barrier=False, before_last=side, stamp0=12)
        k("STAMP 1")
        qs = 18 ** -0.5 * math.log2(math.e)
        OUT = XF; VM0 = VTR
        k(f"v_lshlrev_b32 v{VM0}, 4, v{VL}\ns_waitcnt vmcnt(0)")
        if not vor:
            k(f"s_cmp_eq_u32 s26, 0\ns_cselect_b32 s31, {f32(qs)}, 1.0")
            for tt in range(2): k(f"v_mul_f32 v{STR+2*tt+1}, s31, v{STR+2*tt+1}")
        sw = "32" if vor else "16"
        def fin(j):
            po = OUT + (j % 4) * 4
            k(f"v_permlane{sw}_swap_b32 v{po}, v{po+2}\nv_permlane{sw}_swap_b32 v{po+1}, v{po+3}")
            k(f"buffer_store_dwordx4 {v(po,4)}, v{VM0}, s[20:23], s50 offen{WT}\ns_add_u32 s50, s50, {PS}")
        for j in range(9):
            o = OUT + (j % 4) * 4
            for tt in range(2):
                ac = ACC + (j * 2 + tt) * 4
                for h2 in range(2):
                    if not vor:
                        k(f"v_pk_fma_f32 {v(ac+2*h2,2)}, {v(STR+2*tt,2)}, {v(CSR+4*j+2*h2,2)}, {v(ac+2*h2,2)} op_sel_hi:[0,1,1] neg_lo:[1,0,0] neg_hi:[1,0,0]")
                    else:
                        c = CSR + (j & ~1); sel = j & 1
                        k(f"v_pk_fma_f32 {v(ac+2*h2,2)}, {v(STR+tt*8+2*h2,2)}, {v(c,2)}, {v(ac+2*h2,2)} op_sel:[0,{sel},0] op_sel_hi:[1,{sel},1] neg_lo:[1,0,0] neg_hi:[1,0,0]")
            for tt in range(2):
                ac = ACC + (j * 2 + tt) * 4
                for h2 in range(2):
                    if not vor: k(f"v_pk_mul_f32 {v(ac+2*h2,2)}, {v(ac+2*h2,2)}, {v(STR+2*tt,2)} op_sel:[0,1] op_sel_hi:[1,1]")
                    else: k(f"v_pk_mul_f32 {v(ac+2*h2,2)}, {v(ac+2*h2,2)}, {v(STR+tt*8+4+2*h2,2)}")
            for tt in range(2):
                ac = ACC + (j * 2 + tt) * 4
                k(f"v_cvt_pk_bf16_f32 v{o+2*tt}, v{ac}, v{ac+1}\nv_cvt_pk_bf16_f32 v{o+2*tt+1}, v{ac+2}, v{ac+3}")
            if j > 0: fin(j - 1)
        fin(8)
        k(f"v_mov_b32 v{T0}, 0\nv_mov_b32 v{T1}, 1\ns_waitcnt vmcnt(0)")
        last_wave_flag(k, T0, T1, T2, LCNT, 20, 48)
        k(f"s_branch {NXT[0]}")
    LV = k.lab("VOR")
    k(f"s_cmp_eq_u32 s26, 2\ns_cbranch_scc1 {LV}")
    body(False)
    k(f"{LV}:")
    body(True)
    k(f"{PROD}:")
    ra, rb = [int(t) for t in os.environ.get("ROT1", "0,0").split(",")]
    k(f"s_and_b32 s38, s11, 3\ns_mul_i32 s38, s38, {ra}\ns_lshr_b32 s39, s11, 2\ns_mul_i32 s39, s39, {rb}\ns_lshr_b32 s38, s38, 2\ns_lshr_b32 s39, s39, 2\ns_add_u32 s38, s38, s39")
    k("s_sub_u32 s39, s38, 9\ns_cmp_ge_u32 s38, 9\ns_cselect_b32 s38, s39, s38")
    k(f"s_and_b32 s29, s28, 1\ns_cmp_ge_u32 s28, 6\ns_cbranch_scc1 {PX_}")
    VD = 10
    def adv(reg, step):
        return [f"s_add_u32 s{reg}, s{reg}, {step}\ns_sub_u32 s39, s{reg}, {9*step}\ns_add_u32 s38, s38, 1\ns_cmp_eq_u32 s38, 9\ns_cselect_b32 s{reg}, s39, s{reg}"]
    k(f"s_mov_b32 s30, {3456-288}")
    for q in range(9):
        k(f"v_add_u32 v{T0}, {q*64}, v{VL}\nv_mul_u32_u24 v{T1}, 3641, v{T0}\nv_lshrrev_b32 v{T1}, 16, v{T1}")
        k(f"v_lshlrev_b32 v{T0}, 4, v{T0}\nv_mad_u32_u24 v{VD+q}, v{T1}, s30, v{T0}")
    k(f"s_mul_i32 s33, s25, 288\ns_mul_i32 s30, s29, {32*3456}\ns_add_u32 s33, s33, s30\ns_mul_i32 s34, s29, 9216\ns_mul_i32 s30, s38, {64*3456}\ns_add_u32 s33, s33, s30")
    k("s_waitcnt lgkmcnt(0)")
    srd(k, 16, PWQKV, D_ * 1728 * 2)
    srd(k, 20, PWS, WS_SIZE)
    def tail(kk):
        k("v_subrev_u32 v40, 256, v0")
        pf(k, "PF1T", 2, 192, 256, 42, vt=40)
    producer_loop(k, N, R, 9, lambda st, slot: [dma(34, slot * STG + q * 1024, VD + q, 16, 33, ' nt' if st < int(os.environ.get('NT1', 0)) else '') for q in range(9)] + adv(33, 64 * 3456), NXT[1], final_barrier=False, tail=tail, first=int(os.environ.get('FIRST1', 2)))
    k(f"{PX_}:")
    for q in range(2):
        k(f"v_lshrrev_b32 v{T0}, 3, v{VL}\nv_add_u32 v{T0}, {8*q}, v{T0}")
        k(f"v_bfe_u32 v{T1}, v{T0}, 1, 3\nv_and_b32 v{T2}, 7, v{VL}\nv_xor_b32 v{T1}, v{T1}, v{T2}\nv_lshlrev_b32 v{T1}, 4, v{T1}")
        k(f"v_mul_u32_u24 v{T0}, 1152, v{T0}\nv_add_u32 v{VD+q}, v{T0}, v{T1}")
    for q in range(2, 8): k(f"v_add_u32 v{VD+q}, {16*1152}, v{VD+q-2}")
    k("s_lshl_b32 s32, s24, 7\ns_lshl_b32 s30, s29, 6\ns_add_u32 s32, s32, s30\ns_mul_i32 s32, s32, 1152")
    k(f"s_lshl_b32 s35, s29, 13\ns_add_u32 s35, s35, {XO}\ns_lshl_b32 s30, s38, 7\ns_add_u32 s32, s32, s30")
    k("s_waitcnt lgkmcnt(0)")
    srd(k, 12, PX, S_ * D_ * 2)
    srd(k, 20, PWS, WS_SIZE)
    producer_loop(k, N, R, 8, lambda st, slot: [dma(35, slot * STG + q * 1024, VD + q, 12, 32, ' nt' if st < int(os.environ.get('NT1', 0)) else '') for q in range(8)] + adv(32, 128), NXT[1], final_barrier=False, tail=tail, first=int(os.environ.get('FIRST1', 2)))
    k(f"{PF}:\ns_sub_u32 s29, s2, 192")
    XA, SM, CA = 12, 48, 52
    CSW = k.lab("CSW"); NZ = k.lab("NZ"); NZ2 = k.lab("NZ"); DONE = k.lab("DN")
    k(f"v_lshrrev_b32 v{T1}, 3, v0\nv_and_b32 v{T2}, 7, v0\nv_lshlrev_b32 v{T2}, 4, v{T2}\ns_cmp_ge_u32 s29, 32\ns_cselect_b32 s30, 3456, 0\ns_cselect_b32 s31, 0, 1152\ns_add_u32 s30, s30, s31")
    k(f"v_mad_u32_u24 v{T0}, v{T1}, s30, v{T2}")
    k(f"s_lshl_b32 s32, s29, 13\ns_add_u32 s32, s32, {WS_ST}\nv_lshlrev_b32 v{T3}, 4, v0")
    for r in range(4): k(f"v_mov_b32 v{CA+8+r}, 0")
    k(f"v_mov_b32 v{SM}, 0\nv_mov_b32 v{SM+1}, 0\nv_mov_b32 v{SM+2}, 0x3f803f80\ns_mul_i32 s30, s29, {64*1152}")
    k(f"s_sub_u32 s33, s29, 32\ns_lshl_b32 s31, s33, 7\ns_cmp_ge_u32 s33, 27\ns_cselect_b32 s31, 0x7000000, s31")
    k("s_waitcnt lgkmcnt(0)")
    srd(k, 20, PWS, WS_SIZE)
    srd(k, 56, PDBG, 256)
    k(f"s_cmp_ge_u32 s29, 32\ns_cbranch_scc1 {CSW}")
    srd(k, 12, PX, S_ * D_ * 2)
    for q in range(9): k(f"buffer_load_dwordx4 {v(XA+4*q,4)}, v{T0}, s[12:15], s30 offen offset:{q*128}")
    k(f"buffer_store_dwordx4 {v(CA+8,4)}, v{T3}, s[20:23], s32 offen{WT}")
    for q in range(9):
        k(f"s_waitcnt vmcnt({9-q})")
        for r in range(4 * q, 4 * q + 4): k(f"v_dot2c_f32_bf16 v{SM}, v{XA+r}, v{SM+2}\nv_dot2c_f32_bf16 v{SM+1}, v{XA+r}, v{XA+r}")
    k("STAMP 1\ns_nop 2")
    for m in ("quad_perm:[1,0,3,2]", "quad_perm:[2,3,0,1]", "row_half_mirror"):
        for r in range(2): k(f"v_add_f32_dpp v{SM+r}, v{SM+r}, v{SM+r} {m} row_mask:0xf bank_mask:0xf")
    k(f"s_mov_b32 s30, {f32(1.0/576)}\nv_mul_f32 v{SM}, s30, v{SM}\nv_mul_f32 v{SM+1}, s30, v{SM+1}\nv_fma_f32 v{SM+1}, -v{SM}, v{SM}, v{SM+1}")
    def rbf(r): k(f"v_cvt_pk_bf16_f32 v{r}, v{r}, v{r}\nv_and_b32 v{r}, 0xffff0000, v{r}")
    k(f"v_max_f32 v{SM+1}, 0, v{SM+1}")
    rbf(SM); rbf(SM + 1)
    k(f"v_add_f32 v{SM+1}, {f32(1e-5)}, v{SM+1}")
    rbf(SM + 1)
    k(f"v_sqrt_f32 v{SM+1}, v{SM+1}")
    rbf(SM + 1)
    k(f"v_rcp_f32 v{SM+1}, v{SM+1}")
    k(f"s_lshl_b32 s30, s29, 8\ns_add_u32 s30, s30, {WS_XS}\ns_add_u32 s31, s30, 8192\nv_lshlrev_b32 v{T0}, 2, v{T1}\nv_and_b32 v{T3}, 7, v0")
    k(f"v_cmp_eq_u32 vcc, 0, v{T3}\ns_and_saveexec_b64 s[62:63], vcc")
    k(f"buffer_store_dword v{SM}, v{T0}, s[20:23], s30 offen{WT}\nbuffer_store_dword v{SM+1}, v{T0}, s[20:23], s31 offen{WT}\ns_mov_b64 exec, -1\ns_branch {DONE}\n{CSW}:")
    srd(k, 16, PWQKV, D_ * 1728 * 2)
    for q in range(9): k(f"buffer_load_dwordx4 {v(XA+4*q,4)}, v{T0}, s[16:19], s31 offen\ns_add_u32 s31, s31, {64*3456}")
    k(f"buffer_store_dwordx4 {v(CA+8,4)}, v{T3}, s[20:23], s32 offen{WT}")
    for q in range(9):
        k(f"s_waitcnt vmcnt({9-q})")
        for r in range(4):
            p = XA + 4 * q + r
            if q == 0: k(f"v_lshlrev_b32 v{CA+2*r}, 16, v{p}\nv_and_b32 v{CA+2*r+1}, 0xffff0000, v{p}")
            else: k(f"v_lshlrev_b32 v{SM}, 16, v{p}\nv_and_b32 v{SM+1}, 0xffff0000, v{p}\nv_pk_add_f32 {v(CA+2*r,2)}, {v(CA+2*r,2)}, {v(SM,2)}")
    k("STAMP 1")
    for r in range(8): k(f"v_add_f32_dpp v{CA+r}, v{CA+r}, v{CA+r} row_ror:8 row_mask:0xf bank_mask:0xf")
    for sw in ("16", "32"):
        for r in range(8): k(f"v_mov_b32 v{XA+r}, v{CA+r}")
        for r in range(8): k(f"v_permlane{sw}_swap_b32 v{CA+r}, v{XA+r}")
        for r in range(8): k(f"v_add_f32 v{CA+r}, v{CA+r}, v{XA+r}")
    k(f"s_lshl_b32 s30, s28, 8\nv_lshlrev_b32 v{T0}, 5, v{VL}\nv_add_u32 v{T0}, s30, v{T0}\ns_mov_b64 exec, 0xff")
    k(f"ds_write_b128 v{T0}, {v(CA,4)}\nds_write_b128 v{T0}, {v(CA+4,4)} offset:16\ns_mov_b64 exec, -1")
    k("s_waitcnt lgkmcnt(0)\ns_barrier")
    k(f"s_cmp_lg_u32 s28, 0\ns_cbranch_scc1 {DONE}\nv_lshlrev_b32 v{T0}, 2, v{VL}")
    for q in range(8): k(f"ds_read_b32 v{XA+q}, v{T0} offset:{q*256}")
    k(f"s_lshl_b32 s30, s33, 8\ns_add_u32 s30, s30, {WS_CS}\ns_waitcnt lgkmcnt(0)")
    for q in range(1, 8): k(f"v_add_f32 v{XA}, v{XA}, v{XA+q}")
    k(f"buffer_store_dword v{XA}, v{T0}, s[20:23], s30 offen{WT}\n{DONE}:")
    k(f"v_mov_b32 v{T0}, 0\nv_mov_b32 v{T1}, 1\ns_waitcnt vmcnt(0)\nSTAMP 5\ns_barrier\ns_cmp_lg_u32 s28, 0\ns_cbranch_scc1 {NZ2}")
    k(f"s_mov_b64 exec, 1\nbuffer_atomic_add v{T1}, v{T0}, s[56:59], 0 offen sc1\ns_mov_b64 exec, -1\n{NZ2}:\ns_barrier")
    pf(k, "PF1B", 29, 64, 512, 66)
    k(f"s_branch {NXT[1]}")

def p2(k, ENT, NXT):
    LK8 = 24576; LV = 30720; REC = 1168; SEC = 36 * PS
    VH, VQ = 3, 4
    V16, VV, V8A = 5, 6, 7
    QM, Q8 = 8, 12
    KF, K8F, VF, O = 16, 28, 40, 56
    MX, MX2, TA, TB = 72, 73, 74, 75
    AK, AK8, AV = 76, 77, 78
    VV8, VK8 = 79, 2
    S0 = 80
    k(f"{ENT[1]}:\ns_waitcnt vmcnt(0)\ns_cmp_lg_u32 s28, 7\ns_cbranch_scc1 {ENT[0]}")
    srd(k, 56, PDBG, 256)
    k(f"v_mov_b32 v{TA}, 0\ns_mov_b32 s31, 0")
    poll(k, TA, TB, 1, 56, 31, want=64)
    k(f"{ENT[0]}:")
    k("STAMP 2")
    k("s_lshl_b32 s24, s10, 1\ns_and_b32 s25, s11, 1\ns_add_u32 s24, s24, s25\ns_lshr_b32 s25, s11, 1")
    k(f"v_lshrrev_b32 v{VH}, 5, v{VL}\nv_and_b32 v{VQ}, 31, v{VL}")
    k("s_lshr_b32 s26, s28, 2\ns_and_b32 s27, s28, 3")
    k(f"v_lshlrev_b32 v{V16}, 4, v{VL}")
    k(f"v_mul_u32_u24 v{VV}, {PS}, v{VH}\nv_lshl_add_u32 v{VV}, v{VQ}, 4, v{VV}")
    k(f"s_lshr_b32 s47, s24, 2\ns_and_b32 s31, s24, 3\ns_mul_i32 s34, s47, 9\ns_lshl_b32 s32, s31, 1\ns_add_u32 s44, s32, s34\ns_add_u32 s32, s44, s26\ns_mul_i32 s32, s32, {PS}")
    k(f"s_add_u32 s34, s34, 8\ns_mul_i32 s34, s34, {PS}\ns_mul_i32 s44, s44, {PS}\ns_add_u32 s44, s44, {2*SEC}")
    k("s_lshr_b32 s30, s31, 1\ns_lshl_b32 s30, s30, 9\ns_add_u32 s41, s34, s30")
    k(f"s_and_b32 s30, s31, 1\ns_lshl_b32 s30, s30, 3\nv_lshlrev_b32 v{V8A}, 4, v{VQ}\nv_add_u32 v{V8A}, s30, v{V8A}")
    k(f"s_lshl_b32 s45, s31, 6\ns_add_u32 s45, s45, s34\ns_add_u32 s45, s45, {2*SEC}")
    k(f"v_lshrrev_b32 v{TA}, 2, v{VL}\nv_lshlrev_b32 v{TA}, 8, v{TA}\nv_and_b32 v{TB}, 3, v{VL}\nv_lshl_add_u32 v{VV8}, v{TB}, 4, v{TA}")
    k(f"v_lshlrev_b32 v{VK8}, 4, v{VQ}\nv_lshl_add_u32 v{VK8}, v{VH}, 10, v{VK8}")
    k("s_lshl_b32 s33, s25, 2\ns_mul_i32 s30, s27, 3\ns_add_i32 s35, s33, s30\ns_sub_i32 s35, s35, 8")
    k("s_mul_i32 s31, s26, 12\ns_add_u32 s31, s31, s30\ns_lshl_b32 s46, s31, 10")
    k(f"s_lshl_b32 s30, s28, 1\ns_add_i32 s30, s30, s33\ns_sub_i32 s30, s30, 8\ns_max_i32 s30, s30, 0\ns_lshl_b32 s30, s30, 10\ns_add_u32 s33, s33, s27")
    k(f"s_lshl_b32 s39, s33, 10\ns_add_u32 s40, s39, s41\ns_add_u32 s39, s39, s32\ns_add_u32 s41, s41, s30\ns_add_u32 s41, s41, {SEC}\ns_add_u32 s38, s32, {SEC}")
    k(f"s_lshl_b32 s42, s28, 10\ns_add_u32 s42, s42, {LK8}")
    k(f"s_mul_i32 s43, s28, 3\ns_lshl_b32 s36, s25, 3\ns_add_i32 s36, s36, s43\ns_sub_i32 s36, s36, 16\ns_mul_i32 s43, s43, {REC}\ns_add_u32 s43, s43, {LV}")
    NEG = f32(-1e30)
    k(f"v_lshlrev_b32 v{TA}, 2, v{VH}\nv_sub_u32 v{TA}, v{VQ}, v{TA}\nv_mov_b32 v{TB}, {NEG}")
    MRG = 'nomrg' not in XM; EM = 236
    if MRG: k(f"v_mov_b32 v{MX}, 0xffff\nv_mov_b32 v{MX2}, 0xffff0000")
    for b in range(4):
        for r in range(4): k(f"v_cmp_gt_i32 s[{86+2*r}:{87+2*r}], {8*b+r}, v{TA}")
        for r in range(4): k(f"v_cndmask_b32 v{S0+4*b+r}, v{TB}, 0, s[{86+2*r}:{87+2*r}]")
        for r in range(4): k(f"v_cndmask_b32 v{S0+128+4*b+r}, 0, v{TB}, s[{86+2*r}:{87+2*r}]")
        if MRG:
            for h in range(2):
                k(f"v_cndmask_b32 v{EM+2*b+h}, 0, v{MX}, s[{86+4*h}:{87+4*h}]\nv_cndmask_b32 v{AK}, 0, v{MX2}, s[{88+4*h}:{89+4*h}]\nv_or_b32 v{EM+2*b+h}, v{EM+2*b+h}, v{AK}")
    k(f"s_mul_i32 s30, s26, 12\ns_add_u32 s30, s30, s27\ns_lshl_b32 s30, s30, 10\nv_add_u32 v{AK}, s30, v{V16}")
    k(f"s_lshl_b32 s30, s27, 9\ns_add_u32 s30, s30, {LK8}\nv_add_u32 v{AK8}, s30, v{V8A}")
    for q in range(3):
        k(f"v_mov_b32 v{K8F+q*4+2}, 0\nv_mov_b32 v{K8F+q*4+3}, 0")
    k(f"v_mov_b32 v{Q8+2}, 0\nv_mov_b32 v{Q8+3}, 0")
    k(f"s_lshl_b32 s30, s26, 9\nv_lshlrev_b32 v{AV}, 8, v{VH}\nv_lshl_add_u32 v{AV}, v{VQ}, 4, v{AV}\nv_add_u32 v{AV}, s30, v{AV}")
    k(f"s_lshl_b32 s30, s26, 5\ns_add_u32 s30, s30, {1024-256}\nv_lshlrev_b32 v{TA}, 6, v{VH}\nv_lshl_add_u32 v{TA}, v{VQ}, 4, v{TA}\nv_add_u32 v{TA}, s30, v{TA}")
    k(f"v_cmp_lt_u32 vcc, 15, v{VQ}\nv_cmp_lt_u32 s[86:87], 17, v{VQ}\nv_mov_b32 v{MX2}, 1152\nv_cndmask_b32 v{AV}, v{AV}, v{TA}, vcc\nv_cndmask_b32 v{AV}, v{AV}, v{MX2}, s[86:87]")
    k(f"s_mul_i32 s30, s27, {2*REC}\ns_add_u32 s30, s30, {LV}\nv_add_u32 v{AV}, s30, v{AV}")
    NI = k.lab("NI")
    k("s_sub_i32 s30, 8, s33")
    for j in range(8):
        k(f"s_cmp_le_i32 s30, {j}\ns_cbranch_scc1 {NI}")
        for r in range(16): k(f"v_mov_b32 v{S0+j*16+r}, v{TB}")
    k(f"{NI}:")
    for q in range(3):
        k(f"s_add_i32 s30, s35, {q}\ns_max_i32 s30, s30, 0\ns_lshl_b32 s30, s30, 10\ns_add_u32 s{86+q}, s30, s38")
        k(f"s_add_i32 s30, s36, {q}\ns_max_i32 s30, s30, 0\ns_lshl_b32 s30, s30, 9\ns_add_u32 s{89+q}, s30, s44\ns_add_u32 s{92+q}, s30, s45")
    SO = k.lab("SONE")
    k(f"s_cmp_lg_u32 s28, 7\ns_cbranch_scc1 {SO}")
    if 'nogate' not in XM:
        NG = k.lab("NG")
        k(f"s_cmp_ge_u32 s2, 192\ns_cbranch_scc1 {NG}")
        wait_local(k, TA, LCNT)
        k(f"{NG}:")
    k(f"s_lshl_b32 s30, s47, 13\ns_lshl_b32 s31, s25, 9\ns_add_u32 s30, s30, s31\ns_add_u32 s30, s30, {F1-1024}")
    k(f"s_mov_b64 exec, -1\nv_lshlrev_b32 v{TA}, 7, v{VL}\ns_movk_i32 s31, 0x760\ns_cmp_eq_u32 s25, 0\ns_cselect_b32 s31, 0x700, s31\ns_cmp_ge_u32 s25, 2\ns_cselect_b32 exec_lo, 0x766, s31\ns_mov_b32 exec_hi, 0")
    poll(k, TA, MX, 1, 20, 30)
    k(f"s_mov_b64 exec, -1\n{SO}:\ns_barrier")
    k("STAMP 3")
    SK = k.lab("SK8")
    k(f"s_mov_b32 m0, s42\ns_cmp_ge_u32 s28, 6\ns_cbranch_scc1 {SK}")
    k(f"buffer_load_dwordx4 v{VK8}, s[20:23], s41 offen{SC} lds\n{SK}:")
    for q in range(3): k(dma(46, q * 1024, V16, 20, 86 + q, SC))
    k(f"buffer_load_dwordx4 {v(QM,4)}, v{V16}, s[20:23], s39 offen{SC}")
    k(f"buffer_load_dwordx2 {v(Q8,2)}, v{V8A}, s[20:23], s40 offen{SC}")
    for q in range(3):
        k(dma(43, q * REC, VV, 20, 89 + q, SC))
        k(f"s_add_u32 m0, s43, {q*REC+1024}\ns_mov_b64 exec, 0xff\nbuffer_load_dwordx4 v{VV8}, s[20:23], s{92+q} offen{SC} lds\ns_mov_b64 exec, -1")
    SO = k.lab("SONE")
    k(f"s_cmp_lg_u32 s28, 7\ns_cbranch_scc1 {SO}")
    for r in range(4): k(f"v_mov_b32 v{KF+r}, 0x3f803f80")
    k(f"v_mul_u32_u24 v{TA}, {REC}, v{VL}\ns_mov_b64 exec, 0xffffff")
    k(f"ds_write_b128 v{TA}, {v(KF,4)} offset:{LV+1152}")
    k(f"s_mov_b64 exec, -1\n{SO}:")
    srd(k, 48, PWO, D_ * D_ * 2)
    srd(k, 12, PX, S_ * D_ * 2)
    k("s_lshl_b32 s30, s10, 2\ns_and_b32 s31, s11, 3\ns_add_u32 s30, s30, s31\ns_lshl_b32 s30, s30, 2\ns_and_b32 s31, s28, 3\ns_add_u32 s30, s30, s31\ns_mul_i32 s30, s30, 18432")
    k(f"s_mul_i32 s44, s31, 3072\ns_add_u32 s44, s44, {LX}\ns_lshr_b32 s31, s11, 2\ns_mul_i32 s31, s31, 192\ns_add_u32 s43, s30, s31\ns_movk_i32 s30, 960")
    for q in range(3):
        k(f"v_add_u32 v{224+q}, {q*64}, v{VL}\nv_mul_u32_u24 v227, 5462, v{224+q}\nv_lshrrev_b32 v227, 16, v227\nv_lshlrev_b32 v{224+q}, 4, v{224+q}\nv_mad_u32_u24 v{224+q}, v227, s30, v{224+q}")
    k(f"v_lshlrev_b32 v227, 7, v{VL}\ns_mul_i32 s42, s11, {162*128}\ns_mul_i32 s30, s28, {21*128}\ns_add_u32 s42, s42, s30")
    k(f"v_mov_b32 v{MX}, v{TB}\ns_sub_i32 s35, 8, s33")
    k("s_cmp_eq_u32 s26, 0\ns_cselect_b32 s38, -1, 0\ns_cselect_b32 s40, 0, -1\ns_mov_b32 s39, 0\ns_mov_b32 s41, 0")
    k("s_waitcnt vmcnt(6) lgkmcnt(0)")
    k(f"v_cndmask_b32 v{Q8}, 0, v{Q8}, s[38:39]\nv_cndmask_b32 v{Q8+1}, 0, v{Q8+1}, s[40:41]")
    k("s_barrier")
    def kread(j):
        return [f"ds_read_b128 {v(KF+(j%3)*4,4)}, v{AK} offset:{j*1024}", f"ds_read_b64 {v(K8F+(j%3)*4,2)}, v{AK8} offset:{j*512}"]
    def mx(j):
        return [f"v_max3_f32 v{MX}, v{MX}, v{S0+j*16+2*r}, v{S0+j*16+2*r+1}" for r in range(8)]
    if os.environ.get("P2S"): k("STAMP 12")
    for t in kread(0) + kread(1): k(t)
    XS = k.lab("XS")
    k(f"s_cmp_ge_u32 s2, 192\ns_cbranch_scc1 {XS}\ns_cmp_lt_u32 s28, 4\ns_cbranch_scc1 {XS}")
    for q in range(3): k(dma(44, q * 1024, 224 + q, 12, 43))
    k(f"{XS}:")
    n0 = len(k.L)
    k(f"s_mov_b64 exec, 0x1fffff\nbuffer_load_dword v{DUMMY}, v227, s[48:51], s42 offen\ns_mov_b64 exec, -1")
    pf(k, "PF2", 2, 256, 512, 228)
    npf = sum(1 for l in k.L[n0:] if l.startswith("buffer_load"))
    inv = []
    for j in range(9):
        if j + 2 < 9:
            for t in kread(j + 2): k(t)
        sj = v(S0 + j * 16, 16)
        if j < 8:
            lb = k.lab("BK")
            k(f"s_cmp_gt_i32 s35, {j}\ns_cbranch_scc1 {lb}")
        k(f"s_waitcnt lgkmcnt({min(2, 8-j)*2})")
        k(f"v_mfma_f32_32x32x16_bf16 {sj}, {v(KF+(j%3)*4,4)}, {v(QM,4)}, {sj if j in (0, 8) else 0}")
        k(f"v_mfma_f32_32x32x16_bf16 {sj}, {v(K8F+(j%3)*4,4)}, {v(Q8,4)}, {sj}")
        if j < 8: k(f"{lb}:")
        if j >= 2 and not (MRG and j == 2):
            for t in mx(j - 2): k(t)
    for t in mx(7): k(t)
    WA_, WB_ = k.lab("WA"), k.lab("WB")
    k(f"s_cmp_ge_u32 s2, 192\ns_cbranch_scc1 {WA_}\ns_cmp_lt_u32 s28, 4\ns_cbranch_scc1 {WA_}\ns_waitcnt vmcnt({npf+3})\ns_branch {WB_}\n{WA_}:\ns_waitcnt vmcnt({npf})\n{WB_}:\ns_barrier")
    def vread(t): return f"ds_read_b128 {v(VF+(t%4)*4,4)}, v{AV} offset:{t*REC}"
    if os.environ.get("P2S"): k("STAMP 13")
    k(vread(0)); k(vread(1))
    side = []
    if MRG:
        for r in range(16): k(f"v_max_f32 v{S0+r}, v{S0+r}, v{S0+128+r}")
    for t in mx(0 if MRG else 8): k(t)
    k(f"v_mov_b32 v{MX2}, v{MX}\nv_permlane32_swap_b32 v{MX}, v{MX2}\nv_max_f32 v{MX}, v{MX}, v{MX2}")
    def soft(j):
        b = S0 + j * 16
        if MRG and j == 8: return []
        out = [f"v_sub_f32 v{b+r}, v{b+r}, v{MX}" for r in range(16)]
        if 'pksub' in XM: out = [f"v_pk_add_f32 {v(b+2*r,2)}, {v(b+2*r,2)}, {v(MX,2)} op_sel_hi:[1,0] neg_lo:[0,1] neg_hi:[0,1]" for r in range(8)]
        out += [f"v_exp_f32 v{b+r}, v{b+r}" for r in range(16)]
        if 'trunc' in XM: out += [f"v_perm_b32 v{b+r}, v{b+2*r+1}, v{b+2*r}, s86" for r in range(8)]
        else: out += [f"v_cvt_pk_bf16_f32 v{b+r}, v{b+2*r}, v{b+2*r+1}" for r in range(8)]
        if MRG and j == 0:
            out += [f"v_bfi_b32 v{S0+128+r}, v{EM+r}, 0, v{b+r}" for r in range(8)] + [f"v_and_b32 v{b+r}, v{EM+r}, v{b+r}" for r in range(8)]
        return out
    k("s_mov_b32 s86, 0x07060302")
    def pv(j):
        b = S0 + j * 16
        return [f"v_mfma_f32_32x32x16_bf16 {v(O,16)}, {v(VF+((2*j+s_)%4)*4,4)}, {v(b+4*s_,4)}, {v(O,16) if (j or s_) else 0}" for s_ in range(2)]
    if os.environ.get("P2S"): k("STAMP 14")
    for t in soft(0): k(t)
    for j in range(9):
        nxt = soft(j + 1) if j < 8 else []
        if j < 8:
            k(vread(2 * j + 2)); k(vread(2 * j + 3))
        p = pv(j)
        for t in nxt[:4]: k(t)
        k(f"s_waitcnt lgkmcnt({2 if j < 8 else 0})")
        k(p[0])
        for t in nxt[4:20]: k(t)
        if j < len(side) and side[j]: k(side[j])
        k(p[1])
        for t in nxt[20:]: k(t)
    k(f"s_lshl_b32 s34, s24, 1\ns_add_u32 s34, s34, s26\ns_mul_i32 s30, s34, {PS}\ns_lshl_b32 s31, s33, 10\ns_add_u32 s30, s30, s31\ns_add_u32 s30, s30, {WS_OM}")
    k(f"s_lshl_b32 s31, s34, 13\ns_lshl_b32 s34, s33, 7\ns_add_u32 s31, s31, s34\ns_add_u32 s31, s31, {WS_O8}\nv_lshlrev_b32 v{AK8}, 2, v{VQ}")
    if os.environ.get("P2S"): k("STAMP 15")
    if 'prio' in XM: k("s_setprio 0")
    k(f"v_rcp_f32 v{MX}, v{O+10}")
    for r in range(10): k(f"v_mul_f32 v{O+r}, v{O+r}, v{MX}")
    for r in range(5): k(f"v_cvt_pk_bf16_f32 v{KF+r}, v{O+2*r}, v{O+2*r+1}")
    k(f"buffer_store_dwordx4 {v(KF,4)}, v{V16}, s[20:23], s30 offen{WT}")
    k("s_mov_b32 exec_hi, 0")
    k(f"buffer_store_dword v{KF+4}, v{AK8}, s[20:23], s31 offen{WT}")
    k("s_mov_b32 exec_hi, -1")
    k(f"s_lshl_b32 s30, s25, 11\ns_lshl_b32 s31, s24, 7\ns_add_u32 s30, s30, s31\ns_add_u32 s30, s30, {F2}\nv_mov_b32 v{TA}, 0\nv_mov_b32 v{TB}, 1")
    k(f"s_waitcnt vmcnt(0)\ns_barrier\ns_cmp_lg_u32 s28, 6\ns_cbranch_scc1 {NXT}")
    set_flag(k, TA, TB, 20, 30)
    k(f"s_branch {NXT}")
    for j, li, lb in inv:
        k(f"{li}:")
        for r in range(16): k(f"v_mov_b32 v{S0+j*16+r}, v{TB}")
        k(f"s_branch {lb}")

def p3(k, ENT, NXT):
    R = 7; WS_ = 12288; WB = 73728; N = 9
    LAB = WB + R * WS_
    PF = k.lab("P3PF"); PROD = k.lab("P3PROD"); PO = k.lab("P3PO")
    k(f"{ENT}:\nSTAMP 4")
    k(f"s_cmp_ge_u32 s2, 192\ns_cbranch_scc1 {PF}")
    k("s_lshl_b32 s24, s10, 2\ns_and_b32 s25, s11, 3\ns_add_u32 s24, s24, s25\ns_lshr_b32 s25, s11, 2")
    ids16(k)
    V16 = 9
    k(f"v_lshlrev_b32 v{V16}, 4, v{VL}")
    k(f"s_cmp_ge_u32 s28, 4\ns_cbranch_scc1 {PROD}")
    k("s_lshr_b32 s26, s28, 1\ns_and_b32 s27, s28, 1")
    VTR, VAO, VAE = 10, 16, 18
    IDN, XR, ACC, AF, BF = 24, 28, 52, 76, 100
    k(f"v_and_b32 v{T1}, 1, v{VG}")
    k(f"v_bfe_u32 v{T0}, v{VL}, 2, 2\nv_lshl_add_u32 v{T0}, v{VG}, 2, v{T0}\nv_mul_u32_u24 v{T0}, 192, v{T0}")
    k(f"v_and_b32 v{T2}, 3, v{VL}\nv_lshl_add_u32 v{T0}, v{T2}, 3, v{T0}\nv_add_u32 v{T0}, {WB}, v{T0}")
    k("s_mul_i32 s30, s27, 3")
    for dt in range(3):
        k(f"s_add_u32 s31, s30, {dt}\nv_xor_b32 v{T2}, s31, v{T1}\nv_lshl_add_u32 v{VTR+dt}, v{T2}, 5, v{T0}\nv_add_u32 v{VTR+3+dt}, {4*WS_}, v{VTR+dt}")
    k(f"s_lshl_b32 s30, s26, 11\nv_add_u32 v{VAO}, s30, v{V16}\nv_add_u32 v{VAO+1}, 32768, v{VAO}")
    k(f"v_lshlrev_b32 v{T0}, 8, v{VG}\nv_lshl_add_u32 v{T0}, v{VI}, 2, v{T0}\nv_add_u32 v{VAE}, s30, v{T0}\nv_add_u32 v{VAE}, 65536, v{VAE}")
    k(f"v_lshlrev_b32 v{T0}, 3, v{VG}\nv_sub_u32 v{T0}, v{VI}, v{T0}\nv_mov_b32 v{T1}, 0x3f80\nv_mov_b32 v{T2}, 0x3f800000")
    for j2 in range(4):
        k(f"v_cmp_eq_u32 vcc, {2*j2}, v{T0}\nv_cmp_eq_u32 s[30:31], {2*j2+1}, v{T0}\nv_cndmask_b32 v{IDN+j2}, 0, v{T1}, vcc")
        k(f"v_cndmask_b32 v{IDN+j2}, v{IDN+j2}, v{T2}, s[30:31]")
    def reads(n):
        st, ks, rs = n >> 1, n & 1, n % 3
        slot = st % R
        out = []
        for tt in range(2):
            if st < 8: out.append(f"ds_read_b128 {v(AF+rs*8+tt*4,4)}, v{VAO+(st>>2)} offset:{(st&3)*8192+ks*4096+tt*1024}")
            else: out += [f"ds_read_b32 v{AF+rs*8+tt*4+q}, v{VAE} offset:{ks*4096+tt*1024+q*64}" for q in range(4)]
        for dt in range(3):
            for hf in range(2):
                out.append(f"ds_read_b64_tr_b16 {v(BF+rs*12+dt*4+hf*2,2)}, v{VTR+3*(slot//4)+dt} offset:{(slot%4)*WS_+ks*6144+hf*3072}")
        return out
    def mf(n):
        rs = n % 3
        return [f"v_mfma_f32_16x16x32_bf16 {v(ACC+(tt*3+dt)*4,4)}, {v(AF+rs*8+tt*4,4)}, {v(BF+rs*12+dt*4,4)}, {v(ACC+(tt*3+dt)*4,4)}"
                for tt in range(2) for dt in range(3)]
    k(f"s_mul_i32 s30, s26, 6144\ns_mul_i32 s31, s27, 96\ns_add_u32 s30, s30, s31\ns_add_u32 s30, s30, {LX}\nv_mul_u32_u24 v{T0}, 192, v{VI}\nv_and_b32 v{T1}, 16, v{VL}\nv_add3_u32 v{T0}, v{T0}, v{T1}, s30")
    for q in range(6): k(f"ds_read_b128 {v(XR+q*4,4)}, v{T0} offset:{(q//3)*3072+(q%3)*32}")
    k("s_waitcnt lgkmcnt(0)")
    for q in range(6):
        k(f"v_mfma_f32_16x16x32_bf16 {v(ACC+q*4,4)}, {v(XR+q*4,4)}, {v(IDN,4)}, 0")
    k("s_barrier")
    if os.environ.get("P3S"): k("STAMP 12")
    for t in reads(0) + reads(1): k(t)
    for n in range(18):
        if n in (2, 16): k("s_waitcnt lgkmcnt(0)\ns_barrier")
        elif n in (8, 12): k(f"s_waitcnt lgkmcnt({len(reads(n + 1))})\ns_barrier")
        elif n < 16: k(f"s_waitcnt lgkmcnt({len(reads(n + 1))})")
        if os.environ.get("P3S") and n in (8, 12): k(f"STAMP {13 + (n == 12)}")
        for t in interleave(mf(n), reads(n + 2) if n + 2 < 18 else [], 0, 2): k(t)
    k("STAMP 5")
    PK = XR; ST = AF
    for dt in range(3):
        for tt in range(2):
            ac = ACC + (tt * 3 + dt) * 4
            k(f"v_cvt_pk_bf16_f32 v{PK+dt*4+tt*2}, v{ac}, v{ac+1}\nv_cvt_pk_bf16_f32 v{PK+dt*4+tt*2+1}, v{ac+2}, v{ac+3}")
    for dt in range(3):
        for tt in range(2):
            for h2 in range(2):
                p = PK + dt * 4 + tt * 2 + h2
                x0 = ACC + (tt * 3 + dt) * 4 + 2 * h2
                k(f"v_lshlrev_b32 v{x0}, 16, v{p}\nv_and_b32 v{x0+1}, 0xffff0000, v{p}")
                sm, sq_ = ST + tt * 4 + 2 * h2, ST + 8 + tt * 4 + 2 * h2
                if dt == 0: k(f"v_pk_mul_f32 {v(sq_,2)}, {v(x0,2)}, {v(x0,2)}")
                else: k(f"v_pk_fma_f32 {v(sq_,2)}, {v(x0,2)}, {v(x0,2)}, {v(sq_,2)}")
                if dt == 1: k(f"v_pk_add_f32 {v(sm,2)}, {v(x0-4,2)}, {v(x0,2)}")
                if dt == 2: k(f"v_pk_add_f32 {v(sm,2)}, {v(sm,2)}, {v(x0,2)}")
    for sh in (8, 4, 2, 1):
        for r in range(16):
            k(f"v_add_f32_dpp v{ST+r}, v{ST+r}, v{ST+r} row_ror:{sh} row_mask:0xf bank_mask:0xf")
    SG = BF + 12
    for r in range(8): k(f"v_mov_b32 v{SG+2*r}, v{ST+r}\nv_or_b32 v{SG+2*r+1}, 0x80000000, v{ST+8+r}")
    k(f"s_lshl_b32 s31, s24, 1\ns_add_u32 s31, s31, s26")
    k(f"s_lshl_b32 s33, s31, 8\ns_add_u32 s33, s33, {WS_ST}")
    k(f"s_lshl_b32 s30, s25, 1\ns_add_u32 s30, s30, s27\ns_lshl_b32 s30, s30, 14\ns_add_u32 s30, s30, s33")
    k(f"v_cmp_eq_u32 s[38:39], 1, v{VI}\nv_cmp_eq_u32 s[40:41], 2, v{VI}\nv_cmp_eq_u32 s[42:43], 3, v{VI}\nv_cmp_gt_u32 vcc, 4, v{VI}")
    k(f"v_lshrrev_b32 v{T0}, 1, v{VI}\nv_lshlrev_b32 v{T0}, 7, v{T0}\nv_lshl_add_u32 v{T0}, v{VG}, 5, v{T0}\nv_and_b32 v{T1}, 1, v{VI}\nv_lshl_add_u32 v{T0}, v{T1}, 4, v{T0}")
    for q in range(1, 4):
        for r in range(4): k(f"v_cndmask_b32 v{SG+r}, v{SG+r}, v{SG+4*q+r}, s[{36+2*q}:{37+2*q}]")
    k(f"s_and_saveexec_b64 s[38:39], vcc\nbuffer_store_dwordx4 {v(SG,4)}, v{T0}, s[20:23], s30 offen{WT}\ns_mov_b64 exec, s[38:39]")
    VH = VTR
    k(f"v_lshlrev_b32 v{VH}, 4, v{VL}")
    k(f"s_mul_i32 s30, s25, 6\ns_mul_i32 s32, s27, 3\ns_add_u32 s30, s30, s32\ns_mul_i32 s30, s30, {PS}")
    k(f"s_lshl_b32 s32, s31, 10\ns_add_u32 s30, s30, s32\ns_add_u32 s32, s30, {WS_HN}\ns_add_u32 s30, s30, {WS_H}")
    k("s_mov_b32 s35, s30")
    VS = VTR + 1
    P = BF
    k(f"v_lshrrev_b32 v{T0}, 5, v{VL}\nv_mul_u32_u24 v{VS}, {6*16384}, v{T0}\nv_and_b32 v{T0}, 31, v{VL}\nv_lshl_add_u32 v{VS}, v{T0}, 3, v{VS}")
    for p in range(6): k(f"s_add_u32 s{40+p}, s33, {p*16384}")
    POLL = k.lab("POLL"); GO = k.lab("GO")
    k(f"s_mov_b32 s37, 0x40000" + ("" if 'nosw' in XM else "\ns_waitcnt vmcnt(0)") + f"\n{POLL}:")
    for p in range(6):
        k(f"buffer_load_dwordx2 {v(P+2*p,2)}, v{VS}, s[20:23], s{40+p} offen sc0 sc1")
    k("s_waitcnt vmcnt(0)")
    k(f"v_and_b32 v{T1}, v{P+1}, v{P+3}\nv_and_b32 v{T2}, v{P+5}, v{P+7}\nv_and_b32 v{T3}, v{P+9}, v{P+11}\nv_and_b32 v{T1}, v{T1}, v{T2}\nv_and_b32 v{T1}, v{T1}, v{T3}")
    k(f"v_cmp_le_i32 vcc, 0, v{T1}\ns_sub_u32 s37, s37, 1\ns_cmp_eq_u32 s37, 0\ns_cbranch_scc1 {GO}\ns_cbranch_vccz {GO}\ns_sleep 1\ns_branch {POLL}\n{GO}:")
    if os.environ.get("P3S"): k("STAMP 15")
    for dt in range(3):
        k(f"buffer_store_dwordx4 {v(PK+dt*4,4)}, v{VH}, s[20:23], s35 offen{WT}\ns_add_u32 s35, s35, {PS}")
    for p in range(1, 6):
        k(f"v_add_f32 v{P}, v{P}, v{P+2*p}\nv_add_f32 v{P+1}, v{P+1}, v{P+2*p+1}")
    k(f"v_mov_b32 v{P+2}, v{P}\nv_mov_b32 v{P+3}, v{P+1}")
    k(f"v_permlane32_swap_b32 v{P}, v{P+2}\nv_permlane32_swap_b32 v{P+1}, v{P+3}")
    k(f"v_add_f32 v{P}, v{P}, v{P+2}\nv_add_f32 v{P+1}, v{P+1}, v{P+3}")
    k(f"s_mov_b32 s34, {f32(1.0/576)}")
    mn, sq = P, P + 1
    k(f"v_mul_f32 v{mn}, s34, v{mn}\nv_mul_f32 v{sq}, s34, -v{sq}\nv_fma_f32 v{sq}, -v{mn}, v{mn}, v{sq}\nv_max_f32 v{sq}, 0, v{sq}")
    k(f"v_add_f32 v{P+2}, {f32(1e-5)}, v{sq}\nv_rsq_f32 v{P+2}, v{P+2}")
    k(f"v_mul_f32 v{sq}, v{sq}, v{P+2}\nv_mul_f32 v{sq}, v{sq}, v{P+2}\nv_add_f32 v{sq}, {f32(1e-5)}, v{sq}\nv_rsq_f32 v{sq}, v{sq}")
    k(f"v_mul_f32 v{P+2}, v{P+2}, v{sq}\nv_mul_f32 v{P+3}, -v{mn}, v{P+2}")
    k(f"s_lshl_b32 s33, s28, 8\ns_add_u32 s33, s33, {LAB}\nv_lshlrev_b32 v{T0}, 3, v{T0}\nv_add_u32 v{T0}, s33, v{T0}")
    k(f"ds_write_b64 v{T0}, {v(P+2,2)}")
    k(f"v_lshlrev_b32 v{T0}, 5, v{VG}\nv_add_u32 v{T0}, s33, v{T0}\ns_waitcnt lgkmcnt(0)")
    AB = ST
    for q in range(4):
        k(f"ds_read_b128 {v(AB+4*q,4)}, v{T0} offset:{(q>>1)*128+(q&1)*16}")
    k(f"s_lshl_b32 s30, s25, 12\ns_lshl_b32 s31, s24, 7\ns_add_u32 s30, s30, s31\ns_add_u32 s30, s30, {F3}\nv_mov_b32 v{T1}, 0\nv_mov_b32 v{T2}, 1")
    k("s_waitcnt lgkmcnt(0)")
    for dt in range(3):
        for tt in range(2):
            x0 = ACC + (tt * 3 + dt) * 4
            for r in range(4): k(f"v_fma_f32 v{x0+r}, v{x0+r}, v{AB+tt*8+2*r}, v{AB+tt*8+2*r+1}")
            k(f"v_cvt_pk_bf16_f32 v{PK+12+dt*4+tt*2}, v{x0}, v{x0+1}\nv_cvt_pk_bf16_f32 v{PK+12+dt*4+tt*2+1}, v{x0+2}, v{x0+3}")
        k(f"buffer_store_dwordx4 {v(PK+12+dt*4,4)}, v{VH}, s[20:23], s32 offen{WT}\ns_add_u32 s32, s32, {PS}")
    k("s_waitcnt vmcnt(0)")
    last_wave_flag(k, T1, T2, T3, LCNT + 4, 20, 30)
    k(f"s_branch {NXT}")
    k(f"{PROD}:\ns_and_b32 s29, s28, 1\ns_cmp_ge_u32 s28, 6\ns_cbranch_scc1 {PO}")
    VWD, VWE = 10, 16
    for q in range(6):
        k(f"v_add_u32 v{T0}, {q*64}, v{VL}")
        k(f"v_mul_u32_u24 v{T1}, 5462, v{T0}\nv_lshrrev_b32 v{T1}, 16, v{T1}")
        k(f"v_mul_u32_u24 v{T2}, 12, v{T1}\nv_sub_u32 v{T0}, v{T0}, v{T2}")
        k(f"v_bfe_u32 v{T2}, v{T1}, 2, 1\nv_lshlrev_b32 v{T2}, 1, v{T2}\nv_xor_b32 v{T0}, v{T0}, v{T2}\nv_lshlrev_b32 v{VWE+q}, 4, v{T0}")
        k(f"v_and_b32 v{T2}, 7, v{T1}")
        k(f"v_bfe_u32 v{T3}, v{T1}, 3, 1\nv_mad_u32_u24 v{T2}, v{T3}, 20, v{T2}")
        k(f"v_bfe_u32 v{T3}, v{T1}, 4, 1\nv_lshl_add_u32 v{T2}, v{T3}, 3, v{T2}")
        k(f"v_mul_u32_u24 v{T2}, 1152, v{T2}\nv_add_u32 v{VWD+q}, v{T2}, v{VWE+q}")
    k(f"s_mul_i32 s33, s25, 192\ns_mul_i32 s30, s29, {8*36*1152}\ns_add_u32 s39, s33, s30\ns_mul_i32 s30, s29, {36*1152}\ns_add_u32 s33, s33, s30")
    k(f"s_mul_i32 s35, s29, 6144\ns_add_u32 s35, s35, {WB}")
    srd(k, 16, PWO, D_ * D_ * 2)
    def issue_w(st):
        for q in range(6): k(dma(35, (st % R) * WS_ + q * 1024, (VWD if st < 8 else VWE) + q, 16, 33 if st < 8 else 39))
        k(f"s_add_u32 s33, s33, {72*1152}")
    for st in range(7): issue_w(st)
    for q in range(6):
        k(f"v_add_u32 v{T0}, {q*64}, v{VL}\nv_mul_u32_u24 v{T1}, 5462, v{T0}\nv_lshrrev_b32 v{T1}, 16, v{T1}\n"
          f"v_bfe_u32 v{T2}, v{T1}, 2, 2\nv_lshlrev_b32 v{T2}, 1, v{T2}\nv_bfe_u32 v{T3}, v{T1}, 4, 1\nv_add_u32 v{T2}, v{T2}, v{T3}\nv_mul_u32_u24 v{T2}, 36, v{T2}\n"
          f"v_and_b32 v{T3}, 3, v{T1}\nv_add3_u32 v{T2}, v{T2}, v{T3}, 16\nv_mul_u32_u24 v{T2}, 1152, v{T2}\nv_add_u32 v{VWE+q}, v{T2}, v{VWE+q}")
    k("s_waitcnt vmcnt(0)\ns_barrier\ns_barrier")
    for st in range(7, 9): issue_w(st)
    k(f"s_barrier\ns_waitcnt vmcnt(0)\ns_barrier\ns_barrier\ns_branch {NXT}")
    k(f"{PO}:")
    VO = 10
    k(f"v_lshrrev_b32 v{T0}, 1, v{VG}\nv_mul_u32_u24 v{T0}, {PS}, v{T0}\nv_and_b32 v{T1}, 1, v{VG}\nv_lshl_add_u32 v{T0}, v{T1}, 9, v{T0}\nv_lshl_add_u32 v{T0}, v{VI}, 4, v{T0}")
    k(f"v_lshrrev_b32 v{T1}, 2, v{VL}\nv_lshlrev_b32 v{T1}, 13, v{T1}\nv_and_b32 v{T2}, 3, v{VL}\nv_lshl_add_u32 v{T1}, v{T2}, 4, v{T1}")
    for q in range(4): k(f"v_add_u32 v{VO+q}, {(q>>1)*1024+(q&1)*256}, v{T0}\nv_add_u32 v{VO+4+q}, {q*64}, v{T1}")
    k(f"s_lshl_b32 s32, s24, 11\ns_mul_i32 s30, s29, {2*PS}\ns_add_u32 s32, s32, s30\ns_add_u32 s32, s32, {WS_OM}\ns_lshl_b32 s30, s29, 17")
    k(f"s_lshl_b32 s38, s24, 8\ns_add_u32 s38, s38, s30\ns_add_u32 s38, s38, {WS_O8}\ns_lshl_b32 s34, s29, 12")
    k(f"s_lshr_b32 s30, s24, 1\ns_lshl_b32 s30, s30, 11\ns_add_u32 s30, s30, {F2}\nv_lshlrev_b32 v{T0}, 7, v{VL}")
    W7, WD = k.lab("W7"), k.lab("WD")
    k(f"s_cmp_eq_u32 s28, 7\ns_cbranch_scc1 {W7}\n" + ("" if os.environ.get("APOLL") == "2" else "s_waitcnt vmcnt(0)\n") + "s_mov_b64 exec, 0xffff")
    poll(k, T0, T1, 1, 20, 30)
    k("s_mov_b64 exec, -1")
    lds_signal(k, T0, LCNT + 20)
    k(f"s_branch {WD}\n{W7}:")
    wait_local(k, T0, LCNT + 20, n=1)
    k(f"{WD}:\nSTAMP 5")
    def issue_o(st):
        for q in range(4): k(dma(34, st * 8192 + q * 1024, VO + q + (4 if st == 8 else 0), 20, 32 if st < 8 else 38, SC))
        k(f"s_add_u32 s32, s32, {4*PS}")
    for st in range(5): issue_o(st)
    k("s_waitcnt vmcnt(12)\ns_barrier")
    for st in range(5, 9): issue_o(st)
    k(f"s_waitcnt vmcnt(16)\ns_barrier\ns_waitcnt vmcnt(8)\ns_barrier\ns_waitcnt vmcnt(0)\ns_barrier\ns_barrier\ns_branch {NXT}")
    k(f"{PF}:\ns_sub_u32 s29, s2, 192")
    if 'early3' in XM:
        NE = k.lab("NE")
        k(f"s_cmp_lt_u32 s11, 27\ns_cbranch_scc1 {NE}")
        w1slow(k)
        k(f"{NE}:")
    pf(k, "PF3", 29, 64, 512, 10)
    r1 = int(os.environ.get("L2W1", 0))
    if r1:
        k("s_sub_u32 s29, s11, 24")
        w1_rows(k, 29, r1 // 8, 0, 0)
    k(f"s_branch {NXT}")

def p4(k, ENT, NXT):
    STG = 28672; R = int(os.environ.get('R4', 5)); N = 32; NS = (R + 1) // 2
    PROD = k.lab("P4PROD"); PF = k.lab("P4PF"); PA = k.lab("P4PA")
    k(f"{ENT}:\nSTAMP 6")
    k(f"s_cmp_ge_u32 s11, 27\ns_cbranch_scc1 {PF}")
    k("s_mul_i32 s24, s11, 10923\ns_lshr_b32 s24, s24, 16\ns_mul_i32 s25, s24, 6\ns_sub_u32 s25, s11, s25")
    k("s_and_b32 s29, s10, 1\ns_mul_i32 s30, s29, 5\ns_add_u32 s24, s24, s30")
    k("s_mul_i32 s30, s29, 3\ns_add_u32 s30, s30, s25")
    k("s_cmp_ge_u32 s11, 24\ns_cselect_b32 s24, 4, s24\ns_cselect_b32 s25, s30, s25\ns_mov_b32 s47, s24")
    k("s_lshr_b32 s30, s10, 1\ns_mul_i32 s30, s30, 9\ns_add_u32 s24, s24, s30")
    ids16(k)
    k(f"s_cmp_ge_u32 s28, 4\ns_cbranch_scc1 {PROD}")
    k("s_lshr_b32 s26, s28, 1\ns_and_b32 s27, s28, 1")
    VTR, VHR, B1, ACC, WF, HF = 10, 22, 26, 36, 84, 116
    srd(k, 16, PB1, F_ * 2)
    k(f"v_lshlrev_b32 v{T0}, 3, v{VG}\ns_lshl_b32 s30, s24, 8\ns_lshl_b32 s31, s26, 7\ns_add_u32 s30, s30, s31")
    for f4 in range(4):
        k(f"buffer_load_dwordx2 {v(B1+2*f4,2)}, v{T0}, s[16:19], s30 offen offset:{f4*32}")
    k(f"v_bfe_u32 v{T0}, v{VL}, 2, 2\nv_lshl_add_u32 v{T0}, v{VG}, 2, v{T0}")
    k(f"v_and_b32 v{T1}, 7, v{T0}\nv_lshlrev_b32 v{T0}, 8, v{T0}\nv_and_b32 v{T2}, 3, v{VL}\nv_lshl_add_u32 v{T0}, v{T2}, 3, v{T0}")
    k("s_lshl_b32 s30, s26, 2")
    for f4 in range(4):
        k(f"s_add_u32 s31, s30, {f4}\nv_xor_b32 v{T2}, s31, v{T1}\nv_lshl_add_u32 v{VTR+f4}, v{T2}, 5, v{T0}")
        for q in range(1, NS): k(f"v_add_u32 v{VTR+4*q+f4}, {2*q*STG}, v{VTR+f4}")
    k(f"s_mul_i32 s30, s27, 3072\ns_add_u32 s30, s30, 16384\nv_lshlrev_b32 v{VHR}, 4, v{VL}\nv_add_u32 v{VHR}, s30, v{VHR}")
    for q in range(1, NS): k(f"v_add_u32 v{VHR+q}, {2*q*STG}, v{VHR}")
    k(f"s_mul_i32 s31, s25, 6\ns_mul_i32 s38, s27, 3\ns_add_u32 s31, s31, s38\ns_mul_i32 s31, s31, {144*1024}")
    k(f"s_lshl_b32 s38, s24, 12\ns_add_u32 s31, s31, s38\ns_lshl_b32 s38, s26, 11\ns_add_u32 s31, s31, s38\ns_add_u32 s40, s31, {WS_U}")
    k(f"s_lshr_b32 s30, s10, 1\ns_mul_i32 s30, s30, 6\ns_add_u32 s30, s30, s25\ns_mul_i32 s30, s30, 9\ns_add_u32 s30, s30, s47\ns_lshl_b32 s30, s30, 7\ns_add_u32 s41, s30, {F4}")
    k("s_waitcnt vmcnt(0)")
    for f4 in range(4):
        for dt in range(3):
            for h2 in range(2):
                k(f"v_lshlrev_b32 v{ACC+(f4*3+dt)*4+2*h2}, 16, v{B1+f4*2+h2}\nv_and_b32 v{ACC+(f4*3+dt)*4+2*h2+1}, 0xffff0000, v{B1+f4*2+h2}")
    def reads(st, slot, ks, rs):
        hi = slot >> 1; off = (slot & 1) * STG
        out = []
        for f4 in range(4):
            for hf in range(2):
                out.append(f"ds_read_b64_tr_b16 {v(WF+rs*16+f4*4+hf*2,2)}, v{VTR+4*hi+f4} offset:{off+ks*8192+hf*4096}")
            if f4 < 3:
                out.append(f"ds_read_b128 {v(HF+rs*12+f4*4,4)}, v{VHR+hi} offset:{off+ks*6144+f4*1024}")
        return out
    def mf(st, ks, rs):
        return [f"v_mfma_f32_16x16x32_bf16 {v(ACC+(f4*3+dt)*4,4)}, {v(WF+rs*16+f4*4,4)}, {v(HF+rs*12+dt*4,4)}, {v(ACC+(f4*3+dt)*4,4)}"
                for f4 in range(4) for dt in range(3)]
    consumer_loop(k, N, R, reads, mf, per=1, stamp0=None if (os.environ.get('P3S') or os.environ.get('P2S')) else 14)
    k("STAMP 7")
    c1 = -2.0 * math.sqrt(2.0 / math.pi) * math.log2(math.e)
    c2 = c1 * 0.044715
    CC = VTR
    k(f"v_mov_b32 v{CC}, {f32(c2)}\nv_mov_b32 v{CC+1}, {f32(c1)}")
    k(f"v_lshlrev_b32 v{T0}, 4, v{VL}")
    TT = WF + 16; PKD = HF
    for dt in range(3):
        for pr in range(2):
            xb = [ACC + ((2 * pr + h) * 3 + dt) * 4 for h in range(2)]
            xs = [xb[h] + r for h in range(2) for r in range(4)]
            for h in range(2):
                for h2 in range(2): k(f"v_pk_mul_f32 {v(TT+4*h+2*h2,2)}, {v(xb[h]+2*h2,2)}, {v(xb[h]+2*h2,2)}")
            for n in range(4): k(f"v_pk_fma_f32 {v(TT+2*n,2)}, {v(TT+2*n,2)}, {v(CC,2)}, {v(CC,2)} op_sel:[0,0,1] op_sel_hi:[1,0,1]")
            for h in range(2):
                for h2 in range(2): k(f"v_pk_mul_f32 {v(TT+4*h+2*h2,2)}, {v(TT+4*h+2*h2,2)}, {v(xb[h]+2*h2,2)}")
            for n in range(8): k(f"v_exp_f32 v{TT+n}, v{TT+n}")
            for n in range(4): k(f"v_pk_add_f32 {v(TT+2*n,2)}, {v(TT+2*n,2)}, 1.0 op_sel_hi:[1,0]")
            for n in range(8): k(f"v_rcp_f32 v{TT+n}, v{TT+n}")
            for h in range(2):
                for h2 in range(2): k(f"v_pk_mul_f32 {v(xb[h]+2*h2,2)}, {v(xb[h]+2*h2,2)}, {v(TT+4*h+2*h2,2)}")
            o = PKD + (dt * 2 + pr) * 4
            for n in range(4): k(f"v_cvt_pk_bf16_f32 v{o+n}, v{xs[2*n]}, v{xs[2*n+1]}")
            k(f"buffer_store_dwordx4 {v(o,4)}, v{T0}, s[20:23], s40 offen offset:{pr*1024}{WT}")
        k(f"s_add_u32 s40, s40, {144*1024}")
    k(f"v_mov_b32 v{T1}, 0\nv_mov_b32 v{T2}, 1\ns_waitcnt vmcnt(0)")
    last_wave_flag(k, T1, T2, T3, LCNT + 8, 20, 41)
    k(f"s_branch {NXT}")
    k(f"{PROD}:\ns_and_b32 s26, s28, 1\ns_cmp_ge_u32 s28, 6\ns_cbranch_scc1 {PA}")
    VD = 10
    for q in range(2):
        k(f"v_add_u32 v{T0}, {4*q}, v{VG}")
        k(f"v_lshlrev_b32 v{T1}, 1, v{T0}\nv_xor_b32 v{T1}, v{T1}, v{VI}\nv_lshlrev_b32 v{T1}, 4, v{T1}")
        k(f"v_mul_u32_u24 v{T0}, 9216, v{T0}\nv_add_u32 v{VD+q}, v{T0}, v{T1}")
    for q in range(2, 8): k(f"v_add_u32 v{VD+q}, {8*9216}, v{VD+q-2}")
    k(f"s_lshl_b32 s32, s24, 8\ns_mul_i32 s30, s26, {32*9216}\ns_add_u32 s32, s32, s30\ns_lshl_b32 s34, s26, 13")
    srd(k, 12, PW1, S_ * F_ * 2)
    if 'g4' in XM:
        NG = k.lab("NG")
        k(f"s_cmp_ge_u32 s2, 192\ns_cbranch_scc1 {NG}")
        wait_local(k, 20, LCNT + 4, n=4)
        k(f"{NG}:")
    F4N = int(os.environ.get("FIRST4", 2))
    SPF = os.environ.get("SPF", "")
    def issue_w1(st, slot):
        out = [dma(34, slot * STG + q * 1024, VD + q, 12, 32) for q in range(8)] + [f"s_add_u32 s32, s32, {64*9216}"]
        if st == F4N - 1 and SPF:
            a_, b_ = [int(t) * (S_ * F_ * 2 // 128) for t in SPF.split(":")]
            per = (b_ - a_) // 432 // 64
            t = f"s_lshl_b32 s30, s2, 1\ns_add_u32 s30, s30, s26\ns_mul_i32 s30, s30, {per*64}\ns_add_u32 s30, s30, {a_}\ns_add_u32 s60, s{PW2}, s30\ns_addc_u32 s61, s{PW2+1}, 0"
            for i in range(per): t += f"\ns_load_dword s62, s[60:61], {i*64}"
            out.append(t)
        return out
    producer_loop(k, N, R, 8, issue_w1, NXT, first=F4N)
    k(f"{PA}:")
    k(f"v_lshlrev_b32 v{VD}, 4, v{VL}")
    for q in range(1, 6): k(f"v_add_u32 v{VD+q}, {PS}, v{VD+q-1}")
    k(f"s_mul_i32 s33, s25, {6*PS}\ns_lshl_b32 s30, s26, 10\ns_add_u32 s33, s33, s30\ns_add_u32 s33, s33, {WS_HN}")
    k("s_mul_i32 s35, s26, 6144\ns_add_u32 s35, s35, 16384")
    k(f"s_lshl_b32 s30, s25, 12\ns_add_u32 s30, s30, {F3}\nv_lshlrev_b32 v{T0}, 7, v{VL}")
    W7, WD = k.lab("W7"), k.lab("WD")
    k(f"s_cmp_eq_u32 s28, 7\ns_cbranch_scc1 {W7}")
    if 'nogate' not in XM:
        NG, NG2 = k.lab("NG"), k.lab("NG")
        k(f"s_cmp_ge_u32 s2, 192\ns_cbranch_scc1 {NG}")
        wait_local(k, 20, LCNT + 4)
        k(f"s_branch {NG2}\n{NG}:\ns_mov_b64 exec, 1")
        poll(k, T0, 20, 1, 20, 30, sleep=8)
        k(f"s_mov_b64 exec, -1\n{NG2}:")
    k("s_mov_b32 exec_hi, 0")
    poll(k, T0, 20, 1, 20, 30)
    k("s_mov_b32 exec_hi, -1")
    lds_signal(k, 20, LCNT + 24)
    k(f"s_branch {WD}\n{W7}:")
    wait_local(k, 20, LCNT + 24, n=1)
    k(f"{WD}:\nSTAMP 7")
    producer_loop(k, N, R, 6, lambda st, slot: [dma(35, slot * STG + q * 1024, VD + q, 20, 33, SC) for q in range(6)] + ["s_add_u32 s33, s33, 2048"], NXT)
    k(f"{PF}:\ns_sub_u32 s29, s2, 216")
    pf(k, "PF4", 29, 40, 512, 10)
    if 'early4' in XM: w1slow(k)
    if 'nopoison' not in XM:
        srd(k, 56, PDBG, 256)
        k(f"s_mul_i32 s30, s29, 196608\ns_add_u32 s30, s30, {WS_P}\nv_lshlrev_b32 v10, 4, v0\nv_mov_b32 v12, -1\nv_mov_b32 v13, -1\nv_mov_b32 v14, -1\nv_mov_b32 v15, -1")
        for i in range(24): k(f"buffer_store_dwordx4 v[12:15], v10, s[20:23], s30 offen{WT}\ns_add_u32 s30, s30, 8192")
        NZ = k.lab("NZ")
        k(f"v_mov_b32 v16, 4\nv_mov_b32 v17, 1\ns_waitcnt vmcnt(0)\ns_barrier\ns_cmp_lg_u32 s28, 0\ns_cbranch_scc1 {NZ}")
        k(f"s_mov_b64 exec, 1\nbuffer_atomic_add v17, v16, s[56:59], 0 offen sc1\ns_mov_b64 exec, -1\n{NZ}:")
    if 'noslow' not in XM:
        def gated(flag_off, lines_code):
            NP = k.lab("NP")
            k(f"s_cmp_lg_u32 s28, 0\ns_cbranch_scc1 {NP}\ns_mov_b32 s30, {flag_off}\nv_mov_b32 v12, 0\ns_mov_b64 exec, 1")
            poll(k, 12, 13, 1, 20, 30, sleep=8)
            k(f"s_mov_b64 exec, -1\n{NP}:\ns_barrier")
            lines_code()
        def w2slow():
            srd(k, 52, PW2, S_ * F_ * 2)
            k(f"s_lshr_b32 s60, s10, 1\ns_mul_i32 s60, s60, {1152*4096}\ns_and_b32 s61, s10, 1\ns_lshl_b32 s61, s61, 11\ns_add_u32 s60, s60, s61\ns_add_u32 s60, s60, 384")
            k(f"s_sub_u32 s62, s11, 27\nv_lshrrev_b32 v10, 1, v0\nv_mul_u32_u24 v10, 5, v10\nv_add_u32 v10, s62, v10\nv_lshlrev_b32 v10, 12, v10\nv_and_b32 v11, 1, v0\nv_lshl_add_u32 v10, v11, 10, v10")
            k(f"v_cmp_gt_u32 vcc, {2*231}, v0\nv_mov_b32 v11, 0x7ff00000\nv_cndmask_b32 v10, v11, v10, vcc")
            k(f"buffer_load_dword v{DUMMY}, v10, s[52:55], s60 offen")
        gated(F3, lambda: w1slow(k))
        if 'now2' not in XM: gated(F4 + 128 * 2, w2slow)
    if os.environ.get("JIT4"):
        s0, sw = [int(t) for t in os.environ["JIT4"].split(",")]
        k(f"s_mov_b32 s30, {F3}\nv_lshlrev_b32 v12, 7, v0\nv_cmp_gt_u32 vcc, 192, v0\ns_and_saveexec_b64 s[62:63], vcc")
        NP = k.lab("NP")
        k(f"s_cbranch_execz {NP}")
        poll(k, 12, 13, 1, 20, 30)
        k(f"{NP}:\ns_mov_b64 exec, -1\ns_barrier")
        w1_addr(k, 10)
        k("s_sub_u32 s29, s11, 27")
        k(f"v_lshrrev_b32 v12, 4, v0\nv_mul_u32_u24 v12, {PS}, v12\nv_and_b32 v13, 15, v0\nv_lshl_add_u32 v12, v13, 7, v12")
        k(f"v_add_u32 v13, {32*PS}, v12\nv_mov_b32 v14, 0x7ff00000\nv_cmp_gt_u32 vcc, 64, v0\nv_cndmask_b32 v13, v14, v13, vcc")
        k(f"s_lshl_b32 s61, s29, 11\ns_add_u32 s61, s61, {WS_HN + s0*2048}\ns_mul_i32 s62, s29, {64*9216}\ns_add_u32 s60, s60, s62\ns_add_u32 s60, s60, {s0*64*9216}")
        for st in range(s0, 32, 5):
            k(f"buffer_load_dword v{DUMMY}, v12, s[20:23], s61 offen\nbuffer_load_dword v{DUMMY}, v13, s[20:23], s61 offen\ns_add_u32 s61, s61, {5*2048}")
            if st + 4 >= sw:
                k(f"buffer_load_dword v{DUMMY}, v10, s[52:55], s60 offen\ns_add_u32 s62, s60, {32*9216}\nbuffer_load_dword v{DUMMY}, v10, s[52:55], s62 offen")
            k(f"s_add_u32 s60, s60, {5*64*9216}")
    k(f"s_branch {NXT}")

def p5(k, ENT):
    STG = 34816; R = 4; N = 18
    PROD = k.lab("P5PROD"); PA = k.lab("P5PA"); FIN = k.lab("FIN")
    k(f"{ENT}:\nSTAMP 8")
    k("s_lshr_b32 s26, s10, 1\ns_and_b32 s25, s11, 3\ns_lshr_b32 s24, s11, 2")
    if 'nomap5' not in XM:
        k("s_sub_u32 s30, s10, 5\ns_cmp_lt_u32 s30, 2\ns_cselect_b32 s30, 7, 6\ns_add_u32 s24, s24, s30\ns_and_b32 s24, s24, 7")
    k("s_and_b32 s29, s10, 1\ns_lshl_b32 s29, s29, 3\ns_add_u32 s24, s24, s29\ns_and_b32 s29, s26, 1")
    ids16(k)
    k(f"s_cmp_ge_u32 s28, 4\ns_cbranch_scc1 {PROD}")
    VTR = 10; VUR = VTR + 2 * R; B2 = VUR + R
    IDN, HR, UF = 24, 28, 48
    WF = UF + 72; ACC = WF + 16
    srd(k, 16, PB2, S_ * 2)
    srd(k, 40, POUT, S_ * D_ * 2)
    k(f"s_lshl_b32 s30, s24, 8\ns_lshl_b32 s31, s28, 6\ns_add_u32 s30, s30, s31\ns_lshl_b32 s31, s29, 5\ns_add_u32 s30, s30, s31\nv_lshlrev_b32 v{T0}, 1, v{VI}")
    k(f"buffer_load_ushort v{B2}, v{T0}, s[16:19], s30 offen")
    k(f"v_lshlrev_b32 v{T3}, 4, v{VL}")
    k(f"s_mul_i32 s49, s25, {9*PS}\ns_lshl_b32 s32, s24, 12\ns_add_u32 s49, s49, s32\ns_lshl_b32 s32, s28, 10\ns_add_u32 s49, s49, s32\ns_add_u32 s49, s49, {WS_H}")
    k(f"s_lshr_b32 s32, s26, 1\ns_mul_i32 s32, s32, {5*PS}\ns_add_u32 s49, s49, s32")
    k(f"v_bfe_u32 v{T0}, v{VL}, 2, 2\nv_lshl_add_u32 v{T0}, v{VG}, 2, v{T0}")
    k(f"v_and_b32 v{T1}, 7, v{T0}\nv_lshlrev_b32 v{T0}, 8, v{T0}\nv_and_b32 v{T2}, 3, v{VL}\nv_lshl_add_u32 v{T0}, v{T2}, 3, v{T0}")
    k("s_lshl_b32 s30, s28, 1\ns_add_u32 s30, s30, s29")
    for l in range(2):
        k(f"s_xor_b32 s31, s30, {l}\nv_xor_b32 v{T2}, s31, v{T1}\nv_lshl_add_u32 v{VTR+l}, v{T2}, 5, v{T0}")
        for sl in range(1, R): k(f"v_add_u32 v{VTR+2*sl+l}, {sl*STG}, v{VTR+l}")
    k(f"v_lshlrev_b32 v{VUR}, 4, v{VL}\nv_add_u32 v{VUR}, 16384, v{VUR}")
    for sl in range(1, R): k(f"v_add_u32 v{VUR+sl}, {sl*STG}, v{VUR}")
    k(f"v_lshlrev_b32 v{T0}, 2, v{VG}\nv_sub_u32 v{T0}, v{VI}, v{T0}\nv_mov_b32 v{T1}, 0x3f80\nv_mov_b32 v{T2}, 0x3f800000")
    k("s_cmp_eq_u32 s29, 0\ns_cselect_b64 s[38:39], -1, 0")
    for j2 in range(2):
        k(f"v_cmp_eq_u32 vcc, {2*j2}, v{T0}\nv_cndmask_b32 v{UF}, 0, v{T1}, vcc")
        k(f"v_cmp_eq_u32 vcc, {2*j2+1}, v{T0}\nv_cndmask_b32 v{UF}, v{UF}, v{T2}, vcc")
        k(f"v_cndmask_b32 v{IDN+j2}, 0, v{UF}, s[38:39]\nv_cndmask_b32 v{IDN+2+j2}, v{UF}, 0, s[38:39]")
    for r in range(72): k(f"v_mov_b32 v{ACC+r}, 0")
    k(f"s_lshl_b32 s32, s24, 2\ns_add_u32 s32, s32, s25")
    k(f"s_mul_i32 s33, s32, {48*2560}\ns_mul_i32 s30, s28, 2560\ns_add_u32 s33, s33, s30\ns_add_u32 s33, s33, {PB}")
    for x in (1, 2, 3):
        k(f"s_xor_b32 s30, s26, {x}\ns_sub_u32 s31, s26, s30\ns_sub_u32 s31, s31, 1\ns_and_b32 s31, s31, 3")
        k(f"s_mul_i32 s30, s30, 3\ns_add_u32 s30, s30, s31\ns_mul_i32 s30, s30, {4*2560}\ns_add_u32 s{44+x}, s30, s33")
    k(f"s_mul_i32 s30, s26, {12*2560}\ns_add_u32 s33, s33, s30")
    k(f"s_lshl_b32 s35, s32, 11\ns_lshl_b32 s30, s28, 9\ns_add_u32 s35, s35, s30\ns_add_u32 s35, s35, {F5}\ns_lshl_b32 s30, s26, 7\ns_add_u32 s34, s30, s35")
    k(f"s_lshl_b32 s48, s24, 7\ns_lshl_b32 s31, s28, 5\ns_add_u32 s48, s48, s31\ns_lshl_b32 s31, s29, 4\ns_add_u32 s48, s48, s31\ns_mul_i32 s48, s48, 1152\ns_mul_i32 s31, s25, 288\ns_add_u32 s48, s48, s31")
    POIS = 'nopoison' not in XM
    PZ = ACC + 73
    srd(k, 56, PDBG, 256)
    k(f"v_mov_b32 v{PZ-1}, 4")
    firstr = [True]
    def reads(st, slot, ks, rs):
        out = []
        for l in range(2):
            for hf in range(2):
                out.append(f"ds_read_b64_tr_b16 {v(WF+rs*8+l*4+hf*2,2)}, v{VTR+2*slot+l} offset:{ks*8192+hf*4096}")
        for d in range(9):
            out.append(f"ds_read_b128 {v(UF+rs*36+d*4,4)}, v{VUR+slot} offset:{ks*9216+d*1024}")
        if firstr[0]:
            firstr[0] = False
            if POIS: out.append(f"buffer_load_dword v{PZ}, v{PZ-1}, s[56:59], 0 offen sc0 sc1")
            for d in range(5): out.append(f"buffer_load_dwordx4 {v(HR+4*d,4)}, v{T3}, s[20:23], s49 offen{SC}\ns_add_u32 s49, s49, {PS}")
        return out
    def mf(st, ks, rs):
        return [f"v_mfma_f32_16x16x32_bf16 {v(ACC+(d*2+l)*4,4)}, {v(UF+rs*36+d*4,4)}, {v(WF+rs*8+l*4,4)}, {v(ACC+(d*2+l)*4,4)}"
                for d in range(9) for l in range(2)]
    consumer_loop(k, N, R, reads, mf, per=1, final_barrier=False, stamp0=None if (os.environ.get('P3S') or os.environ.get('P2S')) else 15)
    k("STAMP 9")
    V16, V8, VZ, VO = VTR, VTR + 1, VTR + 2, VTR + 3
    k(f"v_lshlrev_b32 v{V16}, 4, v{VL}\nv_lshlrev_b32 v{V8}, 3, v{VL}\nv_mov_b32 v{VZ}, 0\nv_mov_b32 v{T2}, 1\ns_waitcnt vmcnt(0)")
    if POIS:
        OK = k.lab("POK")
        k(f"v_cmp_gt_u32 vcc, 40, v{PZ}\ns_mov_b32 s31, 0\ns_nop 3\ns_cbranch_vccz {OK}")
        poll(k, PZ - 1, PZ, 1, 56, 31, want=40)
        k(f"{OK}:")
    GA, GB = [0, 1, 2, 3, 4], [5, 6, 7, 8]
    def epi(aa):
        own, oth = (GA, GB) if aa == 0 else (GB, GA)
        PK = UF
        n = 0
        for x, grp, l in ((2, oth, 0), (3, oth, 1), (1, own, 1)):
            for c in range(0, len(grp), 2):
                ds = grp[c:c + 2]
                for e, d in enumerate(ds):
                    ac = ACC + (d * 2 + l) * 4
                    k(f"v_cvt_pk_bf16_f32 v{PK+n+2*e}, v{ac}, v{ac+1}\nv_cvt_pk_bf16_f32 v{PK+n+2*e+1}, v{ac+2}, v{ac+3}")
                if len(ds) == 2: k(f"buffer_store_dwordx4 {v(PK+n,4)}, v{V16}, s[20:23], s{44+x} offen offset:{c*512}{WT}")
                else: k(f"buffer_store_dwordx2 {v(PK+n,2)}, v{V8}, s[20:23], s{44+x} offen offset:{c*512}{WT}")
                n += 4
        for e, d in enumerate(own):
            ac = v(ACC + d * 8, 4)
            k(f"v_mfma_f32_16x16x32_bf16 {ac}, {v(HR+4*e,4)}, {v(IDN,4)}, {ac}")
        k(f"v_lshlrev_b32 v{B2}, 16, v{B2}")
        k(f"v_mul_u32_u24 v{VO}, 1152, v{VI}\nv_lshl_add_u32 v{VO}, v{VG}, 3, v{VO}")
        RR = UF + 40
        chunks = [own[c:c + 2] for c in range(0, len(own), 2)]
        k(f"s_add_u32 s30, s33, {4*2560}\ns_add_u32 s31, s33, {8*2560}")
        def inbox():
            regs = []
            for ci, ds in enumerate(chunks):
                for sl, so in enumerate((33, 30, 31)):
                    r = RR + (ci * 3 + sl) * 4
                    if len(ds) == 2: k(f"buffer_load_dwordx4 {v(r,4)}, v{V16}, s[20:23], s{so} offen offset:{ci*1024} sc0 sc1")
                    else: k(f"buffer_load_dwordx2 {v(r,2)}, v{V8}, s[20:23], s{so} offen offset:{ci*1024} sc0 sc1")
                    regs += list(range(r, r + 2 * len(ds)))
            return regs
        def addb2():
            for d in own:
                for h2 in range(2): k(f"v_pk_add_f32 {v(ACC+d*8+2*h2,2)}, {v(ACC+d*8+2*h2,2)}, {v(B2-(B2&1),2)} op_sel:[0,{B2&1}] op_sel_hi:[1,{B2&1}]")
        if POIS:
            addb2()
            PL, GO = k.lab("PP"), k.lab("PG")
            k(f"s_mov_b32 s37, 0x40000\ns_waitcnt vmcnt({os.environ.get('PWAIT', 0)})\n{PL}:")
            regs = inbox()
            k(f"s_waitcnt vmcnt(0)\nv_max_u32 v{T0}, v{regs[0]}, v{regs[1]}")
            for n in range(2, len(regs), 2): k(f"v_max3_u32 v{T0}, v{T0}, v{regs[n]}, v{regs[n+1]}")
            k(f"v_cmp_eq_u32 vcc, -1, v{T0}\ns_sub_u32 s37, s37, 1\ns_cmp_eq_u32 s37, 0\ns_cbranch_scc1 {GO}\ns_cbranch_vccz {GO}\ns_sleep 2\ns_branch {PL}\n{GO}:\nSTAMP 10")
        else:
            k("s_waitcnt vmcnt(0)" + ("\nSTAMP 12" if os.environ.get("P5S") else ""))
            set_flag(k, VZ, T2, 20, 34)
            if 'fw' in XM: k("s_waitcnt vmcnt(0)")
            addb2()
            k(f"v_lshlrev_b32 v{T0}, 7, v{VL}\ns_mov_b64 exec, 0xf")
            poll(k, T0, HR, 1, 20, 35)
            k("s_mov_b64 exec, -1\nSTAMP 10")
            inbox()
        TR = 'notr' not in XM
        nch = 2 * len(own)
        if TR:
            k(f"s_mul_i32 s30, s28, 2816\ns_add_u32 s30, s30, {3*STG}\nv_mul_u32_u24 v{VO}, 176, v{VI}\nv_lshl_add_u32 v{VO}, v{VG}, 3, v{VO}\nv_add_u32 v{VO}, s30, v{VO}")
            nin = -(-16 * nch // 64)
            for q in range(nin):
                k(f"v_add_u32 v{T0}, {q*64}, v{VL}\nv_mul_u32_u24 v{T1}, {-(-65536//nch)}, v{T0}\nv_lshrrev_b32 v{T1}, 16, v{T1}\nv_mul_u32_u24 v{T2}, {nch}, v{T1}\nv_sub_u32 v{T0}, v{T0}, v{T2}\nv_lshlrev_b32 v{T0}, 4, v{T0}")
                k(f"v_mul_u32_u24 v{T2}, 176, v{T1}\nv_add3_u32 v{HR+q}, v{T2}, v{T0}, s30\nv_mul_u32_u24 v{T2}, 1152, v{T1}\nv_add_u32 v{HR+4+q}, v{T2}, v{T0}")
        nst = 0
        for ci, ds in enumerate(chunks):
            if not POIS: k(f"s_waitcnt vmcnt({3*(len(chunks)-1-ci)+nst})")
            for e, d in enumerate(ds):
                o = ACC + d * 8
                for sl in range(3):
                    for h2 in range(2):
                        p = RR + (ci * 3 + sl) * 4 + 2 * e + h2
                        t = PK + (sl * 2 + h2) * 2
                        k(f"v_lshlrev_b32 v{t}, 16, v{p}\nv_and_b32 v{t+1}, 0xffff0000, v{p}")
                for sl in range(3):
                    for h2 in range(2):
                        t = PK + (sl * 2 + h2) * 2
                        k(f"v_pk_add_f32 {v(o+2*h2,2)}, {v(o+2*h2,2)}, {v(t,2)}")
                k(f"v_cvt_pk_bf16_f32 v{o}, v{o}, v{o+1}\nv_cvt_pk_bf16_f32 v{o+1}, v{o+2}, v{o+3}")
                if TR: k(f"ds_write_b64 v{VO}, {v(o,2)} offset:{(d-own[0])*32}")
                else:
                    k(f"buffer_store_dwordx2 {v(o,2)}, v{VO}, s[40:43], s48 offen offset:{d*32}" + os.environ.get("OUTF", " nt"))
                    nst += 1
        if TR:
            k("s_waitcnt lgkmcnt(0)")
            for q in range(nin): k(f"ds_read_b128 {v(PK+16+4*q,4)}, v{HR+q}")
            for q in range(nin):
                k(f"s_waitcnt lgkmcnt({nin-1-q})")
                if (q + 1) * 64 > 16 * nch: k("s_mov_b32 exec_hi, 0")
                k(f"buffer_store_dwordx4 {v(PK+16+4*q,4)}, v{HR+4+q}, s[40:43], s48 offen offset:{own[0]*32}" + os.environ.get("OUTF", " nt"))
        k("s_endpgm")
    A1 = k.lab("A1")
    k(f"s_cmp_ge_u32 s26, 2\ns_cbranch_scc1 {A1}")
    epi(0)
    k(f"{A1}:")
    epi(1)
    k(f"{PROD}:\ns_and_b32 s29, s28, 1")
    ORD = 'noord' not in XM
    k("s_sub_u32 s38, 1, s26\ns_and_b32 s38, s38, 3\ns_cmp_eq_u32 s38, 0\ns_cselect_b32 s39, 6, 7")
    for n in range(9):
        if not ORD:
            k(f"s_mov_b32 s{40+n}, {n}"); continue
        k(f"s_mov_b32 s{40+n}, {n}")
        for d in (0, 3, 6):
            if n - d >= 0: k(f"s_cmp_le_u32 s38, {n-d}\ns_addc_u32 s{40+n}, s{40+n}, 0")
        if n >= 6: k(f"s_sub_u32 s30, {n}, s39\ns_lshl_b32 s30, s30, 2\ns_add_u32 s30, s30, s38\ns_cmp_le_u32 s39, {n}\ns_cselect_b32 s{40+n}, s30, s{40+n}")
    k(f"s_cmp_ge_u32 s28, 6\ns_cbranch_scc1 {PA}")
    VD = 10
    for q in range(2):
        k(f"v_add_u32 v{T0}, {4*q}, v{VG}")
        k(f"v_lshlrev_b32 v{T1}, 1, v{T0}\nv_xor_b32 v{T1}, v{T1}, v{VI}\nv_lshlrev_b32 v{T1}, 4, v{T1}")
        k(f"v_lshl_add_u32 v{VD+q}, v{T0}, 12, v{T1}")
    for q in range(2, 8): k(f"v_add_u32 v{VD+q}, {8*4096}, v{VD+q-2}")
    k(f"s_mul_i32 s32, s26, {1152*4096}\ns_lshl_b32 s30, s29, 17\ns_add_u32 s32, s32, s30\ns_lshl_b32 s30, s24, 8\ns_add_u32 s32, s32, s30\ns_lshl_b32 s34, s29, 13")
    srd(k, 12, PW2, F_ * S_ * 2)
    if 'g5' in XM:
        NG = k.lab("NG")
        k(f"s_cmp_ge_u32 s2, 216\ns_cbranch_scc1 {NG}")
        wait_local(k, 20, LCNT + 8, n=4)
        k(f"{NG}:")
    producer_loop(k, N, R, 8, lambda st, slot: [f"s_lshl_b32 s33, s{40+(st>>1)}, 19\ns_add_u32 s33, s33, s32" + (f"\ns_add_u32 s33, s33, {64*4096}" if st & 1 else "")] +
                  [dma(34, slot * STG + q * 1024, VD + q, 12, 33) for q in range(8)], FIN, final_barrier=False, first=int(os.environ.get("FIRST5", 2)), gate=lambda st: None)
    k(f"{PA}:")
    k(f"v_lshlrev_b32 v{VD}, 4, v{VL}")
    for d in range(1, 9): k(f"v_add_u32 v{VD+d}, {144*1024}, v{VD+d-1}")
    k(f"s_mul_i32 s33, s25, {9*144*1024}\ns_mul_i32 s30, s26, {36*1024}\ns_add_u32 s33, s33, s30\ns_lshl_b32 s30, s29, 10\ns_add_u32 s33, s33, s30\ns_add_u32 s33, s33, {WS_U}")
    k("s_mul_i32 s35, s29, 9216\ns_add_u32 s35, s35, 16384")
    k(f"s_mul_i32 s30, s25, 3\ns_lshr_b32 s30, s30, 1\ns_mul_i32 s31, s26, 6\ns_add_u32 s30, s30, s31\ns_mul_i32 s30, s30, {9*128}\ns_add_u32 s30, s30, {F4}")
    k(f"v_lshlrev_b32 v{T0}, 7, v{VL}")
    W7, WD = k.lab("W7"), k.lab("WD")
    k(f"s_mov_b32 s49, s30\ns_cmp_eq_u32 s28, 7\ns_cbranch_scc1 {W7}")
    if 'nogate' not in XM:
        NG, NG2 = k.lab("NG"), k.lab("NG")
        k(f"s_cmp_ge_u32 s2, 216\ns_cbranch_scc1 {NG}")
        wait_local(k, 20, LCNT + 8)
        k(f"s_branch {NG2}\n{NG}:\ns_lshl_b32 exec_lo, 1, s40\ns_mov_b32 exec_hi, 0")
        poll(k, T0, 20, 1, 20, 30, sleep=8)
        k(f"{NG2}:")
    k("s_lshl_b32 s31, 0x111, s38\ns_and_b32 s31, s31, 0x1ff\ns_mul_i32 s31, s31, 0x201\ns_andn2_b32 exec_lo, 0x3ffff, s31\ns_mov_b32 exec_hi, 0\ns_mov_b32 s49, s30" if ORD else "s_mov_b64 exec, 0x3ffff")
    poll(k, T0, 20, 1, 20, 30)
    k("s_mov_b64 exec, -1")
    lds_signal(k, 20, LCNT + 28)
    k(f"s_branch {WD}\n{W7}:")
    wait_local(k, 20, LCNT + 28, n=1)
    k(f"{WD}:\nSTAMP 9")
    def gate(st):
        if st == 12 and ORD:
            k("s_mov_b64 exec, 0x3ffff")
            poll(k, T0, 20, 1, 20, 49)
            k("s_mov_b64 exec, -1")
    producer_loop(k, N, R, 9, lambda st, slot: [f"s_lshl_b32 s32, s{40+(st>>1)}, 12\ns_add_u32 s32, s32, s33" + ("\ns_add_u32 s32, s32, 2048" if st & 1 else "")] +
                  [dma(35, slot * STG + q * 1024, VD + q, 20, 32, SC) for q in range(9)], FIN, final_barrier=False, gate=gate)
    k(f"{FIN}:\ns_endpgm")

NAME = "sequential_preLN__sliding_block__mixer_token_mlp__prompt_kernel"
def gen_mega():
    k = Kern(NAME, 512, 256, LCNT + 64)
    k.lab = (lambda f: (lambda base="L": f(base).replace(NAME[:-7], "m")))(k.lab)
    END = k.lab("END")
    k(f"s_cmp_ge_u32 s2, 256\ns_cbranch_scc1 {END}")
    k("s_load_dwordx16 s[64:79], s[0:1], 0\ns_load_dwordx4 s[80:83], s[0:1], 64\ns_load_dwordx2 s[84:85], s[0:1], 80")
    k("s_and_b32 s10, s2, 7\ns_lshr_b32 s11, s2, 3")
    if 'nocode' not in XM:
        H = k.lab("PC"); SK = k.lab("SKC")
        k(f"s_cmp_lt_u32 s2, 192\ns_cbranch_scc1 {SK}\ns_getpc_b64 s[60:61]\n{H}:\ns_sub_u32 s60, s60, {H}-L_text_begin\ns_subb_u32 s61, s61, 0")
        k(f"s_sub_u32 s62, s11, 24\ns_lshl_b32 s62, s62, 7\nv_lshlrev_b32 v{T0}, 10, v0\nv_add_u32 v{T0}, s62, v{T0}")
        k(f"s_mov_b32 s62, L_text_end-L_text_begin\nv_cmp_gt_u32 vcc, s62, v{T0}\ns_and_saveexec_b64 s[62:63], vcc\ns_cbranch_execz {SK}\nglobal_load_dword v{DUMMY}, v{T0}, s[60:61]\n{SK}:\ns_mov_b64 exec, -1")
    lane_ids(k, VL, 2, 28)
    k(f"v_lshlrev_b32 v{T0}, 2, v{VL}\nv_add_u32 v{T0}, {LCNT}, v{T0}\nv_mov_b32 v{T1}, 0\ns_mov_b64 exec, 0xffff\nds_write_b32 v{T0}, v{T1}\ns_mov_b64 exec, -1")
    E2a, E2b, E3, E4, E5 = [k.lab(n) for n in ("P2A", "P2B", "P3", "P4", "P5")]
    p1(k, (E2a, E2b))
    p2(k, (E2a, E2b), E3)
    p3(k, E3, E4)
    p4(k, E4, E5)
    p5(k, E5)
    k(f"{END}:\ns_endpgm")
    return k
```

```python
from common import *
import os

def producer_loop(k, N, R, P, issue, nxt, first=2, cnt=36, tail=None, final_barrier=True, gate=None):
    special = getattr(issue, "special_from", N)
    def do(st):
        if gate: gate(st)
        for t in issue(st, st % R): k(t)
    first = min(first, R)
    for st in range(first): do(st)
    k(f"s_waitcnt vmcnt({(first - 1) * P})\ns_barrier")
    issued = first
    for st in range(issued, min(N, R)): do(st)
    issued = min(N, R)
    k(f"s_waitcnt vmcnt({(issued - 2) * P})\ns_barrier")
    b = 1
    nsteady = N - R
    nloop = 0
    while gate is None and (nloop + 1) * R <= nsteady and R + (nloop + 1) * R - 1 < special: nloop += 1
    if nloop >= 2:
        L = k.lab("PL")
        k(f"s_mov_b32 s{cnt}, {nloop}\n{L}:")
        for i in range(R):
            do(R + i)
            k(f"s_waitcnt vmcnt({(R - 2) * P})\ns_barrier")
        k(f"s_sub_u32 s{cnt}, s{cnt}, 1\ns_cmp_lg_u32 s{cnt}, 0\ns_cbranch_scc1 {L}")
        b += nloop * R; issued += nloop * R
    while b < N - 1:
        if issued < N:
            do(issued); issued += 1
        k(f"s_waitcnt vmcnt({(issued - (b + 1) - 1) * P})")
        if b == N - 2 and tail: tail(k)
        k("s_barrier")
        b += 1
    if final_barrier: k("s_barrier")
    k(f"s_branch {nxt}")

def consumer_loop(k, N, R, reads, mf, cnt=36, per=2, special_from=None, final_barrier=True, before_last=None, stamp0=None):
    special_from = N if special_from is None else special_from
    if os.environ.get("STG_STAMP") and stamp0 == 12: special_from = 0; k("s_mov_b32 s36, 1")
    if os.environ.get("STG_STAMP") and stamp0 != 12: stamp0 = None
    k("s_barrier")
    if stamp0 is not None: k(f"STAMP {stamp0}")
    for t in reads(0, 0, 0, 0): k(t)
    def stage(st, last=False):
        slot = st % R
        k("s_waitcnt lgkmcnt(0)")
        for t in interleave(mf(st, 0, 0), reads(st, slot, 1, 1), 0, per): k(t)
        fill = []
        if not last:
            k("s_waitcnt lgkmcnt(0)\ns_barrier")
            fill = reads(st + 1, (slot + 1) % R, 0, 0)
        else:
            k("s_waitcnt lgkmcnt(0)")
            if final_barrier: k("s_barrier")
        for t in interleave(mf(st, 1, 1), fill, 0, per): k(t)
    nloop = 0
    while (nloop + 1) * R < N and (nloop + 1) * R < special_from: nloop += 1
    st = 0
    if nloop >= 2:
        L = k.lab("CL")
        k(f"s_mov_b32 s{cnt}, {nloop}\n{L}:")
        for i in range(R): stage(i)
        k(f"s_sub_u32 s{cnt}, s{cnt}, 1\ns_cmp_lg_u32 s{cnt}, 0\ns_cbranch_scc1 {L}")
        st = nloop * R
    while st < N:
        if os.environ.get("STG_STAMP") and stamp0 == 12 and st in (1, 2, 4): k(f"STAMP {13 + (1, 2, 4).index(st)}")
        if st == N - 1 and before_last: before_last()
        stage(st, st == N - 1); st += 1

def dma(m0base, off, vaddr, srd, soff, flags=""):
    return f"s_add_u32 m0, s{m0base}, {off}\ns_nop 0\nbuffer_load_dwordx4 v{vaddr}, s[{srd}:{srd+3}], s{soff} offen{flags} lds"

def poll(k, vaddr, vdst, nd, srd, soff, cnt=37, sleep=True, want=None):
    P, G = k.lab("POLL"), k.lab("GO")
    op = {1: "dword", 2: "dwordx2", 4: "dwordx4"}[nd]
    k(f"s_mov_b32 s{cnt}, 0x40000\n{P}:")
    if os.environ.get("APOLL") and nd == 1:
        k(f"v_mov_b32 v{vdst}, 0\nbuffer_atomic_or v{vdst}, v{vaddr}, s[{srd}:{srd+3}], s{soff} offen sc0 sc1\ns_waitcnt vmcnt(0)")
    else:
        k(f"buffer_load_{op} {v(vdst, nd)}, v{vaddr}, s[{srd}:{srd+3}], s{soff} offen sc0 sc1\ns_waitcnt vmcnt(0)")
    for i in range(1, nd): k(f"v_min_u32 v{vdst}, v{vdst}, v{vdst+i}")
    k((f"v_cmp_eq_u32 vcc, 0, v{vdst}" if want is None else f"v_cmp_gt_u32 vcc, {want}, v{vdst}") + f"\ns_sub_u32 s{cnt}, s{cnt}, 1\ns_cmp_eq_u32 s{cnt}, 0\ns_cbranch_scc1 {G}")
    if sleep:
        k(f"s_cbranch_vccz {G}\ns_sleep {int(sleep)}\ns_branch {P}\n{G}:")
    else:
        k(f"s_cbranch_vccnz {P}\n{G}:")

def set_flag(k, vz, vone, srd, soff):
    k(f"s_mov_b64 exec, 1\nbuffer_store_dword v{vone}, v{vz}, s[{srd}:{srd+3}], s{soff} offen sc0 sc1\ns_mov_b64 exec, -1")


def last_wave_flag(k, vz, vone, vt, ldsoff, srd, soff, n=4):
    S = k.lab("NL")
    k(f"v_mov_b32 v{vt}, {ldsoff}\ns_mov_b64 exec, 1\nds_add_rtn_u32 v{vt}, v{vt}, v{vone}\ns_waitcnt lgkmcnt(0)\nv_readfirstlane_b32 s31, v{vt}")
    k(f"s_cmp_lg_u32 s31, {n-1}\ns_cbranch_scc1 {S}\nbuffer_store_dword v{vone}, v{vz}, s[{srd}:{srd+3}], s{soff} offen sc0 sc1")
    k(f"v_mov_b32 v{vt}, {ldsoff}\ns_waitcnt vmcnt(0)\nds_add_u32 v{vt}, v{vone}\n{S}:\ns_mov_b64 exec, -1")

def lds_signal(k, vt, ldsoff):
    k(f"v_mov_b32 v{vt}, {ldsoff}\nv_mov_b32 v{vt+1}, 1\nds_write_b32 v{vt}, v{vt+1}")

def wait_local(k, vt, ldsoff, n=int(os.environ.get('LWN', 5)), cnt=37):
    P, G = k.lab("LW"), k.lab("LG")
    k(f"s_mov_b32 s{cnt}, 0x400000\n{P}:\nv_mov_b32 v{vt}, {ldsoff}\nds_read_b32 v{vt}, v{vt}\ns_waitcnt lgkmcnt(0)\nv_readfirstlane_b32 s31, v{vt}")
    k(f"s_cmp_ge_u32 s31, {n}\ns_cbranch_scc1 {G}\ns_sub_u32 s{cnt}, s{cnt}, 1\ns_cmp_eq_u32 s{cnt}, 0\ns_cbranch_scc1 {G}\ns_sleep 1\ns_branch {P}\n{G}:")


from asmlib import Ins

def producer_loop2(k, N, R, P, issue, nxt, first=2, cnt=36, tail=None, final_barrier=True, gate=None):
    special = getattr(issue, "special_from", N)
    def do(st):
        if gate: gate(st)
        for t in issue(st, st % R): k(t)
    first = min(first, R)
    for st in range(first): do(st)
    k(f"s_waitcnt vmcnt({(first - 1) * P})\ns_barrier")
    for st in range(first, min(N, R)): do(st)
    issued = min(N, R)
    k(f"s_waitcnt vmcnt({(issued - 2) * P})\ns_barrier")
    k(f"s_waitcnt vmcnt({(issued - 3) * P})\ns_barrier")
    b = 2
    nsteady = N - R
    nloop = 0
    while gate is None and (nloop + 1) * R <= nsteady and R + (nloop + 1) * R - 1 < special: nloop += 1
    if nloop >= 2:
        L = k.lab("PL")
        k(f"s_mov_b32 s{cnt}, {nloop}\n{L}:")
        for i in range(R):
            do(R + i)
            k(f"s_waitcnt vmcnt({(R - 3) * P})\ns_barrier")
        k(f"s_sub_u32 s{cnt}, s{cnt}, 1\ns_cmp_lg_u32 s{cnt}, 0\ns_cbranch_scc1 {L}")
        b += nloop * R; issued += nloop * R
    while b < N - 1:
        if issued < N:
            do(issued); issued += 1
        k(f"s_waitcnt vmcnt({(issued - (b + 1) - 1) * P})")
        if b == N - 2 and tail: tail(k)
        k("s_barrier")
        b += 1
    if final_barrier: k("s_barrier")
    k(f"s_branch {nxt}")

def spread(main, fill):
    out = []; fi = 0; n = max(len(main) - 1, 1)
    for i, m in enumerate(main):
        out.append(m)
        tgt = min(len(fill), -(-len(fill) * (i + 1) // n))
        while fi < tgt: out.append(fill[fi]); fi += 1
    return out + fill[fi:]

def consumer_loop2(k, N, R, reads, mf, cnt=36, per=None, special_from=None, final_barrier=True, before_last=None, stamp0=None):
    special_from = N if special_from is None else special_from
    if os.environ.get("CONS") in ("nomfma", "none"): mf = lambda *a_: ["s_nop 0"]
    if os.environ.get("CONS") in ("noread", "none"):
        r0 = reads
        reads = lambda *a_: [t for t in r0(*a_) if not t.startswith("ds_")]
    if os.environ.get("CONS") == "half":
        r1 = reads
        reads = lambda *a_: [t for n_, t in enumerate(r1(*a_)) if not (t.startswith("ds_") and n_ % 2)]
    pend = []
    def emit(items):
        for it in items:
            for line in it.split("\n"):
                x = Ins(line)
                if x.op and x.kind == "mfma":
                    last = -1
                    for n, d in enumerate(pend):
                        if d & x.src: last = n
                    if last >= 0:
                        keep = min(len(pend) - 1 - last, 15)
                        k(f"s_waitcnt lgkmcnt({keep})")
                        del pend[:len(pend) - keep]
                if x.op and x.kind == "ds": pend.append(set(x.dst))
                k(line)
    k("s_barrier")
    if stamp0 is not None: k(f"STAMP {stamp0}")
    emit(reads(0, 0, 0, 0))
    def stage(st, last=False):
        slot = st % R
        emit(spread(mf(st, 0, 0), reads(st, slot, 1, 1)))
        fill = []
        if not last:
            k("s_barrier")
            fill = reads(st + 1, (slot + 1) % R, 0, 0)
        elif final_barrier:
            k("s_waitcnt lgkmcnt(0)\ns_barrier"); del pend[:]
        emit(spread(mf(st, 1, 1), fill))
    nloop = 0
    while (nloop + 1) * R < N and (nloop + 1) * R < special_from: nloop += 1
    st = 0
    if nloop >= 2:
        L = k.lab("CL")
        entry = [set(d) for d in pend]
        k(f"s_mov_b32 s{cnt}, {nloop}\n{L}:")
        for i in range(R): stage(i)
        assert [set(d) for d in pend] == entry[len(entry) - len(pend):], (pend, entry)
        k(f"s_sub_u32 s{cnt}, s{cnt}, 1\ns_cmp_lg_u32 s{cnt}, 0\ns_cbranch_scc1 {L}")
        st = nloop * R
    while st < N:
        if st == N - 1 and before_last: before_last()
        stage(st, st == N - 1); st += 1

if os.environ.get("PIPE", "2") == "2":
    producer_loop, consumer_loop = producer_loop2, consumer_loop2
```

```python
from common import *
from ring2 import *
import math, os
XM = os.environ.get('MX', 'notouch,nopoison,noslow,fw,hyb').split(',')
WT = " sc0 sc1"
SC = " sc1"
FL = WS_ST + 196608
F1 = FL; F2 = F1 + 32768; F3 = F2 + 32768; F4 = F3 + 24576; F5 = F4 + 27648; FP = F5 + 131072; FEND = FP + 1024
assert FEND - WS_ST <= 64 * 8192
PB = int(os.environ.get('PB', WS_P))
LX = 61440
LCNT = 160768
WS_XS = 22 * MB
WS_CS = WS_XS + 16384
PX, PWQKV, PWO, PW1, PB1, PW2, PB2, POUT, PDBG, PWS = 64, 66, 68, 72, 74, 76, 78, 80, 82, 84
VL, VG, VI = 1, 3, 4
T0, T1, T2, T3 = 5, 6, 7, 8
DUMMY = 234

def pf_flat(k, srd_, sidx, nwg, nthreads, b0, b1, tmp, vt=0, s0=60):
    lines = (b1 - b0) // 128
    per = (lines + nwg - 1) // nwg
    n = (per + nthreads - 1) // nthreads
    k(f"s_mul_i32 s{s0}, s{sidx}, {per*128}\ns_add_u32 s{s0}, s{s0}, {b0}\nv_lshlrev_b32 v{tmp}, 7, v{vt}")
    for i in range(n):
        last = per - i * nthreads
        if last < nthreads:
            k(f"v_mov_b32 v{tmp+1}, 0x7ff00000\nv_cmp_gt_u32 vcc, {last}, v{vt}\nv_cndmask_b32 v{tmp}, v{tmp+1}, v{tmp}, vcc")
        k(f"buffer_load_dword v{DUMMY}, v{tmp}, s[{srd_}:{srd_+3}], s{s0} offen\ns_add_u32 s{s0}, s{s0}, {nthreads*128}")

PFDEF = dict(PF1B="w1:0:48", PF2="w1:48:88", PF3="w1:88:128,w2:0:26", PF4="w2:26:128")
def pf(k, name, sidx, nwg, nthreads, tmp, vt=0):
    spec = os.environ.get(name, PFDEF.get(name, ""))
    if not spec or spec == "0": return
    U = S_ * F_ * 2 // 128
    for it in spec.split(","):
        w, a_, b_ = it.split(":")
        srd(k, 52, PW1 if w == "w1" else PW2, S_ * F_ * 2)
        pf_flat(k, 52, sidx, nwg, nthreads, int(a_) * U, int(b_) * U, tmp, vt=vt)

def w1_addr(k, tmp):
    srd(k, 52, PW1, S_ * F_ * 2)
    k("s_lshr_b32 s60, s10, 1\ns_mul_i32 s60, s60, 9\ns_and_b32 s61, s10, 1\ns_lshl_b32 s61, s61, 2\ns_add_u32 s60, s60, s61\ns_lshl_b32 s60, s60, 8")
    k(f"v_lshrrev_b32 v{tmp}, 4, v0\nv_mul_u32_u24 v{tmp}, 9216, v{tmp}\nv_and_b32 v{tmp+1}, 15, v0\nv_lshl_add_u32 v{tmp}, v{tmp+1}, 7, v{tmp}")
    k(f"v_cmp_lt_u32 vcc, 9, v{tmp+1}\nv_mov_b32 v{tmp+1}, 0x7ff00000\nv_cndmask_b32 v{tmp}, v{tmp}, v{tmp+1}, vcc")

def w1_rows(k, sidx, rows, r0, _):
    w1_addr(k, 10)
    k(f"s_mul_i32 s61, s{sidx}, {rows*9216}\ns_add_u32 s60, s60, s61\ns_add_u32 s60, s60, {r0*9216}")
    for i in range((rows + 31) // 32):
        k(f"buffer_load_dword v{DUMMY}, v10, s[52:55], s60 offen\ns_add_u32 s60, s60, {32*9216}")

def w1slow(k):
    srd(k, 52, PW1, S_ * F_ * 2)
    k("s_lshr_b32 s60, s10, 1\ns_mul_i32 s60, s60, 9\ns_and_b32 s61, s10, 1\ns_lshl_b32 s61, s61, 2\ns_add_u32 s60, s60, s61")
    k("s_sub_u32 s61, 1, s60\ns_and_b32 s61, s61, 3\ns_add_u32 s60, s60, s61\ns_lshl_b32 s60, s60, 8\ns_add_u32 s60, s60, 128")
    k(f"s_sub_u32 s62, s11, 27\nv_mul_u32_u24 v10, 5, v0\nv_add_u32 v10, s62, v10\nv_mul_u32_u24 v10, 9216, v10")
    k(f"buffer_load_dword v{DUMMY}, v10, s[52:55], s60 offen\ns_add_u32 s60, s60, 1024\ns_cmp_eq_u32 s61, 0\ns_cselect_b32 s54, s54, 0")
    k(f"buffer_load_dword v{DUMMY}, v10, s[52:55], s60 offen")

def lcnt_init(k):
    k(f"v_lshlrev_b32 v{T0}, 2, v{VL}\nv_add_u32 v{T0}, {LCNT}, v{T0}\nv_mov_b32 v{T1}, 0\ns_mov_b64 exec, 0xffff\nds_write_b32 v{T0}, v{T1}\ns_mov_b64 exec, -1")

def ids16(k):
    k(f"v_lshrrev_b32 v{VG}, 4, v{VL}\nv_and_b32 v{VI}, 15, v{VL}")

def p1(k, NXT):
    R = 4; STG = 34816; N = 9; XO = 18432
    PROD = k.lab("P1PROD"); PF = k.lab("P1PF"); PX_ = k.lab("P1PX")
    k("s_and_b32 s24, s10, 3\ns_lshl_b32 s24, s24, 2\ns_and_b32 s25, s11, 3\ns_add_u32 s24, s24, s25")
    k("s_lshr_b32 s25, s10, 2\ns_mul_i32 s25, s25, 6\ns_lshr_b32 s29, s11, 2\ns_add_u32 s25, s25, s29")
    ids16(k)
    def touch():
        k(f"v_mul_u32_u24 v{T0}, 4682, v{VL}\nv_lshrrev_b32 v{T0}, 16, v{T0}")
        k(f"v_mul_u32_u24 v{T1}, 14, v{T0}\nv_sub_u32 v{T1}, v{VL}, v{T1}")
        k(f"v_lshrrev_b32 v{T2}, 1, v{T0}\nv_mul_u32_u24 v{T2}, 62, v{T2}\nv_add_u32 v{T0}, v{T0}, v{T2}")
        k(f"v_mul_u32_u24 v{T0}, 3456, v{T0}\nv_lshl_add_u32 v{T0}, v{T1}, 7, v{T0}\nv_lshlrev_b32 v{T1}, 7, v{VL}")
        k(f"s_add_u32 s30, s28, 1\ns_mul_i32 s30, s30, {128*3456}\ns_mul_i32 s31, s11, {2*3456}\ns_add_u32 s30, s30, s31\ns_lshr_b32 s31, s10, 2\ns_mul_i32 s31, s31, {13*128}\ns_add_u32 s30, s30, s31")
        k(f"s_and_b32 s31, s10, 3\ns_mul_i32 s31, s31, {512*1152}\ns_mul_i32 s29, s11, {16*1152}\ns_add_u32 s31, s31, s29\ns_mul_i32 s29, s28, {36*128}\ns_add_u32 s31, s31, s29")
        k("s_waitcnt lgkmcnt(0)")
        srd(k, 12, PX, S_ * D_ * 2)
        srd(k, 16, PWQKV, D_ * 1728 * 2)
        if 'notouch' in XM: return
        k("s_mov_b32 exec_hi, 0xf")
        k(f"buffer_load_dword v{DUMMY}, v{T1}, s[12:15], s31 offen")
        k("s_mov_b32 exec_hi, 0xffffff")
        k(f"buffer_load_dword v{DUMMY}, v{T0}, s[16:19], s30 offen")
        k("s_mov_b32 exec_hi, -1")
    CONS = k.lab("P1CONS")
    k(f"s_cmp_ge_u32 s11, 24\ns_cbranch_scc1 {PF}")
    k(f"s_cmp_lt_u32 s28, 4\ns_cbranch_scc1 {CONS}")
    k(f"{PROD}:")
    ra, rb = [int(t) for t in os.environ.get("ROT1", "9,6").split(",")]
    ROT = (ra or rb) and 'hyb' not in XM
    if ROT:
        k(f"s_and_b32 s38, s11, 3\ns_mul_i32 s38, s38, {ra}\ns_lshr_b32 s39, s11, 2\ns_mul_i32 s39, s39, {rb}\ns_lshr_b32 s38, s38, 2\ns_lshr_b32 s39, s39, 2\ns_add_u32 s38, s38, s39")
        k("s_sub_u32 s39, s38, 9\ns_cmp_ge_u32 s38, 9\ns_cselect_b32 s38, s39, s38")
    VD = 10
    HYB = 'hyb' in XM
    if HYB:
        k("s_and_b32 s38, s11, 3\ns_lshl_b32 s38, s38, 1\ns_lshr_b32 s39, s11, 2\ns_mul_i32 s39, s39, 43\ns_lshr_b32 s39, s39, 5\ns_add_u32 s38, s38, s39\ns_and_b32 s38, s38, 7")
        ROT = False
    k(f"s_and_b32 s29, s28, 1\ns_cmp_ge_u32 s28, 6\ns_cbranch_scc1 {PX_}")
    def adv(reg, step, st=None):
        if HYB and st == 0: return [f"s_add_u32 s38, s38, 1\ns_mul_i32 s39, s38, {step}\ns_add_u32 s{reg}, s{reg}, s39"]
        if HYB: return [f"s_add_u32 s{reg}, s{reg}, {step}\ns_sub_u32 s39, s{reg}, {8*step}\ns_add_u32 s38, s38, 1\ns_cmp_eq_u32 s38, 9\ns_cselect_b32 s{reg}, s39, s{reg}"]
        if not ROT: return [f"s_add_u32 s{reg}, s{reg}, {step}"]
        return [f"s_add_u32 s{reg}, s{reg}, {step}\ns_sub_u32 s39, s{reg}, {9*step}\ns_add_u32 s38, s38, 1\ns_cmp_eq_u32 s38, 9\ns_cselect_b32 s{reg}, s39, s{reg}"]
    k(f"s_mov_b32 s30, {3456-288}")
    for q in range(9):
        k(f"v_add_u32 v{T0}, {q*64}, v{VL}\nv_mul_u32_u24 v{T1}, 3641, v{T0}\nv_lshrrev_b32 v{T1}, 16, v{T1}")
        k(f"v_lshlrev_b32 v{T0}, 4, v{T0}\nv_mad_u32_u24 v{VD+q}, v{T1}, s30, v{T0}")
    k(f"s_mul_i32 s33, s25, 288\ns_mul_i32 s30, s29, {32*3456}\ns_add_u32 s33, s33, s30\ns_mul_i32 s34, s29, 9216" + (f"\ns_mul_i32 s30, s38, {64*3456}\ns_add_u32 s33, s33, s30" if ROT else ""))
    k("s_waitcnt lgkmcnt(0)")
    srd(k, 16, PWQKV, D_ * 1728 * 2)
    k("STAMP 1")
    def tail(kk):
        k("v_subrev_u32 v40, 256, v0")
        pf(k, "PF1T", 2, 192, 256, 42, vt=40)
    producer_loop(k, N, R, 9, lambda st, slot: [dma(34, slot * STG + q * 1024, VD + q, 16, 33, ' nt' if st < int(os.environ.get('NT1', 0)) else '') for q in range(9)] + adv(33, 64 * 3456, st), NXT[1], final_barrier=False, tail=tail, first=int(os.environ.get('FIRST1', 2)))
    k(f"{PX_}:")
    for q in range(2):
        k(f"v_lshrrev_b32 v{T0}, 3, v{VL}\nv_add_u32 v{T0}, {8*q}, v{T0}")
        k(f"v_bfe_u32 v{T1}, v{T0}, 1, 3\nv_and_b32 v{T2}, 7, v{VL}\nv_xor_b32 v{T1}, v{T1}, v{T2}\nv_lshlrev_b32 v{T1}, 4, v{T1}")
        k(f"v_mul_u32_u24 v{T0}, 1152, v{T0}\nv_add_u32 v{VD+q}, v{T0}, v{T1}")
    for q in range(2, 8): k(f"v_add_u32 v{VD+q}, {16*1152}, v{VD+q-2}")
    k("s_lshl_b32 s32, s24, 7\ns_lshl_b32 s30, s29, 6\ns_add_u32 s32, s32, s30\ns_mul_i32 s32, s32, 1152")
    k(f"s_lshl_b32 s35, s29, 13\ns_add_u32 s35, s35, {XO}" + ("\ns_lshl_b32 s30, s38, 7\ns_add_u32 s32, s32, s30" if ROT else ""))
    k("s_waitcnt lgkmcnt(0)")
    srd(k, 12, PX, S_ * D_ * 2)
    producer_loop(k, N, R, 8, lambda st, slot: [dma(35, slot * STG + q * 1024, VD + q, 12, 32, ' nt' if st < int(os.environ.get('NT1', 0)) else '') for q in range(8)] + adv(32, 128, st), NXT[1], final_barrier=False, tail=tail, first=int(os.environ.get('FIRST1', 2)))
    k(f"{CONS}:")
    lcnt_init(k)
    k("s_lshr_b32 s26, s25, 2\ns_and_b32 s27, s25, 3")
    VTR, VXR, VC, ZD, XF, WF = 10, 12, 16, 18, 20, 36
    ACC = WF + 72
    CSR = ACC + 72; STR = CSR + 36
    assert STR + 16 <= DUMMY
    k(f"v_bfe_u32 v{T0}, v{VL}, 2, 2\nv_lshl_add_u32 v{T0}, v{VG}, 2, v{T0}\nv_mul_u32_u24 v{T0}, 288, v{T0}")
    k(f"v_and_b32 v{T1}, 3, v{VL}\nv_lshl_add_u32 v{VTR}, v{T1}, 3, v{T0}\nv_mul_u32_u24 v{T1}, 72, v{T1}\nv_add3_u32 v{VTR+1}, v{T0}, v{T1}, 32")
    k(f"v_lshrrev_b32 v{T0}, 1, v{VI}\nv_lshrrev_b32 v{T1}, 1, v{VG}\nv_xor_b32 v{T0}, v{T0}, v{T1}\nv_lshlrev_b32 v{T0}, 4, v{T0}\nv_lshl_add_u32 v{T0}, v{VI}, 7, v{T0}")
    k(f"v_and_b32 v{T1}, 1, v{VG}\nv_lshl_add_u32 v{T0}, v{T1}, 3, v{T0}")
    k(f"s_lshl_b32 s30, s28, 12\ns_add_u32 s30, s30, {XO}\nv_add_u32 v{VXR}, s30, v{T0}")
    for q in range(1, 4): k(f"v_xor_b32 v{VXR+q}, {32*q}, v{VXR}")
    for r in range(72): k(f"v_mov_b32 v{ACC+r}, 0")
    k(f"v_mov_b32 v{VC}, 0")
    touch()
    srd(k, 20, PWS, WS_SIZE)
    srd(k, 56, PDBG, 256)
    k(f"s_mul_i32 s50, s25, {9*PS}\ns_lshl_b32 s30, s24, 2\ns_add_u32 s30, s30, s28\ns_lshl_b32 s49, s30, 7\ns_lshl_b32 s30, s30, 10\ns_add_u32 s50, s50, s30")
    k(f"s_add_u32 s49, s49, {WS_XS}\ns_mul_i32 s51, s25, 576\ns_add_u32 s51, s51, {WS_CS}")
    k(f"s_lshl_b32 s48, s27, 4\ns_add_u32 s48, s48, s24\ns_lshl_b32 s48, s48, 2\ns_add_u32 s48, s48, s26\ns_lshl_b32 s48, s48, 7\ns_add_u32 s48, s48, {F1}")
    first = [True]
    coff = [72 * (T >> 1) + 40 * (T & 1) for T in range(8)]
    def body(vor):
        first[0] = True
        def side():
            OK = k.lab("ZOK")
            if not os.environ.get("STG_STAMP"): k("STAMP 13")
            k(f"s_waitcnt vmcnt(0)\nv_cmp_gt_u32 vcc, 64, v{ZD}\ns_mov_b32 s31, 0\ns_nop 3\ns_cbranch_vccz {OK}")
            poll(k, VC, ZD, 1, 56, 31, want=64)
            k(f"{OK}:")
            if not vor:
                k(f"v_lshlrev_b32 v{VC}, 4, v{VG}\nv_mul_u32_u24 v{VC+1}, 144, v{VG}\nv_lshlrev_b32 v{ZD}, 2, v{VI}")
                for tt in range(2):
                    k(f"buffer_load_dword v{STR+2*tt}, v{ZD}, s[20:23], s49 offen offset:{tt*64}{SC}")
                k("s_add_u32 s49, s49, 8192")
                for tt in range(2):
                    k(f"buffer_load_dword v{STR+2*tt+1}, v{ZD}, s[20:23], s49 offen offset:{tt*64}{SC}")
                for T in range(9):
                    k(f"buffer_load_dwordx4 {v(CSR+4*T,4)}, v{VC+(T==8)}, s[20:23], s51 offen offset:{2*coff[T] if T < 8 else 64}{SC}")
            else:
                k(f"v_lshlrev_b32 v{VC}, 2, v{VI}\nv_lshrrev_b32 v{VC+1}, 2, v{VI}\nv_mul_u32_u24 v{VC+1}, 128, v{VC+1}\nv_add_u32 v{VC+1}, v{VC+1}, v{VC}\nv_lshlrev_b32 v{ZD}, 4, v{VG}")
                for hf in range(2):
                    for tt in range(2):
                        k(f"buffer_load_dwordx4 {v(STR+tt*8+hf*4,4)}, v{ZD}, s[20:23], s49 offen offset:{tt*64}{SC}")
                    if hf == 0: k("s_add_u32 s49, s49, 8192")
                for T in range(9):
                    k(f"buffer_load_dword v{CSR+T}, v{VC+(T==8)}, s[20:23], s51 offen offset:{2*coff[T] if T < 8 else 64}{SC}")
        def reads(st, slot, ks, rs):
            out = []
            if ks == 0 and not first[0]:
                d = STG if slot else -(R - 1) * STG
                regs = list(range(VXR, VXR + 4)) + [VTR, VTR + 1]
                out += [f"v_add_u32 v{r}, {d}, v{r}" if d > 0 else f"v_subrev_u32 v{r}, {-d}, v{r}" for r in regs]
            first[0] = False
            for tt in range(2):
                for hf in range(2):
                    out.append(f"ds_read_b64 {v(XF+rs*8+tt*4+hf*2,2)}, v{VXR+2*ks+hf} offset:{tt*2048}")
            for j in range(9):
                for hf in range(2):
                    out.append(f"ds_read_b64_tr_b16 {v(WF+rs*36+j*4+hf*2,2)}, v{VTR+(j==8)} offset:{ks*9216+hf*4608+(coff[j] if j < 8 else 0)}")
            if slot == 3 and ks == 1 and not (os.environ.get('STG_STAMP') and st == 3):
                L = k.lab("ZS")
                out.append(f"s_cmp_lg_u32 s36, 1\ns_cbranch_scc1 {L}\nbuffer_load_dword v{ZD}, v{VC}, s[56:59], 0 offen sc0 sc1\n{L}:")
            return out
        def mf(st, ks, rs):
            g = []
            for j in range(9):
                wf = v(WF + rs * 36 + j * 4, 4)
                for tt in range(2):
                    xf = v(XF + rs * 8 + tt * 4, 4)
                    ac = v(ACC + (j * 2 + tt) * 4, 4)
                    g.append(f"v_mfma_f32_16x16x32_bf16 {ac}, {xf}, {wf}, {ac}" if vor else f"v_mfma_f32_16x16x32_bf16 {ac}, {wf}, {xf}, {ac}")
            return g
        consumer_loop(k, N, R, reads, mf, per=[2] * 8 + [1], final_barrier=False, before_last=side, stamp0=12)
        k("STAMP 1")
        qs = 18 ** -0.5 * math.log2(math.e)
        OUT = XF; VM0 = VTR
        k(f"v_lshlrev_b32 v{VM0}, 4, v{VL}\ns_waitcnt vmcnt(0)")
        if not vor:
            k(f"s_cmp_eq_u32 s26, 0\ns_cselect_b32 s31, {f32(qs)}, 1.0")
            for tt in range(2): k(f"v_mul_f32 v{STR+2*tt+1}, s31, v{STR+2*tt+1}")
        sw = "32" if vor else "16"
        def fin(j):
            po = OUT + (j % 4) * 4
            k(f"v_permlane{sw}_swap_b32 v{po}, v{po+2}\nv_permlane{sw}_swap_b32 v{po+1}, v{po+3}")
            k(f"buffer_store_dwordx4 {v(po,4)}, v{VM0}, s[20:23], s50 offen{WT}\ns_add_u32 s50, s50, {PS}")
        for j in range(9):
            o = OUT + (j % 4) * 4
            for tt in range(2):
                ac = ACC + (j * 2 + tt) * 4
                for h2 in range(2):
                    if not vor:
                        k(f"v_pk_fma_f32 {v(ac+2*h2,2)}, {v(STR+2*tt,2)}, {v(CSR+4*j+2*h2,2)}, {v(ac+2*h2,2)} op_sel_hi:[0,1,1] neg_lo:[1,0,0] neg_hi:[1,0,0]")
                    else:
                        c = CSR + (j & ~1); sel = j & 1
                        k(f"v_pk_fma_f32 {v(ac+2*h2,2)}, {v(STR+tt*8+2*h2,2)}, {v(c,2)}, {v(ac+2*h2,2)} op_sel:[0,{sel},0] op_sel_hi:[1,{sel},1] neg_lo:[1,0,0] neg_hi:[1,0,0]")
            for tt in range(2):
                ac = ACC + (j * 2 + tt) * 4
                for h2 in range(2):
                    if not vor: k(f"v_pk_mul_f32 {v(ac+2*h2,2)}, {v(ac+2*h2,2)}, {v(STR+2*tt,2)} op_sel:[0,1] op_sel_hi:[1,1]")
                    else: k(f"v_pk_mul_f32 {v(ac+2*h2,2)}, {v(ac+2*h2,2)}, {v(STR+tt*8+4+2*h2,2)}")
            for tt in range(2):
                ac = ACC + (j * 2 + tt) * 4
                k(f"v_cvt_pk_bf16_f32 v{o+2*tt}, v{ac}, v{ac+1}\nv_cvt_pk_bf16_f32 v{o+2*tt+1}, v{ac+2}, v{ac+3}")
            if j > 0: fin(j - 1)
        fin(8)
        k(f"v_mov_b32 v{T0}, 0\nv_mov_b32 v{T1}, 1\ns_waitcnt vmcnt(0)")
        last_wave_flag(k, T0, T1, T2, LCNT, 20, 48)
        k(f"s_branch {NXT[0]}")
    LV = k.lab("VOR")
    k(f"s_cmp_eq_u32 s26, 2\ns_cbranch_scc1 {LV}")
    body(False)
    k(f"{LV}:")
    body(True)
    k(f"{PF}:\ns_sub_u32 s29, s2, 192")
    lcnt_init(k)
    XA, SM, CA = 12, 48, 52
    CSW = k.lab("CSW"); NZ = k.lab("NZ"); NZ2 = k.lab("NZ"); DONE = k.lab("DN")
    k(f"v_lshrrev_b32 v{T1}, 3, v0\nv_and_b32 v{T2}, 7, v0\nv_lshlrev_b32 v{T2}, 4, v{T2}\ns_cmp_ge_u32 s29, 32\ns_cselect_b32 s30, 3456, 0\ns_cselect_b32 s31, 0, 1152\ns_add_u32 s30, s30, s31")
    k(f"v_mad_u32_u24 v{T0}, v{T1}, s30, v{T2}")
    k(f"s_lshl_b32 s32, s29, 13\ns_add_u32 s32, s32, {WS_ST}\nv_lshlrev_b32 v{T3}, 4, v0")
    for r in range(4): k(f"v_mov_b32 v{CA+8+r}, 0")
    k(f"v_mov_b32 v{SM}, 0\nv_mov_b32 v{SM+1}, 0\nv_mov_b32 v{SM+2}, 0x3f803f80\ns_mul_i32 s30, s29, {64*1152}")
    k(f"s_sub_u32 s33, s29, 32\ns_lshl_b32 s31, s33, 7\ns_cmp_ge_u32 s33, 27\ns_cselect_b32 s31, 0x7000000, s31")
    k("s_waitcnt lgkmcnt(0)")
    srd(k, 20, PWS, WS_SIZE)
    srd(k, 56, PDBG, 256)
    k(f"s_cmp_ge_u32 s29, 32\ns_cbranch_scc1 {CSW}")
    srd(k, 12, PX, S_ * D_ * 2)
    for q in range(9): k(f"buffer_load_dwordx4 {v(XA+4*q,4)}, v{T0}, s[12:15], s30 offen offset:{q*128}")
    k(f"buffer_store_dwordx4 {v(CA+8,4)}, v{T3}, s[20:23], s32 offen{WT}")
    for q in range(9):
        k(f"s_waitcnt vmcnt({9-q})")
        for r in range(4 * q, 4 * q + 4): k(f"v_dot2c_f32_bf16 v{SM}, v{XA+r}, v{SM+2}\nv_dot2c_f32_bf16 v{SM+1}, v{XA+r}, v{XA+r}")
    k("STAMP 1\ns_nop 2")
    for m in ("quad_perm:[1,0,3,2]", "quad_perm:[2,3,0,1]", "row_half_mirror"):
        for r in range(2): k(f"v_add_f32_dpp v{SM+r}, v{SM+r}, v{SM+r} {m} row_mask:0xf bank_mask:0xf")
    k(f"s_mov_b32 s30, {f32(1.0/576)}\nv_mul_f32 v{SM}, s30, v{SM}\nv_mul_f32 v{SM+1}, s30, v{SM+1}\nv_fma_f32 v{SM+1}, -v{SM}, v{SM}, v{SM+1}")
    def rbf(r): k(f"v_cvt_pk_bf16_f32 v{r}, v{r}, v{r}\nv_and_b32 v{r}, 0xffff0000, v{r}")
    k(f"v_max_f32 v{SM+1}, 0, v{SM+1}")
    rbf(SM); rbf(SM + 1)
    k(f"v_add_f32 v{SM+1}, {f32(1e-5)}, v{SM+1}")
    rbf(SM + 1)
    k(f"v_sqrt_f32 v{SM+1}, v{SM+1}")
    rbf(SM + 1)
    k(f"v_rcp_f32 v{SM+1}, v{SM+1}")
    k(f"s_lshl_b32 s30, s29, 8\ns_add_u32 s30, s30, {WS_XS}\ns_add_u32 s31, s30, 8192\nv_lshlrev_b32 v{T0}, 2, v{T1}\nv_and_b32 v{T3}, 7, v0")
    k(f"v_cmp_eq_u32 vcc, 0, v{T3}\ns_and_saveexec_b64 s[62:63], vcc")
    k(f"buffer_store_dword v{SM}, v{T0}, s[20:23], s30 offen{WT}\nbuffer_store_dword v{SM+1}, v{T0}, s[20:23], s31 offen{WT}\ns_mov_b64 exec, -1\ns_branch {DONE}\n{CSW}:")
    srd(k, 16, PWQKV, D_ * 1728 * 2)
    for q in range(9): k(f"buffer_load_dwordx4 {v(XA+4*q,4)}, v{T0}, s[16:19], s31 offen\ns_add_u32 s31, s31, {64*3456}")
    k(f"buffer_store_dwordx4 {v(CA+8,4)}, v{T3}, s[20:23], s32 offen{WT}")
    for q in range(9):
        k(f"s_waitcnt vmcnt({9-q})")
        for r in range(4):
            p = XA + 4 * q + r
            if q == 0: k(f"v_lshlrev_b32 v{CA+2*r}, 16, v{p}\nv_and_b32 v{CA+2*r+1}, 0xffff0000, v{p}")
            else: k(f"v_lshlrev_b32 v{SM}, 16, v{p}\nv_and_b32 v{SM+1}, 0xffff0000, v{p}\nv_pk_add_f32 {v(CA+2*r,2)}, {v(CA+2*r,2)}, {v(SM,2)}")
    k("STAMP 1")
    for r in range(8): k(f"v_add_f32_dpp v{CA+r}, v{CA+r}, v{CA+r} row_ror:8 row_mask:0xf bank_mask:0xf")
    for sw in ("16", "32"):
        for r in range(8): k(f"v_mov_b32 v{XA+r}, v{CA+r}")
        for r in range(8): k(f"v_permlane{sw}_swap_b32 v{CA+r}, v{XA+r}")
        for r in range(8): k(f"v_add_f32 v{CA+r}, v{CA+r}, v{XA+r}")
    k(f"s_lshl_b32 s30, s28, 8\nv_lshlrev_b32 v{T0}, 5, v{VL}\nv_add_u32 v{T0}, s30, v{T0}\ns_mov_b64 exec, 0xff")
    k(f"ds_write_b128 v{T0}, {v(CA,4)}\nds_write_b128 v{T0}, {v(CA+4,4)} offset:16\ns_mov_b64 exec, -1")
    k("s_waitcnt lgkmcnt(0)\ns_barrier")
    k(f"s_cmp_lg_u32 s28, 0\ns_cbranch_scc1 {DONE}\nv_lshlrev_b32 v{T0}, 2, v{VL}")
    for q in range(8): k(f"ds_read_b32 v{XA+q}, v{T0} offset:{q*256}")
    k(f"s_lshl_b32 s30, s33, 8\ns_add_u32 s30, s30, {WS_CS}\ns_waitcnt lgkmcnt(0)")
    for q in range(1, 8): k(f"v_add_f32 v{XA}, v{XA}, v{XA+q}")
    k(f"buffer_store_dword v{XA}, v{T0}, s[20:23], s30 offen{WT}\n{DONE}:")
    k(f"v_mov_b32 v{T0}, 0\nv_mov_b32 v{T1}, 1\ns_waitcnt vmcnt(0)\nSTAMP 5\ns_barrier\ns_cmp_lg_u32 s28, 0\ns_cbranch_scc1 {NZ2}")
    k(f"s_mov_b64 exec, 1\nbuffer_atomic_add v{T1}, v{T0}, s[56:59], 0 offen sc1\ns_mov_b64 exec, -1\n{NZ2}:\ns_barrier")
    TL = int(os.environ.get("TLB", 0))
    if TL:
        k(f"s_sub_u32 s30, s11, 24\ns_lshl_b32 s30, s30, 9\nv_add_u32 v66, s30, v0\nv_lshlrev_b32 v66, {TL}, v66")
        k(f"buffer_load_dword v{DUMMY}, v66, s[20:23], 0 offen")
        for p, n in ((PW1, S_ * F_ * 2), (PW2, S_ * F_ * 2), (POUT, S_ * D_ * 2), (PWO, D_ * D_ * 2)):
            srd(k, 52, p, n)
            k(f"buffer_load_dword v{DUMMY}, v66, s[52:55], 0 offen")
    pf(k, "PF1B", 29, 64, 512, 66)
    k(f"s_branch {NXT[1]}")

def p2(k, ENT, NXT):
    LK8 = 24576; LV = 30720; REC = 1168; SEC = 36 * PS
    VH, VQ = 3, 4
    V16, VV, V8A = 5, 6, 7
    QM, Q8 = 8, 12
    KF, K8F, VF, O = 16, 28, 40, 56
    MX, MX2, TA, TB = 72, 73, 74, 75
    AK, AK8, AV = 76, 77, 78
    VV8, VK8 = 79, 2
    S0 = 80
    k(f"{ENT[1]}:")
    srd(k, 20, PWS, WS_SIZE)
    k(f"s_waitcnt vmcnt(0)\ns_cmp_lg_u32 s28, 7\ns_cbranch_scc1 {ENT[0]}")
    srd(k, 56, PDBG, 256)
    k(f"v_mov_b32 v{TA}, 0\ns_mov_b32 s31, 0")
    poll(k, TA, TB, 1, 56, 31, want=64)
    k(f"{ENT[0]}:")
    k("STAMP 2")
    k("s_lshl_b32 s24, s10, 1\ns_and_b32 s25, s11, 1\ns_add_u32 s24, s24, s25\ns_lshr_b32 s25, s11, 1")
    k(f"v_lshrrev_b32 v{VH}, 5, v{VL}\nv_and_b32 v{VQ}, 31, v{VL}")
    k("s_lshr_b32 s26, s28, 2\ns_and_b32 s27, s28, 3")
    k(f"v_lshlrev_b32 v{V16}, 4, v{VL}")
    k(f"v_mul_u32_u24 v{VV}, {PS}, v{VH}\nv_lshl_add_u32 v{VV}, v{VQ}, 4, v{VV}")
    k(f"s_lshr_b32 s47, s24, 2\ns_and_b32 s31, s24, 3\ns_mul_i32 s34, s47, 9\ns_lshl_b32 s32, s31, 1\ns_add_u32 s44, s32, s34\ns_add_u32 s32, s44, s26\ns_mul_i32 s32, s32, {PS}")
    k(f"s_add_u32 s34, s34, 8\ns_mul_i32 s34, s34, {PS}\ns_mul_i32 s44, s44, {PS}\ns_add_u32 s44, s44, {2*SEC}")
    k("s_lshr_b32 s30, s31, 1\ns_lshl_b32 s30, s30, 9\ns_add_u32 s41, s34, s30")
    k(f"s_and_b32 s30, s31, 1\ns_lshl_b32 s30, s30, 3\nv_lshlrev_b32 v{V8A}, 4, v{VQ}\nv_add_u32 v{V8A}, s30, v{V8A}")
    k(f"s_lshl_b32 s45, s31, 6\ns_add_u32 s45, s45, s34\ns_add_u32 s45, s45, {2*SEC}")
    k(f"v_lshrrev_b32 v{TA}, 2, v{VL}\nv_lshlrev_b32 v{TA}, 8, v{TA}\nv_and_b32 v{TB}, 3, v{VL}\nv_lshl_add_u32 v{VV8}, v{TB}, 4, v{TA}")
    k(f"v_lshlrev_b32 v{VK8}, 4, v{VQ}\nv_lshl_add_u32 v{VK8}, v{VH}, 10, v{VK8}")
    k("s_lshl_b32 s33, s25, 2\ns_mul_i32 s30, s27, 3\ns_add_i32 s35, s33, s30\ns_sub_i32 s35, s35, 8")
    k("s_mul_i32 s31, s26, 12\ns_add_u32 s31, s31, s30\ns_lshl_b32 s46, s31, 10")
    k(f"s_lshl_b32 s30, s28, 1\ns_add_i32 s30, s30, s33\ns_sub_i32 s30, s30, 8\ns_max_i32 s30, s30, 0\ns_lshl_b32 s30, s30, 10\ns_add_u32 s33, s33, s27")
    k(f"s_lshl_b32 s39, s33, 10\ns_add_u32 s40, s39, s41\ns_add_u32 s39, s39, s32\ns_add_u32 s41, s41, s30\ns_add_u32 s41, s41, {SEC}\ns_add_u32 s38, s32, {SEC}")
    k(f"s_lshl_b32 s42, s28, 10\ns_add_u32 s42, s42, {LK8}")
    k(f"s_mul_i32 s43, s28, 3\ns_lshl_b32 s36, s25, 3\ns_add_i32 s36, s36, s43\ns_sub_i32 s36, s36, 16\ns_mul_i32 s43, s43, {REC}\ns_add_u32 s43, s43, {LV}")
    NEG = f32(-1e30)
    k(f"v_lshlrev_b32 v{TA}, 2, v{VH}\nv_sub_u32 v{TA}, v{VQ}, v{TA}\nv_mov_b32 v{TB}, {NEG}")
    MRG = 'nomrg' not in XM; EM = 236
    if MRG: k(f"v_mov_b32 v{MX}, 0xffff\nv_mov_b32 v{MX2}, 0xffff0000")
    for b in range(4):
        for r in range(4): k(f"v_cmp_gt_i32 s[{86+2*r}:{87+2*r}], {8*b+r}, v{TA}")
        for r in range(4): k(f"v_cndmask_b32 v{S0+4*b+r}, v{TB}, 0, s[{86+2*r}:{87+2*r}]")
        for r in range(4): k(f"v_cndmask_b32 v{S0+128+4*b+r}, 0, v{TB}, s[{86+2*r}:{87+2*r}]")
        if MRG:
            for h in range(2):
                k(f"v_cndmask_b32 v{EM+2*b+h}, 0, v{MX}, s[{86+4*h}:{87+4*h}]\nv_cndmask_b32 v{AK}, 0, v{MX2}, s[{88+4*h}:{89+4*h}]\nv_or_b32 v{EM+2*b+h}, v{EM+2*b+h}, v{AK}")
    k(f"s_mul_i32 s30, s26, 12\ns_add_u32 s30, s30, s27\ns_lshl_b32 s30, s30, 10\nv_add_u32 v{AK}, s30, v{V16}")
    k(f"s_lshl_b32 s30, s27, 9\ns_add_u32 s30, s30, {LK8}\nv_add_u32 v{AK8}, s30, v{V8A}")
    for q in range(3):
        k(f"v_mov_b32 v{K8F+q*4+2}, 0\nv_mov_b32 v{K8F+q*4+3}, 0")
    k(f"v_mov_b32 v{Q8+2}, 0\nv_mov_b32 v{Q8+3}, 0")
    k(f"s_lshl_b32 s30, s26, 9\nv_lshlrev_b32 v{AV}, 8, v{VH}\nv_lshl_add_u32 v{AV}, v{VQ}, 4, v{AV}\nv_add_u32 v{AV}, s30, v{AV}")
    k(f"s_lshl_b32 s30, s26, 5\ns_add_u32 s30, s30, {1024-256}\nv_lshlrev_b32 v{TA}, 6, v{VH}\nv_lshl_add_u32 v{TA}, v{VQ}, 4, v{TA}\nv_add_u32 v{TA}, s30, v{TA}")
    k(f"v_cmp_lt_u32 vcc, 15, v{VQ}\nv_cmp_lt_u32 s[86:87], 17, v{VQ}\nv_mov_b32 v{MX2}, 1152\nv_cndmask_b32 v{AV}, v{AV}, v{TA}, vcc\nv_cndmask_b32 v{AV}, v{AV}, v{MX2}, s[86:87]")
    k(f"s_mul_i32 s30, s27, {2*REC}\ns_add_u32 s30, s30, {LV}\nv_add_u32 v{AV}, s30, v{AV}")
    NI = k.lab("NI")
    k("s_sub_i32 s30, 8, s33")
    for j in range(8):
        k(f"s_cmp_le_i32 s30, {j}\ns_cbranch_scc1 {NI}")
        for r in range(16): k(f"v_mov_b32 v{S0+j*16+r}, v{TB}")
    k(f"{NI}:")
    for q in range(3):
        k(f"s_add_i32 s30, s35, {q}\ns_max_i32 s30, s30, 0\ns_lshl_b32 s30, s30, 10\ns_add_u32 s{86+q}, s30, s38")
        k(f"s_add_i32 s30, s36, {q}\ns_max_i32 s30, s30, 0\ns_lshl_b32 s30, s30, 9\ns_add_u32 s{89+q}, s30, s44\ns_add_u32 s{92+q}, s30, s45")
    SO = k.lab("SONE")
    k(f"s_cmp_lg_u32 s28, 7\ns_cbranch_scc1 {SO}")
    if 'nogate' not in XM:
        NG = k.lab("NG")
        k(f"s_cmp_ge_u32 s2, 192\ns_cbranch_scc1 {NG}")
        wait_local(k, TA, LCNT)
        k(f"{NG}:")
    k(f"s_lshl_b32 s30, s47, 13\ns_lshl_b32 s31, s25, 9\ns_add_u32 s30, s30, s31\ns_add_u32 s30, s30, {F1-1024}")
    k(f"s_mov_b64 exec, -1\nv_lshlrev_b32 v{TA}, 7, v{VL}\ns_movk_i32 s31, 0x760\ns_cmp_eq_u32 s25, 0\ns_cselect_b32 s31, 0x700, s31\ns_cmp_ge_u32 s25, 2\ns_cselect_b32 exec_lo, 0x766, s31\ns_mov_b32 exec_hi, 0")
    poll(k, TA, MX, 1, 20, 30)
    k(f"s_mov_b64 exec, -1\n{SO}:\ns_barrier")
    k("STAMP 3")
    SK = k.lab("SK8")
    k(f"s_mov_b32 m0, s42\ns_cmp_ge_u32 s28, 6\ns_cbranch_scc1 {SK}")
    k(f"buffer_load_dwordx4 v{VK8}, s[20:23], s41 offen{SC} lds\n{SK}:")
    for q in range(3): k(dma(46, q * 1024, V16, 20, 86 + q, SC))
    k(f"buffer_load_dwordx4 {v(QM,4)}, v{V16}, s[20:23], s39 offen{SC}")
    k(f"buffer_load_dwordx2 {v(Q8,2)}, v{V8A}, s[20:23], s40 offen{SC}")
    for q in range(3):
        k(dma(43, q * REC, VV, 20, 89 + q, SC))
        k(f"s_add_u32 m0, s43, {q*REC+1024}\ns_mov_b64 exec, 0xff\nbuffer_load_dwordx4 v{VV8}, s[20:23], s{92+q} offen{SC} lds\ns_mov_b64 exec, -1")
    SO = k.lab("SONE")
    k(f"s_cmp_lg_u32 s28, 7\ns_cbranch_scc1 {SO}")
    for r in range(4): k(f"v_mov_b32 v{KF+r}, 0x3f803f80")
    k(f"v_mul_u32_u24 v{TA}, {REC}, v{VL}\ns_mov_b64 exec, 0xffffff")
    k(f"ds_write_b128 v{TA}, {v(KF,4)} offset:{LV+1152}")
    k(f"s_mov_b64 exec, -1\n{SO}:")
    srd(k, 48, PWO, D_ * D_ * 2)
    srd(k, 12, PX, S_ * D_ * 2)
    k("s_lshl_b32 s30, s10, 2\ns_and_b32 s31, s11, 3\ns_add_u32 s30, s30, s31\ns_lshl_b32 s30, s30, 2\ns_and_b32 s31, s28, 3\ns_add_u32 s30, s30, s31\ns_mul_i32 s30, s30, 18432")
    k(f"s_mul_i32 s44, s31, 3072\ns_add_u32 s44, s44, {LX}\ns_lshr_b32 s31, s11, 2\ns_mul_i32 s31, s31, 192\ns_add_u32 s43, s30, s31\ns_movk_i32 s30, 960")
    for q in range(3):
        k(f"v_add_u32 v{224+q}, {q*64}, v{VL}\nv_mul_u32_u24 v227, 5462, v{224+q}\nv_lshrrev_b32 v227, 16, v227\nv_lshlrev_b32 v{224+q}, 4, v{224+q}\nv_mad_u32_u24 v{224+q}, v227, s30, v{224+q}")
    k(f"v_lshlrev_b32 v227, 7, v{VL}\ns_mul_i32 s42, s11, {162*128}\ns_mul_i32 s30, s28, {21*128}\ns_add_u32 s42, s42, s30")
    k(f"v_mov_b32 v{MX}, v{TB}\ns_sub_i32 s35, 8, s33")
    k("s_cmp_eq_u32 s26, 0\ns_cselect_b32 s38, -1, 0\ns_cselect_b32 s40, 0, -1\ns_mov_b32 s39, 0\ns_mov_b32 s41, 0")
    k("s_waitcnt vmcnt(6) lgkmcnt(0)")
    k(f"v_cndmask_b32 v{Q8}, 0, v{Q8}, s[38:39]\nv_cndmask_b32 v{Q8+1}, 0, v{Q8+1}, s[40:41]")
    k("s_barrier")
    def kread(j):
        return [f"ds_read_b128 {v(KF+(j%3)*4,4)}, v{AK} offset:{j*1024}", f"ds_read_b64 {v(K8F+(j%3)*4,2)}, v{AK8} offset:{j*512}"]
    def mx(j):
        return [f"v_max3_f32 v{MX}, v{MX}, v{S0+j*16+2*r}, v{S0+j*16+2*r+1}" for r in range(8)]
    if os.environ.get("P2S"): k("STAMP 12")
    for t in kread(0) + kread(1): k(t)
    XS = k.lab("XS")
    k(f"s_cmp_ge_u32 s2, 192\ns_cbranch_scc1 {XS}\ns_cmp_lt_u32 s28, 4\ns_cbranch_scc1 {XS}")
    for q in range(3): k(dma(44, q * 1024, 224 + q, 12, 43))
    k(f"{XS}:")
    n0 = len(k.L)
    k(f"s_mov_b64 exec, 0x1fffff\nbuffer_load_dword v{DUMMY}, v227, s[48:51], s42 offen\ns_mov_b64 exec, -1")
    pf(k, "PF2", 2, 256, 512, 228)
    npf = sum(1 for l in k.L[n0:] if l.startswith("buffer_load"))
    inv = []
    for j in range(9):
        if j + 2 < 9:
            for t in kread(j + 2): k(t)
        sj = v(S0 + j * 16, 16)
        if j < 8:
            lb = k.lab("BK")
            k(f"s_cmp_gt_i32 s35, {j}\ns_cbranch_scc1 {lb}")
        k(f"s_waitcnt lgkmcnt({min(2, 8-j)*2})")
        k(f"v_mfma_f32_32x32x16_bf16 {sj}, {v(KF+(j%3)*4,4)}, {v(QM,4)}, {sj if j in (0, 8) else 0}")
        k(f"v_mfma_f32_32x32x16_bf16 {sj}, {v(K8F+(j%3)*4,4)}, {v(Q8,4)}, {sj}")
        if j < 8: k(f"{lb}:")
        if j >= 2 and not (MRG and j == 2):
            for t in mx(j - 2): k(t)
    for t in mx(7): k(t)
    WA_, WB_ = k.lab("WA"), k.lab("WB")
    k(f"s_cmp_ge_u32 s2, 192\ns_cbranch_scc1 {WA_}\ns_cmp_lt_u32 s28, 4\ns_cbranch_scc1 {WA_}\ns_waitcnt vmcnt({npf+3})\ns_branch {WB_}\n{WA_}:\ns_waitcnt vmcnt({npf})\n{WB_}:\ns_barrier")
    def vread(t): return f"ds_read_b128 {v(VF+(t%4)*4,4)}, v{AV} offset:{t*REC}"
    if os.environ.get("P2S"): k("STAMP 13")
    k(vread(0)); k(vread(1))
    side = []
    if MRG:
        for r in range(16): k(f"v_max_f32 v{S0+r}, v{S0+r}, v{S0+128+r}")
    for t in mx(0 if MRG else 8): k(t)
    k(f"v_mov_b32 v{MX2}, v{MX}\nv_permlane32_swap_b32 v{MX}, v{MX2}\nv_max_f32 v{MX}, v{MX}, v{MX2}")
    def soft(j):
        b = S0 + j * 16
        if MRG and j == 8: return []
        out = [f"v_sub_f32 v{b+r}, v{b+r}, v{MX}" for r in range(16)]
        if 'pksub' in XM: out = [f"v_pk_add_f32 {v(b+2*r,2)}, {v(b+2*r,2)}, {v(MX,2)} op_sel_hi:[1,0] neg_lo:[0,1] neg_hi:[0,1]" for r in range(8)]
        out += [f"v_exp_f32 v{b+r}, v{b+r}" for r in range(16)]
        if 'trunc' in XM: out += [f"v_perm_b32 v{b+r}, v{b+2*r+1}, v{b+2*r}, s86" for r in range(8)]
        else: out += [f"v_cvt_pk_bf16_f32 v{b+r}, v{b+2*r}, v{b+2*r+1}" for r in range(8)]
        if MRG and j == 0:
            out += [f"v_bfi_b32 v{S0+128+r}, v{EM+r}, 0, v{b+r}" for r in range(8)] + [f"v_and_b32 v{b+r}, v{EM+r}, v{b+r}" for r in range(8)]
        return out
    k("s_mov_b32 s86, 0x07060302")
    def pv(j):
        b = S0 + j * 16
        return [f"v_mfma_f32_32x32x16_bf16 {v(O,16)}, {v(VF+((2*j+s_)%4)*4,4)}, {v(b+4*s_,4)}, {v(O,16) if (j or s_) else 0}" for s_ in range(2)]
    if os.environ.get("P2S"): k("STAMP 14")
    for t in soft(0): k(t)
    for j in range(9):
        nxt = soft(j + 1) if j < 8 else []
        if j < 8:
            k(vread(2 * j + 2)); k(vread(2 * j + 3))
        p = pv(j)
        for t in nxt[:4]: k(t)
        k(f"s_waitcnt lgkmcnt({2 if j < 8 else 0})")
        k(p[0])
        for t in nxt[4:20]: k(t)
        if j < len(side) and side[j]: k(side[j])
        k(p[1])
        for t in nxt[20:]: k(t)
    k(f"s_lshl_b32 s34, s24, 1\ns_add_u32 s34, s34, s26\ns_mul_i32 s30, s34, {PS}\ns_lshl_b32 s31, s33, 10\ns_add_u32 s30, s30, s31\ns_add_u32 s30, s30, {WS_OM}")
    k(f"s_lshl_b32 s31, s34, 13\ns_lshl_b32 s34, s33, 7\ns_add_u32 s31, s31, s34\ns_add_u32 s31, s31, {WS_O8}\nv_lshlrev_b32 v{AK8}, 2, v{VQ}")
    if os.environ.get("P2S"): k("STAMP 15")
    if 'prio' in XM: k("s_setprio 0")
    k(f"v_rcp_f32 v{MX}, v{O+10}")
    for r in range(10): k(f"v_mul_f32 v{O+r}, v{O+r}, v{MX}")
    for r in range(5): k(f"v_cvt_pk_bf16_f32 v{KF+r}, v{O+2*r}, v{O+2*r+1}")
    k(f"buffer_store_dwordx4 {v(KF,4)}, v{V16}, s[20:23], s30 offen{WT}")
    k("s_mov_b32 exec_hi, 0")
    k(f"buffer_store_dword v{KF+4}, v{AK8}, s[20:23], s31 offen{WT}")
    k("s_mov_b32 exec_hi, -1")
    k(f"s_lshl_b32 s30, s25, 11\ns_lshl_b32 s31, s24, 7\ns_add_u32 s30, s30, s31\ns_add_u32 s30, s30, {F2}\nv_mov_b32 v{TA}, 0\nv_mov_b32 v{TB}, 1")
    k(f"s_waitcnt vmcnt(0)\ns_barrier\ns_cmp_lg_u32 s28, 6\ns_cbranch_scc1 {NXT}")
    set_flag(k, TA, TB, 20, 30)
    k(f"s_branch {NXT}")
    for j, li, lb in inv:
        k(f"{li}:")
        for r in range(16): k(f"v_mov_b32 v{S0+j*16+r}, v{TB}")
        k(f"s_branch {lb}")

def p3(k, ENT, NXT):
    R = 7; WS_ = 12288; WB = 73728; N = 9
    LAB = WB + R * WS_
    PF = k.lab("P3PF"); PROD = k.lab("P3PROD"); PO = k.lab("P3PO")
    k(f"{ENT}:\nSTAMP 4")
    k(f"s_cmp_ge_u32 s2, 192\ns_cbranch_scc1 {PF}")
    k("s_lshl_b32 s24, s10, 2\ns_and_b32 s25, s11, 3\ns_add_u32 s24, s24, s25\ns_lshr_b32 s25, s11, 2")
    ids16(k)
    V16 = 9
    k(f"v_lshlrev_b32 v{V16}, 4, v{VL}")
    k(f"s_cmp_ge_u32 s28, 4\ns_cbranch_scc1 {PROD}")
    k("s_lshr_b32 s26, s28, 1\ns_and_b32 s27, s28, 1")
    VTR, VAO, VAE = 10, 16, 18
    IDN, XR, ACC, AF, BF = 24, 28, 52, 76, 100
    k(f"v_and_b32 v{T1}, 1, v{VG}")
    k(f"v_bfe_u32 v{T0}, v{VL}, 2, 2\nv_lshl_add_u32 v{T0}, v{VG}, 2, v{T0}\nv_mul_u32_u24 v{T0}, 192, v{T0}")
    k(f"v_and_b32 v{T2}, 3, v{VL}\nv_lshl_add_u32 v{T0}, v{T2}, 3, v{T0}\nv_add_u32 v{T0}, {WB}, v{T0}")
    k("s_mul_i32 s30, s27, 3")
    for dt in range(3):
        k(f"s_add_u32 s31, s30, {dt}\nv_xor_b32 v{T2}, s31, v{T1}\nv_lshl_add_u32 v{VTR+dt}, v{T2}, 5, v{T0}\nv_add_u32 v{VTR+3+dt}, {4*WS_}, v{VTR+dt}")
    k(f"s_lshl_b32 s30, s26, 11\nv_add_u32 v{VAO}, s30, v{V16}\nv_add_u32 v{VAO+1}, 32768, v{VAO}")
    k(f"v_lshlrev_b32 v{T0}, 8, v{VG}\nv_lshl_add_u32 v{T0}, v{VI}, 2, v{T0}\nv_add_u32 v{VAE}, s30, v{T0}\nv_add_u32 v{VAE}, 65536, v{VAE}")
    k(f"v_lshlrev_b32 v{T0}, 3, v{VG}\nv_sub_u32 v{T0}, v{VI}, v{T0}\nv_mov_b32 v{T1}, 0x3f80\nv_mov_b32 v{T2}, 0x3f800000")
    for j2 in range(4):
        k(f"v_cmp_eq_u32 vcc, {2*j2}, v{T0}\nv_cmp_eq_u32 s[30:31], {2*j2+1}, v{T0}\nv_cndmask_b32 v{IDN+j2}, 0, v{T1}, vcc")
        k(f"v_cndmask_b32 v{IDN+j2}, v{IDN+j2}, v{T2}, s[30:31]")
    def reads(n):
        st, ks, rs = n >> 1, n & 1, n % 3
        slot = st % R
        out = []
        for tt in range(2):
            if st < 8: out.append(f"ds_read_b128 {v(AF+rs*8+tt*4,4)}, v{VAO+(st>>2)} offset:{(st&3)*8192+ks*4096+tt*1024}")
            else: out += [f"ds_read_b32 v{AF+rs*8+tt*4+q}, v{VAE} offset:{ks*4096+tt*1024+q*64}" for q in range(4)]
        for dt in range(3):
            for hf in range(2):
                out.append(f"ds_read_b64_tr_b16 {v(BF+rs*12+dt*4+hf*2,2)}, v{VTR+3*(slot//4)+dt} offset:{(slot%4)*WS_+ks*6144+hf*3072}")
        return out
    def mf(n):
        rs = n % 3
        return [f"v_mfma_f32_16x16x32_bf16 {v(ACC+(tt*3+dt)*4,4)}, {v(AF+rs*8+tt*4,4)}, {v(BF+rs*12+dt*4,4)}, {v(ACC+(tt*3+dt)*4,4)}"
                for tt in range(2) for dt in range(3)]
    k(f"s_mul_i32 s30, s26, 6144\ns_mul_i32 s31, s27, 96\ns_add_u32 s30, s30, s31\ns_add_u32 s30, s30, {LX}\nv_mul_u32_u24 v{T0}, 192, v{VI}\nv_and_b32 v{T1}, 16, v{VL}\nv_add3_u32 v{T0}, v{T0}, v{T1}, s30")
    for q in range(6): k(f"ds_read_b128 {v(XR+q*4,4)}, v{T0} offset:{(q//3)*3072+(q%3)*32}")
    k("s_waitcnt lgkmcnt(0)")
    for q in range(6):
        k(f"v_mfma_f32_16x16x32_bf16 {v(ACC+q*4,4)}, {v(XR+q*4,4)}, {v(IDN,4)}, 0")
    k("s_barrier")
    if os.environ.get("P3S"): k("STAMP 12")
    for t in reads(0) + reads(1): k(t)
    for n in range(18):
        if n in (2, 16): k("s_waitcnt lgkmcnt(0)\ns_barrier")
        elif n in (8, 12): k(f"s_waitcnt lgkmcnt({len(reads(n + 1))})\ns_barrier")
        elif n < 16: k(f"s_waitcnt lgkmcnt({len(reads(n + 1))})")
        if os.environ.get("P3S") and n in (8, 12): k(f"STAMP {13 + (n == 12)}")
        for t in interleave(mf(n), reads(n + 2) if n + 2 < 18 else [], 0, 2): k(t)
    k("STAMP 5")
    PK = XR; ST = AF
    for dt in range(3):
        for tt in range(2):
            ac = ACC + (tt * 3 + dt) * 4
            k(f"v_cvt_pk_bf16_f32 v{PK+dt*4+tt*2}, v{ac}, v{ac+1}\nv_cvt_pk_bf16_f32 v{PK+dt*4+tt*2+1}, v{ac+2}, v{ac+3}")
    for dt in range(3):
        for tt in range(2):
            for h2 in range(2):
                p = PK + dt * 4 + tt * 2 + h2
                x0 = ACC + (tt * 3 + dt) * 4 + 2 * h2
                k(f"v_lshlrev_b32 v{x0}, 16, v{p}\nv_and_b32 v{x0+1}, 0xffff0000, v{p}")
                sm, sq_ = ST + tt * 4 + 2 * h2, ST + 8 + tt * 4 + 2 * h2
                if dt == 0: k(f"v_pk_mul_f32 {v(sq_,2)}, {v(x0,2)}, {v(x0,2)}")
                else: k(f"v_pk_fma_f32 {v(sq_,2)}, {v(x0,2)}, {v(x0,2)}, {v(sq_,2)}")
                if dt == 1: k(f"v_pk_add_f32 {v(sm,2)}, {v(x0-4,2)}, {v(x0,2)}")
                if dt == 2: k(f"v_pk_add_f32 {v(sm,2)}, {v(sm,2)}, {v(x0,2)}")
    for sh in (8, 4, 2, 1):
        for r in range(16):
            k(f"v_add_f32_dpp v{ST+r}, v{ST+r}, v{ST+r} row_ror:{sh} row_mask:0xf bank_mask:0xf")
    SG = BF + 12
    for r in range(8): k(f"v_mov_b32 v{SG+2*r}, v{ST+r}\nv_or_b32 v{SG+2*r+1}, 0x80000000, v{ST+8+r}")
    k(f"s_lshl_b32 s31, s24, 1\ns_add_u32 s31, s31, s26")
    k(f"s_lshl_b32 s33, s31, 8\ns_add_u32 s33, s33, {WS_ST}")
    k(f"s_lshl_b32 s30, s25, 1\ns_add_u32 s30, s30, s27\ns_lshl_b32 s30, s30, 14\ns_add_u32 s30, s30, s33")
    k(f"v_cmp_eq_u32 s[38:39], 1, v{VI}\nv_cmp_eq_u32 s[40:41], 2, v{VI}\nv_cmp_eq_u32 s[42:43], 3, v{VI}\nv_cmp_gt_u32 vcc, 4, v{VI}")
    k(f"v_lshrrev_b32 v{T0}, 1, v{VI}\nv_lshlrev_b32 v{T0}, 7, v{T0}\nv_lshl_add_u32 v{T0}, v{VG}, 5, v{T0}\nv_and_b32 v{T1}, 1, v{VI}\nv_lshl_add_u32 v{T0}, v{T1}, 4, v{T0}")
    for q in range(1, 4):
        for r in range(4): k(f"v_cndmask_b32 v{SG+r}, v{SG+r}, v{SG+4*q+r}, s[{36+2*q}:{37+2*q}]")
    k(f"s_and_saveexec_b64 s[38:39], vcc\nbuffer_store_dwordx4 {v(SG,4)}, v{T0}, s[20:23], s30 offen{WT}\ns_mov_b64 exec, s[38:39]")
    VH = VTR
    k(f"v_lshlrev_b32 v{VH}, 4, v{VL}")
    k(f"s_mul_i32 s30, s25, 6\ns_mul_i32 s32, s27, 3\ns_add_u32 s30, s30, s32\ns_mul_i32 s30, s30, {PS}")
    k(f"s_lshl_b32 s32, s31, 10\ns_add_u32 s30, s30, s32\ns_add_u32 s32, s30, {WS_HN}\ns_add_u32 s30, s30, {WS_H}")
    k("s_mov_b32 s35, s30")
    VS = VTR + 1
    P = BF
    k(f"v_lshrrev_b32 v{T0}, 5, v{VL}\nv_mul_u32_u24 v{VS}, {6*16384}, v{T0}\nv_and_b32 v{T0}, 31, v{VL}\nv_lshl_add_u32 v{VS}, v{T0}, 3, v{VS}")
    for p in range(6): k(f"s_add_u32 s{40+p}, s33, {p*16384}")
    POLL = k.lab("POLL"); GO = k.lab("GO")
    k(f"s_mov_b32 s37, 0x40000" + ("" if 'nosw' in XM else "\ns_waitcnt vmcnt(0)") + f"\n{POLL}:")
    for p in range(6):
        k(f"buffer_load_dwordx2 {v(P+2*p,2)}, v{VS}, s[20:23], s{40+p} offen sc0 sc1")
    k("s_waitcnt vmcnt(0)")
    k(f"v_and_b32 v{T1}, v{P+1}, v{P+3}\nv_and_b32 v{T2}, v{P+5}, v{P+7}\nv_and_b32 v{T3}, v{P+9}, v{P+11}\nv_and_b32 v{T1}, v{T1}, v{T2}\nv_and_b32 v{T1}, v{T1}, v{T3}")
    k(f"v_cmp_le_i32 vcc, 0, v{T1}\ns_sub_u32 s37, s37, 1\ns_cmp_eq_u32 s37, 0\ns_cbranch_scc1 {GO}\ns_cbranch_vccz {GO}\ns_sleep 1\ns_branch {POLL}\n{GO}:")
    if os.environ.get("P3S"): k("STAMP 15")
    for dt in range(3):
        k(f"buffer_store_dwordx4 {v(PK+dt*4,4)}, v{VH}, s[20:23], s35 offen{WT}\ns_add_u32 s35, s35, {PS}")
    for p in range(1, 6):
        k(f"v_add_f32 v{P}, v{P}, v{P+2*p}\nv_add_f32 v{P+1}, v{P+1}, v{P+2*p+1}")
    k(f"v_mov_b32 v{P+2}, v{P}\nv_mov_b32 v{P+3}, v{P+1}")
    k(f"v_permlane32_swap_b32 v{P}, v{P+2}\nv_permlane32_swap_b32 v{P+1}, v{P+3}")
    k(f"v_add_f32 v{P}, v{P}, v{P+2}\nv_add_f32 v{P+1}, v{P+1}, v{P+3}")
    k(f"s_mov_b32 s34, {f32(1.0/576)}")
    mn, sq = P, P + 1
    k(f"v_mul_f32 v{mn}, s34, v{mn}\nv_mul_f32 v{sq}, s34, -v{sq}\nv_fma_f32 v{sq}, -v{mn}, v{mn}, v{sq}\nv_max_f32 v{sq}, 0, v{sq}")
    k(f"v_add_f32 v{P+2}, {f32(1e-5)}, v{sq}\nv_rsq_f32 v{P+2}, v{P+2}")
    k(f"v_mul_f32 v{sq}, v{sq}, v{P+2}\nv_mul_f32 v{sq}, v{sq}, v{P+2}\nv_add_f32 v{sq}, {f32(1e-5)}, v{sq}\nv_rsq_f32 v{sq}, v{sq}")
    k(f"v_mul_f32 v{P+2}, v{P+2}, v{sq}\nv_mul_f32 v{P+3}, -v{mn}, v{P+2}")
    k(f"s_lshl_b32 s33, s28, 8\ns_add_u32 s33, s33, {LAB}\nv_lshlrev_b32 v{T0}, 3, v{T0}\nv_add_u32 v{T0}, s33, v{T0}")
    k(f"ds_write_b64 v{T0}, {v(P+2,2)}")
    k(f"v_lshlrev_b32 v{T0}, 5, v{VG}\nv_add_u32 v{T0}, s33, v{T0}\ns_waitcnt lgkmcnt(0)")
    AB = ST
    for q in range(4):
        k(f"ds_read_b128 {v(AB+4*q,4)}, v{T0} offset:{(q>>1)*128+(q&1)*16}")
    k(f"s_lshl_b32 s30, s25, 12\ns_lshl_b32 s31, s24, 7\ns_add_u32 s30, s30, s31\ns_add_u32 s30, s30, {F3}\nv_mov_b32 v{T1}, 0\nv_mov_b32 v{T2}, 1")
    k("s_waitcnt lgkmcnt(0)")
    for dt in range(3):
        for tt in range(2):
            x0 = ACC + (tt * 3 + dt) * 4
            for r in range(4): k(f"v_fma_f32 v{x0+r}, v{x0+r}, v{AB+tt*8+2*r}, v{AB+tt*8+2*r+1}")
            k(f"v_cvt_pk_bf16_f32 v{PK+12+dt*4+tt*2}, v{x0}, v{x0+1}\nv_cvt_pk_bf16_f32 v{PK+12+dt*4+tt*2+1}, v{x0+2}, v{x0+3}")
        k(f"buffer_store_dwordx4 {v(PK+12+dt*4,4)}, v{VH}, s[20:23], s32 offen{WT}\ns_add_u32 s32, s32, {PS}")
    k("s_waitcnt vmcnt(0)")
    last_wave_flag(k, T1, T2, T3, LCNT + 4, 20, 30)
    k(f"s_branch {NXT}")
    k(f"{PROD}:\ns_and_b32 s29, s28, 1\ns_cmp_ge_u32 s28, 6\ns_cbranch_scc1 {PO}")
    VWD, VWE = 10, 16
    for q in range(6):
        k(f"v_add_u32 v{T0}, {q*64}, v{VL}")
        k(f"v_mul_u32_u24 v{T1}, 5462, v{T0}\nv_lshrrev_b32 v{T1}, 16, v{T1}")
        k(f"v_mul_u32_u24 v{T2}, 12, v{T1}\nv_sub_u32 v{T0}, v{T0}, v{T2}")
        k(f"v_bfe_u32 v{T2}, v{T1}, 2, 1\nv_lshlrev_b32 v{T2}, 1, v{T2}\nv_xor_b32 v{T0}, v{T0}, v{T2}\nv_lshlrev_b32 v{VWE+q}, 4, v{T0}")
        k(f"v_and_b32 v{T2}, 7, v{T1}")
        k(f"v_bfe_u32 v{T3}, v{T1}, 3, 1\nv_mad_u32_u24 v{T2}, v{T3}, 20, v{T2}")
        k(f"v_bfe_u32 v{T3}, v{T1}, 4, 1\nv_lshl_add_u32 v{T2}, v{T3}, 3, v{T2}")
        k(f"v_mul_u32_u24 v{T2}, 1152, v{T2}\nv_add_u32 v{VWD+q}, v{T2}, v{VWE+q}")
    k(f"s_mul_i32 s33, s25, 192\ns_mul_i32 s30, s29, {8*36*1152}\ns_add_u32 s39, s33, s30\ns_mul_i32 s30, s29, {36*1152}\ns_add_u32 s33, s33, s30")
    k(f"s_mul_i32 s35, s29, 6144\ns_add_u32 s35, s35, {WB}")
    srd(k, 16, PWO, D_ * D_ * 2)
    def issue_w(st):
        for q in range(6): k(dma(35, (st % R) * WS_ + q * 1024, (VWD if st < 8 else VWE) + q, 16, 33 if st < 8 else 39))
        k(f"s_add_u32 s33, s33, {72*1152}")
    for st in range(7): issue_w(st)
    for q in range(6):
        k(f"v_add_u32 v{T0}, {q*64}, v{VL}\nv_mul_u32_u24 v{T1}, 5462, v{T0}\nv_lshrrev_b32 v{T1}, 16, v{T1}\n"
          f"v_bfe_u32 v{T2}, v{T1}, 2, 2\nv_lshlrev_b32 v{T2}, 1, v{T2}\nv_bfe_u32 v{T3}, v{T1}, 4, 1\nv_add_u32 v{T2}, v{T2}, v{T3}\nv_mul_u32_u24 v{T2}, 36, v{T2}\n"
          f"v_and_b32 v{T3}, 3, v{T1}\nv_add3_u32 v{T2}, v{T2}, v{T3}, 16\nv_mul_u32_u24 v{T2}, 1152, v{T2}\nv_add_u32 v{VWE+q}, v{T2}, v{VWE+q}")
    k("s_waitcnt vmcnt(0)\ns_barrier\ns_barrier")
    for st in range(7, 9): issue_w(st)
    k(f"s_barrier\ns_waitcnt vmcnt(0)\ns_barrier\ns_barrier\ns_branch {NXT}")
    k(f"{PO}:")
    VO = 10
    k(f"v_lshrrev_b32 v{T0}, 1, v{VG}\nv_mul_u32_u24 v{T0}, {PS}, v{T0}\nv_and_b32 v{T1}, 1, v{VG}\nv_lshl_add_u32 v{T0}, v{T1}, 9, v{T0}\nv_lshl_add_u32 v{T0}, v{VI}, 4, v{T0}")
    k(f"v_lshrrev_b32 v{T1}, 2, v{VL}\nv_lshlrev_b32 v{T1}, 13, v{T1}\nv_and_b32 v{T2}, 3, v{VL}\nv_lshl_add_u32 v{T1}, v{T2}, 4, v{T1}")
    for q in range(4): k(f"v_add_u32 v{VO+q}, {(q>>1)*1024+(q&1)*256}, v{T0}\nv_add_u32 v{VO+4+q}, {q*64}, v{T1}")
    k(f"s_lshl_b32 s32, s24, 11\ns_mul_i32 s30, s29, {2*PS}\ns_add_u32 s32, s32, s30\ns_add_u32 s32, s32, {WS_OM}\ns_lshl_b32 s30, s29, 17")
    k(f"s_lshl_b32 s38, s24, 8\ns_add_u32 s38, s38, s30\ns_add_u32 s38, s38, {WS_O8}\ns_lshl_b32 s34, s29, 12")
    k(f"s_lshr_b32 s30, s24, 1\ns_lshl_b32 s30, s30, 11\ns_add_u32 s30, s30, {F2}\nv_lshlrev_b32 v{T0}, 7, v{VL}")
    W7, WD = k.lab("W7"), k.lab("WD")
    k(f"s_cmp_eq_u32 s28, 7\ns_cbranch_scc1 {W7}\n" + ("" if os.environ.get("APOLL") == "2" else "s_waitcnt vmcnt(0)\n") + "s_mov_b64 exec, 0xffff")
    poll(k, T0, T1, 1, 20, 30)
    k("s_mov_b64 exec, -1")
    lds_signal(k, T0, LCNT + 20)
    k(f"s_branch {WD}\n{W7}:")
    wait_local(k, T0, LCNT + 20, n=1)
    k(f"{WD}:\nSTAMP 5")
    def issue_o(st):
        for q in range(4): k(dma(34, st * 8192 + q * 1024, VO + q + (4 if st == 8 else 0), 20, 32 if st < 8 else 38, SC))
        k(f"s_add_u32 s32, s32, {4*PS}")
    for st in range(5): issue_o(st)
    k("s_waitcnt vmcnt(12)\ns_barrier")
    for st in range(5, 9): issue_o(st)
    k(f"s_waitcnt vmcnt(16)\ns_barrier\ns_waitcnt vmcnt(8)\ns_barrier\ns_waitcnt vmcnt(0)\ns_barrier\ns_barrier\ns_branch {NXT}")
    k(f"{PF}:\ns_sub_u32 s29, s2, 192")
    if 'early3' in XM:
        NE = k.lab("NE")
        k(f"s_cmp_lt_u32 s11, 27\ns_cbranch_scc1 {NE}")
        w1slow(k)
        k(f"{NE}:")
    pf(k, "PF3", 29, 64, 512, 10)
    r1 = int(os.environ.get("L2W1", 0))
    if r1:
        k("s_sub_u32 s29, s11, 24")
        w1_rows(k, 29, r1 // 8, 0, 0)
    k(f"s_branch {NXT}")

def p4(k, ENT, NXT):
    STG = 28672; R = int(os.environ.get('R4', 5)); N = 32; NS = (R + 1) // 2
    PROD = k.lab("P4PROD"); PF = k.lab("P4PF"); PA = k.lab("P4PA")
    k("; ==== phase 4: u = gelu_tanh(hn^T @ w1 + b1), gelu(x) = x / (1 + exp(-2 sqrt(2/pi) (x + 0.044715 x^3)))")
    k(f"{ENT}:\nSTAMP 6")
    k(f"s_cmp_ge_u32 s11, 27\ns_cbranch_scc1 {PF}")
    k("s_mul_i32 s24, s11, 10923\ns_lshr_b32 s24, s24, 16\ns_mul_i32 s25, s24, 6\ns_sub_u32 s25, s11, s25")
    k("s_and_b32 s29, s10, 1\ns_mul_i32 s30, s29, 5\ns_add_u32 s24, s24, s30")
    k("s_mul_i32 s30, s29, 3\ns_add_u32 s30, s30, s25")
    k("s_cmp_ge_u32 s11, 24\ns_cselect_b32 s24, 4, s24\ns_cselect_b32 s25, s30, s25\ns_mov_b32 s47, s24")
    k("s_lshr_b32 s30, s10, 1\ns_mul_i32 s30, s30, 9\ns_add_u32 s24, s24, s30")
    ids16(k)
    k(f"s_cmp_ge_u32 s28, 4\ns_cbranch_scc1 {PROD}")
    k("s_lshr_b32 s26, s28, 1\ns_and_b32 s27, s28, 1")
    VTR, VHR, B1, ACC, WF, HF = 10, 22, 26, 36, 84, 116
    srd(k, 16, PB1, F_ * 2)
    k(f"v_lshlrev_b32 v{T0}, 3, v{VG}\ns_lshl_b32 s30, s24, 8\ns_lshl_b32 s31, s26, 7\ns_add_u32 s30, s30, s31")
    for f4 in range(4):
        k(f"buffer_load_dwordx2 {v(B1+2*f4,2)}, v{T0}, s[16:19], s30 offen offset:{f4*32}")
    k(f"v_bfe_u32 v{T0}, v{VL}, 2, 2\nv_lshl_add_u32 v{T0}, v{VG}, 2, v{T0}")
    k(f"v_and_b32 v{T1}, 7, v{T0}\nv_lshlrev_b32 v{T0}, 8, v{T0}\nv_and_b32 v{T2}, 3, v{VL}\nv_lshl_add_u32 v{T0}, v{T2}, 3, v{T0}")
    k("s_lshl_b32 s30, s26, 2")
    for f4 in range(4):
        k(f"s_add_u32 s31, s30, {f4}\nv_xor_b32 v{T2}, s31, v{T1}\nv_lshl_add_u32 v{VTR+f4}, v{T2}, 5, v{T0}")
        for q in range(1, NS): k(f"v_add_u32 v{VTR+4*q+f4}, {2*q*STG}, v{VTR+f4}")
    k(f"s_mul_i32 s30, s27, 3072\ns_add_u32 s30, s30, 16384\nv_lshlrev_b32 v{VHR}, 4, v{VL}\nv_add_u32 v{VHR}, s30, v{VHR}")
    for q in range(1, NS): k(f"v_add_u32 v{VHR+q}, {2*q*STG}, v{VHR}")
    k(f"s_mul_i32 s31, s25, 6\ns_mul_i32 s38, s27, 3\ns_add_u32 s31, s31, s38\ns_mul_i32 s31, s31, {144*1024}")
    k(f"s_lshl_b32 s38, s24, 12\ns_add_u32 s31, s31, s38\ns_lshl_b32 s38, s26, 11\ns_add_u32 s31, s31, s38\ns_add_u32 s40, s31, {WS_U}")
    k(f"s_lshr_b32 s30, s10, 1\ns_mul_i32 s30, s30, 6\ns_add_u32 s30, s30, s25\ns_mul_i32 s30, s30, 9\ns_add_u32 s30, s30, s47\ns_lshl_b32 s30, s30, 7\ns_add_u32 s41, s30, {F4}")
    k("s_waitcnt vmcnt(0)")
    for f4 in range(4):
        for dt in range(3):
            for h2 in range(2):
                k(f"v_lshlrev_b32 v{ACC+(f4*3+dt)*4+2*h2}, 16, v{B1+f4*2+h2}\nv_and_b32 v{ACC+(f4*3+dt)*4+2*h2+1}, 0xffff0000, v{B1+f4*2+h2}")
    def reads(st, slot, ks, rs):
        hi = slot >> 1; off = (slot & 1) * STG
        out = [f"ds_read_b128 {v(HF+rs*12+dt*4,4)}, v{VHR+hi} offset:{off+ks*6144+dt*1024}" for dt in range(3)]
        for f4 in range(4):
            for hf in range(2):
                out.append(f"ds_read_b64_tr_b16 {v(WF+rs*16+f4*4+hf*2,2)}, v{VTR+4*hi+f4} offset:{off+ks*8192+hf*4096}")
        return out
    PG = int(os.environ.get("PG4", 0))
    if PG:
        k(f"s_lshl_b32 s42, s10, 7\ns_add_u32 s42, s42, {FP}\nv_mov_b32 v{B1}, 0\nv_mov_b32 v{B1+1}, 1\ns_add_u32 s43, s11, s28\ns_cmp_eq_u32 s43, 0\ns_cselect_b32 s43, {PG}, 99")
        r0 = reads
        def reads(st, slot, ks, rs):
            out = r0(st, slot, ks, rs)
            if st == 0 and ks == 1:
                L = k.lab("PG")
                out.append(f"s_cmp_lg_u32 s36, s43\ns_cbranch_scc1 {L}\ns_mov_b64 exec, 1\nbuffer_store_dword v{B1+1}, v{B1}, s[20:23], s42 offen sc0 sc1\ns_mov_b64 exec, -1\n{L}:")
            return out
    def mf(st, ks, rs):
        return [f"v_mfma_f32_16x16x32_bf16 {v(ACC+(f4*3+dt)*4,4)}, {v(WF+rs*16+f4*4,4)}, {v(HF+rs*12+dt*4,4)}, {v(ACC+(f4*3+dt)*4,4)}"
                for f4 in range(4) for dt in range(3)]
    consumer_loop(k, N, R, reads, mf, per=1, stamp0=None if (os.environ.get('P3S') or os.environ.get('P2S')) else 14, **({'groups': int(os.environ.get('G4', 2))} if os.environ.get('PIPE', '2') == '2' else {}))
    k("STAMP 7")
    c1 = -2.0 * math.sqrt(2.0 / math.pi) * math.log2(math.e)
    c2 = c1 * 0.044715
    CC = VTR
    k(f"v_mov_b32 v{CC}, {f32(c2)}\nv_mov_b32 v{CC+1}, {f32(c1)}")
    k(f"v_lshlrev_b32 v{T0}, 4, v{VL}")
    TT = WF + 16; PKD = HF
    for dt in range(3):
        for pr in range(2):
            xb = [ACC + ((2 * pr + h) * 3 + dt) * 4 for h in range(2)]
            xs = [xb[h] + r for h in range(2) for r in range(4)]
            for h in range(2):
                for h2 in range(2): k(f"v_pk_mul_f32 {v(TT+4*h+2*h2,2)}, {v(xb[h]+2*h2,2)}, {v(xb[h]+2*h2,2)}")
            for n in range(4): k(f"v_pk_fma_f32 {v(TT+2*n,2)}, {v(TT+2*n,2)}, {v(CC,2)}, {v(CC,2)} op_sel:[0,0,1] op_sel_hi:[1,0,1]")
            for h in range(2):
                for h2 in range(2): k(f"v_pk_mul_f32 {v(TT+4*h+2*h2,2)}, {v(TT+4*h+2*h2,2)}, {v(xb[h]+2*h2,2)}")
            for n in range(8): k(f"v_exp_f32 v{TT+n}, v{TT+n}")
            for n in range(4): k(f"v_pk_add_f32 {v(TT+2*n,2)}, {v(TT+2*n,2)}, 1.0 op_sel_hi:[1,0]")
            for n in range(8): k(f"v_rcp_f32 v{TT+n}, v{TT+n}")
            for h in range(2):
                for h2 in range(2): k(f"v_pk_mul_f32 {v(xb[h]+2*h2,2)}, {v(xb[h]+2*h2,2)}, {v(TT+4*h+2*h2,2)}")
            o = PKD + (dt * 2 + pr) * 4
            for n in range(4): k(f"v_cvt_pk_bf16_f32 v{o+n}, v{xs[2*n]}, v{xs[2*n+1]}")
            k(f"buffer_store_dwordx4 {v(o,4)}, v{T0}, s[20:23], s40 offen offset:{pr*1024}{WT}")
        k(f"s_add_u32 s40, s40, {144*1024}")
    k(f"v_mov_b32 v{T1}, 0\nv_mov_b32 v{T2}, 1\ns_waitcnt vmcnt(0)")
    last_wave_flag(k, T1, T2, T3, LCNT + 8, 20, 41)
    k(f"s_branch {NXT}")
    k(f"{PROD}:\ns_and_b32 s26, s28, 1\ns_cmp_ge_u32 s28, 6\ns_cbranch_scc1 {PA}")
    VD = 10
    for q in range(2):
        k(f"v_add_u32 v{T0}, {4*q}, v{VG}")
        k(f"v_lshlrev_b32 v{T1}, 1, v{T0}\nv_xor_b32 v{T1}, v{T1}, v{VI}\nv_lshlrev_b32 v{T1}, 4, v{T1}")
        k(f"v_mul_u32_u24 v{T0}, 9216, v{T0}\nv_add_u32 v{VD+q}, v{T0}, v{T1}")
    for q in range(2, 8): k(f"v_add_u32 v{VD+q}, {8*9216}, v{VD+q-2}")
    k(f"s_lshl_b32 s32, s24, 8\ns_mul_i32 s30, s26, {32*9216}\ns_add_u32 s32, s32, s30\ns_lshl_b32 s34, s26, 13")
    srd(k, 12, PW1, S_ * F_ * 2)
    if 'g4' in XM:
        NG = k.lab("NG")
        k(f"s_cmp_ge_u32 s2, 192\ns_cbranch_scc1 {NG}")
        wait_local(k, 20, LCNT + 4, n=4)
        k(f"{NG}:")
    F4N = int(os.environ.get("FIRST4", 2))
    SPF = os.environ.get("SPF", "")
    def issue_w1(st, slot):
        out = [dma(34, slot * STG + q * 1024, VD + q, 12, 32) for q in range(8)] + [f"s_add_u32 s32, s32, {64*9216}"]
        if st == F4N - 1 and SPF:
            a_, b_ = [int(t) * (S_ * F_ * 2 // 128) for t in SPF.split(":")]
            per = (b_ - a_) // 432 // 64
            t = f"s_lshl_b32 s30, s2, 1\ns_add_u32 s30, s30, s26\ns_mul_i32 s30, s30, {per*64}\ns_add_u32 s30, s30, {a_}\ns_add_u32 s60, s{PW2}, s30\ns_addc_u32 s61, s{PW2+1}, 0"
            for i in range(per): t += f"\ns_load_dword s62, s[60:61], {i*64}"
            out.append(t)
        return out
    producer_loop(k, N, R, 8, issue_w1, NXT, first=F4N)
    k(f"{PA}:")
    k(f"v_lshlrev_b32 v{VD}, 4, v{VL}")
    for q in range(1, 6): k(f"v_add_u32 v{VD+q}, {PS}, v{VD+q-1}")
    k(f"s_mul_i32 s33, s25, {6*PS}\ns_lshl_b32 s30, s26, 10\ns_add_u32 s33, s33, s30\ns_add_u32 s33, s33, {WS_HN}")
    k("s_mul_i32 s35, s26, 6144\ns_add_u32 s35, s35, 16384")
    k(f"s_lshl_b32 s30, s25, 12\ns_add_u32 s30, s30, {F3}\nv_lshlrev_b32 v{T0}, 7, v{VL}")
    W7, WD = k.lab("W7"), k.lab("WD")
    k(f"s_cmp_eq_u32 s28, 7\ns_cbranch_scc1 {W7}")
    if 'nogate' not in XM:
        NG, NG2 = k.lab("NG"), k.lab("NG")
        k(f"s_cmp_ge_u32 s2, 192\ns_cbranch_scc1 {NG}")
        wait_local(k, 20, LCNT + 4)
        k(f"s_branch {NG2}\n{NG}:\ns_mov_b64 exec, 1")
        poll(k, T0, 20, 1, 20, 30, sleep=8)
        k(f"s_mov_b64 exec, -1\n{NG2}:")
    k("s_mov_b32 exec_hi, 0")
    poll(k, T0, 20, 1, 20, 30)
    k("s_mov_b32 exec_hi, -1")
    lds_signal(k, 20, LCNT + 24)
    k(f"s_branch {WD}\n{W7}:")
    wait_local(k, 20, LCNT + 24, n=1)
    k(f"{WD}:\nSTAMP 7")
    PG = int(os.environ.get("PG4", 0))
    def issue_hn(st, slot):
        out = [dma(35, slot * STG + q * 1024, VD + q, 20, 33, SC) for q in range(6)] + ["s_add_u32 s33, s33, 2048"]
        return out
    producer_loop(k, N, R, 6, issue_hn, NXT)
    k(f"{PF}:\ns_sub_u32 s29, s2, 216")
    pf(k, "PF4", 29, 40, 512, 10)
    if 'early4' in XM: w1slow(k)
    if 'nopoison' not in XM:
        srd(k, 56, PDBG, 256)
        k(f"s_mul_i32 s30, s29, 196608\ns_add_u32 s30, s30, {WS_P}\nv_lshlrev_b32 v10, 4, v0\nv_mov_b32 v12, -1\nv_mov_b32 v13, -1\nv_mov_b32 v14, -1\nv_mov_b32 v15, -1")
        for i in range(24): k(f"buffer_store_dwordx4 v[12:15], v10, s[20:23], s30 offen{WT}\ns_add_u32 s30, s30, 8192")
        NZ = k.lab("NZ")
        k(f"v_mov_b32 v16, 4\nv_mov_b32 v17, 1\ns_waitcnt vmcnt(0)\ns_barrier\ns_cmp_lg_u32 s28, 0\ns_cbranch_scc1 {NZ}")
        k(f"s_mov_b64 exec, 1\nbuffer_atomic_add v17, v16, s[56:59], 0 offen sc1\ns_mov_b64 exec, -1\n{NZ}:")
    if 'noslow' not in XM:
        def gated(flag_off, lines_code):
            NP = k.lab("NP")
            k(f"s_cmp_lg_u32 s28, 0\ns_cbranch_scc1 {NP}\ns_mov_b32 s30, {flag_off}\nv_mov_b32 v12, 0\ns_mov_b64 exec, 1")
            poll(k, 12, 13, 1, 20, 30, sleep=8)
            k(f"s_mov_b64 exec, -1\n{NP}:\ns_barrier")
            lines_code()
        def w2slow():
            srd(k, 52, PW2, S_ * F_ * 2)
            k(f"s_lshr_b32 s60, s10, 1\ns_mul_i32 s60, s60, {1152*4096}\ns_and_b32 s61, s10, 1\ns_lshl_b32 s61, s61, 11\ns_add_u32 s60, s60, s61\ns_add_u32 s60, s60, 384")
            k(f"s_sub_u32 s62, s11, 27\nv_lshrrev_b32 v10, 1, v0\nv_mul_u32_u24 v10, 5, v10\nv_add_u32 v10, s62, v10\nv_lshlrev_b32 v10, 12, v10\nv_and_b32 v11, 1, v0\nv_lshl_add_u32 v10, v11, 10, v10")
            k(f"v_cmp_gt_u32 vcc, {2*231}, v0\nv_mov_b32 v11, 0x7ff00000\nv_cndmask_b32 v10, v11, v10, vcc")
            k(f"buffer_load_dword v{DUMMY}, v10, s[52:55], s60 offen")
        gated(F3, lambda: w1slow(k))
        if 'now2' not in XM: gated(F4 + 128 * 2, w2slow)
    if os.environ.get("PG4"):
        NP = k.lab("NP")
        k(f"s_cmp_lg_u32 s28, 0\ns_cbranch_scc1 {NP}\ns_lshl_b32 s30, s10, 7\ns_add_u32 s30, s30, {FP}\nv_mov_b32 v12, 0\ns_mov_b64 exec, 1")
        poll(k, 12, 13, 1, 20, 30, sleep=8)
        k(f"s_mov_b64 exec, -1\n{NP}:\ns_barrier")
        srd(k, 52, PW2, S_ * F_ * 2)
        k(f"s_lshr_b32 s60, s10, 1\ns_mul_i32 s60, s60, {1152*4096}\ns_and_b32 s61, s10, 1\ns_lshl_b32 s61, s61, 11\ns_add_u32 s60, s60, s61")
        k(f"s_sub_u32 s62, s11, 27\ns_mul_i32 s62, s62, {32*4096}\ns_add_u32 s60, s60, s62\nv_lshrrev_b32 v10, 4, v0\nv_lshlrev_b32 v10, 12, v10\nv_and_b32 v11, 15, v0\nv_lshl_add_u32 v10, v11, 7, v10")
        for i in range(8):
            k(f"buffer_load_dword v{DUMMY}, v10, s[52:55], s60 offen\ns_add_u32 s60, s60, {160*4096}")
    if os.environ.get("JIT4"):
        s0, sw = [int(t) for t in os.environ["JIT4"].split(",")]
        k(f"s_mov_b32 s30, {F3}\nv_lshlrev_b32 v12, 7, v0\nv_cmp_gt_u32 vcc, 192, v0\ns_and_saveexec_b64 s[62:63], vcc")
        NP = k.lab("NP")
        k(f"s_cbranch_execz {NP}")
        poll(k, 12, 13, 1, 20, 30)
        k(f"{NP}:\ns_mov_b64 exec, -1\ns_barrier")
        w1_addr(k, 10)
        k("s_sub_u32 s29, s11, 27")
        k(f"v_lshrrev_b32 v12, 4, v0\nv_mul_u32_u24 v12, {PS}, v12\nv_and_b32 v13, 15, v0\nv_lshl_add_u32 v12, v13, 7, v12")
        k(f"v_add_u32 v13, {32*PS}, v12\nv_mov_b32 v14, 0x7ff00000\nv_cmp_gt_u32 vcc, 64, v0\nv_cndmask_b32 v13, v14, v13, vcc")
        k(f"s_lshl_b32 s61, s29, 11\ns_add_u32 s61, s61, {WS_HN + s0*2048}\ns_mul_i32 s62, s29, {64*9216}\ns_add_u32 s60, s60, s62\ns_add_u32 s60, s60, {s0*64*9216}")
        for st in range(s0, 32, 5):
            k(f"buffer_load_dword v{DUMMY}, v12, s[20:23], s61 offen\nbuffer_load_dword v{DUMMY}, v13, s[20:23], s61 offen\ns_add_u32 s61, s61, {5*2048}")
            if st + 4 >= sw:
                k(f"buffer_load_dword v{DUMMY}, v10, s[52:55], s60 offen\ns_add_u32 s62, s60, {32*9216}\nbuffer_load_dword v{DUMMY}, v10, s[52:55], s62 offen")
            k(f"s_add_u32 s60, s60, {5*64*9216}")
    k(f"s_branch {NXT}")

def p5(k, ENT):
    STG = 34816; R = 4; N = 18
    PROD = k.lab("P5PROD"); PA = k.lab("P5PA"); FIN = k.lab("FIN")
    k(f"{ENT}:\nSTAMP 8")
    k("s_lshr_b32 s26, s10, 1\ns_and_b32 s25, s11, 3\ns_lshr_b32 s24, s11, 2")
    if 'nomap5' not in XM:
        k("s_sub_u32 s30, s10, 5\ns_cmp_lt_u32 s30, 2\ns_cselect_b32 s30, 7, 6\ns_add_u32 s24, s24, s30\ns_and_b32 s24, s24, 7")
    k("s_and_b32 s29, s10, 1\ns_lshl_b32 s29, s29, 3\ns_add_u32 s24, s24, s29\ns_and_b32 s29, s26, 1")
    ids16(k)
    k(f"s_cmp_ge_u32 s28, 4\ns_cbranch_scc1 {PROD}")
    VTR = 10; VUR = VTR + 2 * R; B2 = VUR + R
    IDN, HR, UF = 24, 28, 48
    WF = UF + 72; ACC = WF + 16
    srd(k, 16, PB2, S_ * 2)
    srd(k, 40, POUT, S_ * D_ * 2)
    k(f"s_lshl_b32 s30, s24, 8\ns_lshl_b32 s31, s28, 6\ns_add_u32 s30, s30, s31\ns_lshl_b32 s31, s29, 5\ns_add_u32 s30, s30, s31\nv_lshlrev_b32 v{T0}, 1, v{VI}")
    k(f"buffer_load_ushort v{B2}, v{T0}, s[16:19], s30 offen")
    k(f"v_lshlrev_b32 v{T3}, 4, v{VL}")
    k(f"s_mul_i32 s49, s25, {9*PS}\ns_lshl_b32 s32, s24, 12\ns_add_u32 s49, s49, s32\ns_lshl_b32 s32, s28, 10\ns_add_u32 s49, s49, s32\ns_add_u32 s49, s49, {WS_H}")
    k(f"s_lshr_b32 s32, s26, 1\ns_mul_i32 s32, s32, {5*PS}\ns_add_u32 s49, s49, s32")
    k(f"v_bfe_u32 v{T0}, v{VL}, 2, 2\nv_lshl_add_u32 v{T0}, v{VG}, 2, v{T0}")
    k(f"v_and_b32 v{T1}, 7, v{T0}\nv_lshlrev_b32 v{T0}, 8, v{T0}\nv_and_b32 v{T2}, 3, v{VL}\nv_lshl_add_u32 v{T0}, v{T2}, 3, v{T0}")
    k("s_lshl_b32 s30, s28, 1\ns_add_u32 s30, s30, s29")
    for l in range(2):
        k(f"s_xor_b32 s31, s30, {l}\nv_xor_b32 v{T2}, s31, v{T1}\nv_lshl_add_u32 v{VTR+l}, v{T2}, 5, v{T0}")
        for sl in range(1, R): k(f"v_add_u32 v{VTR+2*sl+l}, {sl*STG}, v{VTR+l}")
    k(f"v_lshlrev_b32 v{VUR}, 4, v{VL}\nv_add_u32 v{VUR}, 16384, v{VUR}")
    for sl in range(1, R): k(f"v_add_u32 v{VUR+sl}, {sl*STG}, v{VUR}")
    k(f"v_lshlrev_b32 v{T0}, 2, v{VG}\nv_sub_u32 v{T0}, v{VI}, v{T0}\nv_mov_b32 v{T1}, 0x3f80\nv_mov_b32 v{T2}, 0x3f800000")
    k("s_cmp_eq_u32 s29, 0\ns_cselect_b64 s[38:39], -1, 0")
    for j2 in range(2):
        k(f"v_cmp_eq_u32 vcc, {2*j2}, v{T0}\nv_cndmask_b32 v{UF}, 0, v{T1}, vcc")
        k(f"v_cmp_eq_u32 vcc, {2*j2+1}, v{T0}\nv_cndmask_b32 v{UF}, v{UF}, v{T2}, vcc")
        k(f"v_cndmask_b32 v{IDN+j2}, 0, v{UF}, s[38:39]\nv_cndmask_b32 v{IDN+2+j2}, v{UF}, 0, s[38:39]")
    for r in range(72): k(f"v_mov_b32 v{ACC+r}, 0")
    k(f"s_lshl_b32 s32, s24, 2\ns_add_u32 s32, s32, s25")
    k(f"s_mul_i32 s33, s32, {48*2560}\ns_mul_i32 s30, s28, 2560\ns_add_u32 s33, s33, s30\ns_add_u32 s33, s33, {PB}")
    for x in (1, 2, 3):
        k(f"s_xor_b32 s30, s26, {x}\ns_sub_u32 s31, s26, s30\ns_sub_u32 s31, s31, 1\ns_and_b32 s31, s31, 3")
        k(f"s_mul_i32 s30, s30, 3\ns_add_u32 s30, s30, s31\ns_mul_i32 s30, s30, {4*2560}\ns_add_u32 s{44+x}, s30, s33")
    k(f"s_mul_i32 s30, s26, {12*2560}\ns_add_u32 s33, s33, s30")
    k(f"s_lshl_b32 s35, s32, 11\ns_lshl_b32 s30, s28, 9\ns_add_u32 s35, s35, s30\ns_add_u32 s35, s35, {F5}\ns_lshl_b32 s30, s26, 7\ns_add_u32 s34, s30, s35")
    k(f"s_lshl_b32 s48, s24, 7\ns_lshl_b32 s31, s28, 5\ns_add_u32 s48, s48, s31\ns_lshl_b32 s31, s29, 4\ns_add_u32 s48, s48, s31\ns_mul_i32 s48, s48, 1152\ns_mul_i32 s31, s25, 288\ns_add_u32 s48, s48, s31")
    POIS = 'nopoison' not in XM
    PZ = ACC + 73
    srd(k, 56, PDBG, 256)
    k(f"v_mov_b32 v{PZ-1}, 4")
    firstr = [True]
    def reads(st, slot, ks, rs):
        out = []
        for l in range(2):
            for hf in range(2):
                out.append(f"ds_read_b64_tr_b16 {v(WF+rs*8+l*4+hf*2,2)}, v{VTR+2*slot+l} offset:{ks*8192+hf*4096}")
        for d in range(9):
            out.append(f"ds_read_b128 {v(UF+rs*36+d*4,4)}, v{VUR+slot} offset:{ks*9216+d*1024}")
        if firstr[0]:
            firstr[0] = False
            if POIS: out.append(f"buffer_load_dword v{PZ}, v{PZ-1}, s[56:59], 0 offen sc0 sc1")
            for d in range(5): out.append(f"buffer_load_dwordx4 {v(HR+4*d,4)}, v{T3}, s[20:23], s49 offen{SC}\ns_add_u32 s49, s49, {PS}")
        return out
    def mf(st, ks, rs):
        return [f"v_mfma_f32_16x16x32_bf16 {v(ACC+(d*2+l)*4,4)}, {v(UF+rs*36+d*4,4)}, {v(WF+rs*8+l*4,4)}, {v(ACC+(d*2+l)*4,4)}"
                for d in range(9) for l in range(2)]
    consumer_loop(k, N, R, reads, mf, per=1, final_barrier=False, stamp0=None if (os.environ.get('P3S') or os.environ.get('P2S')) else 15)
    k("STAMP 9")
    V16, V8, VZ, VO = VTR, VTR + 1, VTR + 2, VTR + 3
    k(f"v_lshlrev_b32 v{V16}, 4, v{VL}\nv_lshlrev_b32 v{V8}, 3, v{VL}\nv_mov_b32 v{VZ}, 0\nv_mov_b32 v{T2}, 1\ns_waitcnt vmcnt(0)")
    if POIS:
        OK = k.lab("POK")
        k(f"v_cmp_gt_u32 vcc, 40, v{PZ}\ns_mov_b32 s31, 0\ns_nop 3\ns_cbranch_vccz {OK}")
        poll(k, PZ - 1, PZ, 1, 56, 31, want=40)
        k(f"{OK}:")
    GA, GB = [0, 1, 2, 3, 4], [5, 6, 7, 8]
    def epi(aa):
        own, oth = (GA, GB) if aa == 0 else (GB, GA)
        PK = UF
        n = 0
        for x, grp, l in ((2, oth, 0), (3, oth, 1), (1, own, 1)):
            for c in range(0, len(grp), 2):
                ds = grp[c:c + 2]
                for e, d in enumerate(ds):
                    ac = ACC + (d * 2 + l) * 4
                    k(f"v_cvt_pk_bf16_f32 v{PK+n+2*e}, v{ac}, v{ac+1}\nv_cvt_pk_bf16_f32 v{PK+n+2*e+1}, v{ac+2}, v{ac+3}")
                if len(ds) == 2: k(f"buffer_store_dwordx4 {v(PK+n,4)}, v{V16}, s[20:23], s{44+x} offen offset:{c*512}{WT}")
                else: k(f"buffer_store_dwordx2 {v(PK+n,2)}, v{V8}, s[20:23], s{44+x} offen offset:{c*512}{WT}")
                n += 4
        for e, d in enumerate(own):
            ac = v(ACC + d * 8, 4)
            k(f"v_mfma_f32_16x16x32_bf16 {ac}, {v(HR+4*e,4)}, {v(IDN,4)}, {ac}")
        k(f"v_lshlrev_b32 v{B2}, 16, v{B2}")
        k(f"v_mul_u32_u24 v{VO}, 1152, v{VI}\nv_lshl_add_u32 v{VO}, v{VG}, 3, v{VO}")
        RR = UF + 40
        chunks = [own[c:c + 2] for c in range(0, len(own), 2)]
        k(f"s_add_u32 s30, s33, {4*2560}\ns_add_u32 s31, s33, {8*2560}")
        def inbox():
            regs = []
            for ci, ds in enumerate(chunks):
                for sl, so in enumerate((33, 30, 31)):
                    r = RR + (ci * 3 + sl) * 4
                    if len(ds) == 2: k(f"buffer_load_dwordx4 {v(r,4)}, v{V16}, s[20:23], s{so} offen offset:{ci*1024} sc0 sc1")
                    else: k(f"buffer_load_dwordx2 {v(r,2)}, v{V8}, s[20:23], s{so} offen offset:{ci*1024} sc0 sc1")
                    regs += list(range(r, r + 2 * len(ds)))
            return regs
        def addb2():
            for d in own:
                for h2 in range(2): k(f"v_pk_add_f32 {v(ACC+d*8+2*h2,2)}, {v(ACC+d*8+2*h2,2)}, {v(B2-(B2&1),2)} op_sel:[0,{B2&1}] op_sel_hi:[1,{B2&1}]")
        if POIS:
            addb2()
            PL, GO = k.lab("PP"), k.lab("PG")
            k(f"s_mov_b32 s37, 0x40000\ns_waitcnt vmcnt({os.environ.get('PWAIT', 0)})\n{PL}:")
            regs = inbox()
            k(f"s_waitcnt vmcnt(0)\nv_max_u32 v{T0}, v{regs[0]}, v{regs[1]}")
            for n in range(2, len(regs), 2): k(f"v_max3_u32 v{T0}, v{T0}, v{regs[n]}, v{regs[n+1]}")
            k(f"v_cmp_eq_u32 vcc, -1, v{T0}\ns_sub_u32 s37, s37, 1\ns_cmp_eq_u32 s37, 0\ns_cbranch_scc1 {GO}\ns_cbranch_vccz {GO}\ns_sleep 2\ns_branch {PL}\n{GO}:\nSTAMP 10")
        else:
            k("s_waitcnt vmcnt(0)" + ("\nSTAMP 12" if os.environ.get("P5S") else ""))
            set_flag(k, VZ, T2, 20, 34)
            if 'fw' in XM: k("s_waitcnt vmcnt(0)")
            addb2()
            k(f"v_lshlrev_b32 v{T0}, 7, v{VL}\ns_mov_b64 exec, 0xf")
            poll(k, T0, HR, 1, 20, 35)
            k("s_mov_b64 exec, -1\nSTAMP 10")
            inbox()
        TR = 'notr' not in XM
        nch = 2 * len(own)
        if TR:
            k(f"s_mul_i32 s30, s28, 2816\ns_add_u32 s30, s30, {3*STG}\nv_mul_u32_u24 v{VO}, 176, v{VI}\nv_lshl_add_u32 v{VO}, v{VG}, 3, v{VO}\nv_add_u32 v{VO}, s30, v{VO}")
            nin = -(-16 * nch // 64)
            for q in range(nin):
                k(f"v_add_u32 v{T0}, {q*64}, v{VL}\nv_mul_u32_u24 v{T1}, {-(-65536//nch)}, v{T0}\nv_lshrrev_b32 v{T1}, 16, v{T1}\nv_mul_u32_u24 v{T2}, {nch}, v{T1}\nv_sub_u32 v{T0}, v{T0}, v{T2}\nv_lshlrev_b32 v{T0}, 4, v{T0}")
                k(f"v_mul_u32_u24 v{T2}, 176, v{T1}\nv_add3_u32 v{HR+q}, v{T2}, v{T0}, s30\nv_mul_u32_u24 v{T2}, 1152, v{T1}\nv_add_u32 v{HR+4+q}, v{T2}, v{T0}")
        nst = 0
        for ci, ds in enumerate(chunks):
            if not POIS: k(f"s_waitcnt vmcnt({3*(len(chunks)-1-ci)+nst})")
            for e, d in enumerate(ds):
                o = ACC + d * 8
                for sl in range(3):
                    for h2 in range(2):
                        p = RR + (ci * 3 + sl) * 4 + 2 * e + h2
                        t = PK + (sl * 2 + h2) * 2
                        k(f"v_lshlrev_b32 v{t}, 16, v{p}\nv_and_b32 v{t+1}, 0xffff0000, v{p}")
                for sl in range(3):
                    for h2 in range(2):
                        t = PK + (sl * 2 + h2) * 2
                        k(f"v_pk_add_f32 {v(o+2*h2,2)}, {v(o+2*h2,2)}, {v(t,2)}")
                k(f"v_cvt_pk_bf16_f32 v{o}, v{o}, v{o+1}\nv_cvt_pk_bf16_f32 v{o+1}, v{o+2}, v{o+3}")
                if TR: k(f"ds_write_b64 v{VO}, {v(o,2)} offset:{(d-own[0])*32}")
                else:
                    k(f"buffer_store_dwordx2 {v(o,2)}, v{VO}, s[40:43], s48 offen offset:{d*32}" + os.environ.get("OUTF", " nt"))
                    nst += 1
        if TR:
            k("s_waitcnt lgkmcnt(0)")
            for q in range(nin): k(f"ds_read_b128 {v(PK+16+4*q,4)}, v{HR+q}")
            for q in range(nin):
                k(f"s_waitcnt lgkmcnt({nin-1-q})")
                if (q + 1) * 64 > 16 * nch: k("s_mov_b32 exec_hi, 0")
                k(f"buffer_store_dwordx4 {v(PK+16+4*q,4)}, v{HR+4+q}, s[40:43], s48 offen offset:{own[0]*32}" + os.environ.get("OUTF", " nt"))
        k("s_endpgm")
    A1 = k.lab("A1")
    k(f"s_cmp_ge_u32 s26, 2\ns_cbranch_scc1 {A1}")
    epi(0)
    k(f"{A1}:")
    epi(1)
    k(f"{PROD}:\ns_and_b32 s29, s28, 1")
    ORD = 'noord' not in XM
    k("s_sub_u32 s38, 1, s26\ns_and_b32 s38, s38, 3\ns_cmp_eq_u32 s38, 0\ns_cselect_b32 s39, 6, 7")
    R5 = 'rot5' in XM
    if R5: k("s_and_b32 s50, s24, 7\ns_sub_u32 s30, s50, s39\ns_cmp_ge_u32 s50, s39\ns_cselect_b32 s50, s30, s50")
    for n in range(9):
        if not ORD:
            k(f"s_mov_b32 s{40+n}, {n}"); continue
        if R5:
            k(f"s_add_u32 s51, s50, {n}\ns_sub_u32 s30, s51, s39\ns_cmp_ge_u32 s51, s39\ns_cselect_b32 s51, s30, s51\ns_mov_b32 s{40+n}, s51")
            for d in (0, 3, 6):
                k(f"s_add_u32 s30, s38, {d}\ns_cmp_le_u32 s30, s51\ns_addc_u32 s{40+n}, s{40+n}, 0")
        else:
          k(f"s_mov_b32 s{40+n}, {n}")
          for d in (0, 3, 6):
            if n - d >= 0: k(f"s_cmp_le_u32 s38, {n-d}\ns_addc_u32 s{40+n}, s{40+n}, 0")
        if n >= 6: k(f"s_sub_u32 s30, {n}, s39\ns_lshl_b32 s30, s30, 2\ns_add_u32 s30, s30, s38\ns_cmp_le_u32 s39, {n}\ns_cselect_b32 s{40+n}, s30, s{40+n}")
    k(f"s_cmp_ge_u32 s28, 6\ns_cbranch_scc1 {PA}")
    VD = 10
    for q in range(2):
        k(f"v_add_u32 v{T0}, {4*q}, v{VG}")
        k(f"v_lshlrev_b32 v{T1}, 1, v{T0}\nv_xor_b32 v{T1}, v{T1}, v{VI}\nv_lshlrev_b32 v{T1}, 4, v{T1}")
        k(f"v_lshl_add_u32 v{VD+q}, v{T0}, 12, v{T1}")
    for q in range(2, 8): k(f"v_add_u32 v{VD+q}, {8*4096}, v{VD+q-2}")
    k(f"s_mul_i32 s32, s26, {1152*4096}\ns_lshl_b32 s30, s29, 17\ns_add_u32 s32, s32, s30\ns_lshl_b32 s30, s24, 8\ns_add_u32 s32, s32, s30\ns_lshl_b32 s34, s29, 13")
    srd(k, 12, PW2, F_ * S_ * 2)
    if 'g5' in XM:
        NG = k.lab("NG")
        k(f"s_cmp_ge_u32 s2, 216\ns_cbranch_scc1 {NG}")
        wait_local(k, 20, LCNT + 8, n=4)
        k(f"{NG}:")
    producer_loop(k, N, R, 8, lambda st, slot: [f"s_lshl_b32 s33, s{40+(st>>1)}, 19\ns_add_u32 s33, s33, s32" + (f"\ns_add_u32 s33, s33, {64*4096}" if st & 1 else "")] +
                  [dma(34, slot * STG + q * 1024, VD + q, 12, 33) for q in range(8)], FIN, final_barrier=False, first=int(os.environ.get("FIRST5", 2)), gate=lambda st: None)
    k(f"{PA}:")
    k(f"v_lshlrev_b32 v{VD}, 4, v{VL}")
    for d in range(1, 9): k(f"v_add_u32 v{VD+d}, {144*1024}, v{VD+d-1}")
    k(f"s_mul_i32 s33, s25, {9*144*1024}\ns_mul_i32 s30, s26, {36*1024}\ns_add_u32 s33, s33, s30\ns_lshl_b32 s30, s29, 10\ns_add_u32 s33, s33, s30\ns_add_u32 s33, s33, {WS_U}")
    k("s_mul_i32 s35, s29, 9216\ns_add_u32 s35, s35, 16384")
    k(f"s_mul_i32 s30, s25, 3\ns_lshr_b32 s30, s30, 1\ns_mul_i32 s31, s26, 6\ns_add_u32 s30, s30, s31\ns_mul_i32 s30, s30, {9*128}\ns_add_u32 s30, s30, {F4}")
    k(f"v_lshlrev_b32 v{T0}, 7, v{VL}")
    W7, WD = k.lab("W7"), k.lab("WD")
    k(f"s_mov_b32 s49, s30\ns_cmp_eq_u32 s28, 7\ns_cbranch_scc1 {W7}")
    if 'nogate' not in XM:
        NG, NG2 = k.lab("NG"), k.lab("NG")
        k(f"s_cmp_ge_u32 s2, 216\ns_cbranch_scc1 {NG}")
        wait_local(k, 20, LCNT + 8)
        k(f"s_branch {NG2}\n{NG}:\ns_lshl_b32 exec_lo, 1, s40\ns_mov_b32 exec_hi, 0")
        poll(k, T0, 20, 1, 20, 30, sleep=8)
        k(f"{NG2}:")
    k("s_lshl_b32 s31, 0x111, s38\ns_and_b32 s31, s31, 0x1ff\ns_mul_i32 s31, s31, 0x201\ns_andn2_b32 exec_lo, 0x3ffff, s31\ns_mov_b32 exec_hi, 0\ns_mov_b32 s49, s30" if ORD else "s_mov_b64 exec, 0x3ffff")
    poll(k, T0, 20, 1, 20, 30)
    k("s_mov_b64 exec, -1")
    lds_signal(k, 20, LCNT + 28)
    k(f"s_branch {WD}\n{W7}:")
    wait_local(k, 20, LCNT + 28, n=1)
    k(f"{WD}:\nSTAMP 9")
    def gate(st):
        if st == 12 and ORD:
            k("s_mov_b64 exec, 0x3ffff")
            poll(k, T0, 20, 1, 20, 49)
            k("s_mov_b64 exec, -1")
    producer_loop(k, N, R, 9, lambda st, slot: [f"s_lshl_b32 s32, s{40+(st>>1)}, 12\ns_add_u32 s32, s32, s33" + ("\ns_add_u32 s32, s32, 2048" if st & 1 else "")] +
                  [dma(35, slot * STG + q * 1024, VD + q, 20, 32, SC) for q in range(9)], FIN, final_barrier=False, gate=gate)
    k(f"{FIN}:\ns_endpgm")

NAME = "sequential_preLN__sliding_block__mixer_token_mlp__prompt_kernel"
def gen_mega():
    k = Kern(NAME, 512, 256, LCNT + 64)
    k.lab = (lambda f: (lambda base="L": f(base).replace(NAME[:-7], "m")))(k.lab)
    END = k.lab("END")
    k(f"s_cmp_ge_u32 s2, 256\ns_cbranch_scc1 {END}")
    k("s_load_dwordx16 s[64:79], s[0:1], 0\ns_load_dwordx4 s[80:83], s[0:1], 64\ns_load_dwordx2 s[84:85], s[0:1], 80")
    k("s_and_b32 s10, s2, 7\ns_lshr_b32 s11, s2, 3")
    if 'nocode' not in XM:
        H = k.lab("PC"); SK = k.lab("SKC")
        k(f"s_cmp_lt_u32 s2, 192\ns_cbranch_scc1 {SK}\ns_getpc_b64 s[60:61]\n{H}:\ns_sub_u32 s60, s60, {H}-L_text_begin\ns_subb_u32 s61, s61, 0")
        k(f"s_sub_u32 s62, s11, 24\ns_lshl_b32 s62, s62, 7\nv_lshlrev_b32 v{T0}, 10, v0\nv_add_u32 v{T0}, s62, v{T0}")
        k(f"s_mov_b32 s62, L_text_end-L_text_begin\nv_cmp_gt_u32 vcc, s62, v{T0}\ns_and_saveexec_b64 s[62:63], vcc\ns_cbranch_execz {SK}\nglobal_load_dword v{DUMMY}, v{T0}, s[60:61]\n{SK}:\ns_mov_b64 exec, -1")
    lane_ids(k, VL, 2, 28)
    E2a, E2b, E3, E4, E5 = [k.lab(n) for n in ("P2A", "P2B", "P3", "P4", "P5")]
    p1(k, (E2a, E2b))
    p2(k, (E2a, E2b), E3)
    p3(k, E3, E4)
    p4(k, E4, E5)
    p5(k, E5)
    k(f"{END}:\ns_endpgm")
    return k
```

```python
from common import *
import os

def producer_loop(k, N, R, P, issue, nxt, first=2, cnt=36, tail=None, final_barrier=True, gate=None):
    special = getattr(issue, "special_from", N)
    def do(st):
        if gate: gate(st)
        for t in issue(st, st % R): k(t)
    first = min(first, R)
    for st in range(first): do(st)
    k(f"s_waitcnt vmcnt({(first - 1) * P})\ns_barrier")
    issued = first
    for st in range(issued, min(N, R)): do(st)
    issued = min(N, R)
    k(f"s_waitcnt vmcnt({(issued - 2) * P})\ns_barrier")
    b = 1
    nsteady = N - R
    nloop = 0
    while gate is None and (nloop + 1) * R <= nsteady and R + (nloop + 1) * R - 1 < special: nloop += 1
    if nloop >= 2:
        L = k.lab("PL")
        k(f"s_mov_b32 s{cnt}, {nloop}\n{L}:")
        for i in range(R):
            do(R + i)
            k(f"s_waitcnt vmcnt({(R - 2) * P})\ns_barrier")
        k(f"s_sub_u32 s{cnt}, s{cnt}, 1\ns_cmp_lg_u32 s{cnt}, 0\ns_cbranch_scc1 {L}")
        b += nloop * R; issued += nloop * R
    while b < N - 1:
        if issued < N:
            do(issued); issued += 1
        k(f"s_waitcnt vmcnt({(issued - (b + 1) - 1) * P})")
        if b == N - 2 and tail: tail(k)
        k("s_barrier")
        b += 1
    if final_barrier: k("s_barrier")
    k(f"s_branch {nxt}")

def consumer_loop(k, N, R, reads, mf, cnt=36, per=2, special_from=None, final_barrier=True, before_last=None, stamp0=None):
    special_from = N if special_from is None else special_from
    if os.environ.get("STG_STAMP") and stamp0 == 12: special_from = 0; k("s_mov_b32 s36, 1")
    if os.environ.get("STG_STAMP") and stamp0 != 12: stamp0 = None
    k("s_barrier")
    if stamp0 is not None: k(f"STAMP {stamp0}")
    for t in reads(0, 0, 0, 0): k(t)
    def stage(st, last=False):
        slot = st % R
        k("s_waitcnt lgkmcnt(0)")
        for t in interleave(mf(st, 0, 0), reads(st, slot, 1, 1), 0, per): k(t)
        fill = []
        if not last:
            k("s_waitcnt lgkmcnt(0)\ns_barrier")
            fill = reads(st + 1, (slot + 1) % R, 0, 0)
        else:
            k("s_waitcnt lgkmcnt(0)")
            if final_barrier: k("s_barrier")
        for t in interleave(mf(st, 1, 1), fill, 0, per): k(t)
    nloop = 0
    while (nloop + 1) * R < N and (nloop + 1) * R < special_from: nloop += 1
    st = 0
    if nloop >= 2:
        L = k.lab("CL")
        k(f"s_mov_b32 s{cnt}, {nloop}\n{L}:")
        for i in range(R): stage(i)
        k(f"s_sub_u32 s{cnt}, s{cnt}, 1\ns_cmp_lg_u32 s{cnt}, 0\ns_cbranch_scc1 {L}")
        st = nloop * R
    while st < N:
        if os.environ.get("STG_STAMP") and stamp0 == 12 and st in (1, 2, 4): k(f"STAMP {13 + (1, 2, 4).index(st)}")
        if st == N - 1 and before_last: before_last()
        stage(st, st == N - 1); st += 1

def dma(m0base, off, vaddr, srd, soff, flags=""):
    return f"s_add_u32 m0, s{m0base}, {off}\ns_nop 0\nbuffer_load_dwordx4 v{vaddr}, s[{srd}:{srd+3}], s{soff} offen{flags} lds"

def poll(k, vaddr, vdst, nd, srd, soff, cnt=37, sleep=True, want=None):
    P, G = k.lab("POLL"), k.lab("GO")
    op = {1: "dword", 2: "dwordx2", 4: "dwordx4"}[nd]
    k(f"s_mov_b32 s{cnt}, 0x40000\n{P}:")
    if os.environ.get("APOLL") and nd == 1:
        k(f"v_mov_b32 v{vdst}, 0\nbuffer_atomic_or v{vdst}, v{vaddr}, s[{srd}:{srd+3}], s{soff} offen sc0 sc1\ns_waitcnt vmcnt(0)")
    else:
        k(f"buffer_load_{op} {v(vdst, nd)}, v{vaddr}, s[{srd}:{srd+3}], s{soff} offen sc0 sc1\ns_waitcnt vmcnt(0)")
    for i in range(1, nd): k(f"v_min_u32 v{vdst}, v{vdst}, v{vdst+i}")
    k((f"v_cmp_eq_u32 vcc, 0, v{vdst}" if want is None else f"v_cmp_gt_u32 vcc, {want}, v{vdst}") + f"\ns_sub_u32 s{cnt}, s{cnt}, 1\ns_cmp_eq_u32 s{cnt}, 0\ns_cbranch_scc1 {G}")
    if sleep:
        k(f"s_cbranch_vccz {G}\ns_sleep {int(sleep)}\ns_branch {P}\n{G}:")
    else:
        k(f"s_cbranch_vccnz {P}\n{G}:")

def set_flag(k, vz, vone, srd, soff):
    k(f"s_mov_b64 exec, 1\nbuffer_store_dword v{vone}, v{vz}, s[{srd}:{srd+3}], s{soff} offen sc0 sc1\ns_mov_b64 exec, -1")


def last_wave_flag(k, vz, vone, vt, ldsoff, srd, soff, n=4):
    S = k.lab("NL")
    k(f"v_mov_b32 v{vt}, {ldsoff}\ns_mov_b64 exec, 1\nds_add_rtn_u32 v{vt}, v{vt}, v{vone}\ns_waitcnt lgkmcnt(0)\nv_readfirstlane_b32 s31, v{vt}")
    k(f"s_cmp_lg_u32 s31, {n-1}\ns_cbranch_scc1 {S}\nbuffer_store_dword v{vone}, v{vz}, s[{srd}:{srd+3}], s{soff} offen sc0 sc1")
    k(f"v_mov_b32 v{vt}, {ldsoff}\ns_waitcnt vmcnt(0)\nds_add_u32 v{vt}, v{vone}\n{S}:\ns_mov_b64 exec, -1")

def lds_signal(k, vt, ldsoff):
    k(f"v_mov_b32 v{vt}, {ldsoff}\nv_mov_b32 v{vt+1}, 1\nds_write_b32 v{vt}, v{vt+1}")

def wait_local(k, vt, ldsoff, n=int(os.environ.get('LWN', 5)), cnt=37):
    P, G = k.lab("LW"), k.lab("LG")
    k(f"s_mov_b32 s{cnt}, 0x400000\n{P}:\nv_mov_b32 v{vt}, {ldsoff}\nds_read_b32 v{vt}, v{vt}\ns_waitcnt lgkmcnt(0)\nv_readfirstlane_b32 s31, v{vt}")
    k(f"s_cmp_ge_u32 s31, {n}\ns_cbranch_scc1 {G}\ns_sub_u32 s{cnt}, s{cnt}, 1\ns_cmp_eq_u32 s{cnt}, 0\ns_cbranch_scc1 {G}\ns_sleep 1\ns_branch {P}\n{G}:")


from asmlib import Ins

def producer_loop2(k, N, R, P, issue, nxt, first=2, cnt=36, tail=None, final_barrier=True, gate=None):
    special = getattr(issue, "special_from", N)
    def do(st):
        if gate: gate(st)
        for t in issue(st, st % R): k(t)
    first = min(first, R)
    for st in range(first): do(st)
    k(f"s_waitcnt vmcnt({(first - 1) * P})\ns_barrier")
    for st in range(first, min(N, R)): do(st)
    issued = min(N, R)
    k(f"s_waitcnt vmcnt({(issued - 2) * P})\ns_barrier")
    k(f"s_waitcnt vmcnt({(issued - 3) * P})\ns_barrier")
    b = 2
    nsteady = N - R
    nloop = 0
    while gate is None and (nloop + 1) * R <= nsteady and R + (nloop + 1) * R - 1 < special: nloop += 1
    if nloop >= 2:
        L = k.lab("PL")
        k(f"s_mov_b32 s{cnt}, {nloop}\n{L}:")
        for i in range(R):
            do(R + i)
            k(f"s_waitcnt vmcnt({(R - 3) * P})\ns_barrier")
        k(f"s_sub_u32 s{cnt}, s{cnt}, 1\ns_cmp_lg_u32 s{cnt}, 0\ns_cbranch_scc1 {L}")
        b += nloop * R; issued += nloop * R
    while b < N - 1:
        if issued < N:
            do(issued); issued += 1
        k(f"s_waitcnt vmcnt({(issued - (b + 1) - 1) * P})")
        if b == N - 2 and tail: tail(k)
        k("s_barrier")
        b += 1
    if final_barrier: k("s_barrier")
    k(f"s_branch {nxt}")

def consumer_loop2(k, N, R, reads, mf, cnt=36, per=None, special_from=None, final_barrier=True, before_last=None, stamp0=None, groups=3):
    special_from = N if special_from is None else special_from
    pend = []
    def put(it):
        for line in it.split("\n"):
            x = Ins(line)
            if x.op and x.kind == "ds": pend.append(set(x.dst))
            k(line)
    def wait_for(ms):
        src = set().union(*[Ins(m).src for m in ms])
        last = max([n for n, d in enumerate(pend) if d & src], default=-1)
        if last >= 0:
            keep = min(len(pend) - 1 - last, 15)
            k(f"s_waitcnt lgkmcnt({keep})")
            del pend[:len(pend) - keep]
    def half(main, fill):
        n = len(main); g = -(-n // groups)
        free = {q * g - 1 for q in range(1, groups)} | {n - 1}
        slots = [i for i in range(n) if i not in free]
        lds = [f for f in fill if f.startswith("ds_")]
        oth = [f for f in fill if not f.startswith("ds_")]
        pre = [f for f in oth if f.startswith("v_")]
        post = [f for f in oth if not f.startswith("v_")]
        plan = {i: [] for i in range(n)}
        si = 0
        while pre:
            plan[slots[si]] += pre[:2]; pre = pre[2:]; si += 1
        rest = slots[si:]
        extra = max(0, len(lds) - len(rest))
        fi = 0
        for m_, i_ in enumerate(rest):
            c = 2 if m_ < extra else 1
            if len(lds) < len(rest): c = 1 if fi < len(lds) else 0
            plan[i_] += lds[fi:fi + c]; fi += c
        assert fi >= len(lds)
        plan[n - 1] += post
        for i_, m in enumerate(main):
            if i_ % g == 0: wait_for(main[i_:i_ + g])
            k(m)
            for f in plan[i_]: put(f)
    k("s_barrier")
    if stamp0 is not None: k(f"STAMP {stamp0}")
    for t in reads(0, 0, 0, 0): put(t)
    def stage(st, last=False):
        slot = st % R
        half(mf(st, 0, 0), reads(st, slot, 1, 1))
        fill = []
        if not last:
            k("s_barrier")
            fill = reads(st + 1, (slot + 1) % R, 0, 0)
        elif final_barrier:
            k("s_waitcnt lgkmcnt(0)\ns_barrier"); del pend[:]
        half(mf(st, 1, 1), fill)
    nloop = 0
    while (nloop + 1) * R < N and (nloop + 1) * R < special_from: nloop += 1
    st = 0
    if nloop >= 2:
        L = k.lab("CL")
        entry = [set(d) for d in pend]
        k(f"s_mov_b32 s{cnt}, {nloop}\n{L}:")
        for i in range(R): stage(i)
        assert [set(d) for d in pend] == entry[len(entry) - len(pend):]
        k(f"s_sub_u32 s{cnt}, s{cnt}, 1\ns_cmp_lg_u32 s{cnt}, 0\ns_cbranch_scc1 {L}")
        st = nloop * R
    while st < N:
        if st == N - 1 and before_last: before_last()
        stage(st, st == N - 1); st += 1

if os.environ.get("PIPE", "2") == "2":
    producer_loop, consumer_loop = producer_loop2, consumer_loop2
```

```python
from common import *
from ring2 import *
import math, os
XM = os.environ.get('MX', 'notouch,nopoison,noslow,fw,hyb,two4,two5').split(',')
WT = " sc0 sc1"
SC = " sc1"
FL = WS_ST + 196608
F1 = FL; F2 = F1 + 32768; F3 = F2 + 32768; F4 = F3 + 24576; F5 = F4 + 27648; FP = F5 + 131072; FEND = FP + 1024
assert FEND - WS_ST <= 64 * 8192
PB = int(os.environ.get('PB', WS_P))
LX = 61440
LCNT = 160768
WS_XS = 22 * MB
WS_CS = WS_XS + 16384
PX, PWQKV, PWO, PW1, PB1, PW2, PB2, POUT, PDBG, PWS = 64, 66, 68, 72, 74, 76, 78, 80, 82, 84
VL, VG, VI = 1, 3, 4
T0, T1, T2, T3 = 5, 6, 7, 8
DUMMY = 234

def pf_flat(k, srd_, sidx, nwg, nthreads, b0, b1, tmp, vt=0, s0=60):
    lines = (b1 - b0) // 128
    per = (lines + nwg - 1) // nwg
    n = (per + nthreads - 1) // nthreads
    k(f"s_mul_i32 s{s0}, s{sidx}, {per*128}\ns_add_u32 s{s0}, s{s0}, {b0}\nv_lshlrev_b32 v{tmp}, 7, v{vt}")
    for i in range(n):
        last = per - i * nthreads
        if last < nthreads:
            k(f"v_mov_b32 v{tmp+1}, 0x7ff00000\nv_cmp_gt_u32 vcc, {last}, v{vt}\nv_cndmask_b32 v{tmp}, v{tmp+1}, v{tmp}, vcc")
        k(f"buffer_load_dword v{DUMMY}, v{tmp}, s[{srd_}:{srd_+3}], s{s0} offen\ns_add_u32 s{s0}, s{s0}, {nthreads*128}")

PFDEF = dict(PF1B="w1:0:48", PF2="w1:48:88", PF3="w1:88:128,w2:0:26", PF4="w2:26:128")
def pf(k, name, sidx, nwg, nthreads, tmp, vt=0):
    spec = os.environ.get(name, PFDEF.get(name, ""))
    if not spec or spec == "0": return
    U = S_ * F_ * 2 // 128
    for it in spec.split(","):
        w, a_, b_ = it.split(":")
        srd(k, 52, PW1 if w == "w1" else PW2, S_ * F_ * 2)
        pf_flat(k, 52, sidx, nwg, nthreads, int(a_) * U, int(b_) * U, tmp, vt=vt)

def w1_addr(k, tmp):
    srd(k, 52, PW1, S_ * F_ * 2)
    k("s_lshr_b32 s60, s10, 1\ns_mul_i32 s60, s60, 9\ns_and_b32 s61, s10, 1\ns_lshl_b32 s61, s61, 2\ns_add_u32 s60, s60, s61\ns_lshl_b32 s60, s60, 8")
    k(f"v_lshrrev_b32 v{tmp}, 4, v0\nv_mul_u32_u24 v{tmp}, 9216, v{tmp}\nv_and_b32 v{tmp+1}, 15, v0\nv_lshl_add_u32 v{tmp}, v{tmp+1}, 7, v{tmp}")
    k(f"v_cmp_lt_u32 vcc, 9, v{tmp+1}\nv_mov_b32 v{tmp+1}, 0x7ff00000\nv_cndmask_b32 v{tmp}, v{tmp}, v{tmp+1}, vcc")

def w1_rows(k, sidx, rows, r0, _):
    w1_addr(k, 10)
    k(f"s_mul_i32 s61, s{sidx}, {rows*9216}\ns_add_u32 s60, s60, s61\ns_add_u32 s60, s60, {r0*9216}")
    for i in range((rows + 31) // 32):
        k(f"buffer_load_dword v{DUMMY}, v10, s[52:55], s60 offen\ns_add_u32 s60, s60, {32*9216}")

def w1slow(k):
    srd(k, 52, PW1, S_ * F_ * 2)
    k("s_lshr_b32 s60, s10, 1\ns_mul_i32 s60, s60, 9\ns_and_b32 s61, s10, 1\ns_lshl_b32 s61, s61, 2\ns_add_u32 s60, s60, s61")
    k("s_sub_u32 s61, 1, s60\ns_and_b32 s61, s61, 3\ns_add_u32 s60, s60, s61\ns_lshl_b32 s60, s60, 8\ns_add_u32 s60, s60, 128")
    k(f"s_sub_u32 s62, s11, 27\nv_mul_u32_u24 v10, 5, v0\nv_add_u32 v10, s62, v10\nv_mul_u32_u24 v10, 9216, v10")
    k(f"buffer_load_dword v{DUMMY}, v10, s[52:55], s60 offen\ns_add_u32 s60, s60, 1024\ns_cmp_eq_u32 s61, 0\ns_cselect_b32 s54, s54, 0")
    k(f"buffer_load_dword v{DUMMY}, v10, s[52:55], s60 offen")

def lcnt_init(k):
    k(f"v_lshlrev_b32 v{T0}, 2, v{VL}\nv_add_u32 v{T0}, {LCNT}, v{T0}\nv_mov_b32 v{T1}, 0\ns_mov_b64 exec, 0xffff\nds_write_b32 v{T0}, v{T1}\ns_mov_b64 exec, -1")

def ids16(k):
    k(f"v_lshrrev_b32 v{VG}, 4, v{VL}\nv_and_b32 v{VI}, 15, v{VL}")

def p1(k, NXT):
    R = 4; STG = 34816; N = 9; XO = 18432
    PROD = k.lab("P1PROD"); PF = k.lab("P1PF"); PX_ = k.lab("P1PX")
    k("s_and_b32 s24, s10, 3\ns_lshl_b32 s24, s24, 2\ns_and_b32 s25, s11, 3\ns_add_u32 s24, s24, s25")
    k("s_lshr_b32 s25, s10, 2\ns_mul_i32 s25, s25, 6\ns_lshr_b32 s29, s11, 2\ns_add_u32 s25, s25, s29")
    ids16(k)
    def touch():
        k(f"v_mul_u32_u24 v{T0}, 4682, v{VL}\nv_lshrrev_b32 v{T0}, 16, v{T0}")
        k(f"v_mul_u32_u24 v{T1}, 14, v{T0}\nv_sub_u32 v{T1}, v{VL}, v{T1}")
        k(f"v_lshrrev_b32 v{T2}, 1, v{T0}\nv_mul_u32_u24 v{T2}, 62, v{T2}\nv_add_u32 v{T0}, v{T0}, v{T2}")
        k(f"v_mul_u32_u24 v{T0}, 3456, v{T0}\nv_lshl_add_u32 v{T0}, v{T1}, 7, v{T0}\nv_lshlrev_b32 v{T1}, 7, v{VL}")
        k(f"s_add_u32 s30, s28, 1\ns_mul_i32 s30, s30, {128*3456}\ns_mul_i32 s31, s11, {2*3456}\ns_add_u32 s30, s30, s31\ns_lshr_b32 s31, s10, 2\ns_mul_i32 s31, s31, {13*128}\ns_add_u32 s30, s30, s31")
        k(f"s_and_b32 s31, s10, 3\ns_mul_i32 s31, s31, {512*1152}\ns_mul_i32 s29, s11, {16*1152}\ns_add_u32 s31, s31, s29\ns_mul_i32 s29, s28, {36*128}\ns_add_u32 s31, s31, s29")
        k("s_waitcnt lgkmcnt(0)")
        srd(k, 12, PX, S_ * D_ * 2)
        srd(k, 16, PWQKV, D_ * 1728 * 2)
        if 'notouch' in XM: return
        k("s_mov_b32 exec_hi, 0xf")
        k(f"buffer_load_dword v{DUMMY}, v{T1}, s[12:15], s31 offen")
        k("s_mov_b32 exec_hi, 0xffffff")
        k(f"buffer_load_dword v{DUMMY}, v{T0}, s[16:19], s30 offen")
        k("s_mov_b32 exec_hi, -1")
    CONS = k.lab("P1CONS")
    k(f"s_cmp_ge_u32 s11, 24\ns_cbranch_scc1 {PF}")
    k(f"s_cmp_lt_u32 s28, 4\ns_cbranch_scc1 {CONS}")
    k(f"{PROD}:")
    ra, rb = [int(t) for t in os.environ.get("ROT1", "9,6").split(",")]
    ROT = (ra or rb) and 'hyb' not in XM
    if ROT:
        k(f"s_and_b32 s38, s11, 3\ns_mul_i32 s38, s38, {ra}\ns_lshr_b32 s39, s11, 2\ns_mul_i32 s39, s39, {rb}\ns_lshr_b32 s38, s38, 2\ns_lshr_b32 s39, s39, 2\ns_add_u32 s38, s38, s39")
        k("s_sub_u32 s39, s38, 9\ns_cmp_ge_u32 s38, 9\ns_cselect_b32 s38, s39, s38")
    VD = 10
    HYB = 'hyb' in XM
    if HYB:
        k("s_and_b32 s38, s11, 3\ns_lshl_b32 s38, s38, 1\ns_lshr_b32 s39, s11, 2\ns_mul_i32 s39, s39, 43\ns_lshr_b32 s39, s39, 5\ns_add_u32 s38, s38, s39\ns_and_b32 s38, s38, 7")
        ROT = False
    k(f"s_and_b32 s29, s28, 1\ns_cmp_ge_u32 s28, 6\ns_cbranch_scc1 {PX_}")
    def adv(reg, step, st=None):
        if HYB and st == 0: return [f"s_add_u32 s38, s38, 1\ns_mul_i32 s39, s38, {step}\ns_add_u32 s{reg}, s{reg}, s39"]
        if HYB: return [f"s_add_u32 s{reg}, s{reg}, {step}\ns_sub_u32 s39, s{reg}, {8*step}\ns_add_u32 s38, s38, 1\ns_cmp_eq_u32 s38, 9\ns_cselect_b32 s{reg}, s39, s{reg}"]
        if not ROT: return [f"s_add_u32 s{reg}, s{reg}, {step}"]
        return [f"s_add_u32 s{reg}, s{reg}, {step}\ns_sub_u32 s39, s{reg}, {9*step}\ns_add_u32 s38, s38, 1\ns_cmp_eq_u32 s38, 9\ns_cselect_b32 s{reg}, s39, s{reg}"]
    k(f"s_mov_b32 s30, {3456-288}")
    for q in range(9):
        k(f"v_add_u32 v{T0}, {q*64}, v{VL}\nv_mul_u32_u24 v{T1}, 3641, v{T0}\nv_lshrrev_b32 v{T1}, 16, v{T1}")
        k(f"v_lshlrev_b32 v{T0}, 4, v{T0}\nv_mad_u32_u24 v{VD+q}, v{T1}, s30, v{T0}")
    k(f"s_mul_i32 s33, s25, 288\ns_mul_i32 s30, s29, {32*3456}\ns_add_u32 s33, s33, s30\ns_mul_i32 s34, s29, 9216" + (f"\ns_mul_i32 s30, s38, {64*3456}\ns_add_u32 s33, s33, s30" if ROT else ""))
    k("s_waitcnt lgkmcnt(0)")
    srd(k, 16, PWQKV, D_ * 1728 * 2)
    k("STAMP 1")
    def tail(kk):
        k("v_subrev_u32 v40, 256, v0")
        pf(k, "PF1T", 2, 192, 256, 42, vt=40)
    producer_loop(k, N, R, 9, lambda st, slot: [dma(34, slot * STG + q * 1024, VD + q, 16, 33, ' nt' if st < int(os.environ.get('NT1', 0)) else '') for q in range(9)] + adv(33, 64 * 3456, st), NXT[1], final_barrier=False, tail=tail, first=int(os.environ.get('FIRST1', 2)))
    k(f"{PX_}:")
    for q in range(2):
        k(f"v_lshrrev_b32 v{T0}, 3, v{VL}\nv_add_u32 v{T0}, {8*q}, v{T0}")
        k(f"v_bfe_u32 v{T1}, v{T0}, 1, 3\nv_and_b32 v{T2}, 7, v{VL}\nv_xor_b32 v{T1}, v{T1}, v{T2}\nv_lshlrev_b32 v{T1}, 4, v{T1}")
        k(f"v_mul_u32_u24 v{T0}, 1152, v{T0}\nv_add_u32 v{VD+q}, v{T0}, v{T1}")
    for q in range(2, 8): k(f"v_add_u32 v{VD+q}, {16*1152}, v{VD+q-2}")
    k("s_lshl_b32 s32, s24, 7\ns_lshl_b32 s30, s29, 6\ns_add_u32 s32, s32, s30\ns_mul_i32 s32, s32, 1152")
    k(f"s_lshl_b32 s35, s29, 13\ns_add_u32 s35, s35, {XO}" + ("\ns_lshl_b32 s30, s38, 7\ns_add_u32 s32, s32, s30" if ROT else ""))
    k("s_waitcnt lgkmcnt(0)")
    srd(k, 12, PX, S_ * D_ * 2)
    producer_loop(k, N, R, 8, lambda st, slot: [dma(35, slot * STG + q * 1024, VD + q, 12, 32, ' nt' if st < int(os.environ.get('NT1', 0)) else '') for q in range(8)] + adv(32, 128, st), NXT[1], final_barrier=False, tail=tail, first=int(os.environ.get('FIRST1', 2)))
    k(f"{CONS}:")
    lcnt_init(k)
    k("s_lshr_b32 s26, s25, 2\ns_and_b32 s27, s25, 3")
    VTR, VXR, VC, ZD, XF, WF = 10, 12, 16, 18, 20, 36
    ACC = WF + 72
    CSR = ACC + 72; STR = CSR + 36
    assert STR + 16 <= DUMMY
    k(f"v_bfe_u32 v{T0}, v{VL}, 2, 2\nv_lshl_add_u32 v{T0}, v{VG}, 2, v{T0}\nv_mul_u32_u24 v{T0}, 288, v{T0}")
    k(f"v_and_b32 v{T1}, 3, v{VL}\nv_lshl_add_u32 v{VTR}, v{T1}, 3, v{T0}\nv_mul_u32_u24 v{T1}, 72, v{T1}\nv_add3_u32 v{VTR+1}, v{T0}, v{T1}, 32")
    k(f"v_lshrrev_b32 v{T0}, 1, v{VI}\nv_lshrrev_b32 v{T1}, 1, v{VG}\nv_xor_b32 v{T0}, v{T0}, v{T1}\nv_lshlrev_b32 v{T0}, 4, v{T0}\nv_lshl_add_u32 v{T0}, v{VI}, 7, v{T0}")
    k(f"v_and_b32 v{T1}, 1, v{VG}\nv_lshl_add_u32 v{T0}, v{T1}, 3, v{T0}")
    k(f"s_lshl_b32 s30, s28, 12\ns_add_u32 s30, s30, {XO}\nv_add_u32 v{VXR}, s30, v{T0}")
    for q in range(1, 4): k(f"v_xor_b32 v{VXR+q}, {32*q}, v{VXR}")
    for r in range(72): k(f"v_mov_b32 v{ACC+r}, 0")
    k(f"v_mov_b32 v{VC}, 0")
    touch()
    srd(k, 20, PWS, WS_SIZE)
    srd(k, 56, PDBG, 256)
    k(f"s_mul_i32 s50, s25, {9*PS}\ns_lshl_b32 s30, s24, 2\ns_add_u32 s30, s30, s28\ns_lshl_b32 s49, s30, 7\ns_lshl_b32 s30, s30, 10\ns_add_u32 s50, s50, s30")
    k(f"s_add_u32 s49, s49, {WS_XS}\ns_mul_i32 s51, s25, 576\ns_add_u32 s51, s51, {WS_CS}")
    k(f"s_lshl_b32 s48, s27, 4\ns_add_u32 s48, s48, s24\ns_lshl_b32 s48, s48, 2\ns_add_u32 s48, s48, s26\ns_lshl_b32 s48, s48, 7\ns_add_u32 s48, s48, {F1}")
    first = [True]
    coff = [72 * (T >> 1) + 40 * (T & 1) for T in range(8)]
    def body(vor):
        first[0] = True
        def side():
            OK = k.lab("ZOK")
            if not os.environ.get("STG_STAMP"): k("STAMP 13")
            k(f"s_waitcnt vmcnt(0)\nv_cmp_gt_u32 vcc, 64, v{ZD}\ns_mov_b32 s31, 0\ns_nop 3\ns_cbranch_vccz {OK}")
            poll(k, VC, ZD, 1, 56, 31, want=64)
            k(f"{OK}:")
            if not vor:
                k(f"v_lshlrev_b32 v{VC}, 4, v{VG}\nv_mul_u32_u24 v{VC+1}, 144, v{VG}\nv_lshlrev_b32 v{ZD}, 2, v{VI}")
                for tt in range(2):
                    k(f"buffer_load_dword v{STR+2*tt}, v{ZD}, s[20:23], s49 offen offset:{tt*64}{SC}")
                k("s_add_u32 s49, s49, 8192")
                for tt in range(2):
                    k(f"buffer_load_dword v{STR+2*tt+1}, v{ZD}, s[20:23], s49 offen offset:{tt*64}{SC}")
                for T in range(9):
                    k(f"buffer_load_dwordx4 {v(CSR+4*T,4)}, v{VC+(T==8)}, s[20:23], s51 offen offset:{2*coff[T] if T < 8 else 64}{SC}")
            else:
                k(f"v_lshlrev_b32 v{VC}, 2, v{VI}\nv_lshrrev_b32 v{VC+1}, 2, v{VI}\nv_mul_u32_u24 v{VC+1}, 128, v{VC+1}\nv_add_u32 v{VC+1}, v{VC+1}, v{VC}\nv_lshlrev_b32 v{ZD}, 4, v{VG}")
                for hf in range(2):
                    for tt in range(2):
                        k(f"buffer_load_dwordx4 {v(STR+tt*8+hf*4,4)}, v{ZD}, s[20:23], s49 offen offset:{tt*64}{SC}")
                    if hf == 0: k("s_add_u32 s49, s49, 8192")
                for T in range(9):
                    k(f"buffer_load_dword v{CSR+T}, v{VC+(T==8)}, s[20:23], s51 offen offset:{2*coff[T] if T < 8 else 64}{SC}")
        def reads(st, slot, ks, rs):
            out = []
            if ks == 0 and not first[0]:
                d = STG if slot else -(R - 1) * STG
                regs = list(range(VXR, VXR + 4)) + [VTR, VTR + 1]
                out += [f"v_add_u32 v{r}, {d}, v{r}" if d > 0 else f"v_subrev_u32 v{r}, {-d}, v{r}" for r in regs]
            first[0] = False
            for tt in range(2):
                for hf in range(2):
                    out.append(f"ds_read_b64 {v(XF+rs*8+tt*4+hf*2,2)}, v{VXR+2*ks+hf} offset:{tt*2048}")
            for j in range(9):
                for hf in range(2):
                    out.append(f"ds_read_b64_tr_b16 {v(WF+rs*36+j*4+hf*2,2)}, v{VTR+(j==8)} offset:{ks*9216+hf*4608+(coff[j] if j < 8 else 0)}")
            if slot == 3 and ks == 1 and not (os.environ.get('STG_STAMP') and st == 3):
                L = k.lab("ZS")
                out.append(f"s_cmp_lg_u32 s36, 1\ns_cbranch_scc1 {L}\nbuffer_load_dword v{ZD}, v{VC}, s[56:59], 0 offen sc0 sc1\n{L}:")
            return out
        def mf(st, ks, rs):
            g = []
            for j in range(9):
                wf = v(WF + rs * 36 + j * 4, 4)
                for tt in range(2):
                    xf = v(XF + rs * 8 + tt * 4, 4)
                    ac = v(ACC + (j * 2 + tt) * 4, 4)
                    g.append(f"v_mfma_f32_16x16x32_bf16 {ac}, {xf}, {wf}, {ac}" if vor else f"v_mfma_f32_16x16x32_bf16 {ac}, {wf}, {xf}, {ac}")
            return g
        consumer_loop(k, N, R, reads, mf, per=[2] * 8 + [1], final_barrier=False, before_last=side, stamp0=12)
        k("STAMP 1")
        qs = 18 ** -0.5 * math.log2(math.e)
        OUT = XF; VM0 = VTR
        k(f"v_lshlrev_b32 v{VM0}, 4, v{VL}\ns_waitcnt vmcnt(0)")
        if not vor:
            k(f"s_cmp_eq_u32 s26, 0\ns_cselect_b32 s31, {f32(qs)}, 1.0")
            for tt in range(2): k(f"v_mul_f32 v{STR+2*tt+1}, s31, v{STR+2*tt+1}")
        sw = "32" if vor else "16"
        def fin(j):
            po = OUT + (j % 4) * 4
            k(f"v_permlane{sw}_swap_b32 v{po}, v{po+2}\nv_permlane{sw}_swap_b32 v{po+1}, v{po+3}")
            k(f"buffer_store_dwordx4 {v(po,4)}, v{VM0}, s[20:23], s50 offen{WT}\ns_add_u32 s50, s50, {PS}")
        for j in range(9):
            o = OUT + (j % 4) * 4
            for tt in range(2):
                ac = ACC + (j * 2 + tt) * 4
                for h2 in range(2):
                    if not vor:
                        k(f"v_pk_fma_f32 {v(ac+2*h2,2)}, {v(STR+2*tt,2)}, {v(CSR+4*j+2*h2,2)}, {v(ac+2*h2,2)} op_sel_hi:[0,1,1] neg_lo:[1,0,0] neg_hi:[1,0,0]")
                    else:
                        c = CSR + (j & ~1); sel = j & 1
                        k(f"v_pk_fma_f32 {v(ac+2*h2,2)}, {v(STR+tt*8+2*h2,2)}, {v(c,2)}, {v(ac+2*h2,2)} op_sel:[0,{sel},0] op_sel_hi:[1,{sel},1] neg_lo:[1,0,0] neg_hi:[1,0,0]")
            for tt in range(2):
                ac = ACC + (j * 2 + tt) * 4
                for h2 in range(2):
                    if not vor: k(f"v_pk_mul_f32 {v(ac+2*h2,2)}, {v(ac+2*h2,2)}, {v(STR+2*tt,2)} op_sel:[0,1] op_sel_hi:[1,1]")
                    else: k(f"v_pk_mul_f32 {v(ac+2*h2,2)}, {v(ac+2*h2,2)}, {v(STR+tt*8+4+2*h2,2)}")
            for tt in range(2):
                ac = ACC + (j * 2 + tt) * 4
                k(f"v_cvt_pk_bf16_f32 v{o+2*tt}, v{ac}, v{ac+1}\nv_cvt_pk_bf16_f32 v{o+2*tt+1}, v{ac+2}, v{ac+3}")
            if j > 0: fin(j - 1)
        fin(8)
        k(f"v_mov_b32 v{T0}, 0\nv_mov_b32 v{T1}, 1\ns_waitcnt vmcnt(0)")
        last_wave_flag(k, T0, T1, T2, LCNT, 20, 48)
        k(f"s_branch {NXT[0]}")
    LV = k.lab("VOR")
    k(f"s_cmp_eq_u32 s26, 2\ns_cbranch_scc1 {LV}")
    body(False)
    k(f"{LV}:")
    body(True)
    k(f"{PF}:\ns_sub_u32 s29, s2, 192")
    lcnt_init(k)
    XA, SM, CA = 12, 48, 52
    CSW = k.lab("CSW"); NZ = k.lab("NZ"); NZ2 = k.lab("NZ"); DONE = k.lab("DN")
    k(f"v_lshrrev_b32 v{T1}, 3, v0\nv_and_b32 v{T2}, 7, v0\nv_lshlrev_b32 v{T2}, 4, v{T2}\ns_cmp_ge_u32 s29, 32\ns_cselect_b32 s30, 3456, 0\ns_cselect_b32 s31, 0, 1152\ns_add_u32 s30, s30, s31")
    k(f"v_mad_u32_u24 v{T0}, v{T1}, s30, v{T2}")
    k(f"s_lshl_b32 s32, s29, 13\ns_add_u32 s32, s32, {WS_ST}\nv_lshlrev_b32 v{T3}, 4, v0")
    for r in range(4): k(f"v_mov_b32 v{CA+8+r}, 0")
    k(f"v_mov_b32 v{SM}, 0\nv_mov_b32 v{SM+1}, 0\nv_mov_b32 v{SM+2}, 0x3f803f80\ns_mul_i32 s30, s29, {64*1152}")
    k(f"s_sub_u32 s33, s29, 32\ns_lshl_b32 s31, s33, 7\ns_cmp_ge_u32 s33, 27\ns_cselect_b32 s31, 0x7000000, s31")
    k("s_waitcnt lgkmcnt(0)")
    srd(k, 20, PWS, WS_SIZE)
    srd(k, 56, PDBG, 256)
    k(f"s_cmp_ge_u32 s29, 32\ns_cbranch_scc1 {CSW}")
    srd(k, 12, PX, S_ * D_ * 2)
    for q in range(9): k(f"buffer_load_dwordx4 {v(XA+4*q,4)}, v{T0}, s[12:15], s30 offen offset:{q*128}")
    k(f"buffer_store_dwordx4 {v(CA+8,4)}, v{T3}, s[20:23], s32 offen{WT}")
    for q in range(9):
        k(f"s_waitcnt vmcnt({9-q})")
        for r in range(4 * q, 4 * q + 4): k(f"v_dot2c_f32_bf16 v{SM}, v{XA+r}, v{SM+2}\nv_dot2c_f32_bf16 v{SM+1}, v{XA+r}, v{XA+r}")
    k("STAMP 1\ns_nop 2")
    for m in ("quad_perm:[1,0,3,2]", "quad_perm:[2,3,0,1]", "row_half_mirror"):
        for r in range(2): k(f"v_add_f32_dpp v{SM+r}, v{SM+r}, v{SM+r} {m} row_mask:0xf bank_mask:0xf")
    k(f"s_mov_b32 s30, {f32(1.0/576)}\nv_mul_f32 v{SM}, s30, v{SM}\nv_mul_f32 v{SM+1}, s30, v{SM+1}\nv_fma_f32 v{SM+1}, -v{SM}, v{SM}, v{SM+1}")
    def rbf(r): k(f"v_cvt_pk_bf16_f32 v{r}, v{r}, v{r}\nv_and_b32 v{r}, 0xffff0000, v{r}")
    k(f"v_max_f32 v{SM+1}, 0, v{SM+1}")
    rbf(SM); rbf(SM + 1)
    k(f"v_add_f32 v{SM+1}, {f32(1e-5)}, v{SM+1}")
    rbf(SM + 1)
    k(f"v_sqrt_f32 v{SM+1}, v{SM+1}")
    rbf(SM + 1)
    k(f"v_rcp_f32 v{SM+1}, v{SM+1}")
    k(f"s_lshl_b32 s30, s29, 8\ns_add_u32 s30, s30, {WS_XS}\ns_add_u32 s31, s30, 8192\nv_lshlrev_b32 v{T0}, 2, v{T1}\nv_and_b32 v{T3}, 7, v0")
    k(f"v_cmp_eq_u32 vcc, 0, v{T3}\ns_and_saveexec_b64 s[62:63], vcc")
    k(f"buffer_store_dword v{SM}, v{T0}, s[20:23], s30 offen{WT}\nbuffer_store_dword v{SM+1}, v{T0}, s[20:23], s31 offen{WT}\ns_mov_b64 exec, -1\ns_branch {DONE}\n{CSW}:")
    srd(k, 16, PWQKV, D_ * 1728 * 2)
    for q in range(9): k(f"buffer_load_dwordx4 {v(XA+4*q,4)}, v{T0}, s[16:19], s31 offen\ns_add_u32 s31, s31, {64*3456}")
    k(f"buffer_store_dwordx4 {v(CA+8,4)}, v{T3}, s[20:23], s32 offen{WT}")
    for q in range(9):
        k(f"s_waitcnt vmcnt({9-q})")
        for r in range(4):
            p = XA + 4 * q + r
            if q == 0: k(f"v_lshlrev_b32 v{CA+2*r}, 16, v{p}\nv_and_b32 v{CA+2*r+1}, 0xffff0000, v{p}")
            else: k(f"v_lshlrev_b32 v{SM}, 16, v{p}\nv_and_b32 v{SM+1}, 0xffff0000, v{p}\nv_pk_add_f32 {v(CA+2*r,2)}, {v(CA+2*r,2)}, {v(SM,2)}")
    k("STAMP 1")
    for r in range(8): k(f"v_add_f32_dpp v{CA+r}, v{CA+r}, v{CA+r} row_ror:8 row_mask:0xf bank_mask:0xf")
    for sw in ("16", "32"):
        for r in range(8): k(f"v_mov_b32 v{XA+r}, v{CA+r}")
        for r in range(8): k(f"v_permlane{sw}_swap_b32 v{CA+r}, v{XA+r}")
        for r in range(8): k(f"v_add_f32 v{CA+r}, v{CA+r}, v{XA+r}")
    k(f"s_lshl_b32 s30, s28, 8\nv_lshlrev_b32 v{T0}, 5, v{VL}\nv_add_u32 v{T0}, s30, v{T0}\ns_mov_b64 exec, 0xff")
    k(f"ds_write_b128 v{T0}, {v(CA,4)}\nds_write_b128 v{T0}, {v(CA+4,4)} offset:16\ns_mov_b64 exec, -1")
    k("s_waitcnt lgkmcnt(0)\ns_barrier")
    k(f"s_cmp_lg_u32 s28, 0\ns_cbranch_scc1 {DONE}\nv_lshlrev_b32 v{T0}, 2, v{VL}")
    for q in range(8): k(f"ds_read_b32 v{XA+q}, v{T0} offset:{q*256}")
    k(f"s_lshl_b32 s30, s33, 8\ns_add_u32 s30, s30, {WS_CS}\ns_waitcnt lgkmcnt(0)")
    for q in range(1, 8): k(f"v_add_f32 v{XA}, v{XA}, v{XA+q}")
    k(f"buffer_store_dword v{XA}, v{T0}, s[20:23], s30 offen{WT}\n{DONE}:")
    k(f"v_mov_b32 v{T0}, 0\nv_mov_b32 v{T1}, 1\ns_waitcnt vmcnt(0)\nSTAMP 5\ns_barrier\ns_cmp_lg_u32 s28, 0\ns_cbranch_scc1 {NZ2}")
    k(f"s_mov_b64 exec, 1\nbuffer_atomic_add v{T1}, v{T0}, s[56:59], 0 offen sc1\ns_mov_b64 exec, -1\n{NZ2}:\ns_barrier")
    TL = int(os.environ.get("TLB", 0))
    if TL:
        k(f"s_sub_u32 s30, s11, 24\ns_lshl_b32 s30, s30, 9\nv_add_u32 v66, s30, v0\nv_lshlrev_b32 v66, {TL}, v66")
        k(f"buffer_load_dword v{DUMMY}, v66, s[20:23], 0 offen")
        for p, n in ((PW1, S_ * F_ * 2), (PW2, S_ * F_ * 2), (POUT, S_ * D_ * 2), (PWO, D_ * D_ * 2)):
            srd(k, 52, p, n)
            k(f"buffer_load_dword v{DUMMY}, v66, s[52:55], 0 offen")
    pf(k, "PF1B", 29, 64, 512, 66)
    k(f"s_branch {NXT[1]}")

def p2(k, ENT, NXT):
    LK8 = 24576; LV = 30720; REC = 1168; SEC = 36 * PS
    VH, VQ = 3, 4
    V16, VV, V8A = 5, 6, 7
    QM, Q8 = 8, 12
    KF, K8F, VF, O = 16, 28, 40, 56
    MX, MX2, TA, TB = 72, 73, 74, 75
    AK, AK8, AV = 76, 77, 78
    VV8, VK8 = 79, 2
    S0 = 80
    k(f"{ENT[1]}:")
    srd(k, 20, PWS, WS_SIZE)
    k(f"s_waitcnt vmcnt(0)\ns_cmp_lg_u32 s28, 7\ns_cbranch_scc1 {ENT[0]}")
    srd(k, 56, PDBG, 256)
    k(f"v_mov_b32 v{TA}, 0\ns_mov_b32 s31, 0")
    poll(k, TA, TB, 1, 56, 31, want=64)
    k(f"{ENT[0]}:")
    k("STAMP 2")
    k("s_lshl_b32 s24, s10, 1\ns_and_b32 s25, s11, 1\ns_add_u32 s24, s24, s25\ns_lshr_b32 s25, s11, 1")
    k(f"v_lshrrev_b32 v{VH}, 5, v{VL}\nv_and_b32 v{VQ}, 31, v{VL}")
    k("s_lshr_b32 s26, s28, 2\ns_and_b32 s27, s28, 3")
    k(f"v_lshlrev_b32 v{V16}, 4, v{VL}")
    k(f"v_mul_u32_u24 v{VV}, {PS}, v{VH}\nv_lshl_add_u32 v{VV}, v{VQ}, 4, v{VV}")
    k(f"s_lshr_b32 s47, s24, 2\ns_and_b32 s31, s24, 3\ns_mul_i32 s34, s47, 9\ns_lshl_b32 s32, s31, 1\ns_add_u32 s44, s32, s34\ns_add_u32 s32, s44, s26\ns_mul_i32 s32, s32, {PS}")
    k(f"s_add_u32 s34, s34, 8\ns_mul_i32 s34, s34, {PS}\ns_mul_i32 s44, s44, {PS}\ns_add_u32 s44, s44, {2*SEC}")
    k("s_lshr_b32 s30, s31, 1\ns_lshl_b32 s30, s30, 9\ns_add_u32 s41, s34, s30")
    k(f"s_and_b32 s30, s31, 1\ns_lshl_b32 s30, s30, 3\nv_lshlrev_b32 v{V8A}, 4, v{VQ}\nv_add_u32 v{V8A}, s30, v{V8A}")
    k(f"s_lshl_b32 s45, s31, 6\ns_add_u32 s45, s45, s34\ns_add_u32 s45, s45, {2*SEC}")
    k(f"v_lshrrev_b32 v{TA}, 2, v{VL}\nv_lshlrev_b32 v{TA}, 8, v{TA}\nv_and_b32 v{TB}, 3, v{VL}\nv_lshl_add_u32 v{VV8}, v{TB}, 4, v{TA}")
    k(f"v_lshlrev_b32 v{VK8}, 4, v{VQ}\nv_lshl_add_u32 v{VK8}, v{VH}, 10, v{VK8}")
    k("s_lshl_b32 s33, s25, 2\ns_mul_i32 s30, s27, 3\ns_add_i32 s35, s33, s30\ns_sub_i32 s35, s35, 8")
    k("s_mul_i32 s31, s26, 12\ns_add_u32 s31, s31, s30\ns_lshl_b32 s46, s31, 10")
    k(f"s_lshl_b32 s30, s28, 1\ns_add_i32 s30, s30, s33\ns_sub_i32 s30, s30, 8\ns_max_i32 s30, s30, 0\ns_lshl_b32 s30, s30, 10\ns_add_u32 s33, s33, s27")
    k(f"s_lshl_b32 s39, s33, 10\ns_add_u32 s40, s39, s41\ns_add_u32 s39, s39, s32\ns_add_u32 s41, s41, s30\ns_add_u32 s41, s41, {SEC}\ns_add_u32 s38, s32, {SEC}")
    k(f"s_lshl_b32 s42, s28, 10\ns_add_u32 s42, s42, {LK8}")
    k(f"s_mul_i32 s43, s28, 3\ns_lshl_b32 s36, s25, 3\ns_add_i32 s36, s36, s43\ns_sub_i32 s36, s36, 16\ns_mul_i32 s43, s43, {REC}\ns_add_u32 s43, s43, {LV}")
    NEG = f32(-1e30)
    k(f"v_lshlrev_b32 v{TA}, 2, v{VH}\nv_sub_u32 v{TA}, v{VQ}, v{TA}\nv_mov_b32 v{TB}, {NEG}")
    MRG = 'nomrg' not in XM; EM = 236
    if MRG: k(f"v_mov_b32 v{MX}, 0xffff\nv_mov_b32 v{MX2}, 0xffff0000")
    for b in range(4):
        for r in range(4): k(f"v_cmp_gt_i32 s[{86+2*r}:{87+2*r}], {8*b+r}, v{TA}")
        for r in range(4): k(f"v_cndmask_b32 v{S0+4*b+r}, v{TB}, 0, s[{86+2*r}:{87+2*r}]")
        for r in range(4): k(f"v_cndmask_b32 v{S0+128+4*b+r}, 0, v{TB}, s[{86+2*r}:{87+2*r}]")
        if MRG:
            for h in range(2):
                k(f"v_cndmask_b32 v{EM+2*b+h}, 0, v{MX}, s[{86+4*h}:{87+4*h}]\nv_cndmask_b32 v{AK}, 0, v{MX2}, s[{88+4*h}:{89+4*h}]\nv_or_b32 v{EM+2*b+h}, v{EM+2*b+h}, v{AK}")
    k(f"s_mul_i32 s30, s26, 12\ns_add_u32 s30, s30, s27\ns_lshl_b32 s30, s30, 10\nv_add_u32 v{AK}, s30, v{V16}")
    k(f"s_lshl_b32 s30, s27, 9\ns_add_u32 s30, s30, {LK8}\nv_add_u32 v{AK8}, s30, v{V8A}")
    for q in range(3):
        k(f"v_mov_b32 v{K8F+q*4+2}, 0\nv_mov_b32 v{K8F+q*4+3}, 0")
    k(f"v_mov_b32 v{Q8+2}, 0\nv_mov_b32 v{Q8+3}, 0")
    k(f"s_lshl_b32 s30, s26, 9\nv_lshlrev_b32 v{AV}, 8, v{VH}\nv_lshl_add_u32 v{AV}, v{VQ}, 4, v{AV}\nv_add_u32 v{AV}, s30, v{AV}")
    k(f"s_lshl_b32 s30, s26, 5\ns_add_u32 s30, s30, {1024-256}\nv_lshlrev_b32 v{TA}, 6, v{VH}\nv_lshl_add_u32 v{TA}, v{VQ}, 4, v{TA}\nv_add_u32 v{TA}, s30, v{TA}")
    k(f"v_cmp_lt_u32 vcc, 15, v{VQ}\nv_cmp_lt_u32 s[86:87], 17, v{VQ}\nv_mov_b32 v{MX2}, 1152\nv_cndmask_b32 v{AV}, v{AV}, v{TA}, vcc\nv_cndmask_b32 v{AV}, v{AV}, v{MX2}, s[86:87]")
    k(f"s_mul_i32 s30, s27, {2*REC}\ns_add_u32 s30, s30, {LV}\nv_add_u32 v{AV}, s30, v{AV}")
    NI = k.lab("NI")
    k("s_sub_i32 s30, 8, s33")
    for j in range(8):
        k(f"s_cmp_le_i32 s30, {j}\ns_cbranch_scc1 {NI}")
        for r in range(16): k(f"v_mov_b32 v{S0+j*16+r}, v{TB}")
    k(f"{NI}:")
    for q in range(3):
        k(f"s_add_i32 s30, s35, {q}\ns_max_i32 s30, s30, 0\ns_lshl_b32 s30, s30, 10\ns_add_u32 s{86+q}, s30, s38")
        k(f"s_add_i32 s30, s36, {q}\ns_max_i32 s30, s30, 0\ns_lshl_b32 s30, s30, 9\ns_add_u32 s{89+q}, s30, s44\ns_add_u32 s{92+q}, s30, s45")
    SO = k.lab("SONE")
    k(f"s_cmp_lg_u32 s28, 7\ns_cbranch_scc1 {SO}")
    if 'nogate' not in XM:
        NG = k.lab("NG")
        k(f"s_cmp_ge_u32 s2, 192\ns_cbranch_scc1 {NG}")
        wait_local(k, TA, LCNT)
        k(f"{NG}:")
    k(f"s_lshl_b32 s30, s47, 13\ns_lshl_b32 s31, s25, 9\ns_add_u32 s30, s30, s31\ns_add_u32 s30, s30, {F1-1024}")
    k(f"s_mov_b64 exec, -1\nv_lshlrev_b32 v{TA}, 7, v{VL}\ns_movk_i32 s31, 0x760\ns_cmp_eq_u32 s25, 0\ns_cselect_b32 s31, 0x700, s31\ns_cmp_ge_u32 s25, 2\ns_cselect_b32 exec_lo, 0x766, s31\ns_mov_b32 exec_hi, 0")
    poll(k, TA, MX, 1, 20, 30)
    k(f"s_mov_b64 exec, -1\n{SO}:\ns_barrier")
    k("STAMP 3")
    SK = k.lab("SK8")
    k(f"s_mov_b32 m0, s42\ns_cmp_ge_u32 s28, 6\ns_cbranch_scc1 {SK}")
    k(f"buffer_load_dwordx4 v{VK8}, s[20:23], s41 offen{SC} lds\n{SK}:")
    for q in range(3): k(dma(46, q * 1024, V16, 20, 86 + q, SC))
    k(f"buffer_load_dwordx4 {v(QM,4)}, v{V16}, s[20:23], s39 offen{SC}")
    k(f"buffer_load_dwordx2 {v(Q8,2)}, v{V8A}, s[20:23], s40 offen{SC}")
    for q in range(3):
        k(dma(43, q * REC, VV, 20, 89 + q, SC))
        k(f"s_add_u32 m0, s43, {q*REC+1024}\ns_mov_b64 exec, 0xff\nbuffer_load_dwordx4 v{VV8}, s[20:23], s{92+q} offen{SC} lds\ns_mov_b64 exec, -1")
    SO = k.lab("SONE")
    k(f"s_cmp_lg_u32 s28, 7\ns_cbranch_scc1 {SO}")
    for r in range(4): k(f"v_mov_b32 v{KF+r}, 0x3f803f80")
    k(f"v_mul_u32_u24 v{TA}, {REC}, v{VL}\ns_mov_b64 exec, 0xffffff")
    k(f"ds_write_b128 v{TA}, {v(KF,4)} offset:{LV+1152}")
    k(f"s_mov_b64 exec, -1\n{SO}:")
    srd(k, 48, PWO, D_ * D_ * 2)
    srd(k, 12, PX, S_ * D_ * 2)
    k("s_lshl_b32 s30, s10, 2\ns_and_b32 s31, s11, 3\ns_add_u32 s30, s30, s31\ns_lshl_b32 s30, s30, 2\ns_and_b32 s31, s28, 3\ns_add_u32 s30, s30, s31\ns_mul_i32 s30, s30, 18432")
    k(f"s_mul_i32 s44, s31, 3072\ns_add_u32 s44, s44, {LX}\ns_lshr_b32 s31, s11, 2\ns_mul_i32 s31, s31, 192\ns_add_u32 s43, s30, s31\ns_movk_i32 s30, 960")
    for q in range(3):
        k(f"v_add_u32 v{224+q}, {q*64}, v{VL}\nv_mul_u32_u24 v227, 5462, v{224+q}\nv_lshrrev_b32 v227, 16, v227\nv_lshlrev_b32 v{224+q}, 4, v{224+q}\nv_mad_u32_u24 v{224+q}, v227, s30, v{224+q}")
    k(f"v_lshlrev_b32 v227, 7, v{VL}\ns_mul_i32 s42, s11, {162*128}\ns_mul_i32 s30, s28, {21*128}\ns_add_u32 s42, s42, s30")
    k(f"v_mov_b32 v{MX}, v{TB}\ns_sub_i32 s35, 8, s33")
    k("s_cmp_eq_u32 s26, 0\ns_cselect_b32 s38, -1, 0\ns_cselect_b32 s40, 0, -1\ns_mov_b32 s39, 0\ns_mov_b32 s41, 0")
    k("s_waitcnt vmcnt(6) lgkmcnt(0)")
    k(f"v_cndmask_b32 v{Q8}, 0, v{Q8}, s[38:39]\nv_cndmask_b32 v{Q8+1}, 0, v{Q8+1}, s[40:41]")
    k("s_barrier")
    def kread(j):
        return [f"ds_read_b128 {v(KF+(j%3)*4,4)}, v{AK} offset:{j*1024}", f"ds_read_b64 {v(K8F+(j%3)*4,2)}, v{AK8} offset:{j*512}"]
    def mx(j):
        return [f"v_max3_f32 v{MX}, v{MX}, v{S0+j*16+2*r}, v{S0+j*16+2*r+1}" for r in range(8)]
    if os.environ.get("P2S"): k("STAMP 12")
    for t in kread(0) + kread(1): k(t)
    XS = k.lab("XS")
    k(f"s_cmp_ge_u32 s2, 192\ns_cbranch_scc1 {XS}\ns_cmp_lt_u32 s28, 4\ns_cbranch_scc1 {XS}")
    for q in range(3): k(dma(44, q * 1024, 224 + q, 12, 43))
    k(f"{XS}:")
    n0 = len(k.L)
    k(f"s_mov_b64 exec, 0x1fffff\nbuffer_load_dword v{DUMMY}, v227, s[48:51], s42 offen\ns_mov_b64 exec, -1")
    pf(k, "PF2", 2, 256, 512, 228)
    npf = sum(1 for l in k.L[n0:] if l.startswith("buffer_load"))
    inv = []
    for j in range(9):
        if j + 2 < 9:
            for t in kread(j + 2): k(t)
        sj = v(S0 + j * 16, 16)
        if j < 8:
            lb = k.lab("BK")
            k(f"s_cmp_gt_i32 s35, {j}\ns_cbranch_scc1 {lb}")
        k(f"s_waitcnt lgkmcnt({min(2, 8-j)*2})")
        k(f"v_mfma_f32_32x32x16_bf16 {sj}, {v(KF+(j%3)*4,4)}, {v(QM,4)}, {sj if j in (0, 8) else 0}")
        k(f"v_mfma_f32_32x32x16_bf16 {sj}, {v(K8F+(j%3)*4,4)}, {v(Q8,4)}, {sj}")
        if j < 8: k(f"{lb}:")
        if j >= 2 and not (MRG and j == 2):
            for t in mx(j - 2): k(t)
    for t in mx(7): k(t)
    WA_, WB_ = k.lab("WA"), k.lab("WB")
    k(f"s_cmp_ge_u32 s2, 192\ns_cbranch_scc1 {WA_}\ns_cmp_lt_u32 s28, 4\ns_cbranch_scc1 {WA_}\ns_waitcnt vmcnt({npf+3})\ns_branch {WB_}\n{WA_}:\ns_waitcnt vmcnt({npf})\n{WB_}:\ns_barrier")
    def vread(t): return f"ds_read_b128 {v(VF+(t%4)*4,4)}, v{AV} offset:{t*REC}"
    if os.environ.get("P2S"): k("STAMP 13")
    k(vread(0)); k(vread(1))
    side = []
    if MRG:
        for r in range(16): k(f"v_max_f32 v{S0+r}, v{S0+r}, v{S0+128+r}")
    for t in mx(0 if MRG else 8): k(t)
    k(f"v_mov_b32 v{MX2}, v{MX}\nv_permlane32_swap_b32 v{MX}, v{MX2}\nv_max_f32 v{MX}, v{MX}, v{MX2}")
    def soft(j):
        b = S0 + j * 16
        if MRG and j == 8: return []
        out = [f"v_sub_f32 v{b+r}, v{b+r}, v{MX}" for r in range(16)]
        if 'pksub' in XM: out = [f"v_pk_add_f32 {v(b+2*r,2)}, {v(b+2*r,2)}, {v(MX,2)} op_sel_hi:[1,0] neg_lo:[0,1] neg_hi:[0,1]" for r in range(8)]
        out += [f"v_exp_f32 v{b+r}, v{b+r}" for r in range(16)]
        if 'trunc' in XM: out += [f"v_perm_b32 v{b+r}, v{b+2*r+1}, v{b+2*r}, s86" for r in range(8)]
        else: out += [f"v_cvt_pk_bf16_f32 v{b+r}, v{b+2*r}, v{b+2*r+1}" for r in range(8)]
        if MRG and j == 0:
            out += [f"v_bfi_b32 v{S0+128+r}, v{EM+r}, 0, v{b+r}" for r in range(8)] + [f"v_and_b32 v{b+r}, v{EM+r}, v{b+r}" for r in range(8)]
        return out
    k("s_mov_b32 s86, 0x07060302")
    def pv(j):
        b = S0 + j * 16
        return [f"v_mfma_f32_32x32x16_bf16 {v(O,16)}, {v(VF+((2*j+s_)%4)*4,4)}, {v(b+4*s_,4)}, {v(O,16) if (j or s_) else 0}" for s_ in range(2)]
    if os.environ.get("P2S"): k("STAMP 14")
    for t in soft(0): k(t)
    for j in range(9):
        nxt = soft(j + 1) if j < 8 else []
        if j < 8:
            k(vread(2 * j + 2)); k(vread(2 * j + 3))
        p = pv(j)
        for t in nxt[:4]: k(t)
        k(f"s_waitcnt lgkmcnt({2 if j < 8 else 0})")
        k(p[0])
        for t in nxt[4:20]: k(t)
        if j < len(side) and side[j]: k(side[j])
        k(p[1])
        for t in nxt[20:]: k(t)
    k(f"s_lshl_b32 s34, s24, 1\ns_add_u32 s34, s34, s26\ns_mul_i32 s30, s34, {PS}\ns_lshl_b32 s31, s33, 10\ns_add_u32 s30, s30, s31\ns_add_u32 s30, s30, {WS_OM}")
    k(f"s_lshl_b32 s31, s34, 13\ns_lshl_b32 s34, s33, 7\ns_add_u32 s31, s31, s34\ns_add_u32 s31, s31, {WS_O8}\nv_lshlrev_b32 v{AK8}, 2, v{VQ}")
    if os.environ.get("P2S"): k("STAMP 15")
    if 'prio' in XM: k("s_setprio 0")
    k(f"v_rcp_f32 v{MX}, v{O+10}")
    for r in range(10): k(f"v_mul_f32 v{O+r}, v{O+r}, v{MX}")
    for r in range(5): k(f"v_cvt_pk_bf16_f32 v{KF+r}, v{O+2*r}, v{O+2*r+1}")
    k(f"buffer_store_dwordx4 {v(KF,4)}, v{V16}, s[20:23], s30 offen{WT}")
    k("s_mov_b32 exec_hi, 0")
    k(f"buffer_store_dword v{KF+4}, v{AK8}, s[20:23], s31 offen{WT}")
    k("s_mov_b32 exec_hi, -1")
    k(f"s_lshl_b32 s30, s25, 11\ns_lshl_b32 s31, s24, 7\ns_add_u32 s30, s30, s31\ns_add_u32 s30, s30, {F2}\nv_mov_b32 v{TA}, 0\nv_mov_b32 v{TB}, 1")
    k(f"s_waitcnt vmcnt(0)\ns_barrier\ns_cmp_lg_u32 s28, 6\ns_cbranch_scc1 {NXT}")
    set_flag(k, TA, TB, 20, 30)
    k(f"s_branch {NXT}")
    for j, li, lb in inv:
        k(f"{li}:")
        for r in range(16): k(f"v_mov_b32 v{S0+j*16+r}, v{TB}")
        k(f"s_branch {lb}")

def p3(k, ENT, NXT):
    R = 7; WS_ = 12288; WB = 73728; N = 9
    LAB = WB + R * WS_
    PF = k.lab("P3PF"); PROD = k.lab("P3PROD"); PO = k.lab("P3PO")
    k(f"{ENT}:\nSTAMP 4")
    k(f"s_cmp_ge_u32 s2, 192\ns_cbranch_scc1 {PF}")
    k("s_lshl_b32 s24, s10, 2\ns_and_b32 s25, s11, 3\ns_add_u32 s24, s24, s25\ns_lshr_b32 s25, s11, 2")
    ids16(k)
    V16 = 9
    k(f"v_lshlrev_b32 v{V16}, 4, v{VL}")
    k(f"s_cmp_ge_u32 s28, 4\ns_cbranch_scc1 {PROD}")
    k("s_lshr_b32 s26, s28, 1\ns_and_b32 s27, s28, 1")
    VTR, VAO, VAE = 10, 16, 18
    IDN, XR, ACC, AF, BF = 24, 28, 52, 76, 100
    k(f"v_and_b32 v{T1}, 1, v{VG}")
    k(f"v_bfe_u32 v{T0}, v{VL}, 2, 2\nv_lshl_add_u32 v{T0}, v{VG}, 2, v{T0}\nv_mul_u32_u24 v{T0}, 192, v{T0}")
    k(f"v_and_b32 v{T2}, 3, v{VL}\nv_lshl_add_u32 v{T0}, v{T2}, 3, v{T0}\nv_add_u32 v{T0}, {WB}, v{T0}")
    k("s_mul_i32 s30, s27, 3")
    for dt in range(3):
        k(f"s_add_u32 s31, s30, {dt}\nv_xor_b32 v{T2}, s31, v{T1}\nv_lshl_add_u32 v{VTR+dt}, v{T2}, 5, v{T0}\nv_add_u32 v{VTR+3+dt}, {4*WS_}, v{VTR+dt}")
    k(f"s_lshl_b32 s30, s26, 11\nv_add_u32 v{VAO}, s30, v{V16}\nv_add_u32 v{VAO+1}, 32768, v{VAO}")
    k(f"v_lshlrev_b32 v{T0}, 8, v{VG}\nv_lshl_add_u32 v{T0}, v{VI}, 2, v{T0}\nv_add_u32 v{VAE}, s30, v{T0}\nv_add_u32 v{VAE}, 65536, v{VAE}")
    k(f"v_lshlrev_b32 v{T0}, 3, v{VG}\nv_sub_u32 v{T0}, v{VI}, v{T0}\nv_mov_b32 v{T1}, 0x3f80\nv_mov_b32 v{T2}, 0x3f800000")
    for j2 in range(4):
        k(f"v_cmp_eq_u32 vcc, {2*j2}, v{T0}\nv_cmp_eq_u32 s[30:31], {2*j2+1}, v{T0}\nv_cndmask_b32 v{IDN+j2}, 0, v{T1}, vcc")
        k(f"v_cndmask_b32 v{IDN+j2}, v{IDN+j2}, v{T2}, s[30:31]")
    def reads(n):
        st, ks, rs = n >> 1, n & 1, n % 3
        slot = st % R
        out = []
        for tt in range(2):
            if st < 8: out.append(f"ds_read_b128 {v(AF+rs*8+tt*4,4)}, v{VAO+(st>>2)} offset:{(st&3)*8192+ks*4096+tt*1024}")
            else: out += [f"ds_read_b32 v{AF+rs*8+tt*4+q}, v{VAE} offset:{ks*4096+tt*1024+q*64}" for q in range(4)]
        for dt in range(3):
            for hf in range(2):
                out.append(f"ds_read_b64_tr_b16 {v(BF+rs*12+dt*4+hf*2,2)}, v{VTR+3*(slot//4)+dt} offset:{(slot%4)*WS_+ks*6144+hf*3072}")
        return out
    def mf(n):
        rs = n % 3
        return [f"v_mfma_f32_16x16x32_bf16 {v(ACC+(tt*3+dt)*4,4)}, {v(AF+rs*8+tt*4,4)}, {v(BF+rs*12+dt*4,4)}, {v(ACC+(tt*3+dt)*4,4)}"
                for tt in range(2) for dt in range(3)]
    k(f"s_mul_i32 s30, s26, 6144\ns_mul_i32 s31, s27, 96\ns_add_u32 s30, s30, s31\ns_add_u32 s30, s30, {LX}\nv_mul_u32_u24 v{T0}, 192, v{VI}\nv_and_b32 v{T1}, 16, v{VL}\nv_add3_u32 v{T0}, v{T0}, v{T1}, s30")
    for q in range(6): k(f"ds_read_b128 {v(XR+q*4,4)}, v{T0} offset:{(q//3)*3072+(q%3)*32}")
    k("s_waitcnt lgkmcnt(0)")
    for q in range(6):
        k(f"v_mfma_f32_16x16x32_bf16 {v(ACC+q*4,4)}, {v(XR+q*4,4)}, {v(IDN,4)}, 0")
    k("s_barrier")
    if os.environ.get("P3S"): k("STAMP 12")
    for t in reads(0) + reads(1): k(t)
    for n in range(18):
        if n in (2, 16): k("s_waitcnt lgkmcnt(0)\ns_barrier")
        elif n in (8, 12): k(f"s_waitcnt lgkmcnt({len(reads(n + 1))})\ns_barrier")
        elif n < 16: k(f"s_waitcnt lgkmcnt({len(reads(n + 1))})")
        if os.environ.get("P3S") and n in (8, 12): k(f"STAMP {13 + (n == 12)}")
        for t in interleave(mf(n), reads(n + 2) if n + 2 < 18 else [], 0, 2): k(t)
    k("STAMP 5")
    PK = XR; ST = AF
    for dt in range(3):
        for tt in range(2):
            ac = ACC + (tt * 3 + dt) * 4
            k(f"v_cvt_pk_bf16_f32 v{PK+dt*4+tt*2}, v{ac}, v{ac+1}\nv_cvt_pk_bf16_f32 v{PK+dt*4+tt*2+1}, v{ac+2}, v{ac+3}")
    for dt in range(3):
        for tt in range(2):
            for h2 in range(2):
                p = PK + dt * 4 + tt * 2 + h2
                x0 = ACC + (tt * 3 + dt) * 4 + 2 * h2
                k(f"v_lshlrev_b32 v{x0}, 16, v{p}\nv_and_b32 v{x0+1}, 0xffff0000, v{p}")
                sm, sq_ = ST + tt * 4 + 2 * h2, ST + 8 + tt * 4 + 2 * h2
                if dt == 0: k(f"v_pk_mul_f32 {v(sq_,2)}, {v(x0,2)}, {v(x0,2)}")
                else: k(f"v_pk_fma_f32 {v(sq_,2)}, {v(x0,2)}, {v(x0,2)}, {v(sq_,2)}")
                if dt == 1: k(f"v_pk_add_f32 {v(sm,2)}, {v(x0-4,2)}, {v(x0,2)}")
                if dt == 2: k(f"v_pk_add_f32 {v(sm,2)}, {v(sm,2)}, {v(x0,2)}")
    for sh in (8, 4, 2, 1):
        for r in range(16):
            k(f"v_add_f32_dpp v{ST+r}, v{ST+r}, v{ST+r} row_ror:{sh} row_mask:0xf bank_mask:0xf")
    SG = BF + 12
    for r in range(8): k(f"v_mov_b32 v{SG+2*r}, v{ST+r}\nv_or_b32 v{SG+2*r+1}, 0x80000000, v{ST+8+r}")
    k(f"s_lshl_b32 s31, s24, 1\ns_add_u32 s31, s31, s26")
    k(f"s_lshl_b32 s33, s31, 8\ns_add_u32 s33, s33, {WS_ST}")
    k(f"s_lshl_b32 s30, s25, 1\ns_add_u32 s30, s30, s27\ns_lshl_b32 s30, s30, 14\ns_add_u32 s30, s30, s33")
    k(f"v_cmp_eq_u32 s[38:39], 1, v{VI}\nv_cmp_eq_u32 s[40:41], 2, v{VI}\nv_cmp_eq_u32 s[42:43], 3, v{VI}\nv_cmp_gt_u32 vcc, 4, v{VI}")
    k(f"v_lshrrev_b32 v{T0}, 1, v{VI}\nv_lshlrev_b32 v{T0}, 7, v{T0}\nv_lshl_add_u32 v{T0}, v{VG}, 5, v{T0}\nv_and_b32 v{T1}, 1, v{VI}\nv_lshl_add_u32 v{T0}, v{T1}, 4, v{T0}")
    for q in range(1, 4):
        for r in range(4): k(f"v_cndmask_b32 v{SG+r}, v{SG+r}, v{SG+4*q+r}, s[{36+2*q}:{37+2*q}]")
    k(f"s_and_saveexec_b64 s[38:39], vcc\nbuffer_store_dwordx4 {v(SG,4)}, v{T0}, s[20:23], s30 offen{WT}\ns_mov_b64 exec, s[38:39]")
    VH = VTR
    k(f"v_lshlrev_b32 v{VH}, 4, v{VL}")
    k(f"s_mul_i32 s30, s25, 6\ns_mul_i32 s32, s27, 3\ns_add_u32 s30, s30, s32\ns_mul_i32 s30, s30, {PS}")
    k(f"s_lshl_b32 s32, s31, 10\ns_add_u32 s30, s30, s32\ns_add_u32 s32, s30, {WS_HN}\ns_add_u32 s30, s30, {WS_H}")
    k("s_mov_b32 s35, s30")
    VS = VTR + 1
    P = BF
    k(f"v_lshrrev_b32 v{T0}, 5, v{VL}\nv_mul_u32_u24 v{VS}, {6*16384}, v{T0}\nv_and_b32 v{T0}, 31, v{VL}\nv_lshl_add_u32 v{VS}, v{T0}, 3, v{VS}")
    for p in range(6): k(f"s_add_u32 s{40+p}, s33, {p*16384}")
    POLL = k.lab("POLL"); GO = k.lab("GO")
    k(f"s_mov_b32 s37, 0x40000" + ("" if 'nosw' in XM else "\ns_waitcnt vmcnt(0)") + f"\n{POLL}:")
    for p in range(6):
        k(f"buffer_load_dwordx2 {v(P+2*p,2)}, v{VS}, s[20:23], s{40+p} offen sc0 sc1")
    k("s_waitcnt vmcnt(0)")
    k(f"v_and_b32 v{T1}, v{P+1}, v{P+3}\nv_and_b32 v{T2}, v{P+5}, v{P+7}\nv_and_b32 v{T3}, v{P+9}, v{P+11}\nv_and_b32 v{T1}, v{T1}, v{T2}\nv_and_b32 v{T1}, v{T1}, v{T3}")
    k(f"v_cmp_le_i32 vcc, 0, v{T1}\ns_sub_u32 s37, s37, 1\ns_cmp_eq_u32 s37, 0\ns_cbranch_scc1 {GO}\ns_cbranch_vccz {GO}\ns_sleep 1\ns_branch {POLL}\n{GO}:")
    if os.environ.get("P3S"): k("STAMP 15")
    for dt in range(3):
        k(f"buffer_store_dwordx4 {v(PK+dt*4,4)}, v{VH}, s[20:23], s35 offen{WT}\ns_add_u32 s35, s35, {PS}")
    for p in range(1, 6):
        k(f"v_add_f32 v{P}, v{P}, v{P+2*p}\nv_add_f32 v{P+1}, v{P+1}, v{P+2*p+1}")
    k(f"v_mov_b32 v{P+2}, v{P}\nv_mov_b32 v{P+3}, v{P+1}")
    k(f"v_permlane32_swap_b32 v{P}, v{P+2}\nv_permlane32_swap_b32 v{P+1}, v{P+3}")
    k(f"v_add_f32 v{P}, v{P}, v{P+2}\nv_add_f32 v{P+1}, v{P+1}, v{P+3}")
    k(f"s_mov_b32 s34, {f32(1.0/576)}")
    mn, sq = P, P + 1
    k(f"v_mul_f32 v{mn}, s34, v{mn}\nv_mul_f32 v{sq}, s34, -v{sq}\nv_fma_f32 v{sq}, -v{mn}, v{mn}, v{sq}\nv_max_f32 v{sq}, 0, v{sq}")
    k(f"v_add_f32 v{P+2}, {f32(1e-5)}, v{sq}\nv_rsq_f32 v{P+2}, v{P+2}")
    k(f"v_mul_f32 v{sq}, v{sq}, v{P+2}\nv_mul_f32 v{sq}, v{sq}, v{P+2}\nv_add_f32 v{sq}, {f32(1e-5)}, v{sq}\nv_rsq_f32 v{sq}, v{sq}")
    k(f"v_mul_f32 v{P+2}, v{P+2}, v{sq}\nv_mul_f32 v{P+3}, -v{mn}, v{P+2}")
    k(f"s_lshl_b32 s33, s28, 8\ns_add_u32 s33, s33, {LAB}\nv_lshlrev_b32 v{T0}, 3, v{T0}\nv_add_u32 v{T0}, s33, v{T0}")
    k(f"ds_write_b64 v{T0}, {v(P+2,2)}")
    k(f"v_lshlrev_b32 v{T0}, 5, v{VG}\nv_add_u32 v{T0}, s33, v{T0}\ns_waitcnt lgkmcnt(0)")
    AB = ST
    for q in range(4):
        k(f"ds_read_b128 {v(AB+4*q,4)}, v{T0} offset:{(q>>1)*128+(q&1)*16}")
    k(f"s_lshl_b32 s30, s25, 12\ns_lshl_b32 s31, s24, 7\ns_add_u32 s30, s30, s31\ns_add_u32 s30, s30, {F3}\nv_mov_b32 v{T1}, 0\nv_mov_b32 v{T2}, 1")
    k("s_waitcnt lgkmcnt(0)")
    for dt in range(3):
        for tt in range(2):
            x0 = ACC + (tt * 3 + dt) * 4
            for r in range(4): k(f"v_fma_f32 v{x0+r}, v{x0+r}, v{AB+tt*8+2*r}, v{AB+tt*8+2*r+1}")
            k(f"v_cvt_pk_bf16_f32 v{PK+12+dt*4+tt*2}, v{x0}, v{x0+1}\nv_cvt_pk_bf16_f32 v{PK+12+dt*4+tt*2+1}, v{x0+2}, v{x0+3}")
        k(f"buffer_store_dwordx4 {v(PK+12+dt*4,4)}, v{VH}, s[20:23], s32 offen{WT}\ns_add_u32 s32, s32, {PS}")
    k("s_waitcnt vmcnt(0)")
    last_wave_flag(k, T1, T2, T3, LCNT + 4, 20, 30)
    k(f"s_branch {NXT}")
    k(f"{PROD}:\ns_and_b32 s29, s28, 1\ns_cmp_ge_u32 s28, 6\ns_cbranch_scc1 {PO}")
    VWD, VWE = 10, 16
    for q in range(6):
        k(f"v_add_u32 v{T0}, {q*64}, v{VL}")
        k(f"v_mul_u32_u24 v{T1}, 5462, v{T0}\nv_lshrrev_b32 v{T1}, 16, v{T1}")
        k(f"v_mul_u32_u24 v{T2}, 12, v{T1}\nv_sub_u32 v{T0}, v{T0}, v{T2}")
        k(f"v_bfe_u32 v{T2}, v{T1}, 2, 1\nv_lshlrev_b32 v{T2}, 1, v{T2}\nv_xor_b32 v{T0}, v{T0}, v{T2}\nv_lshlrev_b32 v{VWE+q}, 4, v{T0}")
        k(f"v_and_b32 v{T2}, 7, v{T1}")
        k(f"v_bfe_u32 v{T3}, v{T1}, 3, 1\nv_mad_u32_u24 v{T2}, v{T3}, 20, v{T2}")
        k(f"v_bfe_u32 v{T3}, v{T1}, 4, 1\nv_lshl_add_u32 v{T2}, v{T3}, 3, v{T2}")
        k(f"v_mul_u32_u24 v{T2}, 1152, v{T2}\nv_add_u32 v{VWD+q}, v{T2}, v{VWE+q}")
    k(f"s_mul_i32 s33, s25, 192\ns_mul_i32 s30, s29, {8*36*1152}\ns_add_u32 s39, s33, s30\ns_mul_i32 s30, s29, {36*1152}\ns_add_u32 s33, s33, s30")
    k(f"s_mul_i32 s35, s29, 6144\ns_add_u32 s35, s35, {WB}")
    srd(k, 16, PWO, D_ * D_ * 2)
    def issue_w(st):
        for q in range(6): k(dma(35, (st % R) * WS_ + q * 1024, (VWD if st < 8 else VWE) + q, 16, 33 if st < 8 else 39))
        k(f"s_add_u32 s33, s33, {72*1152}")
    for st in range(7): issue_w(st)
    for q in range(6):
        k(f"v_add_u32 v{T0}, {q*64}, v{VL}\nv_mul_u32_u24 v{T1}, 5462, v{T0}\nv_lshrrev_b32 v{T1}, 16, v{T1}\n"
          f"v_bfe_u32 v{T2}, v{T1}, 2, 2\nv_lshlrev_b32 v{T2}, 1, v{T2}\nv_bfe_u32 v{T3}, v{T1}, 4, 1\nv_add_u32 v{T2}, v{T2}, v{T3}\nv_mul_u32_u24 v{T2}, 36, v{T2}\n"
          f"v_and_b32 v{T3}, 3, v{T1}\nv_add3_u32 v{T2}, v{T2}, v{T3}, 16\nv_mul_u32_u24 v{T2}, 1152, v{T2}\nv_add_u32 v{VWE+q}, v{T2}, v{VWE+q}")
    k("s_waitcnt vmcnt(0)\ns_barrier\ns_barrier")
    for st in range(7, 9): issue_w(st)
    k(f"s_barrier\ns_waitcnt vmcnt(0)\ns_barrier\ns_barrier\ns_branch {NXT}")
    k(f"{PO}:")
    VO = 10
    k(f"v_lshrrev_b32 v{T0}, 1, v{VG}\nv_mul_u32_u24 v{T0}, {PS}, v{T0}\nv_and_b32 v{T1}, 1, v{VG}\nv_lshl_add_u32 v{T0}, v{T1}, 9, v{T0}\nv_lshl_add_u32 v{T0}, v{VI}, 4, v{T0}")
    k(f"v_lshrrev_b32 v{T1}, 2, v{VL}\nv_lshlrev_b32 v{T1}, 13, v{T1}\nv_and_b32 v{T2}, 3, v{VL}\nv_lshl_add_u32 v{T1}, v{T2}, 4, v{T1}")
    for q in range(4): k(f"v_add_u32 v{VO+q}, {(q>>1)*1024+(q&1)*256}, v{T0}\nv_add_u32 v{VO+4+q}, {q*64}, v{T1}")
    k(f"s_lshl_b32 s32, s24, 11\ns_mul_i32 s30, s29, {2*PS}\ns_add_u32 s32, s32, s30\ns_add_u32 s32, s32, {WS_OM}\ns_lshl_b32 s30, s29, 17")
    k(f"s_lshl_b32 s38, s24, 8\ns_add_u32 s38, s38, s30\ns_add_u32 s38, s38, {WS_O8}\ns_lshl_b32 s34, s29, 12")
    k(f"s_lshr_b32 s30, s24, 1\ns_lshl_b32 s30, s30, 11\ns_add_u32 s30, s30, {F2}\nv_lshlrev_b32 v{T0}, 7, v{VL}")
    W7, WD = k.lab("W7"), k.lab("WD")
    k(f"s_cmp_eq_u32 s28, 7\ns_cbranch_scc1 {W7}\n" + ("" if os.environ.get("APOLL") == "2" else "s_waitcnt vmcnt(0)\n") + "s_mov_b64 exec, 0xffff")
    poll(k, T0, T1, 1, 20, 30)
    k("s_mov_b64 exec, -1")
    lds_signal(k, T0, LCNT + 20)
    k(f"s_branch {WD}\n{W7}:")
    wait_local(k, T0, LCNT + 20, n=1)
    k(f"{WD}:\nSTAMP 5")
    def issue_o(st):
        for q in range(4): k(dma(34, st * 8192 + q * 1024, VO + q + (4 if st == 8 else 0), 20, 32 if st < 8 else 38, SC))
        k(f"s_add_u32 s32, s32, {4*PS}")
    for st in range(5): issue_o(st)
    k("s_waitcnt vmcnt(12)\ns_barrier")
    for st in range(5, 9): issue_o(st)
    k(f"s_waitcnt vmcnt(16)\ns_barrier\ns_waitcnt vmcnt(8)\ns_barrier\ns_waitcnt vmcnt(0)\ns_barrier\ns_barrier\ns_branch {NXT}")
    k(f"{PF}:\ns_sub_u32 s29, s2, 192")
    if 'early3' in XM:
        NE = k.lab("NE")
        k(f"s_cmp_lt_u32 s11, 27\ns_cbranch_scc1 {NE}")
        w1slow(k)
        k(f"{NE}:")
    pf(k, "PF3", 29, 64, 512, 10)
    r1 = int(os.environ.get("L2W1", 0))
    if r1:
        k("s_sub_u32 s29, s11, 24")
        w1_rows(k, 29, r1 // 8, 0, 0)
    k(f"s_branch {NXT}")

def p4(k, ENT, NXT):
    STG = 28672; R = int(os.environ.get('R4', 5)); N = 32; NS = (R + 1) // 2
    PROD = k.lab("P4PROD"); PF = k.lab("P4PF"); PA = k.lab("P4PA")
    k("; ==== phase 4: u = gelu_tanh(hn^T @ w1 + b1), gelu(x) = x / (1 + exp(-2 sqrt(2/pi) (x + 0.044715 x^3)))")
    k(f"{ENT}:\nSTAMP 6")
    k(f"s_cmp_ge_u32 s11, 27\ns_cbranch_scc1 {PF}")
    k("s_mul_i32 s24, s11, 10923\ns_lshr_b32 s24, s24, 16\ns_mul_i32 s25, s24, 6\ns_sub_u32 s25, s11, s25")
    k("s_and_b32 s29, s10, 1\ns_mul_i32 s30, s29, 5\ns_add_u32 s24, s24, s30")
    k("s_mul_i32 s30, s29, 3\ns_add_u32 s30, s30, s25")
    k("s_cmp_ge_u32 s11, 24\ns_cselect_b32 s24, 4, s24\ns_cselect_b32 s25, s30, s25\ns_mov_b32 s47, s24")
    k("s_lshr_b32 s30, s10, 1\ns_mul_i32 s30, s30, 9\ns_add_u32 s24, s24, s30")
    ids16(k)
    k(f"s_cmp_ge_u32 s28, 4\ns_cbranch_scc1 {PROD}")
    k("s_lshr_b32 s26, s28, 1\ns_and_b32 s27, s28, 1")
    VTR, VHR, B1, ACC, WF, HF = 10, 22, 26, 36, 84, 116
    srd(k, 16, PB1, F_ * 2)
    k(f"v_lshlrev_b32 v{T0}, 3, v{VG}\ns_lshl_b32 s30, s24, 8\ns_lshl_b32 s31, s26, 7\ns_add_u32 s30, s30, s31")
    for f4 in range(4):
        k(f"buffer_load_dwordx2 {v(B1+2*f4,2)}, v{T0}, s[16:19], s30 offen offset:{f4*32}")
    k(f"v_bfe_u32 v{T0}, v{VL}, 2, 2\nv_lshl_add_u32 v{T0}, v{VG}, 2, v{T0}")
    k(f"v_and_b32 v{T1}, 7, v{T0}\nv_lshlrev_b32 v{T0}, 8, v{T0}\nv_and_b32 v{T2}, 3, v{VL}\nv_lshl_add_u32 v{T0}, v{T2}, 3, v{T0}")
    k("s_lshl_b32 s30, s26, 2")
    for f4 in range(4):
        k(f"s_add_u32 s31, s30, {f4}\nv_xor_b32 v{T2}, s31, v{T1}\nv_lshl_add_u32 v{VTR+f4}, v{T2}, 5, v{T0}")
        for q in range(1, NS): k(f"v_add_u32 v{VTR+4*q+f4}, {2*q*STG}, v{VTR+f4}")
    k(f"s_mul_i32 s30, s27, 3072\ns_add_u32 s30, s30, 16384\nv_lshlrev_b32 v{VHR}, 4, v{VL}\nv_add_u32 v{VHR}, s30, v{VHR}")
    for q in range(1, NS): k(f"v_add_u32 v{VHR+q}, {2*q*STG}, v{VHR}")
    k(f"s_mul_i32 s31, s25, 6\ns_mul_i32 s38, s27, 3\ns_add_u32 s31, s31, s38\ns_mul_i32 s31, s31, {144*1024}")
    k(f"s_lshl_b32 s38, s24, 12\ns_add_u32 s31, s31, s38\ns_lshl_b32 s38, s26, 11\ns_add_u32 s31, s31, s38\ns_add_u32 s40, s31, {WS_U}")
    k(f"s_lshr_b32 s30, s10, 1\ns_mul_i32 s30, s30, 6\ns_add_u32 s30, s30, s25\ns_mul_i32 s30, s30, 9\ns_add_u32 s30, s30, s47\ns_lshl_b32 s30, s30, 7\ns_add_u32 s41, s30, {F4}")
    k("s_waitcnt vmcnt(0)")
    for f4 in range(4):
        for dt in range(3):
            for h2 in range(2):
                k(f"v_lshlrev_b32 v{ACC+(f4*3+dt)*4+2*h2}, 16, v{B1+f4*2+h2}\nv_and_b32 v{ACC+(f4*3+dt)*4+2*h2+1}, 0xffff0000, v{B1+f4*2+h2}")
    def reads(st, slot, ks, rs):
        hi = slot >> 1; off = (slot & 1) * STG
        out = [f"ds_read_b128 {v(HF+rs*12+dt*4,4)}, v{VHR+hi} offset:{off+ks*6144+dt*1024}" for dt in range(3)]
        for f4 in range(4):
            for hf in range(2):
                out.append(f"ds_read_b64_tr_b16 {v(WF+rs*16+f4*4+hf*2,2)}, v{VTR+4*hi+f4} offset:{off+ks*8192+hf*4096}")
        return out
    PG = int(os.environ.get("PG4", 0))
    if PG:
        k(f"s_lshl_b32 s42, s10, 7\ns_add_u32 s42, s42, {FP}\nv_mov_b32 v{B1}, 0\nv_mov_b32 v{B1+1}, 1\ns_add_u32 s43, s11, s28\ns_cmp_eq_u32 s43, 0\ns_cselect_b32 s43, {PG}, 99")
        r0 = reads
        def reads(st, slot, ks, rs):
            out = r0(st, slot, ks, rs)
            if st == 0 and ks == 1:
                L = k.lab("PG")
                out.append(f"s_cmp_lg_u32 s36, s43\ns_cbranch_scc1 {L}\ns_mov_b64 exec, 1\nbuffer_store_dword v{B1+1}, v{B1}, s[20:23], s42 offen sc0 sc1\ns_mov_b64 exec, -1\n{L}:")
            return out
    def mf(st, ks, rs):
        return [f"v_mfma_f32_16x16x32_bf16 {v(ACC+(f4*3+dt)*4,4)}, {v(WF+rs*16+f4*4,4)}, {v(HF+rs*12+dt*4,4)}, {v(ACC+(f4*3+dt)*4,4)}"
                for f4 in range(4) for dt in range(3)]
    consumer_loop(k, N, R, reads, mf, per=1, stamp0=None if (os.environ.get('P3S') or os.environ.get('P2S')) else 14, **({'groups': int(os.environ.get('G4', 2))} if os.environ.get('PIPE', '2') == '2' else {}))
    k("STAMP 7")
    c1 = -2.0 * math.sqrt(2.0 / math.pi) * math.log2(math.e)
    c2 = c1 * 0.044715
    CC = VTR
    k(f"v_mov_b32 v{CC}, {f32(c2)}\nv_mov_b32 v{CC+1}, {f32(c1)}")
    k(f"v_lshlrev_b32 v{T0}, 4, v{VL}")
    TT = WF + 16; PKD = HF
    for dt in range(3):
        for pr in range(2):
            xb = [ACC + ((2 * pr + h) * 3 + dt) * 4 for h in range(2)]
            xs = [xb[h] + r for h in range(2) for r in range(4)]
            for h in range(2):
                for h2 in range(2): k(f"v_pk_mul_f32 {v(TT+4*h+2*h2,2)}, {v(xb[h]+2*h2,2)}, {v(xb[h]+2*h2,2)}")
            for n in range(4): k(f"v_pk_fma_f32 {v(TT+2*n,2)}, {v(TT+2*n,2)}, {v(CC,2)}, {v(CC,2)} op_sel:[0,0,1] op_sel_hi:[1,0,1]")
            for h in range(2):
                for h2 in range(2): k(f"v_pk_mul_f32 {v(TT+4*h+2*h2,2)}, {v(TT+4*h+2*h2,2)}, {v(xb[h]+2*h2,2)}")
            for n in range(8): k(f"v_exp_f32 v{TT+n}, v{TT+n}")
            for n in range(4): k(f"v_pk_add_f32 {v(TT+2*n,2)}, {v(TT+2*n,2)}, 1.0 op_sel_hi:[1,0]")
            for n in range(8): k(f"v_rcp_f32 v{TT+n}, v{TT+n}")
            for h in range(2):
                for h2 in range(2): k(f"v_pk_mul_f32 {v(xb[h]+2*h2,2)}, {v(xb[h]+2*h2,2)}, {v(TT+4*h+2*h2,2)}")
            o = PKD + (dt * 2 + pr) * 4
            for n in range(4): k(f"v_cvt_pk_bf16_f32 v{o+n}, v{xs[2*n]}, v{xs[2*n+1]}")
            k(f"buffer_store_dwordx4 {v(o,4)}, v{T0}, s[20:23], s40 offen offset:{pr*1024}{WT}")
        k(f"s_add_u32 s40, s40, {144*1024}")
    k(f"v_mov_b32 v{T1}, 0\nv_mov_b32 v{T2}, 1\ns_waitcnt vmcnt(0)")
    last_wave_flag(k, T1, T2, T3, LCNT + 8, 20, 41)
    k(f"s_branch {NXT}")
    k(f"{PROD}:\ns_and_b32 s26, s28, 1\ns_cmp_ge_u32 s28, 6\ns_cbranch_scc1 {PA}")
    VD = 10
    for q in range(2):
        k(f"v_add_u32 v{T0}, {4*q}, v{VG}")
        k(f"v_lshlrev_b32 v{T1}, 1, v{T0}\nv_xor_b32 v{T1}, v{T1}, v{VI}\nv_lshlrev_b32 v{T1}, 4, v{T1}")
        k(f"v_mul_u32_u24 v{T0}, 9216, v{T0}\nv_add_u32 v{VD+q}, v{T0}, v{T1}")
    for q in range(2, 8): k(f"v_add_u32 v{VD+q}, {8*9216}, v{VD+q-2}")
    k(f"s_lshl_b32 s32, s24, 8\ns_mul_i32 s30, s26, {32*9216}\ns_add_u32 s32, s32, s30\ns_lshl_b32 s34, s26, 13")
    srd(k, 12, PW1, S_ * F_ * 2)
    if 'g4' in XM:
        NG = k.lab("NG")
        k(f"s_cmp_ge_u32 s2, 192\ns_cbranch_scc1 {NG}")
        wait_local(k, 20, LCNT + 4, n=4)
        k(f"{NG}:")
    F4N = int(os.environ.get("FIRST4", 2))
    SPF = os.environ.get("SPF", "")
    def issue_w1(st, slot):
        out = [dma(34, slot * STG + q * 1024, VD + q, 12, 32) for q in range(8)] + [f"s_add_u32 s32, s32, {64*9216}"]
        if st == F4N - 1 and SPF:
            a_, b_ = [int(t) * (S_ * F_ * 2 // 128) for t in SPF.split(":")]
            per = (b_ - a_) // 432 // 64
            t = f"s_lshl_b32 s30, s2, 1\ns_add_u32 s30, s30, s26\ns_mul_i32 s30, s30, {per*64}\ns_add_u32 s30, s30, {a_}\ns_add_u32 s60, s{PW2}, s30\ns_addc_u32 s61, s{PW2+1}, 0"
            for i in range(per): t += f"\ns_load_dword s62, s[60:61], {i*64}"
            out.append(t)
        return out
    producer_loop(k, N, R, 8, issue_w1, NXT, first=F4N)
    k(f"{PA}:")
    k(f"v_lshlrev_b32 v{VD}, 4, v{VL}")
    for q in range(1, 6): k(f"v_add_u32 v{VD+q}, {PS}, v{VD+q-1}")
    k(f"s_mul_i32 s33, s25, {6*PS}\ns_lshl_b32 s30, s26, 10\ns_add_u32 s33, s33, s30\ns_add_u32 s33, s33, {WS_HN}")
    k("s_mul_i32 s35, s26, 6144\ns_add_u32 s35, s35, 16384")
    k(f"s_lshl_b32 s30, s25, 12\ns_add_u32 s30, s30, {F3}\ns_mov_b32 s38, s30\nv_lshlrev_b32 v{T0}, 7, v{VL}")
    W7, WD = k.lab("W7"), k.lab("WD")
    k(f"s_cmp_eq_u32 s28, 7\ns_cbranch_scc1 {W7}")
    if 'nogate' not in XM:
        NG, NG2 = k.lab("NG"), k.lab("NG")
        k(f"s_cmp_ge_u32 s2, 192\ns_cbranch_scc1 {NG}")
        wait_local(k, 20, LCNT + 4)
        k(f"s_branch {NG2}\n{NG}:\ns_mov_b64 exec, 1")
        poll(k, T0, 20, 1, 20, 30, sleep=8)
        k(f"s_mov_b64 exec, -1\n{NG2}:")
    TWO = 'two4' in XM
    k(f"s_mov_b64 exec, {(1 << R) - 1}" if TWO else "s_mov_b32 exec_hi, 0")
    poll(k, T0, 20, 1, 20, 30)
    k("s_mov_b64 exec, -1")
    lds_signal(k, 20, LCNT + 24)
    k(f"s_branch {WD}\n{W7}:")
    wait_local(k, 20, LCNT + 24, n=1)
    k(f"{WD}:\nSTAMP 7")
    PG = int(os.environ.get("PG4", 0))
    def issue_hn(st, slot):
        out = [dma(35, slot * STG + q * 1024, VD + q, 20, 33, SC) for q in range(6)] + ["s_add_u32 s33, s33, 2048"]
        return out
    def second():
        A, B_ = k.lab("W7"), k.lab("WD")
        k(f"s_cmp_eq_u32 s28, 7\ns_cbranch_scc1 {A}\ns_mov_b32 exec_hi, 0")
        poll(k, T0, 20, 1, 20, 38)
        k("s_mov_b32 exec_hi, -1")
        lds_signal(k, 20, LCNT + 24, 2)
        k(f"s_branch {B_}\n{A}:")
        wait_local(k, 20, LCNT + 24, n=2)
        k(f"{B_}:")
    producer_loop(k, N, R, 6, issue_hn, NXT, **({'pre_loop': second} if TWO else {}))
    k(f"{PF}:\ns_sub_u32 s29, s2, 216")
    pf(k, "PF4", 29, 40, 512, 10)
    if 'early4' in XM: w1slow(k)
    if 'nopoison' not in XM:
        srd(k, 56, PDBG, 256)
        k(f"s_mul_i32 s30, s29, 196608\ns_add_u32 s30, s30, {WS_P}\nv_lshlrev_b32 v10, 4, v0\nv_mov_b32 v12, -1\nv_mov_b32 v13, -1\nv_mov_b32 v14, -1\nv_mov_b32 v15, -1")
        for i in range(24): k(f"buffer_store_dwordx4 v[12:15], v10, s[20:23], s30 offen{WT}\ns_add_u32 s30, s30, 8192")
        NZ = k.lab("NZ")
        k(f"v_mov_b32 v16, 4\nv_mov_b32 v17, 1\ns_waitcnt vmcnt(0)\ns_barrier\ns_cmp_lg_u32 s28, 0\ns_cbranch_scc1 {NZ}")
        k(f"s_mov_b64 exec, 1\nbuffer_atomic_add v17, v16, s[56:59], 0 offen sc1\ns_mov_b64 exec, -1\n{NZ}:")
    if 'noslow' not in XM:
        def gated(flag_off, lines_code):
            NP = k.lab("NP")
            k(f"s_cmp_lg_u32 s28, 0\ns_cbranch_scc1 {NP}\ns_mov_b32 s30, {flag_off}\nv_mov_b32 v12, 0\ns_mov_b64 exec, 1")
            poll(k, 12, 13, 1, 20, 30, sleep=8)
            k(f"s_mov_b64 exec, -1\n{NP}:\ns_barrier")
            lines_code()
        def w2slow():
            srd(k, 52, PW2, S_ * F_ * 2)
            k(f"s_lshr_b32 s60, s10, 1\ns_mul_i32 s60, s60, {1152*4096}\ns_and_b32 s61, s10, 1\ns_lshl_b32 s61, s61, 11\ns_add_u32 s60, s60, s61\ns_add_u32 s60, s60, 384")
            k(f"s_sub_u32 s62, s11, 27\nv_lshrrev_b32 v10, 1, v0\nv_mul_u32_u24 v10, 5, v10\nv_add_u32 v10, s62, v10\nv_lshlrev_b32 v10, 12, v10\nv_and_b32 v11, 1, v0\nv_lshl_add_u32 v10, v11, 10, v10")
            k(f"v_cmp_gt_u32 vcc, {2*231}, v0\nv_mov_b32 v11, 0x7ff00000\nv_cndmask_b32 v10, v11, v10, vcc")
            k(f"buffer_load_dword v{DUMMY}, v10, s[52:55], s60 offen")
        gated(F3, lambda: w1slow(k))
        if 'now2' not in XM: gated(F4 + 128 * 2, w2slow)
    if os.environ.get("PG4"):
        NP = k.lab("NP")
        k(f"s_cmp_lg_u32 s28, 0\ns_cbranch_scc1 {NP}\ns_lshl_b32 s30, s10, 7\ns_add_u32 s30, s30, {FP}\nv_mov_b32 v12, 0\ns_mov_b64 exec, 1")
        poll(k, 12, 13, 1, 20, 30, sleep=8)
        k(f"s_mov_b64 exec, -1\n{NP}:\ns_barrier")
        srd(k, 52, PW2, S_ * F_ * 2)
        k(f"s_lshr_b32 s60, s10, 1\ns_mul_i32 s60, s60, {1152*4096}\ns_and_b32 s61, s10, 1\ns_lshl_b32 s61, s61, 11\ns_add_u32 s60, s60, s61")
        k(f"s_sub_u32 s62, s11, 27\ns_mul_i32 s62, s62, {32*4096}\ns_add_u32 s60, s60, s62\nv_lshrrev_b32 v10, 4, v0\nv_lshlrev_b32 v10, 12, v10\nv_and_b32 v11, 15, v0\nv_lshl_add_u32 v10, v11, 7, v10")
        for i in range(8):
            k(f"buffer_load_dword v{DUMMY}, v10, s[52:55], s60 offen\ns_add_u32 s60, s60, {160*4096}")
    if os.environ.get("JIT4"):
        s0, sw = [int(t) for t in os.environ["JIT4"].split(",")]
        k(f"s_mov_b32 s30, {F3}\nv_lshlrev_b32 v12, 7, v0\nv_cmp_gt_u32 vcc, 192, v0\ns_and_saveexec_b64 s[62:63], vcc")
        NP = k.lab("NP")
        k(f"s_cbranch_execz {NP}")
        poll(k, 12, 13, 1, 20, 30)
        k(f"{NP}:\ns_mov_b64 exec, -1\ns_barrier")
        w1_addr(k, 10)
        k("s_sub_u32 s29, s11, 27")
        k(f"v_lshrrev_b32 v12, 4, v0\nv_mul_u32_u24 v12, {PS}, v12\nv_and_b32 v13, 15, v0\nv_lshl_add_u32 v12, v13, 7, v12")
        k(f"v_add_u32 v13, {32*PS}, v12\nv_mov_b32 v14, 0x7ff00000\nv_cmp_gt_u32 vcc, 64, v0\nv_cndmask_b32 v13, v14, v13, vcc")
        k(f"s_lshl_b32 s61, s29, 11\ns_add_u32 s61, s61, {WS_HN + s0*2048}\ns_mul_i32 s62, s29, {64*9216}\ns_add_u32 s60, s60, s62\ns_add_u32 s60, s60, {s0*64*9216}")
        for st in range(s0, 32, 5):
            k(f"buffer_load_dword v{DUMMY}, v12, s[20:23], s61 offen\nbuffer_load_dword v{DUMMY}, v13, s[20:23], s61 offen\ns_add_u32 s61, s61, {5*2048}")
            if st + 4 >= sw:
                k(f"buffer_load_dword v{DUMMY}, v10, s[52:55], s60 offen\ns_add_u32 s62, s60, {32*9216}\nbuffer_load_dword v{DUMMY}, v10, s[52:55], s62 offen")
            k(f"s_add_u32 s60, s60, {5*64*9216}")
    k(f"s_branch {NXT}")

def p5(k, ENT):
    STG = 34816; R = 4; N = 18
    PROD = k.lab("P5PROD"); PA = k.lab("P5PA"); FIN = k.lab("FIN")
    k(f"{ENT}:\nSTAMP 8")
    k("s_lshr_b32 s26, s10, 1\ns_and_b32 s25, s11, 3\ns_lshr_b32 s24, s11, 2")
    if 'nomap5' not in XM:
        k("s_sub_u32 s30, s10, 5\ns_cmp_lt_u32 s30, 2\ns_cselect_b32 s30, 7, 6\ns_add_u32 s24, s24, s30\ns_and_b32 s24, s24, 7")
    k("s_and_b32 s29, s10, 1\ns_lshl_b32 s29, s29, 3\ns_add_u32 s24, s24, s29\ns_and_b32 s29, s26, 1")
    ids16(k)
    k(f"s_cmp_ge_u32 s28, 4\ns_cbranch_scc1 {PROD}")
    VTR = 10; VUR = VTR + 2 * R; B2 = VUR + R
    IDN, HR, UF = 24, 28, 48
    WF = UF + 72; ACC = WF + 16
    srd(k, 16, PB2, S_ * 2)
    srd(k, 40, POUT, S_ * D_ * 2)
    k(f"s_lshl_b32 s30, s24, 8\ns_lshl_b32 s31, s28, 6\ns_add_u32 s30, s30, s31\ns_lshl_b32 s31, s29, 5\ns_add_u32 s30, s30, s31\nv_lshlrev_b32 v{T0}, 1, v{VI}")
    k(f"buffer_load_ushort v{B2}, v{T0}, s[16:19], s30 offen")
    k(f"v_lshlrev_b32 v{T3}, 4, v{VL}")
    k(f"s_mul_i32 s49, s25, {9*PS}\ns_lshl_b32 s32, s24, 12\ns_add_u32 s49, s49, s32\ns_lshl_b32 s32, s28, 10\ns_add_u32 s49, s49, s32\ns_add_u32 s49, s49, {WS_H}")
    k(f"s_lshr_b32 s32, s26, 1\ns_mul_i32 s32, s32, {5*PS}\ns_add_u32 s49, s49, s32")
    k(f"v_bfe_u32 v{T0}, v{VL}, 2, 2\nv_lshl_add_u32 v{T0}, v{VG}, 2, v{T0}")
    k(f"v_and_b32 v{T1}, 7, v{T0}\nv_lshlrev_b32 v{T0}, 8, v{T0}\nv_and_b32 v{T2}, 3, v{VL}\nv_lshl_add_u32 v{T0}, v{T2}, 3, v{T0}")
    k("s_lshl_b32 s30, s28, 1\ns_add_u32 s30, s30, s29")
    for l in range(2):
        k(f"s_xor_b32 s31, s30, {l}\nv_xor_b32 v{T2}, s31, v{T1}\nv_lshl_add_u32 v{VTR+l}, v{T2}, 5, v{T0}")
        for sl in range(1, R): k(f"v_add_u32 v{VTR+2*sl+l}, {sl*STG}, v{VTR+l}")
    k(f"v_lshlrev_b32 v{VUR}, 4, v{VL}\nv_add_u32 v{VUR}, 16384, v{VUR}")
    for sl in range(1, R): k(f"v_add_u32 v{VUR+sl}, {sl*STG}, v{VUR}")
    k(f"v_lshlrev_b32 v{T0}, 2, v{VG}\nv_sub_u32 v{T0}, v{VI}, v{T0}\nv_mov_b32 v{T1}, 0x3f80\nv_mov_b32 v{T2}, 0x3f800000")
    k("s_cmp_eq_u32 s29, 0\ns_cselect_b64 s[38:39], -1, 0")
    for j2 in range(2):
        k(f"v_cmp_eq_u32 vcc, {2*j2}, v{T0}\nv_cndmask_b32 v{UF}, 0, v{T1}, vcc")
        k(f"v_cmp_eq_u32 vcc, {2*j2+1}, v{T0}\nv_cndmask_b32 v{UF}, v{UF}, v{T2}, vcc")
        k(f"v_cndmask_b32 v{IDN+j2}, 0, v{UF}, s[38:39]\nv_cndmask_b32 v{IDN+2+j2}, v{UF}, 0, s[38:39]")
    for r in range(72): k(f"v_mov_b32 v{ACC+r}, 0")
    k(f"s_lshl_b32 s32, s24, 2\ns_add_u32 s32, s32, s25")
    k(f"s_mul_i32 s33, s32, {48*2560}\ns_mul_i32 s30, s28, 2560\ns_add_u32 s33, s33, s30\ns_add_u32 s33, s33, {PB}")
    for x in (1, 2, 3):
        k(f"s_xor_b32 s30, s26, {x}\ns_sub_u32 s31, s26, s30\ns_sub_u32 s31, s31, 1\ns_and_b32 s31, s31, 3")
        k(f"s_mul_i32 s30, s30, 3\ns_add_u32 s30, s30, s31\ns_mul_i32 s30, s30, {4*2560}\ns_add_u32 s{44+x}, s30, s33")
    k(f"s_mul_i32 s30, s26, {12*2560}\ns_add_u32 s33, s33, s30")
    k(f"s_lshl_b32 s35, s32, 11\ns_lshl_b32 s30, s28, 9\ns_add_u32 s35, s35, s30\ns_add_u32 s35, s35, {F5}\ns_lshl_b32 s30, s26, 7\ns_add_u32 s34, s30, s35")
    k(f"s_lshl_b32 s48, s24, 7\ns_lshl_b32 s31, s28, 5\ns_add_u32 s48, s48, s31\ns_lshl_b32 s31, s29, 4\ns_add_u32 s48, s48, s31\ns_mul_i32 s48, s48, 1152\ns_mul_i32 s31, s25, 288\ns_add_u32 s48, s48, s31")
    POIS = 'nopoison' not in XM
    PZ = ACC + 73
    srd(k, 56, PDBG, 256)
    k(f"v_mov_b32 v{PZ-1}, 4")
    firstr = [True]
    def reads(st, slot, ks, rs):
        out = []
        for l in range(2):
            for hf in range(2):
                out.append(f"ds_read_b64_tr_b16 {v(WF+rs*8+l*4+hf*2,2)}, v{VTR+2*slot+l} offset:{ks*8192+hf*4096}")
        for d in range(9):
            out.append(f"ds_read_b128 {v(UF+rs*36+d*4,4)}, v{VUR+slot} offset:{ks*9216+d*1024}")
        if firstr[0]:
            firstr[0] = False
            if POIS: out.append(f"buffer_load_dword v{PZ}, v{PZ-1}, s[56:59], 0 offen sc0 sc1")
            for d in range(5): out.append(f"buffer_load_dwordx4 {v(HR+4*d,4)}, v{T3}, s[20:23], s49 offen{SC}\ns_add_u32 s49, s49, {PS}")
        return out
    def mf(st, ks, rs):
        return [f"v_mfma_f32_16x16x32_bf16 {v(ACC+(d*2+l)*4,4)}, {v(UF+rs*36+d*4,4)}, {v(WF+rs*8+l*4,4)}, {v(ACC+(d*2+l)*4,4)}"
                for d in range(9) for l in range(2)]
    consumer_loop(k, N, R, reads, mf, per=1, final_barrier=False, stamp0=None if (os.environ.get('P3S') or os.environ.get('P2S')) else 15)
    k("STAMP 9")
    V16, V8, VZ, VO = VTR, VTR + 1, VTR + 2, VTR + 3
    k(f"v_lshlrev_b32 v{V16}, 4, v{VL}\nv_lshlrev_b32 v{V8}, 3, v{VL}\nv_mov_b32 v{VZ}, 0\nv_mov_b32 v{T2}, 1\ns_waitcnt vmcnt(0)")
    if POIS:
        OK = k.lab("POK")
        k(f"v_cmp_gt_u32 vcc, 40, v{PZ}\ns_mov_b32 s31, 0\ns_nop 3\ns_cbranch_vccz {OK}")
        poll(k, PZ - 1, PZ, 1, 56, 31, want=40)
        k(f"{OK}:")
    GA, GB = [0, 1, 2, 3, 4], [5, 6, 7, 8]
    def epi(aa):
        own, oth = (GA, GB) if aa == 0 else (GB, GA)
        PK = UF
        n = 0
        for x, grp, l in ((2, oth, 0), (3, oth, 1), (1, own, 1)):
            for c in range(0, len(grp), 2):
                ds = grp[c:c + 2]
                for e, d in enumerate(ds):
                    ac = ACC + (d * 2 + l) * 4
                    k(f"v_cvt_pk_bf16_f32 v{PK+n+2*e}, v{ac}, v{ac+1}\nv_cvt_pk_bf16_f32 v{PK+n+2*e+1}, v{ac+2}, v{ac+3}")
                if len(ds) == 2: k(f"buffer_store_dwordx4 {v(PK+n,4)}, v{V16}, s[20:23], s{44+x} offen offset:{c*512}{WT}")
                else: k(f"buffer_store_dwordx2 {v(PK+n,2)}, v{V8}, s[20:23], s{44+x} offen offset:{c*512}{WT}")
                n += 4
        for e, d in enumerate(own):
            ac = v(ACC + d * 8, 4)
            k(f"v_mfma_f32_16x16x32_bf16 {ac}, {v(HR+4*e,4)}, {v(IDN,4)}, {ac}")
        k(f"v_lshlrev_b32 v{B2}, 16, v{B2}")
        k(f"v_mul_u32_u24 v{VO}, 1152, v{VI}\nv_lshl_add_u32 v{VO}, v{VG}, 3, v{VO}")
        RR = UF + 40
        chunks = [own[c:c + 2] for c in range(0, len(own), 2)]
        k(f"s_add_u32 s30, s33, {4*2560}\ns_add_u32 s31, s33, {8*2560}")
        def inbox():
            regs = []
            for ci, ds in enumerate(chunks):
                for sl, so in enumerate((33, 30, 31)):
                    r = RR + (ci * 3 + sl) * 4
                    if len(ds) == 2: k(f"buffer_load_dwordx4 {v(r,4)}, v{V16}, s[20:23], s{so} offen offset:{ci*1024} sc0 sc1")
                    else: k(f"buffer_load_dwordx2 {v(r,2)}, v{V8}, s[20:23], s{so} offen offset:{ci*1024} sc0 sc1")
                    regs += list(range(r, r + 2 * len(ds)))
            return regs
        def addb2():
            for d in own:
                for h2 in range(2): k(f"v_pk_add_f32 {v(ACC+d*8+2*h2,2)}, {v(ACC+d*8+2*h2,2)}, {v(B2-(B2&1),2)} op_sel:[0,{B2&1}] op_sel_hi:[1,{B2&1}]")
        if POIS:
            addb2()
            PL, GO = k.lab("PP"), k.lab("PG")
            k(f"s_mov_b32 s37, 0x40000\ns_waitcnt vmcnt({os.environ.get('PWAIT', 0)})\n{PL}:")
            regs = inbox()
            k(f"s_waitcnt vmcnt(0)\nv_max_u32 v{T0}, v{regs[0]}, v{regs[1]}")
            for n in range(2, len(regs), 2): k(f"v_max3_u32 v{T0}, v{T0}, v{regs[n]}, v{regs[n+1]}")
            k(f"v_cmp_eq_u32 vcc, -1, v{T0}\ns_sub_u32 s37, s37, 1\ns_cmp_eq_u32 s37, 0\ns_cbranch_scc1 {GO}\ns_cbranch_vccz {GO}\ns_sleep 2\ns_branch {PL}\n{GO}:\nSTAMP 10")
        else:
            k("s_waitcnt vmcnt(0)" + ("\nSTAMP 12" if os.environ.get("P5S") else ""))
            set_flag(k, VZ, T2, 20, 34)
            if 'fw' in XM: k("s_waitcnt vmcnt(0)")
            addb2()
            k(f"v_lshlrev_b32 v{T0}, 7, v{VL}\ns_mov_b64 exec, 0xf")
            poll(k, T0, HR, 1, 20, 35)
            k("s_mov_b64 exec, -1\nSTAMP 10")
            inbox()
        TR = 'notr' not in XM
        nch = 2 * len(own)
        if TR:
            k(f"s_mul_i32 s30, s28, 2816\ns_add_u32 s30, s30, {3*STG}\nv_mul_u32_u24 v{VO}, 176, v{VI}\nv_lshl_add_u32 v{VO}, v{VG}, 3, v{VO}\nv_add_u32 v{VO}, s30, v{VO}")
            nin = -(-16 * nch // 64)
            for q in range(nin):
                k(f"v_add_u32 v{T0}, {q*64}, v{VL}\nv_mul_u32_u24 v{T1}, {-(-65536//nch)}, v{T0}\nv_lshrrev_b32 v{T1}, 16, v{T1}\nv_mul_u32_u24 v{T2}, {nch}, v{T1}\nv_sub_u32 v{T0}, v{T0}, v{T2}\nv_lshlrev_b32 v{T0}, 4, v{T0}")
                k(f"v_mul_u32_u24 v{T2}, 176, v{T1}\nv_add3_u32 v{HR+q}, v{T2}, v{T0}, s30\nv_mul_u32_u24 v{T2}, 1152, v{T1}\nv_add_u32 v{HR+4+q}, v{T2}, v{T0}")
        nst = 0
        for ci, ds in enumerate(chunks):
            if not POIS: k(f"s_waitcnt vmcnt({3*(len(chunks)-1-ci)+nst})")
            for e, d in enumerate(ds):
                o = ACC + d * 8
                for sl in range(3):
                    for h2 in range(2):
                        p = RR + (ci * 3 + sl) * 4 + 2 * e + h2
                        t = PK + (sl * 2 + h2) * 2
                        k(f"v_lshlrev_b32 v{t}, 16, v{p}\nv_and_b32 v{t+1}, 0xffff0000, v{p}")
                for sl in range(3):
                    for h2 in range(2):
                        t = PK + (sl * 2 + h2) * 2
                        k(f"v_pk_add_f32 {v(o+2*h2,2)}, {v(o+2*h2,2)}, {v(t,2)}")
                k(f"v_cvt_pk_bf16_f32 v{o}, v{o}, v{o+1}\nv_cvt_pk_bf16_f32 v{o+1}, v{o+2}, v{o+3}")
                if TR: k(f"ds_write_b64 v{VO}, {v(o,2)} offset:{(d-own[0])*32}")
                else:
                    k(f"buffer_store_dwordx2 {v(o,2)}, v{VO}, s[40:43], s48 offen offset:{d*32}" + os.environ.get("OUTF", " nt"))
                    nst += 1
        if TR:
            k("s_waitcnt lgkmcnt(0)")
            for q in range(nin): k(f"ds_read_b128 {v(PK+16+4*q,4)}, v{HR+q}")
            for q in range(nin):
                k(f"s_waitcnt lgkmcnt({nin-1-q})")
                if (q + 1) * 64 > 16 * nch: k("s_mov_b32 exec_hi, 0")
                k(f"buffer_store_dwordx4 {v(PK+16+4*q,4)}, v{HR+4+q}, s[40:43], s48 offen offset:{own[0]*32}" + os.environ.get("OUTF", " nt"))
        k("s_endpgm")
    A1 = k.lab("A1")
    k(f"s_cmp_ge_u32 s26, 2\ns_cbranch_scc1 {A1}")
    epi(0)
    k(f"{A1}:")
    epi(1)
    k(f"{PROD}:\ns_and_b32 s29, s28, 1")
    ORD = 'noord' not in XM
    k("s_sub_u32 s38, 1, s26\ns_and_b32 s38, s38, 3\ns_cmp_eq_u32 s38, 0\ns_cselect_b32 s39, 6, 7")
    R5 = 'rot5' in XM
    if R5: k("s_and_b32 s50, s24, 7\ns_sub_u32 s30, s50, s39\ns_cmp_ge_u32 s50, s39\ns_cselect_b32 s50, s30, s50")
    for n in range(9):
        if not ORD:
            k(f"s_mov_b32 s{40+n}, {n}"); continue
        if R5:
            k(f"s_add_u32 s51, s50, {n}\ns_sub_u32 s30, s51, s39\ns_cmp_ge_u32 s51, s39\ns_cselect_b32 s51, s30, s51\ns_mov_b32 s{40+n}, s51")
            for d in (0, 3, 6):
                k(f"s_add_u32 s30, s38, {d}\ns_cmp_le_u32 s30, s51\ns_addc_u32 s{40+n}, s{40+n}, 0")
        else:
          k(f"s_mov_b32 s{40+n}, {n}")
          for d in (0, 3, 6):
            if n - d >= 0: k(f"s_cmp_le_u32 s38, {n-d}\ns_addc_u32 s{40+n}, s{40+n}, 0")
        if n >= 6: k(f"s_sub_u32 s30, {n}, s39\ns_lshl_b32 s30, s30, 2\ns_add_u32 s30, s30, s38\ns_cmp_le_u32 s39, {n}\ns_cselect_b32 s{40+n}, s30, s{40+n}")
    k(f"s_cmp_ge_u32 s28, 6\ns_cbranch_scc1 {PA}")
    VD = 10
    for q in range(2):
        k(f"v_add_u32 v{T0}, {4*q}, v{VG}")
        k(f"v_lshlrev_b32 v{T1}, 1, v{T0}\nv_xor_b32 v{T1}, v{T1}, v{VI}\nv_lshlrev_b32 v{T1}, 4, v{T1}")
        k(f"v_lshl_add_u32 v{VD+q}, v{T0}, 12, v{T1}")
    for q in range(2, 8): k(f"v_add_u32 v{VD+q}, {8*4096}, v{VD+q-2}")
    k(f"s_mul_i32 s32, s26, {1152*4096}\ns_lshl_b32 s30, s29, 17\ns_add_u32 s32, s32, s30\ns_lshl_b32 s30, s24, 8\ns_add_u32 s32, s32, s30\ns_lshl_b32 s34, s29, 13")
    srd(k, 12, PW2, F_ * S_ * 2)
    if 'g5' in XM:
        NG = k.lab("NG")
        k(f"s_cmp_ge_u32 s2, 216\ns_cbranch_scc1 {NG}")
        wait_local(k, 20, LCNT + 8, n=4)
        k(f"{NG}:")
    producer_loop(k, N, R, 8, lambda st, slot: [f"s_lshl_b32 s33, s{40+(st>>1)}, 19\ns_add_u32 s33, s33, s32" + (f"\ns_add_u32 s33, s33, {64*4096}" if st & 1 else "")] +
                  [dma(34, slot * STG + q * 1024, VD + q, 12, 33) for q in range(8)], FIN, final_barrier=False, first=int(os.environ.get("FIRST5", 2)), gate=lambda st: None)
    k(f"{PA}:")
    k(f"v_lshlrev_b32 v{VD}, 4, v{VL}")
    for d in range(1, 9): k(f"v_add_u32 v{VD+d}, {144*1024}, v{VD+d-1}")
    k(f"s_mul_i32 s33, s25, {9*144*1024}\ns_mul_i32 s30, s26, {36*1024}\ns_add_u32 s33, s33, s30\ns_lshl_b32 s30, s29, 10\ns_add_u32 s33, s33, s30\ns_add_u32 s33, s33, {WS_U}")
    k("s_mul_i32 s35, s29, 9216\ns_add_u32 s35, s35, 16384")
    k(f"s_mul_i32 s30, s25, 3\ns_lshr_b32 s30, s30, 1\ns_mul_i32 s31, s26, 6\ns_add_u32 s30, s30, s31\ns_mul_i32 s30, s30, {9*128}\ns_add_u32 s30, s30, {F4}")
    k(f"v_lshlrev_b32 v{T0}, 7, v{VL}")
    W7, WD = k.lab("W7"), k.lab("WD")
    k(f"s_mov_b32 s49, s30\ns_cmp_eq_u32 s28, 7\ns_cbranch_scc1 {W7}")
    if 'nogate' not in XM:
        NG, NG2 = k.lab("NG"), k.lab("NG")
        k(f"s_cmp_ge_u32 s2, 216\ns_cbranch_scc1 {NG}")
        wait_local(k, 20, LCNT + 8)
        k(f"s_branch {NG2}\n{NG}:\ns_lshl_b32 exec_lo, 1, s40\ns_mov_b32 exec_hi, 0")
        poll(k, T0, 20, 1, 20, 30, sleep=8)
        k(f"{NG2}:")
    TWO5 = 'two5' in XM
    if TWO5: k("s_lshl_b32 s31, 1, s40\ns_lshl_b32 s51, 1, s41\ns_or_b32 s31, s31, s51\ns_mul_i32 exec_lo, s31, 0x201\ns_mov_b32 exec_hi, 0")
    else: k("s_lshl_b32 s31, 0x111, s38\ns_and_b32 s31, s31, 0x1ff\ns_mul_i32 s31, s31, 0x201\ns_andn2_b32 exec_lo, 0x3ffff, s31\ns_mov_b32 exec_hi, 0\ns_mov_b32 s49, s30" if ORD else "s_mov_b64 exec, 0x3ffff")
    poll(k, T0, 20, 1, 20, 30)
    k("s_mov_b64 exec, -1")
    lds_signal(k, 20, LCNT + 28)
    k(f"s_branch {WD}\n{W7}:")
    wait_local(k, 20, LCNT + 28, n=1)
    k(f"{WD}:\nSTAMP 9")
    def gate(st):
        if st == 4 and TWO5:
            k("s_lshl_b32 s31, 0x111, s38\ns_and_b32 s31, s31, 0x1ff\ns_mul_i32 s31, s31, 0x201\ns_andn2_b32 exec_lo, 0x3ffff, s31\ns_mov_b32 exec_hi, 0")
            poll(k, T0, 20, 1, 20, 49)
            k("s_mov_b64 exec, -1")
        if st == 12 and ORD:
            k("s_mov_b64 exec, 0x3ffff")
            poll(k, T0, 20, 1, 20, 49)
            k("s_mov_b64 exec, -1")
    producer_loop(k, N, R, 9, lambda st, slot: [f"s_lshl_b32 s32, s{40+(st>>1)}, 12\ns_add_u32 s32, s32, s33" + ("\ns_add_u32 s32, s32, 2048" if st & 1 else "")] +
                  [dma(35, slot * STG + q * 1024, VD + q, 20, 32, SC) for q in range(9)], FIN, final_barrier=False, gate=gate)
    k(f"{FIN}:\ns_endpgm")

NAME = "sequential_preLN__sliding_block__mixer_token_mlp__prompt_kernel"
def gen_mega():
    k = Kern(NAME, 512, 256, LCNT + 64)
    k.lab = (lambda f: (lambda base="L": f(base).replace(NAME[:-7], "m")))(k.lab)
    END = k.lab("END")
    k(f"s_cmp_ge_u32 s2, 256\ns_cbranch_scc1 {END}")
    k("s_load_dwordx16 s[64:79], s[0:1], 0\ns_load_dwordx4 s[80:83], s[0:1], 64\ns_load_dwordx2 s[84:85], s[0:1], 80")
    k("s_and_b32 s10, s2, 7\ns_lshr_b32 s11, s2, 3")
    if 'nocode' not in XM:
        H = k.lab("PC"); SK = k.lab("SKC")
        k(f"s_cmp_lt_u32 s2, 192\ns_cbranch_scc1 {SK}\ns_getpc_b64 s[60:61]\n{H}:\ns_sub_u32 s60, s60, {H}-L_text_begin\ns_subb_u32 s61, s61, 0")
        k(f"s_sub_u32 s62, s11, 24\ns_lshl_b32 s62, s62, 7\nv_lshlrev_b32 v{T0}, 10, v0\nv_add_u32 v{T0}, s62, v{T0}")
        k(f"s_mov_b32 s62, L_text_end-L_text_begin\nv_cmp_gt_u32 vcc, s62, v{T0}\ns_and_saveexec_b64 s[62:63], vcc\ns_cbranch_execz {SK}\nglobal_load_dword v{DUMMY}, v{T0}, s[60:61]\n{SK}:\ns_mov_b64 exec, -1")
    lane_ids(k, VL, 2, 28)
    E2a, E2b, E3, E4, E5 = [k.lab(n) for n in ("P2A", "P2B", "P3", "P4", "P5")]
    p1(k, (E2a, E2b))
    p2(k, (E2a, E2b), E3)
    p3(k, E3, E4)
    p4(k, E4, E5)
    p5(k, E5)
    k(f"{END}:\ns_endpgm")
    return k
```

```python
from common import *
import os

def producer_loop(k, N, R, P, issue, nxt, first=2, cnt=36, tail=None, final_barrier=True, gate=None):
    special = getattr(issue, "special_from", N)
    def do(st):
        if gate: gate(st)
        for t in issue(st, st % R): k(t)
    first = min(first, R)
    for st in range(first): do(st)
    k(f"s_waitcnt vmcnt({(first - 1) * P})\ns_barrier")
    issued = first
    for st in range(issued, min(N, R)): do(st)
    issued = min(N, R)
    k(f"s_waitcnt vmcnt({(issued - 2) * P})\ns_barrier")
    b = 1
    nsteady = N - R
    nloop = 0
    while gate is None and (nloop + 1) * R <= nsteady and R + (nloop + 1) * R - 1 < special: nloop += 1
    if nloop >= 2:
        L = k.lab("PL")
        k(f"s_mov_b32 s{cnt}, {nloop}\n{L}:")
        for i in range(R):
            do(R + i)
            k(f"s_waitcnt vmcnt({(R - 2) * P})\ns_barrier")
        k(f"s_sub_u32 s{cnt}, s{cnt}, 1\ns_cmp_lg_u32 s{cnt}, 0\ns_cbranch_scc1 {L}")
        b += nloop * R; issued += nloop * R
    while b < N - 1:
        if issued < N:
            do(issued); issued += 1
        k(f"s_waitcnt vmcnt({(issued - (b + 1) - 1) * P})")
        if b == N - 2 and tail: tail(k)
        k("s_barrier")
        b += 1
    if final_barrier: k("s_barrier")
    k(f"s_branch {nxt}")

def consumer_loop(k, N, R, reads, mf, cnt=36, per=2, special_from=None, final_barrier=True, before_last=None, stamp0=None):
    special_from = N if special_from is None else special_from
    if os.environ.get("STG_STAMP") and stamp0 == 12: special_from = 0; k("s_mov_b32 s36, 1")
    if os.environ.get("STG_STAMP") and stamp0 != 12: stamp0 = None
    k("s_barrier")
    if stamp0 is not None: k(f"STAMP {stamp0}")
    for t in reads(0, 0, 0, 0): k(t)
    def stage(st, last=False):
        slot = st % R
        k("s_waitcnt lgkmcnt(0)")
        for t in interleave(mf(st, 0, 0), reads(st, slot, 1, 1), 0, per): k(t)
        fill = []
        if not last:
            k("s_waitcnt lgkmcnt(0)\ns_barrier")
            fill = reads(st + 1, (slot + 1) % R, 0, 0)
        else:
            k("s_waitcnt lgkmcnt(0)")
            if final_barrier: k("s_barrier")
        for t in interleave(mf(st, 1, 1), fill, 0, per): k(t)
    nloop = 0
    while (nloop + 1) * R < N and (nloop + 1) * R < special_from: nloop += 1
    st = 0
    if nloop >= 2:
        L = k.lab("CL")
        k(f"s_mov_b32 s{cnt}, {nloop}\n{L}:")
        for i in range(R): stage(i)
        k(f"s_sub_u32 s{cnt}, s{cnt}, 1\ns_cmp_lg_u32 s{cnt}, 0\ns_cbranch_scc1 {L}")
        st = nloop * R
    while st < N:
        if os.environ.get("STG_STAMP") and stamp0 == 12 and st in (1, 2, 4): k(f"STAMP {13 + (1, 2, 4).index(st)}")
        if st == N - 1 and before_last: before_last()
        stage(st, st == N - 1); st += 1

def dma(m0base, off, vaddr, srd, soff, flags=""):
    return f"s_add_u32 m0, s{m0base}, {off}\ns_nop 0\nbuffer_load_dwordx4 v{vaddr}, s[{srd}:{srd+3}], s{soff} offen{flags} lds"

def poll(k, vaddr, vdst, nd, srd, soff, cnt=37, sleep=True, want=None):
    P, G = k.lab("POLL"), k.lab("GO")
    op = {1: "dword", 2: "dwordx2", 4: "dwordx4"}[nd]
    k(f"s_mov_b32 s{cnt}, 0x40000\n{P}:")
    if os.environ.get("APOLL") and nd == 1:
        k(f"v_mov_b32 v{vdst}, 0\nbuffer_atomic_or v{vdst}, v{vaddr}, s[{srd}:{srd+3}], s{soff} offen sc0 sc1\ns_waitcnt vmcnt(0)")
    else:
        k(f"buffer_load_{op} {v(vdst, nd)}, v{vaddr}, s[{srd}:{srd+3}], s{soff} offen sc0 sc1\ns_waitcnt vmcnt(0)")
    for i in range(1, nd): k(f"v_min_u32 v{vdst}, v{vdst}, v{vdst+i}")
    k((f"v_cmp_eq_u32 vcc, 0, v{vdst}" if want is None else f"v_cmp_gt_u32 vcc, {want}, v{vdst}") + f"\ns_sub_u32 s{cnt}, s{cnt}, 1\ns_cmp_eq_u32 s{cnt}, 0\ns_cbranch_scc1 {G}")
    if sleep:
        k(f"s_cbranch_vccz {G}\ns_sleep {int(sleep)}\ns_branch {P}\n{G}:")
    else:
        k(f"s_cbranch_vccnz {P}\n{G}:")

def set_flag(k, vz, vone, srd, soff):
    k(f"s_mov_b64 exec, 1\nbuffer_store_dword v{vone}, v{vz}, s[{srd}:{srd+3}], s{soff} offen sc0 sc1\ns_mov_b64 exec, -1")


def last_wave_flag(k, vz, vone, vt, ldsoff, srd, soff, n=4):
    S = k.lab("NL")
    k(f"v_mov_b32 v{vt}, {ldsoff}\ns_mov_b64 exec, 1\nds_add_rtn_u32 v{vt}, v{vt}, v{vone}\ns_waitcnt lgkmcnt(0)\nv_readfirstlane_b32 s31, v{vt}")
    k(f"s_cmp_lg_u32 s31, {n-1}\ns_cbranch_scc1 {S}\nbuffer_store_dword v{vone}, v{vz}, s[{srd}:{srd+3}], s{soff} offen sc0 sc1")
    k(f"v_mov_b32 v{vt}, {ldsoff}\ns_waitcnt vmcnt(0)\nds_add_u32 v{vt}, v{vone}\n{S}:\ns_mov_b64 exec, -1")

def lds_signal(k, vt, ldsoff, val=1):
    k(f"v_mov_b32 v{vt}, {ldsoff}\nv_mov_b32 v{vt+1}, {val}\nds_write_b32 v{vt}, v{vt+1}")

def wait_local(k, vt, ldsoff, n=int(os.environ.get('LWN', 5)), cnt=37):
    P, G = k.lab("LW"), k.lab("LG")
    k(f"s_mov_b32 s{cnt}, 0x400000\n{P}:\nv_mov_b32 v{vt}, {ldsoff}\nds_read_b32 v{vt}, v{vt}\ns_waitcnt lgkmcnt(0)\nv_readfirstlane_b32 s31, v{vt}")
    k(f"s_cmp_ge_u32 s31, {n}\ns_cbranch_scc1 {G}\ns_sub_u32 s{cnt}, s{cnt}, 1\ns_cmp_eq_u32 s{cnt}, 0\ns_cbranch_scc1 {G}\ns_sleep 1\ns_branch {P}\n{G}:")


from asmlib import Ins

def producer_loop2(k, N, R, P, issue, nxt, first=2, cnt=36, tail=None, final_barrier=True, gate=None, pre_loop=None):
    special = getattr(issue, "special_from", N)
    def do(st):
        if gate: gate(st)
        for t in issue(st, st % R): k(t)
    first = min(first, R)
    for st in range(first): do(st)
    k(f"s_waitcnt vmcnt({(first - 1) * P})\ns_barrier")
    for st in range(first, min(N, R)): do(st)
    issued = min(N, R)
    k(f"s_waitcnt vmcnt({(issued - 2) * P})\ns_barrier")
    k(f"s_waitcnt vmcnt({(issued - 3) * P})\ns_barrier")
    if pre_loop: pre_loop()
    b = 2
    nsteady = N - R
    nloop = 0
    while gate is None and (nloop + 1) * R <= nsteady and R + (nloop + 1) * R - 1 < special: nloop += 1
    if nloop >= 2:
        L = k.lab("PL")
        k(f"s_mov_b32 s{cnt}, {nloop}\n{L}:")
        for i in range(R):
            do(R + i)
            k(f"s_waitcnt vmcnt({(R - 3) * P})\ns_barrier")
        k(f"s_sub_u32 s{cnt}, s{cnt}, 1\ns_cmp_lg_u32 s{cnt}, 0\ns_cbranch_scc1 {L}")
        b += nloop * R; issued += nloop * R
    while b < N - 1:
        if issued < N:
            do(issued); issued += 1
        k(f"s_waitcnt vmcnt({(issued - (b + 1) - 1) * P})")
        if b == N - 2 and tail: tail(k)
        k("s_barrier")
        b += 1
    if final_barrier: k("s_barrier")
    k(f"s_branch {nxt}")

def consumer_loop2(k, N, R, reads, mf, cnt=36, per=None, special_from=None, final_barrier=True, before_last=None, stamp0=None, groups=3):
    special_from = N if special_from is None else special_from
    pend = []
    def put(it):
        for line in it.split("\n"):
            x = Ins(line)
            if x.op and x.kind == "ds": pend.append(set(x.dst))
            k(line)
    def wait_for(ms):
        src = set().union(*[Ins(m).src for m in ms])
        last = max([n for n, d in enumerate(pend) if d & src], default=-1)
        if last >= 0:
            keep = min(len(pend) - 1 - last, 15)
            k(f"s_waitcnt lgkmcnt({keep})")
            del pend[:len(pend) - keep]
    def half(main, fill):
        n = len(main); g = -(-n // groups)
        free = {q * g - 1 for q in range(1, groups)} | {n - 1}
        slots = [i for i in range(n) if i not in free]
        lds = [f for f in fill if f.startswith("ds_")]
        oth = [f for f in fill if not f.startswith("ds_")]
        pre = [f for f in oth if f.startswith("v_")]
        post = [f for f in oth if not f.startswith("v_")]
        plan = {i: [] for i in range(n)}
        si = 0
        while pre:
            plan[slots[si]] += pre[:2]; pre = pre[2:]; si += 1
        rest = slots[si:]
        extra = max(0, len(lds) - len(rest))
        fi = 0
        for m_, i_ in enumerate(rest):
            c = 2 if m_ < extra else 1
            if len(lds) < len(rest): c = 1 if fi < len(lds) else 0
            plan[i_] += lds[fi:fi + c]; fi += c
        assert fi >= len(lds)
        plan[n - 1] += post
        for i_, m in enumerate(main):
            if i_ % g == 0: wait_for(main[i_:i_ + g])
            k(m)
            for f in plan[i_]: put(f)
    k("s_barrier")
    if stamp0 is not None: k(f"STAMP {stamp0}")
    for t in reads(0, 0, 0, 0): put(t)
    def stage(st, last=False):
        slot = st % R
        half(mf(st, 0, 0), reads(st, slot, 1, 1))
        fill = []
        if not last:
            k("s_barrier")
            fill = reads(st + 1, (slot + 1) % R, 0, 0)
        elif final_barrier:
            k("s_waitcnt lgkmcnt(0)\ns_barrier"); del pend[:]
        half(mf(st, 1, 1), fill)
    nloop = 0
    while (nloop + 1) * R < N and (nloop + 1) * R < special_from: nloop += 1
    st = 0
    if nloop >= 2:
        L = k.lab("CL")
        entry = [set(d) for d in pend]
        k(f"s_mov_b32 s{cnt}, {nloop}\n{L}:")
        for i in range(R): stage(i)
        assert [set(d) for d in pend] == entry[len(entry) - len(pend):]
        k(f"s_sub_u32 s{cnt}, s{cnt}, 1\ns_cmp_lg_u32 s{cnt}, 0\ns_cbranch_scc1 {L}")
        st = nloop * R
    while st < N:
        if st == N - 1 and before_last: before_last()
        stage(st, st == N - 1); st += 1

if os.environ.get("PIPE", "2") == "2":
    producer_loop, consumer_loop = producer_loop2, consumer_loop2
```

```python
from asmlib import *
import struct

MB = 1 << 20
WS_QM = 0
WS_KM = 2 * MB
WS_VM = 4 * MB
WS_Q8 = 6 * MB
WS_K8 = 6 * MB + 256 * 1024
WS_V8 = 6 * MB + 512 * 1024
WS_OM = 8 * MB
WS_O8 = 11 * MB
WS_H = 12 * MB
WS_HN = 16 * MB
WS_ST = 20 * MB
WS_U = 24 * MB
WS_FL = 21 * MB
WS_P = 32 * MB
WS_SIZE = 52 * MB

S_, D_, F_ = 2048, 576, 4608
import os
SST = ' sc0 sc1' if os.environ.get('WT') else ''

def f32(x):
    return "0x%08x" % struct.unpack("<I", struct.pack("<f", x))[0]

def srd(k, d, ptr, nbytes):
    off = int(os.environ.get("WSOFF", 0)) * MB if nbytes == WS_SIZE else 0
    if off:
        k(f"s_add_u32 s{d}, s{ptr}, {off}")
        k(f"s_addc_u32 s{d+1}, s{ptr+1}, 0\ns_and_b32 s{d+1}, s{d+1}, 0xffff")
    else:
        k(f"s_mov_b32 s{d}, s{ptr}")
        k(f"s_and_b32 s{d+1}, s{ptr+1}, 0xffff")
    k(f"s_mov_b32 s{d+2}, {nbytes}")
    k(f"s_mov_b32 s{d+3}, 0x20000")

def lane_ids(k, vl, vw, sw):
    k(f"v_and_b32 v{vl}, 63, v0")
    k(f"v_lshrrev_b32 v{vw}, 6, v0")
    k(f"v_readfirstlane_b32 s{sw}, v{vw}")

def interleave(main, fill, start=0, per=1):
    out = []; fi = 0
    for n, m in enumerate(main):
        out.append(m)
        if n >= start:
            pp = per if isinstance(per, int) else per[min(n - start, len(per) - 1)]
            for _ in range(pp):
                if fi < len(fill): out.append(fill[fi]); fi += 1
    out += fill[fi:]
    return out

PS = int(os.environ.get('PS', 65536 + 1024))
```

```python
from common import *
from ring2 import *
import math, os
XM = os.environ.get('MX', 'notouch,nopoison,noslow,fw,hyb,two4,two5').split(',')
WT = " sc0 sc1"
SC = " sc1"
FL = WS_ST + 196608
F1 = FL; F2 = F1 + 32768; F3 = F2 + 32768; F4 = F3 + 24576; F5 = F4 + 27648; FP = F5 + 131072; FEND = FP + 1024
assert FEND - WS_ST <= 64 * 8192
PB = int(os.environ.get('PB', WS_P))
LX = 61440
LCNT = 160768
WS_XS = 22 * MB
WS_CS = WS_XS + 16384
PX, PWQKV, PWO, PW1, PB1, PW2, PB2, POUT, PDBG, PWS = 64, 66, 68, 72, 74, 76, 78, 80, 82, 84
VL, VG, VI = 1, 3, 4
T0, T1, T2, T3 = 5, 6, 7, 8
DUMMY = 234

def pf_flat(k, srd_, sidx, nwg, nthreads, b0, b1, tmp, vt=0, s0=60):
    lines = (b1 - b0) // 128
    per = (lines + nwg - 1) // nwg
    n = (per + nthreads - 1) // nthreads
    k(f"s_mul_i32 s{s0}, s{sidx}, {per*128}\ns_add_u32 s{s0}, s{s0}, {b0}\nv_lshlrev_b32 v{tmp}, 7, v{vt}")
    for i in range(n):
        last = per - i * nthreads
        if last < nthreads:
            k(f"v_mov_b32 v{tmp+1}, 0x7ff00000\nv_cmp_gt_u32 vcc, {last}, v{vt}\nv_cndmask_b32 v{tmp}, v{tmp+1}, v{tmp}, vcc")
        k(f"buffer_load_dword v{DUMMY}, v{tmp}, s[{srd_}:{srd_+3}], s{s0} offen\ns_add_u32 s{s0}, s{s0}, {nthreads*128}")

PFDEF = dict(PF1B="w1:0:48", PF2="w1:48:88", PF3="w1:88:128,w2:0:26", PF4="w2:26:128")
def pf(k, name, sidx, nwg, nthreads, tmp, vt=0):
    spec = os.environ.get(name, PFDEF.get(name, ""))
    if not spec or spec == "0": return
    U = S_ * F_ * 2 // 128
    for it in spec.split(","):
        w, a_, b_ = it.split(":")
        srd(k, 52, PW1 if w == "w1" else PW2, S_ * F_ * 2)
        pf_flat(k, 52, sidx, nwg, nthreads, int(a_) * U, int(b_) * U, tmp, vt=vt)

def w1_addr(k, tmp):
    srd(k, 52, PW1, S_ * F_ * 2)
    k("s_lshr_b32 s60, s10, 1\ns_mul_i32 s60, s60, 9\ns_and_b32 s61, s10, 1\ns_lshl_b32 s61, s61, 2\ns_add_u32 s60, s60, s61\ns_lshl_b32 s60, s60, 8")
    k(f"v_lshrrev_b32 v{tmp}, 4, v0\nv_mul_u32_u24 v{tmp}, 9216, v{tmp}\nv_and_b32 v{tmp+1}, 15, v0\nv_lshl_add_u32 v{tmp}, v{tmp+1}, 7, v{tmp}")
    k(f"v_cmp_lt_u32 vcc, 9, v{tmp+1}\nv_mov_b32 v{tmp+1}, 0x7ff00000\nv_cndmask_b32 v{tmp}, v{tmp}, v{tmp+1}, vcc")

def w1_rows(k, sidx, rows, r0, _):
    w1_addr(k, 10)
    k(f"s_mul_i32 s61, s{sidx}, {rows*9216}\ns_add_u32 s60, s60, s61\ns_add_u32 s60, s60, {r0*9216}")
    for i in range((rows + 31) // 32):
        k(f"buffer_load_dword v{DUMMY}, v10, s[52:55], s60 offen\ns_add_u32 s60, s60, {32*9216}")

def w1slow(k):
    srd(k, 52, PW1, S_ * F_ * 2)
    k("s_lshr_b32 s60, s10, 1\ns_mul_i32 s60, s60, 9\ns_and_b32 s61, s10, 1\ns_lshl_b32 s61, s61, 2\ns_add_u32 s60, s60, s61")
    k("s_sub_u32 s61, 1, s60\ns_and_b32 s61, s61, 3\ns_add_u32 s60, s60, s61\ns_lshl_b32 s60, s60, 8\ns_add_u32 s60, s60, 128")
    k(f"s_sub_u32 s62, s11, 27\nv_mul_u32_u24 v10, 5, v0\nv_add_u32 v10, s62, v10\nv_mul_u32_u24 v10, 9216, v10")
    k(f"buffer_load_dword v{DUMMY}, v10, s[52:55], s60 offen\ns_add_u32 s60, s60, 1024\ns_cmp_eq_u32 s61, 0\ns_cselect_b32 s54, s54, 0")
    k(f"buffer_load_dword v{DUMMY}, v10, s[52:55], s60 offen")

def lcnt_init(k):
    k(f"v_lshlrev_b32 v{T0}, 2, v{VL}\nv_add_u32 v{T0}, {LCNT}, v{T0}\nv_mov_b32 v{T1}, 0\ns_mov_b64 exec, 0xffff\nds_write_b32 v{T0}, v{T1}\ns_mov_b64 exec, -1")

def ids16(k):
    k(f"v_lshrrev_b32 v{VG}, 4, v{VL}\nv_and_b32 v{VI}, 15, v{VL}")

def p1(k, NXT):
    R = 4; STG = 34816; N = 9; XO = 18432
    PROD = k.lab("P1PROD"); PF = k.lab("P1PF"); PX_ = k.lab("P1PX")
    k("s_and_b32 s24, s10, 3\ns_lshl_b32 s24, s24, 2\ns_and_b32 s25, s11, 3\ns_add_u32 s24, s24, s25")
    k("s_lshr_b32 s25, s10, 2\ns_mul_i32 s25, s25, 6\ns_lshr_b32 s29, s11, 2\ns_add_u32 s25, s25, s29")
    ids16(k)
    def touch():
        k(f"v_mul_u32_u24 v{T0}, 4682, v{VL}\nv_lshrrev_b32 v{T0}, 16, v{T0}")
        k(f"v_mul_u32_u24 v{T1}, 14, v{T0}\nv_sub_u32 v{T1}, v{VL}, v{T1}")
        k(f"v_lshrrev_b32 v{T2}, 1, v{T0}\nv_mul_u32_u24 v{T2}, 62, v{T2}\nv_add_u32 v{T0}, v{T0}, v{T2}")
        k(f"v_mul_u32_u24 v{T0}, 3456, v{T0}\nv_lshl_add_u32 v{T0}, v{T1}, 7, v{T0}\nv_lshlrev_b32 v{T1}, 7, v{VL}")
        k(f"s_add_u32 s30, s28, 1\ns_mul_i32 s30, s30, {128*3456}\ns_mul_i32 s31, s11, {2*3456}\ns_add_u32 s30, s30, s31\ns_lshr_b32 s31, s10, 2\ns_mul_i32 s31, s31, {13*128}\ns_add_u32 s30, s30, s31")
        k(f"s_and_b32 s31, s10, 3\ns_mul_i32 s31, s31, {512*1152}\ns_mul_i32 s29, s11, {16*1152}\ns_add_u32 s31, s31, s29\ns_mul_i32 s29, s28, {36*128}\ns_add_u32 s31, s31, s29")
        k("s_waitcnt lgkmcnt(0)")
        srd(k, 12, PX, S_ * D_ * 2)
        srd(k, 16, PWQKV, D_ * 1728 * 2)
        if 'notouch' in XM: return
        k("s_mov_b32 exec_hi, 0xf")
        k(f"buffer_load_dword v{DUMMY}, v{T1}, s[12:15], s31 offen")
        k("s_mov_b32 exec_hi, 0xffffff")
        k(f"buffer_load_dword v{DUMMY}, v{T0}, s[16:19], s30 offen")
        k("s_mov_b32 exec_hi, -1")
    CONS = k.lab("P1CONS")
    k(f"s_cmp_ge_u32 s11, 24\ns_cbranch_scc1 {PF}")
    k(f"s_cmp_lt_u32 s28, 4\ns_cbranch_scc1 {CONS}")
    k(f"{PROD}:")
    ra, rb = [int(t) for t in os.environ.get("ROT1", "9,6").split(",")]
    ROT = (ra or rb) and 'hyb' not in XM
    if ROT:
        k(f"s_and_b32 s38, s11, 3\ns_mul_i32 s38, s38, {ra}\ns_lshr_b32 s39, s11, 2\ns_mul_i32 s39, s39, {rb}\ns_lshr_b32 s38, s38, 2\ns_lshr_b32 s39, s39, 2\ns_add_u32 s38, s38, s39")
        k("s_sub_u32 s39, s38, 9\ns_cmp_ge_u32 s38, 9\ns_cselect_b32 s38, s39, s38")
    VD = 10
    HYB = 'hyb' in XM
    if HYB:
        k("s_and_b32 s38, s11, 3\ns_lshl_b32 s38, s38, 1\ns_lshr_b32 s39, s11, 2\ns_mul_i32 s39, s39, 43\ns_lshr_b32 s39, s39, 5\ns_add_u32 s38, s38, s39\ns_and_b32 s38, s38, 7")
        ROT = False
    k(f"s_and_b32 s29, s28, 1\ns_cmp_ge_u32 s28, 6\ns_cbranch_scc1 {PX_}")
    def adv(reg, step, st=None):
        if HYB and st == 0: return [f"s_add_u32 s38, s38, 1\ns_mul_i32 s39, s38, {step}\ns_add_u32 s{reg}, s{reg}, s39"]
        if HYB: return [f"s_add_u32 s{reg}, s{reg}, {step}\ns_sub_u32 s39, s{reg}, {8*step}\ns_add_u32 s38, s38, 1\ns_cmp_eq_u32 s38, 9\ns_cselect_b32 s{reg}, s39, s{reg}"]
        if not ROT: return [f"s_add_u32 s{reg}, s{reg}, {step}"]
        return [f"s_add_u32 s{reg}, s{reg}, {step}\ns_sub_u32 s39, s{reg}, {9*step}\ns_add_u32 s38, s38, 1\ns_cmp_eq_u32 s38, 9\ns_cselect_b32 s{reg}, s39, s{reg}"]
    k(f"s_mov_b32 s30, {3456-288}")
    for q in range(9):
        k(f"v_add_u32 v{T0}, {q*64}, v{VL}\nv_mul_u32_u24 v{T1}, 3641, v{T0}\nv_lshrrev_b32 v{T1}, 16, v{T1}")
        k(f"v_lshlrev_b32 v{T0}, 4, v{T0}\nv_mad_u32_u24 v{VD+q}, v{T1}, s30, v{T0}")
    k(f"s_mul_i32 s33, s25, 288\ns_mul_i32 s30, s29, {32*3456}\ns_add_u32 s33, s33, s30\ns_mul_i32 s34, s29, 9216" + (f"\ns_mul_i32 s30, s38, {64*3456}\ns_add_u32 s33, s33, s30" if ROT else ""))
    k("s_waitcnt lgkmcnt(0)")
    srd(k, 16, PWQKV, D_ * 1728 * 2)
    k("STAMP 1")
    def tail(kk):
        k("v_subrev_u32 v40, 256, v0")
        pf(k, "PF1T", 2, 192, 256, 42, vt=40)
    producer_loop(k, N, R, 9, lambda st, slot: [dma(34, slot * STG + q * 1024, VD + q, 16, 33, ' nt' if st < int(os.environ.get('NT1', 0)) else '') for q in range(9)] + adv(33, 64 * 3456, st), NXT[1], final_barrier=False, tail=tail, first=int(os.environ.get('FIRST1', 2)))
    k(f"{PX_}:")
    for q in range(2):
        k(f"v_lshrrev_b32 v{T0}, 3, v{VL}\nv_add_u32 v{T0}, {8*q}, v{T0}")
        k(f"v_bfe_u32 v{T1}, v{T0}, 1, 3\nv_and_b32 v{T2}, 7, v{VL}\nv_xor_b32 v{T1}, v{T1}, v{T2}\nv_lshlrev_b32 v{T1}, 4, v{T1}")
        k(f"v_mul_u32_u24 v{T0}, 1152, v{T0}\nv_add_u32 v{VD+q}, v{T0}, v{T1}")
    for q in range(2, 8): k(f"v_add_u32 v{VD+q}, {16*1152}, v{VD+q-2}")
    k("s_lshl_b32 s32, s24, 7\ns_lshl_b32 s30, s29, 6\ns_add_u32 s32, s32, s30\ns_mul_i32 s32, s32, 1152")
    k(f"s_lshl_b32 s35, s29, 13\ns_add_u32 s35, s35, {XO}" + ("\ns_lshl_b32 s30, s38, 7\ns_add_u32 s32, s32, s30" if ROT else ""))
    k("s_waitcnt lgkmcnt(0)")
    srd(k, 12, PX, S_ * D_ * 2)
    producer_loop(k, N, R, 8, lambda st, slot: [dma(35, slot * STG + q * 1024, VD + q, 12, 32, ' nt' if st < int(os.environ.get('NT1', 0)) else '') for q in range(8)] + adv(32, 128, st), NXT[1], final_barrier=False, tail=tail, first=int(os.environ.get('FIRST1', 2)))
    k(f"{CONS}:")
    lcnt_init(k)
    k("s_lshr_b32 s26, s25, 2\ns_and_b32 s27, s25, 3")
    VTR, VXR, VC, ZD, XF, WF = 10, 12, 16, 18, 20, 36
    ACC = WF + 72
    CSR = ACC + 72; STR = CSR + 36
    assert STR + 16 <= DUMMY
    k(f"v_bfe_u32 v{T0}, v{VL}, 2, 2\nv_lshl_add_u32 v{T0}, v{VG}, 2, v{T0}\nv_mul_u32_u24 v{T0}, 288, v{T0}")
    k(f"v_and_b32 v{T1}, 3, v{VL}\nv_lshl_add_u32 v{VTR}, v{T1}, 3, v{T0}\nv_mul_u32_u24 v{T1}, 72, v{T1}\nv_add3_u32 v{VTR+1}, v{T0}, v{T1}, 32")
    k(f"v_lshrrev_b32 v{T0}, 1, v{VI}\nv_lshrrev_b32 v{T1}, 1, v{VG}\nv_xor_b32 v{T0}, v{T0}, v{T1}\nv_lshlrev_b32 v{T0}, 4, v{T0}\nv_lshl_add_u32 v{T0}, v{VI}, 7, v{T0}")
    k(f"v_and_b32 v{T1}, 1, v{VG}\nv_lshl_add_u32 v{T0}, v{T1}, 3, v{T0}")
    k(f"s_lshl_b32 s30, s28, 12\ns_add_u32 s30, s30, {XO}\nv_add_u32 v{VXR}, s30, v{T0}")
    for q in range(1, 4): k(f"v_xor_b32 v{VXR+q}, {32*q}, v{VXR}")
    for r in range(72): k(f"v_mov_b32 v{ACC+r}, 0")
    k(f"v_mov_b32 v{VC}, 0")
    touch()
    srd(k, 20, PWS, WS_SIZE)
    srd(k, 56, PDBG, 256)
    k(f"s_mul_i32 s50, s25, {9*PS}\ns_lshl_b32 s30, s24, 2\ns_add_u32 s30, s30, s28\ns_lshl_b32 s49, s30, 7\ns_lshl_b32 s30, s30, 10\ns_add_u32 s50, s50, s30")
    k(f"s_add_u32 s49, s49, {WS_XS}\ns_mul_i32 s51, s25, 576\ns_add_u32 s51, s51, {WS_CS}")
    k(f"s_lshl_b32 s48, s27, 4\ns_add_u32 s48, s48, s24\ns_lshl_b32 s48, s48, 2\ns_add_u32 s48, s48, s26\ns_lshl_b32 s48, s48, 7\ns_add_u32 s48, s48, {F1}")
    first = [True]
    coff = [72 * (T >> 1) + 40 * (T & 1) for T in range(8)]
    def body(vor):
        first[0] = True
        def side():
            OK = k.lab("ZOK")
            if not os.environ.get("STG_STAMP"): k("STAMP 13")
            k(f"s_waitcnt vmcnt(0)\nv_cmp_gt_u32 vcc, 64, v{ZD}\ns_mov_b32 s31, 0\ns_nop 3\ns_cbranch_vccz {OK}")
            poll(k, VC, ZD, 1, 56, 31, want=64)
            k(f"{OK}:")
            if not vor:
                k(f"v_lshlrev_b32 v{VC}, 4, v{VG}\nv_mul_u32_u24 v{VC+1}, 144, v{VG}\nv_lshlrev_b32 v{ZD}, 2, v{VI}")
                for tt in range(2):
                    k(f"buffer_load_dword v{STR+2*tt}, v{ZD}, s[20:23], s49 offen offset:{tt*64}{SC}")
                k("s_add_u32 s49, s49, 8192")
                for tt in range(2):
                    k(f"buffer_load_dword v{STR+2*tt+1}, v{ZD}, s[20:23], s49 offen offset:{tt*64}{SC}")
                for T in range(9):
                    k(f"buffer_load_dwordx4 {v(CSR+4*T,4)}, v{VC+(T==8)}, s[20:23], s51 offen offset:{2*coff[T] if T < 8 else 64}{SC}")
            else:
                k(f"v_lshlrev_b32 v{VC}, 2, v{VI}\nv_lshrrev_b32 v{VC+1}, 2, v{VI}\nv_mul_u32_u24 v{VC+1}, 128, v{VC+1}\nv_add_u32 v{VC+1}, v{VC+1}, v{VC}\nv_lshlrev_b32 v{ZD}, 4, v{VG}")
                for hf in range(2):
                    for tt in range(2):
                        k(f"buffer_load_dwordx4 {v(STR+tt*8+hf*4,4)}, v{ZD}, s[20:23], s49 offen offset:{tt*64}{SC}")
                    if hf == 0: k("s_add_u32 s49, s49, 8192")
                for T in range(9):
                    k(f"buffer_load_dword v{CSR+T}, v{VC+(T==8)}, s[20:23], s51 offen offset:{2*coff[T] if T < 8 else 64}{SC}")
        def reads(st, slot, ks, rs):
            out = []
            if ks == 0 and not first[0]:
                d = STG if slot else -(R - 1) * STG
                regs = list(range(VXR, VXR + 4)) + [VTR, VTR + 1]
                out += [f"v_add_u32 v{r}, {d}, v{r}" if d > 0 else f"v_subrev_u32 v{r}, {-d}, v{r}" for r in regs]
            first[0] = False
            for tt in range(2):
                for hf in range(2):
                    out.append(f"ds_read_b64 {v(XF+rs*8+tt*4+hf*2,2)}, v{VXR+2*ks+hf} offset:{tt*2048}")
            for j in range(9):
                for hf in range(2):
                    out.append(f"ds_read_b64_tr_b16 {v(WF+rs*36+j*4+hf*2,2)}, v{VTR+(j==8)} offset:{ks*9216+hf*4608+(coff[j] if j < 8 else 0)}")
            if slot == 3 and ks == 1 and not (os.environ.get('STG_STAMP') and st == 3):
                L = k.lab("ZS")
                out.append(f"s_cmp_lg_u32 s36, 1\ns_cbranch_scc1 {L}\nbuffer_load_dword v{ZD}, v{VC}, s[56:59], 0 offen sc0 sc1\n{L}:")
            return out
        def mf(st, ks, rs):
            g = []
            for j in range(9):
                wf = v(WF + rs * 36 + j * 4, 4)
                for tt in range(2):
                    xf = v(XF + rs * 8 + tt * 4, 4)
                    ac = v(ACC + (j * 2 + tt) * 4, 4)
                    g.append(f"v_mfma_f32_16x16x32_bf16 {ac}, {xf}, {wf}, {ac}" if vor else f"v_mfma_f32_16x16x32_bf16 {ac}, {wf}, {xf}, {ac}")
            return g
        consumer_loop(k, N, R, reads, mf, per=[2] * 8 + [1], final_barrier=False, before_last=side, stamp0=12)
        k("STAMP 1")
        qs = 18 ** -0.5 * math.log2(math.e)
        OUT = XF; VM0 = VTR
        k(f"v_lshlrev_b32 v{VM0}, 4, v{VL}\ns_waitcnt vmcnt(0)")
        if not vor:
            k(f"s_cmp_eq_u32 s26, 0\ns_cselect_b32 s31, {f32(qs)}, 1.0")
            for tt in range(2): k(f"v_mul_f32 v{STR+2*tt+1}, s31, v{STR+2*tt+1}")
        sw = "32" if vor else "16"
        def fin(j):
            po = OUT + (j % 4) * 4
            k(f"v_permlane{sw}_swap_b32 v{po}, v{po+2}\nv_permlane{sw}_swap_b32 v{po+1}, v{po+3}")
            k(f"buffer_store_dwordx4 {v(po,4)}, v{VM0}, s[20:23], s50 offen{WT}\ns_add_u32 s50, s50, {PS}")
        for j in range(9):
            o = OUT + (j % 4) * 4
            for tt in range(2):
                ac = ACC + (j * 2 + tt) * 4
                for h2 in range(2):
                    if not vor:
                        k(f"v_pk_fma_f32 {v(ac+2*h2,2)}, {v(STR+2*tt,2)}, {v(CSR+4*j+2*h2,2)}, {v(ac+2*h2,2)} op_sel_hi:[0,1,1] neg_lo:[1,0,0] neg_hi:[1,0,0]")
                    else:
                        c = CSR + (j & ~1); sel = j & 1
                        k(f"v_pk_fma_f32 {v(ac+2*h2,2)}, {v(STR+tt*8+2*h2,2)}, {v(c,2)}, {v(ac+2*h2,2)} op_sel:[0,{sel},0] op_sel_hi:[1,{sel},1] neg_lo:[1,0,0] neg_hi:[1,0,0]")
            for tt in range(2):
                ac = ACC + (j * 2 + tt) * 4
                for h2 in range(2):
                    if not vor: k(f"v_pk_mul_f32 {v(ac+2*h2,2)}, {v(ac+2*h2,2)}, {v(STR+2*tt,2)} op_sel:[0,1] op_sel_hi:[1,1]")
                    else: k(f"v_pk_mul_f32 {v(ac+2*h2,2)}, {v(ac+2*h2,2)}, {v(STR+tt*8+4+2*h2,2)}")
            for tt in range(2):
                ac = ACC + (j * 2 + tt) * 4
                k(f"v_cvt_pk_bf16_f32 v{o+2*tt}, v{ac}, v{ac+1}\nv_cvt_pk_bf16_f32 v{o+2*tt+1}, v{ac+2}, v{ac+3}")
            if j > 0: fin(j - 1)
        fin(8)
        k(f"v_mov_b32 v{T0}, 0\nv_mov_b32 v{T1}, 1\ns_waitcnt vmcnt(0)")
        last_wave_flag(k, T0, T1, T2, LCNT, 20, 48)
        k(f"s_branch {NXT[0]}")
    LV = k.lab("VOR")
    k(f"s_cmp_eq_u32 s26, 2\ns_cbranch_scc1 {LV}")
    body(False)
    k(f"{LV}:")
    body(True)
    k(f"{PF}:\ns_sub_u32 s29, s2, 192")
    lcnt_init(k)
    XA, SM, CA = 12, 48, 52
    CSW = k.lab("CSW"); NZ = k.lab("NZ"); NZ2 = k.lab("NZ"); DONE = k.lab("DN")
    k(f"v_lshrrev_b32 v{T1}, 3, v0\nv_and_b32 v{T2}, 7, v0\nv_lshlrev_b32 v{T2}, 4, v{T2}\ns_cmp_ge_u32 s29, 32\ns_cselect_b32 s30, 3456, 0\ns_cselect_b32 s31, 0, 1152\ns_add_u32 s30, s30, s31")
    k(f"v_mad_u32_u24 v{T0}, v{T1}, s30, v{T2}")
    k(f"s_lshl_b32 s32, s29, 13\ns_add_u32 s32, s32, {WS_ST}\nv_lshlrev_b32 v{T3}, 4, v0")
    for r in range(4): k(f"v_mov_b32 v{CA+8+r}, 0")
    k(f"v_mov_b32 v{SM}, 0\nv_mov_b32 v{SM+1}, 0\nv_mov_b32 v{SM+2}, 0x3f803f80\ns_mul_i32 s30, s29, {64*1152}")
    k(f"s_sub_u32 s33, s29, 32\ns_lshl_b32 s31, s33, 7\ns_cmp_ge_u32 s33, 27\ns_cselect_b32 s31, 0x7000000, s31")
    k("s_waitcnt lgkmcnt(0)")
    srd(k, 20, PWS, WS_SIZE)
    srd(k, 56, PDBG, 256)
    k(f"s_cmp_ge_u32 s29, 32\ns_cbranch_scc1 {CSW}")
    srd(k, 12, PX, S_ * D_ * 2)
    for q in range(9): k(f"buffer_load_dwordx4 {v(XA+4*q,4)}, v{T0}, s[12:15], s30 offen offset:{q*128}")
    k(f"buffer_store_dwordx4 {v(CA+8,4)}, v{T3}, s[20:23], s32 offen{WT}")
    for q in range(9):
        k(f"s_waitcnt vmcnt({9-q})")
        for r in range(4 * q, 4 * q + 4): k(f"v_dot2c_f32_bf16 v{SM}, v{XA+r}, v{SM+2}\nv_dot2c_f32_bf16 v{SM+1}, v{XA+r}, v{XA+r}")
    k("STAMP 1\ns_nop 2")
    for m in ("quad_perm:[1,0,3,2]", "quad_perm:[2,3,0,1]", "row_half_mirror"):
        for r in range(2): k(f"v_add_f32_dpp v{SM+r}, v{SM+r}, v{SM+r} {m} row_mask:0xf bank_mask:0xf")
    k(f"s_mov_b32 s30, {f32(1.0/576)}\nv_mul_f32 v{SM}, s30, v{SM}\nv_mul_f32 v{SM+1}, s30, v{SM+1}\nv_fma_f32 v{SM+1}, -v{SM}, v{SM}, v{SM+1}")
    def rbf(r): k(f"v_cvt_pk_bf16_f32 v{r}, v{r}, v{r}\nv_and_b32 v{r}, 0xffff0000, v{r}")
    k(f"v_max_f32 v{SM+1}, 0, v{SM+1}")
    rbf(SM); rbf(SM + 1)
    k(f"v_add_f32 v{SM+1}, {f32(1e-5)}, v{SM+1}")
    rbf(SM + 1)
    k(f"v_sqrt_f32 v{SM+1}, v{SM+1}")
    rbf(SM + 1)
    k(f"v_rcp_f32 v{SM+1}, v{SM+1}")
    k(f"s_lshl_b32 s30, s29, 8\ns_add_u32 s30, s30, {WS_XS}\ns_add_u32 s31, s30, 8192\nv_lshlrev_b32 v{T0}, 2, v{T1}\nv_and_b32 v{T3}, 7, v0")
    k(f"v_cmp_eq_u32 vcc, 0, v{T3}\ns_and_saveexec_b64 s[62:63], vcc")
    k(f"buffer_store_dword v{SM}, v{T0}, s[20:23], s30 offen{WT}\nbuffer_store_dword v{SM+1}, v{T0}, s[20:23], s31 offen{WT}\ns_mov_b64 exec, -1\ns_branch {DONE}\n{CSW}:")
    srd(k, 16, PWQKV, D_ * 1728 * 2)
    for q in range(9): k(f"buffer_load_dwordx4 {v(XA+4*q,4)}, v{T0}, s[16:19], s31 offen\ns_add_u32 s31, s31, {64*3456}")
    k(f"buffer_store_dwordx4 {v(CA+8,4)}, v{T3}, s[20:23], s32 offen{WT}")
    for q in range(9):
        k(f"s_waitcnt vmcnt({9-q})")
        for r in range(4):
            p = XA + 4 * q + r
            if q == 0: k(f"v_lshlrev_b32 v{CA+2*r}, 16, v{p}\nv_and_b32 v{CA+2*r+1}, 0xffff0000, v{p}")
            else: k(f"v_lshlrev_b32 v{SM}, 16, v{p}\nv_and_b32 v{SM+1}, 0xffff0000, v{p}\nv_pk_add_f32 {v(CA+2*r,2)}, {v(CA+2*r,2)}, {v(SM,2)}")
    k("STAMP 1")
    for r in range(8): k(f"v_add_f32_dpp v{CA+r}, v{CA+r}, v{CA+r} row_ror:8 row_mask:0xf bank_mask:0xf")
    for sw in ("16", "32"):
        for r in range(8): k(f"v_mov_b32 v{XA+r}, v{CA+r}")
        for r in range(8): k(f"v_permlane{sw}_swap_b32 v{CA+r}, v{XA+r}")
        for r in range(8): k(f"v_add_f32 v{CA+r}, v{CA+r}, v{XA+r}")
    k(f"s_lshl_b32 s30, s28, 8\nv_lshlrev_b32 v{T0}, 5, v{VL}\nv_add_u32 v{T0}, s30, v{T0}\ns_mov_b64 exec, 0xff")
    k(f"ds_write_b128 v{T0}, {v(CA,4)}\nds_write_b128 v{T0}, {v(CA+4,4)} offset:16\ns_mov_b64 exec, -1")
    k("s_waitcnt lgkmcnt(0)\ns_barrier")
    k(f"s_cmp_lg_u32 s28, 0\ns_cbranch_scc1 {DONE}\nv_lshlrev_b32 v{T0}, 2, v{VL}")
    for q in range(8): k(f"ds_read_b32 v{XA+q}, v{T0} offset:{q*256}")
    k(f"s_lshl_b32 s30, s33, 8\ns_add_u32 s30, s30, {WS_CS}\ns_waitcnt lgkmcnt(0)")
    for q in range(1, 8): k(f"v_add_f32 v{XA}, v{XA}, v{XA+q}")
    k(f"buffer_store_dword v{XA}, v{T0}, s[20:23], s30 offen{WT}\n{DONE}:")
    k(f"v_mov_b32 v{T0}, 0\nv_mov_b32 v{T1}, 1\ns_waitcnt vmcnt(0)\nSTAMP 5\ns_barrier\ns_cmp_lg_u32 s28, 0\ns_cbranch_scc1 {NZ2}")
    k(f"s_mov_b64 exec, 1\nbuffer_atomic_add v{T1}, v{T0}, s[56:59], 0 offen sc1\ns_mov_b64 exec, -1\n{NZ2}:\ns_barrier")
    TL = int(os.environ.get("TLB", 0))
    if TL:
        k(f"s_sub_u32 s30, s11, 24\ns_lshl_b32 s30, s30, 9\nv_add_u32 v66, s30, v0\nv_lshlrev_b32 v66, {TL}, v66")
        k(f"buffer_load_dword v{DUMMY}, v66, s[20:23], 0 offen")
        for p, n in ((PW1, S_ * F_ * 2), (PW2, S_ * F_ * 2), (POUT, S_ * D_ * 2), (PWO, D_ * D_ * 2)):
            srd(k, 52, p, n)
            k(f"buffer_load_dword v{DUMMY}, v66, s[52:55], 0 offen")
    pf(k, "PF1B", 29, 64, 512, 66)
    k(f"s_branch {NXT[1]}")

def p2(k, ENT, NXT):
    LK8 = 24576; LV = 30720; REC = 1168; SEC = 36 * PS
    VH, VQ = 3, 4
    V16, VV, V8A = 5, 6, 7
    QM, Q8 = 8, 12
    KF, K8F, VF, O = 16, 28, 40, 56
    MX, MX2, TA, TB = 72, 73, 74, 75
    AK, AK8, AV = 76, 77, 78
    VV8, VK8 = 79, 2
    S0 = 80
    k(f"{ENT[1]}:")
    srd(k, 20, PWS, WS_SIZE)
    k(f"s_waitcnt vmcnt(0)\ns_cmp_lg_u32 s28, 7\ns_cbranch_scc1 {ENT[0]}")
    srd(k, 56, PDBG, 256)
    k(f"v_mov_b32 v{TA}, 0\ns_mov_b32 s31, 0")
    poll(k, TA, TB, 1, 56, 31, want=64)
    k(f"{ENT[0]}:")
    k("STAMP 2")
    k("s_lshl_b32 s24, s10, 1\ns_and_b32 s25, s11, 1\ns_add_u32 s24, s24, s25\ns_lshr_b32 s25, s11, 1")
    k(f"v_lshrrev_b32 v{VH}, 5, v{VL}\nv_and_b32 v{VQ}, 31, v{VL}")
    k("s_lshr_b32 s26, s28, 2\ns_and_b32 s27, s28, 3")
    k(f"v_lshlrev_b32 v{V16}, 4, v{VL}")
    k(f"v_mul_u32_u24 v{VV}, {PS}, v{VH}\nv_lshl_add_u32 v{VV}, v{VQ}, 4, v{VV}")
    k(f"s_lshr_b32 s47, s24, 2\ns_and_b32 s31, s24, 3\ns_mul_i32 s34, s47, 9\ns_lshl_b32 s32, s31, 1\ns_add_u32 s44, s32, s34\ns_add_u32 s32, s44, s26\ns_mul_i32 s32, s32, {PS}")
    k(f"s_add_u32 s34, s34, 8\ns_mul_i32 s34, s34, {PS}\ns_mul_i32 s44, s44, {PS}\ns_add_u32 s44, s44, {2*SEC}")
    k("s_lshr_b32 s30, s31, 1\ns_lshl_b32 s30, s30, 9\ns_add_u32 s41, s34, s30")
    k(f"s_and_b32 s30, s31, 1\ns_lshl_b32 s30, s30, 3\nv_lshlrev_b32 v{V8A}, 4, v{VQ}\nv_add_u32 v{V8A}, s30, v{V8A}")
    k(f"s_lshl_b32 s45, s31, 6\ns_add_u32 s45, s45, s34\ns_add_u32 s45, s45, {2*SEC}")
    k(f"v_lshrrev_b32 v{TA}, 2, v{VL}\nv_lshlrev_b32 v{TA}, 8, v{TA}\nv_and_b32 v{TB}, 3, v{VL}\nv_lshl_add_u32 v{VV8}, v{TB}, 4, v{TA}")
    k(f"v_lshlrev_b32 v{VK8}, 4, v{VQ}\nv_lshl_add_u32 v{VK8}, v{VH}, 10, v{VK8}")
    k("s_lshl_b32 s33, s25, 2\ns_mul_i32 s30, s27, 3\ns_add_i32 s35, s33, s30\ns_sub_i32 s35, s35, 8")
    k("s_mul_i32 s31, s26, 12\ns_add_u32 s31, s31, s30\ns_lshl_b32 s46, s31, 10")
    k(f"s_lshl_b32 s30, s28, 1\ns_add_i32 s30, s30, s33\ns_sub_i32 s30, s30, 8\ns_max_i32 s30, s30, 0\ns_lshl_b32 s30, s30, 10\ns_add_u32 s33, s33, s27")
    k(f"s_lshl_b32 s39, s33, 10\ns_add_u32 s40, s39, s41\ns_add_u32 s39, s39, s32\ns_add_u32 s41, s41, s30\ns_add_u32 s41, s41, {SEC}\ns_add_u32 s38, s32, {SEC}")
    k(f"s_lshl_b32 s42, s28, 10\ns_add_u32 s42, s42, {LK8}")
    k(f"s_mul_i32 s43, s28, 3\ns_lshl_b32 s36, s25, 3\ns_add_i32 s36, s36, s43\ns_sub_i32 s36, s36, 16\ns_mul_i32 s43, s43, {REC}\ns_add_u32 s43, s43, {LV}")
    NEG = f32(-1e30)
    k(f"v_lshlrev_b32 v{TA}, 2, v{VH}\nv_sub_u32 v{TA}, v{VQ}, v{TA}\nv_mov_b32 v{TB}, {NEG}")
    MRG = 'nomrg' not in XM; EM = 236
    if MRG: k(f"v_mov_b32 v{MX}, 0xffff\nv_mov_b32 v{MX2}, 0xffff0000")
    for b in range(4):
        for r in range(4): k(f"v_cmp_gt_i32 s[{86+2*r}:{87+2*r}], {8*b+r}, v{TA}")
        for r in range(4): k(f"v_cndmask_b32 v{S0+4*b+r}, v{TB}, 0, s[{86+2*r}:{87+2*r}]")
        for r in range(4): k(f"v_cndmask_b32 v{S0+128+4*b+r}, 0, v{TB}, s[{86+2*r}:{87+2*r}]")
        if MRG:
            for h in range(2):
                k(f"v_cndmask_b32 v{EM+2*b+h}, 0, v{MX}, s[{86+4*h}:{87+4*h}]\nv_cndmask_b32 v{AK}, 0, v{MX2}, s[{88+4*h}:{89+4*h}]\nv_or_b32 v{EM+2*b+h}, v{EM+2*b+h}, v{AK}")
    k(f"s_mul_i32 s30, s26, 12\ns_add_u32 s30, s30, s27\ns_lshl_b32 s30, s30, 10\nv_add_u32 v{AK}, s30, v{V16}")
    k(f"s_lshl_b32 s30, s27, 9\ns_add_u32 s30, s30, {LK8}\nv_add_u32 v{AK8}, s30, v{V8A}")
    for q in range(3):
        k(f"v_mov_b32 v{K8F+q*4+2}, 0\nv_mov_b32 v{K8F+q*4+3}, 0")
    k(f"v_mov_b32 v{Q8+2}, 0\nv_mov_b32 v{Q8+3}, 0")
    k(f"s_lshl_b32 s30, s26, 9\nv_lshlrev_b32 v{AV}, 8, v{VH}\nv_lshl_add_u32 v{AV}, v{VQ}, 4, v{AV}\nv_add_u32 v{AV}, s30, v{AV}")
    k(f"s_lshl_b32 s30, s26, 5\ns_add_u32 s30, s30, {1024-256}\nv_lshlrev_b32 v{TA}, 6, v{VH}\nv_lshl_add_u32 v{TA}, v{VQ}, 4, v{TA}\nv_add_u32 v{TA}, s30, v{TA}")
    k(f"v_cmp_lt_u32 vcc, 15, v{VQ}\nv_cmp_lt_u32 s[86:87], 17, v{VQ}\nv_mov_b32 v{MX2}, 1152\nv_cndmask_b32 v{AV}, v{AV}, v{TA}, vcc\nv_cndmask_b32 v{AV}, v{AV}, v{MX2}, s[86:87]")
    k(f"s_mul_i32 s30, s27, {2*REC}\ns_add_u32 s30, s30, {LV}\nv_add_u32 v{AV}, s30, v{AV}")
    NI = k.lab("NI")
    k("s_sub_i32 s30, 8, s33")
    for j in range(8):
        k(f"s_cmp_le_i32 s30, {j}\ns_cbranch_scc1 {NI}")
        for r in range(16): k(f"v_mov_b32 v{S0+j*16+r}, v{TB}")
    k(f"{NI}:")
    for q in range(3):
        k(f"s_add_i32 s30, s35, {q}\ns_max_i32 s30, s30, 0\ns_lshl_b32 s30, s30, 10\ns_add_u32 s{86+q}, s30, s38")
        k(f"s_add_i32 s30, s36, {q}\ns_max_i32 s30, s30, 0\ns_lshl_b32 s30, s30, 9\ns_add_u32 s{89+q}, s30, s44\ns_add_u32 s{92+q}, s30, s45")
    SO = k.lab("SONE")
    k(f"s_cmp_lg_u32 s28, 7\ns_cbranch_scc1 {SO}")
    if 'nogate' not in XM:
        NG = k.lab("NG")
        k(f"s_cmp_ge_u32 s2, 192\ns_cbranch_scc1 {NG}")
        wait_local(k, TA, LCNT)
        k(f"{NG}:")
    k(f"s_lshl_b32 s30, s47, 13\ns_lshl_b32 s31, s25, 9\ns_add_u32 s30, s30, s31\ns_add_u32 s30, s30, {F1-1024}")
    k(f"s_mov_b64 exec, -1\nv_lshlrev_b32 v{TA}, 7, v{VL}\ns_movk_i32 s31, 0x760\ns_cmp_eq_u32 s25, 0\ns_cselect_b32 s31, 0x700, s31\ns_cmp_ge_u32 s25, 2\ns_cselect_b32 exec_lo, 0x766, s31\ns_mov_b32 exec_hi, 0")
    poll(k, TA, MX, 1, 20, 30)
    k(f"s_mov_b64 exec, -1\n{SO}:\ns_barrier")
    k("STAMP 3")
    SK = k.lab("SK8")
    k(f"s_mov_b32 m0, s42\ns_cmp_ge_u32 s28, 6\ns_cbranch_scc1 {SK}")
    k(f"buffer_load_dwordx4 v{VK8}, s[20:23], s41 offen{SC} lds\n{SK}:")
    for q in range(3): k(dma(46, q * 1024, V16, 20, 86 + q, SC))
    k(f"buffer_load_dwordx4 {v(QM,4)}, v{V16}, s[20:23], s39 offen{SC}")
    k(f"buffer_load_dwordx2 {v(Q8,2)}, v{V8A}, s[20:23], s40 offen{SC}")
    for q in range(3):
        k(dma(43, q * REC, VV, 20, 89 + q, SC))
        k(f"s_add_u32 m0, s43, {q*REC+1024}\ns_mov_b64 exec, 0xff\nbuffer_load_dwordx4 v{VV8}, s[20:23], s{92+q} offen{SC} lds\ns_mov_b64 exec, -1")
    SO = k.lab("SONE")
    k(f"s_cmp_lg_u32 s28, 7\ns_cbranch_scc1 {SO}")
    for r in range(4): k(f"v_mov_b32 v{KF+r}, 0x3f803f80")
    k(f"v_mul_u32_u24 v{TA}, {REC}, v{VL}\ns_mov_b64 exec, 0xffffff")
    k(f"ds_write_b128 v{TA}, {v(KF,4)} offset:{LV+1152}")
    k(f"s_mov_b64 exec, -1\n{SO}:")
    srd(k, 48, PWO, D_ * D_ * 2)
    srd(k, 12, PX, S_ * D_ * 2)
    k("s_lshl_b32 s30, s10, 2\ns_and_b32 s31, s11, 3\ns_add_u32 s30, s30, s31\ns_lshl_b32 s30, s30, 2\ns_and_b32 s31, s28, 3\ns_add_u32 s30, s30, s31\ns_mul_i32 s30, s30, 18432")
    k(f"s_mul_i32 s44, s31, 3072\ns_add_u32 s44, s44, {LX}\ns_lshr_b32 s31, s11, 2\ns_mul_i32 s31, s31, 192\ns_add_u32 s43, s30, s31\ns_movk_i32 s30, 960")
    for q in range(3):
        k(f"v_add_u32 v{224+q}, {q*64}, v{VL}\nv_mul_u32_u24 v227, 5462, v{224+q}\nv_lshrrev_b32 v227, 16, v227\nv_lshlrev_b32 v{224+q}, 4, v{224+q}\nv_mad_u32_u24 v{224+q}, v227, s30, v{224+q}")
    k(f"v_lshlrev_b32 v227, 7, v{VL}\ns_mul_i32 s42, s11, {162*128}\ns_mul_i32 s30, s28, {21*128}\ns_add_u32 s42, s42, s30")
    k(f"v_mov_b32 v{MX}, v{TB}\ns_sub_i32 s35, 8, s33")
    k("s_cmp_eq_u32 s26, 0\ns_cselect_b32 s38, -1, 0\ns_cselect_b32 s40, 0, -1\ns_mov_b32 s39, 0\ns_mov_b32 s41, 0")
    k("s_waitcnt vmcnt(6) lgkmcnt(0)")
    k(f"v_cndmask_b32 v{Q8}, 0, v{Q8}, s[38:39]\nv_cndmask_b32 v{Q8+1}, 0, v{Q8+1}, s[40:41]")
    k("s_barrier")
    def kread(j):
        return [f"ds_read_b128 {v(KF+(j%3)*4,4)}, v{AK} offset:{j*1024}", f"ds_read_b64 {v(K8F+(j%3)*4,2)}, v{AK8} offset:{j*512}"]
    def mx(j):
        return [f"v_max3_f32 v{MX}, v{MX}, v{S0+j*16+2*r}, v{S0+j*16+2*r+1}" for r in range(8)]
    if os.environ.get("P2S"): k("STAMP 12")
    for t in kread(0) + kread(1): k(t)
    XS = k.lab("XS")
    k(f"s_cmp_ge_u32 s2, 192\ns_cbranch_scc1 {XS}\ns_cmp_lt_u32 s28, 4\ns_cbranch_scc1 {XS}")
    for q in range(3): k(dma(44, q * 1024, 224 + q, 12, 43))
    k(f"{XS}:")
    n0 = len(k.L)
    k(f"s_mov_b64 exec, 0x1fffff\nbuffer_load_dword v{DUMMY}, v227, s[48:51], s42 offen\ns_mov_b64 exec, -1")
    pf(k, "PF2", 2, 256, 512, 228)
    npf = sum(1 for l in k.L[n0:] if l.startswith("buffer_load"))
    inv = []
    for j in range(9):
        if j + 2 < 9:
            for t in kread(j + 2): k(t)
        sj = v(S0 + j * 16, 16)
        if j < 8:
            lb = k.lab("BK")
            k(f"s_cmp_gt_i32 s35, {j}\ns_cbranch_scc1 {lb}")
        k(f"s_waitcnt lgkmcnt({min(2, 8-j)*2})")
        k(f"v_mfma_f32_32x32x16_bf16 {sj}, {v(KF+(j%3)*4,4)}, {v(QM,4)}, {sj if j in (0, 8) else 0}")
        k(f"v_mfma_f32_32x32x16_bf16 {sj}, {v(K8F+(j%3)*4,4)}, {v(Q8,4)}, {sj}")
        if j < 8: k(f"{lb}:")
        if j >= 2 and not (MRG and j == 2):
            for t in mx(j - 2): k(t)
    for t in mx(7): k(t)
    WA_, WB_ = k.lab("WA"), k.lab("WB")
    k(f"s_cmp_ge_u32 s2, 192\ns_cbranch_scc1 {WA_}\ns_cmp_lt_u32 s28, 4\ns_cbranch_scc1 {WA_}\ns_waitcnt vmcnt({npf+3})\ns_branch {WB_}\n{WA_}:\ns_waitcnt vmcnt({npf})\n{WB_}:\ns_barrier")
    def vread(t): return f"ds_read_b128 {v(VF+(t%4)*4,4)}, v{AV} offset:{t*REC}"
    if os.environ.get("P2S"): k("STAMP 13")
    k(vread(0)); k(vread(1))
    side = []
    if MRG:
        for r in range(16): k(f"v_max_f32 v{S0+r}, v{S0+r}, v{S0+128+r}")
    for t in mx(0 if MRG else 8): k(t)
    k(f"v_mov_b32 v{MX2}, v{MX}\nv_permlane32_swap_b32 v{MX}, v{MX2}\nv_max_f32 v{MX}, v{MX}, v{MX2}")
    def soft(j):
        b = S0 + j * 16
        if MRG and j == 8: return []
        out = [f"v_sub_f32 v{b+r}, v{b+r}, v{MX}" for r in range(16)]
        if 'pksub' in XM: out = [f"v_pk_add_f32 {v(b+2*r,2)}, {v(b+2*r,2)}, {v(MX,2)} op_sel_hi:[1,0] neg_lo:[0,1] neg_hi:[0,1]" for r in range(8)]
        out += [f"v_exp_f32 v{b+r}, v{b+r}" for r in range(16)]
        if 'trunc' in XM: out += [f"v_perm_b32 v{b+r}, v{b+2*r+1}, v{b+2*r}, s86" for r in range(8)]
        else: out += [f"v_cvt_pk_bf16_f32 v{b+r}, v{b+2*r}, v{b+2*r+1}" for r in range(8)]
        if MRG and j == 0:
            out += [f"v_bfi_b32 v{S0+128+r}, v{EM+r}, 0, v{b+r}" for r in range(8)] + [f"v_and_b32 v{b+r}, v{EM+r}, v{b+r}" for r in range(8)]
        return out
    k("s_mov_b32 s86, 0x07060302")
    def pv(j):
        b = S0 + j * 16
        return [f"v_mfma_f32_32x32x16_bf16 {v(O,16)}, {v(VF+((2*j+s_)%4)*4,4)}, {v(b+4*s_,4)}, {v(O,16) if (j or s_) else 0}" for s_ in range(2)]
    if os.environ.get("P2S"): k("STAMP 14")
    for t in soft(0): k(t)
    for j in range(9):
        nxt = soft(j + 1) if j < 8 else []
        if j < 8:
            k(vread(2 * j + 2)); k(vread(2 * j + 3))
        p = pv(j)
        for t in nxt[:4]: k(t)
        k(f"s_waitcnt lgkmcnt({2 if j < 8 else 0})")
        k(p[0])
        for t in nxt[4:20]: k(t)
        if j < len(side) and side[j]: k(side[j])
        k(p[1])
        for t in nxt[20:]: k(t)
    k(f"s_lshl_b32 s34, s24, 1\ns_add_u32 s34, s34, s26\ns_mul_i32 s30, s34, {PS}\ns_lshl_b32 s31, s33, 10\ns_add_u32 s30, s30, s31\ns_add_u32 s30, s30, {WS_OM}")
    k(f"s_lshl_b32 s31, s34, 13\ns_lshl_b32 s34, s33, 7\ns_add_u32 s31, s31, s34\ns_add_u32 s31, s31, {WS_O8}\nv_lshlrev_b32 v{AK8}, 2, v{VQ}")
    if os.environ.get("P2S"): k("STAMP 15")
    if 'prio' in XM: k("s_setprio 0")
    k(f"v_rcp_f32 v{MX}, v{O+10}")
    for r in range(10): k(f"v_mul_f32 v{O+r}, v{O+r}, v{MX}")
    for r in range(5): k(f"v_cvt_pk_bf16_f32 v{KF+r}, v{O+2*r}, v{O+2*r+1}")
    k(f"buffer_store_dwordx4 {v(KF,4)}, v{V16}, s[20:23], s30 offen{WT}")
    k("s_mov_b32 exec_hi, 0")
    k(f"buffer_store_dword v{KF+4}, v{AK8}, s[20:23], s31 offen{WT}")
    k("s_mov_b32 exec_hi, -1")
    k(f"s_lshl_b32 s30, s25, 11\ns_lshl_b32 s31, s24, 7\ns_add_u32 s30, s30, s31\ns_add_u32 s30, s30, {F2}\nv_mov_b32 v{TA}, 0\nv_mov_b32 v{TB}, 1")
    k(f"s_waitcnt vmcnt(0)\ns_barrier\ns_cmp_lg_u32 s28, 6\ns_cbranch_scc1 {NXT}")
    set_flag(k, TA, TB, 20, 30)
    k(f"s_branch {NXT}")
    for j, li, lb in inv:
        k(f"{li}:")
        for r in range(16): k(f"v_mov_b32 v{S0+j*16+r}, v{TB}")
        k(f"s_branch {lb}")

def p3(k, ENT, NXT):
    R = 7; WS_ = 12288; WB = 73728; N = 9
    LAB = WB + R * WS_
    PF = k.lab("P3PF"); PROD = k.lab("P3PROD"); PO = k.lab("P3PO")
    k(f"{ENT}:\nSTAMP 4")
    k(f"s_cmp_ge_u32 s2, 192\ns_cbranch_scc1 {PF}")
    k("s_lshl_b32 s24, s10, 2\ns_and_b32 s25, s11, 3\ns_add_u32 s24, s24, s25\ns_lshr_b32 s25, s11, 2")
    ids16(k)
    V16 = 9
    k(f"v_lshlrev_b32 v{V16}, 4, v{VL}")
    k(f"s_cmp_ge_u32 s28, 4\ns_cbranch_scc1 {PROD}")
    k("s_lshr_b32 s26, s28, 1\ns_and_b32 s27, s28, 1")
    VTR, VAO, VAE = 10, 16, 18
    IDN, XR, ACC, AF, BF = 24, 28, 52, 76, 100
    k(f"v_and_b32 v{T1}, 1, v{VG}")
    k(f"v_bfe_u32 v{T0}, v{VL}, 2, 2\nv_lshl_add_u32 v{T0}, v{VG}, 2, v{T0}\nv_mul_u32_u24 v{T0}, 192, v{T0}")
    k(f"v_and_b32 v{T2}, 3, v{VL}\nv_lshl_add_u32 v{T0}, v{T2}, 3, v{T0}\nv_add_u32 v{T0}, {WB}, v{T0}")
    k("s_mul_i32 s30, s27, 3")
    for dt in range(3):
        k(f"s_add_u32 s31, s30, {dt}\nv_xor_b32 v{T2}, s31, v{T1}\nv_lshl_add_u32 v{VTR+dt}, v{T2}, 5, v{T0}\nv_add_u32 v{VTR+3+dt}, {4*WS_}, v{VTR+dt}")
    k(f"s_lshl_b32 s30, s26, 11\nv_add_u32 v{VAO}, s30, v{V16}\nv_add_u32 v{VAO+1}, 32768, v{VAO}")
    k(f"v_lshlrev_b32 v{T0}, 8, v{VG}\nv_lshl_add_u32 v{T0}, v{VI}, 2, v{T0}\nv_add_u32 v{VAE}, s30, v{T0}\nv_add_u32 v{VAE}, 65536, v{VAE}")
    k(f"v_lshlrev_b32 v{T0}, 3, v{VG}\nv_sub_u32 v{T0}, v{VI}, v{T0}\nv_mov_b32 v{T1}, 0x3f80\nv_mov_b32 v{T2}, 0x3f800000")
    for j2 in range(4):
        k(f"v_cmp_eq_u32 vcc, {2*j2}, v{T0}\nv_cmp_eq_u32 s[30:31], {2*j2+1}, v{T0}\nv_cndmask_b32 v{IDN+j2}, 0, v{T1}, vcc")
        k(f"v_cndmask_b32 v{IDN+j2}, v{IDN+j2}, v{T2}, s[30:31]")
    def reads(n):
        st, ks, rs = n >> 1, n & 1, n % 3
        slot = st % R
        out = []
        for tt in range(2):
            if st < 8: out.append(f"ds_read_b128 {v(AF+rs*8+tt*4,4)}, v{VAO+(st>>2)} offset:{(st&3)*8192+ks*4096+tt*1024}")
            else: out += [f"ds_read_b32 v{AF+rs*8+tt*4+q}, v{VAE} offset:{ks*4096+tt*1024+q*64}" for q in range(4)]
        for dt in range(3):
            for hf in range(2):
                out.append(f"ds_read_b64_tr_b16 {v(BF+rs*12+dt*4+hf*2,2)}, v{VTR+3*(slot//4)+dt} offset:{(slot%4)*WS_+ks*6144+hf*3072}")
        return out
    def mf(n):
        rs = n % 3
        return [f"v_mfma_f32_16x16x32_bf16 {v(ACC+(tt*3+dt)*4,4)}, {v(AF+rs*8+tt*4,4)}, {v(BF+rs*12+dt*4,4)}, {v(ACC+(tt*3+dt)*4,4)}"
                for tt in range(2) for dt in range(3)]
    k(f"s_mul_i32 s30, s26, 6144\ns_mul_i32 s31, s27, 96\ns_add_u32 s30, s30, s31\ns_add_u32 s30, s30, {LX}\nv_mul_u32_u24 v{T0}, 192, v{VI}\nv_and_b32 v{T1}, 16, v{VL}\nv_add3_u32 v{T0}, v{T0}, v{T1}, s30")
    for q in range(6): k(f"ds_read_b128 {v(XR+q*4,4)}, v{T0} offset:{(q//3)*3072+(q%3)*32}")
    k("s_waitcnt lgkmcnt(0)")
    for q in range(6):
        k(f"v_mfma_f32_16x16x32_bf16 {v(ACC+q*4,4)}, {v(XR+q*4,4)}, {v(IDN,4)}, 0")
    k("s_barrier")
    if os.environ.get("P3S"): k("STAMP 12")
    for t in reads(0) + reads(1): k(t)
    for n in range(18):
        if n in (2, 16): k("s_waitcnt lgkmcnt(0)\ns_barrier")
        elif n in (8, 12): k(f"s_waitcnt lgkmcnt({len(reads(n + 1))})\ns_barrier")
        elif n < 16: k(f"s_waitcnt lgkmcnt({len(reads(n + 1))})")
        if os.environ.get("P3S") and n in (8, 12): k(f"STAMP {13 + (n == 12)}")
        for t in interleave(mf(n), reads(n + 2) if n + 2 < 18 else [], 0, 2): k(t)
    k("STAMP 5")
    PK = XR; ST = AF
    for dt in range(3):
        for tt in range(2):
            ac = ACC + (tt * 3 + dt) * 4
            k(f"v_cvt_pk_bf16_f32 v{PK+dt*4+tt*2}, v{ac}, v{ac+1}\nv_cvt_pk_bf16_f32 v{PK+dt*4+tt*2+1}, v{ac+2}, v{ac+3}")
    for dt in range(3):
        for tt in range(2):
            for h2 in range(2):
                p = PK + dt * 4 + tt * 2 + h2
                x0 = ACC + (tt * 3 + dt) * 4 + 2 * h2
                k(f"v_lshlrev_b32 v{x0}, 16, v{p}\nv_and_b32 v{x0+1}, 0xffff0000, v{p}")
                sm, sq_ = ST + tt * 4 + 2 * h2, ST + 8 + tt * 4 + 2 * h2
                if dt == 0: k(f"v_pk_mul_f32 {v(sq_,2)}, {v(x0,2)}, {v(x0,2)}")
                else: k(f"v_pk_fma_f32 {v(sq_,2)}, {v(x0,2)}, {v(x0,2)}, {v(sq_,2)}")
                if dt == 1: k(f"v_pk_add_f32 {v(sm,2)}, {v(x0-4,2)}, {v(x0,2)}")
                if dt == 2: k(f"v_pk_add_f32 {v(sm,2)}, {v(sm,2)}, {v(x0,2)}")
    for sh in (8, 4, 2, 1):
        for r in range(16):
            k(f"v_add_f32_dpp v{ST+r}, v{ST+r}, v{ST+r} row_ror:{sh} row_mask:0xf bank_mask:0xf")
    SG = BF + 12
    for r in range(8): k(f"v_mov_b32 v{SG+2*r}, v{ST+r}\nv_or_b32 v{SG+2*r+1}, 0x80000000, v{ST+8+r}")
    k(f"s_lshl_b32 s31, s24, 1\ns_add_u32 s31, s31, s26")
    k(f"s_lshl_b32 s33, s31, 8\ns_add_u32 s33, s33, {WS_ST}")
    k(f"s_lshl_b32 s30, s25, 1\ns_add_u32 s30, s30, s27\ns_lshl_b32 s30, s30, 14\ns_add_u32 s30, s30, s33")
    k(f"v_cmp_eq_u32 s[38:39], 1, v{VI}\nv_cmp_eq_u32 s[40:41], 2, v{VI}\nv_cmp_eq_u32 s[42:43], 3, v{VI}\nv_cmp_gt_u32 vcc, 4, v{VI}")
    k(f"v_lshrrev_b32 v{T0}, 1, v{VI}\nv_lshlrev_b32 v{T0}, 7, v{T0}\nv_lshl_add_u32 v{T0}, v{VG}, 5, v{T0}\nv_and_b32 v{T1}, 1, v{VI}\nv_lshl_add_u32 v{T0}, v{T1}, 4, v{T0}")
    for q in range(1, 4):
        for r in range(4): k(f"v_cndmask_b32 v{SG+r}, v{SG+r}, v{SG+4*q+r}, s[{36+2*q}:{37+2*q}]")
    k(f"s_and_saveexec_b64 s[38:39], vcc\nbuffer_store_dwordx4 {v(SG,4)}, v{T0}, s[20:23], s30 offen{WT}\ns_mov_b64 exec, s[38:39]")
    VH = VTR
    k(f"v_lshlrev_b32 v{VH}, 4, v{VL}")
    k(f"s_mul_i32 s30, s25, 6\ns_mul_i32 s32, s27, 3\ns_add_u32 s30, s30, s32\ns_mul_i32 s30, s30, {PS}")
    k(f"s_lshl_b32 s32, s31, 10\ns_add_u32 s30, s30, s32\ns_add_u32 s32, s30, {WS_HN}\ns_add_u32 s30, s30, {WS_H}")
    k("s_mov_b32 s35, s30")
    VS = VTR + 1
    P = BF
    k(f"v_lshrrev_b32 v{T0}, 5, v{VL}\nv_mul_u32_u24 v{VS}, {6*16384}, v{T0}\nv_and_b32 v{T0}, 31, v{VL}\nv_lshl_add_u32 v{VS}, v{T0}, 3, v{VS}")
    for p in range(6): k(f"s_add_u32 s{40+p}, s33, {p*16384}")
    POLL = k.lab("POLL"); GO = k.lab("GO")
    k(f"s_mov_b32 s37, 0x40000" + ("" if 'nosw' in XM else "\ns_waitcnt vmcnt(0)") + f"\n{POLL}:")
    for p in range(6):
        k(f"buffer_load_dwordx2 {v(P+2*p,2)}, v{VS}, s[20:23], s{40+p} offen sc0 sc1")
    k("s_waitcnt vmcnt(0)")
    k(f"v_and_b32 v{T1}, v{P+1}, v{P+3}\nv_and_b32 v{T2}, v{P+5}, v{P+7}\nv_and_b32 v{T3}, v{P+9}, v{P+11}\nv_and_b32 v{T1}, v{T1}, v{T2}\nv_and_b32 v{T1}, v{T1}, v{T3}")
    k(f"v_cmp_le_i32 vcc, 0, v{T1}\ns_sub_u32 s37, s37, 1\ns_cmp_eq_u32 s37, 0\ns_cbranch_scc1 {GO}\ns_cbranch_vccz {GO}\ns_sleep 1\ns_branch {POLL}\n{GO}:")
    if os.environ.get("P3S"): k("STAMP 15")
    for dt in range(3):
        k(f"buffer_store_dwordx4 {v(PK+dt*4,4)}, v{VH}, s[20:23], s35 offen{WT}\ns_add_u32 s35, s35, {PS}")
    for p in range(1, 6):
        k(f"v_add_f32 v{P}, v{P}, v{P+2*p}\nv_add_f32 v{P+1}, v{P+1}, v{P+2*p+1}")
    k(f"v_mov_b32 v{P+2}, v{P}\nv_mov_b32 v{P+3}, v{P+1}")
    k(f"v_permlane32_swap_b32 v{P}, v{P+2}\nv_permlane32_swap_b32 v{P+1}, v{P+3}")
    k(f"v_add_f32 v{P}, v{P}, v{P+2}\nv_add_f32 v{P+1}, v{P+1}, v{P+3}")
    k(f"s_mov_b32 s34, {f32(1.0/576)}")
    mn, sq = P, P + 1
    k(f"v_mul_f32 v{mn}, s34, v{mn}\nv_mul_f32 v{sq}, s34, -v{sq}\nv_fma_f32 v{sq}, -v{mn}, v{mn}, v{sq}\nv_max_f32 v{sq}, 0, v{sq}")
    k(f"v_add_f32 v{P+2}, {f32(1e-5)}, v{sq}\nv_rsq_f32 v{P+2}, v{P+2}")
    k(f"v_mul_f32 v{sq}, v{sq}, v{P+2}\nv_mul_f32 v{sq}, v{sq}, v{P+2}\nv_add_f32 v{sq}, {f32(1e-5)}, v{sq}\nv_rsq_f32 v{sq}, v{sq}")
    k(f"v_mul_f32 v{P+2}, v{P+2}, v{sq}\nv_mul_f32 v{P+3}, -v{mn}, v{P+2}")
    k(f"s_lshl_b32 s33, s28, 8\ns_add_u32 s33, s33, {LAB}\nv_lshlrev_b32 v{T0}, 3, v{T0}\nv_add_u32 v{T0}, s33, v{T0}")
    k(f"ds_write_b64 v{T0}, {v(P+2,2)}")
    k(f"v_lshlrev_b32 v{T0}, 5, v{VG}\nv_add_u32 v{T0}, s33, v{T0}\ns_waitcnt lgkmcnt(0)")
    AB = ST
    for q in range(4):
        k(f"ds_read_b128 {v(AB+4*q,4)}, v{T0} offset:{(q>>1)*128+(q&1)*16}")
    k(f"s_lshl_b32 s30, s25, 12\ns_lshl_b32 s31, s24, 7\ns_add_u32 s30, s30, s31\ns_add_u32 s30, s30, {F3}\nv_mov_b32 v{T1}, 0\nv_mov_b32 v{T2}, 1")
    k("s_waitcnt lgkmcnt(0)")
    for dt in range(3):
        for tt in range(2):
            x0 = ACC + (tt * 3 + dt) * 4
            for r in range(4): k(f"v_fma_f32 v{x0+r}, v{x0+r}, v{AB+tt*8+2*r}, v{AB+tt*8+2*r+1}")
            k(f"v_cvt_pk_bf16_f32 v{PK+12+dt*4+tt*2}, v{x0}, v{x0+1}\nv_cvt_pk_bf16_f32 v{PK+12+dt*4+tt*2+1}, v{x0+2}, v{x0+3}")
        k(f"buffer_store_dwordx4 {v(PK+12+dt*4,4)}, v{VH}, s[20:23], s32 offen{WT}\ns_add_u32 s32, s32, {PS}")
    k("s_waitcnt vmcnt(0)")
    last_wave_flag(k, T1, T2, T3, LCNT + 4, 20, 30)
    k(f"s_branch {NXT}")
    k(f"{PROD}:\ns_and_b32 s29, s28, 1\ns_cmp_ge_u32 s28, 6\ns_cbranch_scc1 {PO}")
    VWD, VWE = 10, 16
    for q in range(6):
        k(f"v_add_u32 v{T0}, {q*64}, v{VL}")
        k(f"v_mul_u32_u24 v{T1}, 5462, v{T0}\nv_lshrrev_b32 v{T1}, 16, v{T1}")
        k(f"v_mul_u32_u24 v{T2}, 12, v{T1}\nv_sub_u32 v{T0}, v{T0}, v{T2}")
        k(f"v_bfe_u32 v{T2}, v{T1}, 2, 1\nv_lshlrev_b32 v{T2}, 1, v{T2}\nv_xor_b32 v{T0}, v{T0}, v{T2}\nv_lshlrev_b32 v{VWE+q}, 4, v{T0}")
        k(f"v_and_b32 v{T2}, 7, v{T1}")
        k(f"v_bfe_u32 v{T3}, v{T1}, 3, 1\nv_mad_u32_u24 v{T2}, v{T3}, 20, v{T2}")
        k(f"v_bfe_u32 v{T3}, v{T1}, 4, 1\nv_lshl_add_u32 v{T2}, v{T3}, 3, v{T2}")
        k(f"v_mul_u32_u24 v{T2}, 1152, v{T2}\nv_add_u32 v{VWD+q}, v{T2}, v{VWE+q}")
    k(f"s_mul_i32 s33, s25, 192\ns_mul_i32 s30, s29, {8*36*1152}\ns_add_u32 s39, s33, s30\ns_mul_i32 s30, s29, {36*1152}\ns_add_u32 s33, s33, s30")
    k(f"s_mul_i32 s35, s29, 6144\ns_add_u32 s35, s35, {WB}")
    srd(k, 16, PWO, D_ * D_ * 2)
    def issue_w(st):
        for q in range(6): k(dma(35, (st % R) * WS_ + q * 1024, (VWD if st < 8 else VWE) + q, 16, 33 if st < 8 else 39))
        k(f"s_add_u32 s33, s33, {72*1152}")
    W0 = int(os.environ.get('W3', 7))
    for st in range(W0): issue_w(st)
    for q in range(6):
        k(f"v_add_u32 v{T0}, {q*64}, v{VL}\nv_mul_u32_u24 v{T1}, 5462, v{T0}\nv_lshrrev_b32 v{T1}, 16, v{T1}\n"
          f"v_bfe_u32 v{T2}, v{T1}, 2, 2\nv_lshlrev_b32 v{T2}, 1, v{T2}\nv_bfe_u32 v{T3}, v{T1}, 4, 1\nv_add_u32 v{T2}, v{T2}, v{T3}\nv_mul_u32_u24 v{T2}, 36, v{T2}\n"
          f"v_and_b32 v{T3}, 3, v{T1}\nv_add3_u32 v{T2}, v{T2}, v{T3}, 16\nv_mul_u32_u24 v{T2}, 1152, v{T2}\nv_add_u32 v{VWE+q}, v{T2}, v{VWE+q}")
    if W0 < 7:
        wait_local(k, T0, LCNT + 20, n=1)
        for st in range(W0, 7): issue_w(st)
        k("s_waitcnt vmcnt(30)\ns_barrier\ns_waitcnt vmcnt(12)\ns_barrier")
    else: k("s_waitcnt vmcnt(0)\ns_barrier\ns_barrier")
    for st in range(7, 9): issue_w(st)
    k(f"s_waitcnt vmcnt(12)\ns_barrier\ns_waitcnt vmcnt(0)\ns_barrier\ns_barrier\ns_branch {NXT}")
    k(f"{PO}:")
    VO = 10
    k(f"v_lshrrev_b32 v{T0}, 1, v{VG}\nv_mul_u32_u24 v{T0}, {PS}, v{T0}\nv_and_b32 v{T1}, 1, v{VG}\nv_lshl_add_u32 v{T0}, v{T1}, 9, v{T0}\nv_lshl_add_u32 v{T0}, v{VI}, 4, v{T0}")
    k(f"v_lshrrev_b32 v{T1}, 2, v{VL}\nv_lshlrev_b32 v{T1}, 13, v{T1}\nv_and_b32 v{T2}, 3, v{VL}\nv_lshl_add_u32 v{T1}, v{T2}, 4, v{T1}")
    for q in range(4): k(f"v_add_u32 v{VO+q}, {(q>>1)*1024+(q&1)*256}, v{T0}\nv_add_u32 v{VO+4+q}, {q*64}, v{T1}")
    k(f"s_lshl_b32 s32, s24, 11\ns_mul_i32 s30, s29, {2*PS}\ns_add_u32 s32, s32, s30\ns_add_u32 s32, s32, {WS_OM}\ns_lshl_b32 s30, s29, 17")
    k(f"s_lshl_b32 s38, s24, 8\ns_add_u32 s38, s38, s30\ns_add_u32 s38, s38, {WS_O8}\ns_lshl_b32 s34, s29, 12")
    k(f"s_lshr_b32 s30, s24, 1\ns_lshl_b32 s30, s30, 11\ns_add_u32 s30, s30, {F2}\nv_lshlrev_b32 v{T0}, 7, v{VL}")
    W7, WD = k.lab("W7"), k.lab("WD")
    k(f"s_cmp_eq_u32 s28, 7\ns_cbranch_scc1 {W7}\n" + ("" if os.environ.get("APOLL") == "2" else "s_waitcnt vmcnt(0)\n") + "s_mov_b64 exec, 0xffff")
    poll(k, T0, T1, 1, 20, 30)
    k("s_mov_b64 exec, -1")
    lds_signal(k, T0, LCNT + 20)
    k(f"s_branch {WD}\n{W7}:")
    wait_local(k, T0, LCNT + 20, n=1)
    k(f"{WD}:\nSTAMP 5")
    def issue_o(st):
        for q in range(4): k(dma(34, st * 8192 + q * 1024, VO + q + (4 if st == 8 else 0), 20, 32 if st < 8 else 38, SC))
        k(f"s_add_u32 s32, s32, {4*PS}")
    for st in range(5): issue_o(st)
    k("s_waitcnt vmcnt(12)\ns_barrier")
    for st in range(5, 9): issue_o(st)
    k(f"s_waitcnt vmcnt(16)\ns_barrier\ns_waitcnt vmcnt(8)\ns_barrier\ns_waitcnt vmcnt(0)\ns_barrier\ns_barrier\ns_branch {NXT}")
    k(f"{PF}:\ns_sub_u32 s29, s2, 192")
    if 'early3' in XM:
        NE = k.lab("NE")
        k(f"s_cmp_lt_u32 s11, 27\ns_cbranch_scc1 {NE}")
        w1slow(k)
        k(f"{NE}:")
    pf(k, "PF3", 29, 64, 512, 10)
    r1 = int(os.environ.get("L2W1", 0))
    if r1:
        k("s_sub_u32 s29, s11, 24")
        w1_rows(k, 29, r1 // 8, 0, 0)
    k(f"s_branch {NXT}")

def p4(k, ENT, NXT):
    STG = 28672; R = int(os.environ.get('R4', 5)); N = 32; NS = (R + 1) // 2
    PROD = k.lab("P4PROD"); PF = k.lab("P4PF"); PA = k.lab("P4PA")
    k("; ==== phase 4: u = gelu_tanh(hn^T @ w1 + b1), gelu(x) = x / (1 + exp(-2 sqrt(2/pi) (x + 0.044715 x^3)))")
    k(f"{ENT}:\nSTAMP 6")
    k(f"s_cmp_ge_u32 s11, 27\ns_cbranch_scc1 {PF}")
    k("s_mul_i32 s24, s11, 10923\ns_lshr_b32 s24, s24, 16\ns_mul_i32 s25, s24, 6\ns_sub_u32 s25, s11, s25")
    k("s_and_b32 s29, s10, 1\ns_mul_i32 s30, s29, 5\ns_add_u32 s24, s24, s30")
    k("s_mul_i32 s30, s29, 3\ns_add_u32 s30, s30, s25")
    k("s_cmp_ge_u32 s11, 24\ns_cselect_b32 s24, 4, s24\ns_cselect_b32 s25, s30, s25\ns_mov_b32 s47, s24")
    k("s_lshr_b32 s30, s10, 1\ns_mul_i32 s30, s30, 9\ns_add_u32 s24, s24, s30")
    ids16(k)
    k(f"s_cmp_ge_u32 s28, 4\ns_cbranch_scc1 {PROD}")
    k("s_lshr_b32 s26, s28, 1\ns_and_b32 s27, s28, 1")
    VTR, VHR, B1, ACC, WF, HF = 10, 22, 26, 36, 84, 116
    srd(k, 16, PB1, F_ * 2)
    k(f"v_lshlrev_b32 v{T0}, 3, v{VG}\ns_lshl_b32 s30, s24, 8\ns_lshl_b32 s31, s26, 7\ns_add_u32 s30, s30, s31")
    for f4 in range(4):
        k(f"buffer_load_dwordx2 {v(B1+2*f4,2)}, v{T0}, s[16:19], s30 offen offset:{f4*32}")
    k(f"v_bfe_u32 v{T0}, v{VL}, 2, 2\nv_lshl_add_u32 v{T0}, v{VG}, 2, v{T0}")
    k(f"v_and_b32 v{T1}, 7, v{T0}\nv_lshlrev_b32 v{T0}, 8, v{T0}\nv_and_b32 v{T2}, 3, v{VL}\nv_lshl_add_u32 v{T0}, v{T2}, 3, v{T0}")
    k("s_lshl_b32 s30, s26, 2")
    for f4 in range(4):
        k(f"s_add_u32 s31, s30, {f4}\nv_xor_b32 v{T2}, s31, v{T1}\nv_lshl_add_u32 v{VTR+f4}, v{T2}, 5, v{T0}")
        for q in range(1, NS): k(f"v_add_u32 v{VTR+4*q+f4}, {2*q*STG}, v{VTR+f4}")
    k(f"s_mul_i32 s30, s27, 3072\ns_add_u32 s30, s30, 16384\nv_lshlrev_b32 v{VHR}, 4, v{VL}\nv_add_u32 v{VHR}, s30, v{VHR}")
    for q in range(1, NS): k(f"v_add_u32 v{VHR+q}, {2*q*STG}, v{VHR}")
    k(f"s_mul_i32 s31, s25, 6\ns_mul_i32 s38, s27, 3\ns_add_u32 s31, s31, s38\ns_mul_i32 s31, s31, {144*1024}")
    k(f"s_lshl_b32 s38, s24, 12\ns_add_u32 s31, s31, s38\ns_lshl_b32 s38, s26, 11\ns_add_u32 s31, s31, s38\ns_add_u32 s40, s31, {WS_U}")
    k(f"s_lshr_b32 s30, s10, 1\ns_mul_i32 s30, s30, 6\ns_add_u32 s30, s30, s25\ns_mul_i32 s30, s30, 9\ns_add_u32 s30, s30, s47\ns_lshl_b32 s30, s30, 7\ns_add_u32 s41, s30, {F4}")
    k("s_waitcnt vmcnt(0)")
    for f4 in range(4):
        for dt in range(3):
            for h2 in range(2):
                k(f"v_lshlrev_b32 v{ACC+(f4*3+dt)*4+2*h2}, 16, v{B1+f4*2+h2}\nv_and_b32 v{ACC+(f4*3+dt)*4+2*h2+1}, 0xffff0000, v{B1+f4*2+h2}")
    def reads(st, slot, ks, rs):
        hi = slot >> 1; off = (slot & 1) * STG
        out = [f"ds_read_b128 {v(HF+rs*12+dt*4,4)}, v{VHR+hi} offset:{off+ks*6144+dt*1024}" for dt in range(3)]
        for f4 in range(4):
            for hf in range(2):
                out.append(f"ds_read_b64_tr_b16 {v(WF+rs*16+f4*4+hf*2,2)}, v{VTR+4*hi+f4} offset:{off+ks*8192+hf*4096}")
        return out
    PG = int(os.environ.get("PG4", 0))
    if PG:
        k(f"s_lshl_b32 s42, s10, 7\ns_add_u32 s42, s42, {FP}\nv_mov_b32 v{B1}, 0\nv_mov_b32 v{B1+1}, 1\ns_add_u32 s43, s11, s28\ns_cmp_eq_u32 s43, 0\ns_cselect_b32 s43, {PG}, 99")
        r0 = reads
        def reads(st, slot, ks, rs):
            out = r0(st, slot, ks, rs)
            if st == 0 and ks == 1:
                L = k.lab("PG")
                out.append(f"s_cmp_lg_u32 s36, s43\ns_cbranch_scc1 {L}\ns_mov_b64 exec, 1\nbuffer_store_dword v{B1+1}, v{B1}, s[20:23], s42 offen sc0 sc1\ns_mov_b64 exec, -1\n{L}:")
            return out
    def mf(st, ks, rs):
        return [f"v_mfma_f32_16x16x32_bf16 {v(ACC+(f4*3+dt)*4,4)}, {v(WF+rs*16+f4*4,4)}, {v(HF+rs*12+dt*4,4)}, {v(ACC+(f4*3+dt)*4,4)}"
                for f4 in range(4) for dt in range(3)]
    consumer_loop(k, N, R, reads, mf, per=1, stamp0=None if (os.environ.get('P3S') or os.environ.get('P2S')) else 14, **({'groups': int(os.environ.get('G4', 2))} if os.environ.get('PIPE', '2') == '2' else {}))
    k("STAMP 7")
    c1 = -2.0 * math.sqrt(2.0 / math.pi) * math.log2(math.e)
    c2 = c1 * 0.044715
    CC = VTR
    k(f"v_mov_b32 v{CC}, {f32(c2)}\nv_mov_b32 v{CC+1}, {f32(c1)}")
    k(f"v_lshlrev_b32 v{T0}, 4, v{VL}")
    TT = WF + 16; PKD = HF
    for dt in range(3):
        for pr in range(2):
            xb = [ACC + ((2 * pr + h) * 3 + dt) * 4 for h in range(2)]
            xs = [xb[h] + r for h in range(2) for r in range(4)]
            for h in range(2):
                for h2 in range(2): k(f"v_pk_mul_f32 {v(TT+4*h+2*h2,2)}, {v(xb[h]+2*h2,2)}, {v(xb[h]+2*h2,2)}")
            for n in range(4): k(f"v_pk_fma_f32 {v(TT+2*n,2)}, {v(TT+2*n,2)}, {v(CC,2)}, {v(CC,2)} op_sel:[0,0,1] op_sel_hi:[1,0,1]")
            for h in range(2):
                for h2 in range(2): k(f"v_pk_mul_f32 {v(TT+4*h+2*h2,2)}, {v(TT+4*h+2*h2,2)}, {v(xb[h]+2*h2,2)}")
            for n in range(8): k(f"v_exp_f32 v{TT+n}, v{TT+n}")
            for n in range(4): k(f"v_pk_add_f32 {v(TT+2*n,2)}, {v(TT+2*n,2)}, 1.0 op_sel_hi:[1,0]")
            for n in range(8): k(f"v_rcp_f32 v{TT+n}, v{TT+n}")
            for h in range(2):
                for h2 in range(2): k(f"v_pk_mul_f32 {v(xb[h]+2*h2,2)}, {v(xb[h]+2*h2,2)}, {v(TT+4*h+2*h2,2)}")
            o = PKD + (dt * 2 + pr) * 4
            for n in range(4): k(f"v_cvt_pk_bf16_f32 v{o+n}, v{xs[2*n]}, v{xs[2*n+1]}")
            k(f"buffer_store_dwordx4 {v(o,4)}, v{T0}, s[20:23], s40 offen offset:{pr*1024}{WT}")
        k(f"s_add_u32 s40, s40, {144*1024}")
    k(f"v_mov_b32 v{T1}, 0\nv_mov_b32 v{T2}, 1\ns_waitcnt vmcnt(0)")
    last_wave_flag(k, T1, T2, T3, LCNT + 8, 20, 41)
    k(f"s_branch {NXT}")
    k(f"{PROD}:\ns_and_b32 s26, s28, 1\ns_cmp_ge_u32 s28, 6\ns_cbranch_scc1 {PA}")
    VD = 10
    for q in range(2):
        k(f"v_add_u32 v{T0}, {4*q}, v{VG}")
        k(f"v_lshlrev_b32 v{T1}, 1, v{T0}\nv_xor_b32 v{T1}, v{T1}, v{VI}\nv_lshlrev_b32 v{T1}, 4, v{T1}")
        k(f"v_mul_u32_u24 v{T0}, 9216, v{T0}\nv_add_u32 v{VD+q}, v{T0}, v{T1}")
    for q in range(2, 8): k(f"v_add_u32 v{VD+q}, {8*9216}, v{VD+q-2}")
    k(f"s_lshl_b32 s32, s24, 8\ns_mul_i32 s30, s26, {32*9216}\ns_add_u32 s32, s32, s30\ns_lshl_b32 s34, s26, 13")
    srd(k, 12, PW1, S_ * F_ * 2)
    if 'g4' in XM:
        NG = k.lab("NG")
        k(f"s_cmp_ge_u32 s2, 192\ns_cbranch_scc1 {NG}")
        wait_local(k, 20, LCNT + 4, n=4)
        k(f"{NG}:")
    F4N = int(os.environ.get("FIRST4", 2))
    SPF = os.environ.get("SPF", "")
    def issue_w1(st, slot):
        out = [dma(34, slot * STG + q * 1024, VD + q, 12, 32) for q in range(8)] + [f"s_add_u32 s32, s32, {64*9216}"]
        if st == F4N - 1 and SPF:
            a_, b_ = [int(t) * (S_ * F_ * 2 // 128) for t in SPF.split(":")]
            per = (b_ - a_) // 432 // 64
            t = f"s_lshl_b32 s30, s2, 1\ns_add_u32 s30, s30, s26\ns_mul_i32 s30, s30, {per*64}\ns_add_u32 s30, s30, {a_}\ns_add_u32 s60, s{PW2}, s30\ns_addc_u32 s61, s{PW2+1}, 0"
            for i in range(per): t += f"\ns_load_dword s62, s[60:61], {i*64}"
            out.append(t)
        return out
    producer_loop(k, N, R, 8, issue_w1, NXT, first=F4N)
    k(f"{PA}:")
    k(f"v_lshlrev_b32 v{VD}, 4, v{VL}")
    for q in range(1, 6): k(f"v_add_u32 v{VD+q}, {PS}, v{VD+q-1}")
    k(f"s_mul_i32 s33, s25, {6*PS}\ns_lshl_b32 s30, s26, 10\ns_add_u32 s33, s33, s30\ns_add_u32 s33, s33, {WS_HN}")
    k("s_mul_i32 s35, s26, 6144\ns_add_u32 s35, s35, 16384")
    k(f"s_lshl_b32 s30, s25, 12\ns_add_u32 s30, s30, {F3}\ns_mov_b32 s38, s30\nv_lshlrev_b32 v{T0}, 7, v{VL}")
    W7, WD = k.lab("W7"), k.lab("WD")
    k(f"s_cmp_eq_u32 s28, 7\ns_cbranch_scc1 {W7}")
    if 'nogate' not in XM:
        NG, NG2 = k.lab("NG"), k.lab("NG")
        k(f"s_cmp_ge_u32 s2, 192\ns_cbranch_scc1 {NG}")
        wait_local(k, 20, LCNT + 4)
        k(f"s_branch {NG2}\n{NG}:\ns_mov_b64 exec, 1")
        poll(k, T0, 20, 1, 20, 30, sleep=8)
        k(f"s_mov_b64 exec, -1\n{NG2}:")
    TWO = 'two4' in XM
    k(f"s_mov_b64 exec, {(1 << R) - 1}" if TWO else "s_mov_b32 exec_hi, 0")
    poll(k, T0, 20, 1, 20, 30)
    k("s_mov_b64 exec, -1")
    lds_signal(k, 20, LCNT + 24)
    k(f"s_branch {WD}\n{W7}:")
    wait_local(k, 20, LCNT + 24, n=1)
    k(f"{WD}:\nSTAMP 7")
    PG = int(os.environ.get("PG4", 0))
    def issue_hn(st, slot):
        out = [dma(35, slot * STG + q * 1024, VD + q, 20, 33, SC) for q in range(6)] + ["s_add_u32 s33, s33, 2048"]
        return out
    def second():
        A, B_ = k.lab("W7"), k.lab("WD")
        k(f"s_cmp_eq_u32 s28, 7\ns_cbranch_scc1 {A}\ns_mov_b32 exec_hi, 0")
        poll(k, T0, 20, 1, 20, 38)
        k("s_mov_b32 exec_hi, -1")
        lds_signal(k, 20, LCNT + 24, 2)
        k(f"s_branch {B_}\n{A}:")
        wait_local(k, 20, LCNT + 24, n=2)
        k(f"{B_}:")
    producer_loop(k, N, R, 6, issue_hn, NXT, **({'pre_loop': second} if TWO else {}))
    k(f"{PF}:\ns_sub_u32 s29, s2, 216")
    pf(k, "PF4", 29, 40, 512, 10)
    if 'early4' in XM: w1slow(k)
    if 'nopoison' not in XM:
        srd(k, 56, PDBG, 256)
        k(f"s_mul_i32 s30, s29, 196608\ns_add_u32 s30, s30, {WS_P}\nv_lshlrev_b32 v10, 4, v0\nv_mov_b32 v12, -1\nv_mov_b32 v13, -1\nv_mov_b32 v14, -1\nv_mov_b32 v15, -1")
        for i in range(24): k(f"buffer_store_dwordx4 v[12:15], v10, s[20:23], s30 offen{WT}\ns_add_u32 s30, s30, 8192")
        NZ = k.lab("NZ")
        k(f"v_mov_b32 v16, 4\nv_mov_b32 v17, 1\ns_waitcnt vmcnt(0)\ns_barrier\ns_cmp_lg_u32 s28, 0\ns_cbranch_scc1 {NZ}")
        k(f"s_mov_b64 exec, 1\nbuffer_atomic_add v17, v16, s[56:59], 0 offen sc1\ns_mov_b64 exec, -1\n{NZ}:")
    if 'noslow' not in XM:
        def gated(flag_off, lines_code):
            NP = k.lab("NP")
            k(f"s_cmp_lg_u32 s28, 0\ns_cbranch_scc1 {NP}\ns_mov_b32 s30, {flag_off}\nv_mov_b32 v12, 0\ns_mov_b64 exec, 1")
            poll(k, 12, 13, 1, 20, 30, sleep=8)
            k(f"s_mov_b64 exec, -1\n{NP}:\ns_barrier")
            lines_code()
        def w2slow():
            srd(k, 52, PW2, S_ * F_ * 2)
            k(f"s_lshr_b32 s60, s10, 1\ns_mul_i32 s60, s60, {1152*4096}\ns_and_b32 s61, s10, 1\ns_lshl_b32 s61, s61, 11\ns_add_u32 s60, s60, s61\ns_add_u32 s60, s60, 384")
            k(f"s_sub_u32 s62, s11, 27\nv_lshrrev_b32 v10, 1, v0\nv_mul_u32_u24 v10, 5, v10\nv_add_u32 v10, s62, v10\nv_lshlrev_b32 v10, 12, v10\nv_and_b32 v11, 1, v0\nv_lshl_add_u32 v10, v11, 10, v10")
            k(f"v_cmp_gt_u32 vcc, {2*231}, v0\nv_mov_b32 v11, 0x7ff00000\nv_cndmask_b32 v10, v11, v10, vcc")
            k(f"buffer_load_dword v{DUMMY}, v10, s[52:55], s60 offen")
        gated(F3, lambda: w1slow(k))
        if 'now2' not in XM: gated(F4 + 128 * 2, w2slow)
    if os.environ.get("PG4"):
        NP = k.lab("NP")
        k(f"s_cmp_lg_u32 s28, 0\ns_cbranch_scc1 {NP}\ns_lshl_b32 s30, s10, 7\ns_add_u32 s30, s30, {FP}\nv_mov_b32 v12, 0\ns_mov_b64 exec, 1")
        poll(k, 12, 13, 1, 20, 30, sleep=8)
        k(f"s_mov_b64 exec, -1\n{NP}:\ns_barrier")
        srd(k, 52, PW2, S_ * F_ * 2)
        k(f"s_lshr_b32 s60, s10, 1\ns_mul_i32 s60, s60, {1152*4096}\ns_and_b32 s61, s10, 1\ns_lshl_b32 s61, s61, 11\ns_add_u32 s60, s60, s61")
        k(f"s_sub_u32 s62, s11, 27\ns_mul_i32 s62, s62, {32*4096}\ns_add_u32 s60, s60, s62\nv_lshrrev_b32 v10, 4, v0\nv_lshlrev_b32 v10, 12, v10\nv_and_b32 v11, 15, v0\nv_lshl_add_u32 v10, v11, 7, v10")
        for i in range(8):
            k(f"buffer_load_dword v{DUMMY}, v10, s[52:55], s60 offen\ns_add_u32 s60, s60, {160*4096}")
    if os.environ.get("JIT4"):
        s0, sw = [int(t) for t in os.environ["JIT4"].split(",")]
        k(f"s_mov_b32 s30, {F3}\nv_lshlrev_b32 v12, 7, v0\nv_cmp_gt_u32 vcc, 192, v0\ns_and_saveexec_b64 s[62:63], vcc")
        NP = k.lab("NP")
        k(f"s_cbranch_execz {NP}")
        poll(k, 12, 13, 1, 20, 30)
        k(f"{NP}:\ns_mov_b64 exec, -1\ns_barrier")
        w1_addr(k, 10)
        k("s_sub_u32 s29, s11, 27")
        k(f"v_lshrrev_b32 v12, 4, v0\nv_mul_u32_u24 v12, {PS}, v12\nv_and_b32 v13, 15, v0\nv_lshl_add_u32 v12, v13, 7, v12")
        k(f"v_add_u32 v13, {32*PS}, v12\nv_mov_b32 v14, 0x7ff00000\nv_cmp_gt_u32 vcc, 64, v0\nv_cndmask_b32 v13, v14, v13, vcc")
        k(f"s_lshl_b32 s61, s29, 11\ns_add_u32 s61, s61, {WS_HN + s0*2048}\ns_mul_i32 s62, s29, {64*9216}\ns_add_u32 s60, s60, s62\ns_add_u32 s60, s60, {s0*64*9216}")
        for st in range(s0, 32, 5):
            k(f"buffer_load_dword v{DUMMY}, v12, s[20:23], s61 offen\nbuffer_load_dword v{DUMMY}, v13, s[20:23], s61 offen\ns_add_u32 s61, s61, {5*2048}")
            if st + 4 >= sw:
                k(f"buffer_load_dword v{DUMMY}, v10, s[52:55], s60 offen\ns_add_u32 s62, s60, {32*9216}\nbuffer_load_dword v{DUMMY}, v10, s[52:55], s62 offen")
            k(f"s_add_u32 s60, s60, {5*64*9216}")
    k(f"s_branch {NXT}")

def p5(k, ENT):
    STG = 34816; R = 4; N = 18
    PROD = k.lab("P5PROD"); PA = k.lab("P5PA"); FIN = k.lab("FIN")
    k(f"{ENT}:\nSTAMP 8")
    k("s_lshr_b32 s26, s10, 1\ns_and_b32 s25, s11, 3\ns_lshr_b32 s24, s11, 2")
    if 'nomap5' not in XM:
        k("s_sub_u32 s30, s10, 5\ns_cmp_lt_u32 s30, 2\ns_cselect_b32 s30, 7, 6\ns_add_u32 s24, s24, s30\ns_and_b32 s24, s24, 7")
    k("s_and_b32 s29, s10, 1\ns_lshl_b32 s29, s29, 3\ns_add_u32 s24, s24, s29\ns_and_b32 s29, s26, 1")
    ids16(k)
    k(f"s_cmp_ge_u32 s28, 4\ns_cbranch_scc1 {PROD}")
    VTR = 10; VUR = VTR + 2 * R; B2 = VUR + R
    IDN, HR, UF = 24, 28, 48
    WF = UF + 72; ACC = WF + 16
    srd(k, 16, PB2, S_ * 2)
    srd(k, 40, POUT, S_ * D_ * 2)
    k(f"s_lshl_b32 s30, s24, 8\ns_lshl_b32 s31, s28, 6\ns_add_u32 s30, s30, s31\ns_lshl_b32 s31, s29, 5\ns_add_u32 s30, s30, s31\nv_lshlrev_b32 v{T0}, 1, v{VI}")
    k(f"buffer_load_ushort v{B2}, v{T0}, s[16:19], s30 offen")
    k(f"v_lshlrev_b32 v{T3}, 4, v{VL}")
    k(f"s_mul_i32 s49, s25, {9*PS}\ns_lshl_b32 s32, s24, 12\ns_add_u32 s49, s49, s32\ns_lshl_b32 s32, s28, 10\ns_add_u32 s49, s49, s32\ns_add_u32 s49, s49, {WS_H}")
    k(f"s_lshr_b32 s32, s26, 1\ns_mul_i32 s32, s32, {5*PS}\ns_add_u32 s49, s49, s32")
    k(f"v_bfe_u32 v{T0}, v{VL}, 2, 2\nv_lshl_add_u32 v{T0}, v{VG}, 2, v{T0}")
    k(f"v_and_b32 v{T1}, 7, v{T0}\nv_lshlrev_b32 v{T0}, 8, v{T0}\nv_and_b32 v{T2}, 3, v{VL}\nv_lshl_add_u32 v{T0}, v{T2}, 3, v{T0}")
    k("s_lshl_b32 s30, s28, 1\ns_add_u32 s30, s30, s29")
    for l in range(2):
        k(f"s_xor_b32 s31, s30, {l}\nv_xor_b32 v{T2}, s31, v{T1}\nv_lshl_add_u32 v{VTR+l}, v{T2}, 5, v{T0}")
        for sl in range(1, R): k(f"v_add_u32 v{VTR+2*sl+l}, {sl*STG}, v{VTR+l}")
    k(f"v_lshlrev_b32 v{VUR}, 4, v{VL}\nv_add_u32 v{VUR}, 16384, v{VUR}")
    for sl in range(1, R): k(f"v_add_u32 v{VUR+sl}, {sl*STG}, v{VUR}")
    k(f"v_lshlrev_b32 v{T0}, 2, v{VG}\nv_sub_u32 v{T0}, v{VI}, v{T0}\nv_mov_b32 v{T1}, 0x3f80\nv_mov_b32 v{T2}, 0x3f800000")
    k("s_cmp_eq_u32 s29, 0\ns_cselect_b64 s[38:39], -1, 0")
    for j2 in range(2):
        k(f"v_cmp_eq_u32 vcc, {2*j2}, v{T0}\nv_cndmask_b32 v{UF}, 0, v{T1}, vcc")
        k(f"v_cmp_eq_u32 vcc, {2*j2+1}, v{T0}\nv_cndmask_b32 v{UF}, v{UF}, v{T2}, vcc")
        k(f"v_cndmask_b32 v{IDN+j2}, 0, v{UF}, s[38:39]\nv_cndmask_b32 v{IDN+2+j2}, v{UF}, 0, s[38:39]")
    for r in range(72): k(f"v_mov_b32 v{ACC+r}, 0")
    k(f"s_lshl_b32 s32, s24, 2\ns_add_u32 s32, s32, s25")
    k(f"s_mul_i32 s33, s32, {48*2560}\ns_mul_i32 s30, s28, 2560\ns_add_u32 s33, s33, s30\ns_add_u32 s33, s33, {PB}")
    for x in (1, 2, 3):
        k(f"s_xor_b32 s30, s26, {x}\ns_sub_u32 s31, s26, s30\ns_sub_u32 s31, s31, 1\ns_and_b32 s31, s31, 3")
        k(f"s_mul_i32 s30, s30, 3\ns_add_u32 s30, s30, s31\ns_mul_i32 s30, s30, {4*2560}\ns_add_u32 s{44+x}, s30, s33")
    k(f"s_mul_i32 s30, s26, {12*2560}\ns_add_u32 s33, s33, s30")
    k(f"s_lshl_b32 s35, s32, 11\ns_lshl_b32 s30, s28, 9\ns_add_u32 s35, s35, s30\ns_add_u32 s35, s35, {F5}\ns_lshl_b32 s30, s26, 7\ns_add_u32 s34, s30, s35")
    k(f"s_lshl_b32 s48, s24, 7\ns_lshl_b32 s31, s28, 5\ns_add_u32 s48, s48, s31\ns_lshl_b32 s31, s29, 4\ns_add_u32 s48, s48, s31\ns_mul_i32 s48, s48, 1152\ns_mul_i32 s31, s25, 288\ns_add_u32 s48, s48, s31")
    POIS = 'nopoison' not in XM
    PZ = ACC + 73
    srd(k, 56, PDBG, 256)
    k(f"v_mov_b32 v{PZ-1}, 4")
    firstr = [True]
    def reads(st, slot, ks, rs):
        out = []
        for l in range(2):
            for hf in range(2):
                out.append(f"ds_read_b64_tr_b16 {v(WF+rs*8+l*4+hf*2,2)}, v{VTR+2*slot+l} offset:{ks*8192+hf*4096}")
        for d in range(9):
            out.append(f"ds_read_b128 {v(UF+rs*36+d*4,4)}, v{VUR+slot} offset:{ks*9216+d*1024}")
        if firstr[0]:
            firstr[0] = False
            if POIS: out.append(f"buffer_load_dword v{PZ}, v{PZ-1}, s[56:59], 0 offen sc0 sc1")
            for d in range(5): out.append(f"buffer_load_dwordx4 {v(HR+4*d,4)}, v{T3}, s[20:23], s49 offen{SC}\ns_add_u32 s49, s49, {PS}")
        return out
    def mf(st, ks, rs):
        return [f"v_mfma_f32_16x16x32_bf16 {v(ACC+(d*2+l)*4,4)}, {v(UF+rs*36+d*4,4)}, {v(WF+rs*8+l*4,4)}, {v(ACC+(d*2+l)*4,4)}"
                for d in range(9) for l in range(2)]
    consumer_loop(k, N, R, reads, mf, per=1, final_barrier=False, stamp0=None if (os.environ.get('P3S') or os.environ.get('P2S')) else 15)
    k("STAMP 9")
    V16, V8, VZ, VO = VTR, VTR + 1, VTR + 2, VTR + 3
    k(f"v_lshlrev_b32 v{V16}, 4, v{VL}\nv_lshlrev_b32 v{V8}, 3, v{VL}\nv_mov_b32 v{VZ}, 0\nv_mov_b32 v{T2}, 1\ns_waitcnt vmcnt(0)")
    if POIS:
        OK = k.lab("POK")
        k(f"v_cmp_gt_u32 vcc, 40, v{PZ}\ns_mov_b32 s31, 0\ns_nop 3\ns_cbranch_vccz {OK}")
        poll(k, PZ - 1, PZ, 1, 56, 31, want=40)
        k(f"{OK}:")
    GA, GB = [0, 1, 2, 3, 4], [5, 6, 7, 8]
    def epi(aa):
        own, oth = (GA, GB) if aa == 0 else (GB, GA)
        PK = UF
        n = 0
        for x, grp, l in ((2, oth, 0), (3, oth, 1), (1, own, 1)):
            for c in range(0, len(grp), 2):
                ds = grp[c:c + 2]
                for e, d in enumerate(ds):
                    ac = ACC + (d * 2 + l) * 4
                    k(f"v_cvt_pk_bf16_f32 v{PK+n+2*e}, v{ac}, v{ac+1}\nv_cvt_pk_bf16_f32 v{PK+n+2*e+1}, v{ac+2}, v{ac+3}")
                if len(ds) == 2: k(f"buffer_store_dwordx4 {v(PK+n,4)}, v{V16}, s[20:23], s{44+x} offen offset:{c*512}{WT}")
                else: k(f"buffer_store_dwordx2 {v(PK+n,2)}, v{V8}, s[20:23], s{44+x} offen offset:{c*512}{WT}")
                n += 4
        for e, d in enumerate(own):
            ac = v(ACC + d * 8, 4)
            k(f"v_mfma_f32_16x16x32_bf16 {ac}, {v(HR+4*e,4)}, {v(IDN,4)}, {ac}")
        k(f"v_lshlrev_b32 v{B2}, 16, v{B2}")
        k(f"v_mul_u32_u24 v{VO}, 1152, v{VI}\nv_lshl_add_u32 v{VO}, v{VG}, 3, v{VO}")
        RR = UF + 40
        chunks = [own[c:c + 2] for c in range(0, len(own), 2)]
        k(f"s_add_u32 s30, s33, {4*2560}\ns_add_u32 s31, s33, {8*2560}")
        def inbox():
            regs = []
            for ci, ds in enumerate(chunks):
                for sl, so in enumerate((33, 30, 31)):
                    r = RR + (ci * 3 + sl) * 4
                    if len(ds) == 2: k(f"buffer_load_dwordx4 {v(r,4)}, v{V16}, s[20:23], s{so} offen offset:{ci*1024} sc0 sc1")
                    else: k(f"buffer_load_dwordx2 {v(r,2)}, v{V8}, s[20:23], s{so} offen offset:{ci*1024} sc0 sc1")
                    regs += list(range(r, r + 2 * len(ds)))
            return regs
        def addb2():
            for d in own:
                for h2 in range(2): k(f"v_pk_add_f32 {v(ACC+d*8+2*h2,2)}, {v(ACC+d*8+2*h2,2)}, {v(B2-(B2&1),2)} op_sel:[0,{B2&1}] op_sel_hi:[1,{B2&1}]")
        if POIS:
            addb2()
            PL, GO = k.lab("PP"), k.lab("PG")
            k(f"s_mov_b32 s37, 0x40000\ns_waitcnt vmcnt({os.environ.get('PWAIT', 0)})\n{PL}:")
            regs = inbox()
            k(f"s_waitcnt vmcnt(0)\nv_max_u32 v{T0}, v{regs[0]}, v{regs[1]}")
            for n in range(2, len(regs), 2): k(f"v_max3_u32 v{T0}, v{T0}, v{regs[n]}, v{regs[n+1]}")
            k(f"v_cmp_eq_u32 vcc, -1, v{T0}\ns_sub_u32 s37, s37, 1\ns_cmp_eq_u32 s37, 0\ns_cbranch_scc1 {GO}\ns_cbranch_vccz {GO}\ns_sleep 2\ns_branch {PL}\n{GO}:\nSTAMP 10")
        else:
            k("s_waitcnt vmcnt(0)" + ("\nSTAMP 12" if os.environ.get("P5S") else ""))
            set_flag(k, VZ, T2, 20, 34)
            if 'fw' in XM: k("s_waitcnt vmcnt(0)")
            addb2()
            k(f"v_lshlrev_b32 v{T0}, 7, v{VL}\ns_mov_b64 exec, 0xf")
            poll(k, T0, HR, 1, 20, 35)
            k("s_mov_b64 exec, -1\nSTAMP 10")
            inbox()
        TR = 'notr' not in XM
        nch = 2 * len(own)
        if TR:
            k(f"s_mul_i32 s30, s28, 2816\ns_add_u32 s30, s30, {3*STG}\nv_mul_u32_u24 v{VO}, 176, v{VI}\nv_lshl_add_u32 v{VO}, v{VG}, 3, v{VO}\nv_add_u32 v{VO}, s30, v{VO}")
            nin = -(-16 * nch // 64)
            for q in range(nin):
                k(f"v_add_u32 v{T0}, {q*64}, v{VL}\nv_mul_u32_u24 v{T1}, {-(-65536//nch)}, v{T0}\nv_lshrrev_b32 v{T1}, 16, v{T1}\nv_mul_u32_u24 v{T2}, {nch}, v{T1}\nv_sub_u32 v{T0}, v{T0}, v{T2}\nv_lshlrev_b32 v{T0}, 4, v{T0}")
                k(f"v_mul_u32_u24 v{T2}, 176, v{T1}\nv_add3_u32 v{HR+q}, v{T2}, v{T0}, s30\nv_mul_u32_u24 v{T2}, 1152, v{T1}\nv_add_u32 v{HR+4+q}, v{T2}, v{T0}")
        nst = 0
        for ci, ds in enumerate(chunks):
            if not POIS: k(f"s_waitcnt vmcnt({3*(len(chunks)-1-ci)+nst})")
            for e, d in enumerate(ds):
                o = ACC + d * 8
                for sl in range(3):
                    for h2 in range(2):
                        p = RR + (ci * 3 + sl) * 4 + 2 * e + h2
                        t = PK + (sl * 2 + h2) * 2
                        k(f"v_lshlrev_b32 v{t}, 16, v{p}\nv_and_b32 v{t+1}, 0xffff0000, v{p}")
                for sl in range(3):
                    for h2 in range(2):
                        t = PK + (sl * 2 + h2) * 2
                        k(f"v_pk_add_f32 {v(o+2*h2,2)}, {v(o+2*h2,2)}, {v(t,2)}")
                k(f"v_cvt_pk_bf16_f32 v{o}, v{o}, v{o+1}\nv_cvt_pk_bf16_f32 v{o+1}, v{o+2}, v{o+3}")
                if TR: k(f"ds_write_b64 v{VO}, {v(o,2)} offset:{(d-own[0])*32}")
                else:
                    k(f"buffer_store_dwordx2 {v(o,2)}, v{VO}, s[40:43], s48 offen offset:{d*32}" + os.environ.get("OUTF", " nt"))
                    nst += 1
        if TR:
            k("s_waitcnt lgkmcnt(0)")
            for q in range(nin): k(f"ds_read_b128 {v(PK+16+4*q,4)}, v{HR+q}")
            for q in range(nin):
                k(f"s_waitcnt lgkmcnt({nin-1-q})")
                if (q + 1) * 64 > 16 * nch: k("s_mov_b32 exec_hi, 0")
                k(f"buffer_store_dwordx4 {v(PK+16+4*q,4)}, v{HR+4+q}, s[40:43], s48 offen offset:{own[0]*32}" + os.environ.get("OUTF", " nt"))
        k("s_endpgm")
    A1 = k.lab("A1")
    k(f"s_cmp_ge_u32 s26, 2\ns_cbranch_scc1 {A1}")
    epi(0)
    k(f"{A1}:")
    epi(1)
    k(f"{PROD}:\ns_and_b32 s29, s28, 1")
    ORD = 'noord' not in XM
    k("s_sub_u32 s38, 1, s26\ns_and_b32 s38, s38, 3\ns_cmp_eq_u32 s38, 0\ns_cselect_b32 s39, 6, 7")
    R5 = 'rot5' in XM
    if R5: k("s_and_b32 s50, s24, 7\ns_sub_u32 s30, s50, s39\ns_cmp_ge_u32 s50, s39\ns_cselect_b32 s50, s30, s50")
    for n in range(9):
        if not ORD:
            k(f"s_mov_b32 s{40+n}, {n}"); continue
        if R5:
            k(f"s_add_u32 s51, s50, {n}\ns_sub_u32 s30, s51, s39\ns_cmp_ge_u32 s51, s39\ns_cselect_b32 s51, s30, s51\ns_mov_b32 s{40+n}, s51")
            for d in (0, 3, 6):
                k(f"s_add_u32 s30, s38, {d}\ns_cmp_le_u32 s30, s51\ns_addc_u32 s{40+n}, s{40+n}, 0")
        else:
          k(f"s_mov_b32 s{40+n}, {n}")
          for d in (0, 3, 6):
            if n - d >= 0: k(f"s_cmp_le_u32 s38, {n-d}\ns_addc_u32 s{40+n}, s{40+n}, 0")
        if n >= 6: k(f"s_sub_u32 s30, {n}, s39\ns_lshl_b32 s30, s30, 2\ns_add_u32 s30, s30, s38\ns_cmp_le_u32 s39, {n}\ns_cselect_b32 s{40+n}, s30, s{40+n}")
    k(f"s_cmp_ge_u32 s28, 6\ns_cbranch_scc1 {PA}")
    VD = 10
    for q in range(2):
        k(f"v_add_u32 v{T0}, {4*q}, v{VG}")
        k(f"v_lshlrev_b32 v{T1}, 1, v{T0}\nv_xor_b32 v{T1}, v{T1}, v{VI}\nv_lshlrev_b32 v{T1}, 4, v{T1}")
        k(f"v_lshl_add_u32 v{VD+q}, v{T0}, 12, v{T1}")
    for q in range(2, 8): k(f"v_add_u32 v{VD+q}, {8*4096}, v{VD+q-2}")
    k(f"s_mul_i32 s32, s26, {1152*4096}\ns_lshl_b32 s30, s29, 17\ns_add_u32 s32, s32, s30\ns_lshl_b32 s30, s24, 8\ns_add_u32 s32, s32, s30\ns_lshl_b32 s34, s29, 13")
    srd(k, 12, PW2, F_ * S_ * 2)
    if 'g5' in XM:
        NG = k.lab("NG")
        k(f"s_cmp_ge_u32 s2, 216\ns_cbranch_scc1 {NG}")
        wait_local(k, 20, LCNT + 8, n=4)
        k(f"{NG}:")
    producer_loop(k, N, R, 8, lambda st, slot: [f"s_lshl_b32 s33, s{40+(st>>1)}, 19\ns_add_u32 s33, s33, s32" + (f"\ns_add_u32 s33, s33, {64*4096}" if st & 1 else "")] +
                  [dma(34, slot * STG + q * 1024, VD + q, 12, 33) for q in range(8)], FIN, final_barrier=False, first=int(os.environ.get("FIRST5", 2)), gate=lambda st: None)
    k(f"{PA}:")
    k(f"v_lshlrev_b32 v{VD}, 4, v{VL}")
    for d in range(1, 9): k(f"v_add_u32 v{VD+d}, {144*1024}, v{VD+d-1}")
    k(f"s_mul_i32 s33, s25, {9*144*1024}\ns_mul_i32 s30, s26, {36*1024}\ns_add_u32 s33, s33, s30\ns_lshl_b32 s30, s29, 10\ns_add_u32 s33, s33, s30\ns_add_u32 s33, s33, {WS_U}")
    k("s_mul_i32 s35, s29, 9216\ns_add_u32 s35, s35, 16384")
    k(f"s_mul_i32 s30, s25, 3\ns_lshr_b32 s30, s30, 1\ns_mul_i32 s31, s26, 6\ns_add_u32 s30, s30, s31\ns_mul_i32 s30, s30, {9*128}\ns_add_u32 s30, s30, {F4}")
    k(f"v_lshlrev_b32 v{T0}, 7, v{VL}")
    W7, WD = k.lab("W7"), k.lab("WD")
    k(f"s_mov_b32 s49, s30\ns_cmp_eq_u32 s28, 7\ns_cbranch_scc1 {W7}")
    if 'nogate' not in XM:
        NG, NG2 = k.lab("NG"), k.lab("NG")
        k(f"s_cmp_ge_u32 s2, 216\ns_cbranch_scc1 {NG}")
        wait_local(k, 20, LCNT + 8)
        k(f"s_branch {NG2}\n{NG}:\ns_lshl_b32 exec_lo, 1, s40\ns_mov_b32 exec_hi, 0")
        poll(k, T0, 20, 1, 20, 30, sleep=8)
        k(f"{NG2}:")
    TWO5 = 'two5' in XM
    if TWO5: k("s_lshl_b32 s31, 1, s40\ns_lshl_b32 s51, 1, s41\ns_or_b32 s31, s31, s51\ns_mul_i32 exec_lo, s31, 0x201\ns_mov_b32 exec_hi, 0")
    else: k("s_lshl_b32 s31, 0x111, s38\ns_and_b32 s31, s31, 0x1ff\ns_mul_i32 s31, s31, 0x201\ns_andn2_b32 exec_lo, 0x3ffff, s31\ns_mov_b32 exec_hi, 0\ns_mov_b32 s49, s30" if ORD else "s_mov_b64 exec, 0x3ffff")
    poll(k, T0, 20, 1, 20, 30)
    k("s_mov_b64 exec, -1")
    lds_signal(k, 20, LCNT + 28)
    k(f"s_branch {WD}\n{W7}:")
    wait_local(k, 20, LCNT + 28, n=1)
    k(f"{WD}:\nSTAMP 9")
    def gate(st):
        if st == 4 and TWO5:
            k("s_lshl_b32 s31, 0x111, s38\ns_and_b32 s31, s31, 0x1ff\ns_mul_i32 s31, s31, 0x201\ns_andn2_b32 exec_lo, 0x3ffff, s31\ns_mov_b32 exec_hi, 0")
            poll(k, T0, 20, 1, 20, 49)
            k("s_mov_b64 exec, -1")
        if st == 12 and ORD:
            k("s_mov_b64 exec, 0x3ffff")
            poll(k, T0, 20, 1, 20, 49)
            k("s_mov_b64 exec, -1")
    producer_loop(k, N, R, 9, lambda st, slot: [f"s_lshl_b32 s32, s{40+(st>>1)}, 12\ns_add_u32 s32, s32, s33" + ("\ns_add_u32 s32, s32, 2048" if st & 1 else "")] +
                  [dma(35, slot * STG + q * 1024, VD + q, 20, 32, SC) for q in range(9)], FIN, final_barrier=False, gate=gate)
    k(f"{FIN}:\ns_endpgm")

NAME = "sequential_preLN__sliding_block__mixer_token_mlp__prompt_kernel"
def gen_mega():
    k = Kern(NAME, 512, 256, LCNT + 64)
    k.lab = (lambda f: (lambda base="L": f(base).replace(NAME[:-7], "m")))(k.lab)
    END = k.lab("END")
    k(f"s_cmp_ge_u32 s2, 256\ns_cbranch_scc1 {END}")
    k("s_load_dwordx16 s[64:79], s[0:1], 0\ns_load_dwordx4 s[80:83], s[0:1], 64\ns_load_dwordx2 s[84:85], s[0:1], 80")
    k("s_and_b32 s10, s2, 7\ns_lshr_b32 s11, s2, 3")
    if 'nocode' not in XM:
        H = k.lab("PC"); SK = k.lab("SKC")
        k(f"s_cmp_lt_u32 s2, 192\ns_cbranch_scc1 {SK}\ns_getpc_b64 s[60:61]\n{H}:\ns_sub_u32 s60, s60, {H}-L_text_begin\ns_subb_u32 s61, s61, 0")
        k(f"s_sub_u32 s62, s11, 24\ns_lshl_b32 s62, s62, 7\nv_lshlrev_b32 v{T0}, 10, v0\nv_add_u32 v{T0}, s62, v{T0}")
        k(f"s_mov_b32 s62, L_text_end-L_text_begin\nv_cmp_gt_u32 vcc, s62, v{T0}\ns_and_saveexec_b64 s[62:63], vcc\ns_cbranch_execz {SK}\nglobal_load_dword v{DUMMY}, v{T0}, s[60:61]\n{SK}:\ns_mov_b64 exec, -1")
    lane_ids(k, VL, 2, 28)
    E2a, E2b, E3, E4, E5 = [k.lab(n) for n in ("P2A", "P2B", "P3", "P4", "P5")]
    p1(k, (E2a, E2b))
    p2(k, (E2a, E2b), E3)
    p3(k, E3, E4)
    p4(k, E4, E5)
    p5(k, E5)
    k(f"{END}:\ns_endpgm")
    return k
```
